```python
import torch

def _softmax(x, axis=-1):
    return torch.softmax(x, dim=axis)
def _gelu(x):
    return torch.nn.functional.gelu(x, approximate="tanh")
def _silu(x):
    return torch.nn.functional.silu(x)
def _sigmoid(x):
    return torch.sigmoid(x)
def _layernorm(x, axis=-1, eps=1e-5):
    m = x.mean(dim=axis, keepdim=True)
    v = x.var(dim=axis, keepdim=True, unbiased=False)
    return (x - m) / torch.sqrt(v + eps)
def _scatter_add(tgt, idx, src, axis=0):
    return tgt.clone().index_add_(axis, idx, src)
def _segment_sum(src, seg, n):
    out = torch.zeros((n,) + src.shape[1:], dtype=src.dtype)
    return out.index_add_(0, seg, src)
def _pad(x, pw):
    flat = tuple(v for pair in reversed(pw) for v in pair)
    return torch.nn.functional.pad(x, flat)

kernel_name = 'concat_heads__gqa_block_cached__gqa_block_cached__near_ridge'

def setup_inputs():

    _w = (lambda a: (lambda t: t.to(torch.bfloat16) if t.is_floating_point() else t)(torch.as_tensor(a)))
    def _A_setup():
        B, Sq, D = 8, 256, 640
        Hq, Hkv, Sk, Dh = 32, 32, 1024, 128
        assert Hq % Hkv == 0, (Hq, Hkv)
        return {
            "x": _w((lambda *s: torch.randn(*s, dtype=torch.bfloat16) * 0.8)(B, Sq, D)),
            "k_cache": _w((lambda *s: torch.randn(*s, dtype=torch.bfloat16) * 0.8)(B, Hkv, Sk, Dh)),
            "v_cache": _w((lambda *s: torch.randn(*s, dtype=torch.bfloat16) * 0.05)(B, Hkv, Sk, Dh)),
            "wq": _w((lambda *s: torch.randn(*s, dtype=torch.bfloat16) * 0.8)(D, Hq * Dh) * (D ** -0.5)),
            "wo": _w((lambda *s: torch.randn(*s, dtype=torch.bfloat16) * 0.05)(Hq * Dh, D) * ((Hq * Dh) ** -0.5)),
        }
    _A_in = _A_setup()

    def _B_setup():
        B, Sq, D = 8, 256, 640
        Hq, Hkv, Sk, Dh = 32, 32, 1024, 128
        assert Hq % Hkv == 0, (Hq, Hkv)
        return {
            "x": _w((lambda *s: torch.randn(*s, dtype=torch.bfloat16) * 0.8)(B, Sq, D)),
            "k_cache": _w((lambda *s: torch.randn(*s, dtype=torch.bfloat16) * 0.8)(B, Hkv, Sk, Dh)),
            "v_cache": _w((lambda *s: torch.randn(*s, dtype=torch.bfloat16) * 0.05)(B, Hkv, Sk, Dh)),
            "wq": _w((lambda *s: torch.randn(*s, dtype=torch.bfloat16) * 0.8)(D, Hq * Dh) * (D ** -0.5)),
            "wo": _w((lambda *s: torch.randn(*s, dtype=torch.bfloat16) * 0.05)(Hq * Dh, D) * ((Hq * Dh) ** -0.5)),
        }
    _B_in = _B_setup()

    return {
        "A_x": _A_in["x"],
        "A_k_cache": _A_in["k_cache"],
        "A_v_cache": _A_in["v_cache"],
        "A_wq": _A_in["wq"],
        "A_wo": _A_in["wo"],
        "B_x": _B_in["x"],
        "B_k_cache": _B_in["k_cache"],
        "B_v_cache": _B_in["v_cache"],
        "B_wq": _B_in["wq"],
        "B_wo": _B_in["wo"],
    }

def reference(A_x, A_k_cache, A_v_cache, A_wq, A_wo, B_x, B_k_cache, B_v_cache, B_wq, B_wo):
    def _A_ref(x, k_cache, v_cache, wq, wo):
        B, Sq, D = x.shape
        Hq, Dh = 32, 128
        Hkv = k_cache.shape[1]
        rep = Hq // Hkv
        q = (lambda x, *d: x.permute(*d))((x @ wq).reshape(B, Sq, Hq, Dh), 0, 2, 1, 3)
        k = (lambda x, n, axis: torch.repeat_interleave(x, n, dim=axis))(k_cache, rep, axis=1)
        v = (lambda x, n, axis: torch.repeat_interleave(x, n, dim=axis))(v_cache, rep, axis=1)
        scores = torch.einsum("bhqd,bhkd->bhqk", q, k) * (Dh ** -0.5)
        p = _softmax(scores, axis=-1)
        o = torch.einsum("bhqk,bhkd->bhqd", p, v)
        return (lambda x, *d: x.permute(*d))(o, 0, 2, 1, 3).reshape(B, Sq, Hq * Dh) @ wo

    def _B_ref(x, k_cache, v_cache, wq, wo):
        B, Sq, D = x.shape
        Hq, Dh = 32, 128
        Hkv = k_cache.shape[1]
        rep = Hq // Hkv
        q = (lambda x, *d: x.permute(*d))((x @ wq).reshape(B, Sq, Hq, Dh), 0, 2, 1, 3)
        k = (lambda x, n, axis: torch.repeat_interleave(x, n, dim=axis))(k_cache, rep, axis=1)
        v = (lambda x, n, axis: torch.repeat_interleave(x, n, dim=axis))(v_cache, rep, axis=1)
        scores = torch.einsum("bhqd,bhkd->bhqk", q, k) * (Dh ** -0.5)
        p = _softmax(scores, axis=-1)
        o = torch.einsum("bhqk,bhkd->bhqd", p, v)
        return (lambda x, *d: x.permute(*d))(o, 0, 2, 1, 3).reshape(B, Sq, Hq * Dh) @ wo

    a = _A_ref(A_x, A_k_cache, A_v_cache, A_wq, A_wo)
    b = _B_ref(B_x, B_k_cache, B_v_cache, B_wq, B_wo)
    return torch.concatenate([a, b], axis=-1)
```

```python
import sys, math, argparse

NAME = "concat_heads__gqa_block_cached__gqa_block_cached__near_ridge"

class Opt:
    stamps = False
    dumpq = False
    map1 = 1
    kv_nt = True
    xw_nt = False
    o_nt = False
    lag = 1
    thr_log2 = 14
    budget = 24
    dma_cost = 8
    only = None
    kvstart = 8
    op_nt_o = False
    op_nt_w = False

O = Opt()

class Asm:
    def __init__(self):
        self.L = []
    def __call__(self, s):
        self.L.append("    " + s)
    def label(self, s):
        self.L.append(s + ":")
    def c(self, s):
        self.L.append("    ; " + s)
    def text(self):
        return "\n".join(self.L) + "\n"

def vr(b, n=1):
    return f"v{b}" if n == 1 else f"v[{b}:{b+n-1}]"
def ar(b, n=1):
    return f"a{b}" if n == 1 else f"a[{b}:{b+n-1}]"
def f32bits(x):
    import struct
    return struct.unpack("<I", struct.pack("<f", x))[0]

MFMA = "v_mfma_f32_32x32x16_bf16"

def kd(k, vgpr=512, acc=256, sgpr=102):
    return f""".section .rodata,"a"
.p2align 6
.amdhsa_kernel {k}
  .amdhsa_next_free_vgpr {vgpr}
  .amdhsa_next_free_sgpr {sgpr}
  .amdhsa_accum_offset {acc}
  .amdhsa_group_segment_fixed_size 0
  .amdhsa_kernarg_size 104
  .amdhsa_user_sgpr_count 2
  .amdhsa_user_sgpr_kernarg_segment_ptr 1
  .amdhsa_system_sgpr_workgroup_id_x 1
.end_amdhsa_kernel
.text
"""
def kstart(k):
    return f".globl {k}\n.p2align 8\n.type {k},@function\n{k}:\n"

STAMP_WS_OFF = 128 << 20
QDUMP_WS_OFF = 64 << 20

sX, sW, sK, sV, sO = 8, 12, 16, 20, 24
sWAVE, sKVW, sVVW, sWQW = 28, 29, 30, 31
sKOFF, sVOFF, sMASK, sLOOP, sUNIT, sT, sTHR, sSC = 32, 33, 34, 35, 36, 37, 38, 39
sOOF = 40
sT2 = 44
sWS = 46
sSTAMP = 48
sDBG = 84

vAK = 1
vAV = 9
vOK = 13
vOV = 17
vOO = 18
vL = 20
vTS = 22
vCHK = 24
vT = 25
vNEGM = 32
vS = 64
vP = 128
vQ = 160
vX = 224
aO = 0
aKF = 128
aVF = 160
aQ2 = 192
KBASE, VBASE, WQBASE = 0, 65536, 98304

def S(buf, qb): return vS + buf * 32 + qb * 16
def P(buf, qb, ks): return vP + buf * 16 + qb * 8 + ks * 4
def NEGM(qb): return vNEGM + qb * 16
def Q(qb, s): return vQ + (qb * 8 + s) * 4
def OA(qb, blk): return aO + (qb * 4 + blk) * 16
def KF(s): return aKF + s * 4
def VF(f): return aVF + f * 4

nstamp = [0]
def stamp(A, name):
    if O.stamps:
        if nstamp[0] == 0: A("s_memrealtime s[80:81]")
        i = nstamp[0]; nstamp[0] += 1
        A(f"s_memtime s[{sSTAMP+2*i}:{sSTAMP+2*i+1}]")

def interleave(A, mfmas, fixed, stream, budget=None, pre=None):
    if budget is None: budget = O.budget
    n = len(mfmas)
    si = 0
    for g in range(n):
        for t in (pre or {}).get(g, []):
            A(t)
        A(mfmas[g])
        used = 0
        fx = fixed.get(g, [])
        fcost = sum(c for _, c in fx)
        room = budget - fcost
        out = []
        while si < len(stream):
            it = stream[si]
            if len(it) > 2 and it[2] > g: break
            if it[1] > room and not (it[1] == 0): break
            out.append(it[0]); room -= it[1]; si += 1
        fl = [t for t, _ in fx]
        while out or fl:
            if out: A(out.pop(0))
            if fl: A(fl.pop(0))
    while si < len(stream):
        A(stream[si][0]); si += 1

def softmax_stream(buf, lag=None):
    if lag is None: lag = O.lag
    NT = 7 if lag > 1 else 4
    st = []
    st.append((f"v_add_f32 {vr(vL)}, {vr(vL)}, {vr(vTS)}", 4))
    st.append((f"v_add_f32 {vr(vL+1)}, {vr(vL+1)}, {vr(vTS+1)}", 4))
    def T(e): return vT + (e % NT)
    def consume(e):
        qb, r = e >> 4, e & 15
        if r == 0: return
        if r == 1:
            st.append((f"v_add_f32 {vr(vTS+qb)}, {vr(T(e-1))}, {vr(T(e))}", 4))
        else:
            st.append((f"v_add_f32 {vr(vTS+qb)}, {vr(vTS+qb)}, {vr(T(e))}", 4))
        if r & 1:
            i = r >> 1
            st.append((f"v_cvt_pk_bf16_f32 {vr(P(buf,qb,i>>2)+(i&3))}, {vr(T(e-1))}, {vr(T(e))}", 4))
    for e in range(32):
        qb, r = e >> 4, e & 15
        st.append((f"v_exp_f32 {vr(T(e))}, {vr(S(buf,qb)+r)}", 8))
        if e - lag >= 0: consume(e - lag)
    st.append(("s_nop 0", 4)) if lag == 1 else None
    for e in range(32 - lag, 32): consume(e)
    st.append((f"v_add_f32 {vr(vCHK)}, {vr(vTS)}, {vr(vTS+1)}", 4))
    st.append((f"v_cmp_nge_f32 vcc, s{sTHR}, {vr(vCHK)}", 4))
    return st

NT_KV = lambda: " nt" if O.kv_nt else ""
NT_XW = lambda: " nt" if O.xw_nt else ""

def dma_k_group():
    return ([f"s_and_b32 s{sT}, s{sKOFF}, 0xffff", f"s_add_u32 m0, s{sT}, s{sKVW}"],
            [f"buffer_load_dwordx4 {vr(vOK+p)}, s[{sK}:{sK+3}], s{sKOFF} offen offset:{p*1024}{NT_KV()} lds" for p in range(4)],
            [f"s_add_u32 s{sKOFF}, s{sKOFF}, 0x4000"])
def dma_v_group():
    return ([f"s_and_b32 s{sT}, s{sVOFF}, 0xffff", f"s_add_u32 m0, s{sT}, s{sVVW}"],
            [f"buffer_load_dwordx4 {vr(vOV)}, s[{sV}:{sV+3}], s{sVOFF} offen offset:{p*1024}{NT_KV()} lds" for p in range(4)],
            [f"s_add_u32 s{sVOFF}, s{sVOFF}, 0x4000"])

def k_reads(kb):
    return [f"ds_read_b128 {ar(KF(s),4)}, {vr(vAK+s)} offset:{kb*8192}" for s in range(8)]
def v_reads(kb):
    r = []
    for f in range(8):
        ks, blk = f >> 2, f & 3
        for jh in range(2):
            r.append(f"ds_read_b64_tr_b16 {ar(VF(f)+2*jh,2)}, {vr(vAV+blk)} offset:{kb*8192+ks*4096+jh*2048}")
    return r
def pv_mfmas(buf):
    return [f"{MFMA} {ar(OA(qb,f&3),16)}, {ar(VF(f),4)}, {vr(P(buf,qb,f>>2),4)}, {ar(OA(qb,f&3),16)}"
            for qb in range(2) for f in range(8)]
def qk_mfmas(buf, zero_c=False):
    r = []
    for qb in range(2):
        for s in range(8):
            c = vr(S(buf,qb),16) if s else ("0" if zero_c else vr(NEGM(qb),16))
            r.append(f"{MFMA} {vr(S(buf,qb),16)}, {ar(KF(s),4)}, {vr(Q(qb,s),4)}, {c}")
    return r

rare_sites = []
def slot(A, even, do_pv=True, do_qk=True, tag=""):
    buf = 0 if even else 1
    A.c(f"---- slot {tag} even={even} pv={do_pv} qk={do_qk}")
    st = softmax_stream(buf)
    setup, pieces, post = dma_v_group() if even else dma_k_group()
    kr = k_reads(1 if even else 0) if do_qk else []
    vrd = v_reads(0 if even else 1)
    vx = [f"v_xor_b32 {vr(vAV+i)}, s{sMASK}, {vr(vAV+i)}" for i in range(4)] if even else []
    kx = [f"v_xor_b32 {vr(vAK+i)}, s{sMASK}, {vr(vAK+i)}" for i in range(8)] if even else []
    mid = []
    if even:
        mid = ["s_waitcnt vmcnt(16) lgkmcnt(0)", "s_barrier"]
    elif do_qk:
        mid = ["s_waitcnt lgkmcnt(0)"]
    tog = [f"s_xor_b32 s{sMASK}, s{sMASK}, 0x8000"] if even else []
    lab = f"L_rare_{tag}"; ret = f"L_ret_{tag}"
    rare_sites.append((lab, ret, buf))
    if do_pv and do_qk:
        mf = pv_mfmas(buf ^ 1) + qk_mfmas(buf ^ 1)
        fixed = {g: [] for g in range(32)}
        for i, t in enumerate(kr): fixed[i].append((t, 4))
        fixed[8] += [(setup[0], 4), (setup[1], 4)]
        for i, t in enumerate(pieces): fixed[9 + 2 * i].append((t, O.dma_cost))
        fixed[15].append((post[0], 4))
        for i, t in enumerate(vx): fixed[8 + 2 * i + (2 if i == 0 else 0) - (0)].append((t, 4)) if False else fixed[[10, 12, 14, 14][i]].append((t, 4))
        if even: fixed[16].append((tog[0], 4))
        vg = [16,16,17,18,18,19,20,20,21,22,22,23,24,25,26,27]
        for i, t in enumerate(vrd): fixed[vg[i]].append((t, 4))
        for i, t in enumerate(kx): fixed[[17,19,21,23,24,25,26,27][i]].append((t, 4))
        pre = {0: ["s_waitcnt lgkmcnt(0)"], 16: mid}
        interleave(A, mf, fixed, st, pre=pre)
    elif do_qk:
        for t in kr: A(t)
        for t in setup: A(t)
        for t in vx: A(t)
        for t in pieces: A(t)
        for t in post + tog: A(t)
        nfirst = 24
        for t, _ in st[:nfirst]: A(t)
        mf = qk_mfmas(buf ^ 1)
        fixed = {g: [] for g in range(16)}
        for i, t in enumerate(vrd): fixed[min(i, 11) if i < 12 else i - 12].append((t, 4))
        for i, t in enumerate(kx): fixed[4 + i].append((t, 4))
        interleave(A, mf, fixed, st[nfirst:], pre={0: mid})
    else:
        mf = pv_mfmas(buf ^ 1)
        fixed = {g: [] for g in range(16)}
        fixed[0] += [(setup[0], 4), (setup[1], 4)]
        for i, t in enumerate(pieces): fixed[1 + 2 * i].append((t, O.dma_cost))
        fixed[8].append((post[0], 4))
        interleave(A, mf, fixed, st[:len(st)//2], pre={0: ["s_waitcnt lgkmcnt(0)"]})
        rest = st[len(st)//2:]
        for i, t in enumerate(vrd):
            A(t)
            if rest: A(rest.pop(0)[0])
            if rest: A(rest.pop(0)[0])
        for t, _ in rest: A(t)
    A(f"s_cbranch_vccnz {lab}")
    A.label(ret)

def rare_path(A, lab, ret, buf):
    A.label(lab)
    A("s_nop 15"); A("s_nop 15")
    tm, tm2, fct = vX, vX + 1, vX + 2
    for qb in range(2):
        s = S(buf, qb)
        A(f"v_max3_f32 {vr(tm)}, {vr(s)}, {vr(s+1)}, {vr(s+2)}")
        for r in range(3, 15, 2):
            A(f"v_max3_f32 {vr(tm)}, {vr(tm)}, {vr(s+r)}, {vr(s+r+1)}")
        A(f"v_max3_f32 {vr(tm)}, {vr(tm)}, {vr(s+15)}, 0")
        A(f"v_mov_b32 {vr(tm2)}, {vr(tm)}")
        A("s_nop 1")
        A(f"v_permlane32_swap_b32 {vr(tm)}, {vr(tm2)}")
        A("s_nop 1")
        A(f"v_max_f32 {vr(tm)}, {vr(tm)}, {vr(tm2)}")
        A(f"v_exp_f32 {vr(fct)}, -{vr(tm)}")
        for r in range(16):
            A(f"v_sub_f32 {vr(s+r)}, {vr(s+r)}, {vr(tm)}")
            A(f"v_sub_f32 {vr(S(buf^1,qb)+r)}, {vr(S(buf^1,qb)+r)}, {vr(tm)}")
            A(f"v_sub_f32 {vr(NEGM(qb)+r)}, {vr(NEGM(qb)+r)}, {vr(tm)}")
        A(f"v_mul_f32 {vr(vL+qb)}, {vr(vL+qb)}, {vr(fct)}")
        for blk in range(4):
            for r in range(0, 16, 4):
                for i in range(4): A(f"v_accvgpr_read_b32 {vr(vX+4+i)}, {ar(OA(qb,blk)+r+i)}")
                for i in range(4): A(f"v_mul_f32 {vr(vX+4+i)}, {vr(vX+4+i)}, {vr(fct)}")
                for i in range(4): A(f"v_accvgpr_write_b32 {ar(OA(qb,blk)+r+i)}, {vr(vX+4+i)}")
        for r in range(16):
            A(f"v_exp_f32 {vr(vX+8+r)}, {vr(s+r)}")
        A("s_nop 0")
        A(f"v_add_f32 {vr(vTS+qb)}, {vr(vX+8)}, {vr(vX+9)}")
        for r in range(2, 16):
            A(f"v_add_f32 {vr(vTS+qb)}, {vr(vTS+qb)}, {vr(vX+8+r)}")
        for i in range(8):
            A(f"v_cvt_pk_bf16_f32 {vr(P(buf,qb,i>>2)+(i&3))}, {vr(vX+8+2*i)}, {vr(vX+9+2*i)}")
    A("s_nop 3")
    A(f"s_branch {ret}")

def lane_consts(A, vlane, vh, vsub, vr_, vcs):
    A(f"v_and_b32 {vr(vlane)}, 63, v0")
    A(f"v_lshrrev_b32 {vr(vh)}, 5, {vr(vlane)}")
    A(f"v_bfe_u32 {vr(vsub)}, {vr(vlane)}, 4, 1")
    A(f"v_bfe_u32 {vr(vr_)}, {vr(vlane)}, 2, 2")

def gen_attn(k):
    A = Asm()
    nstamp[0] = 0
    del rare_sites[:]
    A("s_cmp_ge_u32 s2, 256"); A("s_cbranch_scc1 L_attn_end")
    A("s_load_dwordx8 s[48:55], s[0:1], 0")
    A("s_load_dwordx4 s[56:59], s[0:1], 40")
    A("s_load_dwordx4 s[60:63], s[0:1], 56")
    A(f"s_load_dwordx2 s[{sWS}:{sWS+1}], s[0:1], 96")
    A("s_and_b32 s3, s2, 7")
    A("s_lshr_b32 s4, s2, 3")
    A("s_lshr_b32 s5, s3, 2")
    if O.map1 == 1:
        A("s_and_b32 s6, s3, 3"); A("s_lshl_b32 s6, s6, 1"); A("s_lshr_b32 s7, s4, 4"); A("s_add_u32 s6, s6, s7")
        A("s_and_b32 s7, s4, 15")
    else:
        A("s_bfe_u32 s6, s3, 0x10001"); A("s_lshl_b32 s6, s6, 2"); A("s_lshr_b32 s7, s4, 3"); A("s_add_u32 s6, s6, s7")
        A("s_and_b32 s7, s3, 1"); A("s_lshl_b32 s7, s7, 3"); A("s_and_b32 s4, s4, 7"); A("s_add_u32 s7, s7, s4")
    A("v_lshrrev_b32 v19, 6, v0")
    A("s_nop 0")
    A(f"v_readfirstlane_b32 s{sWAVE}, v19")
    A("s_waitcnt lgkmcnt(0)")
    A("s_cmp_eq_u32 s5, 1")
    for i in range(8):
        A(f"s_cselect_b32 s{48+i}, s{56+i}, s{48+i}")
    A(f"s_mul_i32 s{sT}, s6, 327680")
    A(f"s_add_u32 s{sX}, s48, s{sT}"); A(f"s_addc_u32 s{sX+1}, s49, 0"); A(f"s_and_b32 s{sX+1}, s{sX+1}, 0xffff")
    A(f"s_mov_b32 s{sX+2}, 327680"); A(f"s_mov_b32 s{sX+3}, 0x20000")
    A(f"s_lshl_b32 s{sT}, s7, 9")
    A(f"s_add_u32 s{sW}, s54, s{sT}"); A(f"s_addc_u32 s{sW+1}, s55, 0"); A(f"s_and_b32 s{sW+1}, s{sW+1}, 0xffff")
    A(f"s_sub_u32 s{sW+2}, {640*8192}, s{sT}"); A(f"s_mov_b32 s{sW+3}, 0x20000")
    A(f"s_lshl_b32 s{sT}, s6, 4"); A(f"s_add_u32 s{sT}, s{sT}, s7"); A(f"s_lshl_b32 s{sT}, s{sT}, 19")
    A(f"s_add_u32 s{sK}, s50, s{sT}"); A(f"s_addc_u32 s{sK+1}, s51, 0"); A(f"s_and_b32 s{sK+1}, s{sK+1}, 0xffff")
    A(f"s_mov_b32 s{sK+2}, 0x80000"); A(f"s_mov_b32 s{sK+3}, 0x20000")
    A(f"s_add_u32 s{sV}, s52, s{sT}"); A(f"s_addc_u32 s{sV+1}, s53, 0"); A(f"s_and_b32 s{sV+1}, s{sV+1}, 0xffff")
    A(f"s_mov_b32 s{sV+2}, 0x80000"); A(f"s_mov_b32 s{sV+3}, 0x20000")
    A(f"s_lshl_b32 s{sT}, s5, 3"); A(f"s_add_u32 s{sT}, s{sT}, s6"); A(f"s_lshl_b32 s{sT2}, s{sT}, 21")
    A(f"s_add_u32 s{sO}, s{sWS}, s{sT2}"); A(f"s_addc_u32 s{sO+1}, s{sWS+1}, 0"); A(f"s_and_b32 s{sO+1}, s{sO+1}, 0xffff")
    A(f"s_mov_b32 s{sO+2}, 0x200000"); A(f"s_mov_b32 s{sO+3}, 0x20000")
    A(f"s_lshl_b32 s{sOOF}, s7, 14")
    A(f"s_add_u32 s{sOOF+1}, s{sOOF}, 4096")
    A(f"s_add_u32 s{sOOF+2}, s{sOOF}, 0x40000")
    A(f"s_add_u32 s{sOOF+3}, s{sOOF}, 0x41000")
    if O.dumpq:
        A(f"s_lshl_b32 s{sT}, s{sT}, 4"); A(f"s_add_u32 s{sT}, s{sT}, s7"); A(f"s_lshl_b32 s{sT}, s{sT}, 17")
        A(f"s_add_u32 s{sT}, s{sT}, {QDUMP_WS_OFF}")
        A(f"s_add_u32 s{sDBG}, s{sWS}, s{sT}"); A(f"s_addc_u32 s{sDBG+1}, s{sWS+1}, 0"); A(f"s_and_b32 s{sDBG+1}, s{sDBG+1}, 0xffff")
        A(f"s_mov_b32 s{sDBG+2}, 0x20000"); A(f"s_mov_b32 s{sDBG+3}, 0x20000")
    stamp(A, "start")
    A(f"s_lshl_b32 s{sKVW}, s{sWAVE}, 12")
    A(f"s_add_u32 s{sVVW}, s{sKVW}, {VBASE}")
    A(f"s_lshl_b32 s{sWQW}, s{sWAVE}, 11"); A(f"s_add_u32 s{sWQW}, s{sWQW}, {WQBASE}")
    A(f"s_mov_b32 s{sKOFF}, 0"); A(f"s_mov_b32 s{sVOFF}, 0")
    A(f"s_mov_b32 s{sMASK}, 0xc000")
    A(f"s_mov_b32 s{sTHR}, {hex(f32bits(2.0**O.thr_log2))}")
    A(f"s_mov_b32 s{sSC}, {hex(f32bits(128**-0.5*math.log2(math.e)))}")
    lane, h, sub, r_, cs, t0, t1, t2 = 240, 241, 242, 243, 244, 245, 246, 247
    vAW, vOW, vOX = 224, 228, 230
    A(f"v_and_b32 {vr(lane)}, 63, v0")
    A(f"v_lshrrev_b32 {vr(h)}, 5, {vr(lane)}")
    A(f"v_bfe_u32 {vr(sub)}, {vr(lane)}, 4, 1")
    A(f"v_bfe_u32 {vr(r_)}, {vr(lane)}, 2, 2")
    A(f"v_and_b32 {vr(t0)}, 1, {vr(lane)}"); A(f"v_lshlrev_b32 {vr(t0)}, 4, {vr(t0)}")
    A(f"v_bfe_u32 {vr(t1)}, {vr(lane)}, 1, 1"); A(f"v_lshlrev_b32 {vr(t1)}, 3, {vr(t1)}")
    A(f"v_lshlrev_b32 {vr(cs)}, 5, {vr(sub)}"); A(f"v_add3_u32 {vr(cs)}, {vr(cs)}, {vr(t0)}, {vr(t1)}")
    A(f"s_lshl_b32 s{sT}, s{sWAVE}, 15")
    for p in range(2):
        A(f"v_add_u32 {vr(t0)}, {2*p}, {vr(h)}")
        A(f"v_lshlrev_b32 {vr(t1)}, 2, {vr(t0)}")
        A(f"v_and_b32 {vr(t2)}, 31, {vr(lane)}")
        A(f"v_xor_b32 {vr(t1)}, {vr(t1)}, {vr(t2)}")
        A(f"v_lshlrev_b32 {vr(t1)}, 4, {vr(t1)}")
        A(f"v_lshl_add_u32 {vr(t1)}, {vr(t0)}, 13, {vr(t1)}")
        A(f"v_add_u32 {vr(vOW+p)}, s{sT}, {vr(t1)}")
        if p: A(f"v_subrev_u32 {vr(vOW+p)}, 1024, {vr(vOW+p)}")
    A(f"s_mul_i32 s{sT}, s{sWAVE}, {64*1280}")
    A(f"v_and_b32 {vr(t2)}, 31, {vr(lane)}")
    A(f"v_mul_u32_u24 {vr(t0)}, 1280, {vr(t2)}")
    A(f"v_lshl_add_u32 {vr(t0)}, {vr(h)}, 4, {vr(t0)}")
    A(f"v_add_u32 {vr(vOX)}, s{sT}, {vr(t0)}")
    A(f"v_add_u32 {vr(vOX+1)}, {32*1280}, {vr(vOX)}")
    vAF, vXR = 32, 96
    def AF(buf, nb): return vAF + buf * 32 + nb * 4
    def XR(kk, qb): return vXR + (kk % 8) * 8 + qb * 4
    def ACC(qb, nb): return (nb * 2 + qb) * 16
    vm = []
    def wq_dma(kk):
        vm.extend([("W", kk)] * 2)
        return [f"s_add_u32 m0, s{sWQW}, {(kk % 8) * 8192}", f"s_mov_b32 s{sT2}, {kk * 131072}",
                f"buffer_load_dwordx4 {vr(vOW)}, s[{sW}:{sW+3}], s{sT2} offen{NT_XW()} lds",
                f"buffer_load_dwordx4 {vr(vOW+1)}, s[{sW}:{sW+3}], s{sT2} offen offset:1024{NT_XW()} lds"]
    def x_ld(kk):
        vm.extend([("X", kk)] * 2)
        return [f"buffer_load_dwordx4 {vr(XR(kk,qb),4)}, {vr(vOX+qb)}, s[{sX}:{sX+3}], 0 offen offset:{kk*32}{NT_XW()}" for qb in range(2)]
    def vmwait(tags):
        last = max(i for i, t in enumerate(vm) if t in tags)
        return min(63, len(vm) - 1 - last)
    for t in wq_dma(0): A(t)
    for kk in range(-7, 0):
        for t in x_ld(kk + 7): A(t)
        for t in wq_dma(kk + 8): A(t)
    for i in range(4):
        A(f"v_lshl_add_u32 {vr(t0)}, {vr(h)}, 3, {vr(r_)}")
        A(f"v_lshlrev_b32 {vr(t0)}, 9, {vr(t0)}")
        A(f"v_xor_b32 {vr(t1)}, {i}, {vr(r_)}")
        A(f"v_lshl_add_u32 {vr(t0)}, {vr(t1)}, 6, {vr(t0)}")
        A(f"v_add_u32 {vr(t0)}, {vr(t0)}, {vr(cs)}")
        A(f"v_add_u32 {vr(vAW+i)}, {WQBASE}, {vr(t0)}")
        A(f"v_lshl_add_u32 {vr(t0)}, {vr(h)}, 2, {vr(r_)}")
        A(f"v_lshlrev_b32 {vr(t0)}, 8, {vr(t0)}")
        A(f"v_lshl_add_u32 {vr(t0)}, {vr(t1)}, 6, {vr(t0)}")
        A(f"v_add_u32 {vr(t0)}, {vr(t0)}, {vr(cs)}")
        A(f"v_add_u32 {vr(vAV+i)}, {VBASE + 3*16384}, {vr(t0)}")
    for s in range(8):
        A(f"v_add_u32 {vr(t0)}, {2*s}, {vr(h)}")
        A(f"v_and_b32 {vr(t1)}, 15, {vr(lane)}")
        A(f"v_xor_b32 {vr(t0)}, {vr(t0)}, {vr(t1)}")
        A(f"v_lshlrev_b32 {vr(t0)}, 4, {vr(t0)}")
        A(f"v_and_b32 {vr(t1)}, 31, {vr(lane)}")
        A(f"v_lshl_add_u32 {vr(vAK+s)}, {vr(t1)}, 8, {vr(t0)}")
    A(f"v_lshrrev_b32 {vr(t2)}, 4, {vr(lane)}")
    for p in range(4):
        A(f"v_add_u32 {vr(t0)}, {4*p}, {vr(t2)}")
        A(f"v_and_b32 {vr(t1)}, 15, {vr(lane)}")
        A(f"v_xor_b32 {vr(t0)}, {vr(t0)}, {vr(t1)}")
        A(f"v_lshlrev_b32 {vr(t0)}, 4, {vr(t0)}")
        A(f"v_lshl_add_u32 {vr(t0)}, {vr(t2)}, 8, {vr(t0)}")
        A(f"v_add_u32 {vr(vOK+p)}, s{sKVW}, {vr(t0)}")
    A(f"v_lshlrev_b32 {vr(t0)}, 2, {vr(t2)}")
    A(f"v_and_b32 {vr(t1)}, 15, {vr(lane)}")
    A(f"v_xor_b32 {vr(t0)}, {vr(t0)}, {vr(t1)}")
    A(f"v_lshlrev_b32 {vr(t0)}, 4, {vr(t0)}")
    A(f"v_lshl_add_u32 {vr(t0)}, {vr(t2)}, 8, {vr(t0)}")
    A(f"v_add_u32 {vr(vOV)}, s{sKVW}, {vr(t0)}")
    A(f"s_lshl_b32 s{sT}, s{sWAVE}, 19")
    A(f"v_lshlrev_b32 {vr(t0)}, 4, {vr(lane)}")
    A(f"v_add_u32 {vr(vOO)}, s{sT}, {vr(t0)}")
    def a_reads(kk):
        r = []
        for nb in range(8):
            for jh in range(2):
                r.append(f"ds_read_b64_tr_b16 {vr(AF(kk&1,nb)+2*jh,2)}, {vr(vAW+(nb&3))} offset:{(kk%8)*8192+jh*2048+(nb>>2)*256}")
        return r
    A(f"s_waitcnt vmcnt({vmwait([('W',0)])})"); A("s_barrier")
    stamp(A, "wq0 landed")
    for t in a_reads(0): A(t)
    kvq = []
    for (kind, tile) in [("K",0),("V",0),("K",1),("V",1),("K",2),("K",3)]:
        setup, pieces, post = dma_k_group() if kind == "K" else dma_v_group()
        for p in range(4):
            kvq.append(((setup if p == 0 else []), pieces[p], (post if p == 3 else []), (kind, tile), setup))
    for kk in range(40):
        A.c(f"---- qproj step {kk}")
        need = [("X", kk)] + ([("W", kk + 1)] if kk + 1 < 40 else [])
        pre = {0: [f"s_waitcnt vmcnt({vmwait(need)}) lgkmcnt(0)", "s_barrier"]}
        mf = []
        for nb in range(8):
            for qb in range(2):
                c = ar(ACC(qb,nb),16) if kk else "0"
                mf.append(f"{MFMA} {ar(ACC(qb,nb),16)}, {vr(AF(kk&1,nb),4)}, {vr(XR(kk,qb),4)}, {c}")
        fixed = {g: [] for g in range(16)}
        if kk + 1 < 40:
            for i, t in enumerate(a_reads(kk + 1)): fixed[min(i, 11) if i < 12 else i - 12 + 0].append((t, 4)) if False else fixed[(i * 12) // 16].append((t, 4))
        g = 0
        if kk + 7 < 40 and kk > 0 or (kk == 0 and False):
            pass
        if kk + 7 < 40:
            xl = x_ld(kk + 7)
            fixed[1].append((xl[0], 4)); fixed[3].append((xl[1], 4))
        if kk + 8 < 40:
            w = wq_dma(kk + 8)
            fixed[4] += [(w[0], 4), (w[1], 4)]; fixed[5].append((w[2], 4)); fixed[7].append((w[3], 4))
        if kk >= O.kvstart and kvq:
            su, pc, po, tag, setup = kvq.pop(0)
            vm.append(tag)
            fixed[9] += [(t, 4) for t in setup]
            fixed[10].append((pc, 4))
            fixed[11] += [(t, 4) for t in po]
        interleave(A, mf, fixed, [], pre=pre)
    assert not kvq
    stamp(A, "qproj done")
    A("s_nop 15")
    def conv(qb, nb, dst_fn, tb):
        for r in range(16): A(f"v_accvgpr_read_b32 {vr(tb+r)}, {ar(ACC(qb,nb)+r)}")
        for r in range(16): A(f"v_mul_f32 {vr(tb+r)}, s{sSC}, {vr(tb+r)}")
        for i in range(8): A(f"v_cvt_pk_bf16_f32 {vr(dst_fn(i>>2)+(i&3))}, {vr(tb+2*i)}, {vr(tb+2*i+1)}")
    tmpq = 96
    for nb in range(4, 8):
        for qb in range(2):
            conv(qb, nb, lambda sp: tmpq + (qb * 8 + 2 * (nb - 4) + sp) * 4, 32 + 16 * ((nb * 2 + qb) & 1))
    for nb in range(4):
        for qb in range(2):
            conv(qb, nb, lambda sp: Q(qb, 2 * nb + sp), 32 + 16 * ((nb * 2 + qb) & 1))
    for i in range(64): A(f"v_accvgpr_write_b32 {ar(aQ2+i)}, {vr(tmpq+i)}")
    if O.dumpq:
        A(f"v_lshlrev_b32 {vr(t0)}, 4, {vr(lane)}")
        A(f"s_lshl_b32 s{sT}, s{sWAVE}, 15")
        A(f"v_add_u32 {vr(t0)}, s{sT}, {vr(t0)}")
        for i in range(16):
            A(f"s_mov_b32 s{sT}, {i*1024}")
            A(f"buffer_store_dwordx4 {vr(vQ+4*i,4)}, {vr(t0)}, s[{sDBG}:{sDBG+3}], s{sT} offen")
            A(f"s_mov_b32 s{sT}, {16384+i*1024}")
            A(f"buffer_store_dwordx4 {vr(tmpq+4*i,4)}, {vr(t0)}, s[{sDBG}:{sDBG+3}], s{sT} offen")
        A("s_waitcnt vmcnt(0)")
    A(f"s_waitcnt vmcnt({vmwait([('K',0)])})"); A("s_barrier")
    stamp(A, "conv done")
    A(f"s_mov_b32 s{sUNIT}, 0")
    A.label("L_unit")
    A.c("---- unit prologue")
    for t in k_reads(0): A(t)
    A(f"v_mov_b32 {vr(vL)}, 0"); A(f"v_mov_b32 {vr(vL+1)}, 0"); A(f"v_mov_b32 {vr(vTS)}, 0"); A(f"v_mov_b32 {vr(vTS+1)}, 0")
    zero = [(f"v_accvgpr_write_b32 {ar(aO+i)}, 0", 4) for i in range(128)]
    for t, _ in zero[:24]: A(t)
    interleave(A, qk_mfmas(0, zero_c=True), {}, zero[24:], pre={0: ["s_waitcnt lgkmcnt(0)"]})
    A("s_nop 7")
    tm, tm2 = vX, vX + 1
    for qb in range(2):
        s = S(0, qb)
        A(f"v_max3_f32 {vr(tm)}, {vr(s)}, {vr(s+1)}, {vr(s+2)}")
        for r in range(3, 15, 2):
            A(f"v_max3_f32 {vr(tm)}, {vr(tm)}, {vr(s+r)}, {vr(s+r+1)}")
        A(f"v_max_f32 {vr(tm)}, {vr(tm)}, {vr(s+15)}")
        A(f"v_mov_b32 {vr(tm2)}, {vr(tm)}")
        A("s_nop 1")
        A(f"v_permlane32_swap_b32 {vr(tm)}, {vr(tm2)}")
        A("s_nop 1")
        A(f"v_max_f32 {vr(tm)}, {vr(tm)}, {vr(tm2)}")
        for r in range(16):
            A(f"v_sub_f32 {vr(NEGM(qb)+r)}, 0, {vr(tm)}")
            A(f"v_sub_f32 {vr(s+r)}, {vr(s+r)}, {vr(tm)}")
    slot(A, True, do_pv=False, tag="first")
    A(f"s_mov_b32 s{sLOOP}, 15")
    A.label("L_loop")
    slot(A, False, tag="odd")
    slot(A, True, tag="even")
    A(f"s_sub_u32 s{sLOOP}, s{sLOOP}, 1"); A(f"s_cmp_lg_u32 s{sLOOP}, 0"); A("s_cbranch_scc1 L_loop")
    slot(A, False, do_qk=False, tag="last")
    A.c("---- final PV + epilogue")
    inv = [vX + 2, vX + 3]
    st = []
    for qb in range(2):
        st += [(f"v_add_f32 {vr(vL+qb)}, {vr(vL+qb)}, {vr(vTS+qb)}", 4),
               (f"v_mov_b32 {vr(tm2)}, {vr(vL+qb)}", 4), ("s_nop 1", 8),
               (f"v_permlane32_swap_b32 {vr(vL+qb)}, {vr(tm2)}", 4), ("s_nop 1", 8),
               (f"v_add_f32 {vr(vL+qb)}, {vr(vL+qb)}, {vr(tm2)}", 4),
               (f"v_rcp_f32 {vr(inv[qb])}, {vr(vL+qb)}", 8)]
    interleave(A, pv_mfmas(1), {}, st, pre={0: ["s_waitcnt lgkmcnt(0)"]})
    A("s_nop 15")
    n = 0
    ONT = " nt" if O.o_nt else ""
    for qb in range(2):
        for blk in range(4):
            for sp in range(2):
                tb = vS + (n % 4) * 16; n += 1
                for i in range(8): A(f"v_accvgpr_read_b32 {vr(tb+i)}, {ar(OA(qb,blk)+8*sp+i)}")
                for i in range(8): A(f"v_mul_f32 {vr(tb+i)}, {vr(tb+i)}, {vr(inv[qb])}")
                for i in range(4): A(f"v_cvt_pk_bf16_f32 {vr(tb+8+i)}, {vr(tb+2*i)}, {vr(tb+2*i+1)}")
                fr = blk * 2 + sp
                A(f"buffer_store_dwordx4 {vr(tb+8,4)}, {vr(vOO)}, s[{sO}:{sO+3}], s{sOOF + qb*2 + (fr>>2)} offen offset:{(fr&3)*1024}{ONT}")
    stamp(A, "unit end (last)")
    A(f"s_cmp_lg_u32 s{sUNIT}, 0"); A("s_cbranch_scc1 L_fin")
    if O.stamps:
        i = nstamp[0]; nstamp[0] += 1
        A(f"s_memtime s[{sSTAMP+2*i}:{sSTAMP+2*i+1}]")
    A(f"s_mov_b32 s{sUNIT}, 1")
    for i in range(4): A(f"s_add_u32 s{sOOF+i}, s{sOOF+i}, 8192")
    for i in range(64): A(f"v_accvgpr_read_b32 {vr(vQ+i)}, {ar(aQ2+i)}")
    A("s_branch L_unit")
    A.label("L_fin")
    if O.stamps:
        emit_stamps(A, "s2", sWAVE, 0)
    A.label("L_attn_end")
    A("s_endpgm")
    for (lab, ret, buf) in rare_sites:
        rare_path(A, lab, ret, buf)
    return kstart(k) + A.text()

def emit_stamps(A, wg, swave, which):
    A("s_waitcnt vmcnt(0) lgkmcnt(0)")
    i = nstamp[0]; nstamp[0] += 1
    A(f"s_memtime s[{sSTAMP+2*i}:{sSTAMP+2*i+1}]")
    A(f"s_memrealtime s[82:83]")
    A("s_waitcnt lgkmcnt(0)")
    A(f"s_add_u32 s{sDBG}, s{sWS}, {STAMP_WS_OFF + which * (1 << 20)}"); A(f"s_addc_u32 s{sDBG+1}, s{sWS+1}, 0"); A(f"s_and_b32 s{sDBG+1}, s{sDBG+1}, 0xffff")
    A(f"s_mov_b32 s{sDBG+2}, 0x100000"); A(f"s_mov_b32 s{sDBG+3}, 0x20000")
    A(f"s_lshl_b32 s3, {wg}, 2"); A(f"s_add_u32 s3, s3, s{swave}"); A("s_lshl_b32 s3, s3, 6")
    A("v_mov_b32 v0, s3")
    for j in range(nstamp[0]):
        A(f"v_mov_b32 v1, s{sSTAMP+2*j}")
        A(f"buffer_store_dword v1, v0, s[{sDBG}:{sDBG+3}], 0 offen offset:{4*j}")
    A("s_getreg_b32 s4, hwreg(HW_REG_XCC_ID)"); A("s_getreg_b32 s5, hwreg(HW_REG_HW_ID)")
    for j, sr in ((12, 80), (13, 82), (14, 4), (15, 5)):
        A(f"v_mov_b32 v1, s{sr}")
        A(f"buffer_store_dword v1, v0, s[{sDBG}:{sDBG+3}], 0 offen offset:{4*j}")
    A("s_waitcnt vmcnt(0)")

def gen_oproj(k):
    A = Asm()
    nstamp[0] = 0
    sWo, sO0, sO1, sOut = 8, 12, 16, 20
    sWv, sLB, sWOFF, sOOFF, sLP, sTt, sM = 28, 29, 30, 31, 32, 33, 34
    A("s_cmp_ge_u32 s2, 256"); A("s_cbranch_scc1 L_op_end")
    A("s_load_dwordx2 s[48:49], s[0:1], 32")
    A("s_load_dwordx2 s[50:51], s[0:1], 72")
    A("s_load_dwordx2 s[52:53], s[0:1], 80")
    A(f"s_load_dwordx2 s[{sWS}:{sWS+1}], s[0:1], 96")
    A("s_and_b32 s3, s2, 7"); A("s_lshr_b32 s4, s2, 3"); A("s_lshr_b32 s5, s3, 2")
    A("s_and_b32 s6, s3, 3"); A("s_lshl_b32 s6, s6, 3"); A("s_lshr_b32 s7, s4, 2"); A("s_add_u32 s6, s6, s7")
    A("s_and_b32 s7, s4, 3")
    A("v_lshrrev_b32 v19, 6, v0"); A("s_nop 0"); A(f"v_readfirstlane_b32 s{sWv}, v19")
    A("s_waitcnt lgkmcnt(0)")
    A("s_cmp_eq_u32 s5, 1"); A("s_cselect_b32 s48, s50, s48"); A("s_cselect_b32 s49, s51, s49")
    A(f"s_mul_i32 s{sTt}, s{sWv}, {1024*1280}"); A("s_mul_i32 s35, s7, 320"); A(f"s_add_u32 s{sTt}, s{sTt}, s35")
    A(f"s_add_u32 s{sWo}, s48, s{sTt}"); A(f"s_addc_u32 s{sWo+1}, s49, 0"); A(f"s_and_b32 s{sWo+1}, s{sWo+1}, 0xffff")
    A(f"s_mov_b32 s{sWo+2}, {1023*1280+320}"); A(f"s_mov_b32 s{sWo+3}, 0x20000")
    A(f"s_lshl_b32 s{sTt}, s5, 5"); A(f"s_add_u32 s{sTt}, s{sTt}, s6"); A(f"s_lshl_b32 s{sTt}, s{sTt}, 19")
    A(f"s_lshl_b32 s35, s{sWv}, 16"); A(f"s_add_u32 s{sTt}, s{sTt}, s35")
    A(f"s_add_u32 s{sO0}, s{sWS}, s{sTt}"); A(f"s_addc_u32 s{sO0+1}, s{sWS+1}, 0"); A(f"s_and_b32 s{sO0+1}, s{sO0+1}, 0xffff")
    A(f"s_mov_b32 s{sO0+2}, 0x10000"); A(f"s_mov_b32 s{sO0+3}, 0x20000")
    A(f"s_add_u32 s{sTt}, s{sTt}, 0x40000")
    A(f"s_add_u32 s{sO1}, s{sWS}, s{sTt}"); A(f"s_addc_u32 s{sO1+1}, s{sWS+1}, 0"); A(f"s_and_b32 s{sO1+1}, s{sO1+1}, 0xffff")
    A(f"s_mov_b32 s{sO1+2}, 0x10000"); A(f"s_mov_b32 s{sO1+3}, 0x20000")
    A(f"s_mul_i32 s{sTt}, s6, {64*2560}"); A("s_mul_i32 s35, s5, 1280"); A(f"s_add_u32 s{sTt}, s{sTt}, s35")
    A("s_mul_i32 s35, s7, 320"); A(f"s_add_u32 s{sTt}, s{sTt}, s35")
    A(f"s_add_u32 s{sOut}, s52, s{sTt}"); A(f"s_addc_u32 s{sOut+1}, s53, 0"); A(f"s_and_b32 s{sOut+1}, s{sOut+1}, 0xffff")
    A(f"s_mov_b32 s{sOut+2}, {63*2560+320}"); A(f"s_mov_b32 s{sOut+3}, 0x20000")
    stamp(A, "start")
    A(f"s_mul_i32 s{sLB}, s{sWv}, 40960")
    lane, h, sub, r_, cs, t0, t1, t2 = 1, 2, 3, 4, 5, 6, 7, 8
    vOW, vOO_, vAW_, vRed, vSt = 10, 15, 16, 17, 18
    vAF, vOF = 32, 96
    A(f"v_and_b32 {vr(lane)}, 63, v0")
    A(f"v_lshlrev_b32 {vr(vOO_)}, 4, {vr(lane)}")
    for p in range(5):
        A(f"v_add_u32 {vr(t0)}, {64*p}, {vr(lane)}")
        A(f"v_mul_u32_u24 {vr(t1)}, 3277, {vr(t0)}"); A(f"v_lshrrev_b32 {vr(t1)}, 16, {vr(t1)}")
        A(f"v_mul_u32_u24 {vr(t2)}, 20, {vr(t1)}"); A(f"v_sub_u32 {vr(t2)}, {vr(t0)}, {vr(t2)}")
        A(f"v_mul_u32_u24 {vr(t1)}, 1280, {vr(t1)}")
        A(f"v_lshl_add_u32 {vr(vOW+p)}, {vr(t2)}, 4, {vr(t1)}")
        if 0 < p < 4: A(f"v_subrev_u32 {vr(vOW+p)}, {1024*p}, {vr(vOW+p)}")
    WNT = " nt" if O.op_nt_w else ""
    ONT = " nt" if O.op_nt_o else ""
    def AF(buf, nb): return vAF + buf * 20 + nb * 4
    def OF(kk, qb): return vOF + (kk % 8) * 8 + qb * 4
    def ACC(qb, nb): return (qb * 5 + nb) * 16
    def issue(slot_):
        return [f"s_add_u32 m0, s{sLB}, {slot_*5120}",
                f"buffer_load_dwordx4 {vr(OF(slot_,0),4)}, {vr(vOO_)}, s[{sO0}:{sO0+3}], s{sOOFF} offen{ONT}"] + \
               [f"buffer_load_dwordx4 {vr(vOW+p)}, s[{sWo}:{sWo+3}], s{sWOFF} offen offset:{1024*p}{WNT} lds" for p in range(4)] + \
               [f"s_add_u32 m0, s{sLB}, {slot_*5120+4096}",
                f"buffer_load_dwordx4 {vr(OF(slot_,1),4)}, {vr(vOO_)}, s[{sO1}:{sO1+3}], s{sOOFF} offen{ONT}",
                f"buffer_load_dwordx4 {vr(vOW+4)}, s[{sWo}:{sWo+3}], s{sWOFF} offen{WNT} lds",
                f"s_add_u32 s{sWOFF}, s{sWOFF}, {16*1280}", f"s_add_u32 s{sOOFF}, s{sOOFF}, 1024"]
    A(f"s_mov_b32 s{sWOFF}, 0"); A(f"s_mov_b32 s{sOOFF}, 0")
    for kk in range(7):
        for t in issue(kk): A(t)
    A(f"v_lshrrev_b32 {vr(h)}, 5, {vr(lane)}")
    A(f"v_bfe_u32 {vr(sub)}, {vr(lane)}, 4, 1")
    A(f"v_bfe_u32 {vr(r_)}, {vr(lane)}, 2, 2")
    A(f"v_and_b32 {vr(t0)}, 1, {vr(lane)}"); A(f"v_lshlrev_b32 {vr(t0)}, 4, {vr(t0)}")
    A(f"v_bfe_u32 {vr(t1)}, {vr(lane)}, 1, 1"); A(f"v_lshlrev_b32 {vr(t1)}, 3, {vr(t1)}")
    A(f"v_lshlrev_b32 {vr(cs)}, 5, {vr(sub)}"); A(f"v_add3_u32 {vr(cs)}, {vr(cs)}, {vr(t0)}, {vr(t1)}")
    A(f"v_lshl_add_u32 {vr(t0)}, {vr(h)}, 3, {vr(r_)}")
    A(f"v_mul_u32_u24 {vr(t0)}, 320, {vr(t0)}")
    A(f"v_add3_u32 {vr(vAW_)}, {vr(t0)}, {vr(cs)}, s{sLB}")
    A(f"v_and_b32 {vr(t0)}, 31, {vr(lane)}"); A(f"v_mul_u32_u24 {vr(t0)}, 2560, {vr(t0)}")
    A(f"v_lshl_add_u32 {vr(vSt)}, {vr(h)}, 4, {vr(t0)}")
    for i in range(160): A(f"v_accvgpr_write_b32 {ar(i)}, 0")
    def a_reads(kk):
        return [f"ds_read_b64_tr_b16 {vr(AF(kk&1,nb)+2*jh,2)}, {vr(vAW_)} offset:{(kk%8)*5120+jh*1280+nb*64}"
                for nb in range(5) for jh in range(2)]
    A("s_waitcnt vmcnt(42)")
    stamp(A, "first landed")
    for t in a_reads(0): A(t)
    A(f"s_mov_b32 s{sLP}, 8")
    A.label("L_op_loop")
    for kk in range(8):
        mf = [f"{MFMA} {ar(ACC(qb,nb),16)}, {vr(AF(kk&1,nb),4)}, {vr(OF(kk,qb),4)}, {ar(ACC(qb,nb),16)}"
              for nb in range(5) for qb in range(2)]
        fixed = {g: [] for g in range(10)}
        for i, t in enumerate(a_reads(kk + 1)): fixed[(i * 7) // 10].append((t, 4))
        iss = issue((kk + 7) % 8)
        gs = [0, 1, 2, 3, 4, 5, 6, 6, 7, 8, 8]
        for i, t in enumerate(iss): fixed[gs[i]].append((t, 4))
        interleave(A, mf, fixed, [], pre={0: ["s_waitcnt vmcnt(35) lgkmcnt(0)"]})
    A(f"s_sub_u32 s{sLP}, s{sLP}, 1"); A(f"s_cmp_lg_u32 s{sLP}, 0"); A("s_cbranch_scc1 L_op_loop")
    stamp(A, "loop done")
    A("s_waitcnt vmcnt(0) lgkmcnt(0)")
    A("s_nop 15")
    A(f"v_add_u32 {vr(vRed)}, s{sLB}, {vr(vOO_)}")
    for w in range(4):
        A(f"s_cmp_eq_u32 s{sWv}, {w}"); A(f"s_cbranch_scc1 L_op_skipw{w}")
        for i in range(5):
            hb = w * 5 + i
            for q4 in range(2):
                A(f"ds_write_b128 {vr(vRed)}, {ar(hb*8+q4*4,4)} offset:{(hb*2+q4)*1024}")
        A.label(f"L_op_skipw{w}")
    A("s_waitcnt lgkmcnt(0)"); A("s_barrier")
    for w in range(4):
        A(f"s_cmp_lg_u32 s{sWv}, {w}"); A(f"s_cbranch_scc1 L_op_fin{w}")
        others = [x for x in range(4) if x != w]
        for oi, ow in enumerate(others):
            A(f"v_add_u32 {vr(t0+0)}, {ow*40960}, {vr(vOO_)}") if False else None
        A(f"v_add_u32 {vr(t0)}, {others[0]*40960}, {vr(vOO_)}")
        A(f"v_add_u32 {vr(t1)}, {others[1]*40960}, {vr(vOO_)}")
        A(f"v_add_u32 {vr(t2)}, {others[2]*40960}, {vr(vOO_)}")
        for i in range(5):
            hb = w * 5 + i
            for oi in range(3):
                for q4 in range(2):
                    A(f"ds_read_b128 {vr(32 + i*24 + oi*8 + q4*4,4)}, {vr(t0+oi)} offset:{(hb*2+q4)*1024}")
            if i == 1: A("s_waitcnt lgkmcnt(6)")
        for i in range(5):
            hb = w * 5 + i
            for r in range(8): A(f"v_accvgpr_read_b32 {vr(160+i*8+r)}, {ar(hb*8+r)}")
        A("s_waitcnt lgkmcnt(0)")
        for i in range(5):
            hb = w * 5 + i
            blk, sp = hb >> 1, hb & 1
            qb, nb = blk // 5, blk % 5
            for r in range(8):
                A(f"v_add_f32 {vr(160+i*8+r)}, {vr(160+i*8+r)}, {vr(32+i*24+r)}")
                A(f"v_add_f32 {vr(32+i*24+8+r)}, {vr(32+i*24+8+r)}, {vr(32+i*24+16+r)}")
            for r in range(8):
                A(f"v_add_f32 {vr(160+i*8+r)}, {vr(160+i*8+r)}, {vr(32+i*24+8+r)}")
            for r in range(4):
                A(f"v_cvt_pk_bf16_f32 {vr(200+i*4+r)}, {vr(160+i*8+2*r)}, {vr(160+i*8+2*r+1)}")
            A(f"s_mov_b32 s{sTt}, {qb*32*2560}")
            A(f"buffer_store_dwordx4 {vr(200+i*4,4)}, {vr(vSt)}, s[{sOut}:{sOut+3}], s{sTt} offen offset:{nb*64+sp*32}")
        A.label(f"L_op_fin{w}")
    if O.stamps:
        emit_stamps(A, "s2", sWv, 1)
    A.label("L_op_end")
    A("s_endpgm")
    return kstart(k) + A.text()

def main():
    ap = argparse.ArgumentParser()
    for k_, v_ in vars(Opt).items():
        if k_.startswith("_"): continue
        if isinstance(v_, bool): ap.add_argument("--" + k_, type=lambda s: bool(int(s)), default=v_)
        elif isinstance(v_, int): ap.add_argument("--" + k_, type=int, default=v_)
        else: ap.add_argument("--" + k_, default=v_)
    a = ap.parse_args()
    for k_, v_ in vars(a).items(): setattr(O, k_, v_)
    hdr = open("cdna_kernels/" + NAME + ".s.ref").read().split("; Override launch")[0]
    out = hdr
    out += "; @launch kernel=attn_kernel grid=(256,1,1) block=(256,1,1) lds=163840\n"
    out += "; @launch kernel=oproj_kernel grid=(256,1,1) block=(256,1,1) lds=163840\n"
    out += '.amdgcn_target "amdgcn-amd-amdhsa--gfx950"\n.text\n'
    out += gen_attn("attn_kernel") + gen_oproj("oproj_kernel")
    out += kd("attn_kernel") + kd("oproj_kernel")
    sys.stdout.write(out)
main()
```

```python
import sys, math, argparse

NAME = "concat_heads__gqa_block_cached__gqa_block_cached__near_ridge"

class Opt:
    stamps = False
    dumpq = False
    map1 = 1
    kv_nt = True
    xw_nt = False
    o_nt = False
    lag = 1
    thr_log2 = 14
    budget = 22
    dma_cost = 8
    only = None
    kvstart = 8
    op_nt_o = False
    op_nt_w = False
    skip_x = False
    skip_w = False
    skip_kv = False
    skip_oo = False
    skip_ow = False
    skip_dma = False
    skip_sm = False
    skip_lds = False
    nobr = False
    twocls = True
    cvt_cost = 6
    maxfill = 5
    kpair = False
    D = 3

O = Opt()

class Asm:
    def __init__(self):
        self.L = []
    def __call__(self, s):
        self.L.append(s if s.endswith(":") else "    " + s)
    def label(self, s):
        self.L.append(s + ":")
    def c(self, s):
        self.L.append("    ; " + s)
    def text(self):
        return "\n".join(self.L) + "\n"

def vr(b, n=1):
    return f"v{b}" if n == 1 else f"v[{b}:{b+n-1}]"
def ar(b, n=1):
    return f"a{b}" if n == 1 else f"a[{b}:{b+n-1}]"
def f32bits(x):
    import struct
    return struct.unpack("<I", struct.pack("<f", x))[0]

MFMA = "v_mfma_f32_32x32x16_bf16"

def kd(k, vgpr=512, acc=256, sgpr=102):
    return f""".section .rodata,"a"
.p2align 6
.amdhsa_kernel {k}
  .amdhsa_next_free_vgpr {vgpr}
  .amdhsa_next_free_sgpr {sgpr}
  .amdhsa_accum_offset {acc}
  .amdhsa_group_segment_fixed_size 0
  .amdhsa_kernarg_size 104
  .amdhsa_user_sgpr_count 2
  .amdhsa_user_sgpr_kernarg_segment_ptr 1
  .amdhsa_system_sgpr_workgroup_id_x 1
.end_amdhsa_kernel
.text
"""
def kstart(k):
    return f".globl {k}\n.p2align 8\n.type {k},@function\n{k}:\n"

WOF_OFF = 48 << 20
STAMP_WS_OFF = 128 << 20
QDUMP_WS_OFF = 64 << 20

sX, sW, sK, sV, sO = 8, 12, 16, 20, 24
sWAVE, sKVW, sVVW, sWQW = 28, 29, 30, 31
sKOFF, sVOFF, sMASK, sLOOP, sUNIT, sT, sTHR, sSC = 32, 33, 34, 35, 36, 37, 38, 39
sOOF = 40
sT2 = 44
sWS = 46
sSTAMP = 48
sDBG = 84

vAK = 1
vAV = 9
vOK = 13
vOV = 17
vOO = 18
vL = 20
vTS = 22
vCHK = 19
vT = 24
vNEGM = 32
vS = 64
vP = 128
vQ = 160
vX = 224
aO = 0
aKF = 128
aVF = 160
aQ2 = 192
KBASE, VBASE, WQBASE = 0, 65536, 98304

def S(buf, qb): return vS + buf * 32 + qb * 16
def P(buf, qb, ks): return vP + buf * 16 + qb * 8 + ks * 4
def NEGM(qb): return vNEGM + qb * 16
def Q(qb, s): return vQ + (qb * 8 + s) * 4
def OA(qb, blk): return aO + (qb * 4 + blk) * 16
def KF(s): return aKF + s * 4
def VF(f): return aVF + f * 4

nstamp = [0]
def stamp(A, name):
    if O.stamps:
        if nstamp[0] == 0: A("s_memrealtime s[80:81]")
        i = nstamp[0]; nstamp[0] += 1
        A(f"s_memtime s[{sSTAMP+2*i}:{sSTAMP+2*i+1}]")

def interleave(A, mfmas, first=None, mid=None, last=None, stream=(), budget=None, pre=None, maxfill=None):
    if budget is None: budget = O.budget
    if maxfill is None: maxfill = O.maxfill
    first = first or {}; mid = mid or {}; last = last or {}; pre = pre or {}
    si = 0
    placed = []
    for g in range(len(mfmas)):
        for t in pre.get(g, []): A(t)
        A(mfmas[g])
        fx = first.get(g, []) + mid.get(g, [])
        lx = last.get(g, [])
        room = budget - sum(c for _, c in fx + lx)
        cnt = len(fx) + len(lx)
        for t, _ in fx: A(t)
        while si < len(stream):
            it = stream[si]
            if len(it) > 2 and it[2] > g: break
            if it[1] > room or cnt >= maxfill: break
            A(it[0]); room -= it[1]; cnt += 1; si += 1; placed.append(g)
        for t, _ in lx: A(t)
    while si < len(stream):
        A(stream[si][0]); si += 1; placed.append(len(mfmas))
    return placed

NT_ = 8
def T(e): return vT + (e % NT_)
def exp_op(buf, e): return (f"v_exp_f32 {vr(T(e))}, {vr(S(buf, e >> 4) + (e & 15))}", 8)
def consume_ops(buf, e):
    qb, r = e >> 4, e & 15
    st = []
    if r == 0: return st
    if r == 1: st.append((f"v_add_f32 {vr(vTS+qb)}, {vr(T(e-1))}, {vr(T(e))}", 4))
    else: st.append((f"v_add_f32 {vr(vTS+qb)}, {vr(vTS+qb)}, {vr(T(e))}", 4))
    if r & 1:
        i = r >> 1
        st.append((f"v_cvt_pk_bf16_f32 {vr(P(buf,qb,i>>2)+(i&3))}, {vr(T(e-1))}, {vr(T(e))}", O.cvt_cost))
    return st
def l_adds():
    return [(f"v_add_f32 {vr(vL)}, {vr(vL)}, {vr(vTS)}", 4), (f"v_add_f32 {vr(vL+1)}, {vr(vL+1)}, {vr(vTS+1)}", 4)]
def chk_ops():
    return [(f"v_add_f32 {vr(vCHK)}, {vr(vTS)}, {vr(vTS+1)}", 4), (f"v_cmp_nge_f32 vcc, s{sTHR}, {vr(vCHK)}", 4)]
def serial_softmax(buf, e0):
    st = l_adds()
    for e in range(e0): st += consume_ops(buf, e)
    for e in range(e0, 32):
        st.append(exp_op(buf, e))
        if e > e0: st += consume_ops(buf, e - 1)
    st.append(("s_nop 0", 4))
    st += consume_ops(buf, 31) + chk_ops()
    return st

NT_KV = lambda: " nt" if O.kv_nt else ""
NT_XW = lambda: " nt" if O.xw_nt else ""

def dma_k_group(ring):
    return ([f"s_add_u32 m0, s{sKVW}, {ring*16384}"],
            [f"buffer_load_dwordx4 {vr(vOK+p)}, s[{sK}:{sK+3}], s{sKOFF} offen offset:{p*1024}{NT_KV()} lds" for p in range(4)],
            [f"s_add_u32 s{sKOFF}, s{sKOFF}, 0x4000"])
def dma_v_group(ring):
    return ([f"s_add_u32 m0, s{sVVW}, {ring*16384}"],
            [f"buffer_load_dwordx4 {vr(vOV)}, s[{sV}:{sV+3}], s{sVOFF} offen offset:{p*1024}{NT_KV()} lds" for p in range(4)],
            [f"s_add_u32 s{sVOFF}, s{sVOFF}, 0x4000"])

def k_reads(ring, kb):
    return [f"ds_read_b128 {ar(KF(s),4)}, {vr(vAK+s)} offset:{ring*16384+kb*8192}" for s in range(8)]
def v_reads(ring, kb):
    r = []
    for f in range(8):
        ks, blk = f >> 2, f & 3
        for jh in range(2):
            r.append(f"ds_read_b64_tr_b16 {ar(VF(f)+2*jh,2)}, {vr(vAV+blk)} offset:{ring*16384+kb*8192+ks*4096+jh*2048}")
    return r
def pv_mfmas(buf):
    return [f"{MFMA} {ar(OA(qb,f&3),16)}, {ar(VF(f),4)}, {vr(P(buf,qb,f>>2),4)}, {ar(OA(qb,f&3),16)}"
            for qb in range(2) for f in range(8)]
def qk_mfmas(buf, zero_c=False):
    r = []
    for qb in range(2):
        for s in range(8):
            c = vr(S(buf,qb),16) if s else ("0" if zero_c else vr(NEGM(qb),16))
            r.append(f"{MFMA} {vr(S(buf,qb),16)}, {ar(KF(s),4)}, {vr(Q(qb,s),4)}, {c}")
    return r

rare_sites = []
def slot(A, p, cls, do_pv=True, do_qk=True, tag="", tail=()):
    D = O.D
    even = (p & 1) == 0
    buf = p & 1
    A.c(f"---- slot {tag} pos={p} cls={cls} pv={do_pv} qk={do_qk}")
    setup, pieces, post = dma_v_group(((p >> 1) + 2) & 3) if even else dma_k_group((((p + 1) >> 1) + 3) & 3)
    kr = k_reads(((p + 1) >> 1) & 3, (p + 1) & 1) if do_qk else []
    vrd = v_reads((p >> 1) & 3, p & 1)
    lab = f"L_rare_{tag}"; ret = f"L_ret_{tag}"
    br = [(f"s_cbranch_vccnz {lab}", 4), (ret + ":", 0)]
    rare_sites.append((lab, ret, buf, D if do_qk else 0))
    G = lambda n: {g: [] for g in range(n)}
    if do_pv and do_qk:
        mf = pv_mfmas(buf ^ 1) + qk_mfmas(buf ^ 1)
        first, mid, last = G(32), G(32), G(32)
        for i, t in enumerate(kr): first[(i & ~1) if O.kpair else i].append((t, 4))
        last[7].append((setup[0], 4))
        for i, t in enumerate(pieces): first[8 + 2 * i].append((t, O.dma_cost))
        last[14].append((post[0], 4))
        pre = {0: ["s_waitcnt lgkmcnt(0)"]}
        if even and cls == 0: pre[16] = ["s_waitcnt vmcnt(16) lgkmcnt(0)", "s_barrier"]
        elif even:
            pre[16] = ["s_waitcnt vmcnt(16) lgkmcnt(0)"]; first[16].append(("s_barrier", 4))
        else: pre[16] = ["s_waitcnt lgkmcnt(0)"]
        vg = [16,16,17,18,18,19,20,20,21,22,22,23,24,24,26,26]
        if even and cls == 1: vg = [16,17,18,18,19,20,20,21,22,22,23,24,24,25,26,26]
        for i, t in enumerate(vrd): first[vg[i]].append((t, 4))
        for e in range(D, 32): mid[e - D].append(exp_op(buf, e))
        for e in range(D): mid[32 - D + e].append(exp_op(buf ^ 1, e))
        st = l_adds(); owner = [None, None]
        for e in range(32):
            for op in consume_ops(buf, e):
                st.append(op + (max(0, e - D + 1),)); owner.append(e)
        st += chk_ops(); owner += [None, None]
        last[31] += br + list(tail)
        placed = interleave(A, mf, first, mid, last, st, pre=pre)
        assert placed[-1] <= 30, placed
        for g, e in zip(placed, owner):
            if e is None: continue
            lo = e - 1 if e & 1 else e
            assert g < lo + NT_ - D, (g, e)
    elif do_qk:
        for t in kr: A(t)
        for t in setup: A(t)
        st = serial_softmax(buf, D)
        for t, _ in st[:6]: A(t)
        for t in pieces: A(t)
        for t in post: A(t)
        nfirst = 30
        for t, _ in st[6:nfirst]: A(t)
        mf = qk_mfmas(buf ^ 1)
        first = G(16)
        pre = {0: ["s_waitcnt vmcnt(16) lgkmcnt(0)", "s_barrier"]}
        if cls == 1:
            pre = {0: ["s_waitcnt vmcnt(16) lgkmcnt(0)"]}; first[0].append(("s_barrier", 4))
        for i, t in enumerate(vrd): first[(i * 12) // 16].append((t, 4))
        interleave(A, mf, first, stream=st[nfirst:], pre=pre)
        for e in range(D): A(exp_op(buf ^ 1, e)[0])
        for t, _ in br + list(tail): A(t)
    else:
        mf = pv_mfmas(buf ^ 1)
        first, last = G(16), G(16)
        last[0].append((setup[0], 4))
        for i, t in enumerate(pieces): first[1 + 2 * i].append((t, O.dma_cost))
        last[8].append((post[0], 4))
        st = serial_softmax(buf, D)
        n1 = 46
        interleave(A, mf, first, last=last, stream=st[:n1], pre={0: ["s_waitcnt lgkmcnt(0)"]})
        for t in vrd: A(t)
        for t, _ in st[n1:] + br + list(tail): A(t)

def rare_path(A, lab, ret, buf, nexp):
    A.label(lab)
    A("s_nop 15"); A("s_nop 15")
    tm, tm2, fct = vX, vX + 1, vX + 2
    for qb in range(2):
        s = S(buf, qb)
        A(f"v_max3_f32 {vr(tm)}, {vr(s)}, {vr(s+1)}, {vr(s+2)}")
        for r in range(3, 15, 2):
            A(f"v_max3_f32 {vr(tm)}, {vr(tm)}, {vr(s+r)}, {vr(s+r+1)}")
        A(f"v_max3_f32 {vr(tm)}, {vr(tm)}, {vr(s+15)}, 0")
        A(f"v_mov_b32 {vr(tm2)}, {vr(tm)}")
        A("s_nop 1")
        A(f"v_permlane32_swap_b32 {vr(tm)}, {vr(tm2)}")
        A("s_nop 1")
        A(f"v_max_f32 {vr(tm)}, {vr(tm)}, {vr(tm2)}")
        A(f"v_exp_f32 {vr(fct)}, -{vr(tm)}")
        for r in range(16):
            A(f"v_sub_f32 {vr(s+r)}, {vr(s+r)}, {vr(tm)}")
            A(f"v_sub_f32 {vr(S(buf^1,qb)+r)}, {vr(S(buf^1,qb)+r)}, {vr(tm)}")
            A(f"v_sub_f32 {vr(NEGM(qb)+r)}, {vr(NEGM(qb)+r)}, {vr(tm)}")
        A(f"v_mul_f32 {vr(vL+qb)}, {vr(vL+qb)}, {vr(fct)}")
        for blk in range(4):
            for r in range(0, 16, 4):
                for i in range(4): A(f"v_accvgpr_read_b32 {vr(vX+4+i)}, {ar(OA(qb,blk)+r+i)}")
                for i in range(4): A(f"v_mul_f32 {vr(vX+4+i)}, {vr(vX+4+i)}, {vr(fct)}")
                for i in range(4): A(f"v_accvgpr_write_b32 {ar(OA(qb,blk)+r+i)}, {vr(vX+4+i)}")
        for r in range(16):
            A(f"v_exp_f32 {vr(vX+8+r)}, {vr(s+r)}")
        A("s_nop 0")
        A(f"v_add_f32 {vr(vTS+qb)}, {vr(vX+8)}, {vr(vX+9)}")
        for r in range(2, 16):
            A(f"v_add_f32 {vr(vTS+qb)}, {vr(vTS+qb)}, {vr(vX+8+r)}")
        for i in range(8):
            A(f"v_cvt_pk_bf16_f32 {vr(P(buf,qb,i>>2)+(i&3))}, {vr(vX+8+2*i)}, {vr(vX+9+2*i)}")
    for e in range(nexp): A(exp_op(buf ^ 1, e)[0])
    A("s_nop 3")
    A(f"s_branch {ret}")

def srd(A, d, base_lo, base_hi, off, size):
    A(f"s_add_u32 s{d}, s{base_lo}, {off}"); A(f"s_addc_u32 s{d+1}, s{base_hi}, 0"); A(f"s_and_b32 s{d+1}, s{d+1}, 0xffff")
    A(f"s_mov_b32 s{d+2}, {size}"); A(f"s_mov_b32 s{d+3}, 0x20000")

sWOI, sWOF = 88, 92

def gen_attn(k):
    A = Asm()
    nstamp[0] = 0
    del rare_sites[:]
    A("s_cmp_ge_u32 s2, 256"); A("s_cbranch_scc1 L_attn_end")
    A("s_load_dwordx8 s[48:55], s[0:1], 0")
    A("s_load_dwordx2 s[64:65], s[0:1], 32")
    A("s_load_dwordx4 s[56:59], s[0:1], 40")
    A("s_load_dwordx4 s[60:63], s[0:1], 56")
    A("s_load_dwordx2 s[66:67], s[0:1], 72")
    A(f"s_load_dwordx2 s[{sWS}:{sWS+1}], s[0:1], 96")
    A("s_and_b32 s3, s2, 7")
    A("s_lshr_b32 s4, s2, 3")
    A("s_lshr_b32 s5, s3, 2")
    if O.map1 == 1:
        A("s_and_b32 s6, s3, 3"); A("s_lshl_b32 s6, s6, 1"); A("s_lshr_b32 s7, s4, 4"); A("s_add_u32 s6, s6, s7")
        A("s_and_b32 s7, s4, 15")
    else:
        A("s_bfe_u32 s6, s3, 0x10001"); A("s_lshl_b32 s6, s6, 2"); A("s_lshr_b32 s7, s4, 3"); A("s_add_u32 s6, s6, s7")
        A("s_and_b32 s7, s3, 1"); A("s_lshl_b32 s7, s7, 3"); A("s_and_b32 s4, s4, 7"); A("s_add_u32 s7, s7, s4")
    A("v_lshrrev_b32 v19, 6, v0")
    lane, h, sub, r_, cs, t0, t1, t2 = 240, 241, 242, 243, 244, 245, 246, 247
    vAW, vOW, vOX, vWI, vWR, vWS = 224, 228, 230, 232, 233, 234
    A(f"v_and_b32 {vr(lane)}, 63, v0")
    A(f"v_readfirstlane_b32 s{sWAVE}, v19")
    A(f"v_lshrrev_b32 {vr(h)}, 5, {vr(lane)}")
    A(f"s_lshl_b32 s{sT}, s{sWAVE}, 15")
    for p in range(2):
        A(f"v_add_u32 {vr(t0)}, {2*p}, {vr(h)}")
        A(f"v_lshlrev_b32 {vr(t1)}, 2, {vr(t0)}")
        A(f"v_and_b32 {vr(t2)}, 31, {vr(lane)}")
        A(f"v_xor_b32 {vr(t1)}, {vr(t1)}, {vr(t2)}")
        A(f"v_lshlrev_b32 {vr(t1)}, 4, {vr(t1)}")
        A(f"v_lshl_add_u32 {vr(t1)}, {vr(t0)}, 13, {vr(t1)}")
        A(f"v_add_u32 {vr(vOW+p)}, s{sT}, {vr(t1)}")
        if p: A(f"v_subrev_u32 {vr(vOW+p)}, 1024, {vr(vOW+p)}")
    A(f"s_mul_i32 s{sT}, s{sWAVE}, {64*1280}")
    A(f"v_mul_u32_u24 {vr(t0)}, 1280, {vr(t2)}")
    A(f"v_lshl_add_u32 {vr(t0)}, {vr(h)}, 4, {vr(t0)}")
    A(f"v_add_u32 {vr(vOX)}, s{sT}, {vr(t0)}")
    A(f"v_add_u32 {vr(vOX+1)}, {32*1280}, {vr(vOX)}")
    A(f"s_lshl_b32 s{sKVW}, s{sWAVE}, 12")
    A(f"s_add_u32 s{sVVW}, s{sKVW}, {VBASE}")
    A(f"s_lshl_b32 s{sWQW}, s{sWAVE}, 11"); A(f"s_add_u32 s{sWQW}, s{sWQW}, {WQBASE}")
    A("s_waitcnt lgkmcnt(0)")
    A("s_cmp_eq_u32 s5, 1")
    for i in range(8):
        A(f"s_cselect_b32 s{48+i}, s{56+i}, s{48+i}")
    A("s_cselect_b32 s64, s66, s64"); A("s_cselect_b32 s65, s67, s65")
    A(f"s_lshl_b32 s{sT}, s7, 9")
    srd(A, sW, 54, 55, f"s{sT}", 0); A(f"s_sub_u32 s{sW+2}, {640*8192}, s{sT}")
    A(f"s_mul_i32 s{sT}, s6, 327680")
    srd(A, sX, 48, 49, f"s{sT}", 327680)
    vAF, vXR = 32, 96
    def AF(buf, nb): return vAF + buf * 32 + nb * 4
    def XR(kk, qb): return vXR + ((kk >> 2) % 3) * 32 + (kk & 3) * 8 + qb * 4
    def ACC(qb, nb): return (nb * 2 + qb) * 16
    vm = []
    def wq_dma(kk):
        vm.extend([("W", kk)] * 2)
        return [f"s_add_u32 m0, s{sWQW}, {(kk % 8) * 8192}", f"s_mov_b32 s{sT2}, {kk * 131072}",
                f"buffer_load_dwordx4 {vr(vOW)}, s[{sW}:{sW+3}], s{sT2} offen{NT_XW()} lds",
                f"buffer_load_dwordx4 {vr(vOW+1)}, s[{sW}:{sW+3}], s{sT2} offen offset:1024{NT_XW()} lds"]
    def x_ld(G):
        vm.extend([("X", G)] * 8)
        return [f"buffer_load_dwordx4 {vr(XR(kk,qb),4)}, {vr(vOX+qb)}, s[{sX}:{sX+3}], 0 offen offset:{kk*32}{NT_XW()}"
                for qb in range(2) for kk in range(4 * G, 4 * G + 4)]
    def vmwait(tags):
        last = max(i for i, t in enumerate(vm) if t in tags)
        return min(63, len(vm) - 1 - last)
    for t in wq_dma(0) + x_ld(0) + wq_dma(1) + wq_dma(2) + wq_dma(3) + x_ld(1): A(t)
    for kk in range(4, 8):
        for t in wq_dma(kk): A(t)
    A(f"s_lshl_b32 s4, s6, 4"); A(f"s_add_u32 s4, s4, s7")
    A(f"s_lshl_b32 s{sT}, s4, 19")
    srd(A, sK, 50, 51, f"s{sT}", "0x80000")
    srd(A, sV, 52, 53, f"s{sT}", "0x80000")
    A(f"s_mul_i32 s{sT}, s4, 40960")
    srd(A, sWOI, 64, 65, f"s{sT}", 40960)
    A(f"s_mul_i32 s{sT2}, s{sWAVE}, 10240")
    A(f"v_lshlrev_b32 {vr(t0)}, 4, {vr(lane)}")
    A(f"v_add_u32 {vr(vWI)}, s{sT2}, {vr(t0)}")
    for g in range(3):
        A(f"s_add_u32 m0, s{sT2}, {4096*g}"); A(f"s_mov_b32 s{sT}, {4096*g}")
        for i in range(4 if g < 2 else 2):
            vm.append(("O", 0))
            A(f"buffer_load_dwordx4 {vr(vWI)}, s[{sWOI}:{sWOI+3}], s{sT} offen offset:{1024*i} lds")
    A(f"s_mul_i32 s{sT}, s5, 5242880"); A(f"s_mul_i32 s{sT2}, s4, 5120"); A(f"s_add_u32 s{sT}, s{sT}, s{sT2}"); A(f"s_add_u32 s{sT}, s{sT}, {WOF_OFF}")
    srd(A, sWOF, sWS, sWS + 1, f"s{sT}", 0); A(f"s_sub_u32 s{sWOF+2}, 5242880, s{sT2}")
    A(f"s_mul_i32 s{sT}, s{sWAVE}, {2*655360}")
    A(f"v_add_u32 {vr(vWS)}, s{sT}, {vr(t0)}")
    A(f"s_lshl_b32 s{sT}, s5, 3"); A(f"s_add_u32 s{sT}, s{sT}, s6"); A(f"s_lshl_b32 s{sT2}, s{sT}, 21")
    srd(A, sO, sWS, sWS + 1, f"s{sT2}", "0x200000")
    A(f"s_lshl_b32 s{sOOF}, s7, 13")
    A(f"s_add_u32 s{sOOF+1}, s{sOOF}, 0x40000")
    if O.dumpq:
        A(f"s_lshl_b32 s{sT}, s{sT}, 4"); A(f"s_add_u32 s{sT}, s{sT}, s7"); A(f"s_lshl_b32 s{sT}, s{sT}, 17")
        A(f"s_add_u32 s{sT}, s{sT}, {QDUMP_WS_OFF}")
        srd(A, sDBG, sWS, sWS + 1, f"s{sT}", "0x20000")
    stamp(A, "start")
    A(f"s_mov_b32 s{sKOFF}, 0"); A(f"s_mov_b32 s{sVOFF}, 0")
    A(f"s_mov_b32 s{sTHR}, {hex(f32bits(2.0**O.thr_log2))}")
    A(f"s_mov_b32 s{sSC}, {hex(f32bits(128**-0.5*math.log2(math.e)))}")
    A(f"v_bfe_u32 {vr(sub)}, {vr(lane)}, 4, 1")
    A(f"v_bfe_u32 {vr(r_)}, {vr(lane)}, 2, 2")
    A(f"v_and_b32 {vr(t0)}, 1, {vr(lane)}"); A(f"v_lshlrev_b32 {vr(t0)}, 4, {vr(t0)}")
    A(f"v_bfe_u32 {vr(t1)}, {vr(lane)}, 1, 1"); A(f"v_lshlrev_b32 {vr(t1)}, 3, {vr(t1)}")
    A(f"v_lshlrev_b32 {vr(cs)}, 5, {vr(sub)}"); A(f"v_add3_u32 {vr(cs)}, {vr(cs)}, {vr(t0)}, {vr(t1)}")
    for i in range(4):
        A(f"v_lshl_add_u32 {vr(t0)}, {vr(h)}, 3, {vr(r_)}")
        A(f"v_lshlrev_b32 {vr(t0)}, 9, {vr(t0)}")
        A(f"v_xor_b32 {vr(t1)}, {i}, {vr(r_)}")
        A(f"v_lshl_add_u32 {vr(t0)}, {vr(t1)}, 6, {vr(t0)}")
        A(f"v_add_u32 {vr(t0)}, {vr(t0)}, {vr(cs)}")
        A(f"v_add_u32 {vr(vAW+i)}, {WQBASE}, {vr(t0)}")
        A(f"v_lshl_add_u32 {vr(t0)}, {vr(h)}, 2, {vr(r_)}")
        A(f"v_lshlrev_b32 {vr(t0)}, 8, {vr(t0)}")
        A(f"v_lshl_add_u32 {vr(t0)}, {vr(t1)}, 6, {vr(t0)}")
        A(f"v_add_u32 {vr(t0)}, {vr(t0)}, {vr(cs)}")
        A(f"v_add_u32 {vr(vAV+i)}, {VBASE}, {vr(t0)}")
    for s in range(8):
        A(f"v_add_u32 {vr(t0)}, {2*s}, {vr(h)}")
        A(f"v_and_b32 {vr(t1)}, 15, {vr(lane)}")
        A(f"v_xor_b32 {vr(t0)}, {vr(t0)}, {vr(t1)}")
        A(f"v_lshlrev_b32 {vr(t0)}, 4, {vr(t0)}")
        A(f"v_and_b32 {vr(t1)}, 31, {vr(lane)}")
        A(f"v_lshl_add_u32 {vr(vAK+s)}, {vr(t1)}, 8, {vr(t0)}")
    A(f"v_lshrrev_b32 {vr(t2)}, 4, {vr(lane)}")
    for p in range(4):
        A(f"v_add_u32 {vr(t0)}, {4*p}, {vr(t2)}")
        A(f"v_and_b32 {vr(t1)}, 15, {vr(lane)}")
        A(f"v_xor_b32 {vr(t0)}, {vr(t0)}, {vr(t1)}")
        A(f"v_lshlrev_b32 {vr(t0)}, 4, {vr(t0)}")
        A(f"v_lshl_add_u32 {vr(t0)}, {vr(t2)}, 8, {vr(t0)}")
        A(f"v_add_u32 {vr(vOK+p)}, s{sKVW}, {vr(t0)}")
    A(f"v_lshlrev_b32 {vr(t0)}, 2, {vr(t2)}")
    A(f"v_and_b32 {vr(t1)}, 15, {vr(lane)}")
    A(f"v_xor_b32 {vr(t0)}, {vr(t0)}, {vr(t1)}")
    A(f"v_lshlrev_b32 {vr(t0)}, 4, {vr(t0)}")
    A(f"v_lshl_add_u32 {vr(t0)}, {vr(t2)}, 8, {vr(t0)}")
    A(f"v_add_u32 {vr(vOV)}, s{sKVW}, {vr(t0)}")
    A(f"s_lshl_b32 s{sT}, s{sWAVE}, 19")
    A(f"v_lshl_add_u32 {vr(t0)}, {vr(h)}, 4, {vr(t1)}")
    A(f"v_lshlrev_b32 {vr(t0)}, 4, {vr(t0)}")
    A(f"v_lshl_add_u32 {vr(t0)}, {vr(sub)}, 17, {vr(t0)}")
    A(f"v_add_u32 {vr(vOO)}, s{sT}, {vr(t0)}")
    A(f"v_lshl_add_u32 {vr(t0)}, {vr(t2)}, 3, {vr(r_)}")
    A(f"v_mul_u32_u24 {vr(t0)}, 1280, {vr(t0)}")
    A(f"v_and_b32 {vr(t1)}, 3, {vr(lane)}")
    A(f"v_lshl_add_u32 {vr(t0)}, {vr(t1)}, 3, {vr(t0)}")
    A(f"s_mul_i32 s{sT}, s{sWAVE}, 320")
    A(f"v_add_u32 {vr(vWR)}, s{sT}, {vr(t0)}")
    def a_reads(kk):
        r = []
        for nb in range(8):
            for jh in range(2):
                r.append(f"ds_read_b64_tr_b16 {vr(AF(kk&1,nb)+2*jh,2)}, {vr(vAW+(nb&3))} offset:{(kk%8)*8192+jh*2048+(nb>>2)*256}")
        return r
    vWT = 192
    def wo_reads(half):
        return [f"ds_read_b64_tr_b16 {vr(vWT+nb*4+2*jh,2)}, {vr(vWR)} offset:{jh*5120+(half*5+nb)*32}" for nb in range(5) for jh in range(2)]
    def wo_stores(half):
        r = []
        for nb in range(5):
            vm.append(("S", half))
            r.append([f"s_mov_b32 s{sT}, {half*655360 + (4096 if nb == 4 else 0)}",
                      f"buffer_store_dwordx4 {vr(vWT+nb*4,4)}, {vr(vWS)}, s[{sWOF}:{sWOF+3}], s{sT} offen offset:{(nb&3)*1024}"])
        return r
    A(f"s_waitcnt vmcnt({vmwait([('W',0)])})"); A("s_barrier")
    stamp(A, "wq0 landed")
    for t in a_reads(0): A(t)
    kvq = []
    for (kind, tile) in [("K",0),("V",0),("K",1),("V",1),("K",2),("K",3)]:
        setup, pieces, post = dma_k_group(tile) if kind == "K" else dma_v_group(tile)
        for p in range(4):
            kvq.append((setup, pieces[p], (post if p == 3 else []), (kind, tile)))
    WS0 = 3
    for kk in range(40):
        A.c(f"---- qproj step {kk}")
        need = [("X", kk >> 2)] + ([("W", kk + 1)] if kk + 1 < 40 else []) + ([("O", 0)] if kk == WS0 else [])
        pre = {0: [f"s_waitcnt vmcnt({vmwait(need)}) lgkmcnt(0)", "s_barrier"]}
        mf = []
        for nb in range(8):
            for qb in range(2):
                c = ar(ACC(qb,nb),16) if kk else "0"
                mf.append(f"{MFMA} {ar(ACC(qb,nb),16)}, {vr(AF(kk&1,nb),4)}, {vr(XR(kk,qb),4)}, {c}")
        first = {g: [] for g in range(16)}
        if kk + 1 < 40:
            for i, t in enumerate(a_reads(kk + 1)): first[(i * 12) // 16].append((t, 4))
        if kk + 8 < 40:
            w = wq_dma(kk + 8)
            first[0] += [(w[0], 4), (w[1], 4)]; first[1].append((w[2], 4)); first[2].append((w[3], 4))
        if kk % 4 == 0 and (kk >> 2) + 2 < 10:
            for i, t in enumerate(x_ld((kk >> 2) + 2)): first[3 + i].append((t, 4))
        if kk in (WS0 + 1, WS0 + 2):
            for i, ts in enumerate(wo_stores(kk - WS0 - 1)): first[3 + i] += [(t, 4) for t in ts]
        if kk in (WS0, WS0 + 1):
            for i, t in enumerate(wo_reads(kk - WS0)): first[9 + i // 3].append((t, 4))
        if kk >= O.kvstart and kvq:
            su, pc, po, tag = kvq.pop(0)
            vm.append(tag)
            first[12] += [(t, 4) for t in su]
            first[13].append((pc, 4))
            first[14] += [(t, 4) for t in po]
        interleave(A, mf, first, pre=pre)
    assert not kvq and O.kvstart >= WS0 + 2
    stamp(A, "qproj done")
    A("s_nop 15")
    def conv(qb, nb, dst_fn, tb):
        for r in range(16): A(f"v_accvgpr_read_b32 {vr(tb+r)}, {ar(ACC(qb,nb)+r)}")
        for r in range(16): A(f"v_mul_f32 {vr(tb+r)}, s{sSC}, {vr(tb+r)}")
        for i in range(8): A(f"v_cvt_pk_bf16_f32 {vr(dst_fn(i>>2)+(i&3))}, {vr(tb+2*i)}, {vr(tb+2*i+1)}")
    tmpq = 96
    for nb in range(4, 8):
        for qb in range(2):
            conv(qb, nb, lambda sp: tmpq + (qb * 8 + 2 * (nb - 4) + sp) * 4, 32 + 16 * ((nb * 2 + qb) & 1))
    for nb in range(4):
        for qb in range(2):
            conv(qb, nb, lambda sp: Q(qb, 2 * nb + sp), 32 + 16 * ((nb * 2 + qb) & 1))
    for i in range(64): A(f"v_accvgpr_write_b32 {ar(aQ2+i)}, {vr(tmpq+i)}")
    if O.dumpq:
        A(f"v_lshlrev_b32 {vr(t0)}, 4, {vr(lane)}")
        A(f"s_lshl_b32 s{sT}, s{sWAVE}, 15")
        A(f"v_add_u32 {vr(t0)}, s{sT}, {vr(t0)}")
        for i in range(16):
            A(f"s_mov_b32 s{sT}, {i*1024}")
            A(f"buffer_store_dwordx4 {vr(vQ+4*i,4)}, {vr(t0)}, s[{sDBG}:{sDBG+3}], s{sT} offen")
            A(f"s_mov_b32 s{sT}, {16384+i*1024}")
            A(f"buffer_store_dwordx4 {vr(tmpq+4*i,4)}, {vr(t0)}, s[{sDBG}:{sDBG+3}], s{sT} offen")
        A("s_waitcnt vmcnt(0)")
    A(f"s_waitcnt vmcnt({vmwait([('K',0)])})"); A("s_barrier")
    stamp(A, "conv done")
    A(f"s_mov_b32 s{sUNIT}, 0")
    A.label("L_unit")
    A.c("---- unit prologue")
    for t in k_reads(0, 0): A(t)
    A(f"v_mov_b32 {vr(vL)}, 0"); A(f"v_mov_b32 {vr(vL+1)}, 0"); A(f"v_mov_b32 {vr(vTS)}, 0"); A(f"v_mov_b32 {vr(vTS+1)}, 0")
    zero = [(f"v_accvgpr_write_b32 {ar(aO+i)}, 0", 4) for i in range(128)]
    for t, _ in zero[:24]: A(t)
    interleave(A, qk_mfmas(0, zero_c=True), stream=zero[24:], pre={0: ["s_waitcnt lgkmcnt(0)"]}, budget=24, maxfill=6)
    A("s_nop 7")
    tm, tm2 = vX, vX + 1
    for qb in range(2):
        s = S(0, qb)
        A(f"v_max3_f32 {vr(tm)}, {vr(s)}, {vr(s+1)}, {vr(s+2)}")
        for r in range(3, 15, 2):
            A(f"v_max3_f32 {vr(tm)}, {vr(tm)}, {vr(s+r)}, {vr(s+r+1)}")
        A(f"v_max_f32 {vr(tm)}, {vr(tm)}, {vr(s+15)}")
        A(f"v_mov_b32 {vr(tm2)}, {vr(tm)}")
        A("s_nop 1")
        A(f"v_permlane32_swap_b32 {vr(tm)}, {vr(tm2)}")
        A("s_nop 1")
        A(f"v_max_f32 {vr(tm)}, {vr(tm)}, {vr(tm2)}")
        for r in range(16):
            A(f"v_sub_f32 {vr(NEGM(qb)+r)}, 0, {vr(tm)}")
            A(f"v_sub_f32 {vr(s+r)}, {vr(s+r)}, {vr(tm)}")
    for e in range(O.D): A(exp_op(0, e)[0])
    A(f"s_mov_b32 s{sLOOP}, 3")
    ncls = 2 if O.twocls else 1
    if ncls == 2:
        A(f"s_bitcmp1_b32 s{sWAVE}, 0"); A("s_cbranch_scc1 L_first_1")
    for cls in range(ncls):
        A.label(f"L_first_{cls}")
        slot(A, 0, cls, do_pv=False, tag=f"first_{cls}")
        A.label(f"L_loop_{cls}")
        for p in range(1, 7):
            slot(A, p, cls, tag=f"p{p}_{cls}", tail=[(f"s_cmp_eq_u32 s{sLOOP}, 0", 4), (f"s_cbranch_scc1 L_last", 4)] if p == 6 else ())
        slot(A, 7, cls, tag=f"p7_{cls}")
        slot(A, 0, cls, tag=f"p0_{cls}", tail=[(f"s_sub_u32 s{sLOOP}, s{sLOOP}, 1", 4), (f"s_branch L_loop_{cls}", 4)])
    A.label("L_last")
    slot(A, 7, 0, do_qk=False, tag="last")
    A.c("---- final PV + epilogue")
    inv = [vX + 2, vX + 3]
    st = []
    for qb in range(2):
        st += [(f"v_add_f32 {vr(vL+qb)}, {vr(vL+qb)}, {vr(vTS+qb)}", 4),
               (f"v_mov_b32 {vr(tm2)}, {vr(vL+qb)}", 4), ("s_nop 1", 8),
               (f"v_permlane32_swap_b32 {vr(vL+qb)}, {vr(tm2)}", 4), ("s_nop 1", 8),
               (f"v_add_f32 {vr(vL+qb)}, {vr(vL+qb)}, {vr(tm2)}", 4),
               (f"v_rcp_f32 {vr(inv[qb])}, {vr(vL+qb)}", 8)]
    interleave(A, pv_mfmas(1), stream=st, pre={0: ["s_waitcnt lgkmcnt(0)"]})
    A("s_nop 15")
    n = 0
    ONT = " nt" if O.o_nt else ""
    for qb in range(2):
        for blk in range(4):
            for sp in range(2):
                tb = vS + (n % 4) * 16; n += 1
                for i in range(8): A(f"v_accvgpr_read_b32 {vr(tb+i)}, {ar(OA(qb,blk)+8*sp+i)}")
                for i in range(8): A(f"v_mul_f32 {vr(tb+i)}, {vr(tb+i)}, {vr(inv[qb])}")
                for i in range(4): A(f"v_cvt_pk_bf16_f32 {vr(tb+8+i)}, {vr(tb+2*i)}, {vr(tb+2*i+1)}")
                A(f"buffer_store_dwordx4 {vr(tb+8,4)}, {vr(vOO)}, s[{sO}:{sO+3}], s{sOOF + qb} offen offset:{blk*1024+sp*512}{ONT}")
    stamp(A, "unit end (last)")
    A(f"s_cmp_lg_u32 s{sUNIT}, 0"); A("s_cbranch_scc1 L_fin")
    if O.stamps:
        i = nstamp[0]; nstamp[0] += 1
        A(f"s_memtime s[{sSTAMP+2*i}:{sSTAMP+2*i+1}]")
    A(f"s_mov_b32 s{sUNIT}, 1")
    for i in range(2): A(f"s_add_u32 s{sOOF+i}, s{sOOF+i}, 4096")
    for i in range(64): A(f"v_accvgpr_read_b32 {vr(vQ+i)}, {ar(aQ2+i)}")
    A("s_branch L_unit")
    A.label("L_fin")
    if O.stamps:
        emit_stamps(A, "s2", sWAVE, 0)
    A.label("L_attn_end")
    A("s_endpgm")
    for site in rare_sites:
        rare_path(A, *site)
    return kstart(k) + A.text()

def emit_stamps(A, wg, swave, which):
    A("s_waitcnt vmcnt(0) lgkmcnt(0)")
    i = nstamp[0]; nstamp[0] += 1
    A(f"s_memtime s[{sSTAMP+2*i}:{sSTAMP+2*i+1}]")
    A(f"s_memrealtime s[82:83]")
    A("s_waitcnt lgkmcnt(0)")
    A(f"s_add_u32 s{sDBG}, s{sWS}, {STAMP_WS_OFF + which * (1 << 20)}"); A(f"s_addc_u32 s{sDBG+1}, s{sWS+1}, 0"); A(f"s_and_b32 s{sDBG+1}, s{sDBG+1}, 0xffff")
    A(f"s_mov_b32 s{sDBG+2}, 0x100000"); A(f"s_mov_b32 s{sDBG+3}, 0x20000")
    A(f"s_lshl_b32 s3, {wg}, 2"); A(f"s_add_u32 s3, s3, s{swave}"); A("s_lshl_b32 s3, s3, 6")
    A("v_mov_b32 v0, s3")
    for j in range(nstamp[0]):
        A(f"v_mov_b32 v1, s{sSTAMP+2*j}")
        A(f"buffer_store_dword v1, v0, s[{sDBG}:{sDBG+3}], 0 offen offset:{4*j}")
    A("s_getreg_b32 s4, hwreg(HW_REG_XCC_ID)"); A("s_getreg_b32 s5, hwreg(HW_REG_HW_ID)")
    for j, sr in ((12, 80), (13, 82), (14, 4), (15, 5)):
        A(f"v_mov_b32 v1, s{sr}")
        A(f"buffer_store_dword v1, v0, s[{sDBG}:{sDBG+3}], 0 offen offset:{4*j}")
    A("s_waitcnt vmcnt(0)")

MFMA16 = "v_mfma_f32_16x16x32_bf16"
def gen_oproj(k):
    A = Asm()
    nstamp[0] = 0
    sWo, sOi, sOut = 8, 12, 20
    sWv, sLB, sWOFF, sOOFF, sLP, sTt = 28, 29, 30, 31, 32, 33
    A("s_cmp_ge_u32 s2, 256"); A("s_cbranch_scc1 L_op_end")
    A("s_load_dwordx2 s[52:53], s[0:1], 80")
    A(f"s_load_dwordx2 s[{sWS}:{sWS+1}], s[0:1], 96")
    A("s_and_b32 s3, s2, 7"); A("s_lshr_b32 s4, s2, 3"); A("s_lshr_b32 s5, s3, 2")
    A("s_and_b32 s6, s3, 3"); A("s_lshl_b32 s6, s6, 2"); A("s_lshr_b32 s7, s4, 3"); A("s_add_u32 s6, s6, s7")
    A("s_and_b32 s7, s4, 7")
    lane, t0, t1, t2 = 1, 6, 7, 8
    vOO_, vOW, vRed, vSt = 10, 18, 20, 21
    A("v_lshrrev_b32 v9, 6, v0"); A(f"v_and_b32 {vr(lane)}, 63, v0"); A(f"v_readfirstlane_b32 s{sWv}, v9")
    A(f"v_lshlrev_b32 {vr(vOO_)}, 4, {vr(lane)}")
    for i in range(1, 8): A(f"v_add_u32 {vr(vOO_+i)}, {i*131072}, {vr(vOO_)}")
    A(f"v_mov_b32 {vr(vOW)}, {vr(vOO_)}"); A(f"v_add_u32 {vr(vOW+1)}, 4096, {vr(vOO_)}")
    A(f"s_mul_i32 s{sTt}, s5, 5242880"); A("s_lshl_b32 s35, s7, 2"); A(f"s_add_u32 s35, s35, s{sWv}"); A(f"s_mul_i32 s35, s35, {32*5120}")
    A(f"s_add_u32 s{sTt}, s{sTt}, s35"); A(f"s_add_u32 s{sTt}, s{sTt}, {WOF_OFF}")
    A(f"s_lshl_b32 s36, s5, 4"); A(f"s_add_u32 s36, s36, s6"); A(f"s_lshl_b32 s36, s36, 20")
    A(f"s_lshl_b32 s35, s{sWv}, 15"); A(f"s_add_u32 s36, s36, s35")
    A("s_waitcnt lgkmcnt(0)")
    srd(A, sWo, sWS, sWS + 1, f"s{sTt}", 32 * 5120)
    srd(A, sOi, sWS, sWS + 1, "s36", 7 * 131072 + 32768)
    WNT = " nt" if O.op_nt_w else ""
    ONT = " nt" if O.op_nt_o else ""
    vB = 32
    def OF(buf, i): return vB + buf * 52 + i * 4
    def WF(buf, nb): return vB + buf * 52 + 32 + nb * 4
    def ACC(i, nb): return (i * 5 + nb) * 4
    def issue(buf):
        r = [f"buffer_load_dwordx4 {vr(WF(buf,nb),4)}, {vr(vOW+(nb>>2))}, s[{sWo}:{sWo+3}], s{sWOFF} offen offset:{(nb&3)*1024}{WNT}" for nb in range(5)]
        r += [f"buffer_load_dwordx4 {vr(OF(buf,i),4)}, {vr(vOO_+i)}, s[{sOi}:{sOi+3}], s{sOOFF} offen{ONT}" for i in range(8)]
        return r, [f"s_add_u32 s{sWOFF}, s{sWOFF}, 5120", f"s_add_u32 s{sOOFF}, s{sOOFF}, 1024"]
    A(f"s_mov_b32 s{sWOFF}, 0"); A(f"s_mov_b32 s{sOOFF}, 0")
    for kk in range(3):
        ld, adv = issue(kk)
        for t in ld + adv: A(t)
    A(f"s_mul_i32 s{sTt}, s6, {128*2560}"); A("s_mul_i32 s35, s5, 1280"); A(f"s_add_u32 s{sTt}, s{sTt}, s35")
    A("s_mul_i32 s35, s7, 160"); A(f"s_add_u32 s{sTt}, s{sTt}, s35")
    srd(A, sOut, 52, 53, f"s{sTt}", 127 * 2560 + 160)
    stamp(A, "start")
    A(f"s_mul_i32 s{sLB}, s{sWv}, 40960")
    A(f"v_and_b32 {vr(t0)}, 15, {vr(lane)}"); A(f"v_mul_u32_u24 {vr(t0)}, 2560, {vr(t0)}")
    A(f"v_lshrrev_b32 {vr(t1)}, 4, {vr(lane)}"); A(f"v_lshl_add_u32 {vr(t0)}, {vr(t1)}, 3, {vr(t0)}")
    A(f"s_mul_i32 s{sTt}, s{sWv}, {32*2560}"); A(f"v_add_u32 {vr(vSt)}, s{sTt}, {vr(t0)}")
    A(f"v_add_u32 {vr(vRed)}, s{sLB}, {vr(vOO_)}")
    for i in range(160): A(f"v_accvgpr_write_b32 {ar(i)}, 0")
    def step(buf, pref, vmn):
        mf = [f"{MFMA16} {ar(ACC(i,nb),4)}, {vr(WF(buf,nb),4)}, {vr(OF(buf,i),4)}, {ar(ACC(i,nb),4)}" for i in range(8) for nb in range(5)]
        first = {g: [] for g in range(40)}
        if pref:
            ld, adv = issue((buf + 3) % 4)
            for i, t in enumerate(ld): first[3 * i].append((t, 4))
            first[38].append((adv[0], 4)); first[39].append((adv[1], 4))
        interleave(A, mf, first, pre={0: [f"s_waitcnt vmcnt({vmn})"]})
    A(f"s_mov_b32 s{sLP}, 7")
    A.label("L_op_loop")
    for kk in range(4): step(kk, True, 26)
    A(f"s_sub_u32 s{sLP}, s{sLP}, 1"); A(f"s_cmp_lg_u32 s{sLP}, 0"); A("s_cbranch_scc1 L_op_loop")
    step(0, True, 26); step(1, False, 26); step(2, False, 13); step(3, False, 0)
    stamp(A, "loop done")
    A("s_nop 7")
    for w in range(4):
        A(f"s_cmp_eq_u32 s{sWv}, {w}"); A(f"s_cbranch_scc1 L_op_skipw{w}")
        for j in range(10):
            A(f"ds_write_b128 {vr(vRed)}, {ar((w*10+j)*4,4)} offset:{(w*10+j)*1024}")
        A.label(f"L_op_skipw{w}")
    A("s_waitcnt lgkmcnt(0)"); A("s_barrier")
    for w in range(4):
        A(f"s_cmp_lg_u32 s{sWv}, {w}"); A(f"s_cbranch_scc1 L_op_fin{w}")
        others = [x for x in range(4) if x != w]
        for oi in range(3): A(f"v_add_u32 {vr(t0+oi)}, {others[oi]*40960 + w*10240}, {vr(vOO_)}")
        for j in range(10):
            for oi in range(3):
                A(f"ds_read_b128 {vr(32 + j*12 + oi*4,4)}, {vr(t0+oi)} offset:{j*1024}")
        for r in range(40): A(f"v_accvgpr_read_b32 {vr(160+r)}, {ar(w*40+r)}")
        A(f"s_mov_b32 s{sTt}, {16*2560}")
        for j in range(10):
            A(f"s_waitcnt lgkmcnt({min(15, 3*(9-j))})")
            for r in range(4):
                A(f"v_add_f32 {vr(160+j*4+r)}, {vr(160+j*4+r)}, {vr(32+j*12+r)}")
                A(f"v_add_f32 {vr(32+j*12+4+r)}, {vr(32+j*12+4+r)}, {vr(32+j*12+8+r)}")
            for r in range(4):
                A(f"v_add_f32 {vr(160+j*4+r)}, {vr(160+j*4+r)}, {vr(32+j*12+4+r)}")
            for r in range(2):
                A(f"v_cvt_pk_bf16_f32 {vr(200+j*2+r)}, {vr(160+j*4+2*r)}, {vr(160+j*4+2*r+1)}")
            A(f"buffer_store_dwordx2 {vr(200+j*2,2)}, {vr(vSt)}, s[{sOut}:{sOut+3}], {'s%d' % sTt if j >= 5 else '0'} offen offset:{(j%5)*32}")
        A.label(f"L_op_fin{w}")
    if O.stamps:
        emit_stamps(A, "s2", sWv, 1)
    A.label("L_op_end")
    A("s_endpgm")
    return kstart(k) + A.text()

def main():
    ap = argparse.ArgumentParser()
    for k_, v_ in vars(Opt).items():
        if k_.startswith("_"): continue
        if isinstance(v_, bool): ap.add_argument("--" + k_, type=lambda s: bool(int(s)), default=v_)
        elif isinstance(v_, int): ap.add_argument("--" + k_, type=int, default=v_)
        else: ap.add_argument("--" + k_, default=v_)
    a = ap.parse_args()
    for k_, v_ in vars(a).items(): setattr(O, k_, v_)
    hdr = open("cdna_kernels/" + NAME + ".s.ref").read().split("; Override launch")[0]
    out = hdr
    out += "; @launch kernel=attn_kernel grid=(256,1,1) block=(256,1,1) lds=163840\n"
    out += "; @launch kernel=oproj_kernel grid=(256,1,1) block=(256,1,1) lds=163840\n"
    out += '.amdgcn_target "amdgcn-amd-amdhsa--gfx950"\n.text\n'
    out += gen_attn("attn_kernel") + gen_oproj("oproj_kernel")
    out += kd("attn_kernel") + kd("oproj_kernel")
    lines = out.split("\n")
    def drop(l):
        if O.skip_x and "buffer_load_dwordx4" in l and f"s[{sX}:{sX+3}], 0 offen" in l and "lds" not in l: return True
        if O.skip_w and "buffer_load_dwordx4" in l and f"s[{sW}:{sW+3}], s{sT2}" in l: return True
        if O.skip_kv and "buffer_load_dwordx4" in l and (f"s[{sK}:{sK+3}], s{sKOFF}" in l or f"s[{sV}:{sV+3}], s{sVOFF}" in l): return True
        if O.skip_oo and "buffer_load_dwordx4" in l and "s[12:15], s31" in l: return True
        if O.skip_ow and "buffer_load_dwordx4" in l and "s[8:11], s30" in l: return True
        if O.skip_sm and ("v_exp_f32 v2" in l or "v_exp_f32 v3" in l or "v_add_f32 v22" in l or "v_add_f32 v23" in l or any(f"v_cvt_pk_bf16_f32 v{i}," in l for i in range(128,160)) and "v2" in l.split(",")[1]) : return True
        if O.skip_lds and ("ds_read_b128 a[" in l or "ds_read_b64_tr_b16 a[" in l): return True
        if O.nobr and 's_cbranch_vccnz' in l: return True
        return False
    out = "\n".join(l for l in lines if not drop(l))
    sys.stdout.write(out)
main()
```

```python
import sys, math, argparse, re, struct, copy

NAME = "concat_heads__gqa_block_cached__gqa_block_cached__near_ridge"

class Opt:
    stamps = False
    dumpq = False
    kv_nt = True
    fuse = True
    twocls = True
    D = 6
    bar = 20
    burst = 1
    dper = 3
    qsp = 4
    w_nt = False
    x_nt = False
    wo_nt = False
    kv0 = 15
    pubw = 11
    map2 = True
    pub2 = 2
    poll2 = 8
    thr_log2 = 30
    skip_loop = False
    skip_x = False
    skip_w = False
    forcefb = False
    budget = 8
    wpre = True
    o_sc1 = True
    chk = True
    stm = 0
    cpre = True
    rot = 0
    wfake = False
    noinv = False
    skip_oo = False
    skip_ow = False
    st_sc1 = True

O = Opt()

class Asm:
    def __init__(self):
        self.L = []
        self.vm = []
        self.ds = []
    def __call__(self, s):
        if s.endswith(" lds") and self.L and " m0," in self.L[-1]: self.L.append("    s_nop 0")
        self.L.append(s if s.endswith(":") else "    " + s)
    def label(self, s): self.L.append(s + ":")
    def c(self, s): self.L.append("    ; " + s)
    def text(self): return "\n".join(self.L) + "\n"
    def vm_n(self, tags):
        idx = [i for i, t in enumerate(self.vm) if t in tags]
        if not idx: return None
        return min(63, len(self.vm) - 1 - max(idx))
    def ds_n(self, tags):
        idx = [i for i, t in enumerate(self.ds) if t in tags]
        if not idx: return None
        return min(15, len(self.ds) - 1 - max(idx))
    def wait(self, vm=None, ds=None, vmn=None, dsn=None):
        a = self.vm_n(vm) if vm else None
        b = self.ds_n(ds) if ds else None
        if vmn is not None: a = vmn if a is None else min(a, vmn)
        if dsn is not None: b = dsn if b is None else min(b, dsn)
        p = []
        if a is not None:
            p.append(f"vmcnt({a})"); self.vm = self.vm[len(self.vm) - a:] if a else []
        if b is not None:
            p.append(f"lgkmcnt({b})"); self.ds = self.ds[len(self.ds) - b:] if b else []
        if p: self("s_waitcnt " + " ".join(p))
    def op(self, o):
        if isinstance(o, str): self(o); return
        if o[1] == "vm": self.vm.append(o[2])
        elif o[1] == "ds": self.ds.append(o[2])
        elif o[1] == "wait": self.wait(**o[2]); return
        self(o[0])

def vr(b, n=1): return f"v{b}" if n == 1 else f"v[{b}:{b+n-1}]"
def ar(b, n=1): return f"a{b}" if n == 1 else f"a[{b}:{b+n-1}]"
def sr(b, n=4): return f"s[{b}:{b+n-1}]"
def f32bits(x): return struct.unpack("<I", struct.pack("<f", x))[0]
MF = "v_mfma_f32_16x16x32_bf16"

def kd(k, vgpr=512, acc=256, sgpr=102):
    return f""".section .rodata,"a"
.p2align 6
.amdhsa_kernel {k}
  .amdhsa_next_free_vgpr {vgpr}
  .amdhsa_next_free_sgpr {sgpr}
  .amdhsa_accum_offset {acc}
  .amdhsa_group_segment_fixed_size 0
  .amdhsa_kernarg_size 104
  .amdhsa_user_sgpr_count 2
  .amdhsa_user_sgpr_kernarg_segment_ptr 1
  .amdhsa_system_sgpr_workgroup_id_x 1
.end_amdhsa_kernel
.text
"""
def kstart(k): return f".globl {k}\n.p2align 8\n.type {k},@function\n{k}:\n"

WOF_OFF = 48 << 20
STAMP_WS_OFF = 128 << 20
QDUMP_WS_OFF = 64 << 20

sX, sW, sK, sV, sO = 8, 12, 16, 20, 24
sWAVE, sKVW, sVVW, sWQW, sKOFF, sVOFF, sXW, sLOOP, sUNIT, sT, sTHR, sT3 = range(28, 40)
sSC, sOOF, sFB, sT2, sGI, sWS = 40, 42, 43, 44, 45, 46
sSTAMP, sRSTAMP = 48, 64
sCNT, sDBG, sWOI, sWOF, sOUT = 80, 84, 88, 92, 96
sM = 100
vAK, vAV, vOKV, vOO, vTMP = 1, 5, 13, 14, 15
vNEGM, vS, vP, vO = 16, 32, 96, 128
aQ, aQ2, aKF, aVF, aL, aONE = 0, 64, 128, 160, 192, 208
KBASE, VBASE, WQBASE, FBBASE = 0, 65536, 98304, 131072
XB = (16384, 49152)
FLAG_OFF = 60 << 20
sFLG, sSTUB = 84, sFB

def S(buf, qb, kb): return vS + buf * 32 + (qb * 2 + kb) * 4
def P(buf, qb): return vP + buf * 16 + qb * 4
def NEGM(qb): return vNEGM + qb * 4
def Q(qb, s): return aQ + (qb * 4 + s) * 4
def OA(db, qb): return vO + (qb * 8 + db) * 4
def LA(qb): return aL + qb * 4

nstamp = [0]
stamp_names = []
def stamp(A, name, mode=0):
    if not O.stamps or (mode != O.stm and name != "t0"): return
    i = nstamp[0]; nstamp[0] += 1; stamp_names.append(name)
    assert i < 7
    A(f"s_memtime s[{sSTAMP+2*i}:{sSTAMP+2*i+1}]")
    r = 62 if i == 0 else sRSTAMP + 2 * i
    A(f"s_memrealtime s[{r}:{r+1}]")

def cost(o):
    t = o if isinstance(o, str) else o[0]
    if t.endswith(":"): return 0
    if not isinstance(o, str) and o[1] == "wait": return 0
    if t.startswith(("v_exp", "v_rcp")): return 8
    if t.startswith("buffer_"): return 8
    if t.startswith("s_nop"): return 4 * (int(t.split()[1]) + 1)
    if t.startswith("v_cvt_pk") or t.startswith("v_max3") or t.startswith("v_perm"): return 5
    if t.startswith("v_pk_"): return 8
    return 4

def interleave(A, mf, fixed=None, stream=(), pre=None, budget=None, need=None):
    budget = O.budget if budget is None else budget
    fixed = fixed or {}; pre = pre or {}; need = need or {}
    st = list(stream); si = 0; debt = 0
    for g in range(len(mf)):
        for t in pre.get(g, []): A.op(t)
        if g in need: A.wait(ds=need[g])
        A(mf[g])
        fx = fixed.get(g, [])
        room = budget - sum(cost(o) for o in fx) - debt
        for o in fx: A.op(o)
        while si < len(st):
            o, at = st[si] if isinstance(st[si], list) else (st[si], 0)
            if at > g: break
            c = cost(o)
            if room <= 0 or (c > room + 1): break
            A.op(o); room -= c; si += 1
        debt = 0
    while si < len(st):
        o = st[si][0] if isinstance(st[si], list) else st[si]
        A.op(o); si += 1

NT_KV = lambda: " nt" if O.kv_nt else ""
SC1 = lambda: " sc1" if O.o_sc1 else ""
def vphys(ring): return (ring + 1) & 3
def dma_k(ring, tag):
    return (f"s_add_u32 m0, s{sKVW}, {ring*16384}",
            [(f"buffer_load_dwordx4 {vr(vOKV)}, {sr(sK)}, s{sKOFF} offen offset:{p*1024}{NT_KV()} lds", "vm", tag) for p in range(4)],
            f"s_add_u32 s{sKOFF}, s{sKOFF}, 0x4000")
def dma_v(ring, tag):
    return (f"s_add_u32 m0, s{sVVW}, {vphys(ring)*16384}",
            [(f"buffer_load_dwordx4 {vr(vOKV)}, {sr(sV)}, s{sVOFF} offen offset:{p*1024}{NT_KV()} lds", "vm", tag) for p in range(4)],
            f"s_add_u32 s{sVOFF}, s{sVOFF}, 0x4000")
def k_reads(ring, h, dst=aKF):
    return [(f"ds_read_b128 {ar(dst+(kb*4+s)*4,4)}, {vr(vAK+s)} offset:{ring*16384+(2*h+kb)*1024}", "ds", ("F", dst + (kb*4+s)*4))
            for kb in range(2) for s in range(4)]
def v_reads(ring, h):
    return [(f"ds_read_b64_tr_b16 {ar(aVF+db*4+2*jh,2)}, {vr(vAV+db)} offset:{vphys(ring)*16384+h*2048+jh*1024}", "ds", ("F", aVF + db*4))
            for db in range(8) for jh in range(2)]
def pv_mf(buf, zero=False, qbmajor=False):
    r = []
    def pv(db, qb): return (f"{MF} {vr(OA(db,qb),4)}, {ar(aVF+db*4,4)}, {vr(P(buf,qb),4)}, {'0' if zero else vr(OA(db,qb),4)}", aVF + db*4, qb)
    def sm(qb): return (f"{MF} {ar(LA(qb),4)}, {ar(aONE,4)}, {vr(P(buf,qb),4)}, {'0' if zero else ar(LA(qb),4)}", None, qb)
    if qbmajor:
        for qb in range(4):
            r.append(sm(qb)); r += [pv(db, qb) for db in range(8)]
    else:
        for db in range(8):
            r += [pv(db, qb) for qb in range(4)]
            if db & 1: r.append(sm(db >> 1))
    return r
def qk_mf(buf, zero=False, kf=aKF):
    r = []
    for qb in range(4):
        for kb in range(2):
            for s in range(4):
                c = vr(S(buf,qb,kb),4) if s else ("0" if zero else vr(NEGM(qb),4))
                r.append((f"{MF} {vr(S(buf,qb,kb),4)}, {ar(kf+(kb*4+s)*4,4)}, {ar(Q(qb,s),4)}, {c}", kf + (kb*4+s)*4, qb))
    return r
def ex(b, e): return f"v_exp_f32 {vr(vS+b*32+e)}, {vr(vS+b*32+e)}"
def cv(b, i): return f"v_cvt_pk_bf16_f32 {vr(vP+b*16+i)}, {vr(vS+b*32+2*i)}, {vr(vS+b*32+2*i+1)}"
def needs(mfs, group=2):
    nd = {}; seen = []
    for g, m in enumerate(mfs):
        if m[1] is not None and m[1] not in seen: seen.append(m[1]); nd[g] = m[1]
    items = sorted(nd.items())
    out = {}
    for i in range(0, len(items), group):
        out[items[i][0]] = [("F", t) for _, t in items[i:i + group]]
    return out
def lastuse(mfs):
    lu = {}
    for g, m in enumerate(mfs):
        if m[1] is not None: lu[m[1]] = g
    return lu

def barrier_ops(cls, g, pre, gaps, vmn=16):
    if cls == 0: pre[g] = [("", "wait", dict(vmn=vmn, dsn=0)), "s_barrier"]
    else:
        pre[g] = [("", "wait", dict(vmn=vmn, dsn=0))]; gaps[g].insert(0, "s_barrier")

def slot(A, p, cls, tag, zero=False, tail=()):
    D = O.D; even = (p & 1) == 0; buf = p & 1; t_ = p >> 1
    A.c(f"---- slot {tag} pos={p} cls={cls}")
    kr = k_reads(((p + 1) >> 1) & 3, (p + 1) & 1)
    vq = v_reads(t_ & 3, p & 1)
    pvm = pv_mf(buf ^ 1, zero); mfs = pvm + qk_mf(buf ^ 1)
    n = len(mfs); npv = len(pvm)
    gaps = {g: [] for g in range(n)}; pre = {}
    seq = [(buf, e) for e in range(D, 32)] + [(buf ^ 1, e) for e in range(D)]
    eg = [2 * i for i in range(32 - D)] + [n - 64 + 2 * i for i in range(32 - D, 32)]
    for g, (b, e) in zip(eg, seq): gaps[g].append(ex(b, e))
    free = [g for g in range(n) if g not in eg]
    cvg = {g + 1: cv(b, e >> 1) for g, (b, e) in zip(eg, seq) if e & 1}
    for g, t in zip(free[:8], kr): gaps[g].append(t)
    lu = lastuse(pvm)
    pre[0] = [("", "wait", dict(dsn=0))]
    small = []
    if even:
        bar = O.bar
        barrier_ops(cls, bar, pre, gaps)
        rest = [g for g in free if g > bar]
        kg = dma_k(t_ & 3, "KV"); vg = dma_v((t_ + 3) & 3, "KV")
        dm = kg[1] + (vg[1] if O.burst == 1 else [])
        per = O.dper
        dg = []
        k = 0
        while dm or vq:
            g = rest.pop(0)
            want_d = dm and (k % per == 0 or not vq or lu[vq[0][2][1]] > g) and g not in cvg
            if dm and k % per == 0 and g in cvg and vq and lu[vq[0][2][1]] <= g:
                gaps[g].append(vq.pop(0)); continue
            if want_d: gaps[g].append(dm.pop(0)); dg.append(g)
            elif vq and lu[vq[0][2][1]] <= g: gaps[g].append(vq.pop(0))
            elif dm: gaps[g].append(dm.pop(0)); dg.append(g)
            k += 1
        small.append((kg[0], 16, dg[0] - 1))
        small.append((vg[0], dg[3], dg[4] - 1 if O.burst == 1 else n - 1))
        small.append((kg[2], dg[3], n - 1))
        if O.burst == 1: small.append((vg[2], dg[7], n - 1))
    else:
        rest = free[8:]
        if O.burst == 2:
            vg = dma_v((t_ + 3) & 3, "KV")
            dg = [g for g in rest if g not in cvg][:4]
            for g, o in zip(dg, vg[1]): gaps[g].append(o); rest.remove(g)
            small.append((vg[2], dg[3], n - 1))
        for o in vq:
            while rest[0] < lu[o[2][1]]: rest.pop(0)
            gaps[rest.pop(0)].append(o)
        small.append((("", "wait", dict(ds=[o[2] for o in kr])), 24, npv - 1))
    for g, o in cvg.items(): gaps[g].append(o)
    def used(g): return sum(4 if (not isinstance(o, str) and o[1] == "wait") else cost(o) for o in gaps[g]) + 4 * len(pre.get(g + 1, []))
    for o, lo, hi in small:
        c = [g for g in range(lo, hi + 1) if used(g) <= 5]
        if not c: c = sorted(range(lo, hi + 1), key=used)
        gaps[c[0]].append(o)
    gaps[n - 1] += list(tail)
    interleave(A, [m[0] for m in mfs], gaps, pre=pre)

def max_chain(qb, buf, t0, t1, run=None):
    s = S(buf, qb, 0)
    st = [f"v_max3_f32 {vr(t0)}, {vr(s)}, {vr(s+1)}, {vr(s+2)}", f"v_max3_f32 {vr(t1)}, {vr(s+3)}, {vr(s+4)}, {vr(s+5)}",
          f"v_max3_f32 {vr(t0)}, {vr(t0)}, {vr(s+6)}, {vr(s+7)}"]
    if run is not None: return st + [f"v_max3_f32 {vr(run)}, {vr(run)}, {vr(t0)}, {vr(t1)}"]
    return st + [f"v_max_f32 {vr(t0)}, {vr(t0)}, {vr(t1)}"]
def xlane_max(t0, t1):
    return [f"v_mov_b32 {vr(t1)}, {vr(t0)}", "s_nop 1", f"v_permlane32_swap_b32 {vr(t0)}, {vr(t1)}", "s_nop 0", f"v_max_f32 {vr(t0)}, {vr(t0)}, {vr(t1)}",
            f"v_mov_b32 {vr(t1)}, {vr(t0)}", "s_nop 1", f"v_permlane16_swap_b32 {vr(t0)}, {vr(t1)}", "s_nop 0", f"v_max_f32 {vr(t0)}, {vr(t0)}, {vr(t1)}"]

def first_slot(A, cls):
    D = O.D
    A.c(f"---- first slot cls={cls}")
    for o in k_reads(0, 0, dst=aVF) + k_reads(0, 1): A.op(o)
    mfs = qk_mf(0, zero=True, kf=aVF) + qk_mf(1)
    gaps = {g: [] for g in range(64)}; pre = {}
    bar = 8
    barrier_ops(cls, bar, pre, gaps)
    kg = dma_k(0, "KV"); vg = dma_v(3, "KV")
    gaps[bar - 2].append(kg[0])
    dm = kg[1] + (vg[1] if O.burst == 1 else [])
    for i, o in enumerate(dm):
        gaps[bar + 1 + i].append(o)
        if i == 3: gaps[bar + 1 + i].append(vg[0])
    gaps[7].append(kg[2]) if False else None
    st = []
    tA = [vO + 2 * q for q in range(4)]
    for qb in range(4):
        t0, t1 = tA[qb], tA[qb] + 1
        ch = max_chain(qb, 0, t0, t1) + xlane_max(t0, t1)
        ch += [f"v_sub_f32 {vr(NEGM(qb)+r)}, 0, {vr(t0)}" for r in range(4)]
        ch += [f"v_sub_f32 {vr(S(0,qb,0)+r)}, {vr(S(0,qb,0)+r)}, {vr(t0)}" for r in range(8)]
        st.append([ch[0], 8 * qb + 7 + 8]); st += ch[1:]
    sm = []
    for e in range(32):
        sm.append(ex(0, e))
        if e >= 2 and not (e & 1): sm.append(cv(0, (e >> 1) - 1))
    sm += ["s_nop 0", cv(0, 15)]
    vq = v_reads(0, 0)
    for i, o in enumerate(vq): gaps[33 + i * 2 - (i // 8) * 0 if 33 + 2 * i < 64 else 63].append(o)
    post = [kg[2]] + ([vg[2]] if O.burst == 1 else [])
    nd = needs(mfs)
    nch = len(st) // 4
    m = [x[0] for x in mfs]
    def sub(d, lo, hi): return {g - lo: v for g, v in d.items() if lo <= g < hi}
    def shift(s, lo): return [[x[0], x[1] - lo] if isinstance(x, list) else x for x in s]
    segs = [(0, 32, st[:nch]), (32, 40, st[nch:2*nch]), (40, 48, st[2*nch:3*nch]), (48, 56, st[3*nch:]), (56, 64, [])]
    carry = []
    allst = st + post + sm
    pos = 0
    marks = {32: nch, 40: 2 * nch, 48: 3 * nch, 56: 4 * nch}
    for g in range(64):
        if g in marks:
            while pos < marks[g]:
                o = allst[pos][0] if isinstance(allst[pos], list) else allst[pos]
                A.op(o); pos += 1
            A("s_nop 1")
        for t in pre.get(g, []): A.op(t)
        if g in nd: A.wait(ds=nd[g])
        A(m[g])
        room = O.budget - sum(cost(o) for o in gaps[g])
        for o in gaps[g]: A.op(o)
        while pos < len(allst):
            o, at = allst[pos] if isinstance(allst[pos], list) else (allst[pos], 0)
            if at > g or room <= 0 or cost(o) > room + 1: break
            A.op(o); room -= cost(o); pos += 1
    while pos < len(allst):
        A.op(allst[pos]); pos += 1
    for e in range(D):
        A(ex(1, e))
        if e >= 2 and not (e & 1): A(cv(1, (e >> 1) - 1))
    A("s_nop 0"); A(cv(1, D // 2 - 1))
    A("s_nop 1")

def epi_qb(qb, inv, tb):
    st = [f"v_accvgpr_read_b32 {vr(inv+1)}, {ar(LA(qb))}", f"v_rcp_f32 {vr(inv)}, {vr(inv+1)}"]
    if O.chk:
        st += [f"v_cmp_nle_f32 vcc, {vr(inv+1)}, s{sTHR}", f"s_add_u32 s{sT}, s{sOOF}, {qb*131072}", f"s_or_b64 s[{sM}:{sM+1}], s[{sM}:{sM+1}], vcc"]
    else:
        st += [f"s_add_u32 s{sT}, s{sOOF}, {qb*131072}"]
    for t in range(4):
        o = OA(2 * t, qb)
        st += [f"v_pk_mul_f32 {vr(o+2*i,2)}, {vr(o+2*i,2)}, {vr(inv,2)} op_sel_hi:[1,0]" for i in range(4)]
        d = tb + (t & 1) * 4
        st += [f"v_cvt_pk_bf16_f32 {vr(d+i)}, {vr(o+2*i)}, {vr(o+2*i+1)}" for i in range(4)]
        st.append((f"buffer_store_dwordx4 {vr(d,4)}, {vr(vOO)}, {sr(sO)}, s{sT} offen offset:{t*1024}{' sc1' if O.st_sc1 else ''}", "vm", "ST"))
    return st

def last_slot(A, extra=(), pre0=()):
    D = O.D
    A.c("---- last slot + final PV + epilogue")
    for o in pre0: A.op(o)
    pvm = pv_mf(0)
    gaps = {g: [] for g in range(36)}
    lu = lastuse(pvm)
    for i, o in enumerate(v_reads(3, 1)):
        g = min(35, lu[o[2][1]] + 1 + (i & 1)); gaps[g].append(o)
    sm = []
    for e in range(D, 32):
        sm.append(ex(1, e))
        if e > D and not (e & 1): sm.append(cv(1, (e >> 1) - 1))
    sm += ["s_nop 0", cv(1, 15), "s_nop 1"]
    ex_ = list(extra)
    k = 0
    for g in range(0, 36, 2):
        if ex_ and not gaps[g]:
            grp = ex_.pop(0); gaps[g] += grp
    A(f"s_mov_b64 s[{sM}:{sM+1}], 0")
    interleave(A, [m[0] for m in pvm], gaps, stream=sm, need=needs(pvm))
    fin = pv_mf(1, qbmajor=True)
    st = []
    for qb in range(4):
        e = epi_qb(qb, vS + 2 * (qb & 1), vS + 8 + 8 * (qb & 1))
        st.append([e[0], 9 * qb + 8 + 8]); st += e[1:]
        if qb == 3: st.insert(len(st) - len(e), "s_nop 7")
    gaps = {g: [] for g in range(36)}
    for g in range(0, 36):
        if ex_ and (g < 16 or g % 2 == 0): gaps[g] += ex_.pop(0)
    interleave(A, [m[0] for m in fin], gaps, stream=st, need=needs(fin, group=8))
    for grp in ex_:
        for o in grp: A.op(o)

def fallback(A):
    A.label("L_fb")
    lane, g, i, r, ka, kb_, va, vd, t0, t1 = range(64, 74)
    run = 76
    A("s_waitcnt vmcnt(0) lgkmcnt(0)"); A("s_nop 7")
    A(f"v_mbcnt_lo_u32_b32 {vr(lane)}, -1, 0"); A(f"v_mbcnt_hi_u32_b32 {vr(lane)}, -1, {vr(lane)}")
    A(f"v_lshrrev_b32 {vr(g)}, 4, {vr(lane)}"); A(f"v_and_b32 {vr(i)}, 15, {vr(lane)}")
    A(f"v_and_b32 {vr(t0)}, 1, {vr(g)}"); A(f"v_lshlrev_b32 {vr(t0)}, 1, {vr(t0)}"); A(f"v_lshrrev_b32 {vr(t1)}, 1, {vr(g)}")
    A(f"v_or_b32 {vr(t0)}, {vr(t0)}, {vr(t1)}"); A(f"v_lshlrev_b32 {vr(t0)}, 4, {vr(t0)}")
    A(f"v_lshl_add_u32 {vr(ka)}, {vr(i)}, 8, {vr(t0)}"); A(f"v_add_u32 {vr(kb_)}, 4096, {vr(ka)}")
    A(f"v_lshlrev_b32 {vr(vd)}, 4, {vr(lane)}")
    A(f"s_lshl_b32 s{sT3}, s{sWAVE}, 13"); A(f"s_add_u32 s{sT3}, s{sT3}, {FBBASE}")
    A(f"v_lshrrev_b32 {vr(r)}, 2, {vr(i)}"); A(f"v_lshl_add_u32 {vr(t0)}, {vr(g)}, 2, {vr(r)}"); A(f"v_lshlrev_b32 {vr(t0)}, 8, {vr(t0)}")
    A(f"v_and_b32 {vr(t1)}, 3, {vr(i)}"); A(f"v_lshl_add_u32 {vr(t0)}, {vr(t1)}, 3, {vr(t0)}"); A(f"v_add_u32 {vr(va)}, s{sT3}, {vr(t0)}")
    def kload():
        for kb in range(2):
            for s in range(4):
                A(f"buffer_load_dwordx4 {ar(aKF+(kb*4+s)*4,4)}, {vr(kb_ if kb else ka)}, {sr(sK)}, s{sT} offen offset:{s*64}")
    for q in range(4): A(f"v_mov_b32 {vr(run+q)}, 0xff800000")
    A(f"s_lshl_b32 s{sT}, s{sUNIT}, 18"); A(f"s_add_u32 s{sT2}, s{sT}, 0x40000")
    A.label("L_fb1")
    kload(); A("s_waitcnt vmcnt(0)")
    for m in qk_mf(0, zero=True): A(m[0])
    A("s_nop 7")
    for q in range(4):
        for o in max_chain(q, 0, t0, t1, run=run + q): A(o)
    A(f"s_add_u32 s{sT}, s{sT}, 0x2000"); A(f"s_cmp_lt_u32 s{sT}, s{sT2}"); A("s_cbranch_scc1 L_fb1")
    for q in range(4):
        for o in xlane_max(run + q, t1): A(o)
        for rr in range(4): A(f"v_sub_f32 {vr(NEGM(q)+rr)}, 0, {vr(run+q)}")
    for k in range(128): A(f"v_mov_b32 {vr(vO+k)}, 0")
    for k in range(16): A(f"v_accvgpr_write_b32 {ar(aL+k)}, 0")
    A(f"s_lshl_b32 s{sT}, s{sUNIT}, 18")
    A.label("L_fb2")
    kload()
    for hf in range(2):
        A(f"s_add_u32 m0, s{sT3}, {hf*4096}"); A(f"s_add_u32 s3, s{sT}, {hf*4096}")
        for p in range(4): A(f"buffer_load_dwordx4 {vr(vd)}, {sr(sV)}, s3 offen offset:{p*1024} lds")
    A("s_waitcnt vmcnt(0)")
    for db in range(8):
        for jh in range(2): A(f"ds_read_b64_tr_b16 {ar(aVF+db*4+2*jh,2)}, {vr(va)} offset:{db*32+jh*4096}")
    for m in qk_mf(0): A(m[0])
    A("s_nop 7")
    for e in range(32): A(ex(0, e))
    A("s_nop 0")
    for k in range(16): A(cv(0, k))
    A("s_waitcnt lgkmcnt(0)"); A("s_nop 1")
    for m in pv_mf(0): A(m[0])
    A(f"s_add_u32 s{sT}, s{sT}, 0x2000"); A(f"s_cmp_lt_u32 s{sT}, s{sT2}"); A("s_cbranch_scc1 L_fb2")
    A("s_nop 7")
    for qb in range(4):
        for o in epi_qb(qb, vS + 2 * (qb & 1), vS + 8 + 8 * (qb & 1)): A(o if isinstance(o, str) else o[0])
    A(f"s_cmp_eq_u32 s{sUNIT}, 0"); A("s_cbranch_scc1 L_fbret0")
    if O.fuse and O.wpre: oproj_setup(A)
    A("s_branch L_fbret1")

def srd(A, d, lo, hi, off, size):
    A(f"s_add_u32 s{d}, s{lo}, {off}"); A(f"s_addc_u32 s{d+1}, s{hi}, 0"); A(f"s_and_b32 s{d+1}, s{d+1}, 0xffff")
    A(f"s_mov_b32 s{d+2}, {size}"); A(f"s_mov_b32 s{d+3}, 0x20000")

def one_lane(A, val, text, tag):
    A(f"v_mov_b32 v0, {val}"); A("s_mov_b64 exec, 1")
    A.op((text, "vm", tag))
    A("s_mov_b64 exec, -1")
def flag_store(A, which, val, tag):
    one_lane(A, val, f"buffer_store_dword v0, off, {sr(sFLG)}, s{sGI} offset:{which*64} sc1", tag)
def poll_w(): return (f"buffer_load_dword v0, off, {sr(sCNT)}, s{sT} sc1", "vm", "POLL")
def poll_u(which): return (f"buffer_load_dword v0, {vr(vTMP)}, {sr(sFLG)}, 0 offen offset:{which*64} sc1", "vm", "POLL")
spins = []
def poll_check(A, poll, target, name):
    A(f"v_cmp_ne_u32 vcc, {target}, v0"); A(f"s_cbranch_vccnz L_spin_{name}")
    A.label(f"L_spun_{name}")
    spins.append((poll, target, name))
def emit_spins(A):
    for poll, target, name in spins:
        A.label(f"L_spin_{name}")
        A("s_mov_b32 s3, 0x40000")
        A.label(f"L_spinl_{name}")
        A(poll[0]); A("s_waitcnt vmcnt(0)")
        A(f"v_cmp_ne_u32 vcc, {target}, v0"); A(f"s_cbranch_vccz L_spun_{name}")
        A("s_sub_u32 s3, s3, 1"); A("s_cmp_lg_u32 s3, 0"); A(f"s_cbranch_scc1 L_spinl_{name}")
        A(f"s_branch L_spun_{name}")

aWA, aWT = 212, 220
def wo_setup(A, tb):
    lane, g, i, r, t0, t1 = range(tb, tb + 6)
    A(f"v_bfe_u32 {vr(lane)}, {vr(vOO)}, 4, 6"); A(f"v_lshrrev_b32 {vr(g)}, 4, {vr(lane)}"); A(f"v_bfe_u32 {vr(r)}, {vr(lane)}, 2, 2"); A(f"v_and_b32 {vr(i)}, 3, {vr(lane)}")
    A(f"s_mul_i32 s{sWQW}, s{sWAVE}, 5120"); A(f"s_add_u32 s{sWQW}, s{sWQW}, {FBBASE}"); A(f"s_mul_i32 s{sT}, s{sWAVE}, 320")
    for p in range(5):
        A(f"v_add_u32 {vr(t0)}, {64*p}, {vr(lane)}"); A(f"v_mul_u32_u24 {vr(t1)}, 6554, {vr(t0)}"); A(f"v_lshrrev_b32 {vr(t1)}, 16, {vr(t1)}")
        A(f"v_mul_u32_u24 {vr(t1)}, {1280-160}, {vr(t1)}"); A(f"v_lshl_add_u32 {vr(t1)}, {vr(lane)}, 4, {vr(t1)}")
        if p == 4: A(f"v_add_u32 {vr(t1)}, 4096, {vr(t1)}")
        A(f"v_add_u32 {vr(t1)}, s{sT}, {vr(t1)}"); A(f"v_accvgpr_write_b32 {ar(aWA+p)}, {vr(t1)}")
    A(f"v_lshl_add_u32 {vr(t0)}, {vr(g)}, 2, {vr(r)}"); A(f"v_mul_u32_u24 {vr(t0)}, 160, {vr(t0)}"); A(f"v_add_u32 {vr(t0)}, s{sWQW}, {vr(t0)}")
    A(f"v_lshl_add_u32 {vr(t1)}, {vr(i)}, 4, {vr(t0)}"); A(f"v_accvgpr_write_b32 {ar(aWA+5)}, {vr(t1)}")
    A(f"v_lshl_add_u32 {vr(t1)}, {vr(i)}, 3, {vr(t0)}"); A(f"v_accvgpr_write_b32 {ar(aWA+6)}, {vr(t1)}")
    A(f"s_mul_i32 s{sT}, s{sWAVE}, 10240"); A(f"v_lshlrev_b32 {vr(t0)}, 4, {vr(lane)}"); A(f"v_add_u32 {vr(t0)}, s{sT}, {vr(t0)}")
    A(f"v_accvgpr_write_b32 {ar(aWA+7)}, {vr(t0)}")
def wo_dma(A, t):
    A(f"s_mov_b32 m0, s{sWQW}"); A(f"s_movk_i32 s{sT2}, {t*160}")
    for p in range(5):
        tv = 0 if p & 1 else vTMP
        if p == 4: A(f"s_add_u32 m0, s{sWQW}, 4096")
        A(f"v_accvgpr_read_b32 {vr(tv)}, {ar(aWA+p)}")
        A.op((f"buffer_load_dwordx4 {vr(tv)}, {sr(sWOI)}, s{sT2} offen offset:{(p&3)*1024}{' nt' if O.wo_nt else ''} lds", "vm", "WO"))
def wo_move(A, t):
    A(f"v_accvgpr_read_b32 v0, {ar(aWA+5)}"); A(f"v_accvgpr_read_b32 {vr(vTMP)}, {ar(aWA+6)}")
    for nb in range(5):
        for jh in range(2):
            A(f"ds_read_b64_tr_b16 {ar(aWT+nb*4+2*jh,2)}, {vr(vTMP if nb == 4 else 0)} offset:{jh*2560 + ((nb>>1)*64+(nb&1)*8 if nb < 4 else 128)}")
    A(f"v_accvgpr_read_b32 v0, {ar(aWA+7)}"); A(f"s_movk_i32 s{sT2}, {t*5120}"); A(f"s_movk_i32 s{sT}, {t*5120+4096}")
    for nb in range(5):
        A(f"s_waitcnt lgkmcnt({8-2*nb})")
        A(f"buffer_store_dwordx4 {ar(aWT+nb*4,4)}, v0, {sr(sWOF)}, s{sT if nb == 4 else sT2} offen offset:{(nb&3)*1024}{SC1()}")

PHYS = [0, 1, 2, 4, 5, 3, 6, 7]
vOQ, vWD = 16, 18
sWB, sWM = sKOFF, sVOFF
def slab_k32(j): return 8 * (j & 15) + 4 * (j >> 4)
def w_dma(j):
    ph = PHYS[j & 7]
    r = [[f"s_add_u32 m0, s{sWM}, {ph*20480}", f"s_add_u32 s{sT2}, s{sWB}, {slab_k32(j)*40960}"]]
    for nb in range(4): r.append([(f"buffer_load_dwordx4 {vr(vWD)}, {sr(sW)}, s{sT2} offen offset:{nb*1024} lds", "vm", ("W", j))])
    r[4].append(f"s_add_u32 m0, s{sWM}, {ph*20480+4096}")
    r.append([(f"buffer_load_dwordx4 {vr(vWD+1)}, {sr(sW)}, s{sT2} offen lds", "vm", ("W", j))])
    return r
OPH = [2, 3, 7, 0, 1, 4, 5, 6]
def OF(j, kk, qq): return OPH[j & 7] * 32 + (kk * 2 + qq) * 4
def o_ld(j):
    r = [[f"s_mov_b32 s4, {slab_k32(j)*1024}"]]
    for qq in range(2):
        for kk in range(4):
            r.append([(f"buffer_load_dwordx4 {ar(OF(j,kk,qq),4)}, {vr(vOQ+qq)}, {sr(sX)}, s4 offen offset:{kk*1024}{SC1()}", "vm", ("O", j))])
    r[1] = r[0] + r[1]
    return r[1:]
def oproj_setup(A):
    A(f"s_lshr_b32 s3, s7, 3"); A(f"s_and_b32 s4, s7, 7")
    A(f"s_lshl_b32 s{sT}, s5, 3"); A(f"s_add_u32 s{sT}, s{sT}, s6"); A(f"s_lshl_b32 s{sT}, s{sT}, 21")
    A(f"s_lshl_b32 s{sT2}, s3, 20"); A(f"s_add_u32 s{sT}, s{sT}, s{sT2}")
    srd(A, sX, sWS, sWS + 1, f"s{sT}", "0x100000")
    A(f"s_mul_i32 s{sT}, s5, 5242880"); A(f"s_add_u32 s{sT}, s{sT}, {WOF_OFF}")
    srd(A, sW, sWS, sWS + 1, f"s{sT}", 5242880)
    A(f"s_mul_i32 s{sWB}, s{sWAVE}, 40960"); A(f"s_mul_i32 s{sT}, s4, 5120"); A(f"s_add_u32 s{sWB}, s{sWB}, s{sT}")
    A(f"s_mul_i32 s{sWM}, s{sWAVE}, 5120")
    A(f"v_and_b32 {vr(vWD)}, 0x3ff, {vr(vOO)}"); A(f"v_add_u32 {vr(vWD+1)}, 4096, {vr(vWD)}")
    A(f"s_lshl_b32 s{sT}, s{sWAVE}, 18")
    A(f"v_add_u32 {vr(vOQ)}, s{sT}, {vr(vWD)}"); A(f"v_add_u32 {vr(vOQ+1)}, 0x20000, {vr(vOQ)}")

def oproj(A):
    vWR, vSt = 23, 24
    vWR = 24
    vACC, vWF = 32, 72
    def ACC(qq, nb): return vACC + (qq * 5 + nb) * 4
    def WF(par, nb): return vWF + par * 20 + nb * 4
    A.c("---- O projection")
    if not O.wpre: oproj_setup(A)
    A(f"v_and_b32 {vr(vWR)}, 0x3ff, {vr(vOQ)}"); A(f"v_add_u32 {vr(vWR+1)}, 61440, {vr(vWR)}"); A(f"v_add_u32 {vr(vWR+2)}, 122880, {vr(vWR)}")
    def w_rd(j, kk):
        ph = PHYS[j & 7]
        return [(f"ds_read_b128 {vr(WF(kk&1,nb),4)}, {vr(vWR+ph//3)} offset:{(ph%3)*20480+kk*5120+nb*1024}", "ds", ("WF", kk & 1, nb)) for nb in range(5)]
    if not O.wpre:
        A.wait(vmn=0); A("s_barrier")
        for ops in w_dma(0) + w_dma(1) + o_ld(0) + w_dma(2) + o_ld(1) + w_dma(3) + o_ld(2) + w_dma(4):
            for o in ops: A.op(o)
    for ops in o_ld(3):
        for o in ops: A.op(o)
    A.wait(vm=[("W", 0), ("W", 1)]); A("s_barrier")
    for o in w_rd(0, 0): A.op(o)
    for ops in w_dma(5) + w_dma(6):
        for o in ops: A.op(o)
    for j in range(32):
        A.c(f"---- slab {j}")
        if j in (4, 12, 17): stamp(A, f"slab{j}", 2)
        nd = [("O", j)] + ([("W", j + 1)] if j + 1 < 32 else []) + (["ST"] if j == O.pub2 else [])
        A.wait(vm=nd)
        if j == 12:
            A(f"s_cmp_lg_u32 s{sWAVE}, 0"); A("s_cbranch_scc1 L_spun_u2")
            poll_check(A, poll_u(1), 1, "u2")
        if j: A("s_barrier")
        if j == O.pub2:
            A(f"s_cmp_lg_u32 s{sWAVE}, 0"); A("s_cbranch_scc1 L_nopub2")
            flag_store(A, 1, 1, "AT"); A.vm.pop()
            A.label("L_nopub2")
        mf = []; need = {}
        for kk in range(4):
            for nb in range(5):
                for qq in range(2):
                    c = "0" if (j == 0 and kk == 0) else vr(ACC(qq, nb), 4)
                    mf.append(f"{MF} {vr(ACC(qq,nb),4)}, {vr(WF(kk&1,nb),4)}, {ar(OF(j,kk,qq),4)}, {c}")
            need[kk * 10] = [("WF", kk & 1, nb) for nb in range(2)]; need[kk * 10 + 4] = [("WF", kk & 1, nb) for nb in range(2, 5)]
        gaps = {g: [] for g in range(40)}
        for kk in range(4):
            nx = w_rd(j, kk + 1) if kk < 3 else (w_rd(j + 1, 0) if j + 1 < 32 else [])
            for i, o in enumerate(nx): gaps[kk * 10 + 2 * i].append(o)
        mem = (w_dma(j + 7) if j + 7 < 32 else []) + (o_ld(j + 4) if j + 4 < 32 else [])
        if j == O.poll2: mem.append([f"s_cmp_lg_u32 s{sWAVE}, 0", "s_cbranch_scc1 L_nopoll2", poll_u(1)[0], "L_nopoll2:"])
        for i, ops in enumerate(mem): gaps[1 + 2 * i] += ops
        interleave(A, mf, gaps, need=need)
    stamp(A, "oproj loop done")
    lane, t0, t1 = 27, 28, 29
    A(f"v_lshrrev_b32 {vr(lane)}, 4, {vr(vWR)}")
    A(f"v_and_b32 {vr(t0)}, 15, {vr(lane)}"); A(f"v_mul_u32_u24 {vr(t0)}, 2560, {vr(t0)}"); A(f"v_lshrrev_b32 {vr(t1)}, 4, {vr(lane)}")
    A(f"s_mul_i32 s{sT}, s{sWAVE}, {32*2560}"); A(f"v_add_u32 {vr(t0)}, s{sT}, {vr(t0)}")
    A(f"v_lshl_add_u32 {vr(vOQ)}, {vr(t1)}, 4, {vr(t0)}"); A(f"v_lshl_add_u32 {vr(vOQ+1)}, {vr(t1)}, 3, {vr(t0)}")
    A(f"s_mov_b32 s{sT}, {16*2560}")
    for qq in range(2):
        so = f"s{sT}" if qq else "0"
        d = vWF + qq * 10
        for i in range(10): A(f"v_cvt_pk_bf16_f32 {vr(d+i)}, {vr(ACC(qq,0)+2*i)}, {vr(ACC(qq,0)+2*i+1)}")
        A(f"buffer_store_dwordx4 {vr(d,4)}, {vr(vOQ)}, {sr(sOUT)}, {so} offen")
        A(f"buffer_store_dwordx4 {vr(d+4,4)}, {vr(vOQ)}, {sr(sOUT)}, {so} offen offset:64")
        A(f"buffer_store_dwordx2 {vr(d+8,2)}, {vr(vOQ+1)}, {sr(sOUT)}, {so} offen offset:128")

def gen_kernel(k):
    A = Asm()
    A("s_cmp_ge_u32 s2, 256"); A("s_cbranch_scc1 L_end")
    stamp(A, "t0")
    if O.cpre:
        A("s_getpc_b64 s[84:85]"); A("s_and_b32 s84, s84, 0xffffff00"); A("s_and_b32 s85, s85, 0xffff")
        A("s_mov_b32 s86, L_codeend-attn_kernel"); A("s_mov_b32 s87, 0x20000")
        A("s_lshr_b32 s3, s2, 3"); A("s_lshl_b32 s3, s3, 12"); A("v_lshlrev_b32 v4, 4, v0")
        A.op(("buffer_load_dwordx4 v[252:255], v4, s[84:87], s3 offen", "vm", "CODE"))
        A("s_nop 4")
    A("s_load_dwordx16 s[64:79], s[0:1], 0")
    A("s_load_dwordx8 s[80:87], s[0:1], 64")
    A(f"s_load_dwordx2 s[{sWS}:{sWS+1}], s[0:1], 96")
    A("s_and_b32 s3, s2, 7"); A("s_lshr_b32 s4, s2, 3"); A("s_lshr_b32 s5, s3, 2")
    if O.map2:
        A("s_bfe_u32 s6, s3, 0x10001"); A("s_lshl_b32 s6, s6, 2"); A("s_lshr_b32 s7, s4, 3"); A("s_add_u32 s6, s6, s7")
        A("s_and_b32 s7, s3, 1"); A("s_lshl_b32 s7, s7, 3"); A("s_and_b32 s4, s4, 7"); A("s_add_u32 s7, s7, s4")
    else:
        A("s_and_b32 s6, s3, 3"); A("s_lshl_b32 s6, s6, 1"); A("s_lshr_b32 s7, s4, 4"); A("s_add_u32 s6, s6, s7")
        A("s_and_b32 s7, s4, 15")
    vAW, vOW, vOX, vAX = 16, 24, 28, 36
    lane, g, i, r, t0, t1, t2, t3, h = range(48, 57)
    A(f"v_lshrrev_b32 {vr(t0)}, 6, v0"); A(f"v_and_b32 {vr(lane)}, 63, v0"); A(f"v_readfirstlane_b32 s{sWAVE}, {vr(t0)}")
    A(f"v_lshrrev_b32 {vr(g)}, 4, {vr(lane)}"); A(f"v_and_b32 {vr(i)}, 15, {vr(lane)}"); A(f"v_lshrrev_b32 {vr(h)}, 5, {vr(lane)}")
    A(f"s_and_b32 s{sT2}, s{sWAVE}, 1"); A(f"s_lshl_b32 s{sT2}, s{sT2}, 3")
    A(f"s_lshl_b32 s{sT}, s{sWAVE}, 16")
    A(f"v_and_b32 {vr(t2)}, 31, {vr(lane)}"); A(f"v_xor_b32 {vr(t2)}, s{sT2}, {vr(t2)}")
    for p in range(2):
        A(f"v_add_u32 {vr(t0)}, {2*p}, {vr(h)}"); A(f"v_lshlrev_b32 {vr(t1)}, 1, {vr(t0)}"); A(f"v_xor_b32 {vr(t1)}, {vr(t1)}, {vr(t2)}")
        A(f"v_lshlrev_b32 {vr(t1)}, 4, {vr(t1)}"); A(f"v_lshl_add_u32 {vr(t1)}, {vr(t0)}, 13, {vr(t1)}")
        A(f"v_add_u32 {vr(vOW+p)}, s{sT}, {vr(t1)}")
        if p: A(f"v_subrev_u32 {vr(vOW+p)}, 1024, {vr(vOW+p)}")
        A(f"v_add_u32 {vr(vOW+p+2)}, {4*8192-2048}, {vr(vOW+p)}")
    A(f"s_mul_i32 s{sT}, s{sWAVE}, {64*1280}")
    A(f"v_lshrrev_b32 {vr(t0)}, 3, {vr(lane)}"); A(f"v_mul_u32_u24 {vr(t0)}, 1280, {vr(t0)}"); A(f"v_add_u32 {vr(t0)}, s{sT}, {vr(t0)}")
    A(f"v_and_b32 {vr(t1)}, 7, {vr(lane)}"); A(f"v_xor_b32 {vr(t1)}, {vr(t1)}, {vr(g)}")
    A(f"v_lshl_add_u32 {vr(vOX)}, {vr(t1)}, 4, {vr(t0)}"); A(f"v_xor_b32 {vr(t1)}, 4, {vr(t1)}"); A(f"v_lshl_add_u32 {vr(t0)}, {vr(t1)}, 4, {vr(t0)}")
    A(f"v_add_u32 {vr(vOX+1)}, {10240-1024}, {vr(t0)}")
    for p in range(2, 8): A(f"v_add_u32 {vr(vOX+p)}, {(p&~1)*10240 - ((p&3)&~1)*1024}, {vr(vOX+(p&1))}")
    A(f"s_lshl_b32 s{sKVW}, s{sWAVE}, 12"); A(f"s_add_u32 s{sVVW}, s{sKVW}, {VBASE}"); A(f"s_add_u32 s{sWQW}, s{sKVW}, {WQBASE}")
    A(f"s_lshl_b32 s{sXW}, s{sWAVE}, 13")
    A(f"s_lshl_b32 s4, s6, 4"); A(f"s_add_u32 s4, s4, s7")
    A(f"s_lshl_b32 s{sT}, s7, 9"); A(f"s_sub_u32 s{sW+2}, {640*8192}, s{sT}"); A(f"s_mov_b32 s{sW+3}, 0x20000")
    A(f"s_mul_i32 s{sT3}, s6, 327680"); A(f"s_mov_b32 s{sX+2}, 327680"); A(f"s_mov_b32 s{sX+3}, 0x20000")
    A("s_cmp_eq_u32 s5, 1")
    A("s_waitcnt lgkmcnt(0)")
    if O.stamps and O.stm == 1: A("s_memtime s[50:51]"); A("s_memrealtime s[98:99]"); nstamp[0] += 1; stamp_names.append("karg")
    for q in (3, 0, 1, 2, 4): A(f"s_cselect_b64 s[{64+2*q}:{65+2*q}], s[{74+2*q}:{75+2*q}], s[{64+2*q}:{65+2*q}]")
    A(f"s_add_u32 s{sW}, s70, s{sT}"); A(f"s_addc_u32 s{sW+1}, s71, 0"); A(f"s_and_b32 s{sW+1}, s{sW+1}, 0xffff")
    A(f"s_add_u32 s{sX}, s64, s{sT3}"); A(f"s_addc_u32 s{sX+1}, s65, 0"); A(f"s_and_b32 s{sX+1}, s{sX+1}, 0xffff")
    def AF(buf, nb): return buf * 64 + nb * 4
    def XR(G, ks, qb): return 128 + (G & 1) * 32 + (ks * 4 + qb) * 4
    def ACC(nb, qb): return vr(48 + (nb * 4 + qb) * 4, 4) if nb < 13 else ar(208 + ((nb - 13) * 4 + qb) * 4, 4)
    def wq_dma(kk):
        return [[f"s_add_u32 m0, s{sWQW}, {(kk&3)*16384}", f"s_mov_b32 s{sT2}, {kk*262144}"]] + \
               [[(f"buffer_load_dwordx4 {vr(vOW+p)}, {sr(sW)}, s{sT2} offen offset:{p*1024}{' nt' if O.w_nt else ''} lds", "vm", ("W", kk))] for p in range(4)]
    def x_dma(G):
        r = [[f"s_add_u32 m0, s{sXW}, {XB[G&1]}", f"s_movk_i32 s{sT2}, {G*128}"]]
        r += [[(f"buffer_load_dwordx4 {vr(vOX+p)}, {sr(sX)}, s{sT2} offen offset:{(p&3)*1024}{' nt' if O.x_nt else ''} lds", "vm", ("X", G))] for p in range(8)]
        r[4].append(f"s_add_u32 m0, s{sXW}, {XB[G&1]+4096}")
        return r
    def flat(groups):
        for grp in groups:
            for ops in grp:
                for o in ops: A.op(o)
    flat([wq_dma(0), x_dma(0), wq_dma(1), x_dma(1)])
    def kv_groups(kind, tile):
        su, pcs, po = dma_k(tile, (kind, tile)) if kind == "K" else dma_v(tile, (kind, tile))
        return [[su]] + [[p] for p in pcs[:3]] + [[pcs[3], po]]
    A(f"s_mul_i32 s{sT}, s4, 40960")
    srd(A, sWOI, 72, 73, f"s{sT}", 40960)
    A(f"s_lshl_b32 s{sT}, s4, 19")
    srd(A, sK, 66, 67, f"s{sT}", "0x80000")
    srd(A, sV, 68, 69, f"s{sT}", "0x80000")
    A(f"s_mul_i32 s{sT}, s5, 5242880"); A(f"s_mul_i32 s{sT2}, s4, 40960"); A(f"s_add_u32 s{sT}, s{sT}, s{sT2}"); A(f"s_add_u32 s{sT}, s{sT}, {WOF_OFF}")
    srd(A, sWOF, sWS, sWS + 1, f"s{sT}", 40960)
    A(f"s_lshl_b32 s{sGI}, s5, 3"); A(f"s_add_u32 s{sGI}, s{sGI}, s6"); A(f"s_lshl_b32 s{sT2}, s{sGI}, 21")
    srd(A, sO, sWS, sWS + 1, f"s{sT2}", "0x200000")
    A(f"s_lshl_b32 s{sT}, s6, 1"); A(f"s_lshr_b32 s{sT2}, s7, 3"); A(f"s_add_u32 s{sT}, s{sT}, s{sT2}"); A(f"s_mul_i32 s{sT}, s{sT}, {128*2560}")
    A(f"s_mul_i32 s{sT2}, s5, 1280"); A(f"s_add_u32 s{sT}, s{sT}, s{sT2}"); A(f"s_and_b32 s{sT2}, s7, 7"); A(f"s_mul_i32 s{sT2}, s{sT2}, 160")
    A(f"s_add_u32 s{sT}, s{sT}, s{sT2}")
    if O.stamps and O.stm == 1: A("s_waitcnt lgkmcnt(0)"); A("s_mov_b32 s66, s98"); A("s_mov_b32 s67, s99")
    srd(A, sOUT, 84, 85, f"s{sT}", 127 * 2560 + 160)
    srd(A, sCNT, 86, 87, 0, 256)
    A(f"s_lshl_b32 s{sT}, s{sGI}, 12"); A(f"s_add_u32 s{sT}, s{sT}, {FLAG_OFF}")
    srd(A, sFLG, sWS, sWS + 1, f"s{sT}", 128)
    A(f"s_lshl_b32 s{sGI}, s7, 2")
    A(f"s_lshl_b32 s{sOOF}, s7, 13")
    A(f"s_mov_b32 s{sKOFF}, 0"); A(f"s_mov_b32 s{sVOFF}, 0"); A(f"s_mov_b32 s{sSTUB}, 0")
    A(f"s_mov_b32 s{sTHR}, {hex(f32bits(2.0**O.thr_log2 if not O.forcefb else -1.0))}")
    A(f"s_mov_b32 s{sSC}, {hex(f32bits(128**-0.5*math.log2(math.e)))}"); A(f"s_mov_b32 s{sSC+1}, s{sSC}")
    A(f"v_lshrrev_b32 {vr(r)}, 2, {vr(i)}")
    A(f"v_and_b32 {vr(t0)}, 1, {vr(g)}"); A(f"v_lshl_add_u32 {vr(t0)}, {vr(t0)}, 2, {vr(r)}")
    A(f"v_lshl_add_u32 {vr(t1)}, {vr(g)}, 3, {vr(r)}"); A(f"v_lshlrev_b32 {vr(t1)}, 9, {vr(t1)}")
    A(f"v_and_b32 {vr(t2)}, 3, {vr(i)}"); A(f"v_lshl_add_u32 {vr(t1)}, {vr(t2)}, 3, {vr(t1)}"); A(f"v_add_u32 {vr(t1)}, {WQBASE}, {vr(t1)}")
    for n3 in range(8):
        A(f"v_xor_b32 {vr(t3)}, {n3}, {vr(t0)}"); A(f"v_lshl_add_u32 {vr(vAW+n3)}, {vr(t3)}, 5, {vr(t1)}")
    A(f"v_lshrrev_b32 {vr(t0)}, 1, {vr(i)}"); A(f"v_xor_b32 {vr(t0)}, {vr(t0)}, {vr(g)}")
    A(f"v_lshlrev_b32 {vr(t1)}, 7, {vr(i)}"); A(f"v_add_u32 {vr(t1)}, s{sXW}, {vr(t1)}")
    A(f"v_lshl_add_u32 {vr(vAX)}, {vr(t0)}, 4, {vr(t1)}"); A(f"v_xor_b32 {vr(vAX+1)}, 64, {vr(vAX)}")
    A(f"v_lshl_add_u32 {vr(t1)}, {vr(r)}, 4, {vr(t2)}"); A(f"v_lshlrev_b32 {vr(t1)}, 8, {vr(t1)}")
    A(f"v_and_b32 {vr(t0)}, 1, {vr(r)}"); A(f"v_lshlrev_b32 {vr(t0)}, 3, {vr(t0)}"); A(f"v_lshl_add_u32 {vr(t0)}, {vr(t2)}, 1, {vr(t0)}")
    A(f"v_lshrrev_b32 {vr(t3)}, 3, {vr(i)}"); A(f"v_add_u32 {vr(t0)}, {vr(t0)}, {vr(t3)}")
    A(f"v_and_b32 {vr(t3)}, 1, {vr(g)}"); A(f"v_lshl_add_u32 {vr(t3)}, {vr(t3)}, 1, {vr(h)}"); A(f"v_xor_b32 {vr(t0)}, {vr(t0)}, {vr(t3)}")
    A(f"v_lshl_add_u32 {vr(vAK)}, {vr(t0)}, 4, {vr(t1)}")
    for s in range(1, 4): A(f"v_xor_b32 {vr(vAK+s)}, {s*64}, {vr(vAK)}")
    A(f"v_lshl_add_u32 {vr(t1)}, {vr(g)}, 4, {vr(r)}"); A(f"v_lshlrev_b32 {vr(t1)}, 8, {vr(t1)}")
    A(f"v_and_b32 {vr(t0)}, 1, {vr(i)}"); A(f"v_lshl_add_u32 {vr(t1)}, {vr(t0)}, 3, {vr(t1)}"); A(f"v_add_u32 {vr(t1)}, {VBASE}, {vr(t1)}")
    A(f"v_and_b32 {vr(t0)}, 1, {vr(g)}"); A(f"v_lshlrev_b32 {vr(t0)}, 3, {vr(t0)}"); A(f"v_lshl_add_u32 {vr(t0)}, {vr(r)}, 1, {vr(t0)}")
    A(f"v_add_u32 {vr(t0)}, {vr(t0)}, {vr(h)}"); A(f"v_bfe_u32 {vr(t3)}, {vr(i)}, 1, 1"); A(f"v_xor_b32 {vr(t0)}, {vr(t0)}, {vr(t3)}")
    A(f"v_lshl_add_u32 {vr(vAV)}, {vr(t0)}, 4, {vr(t1)}")
    for db in range(1, 8): A(f"v_xor_b32 {vr(vAV+db)}, {db*32}, {vr(vAV)}")
    A(f"s_and_b32 s{sT}, s{sWAVE}, 1"); A(f"s_lshl_b32 s{sT}, s{sT}, 3"); A(f"s_lshr_b32 s{sT2}, s{sWAVE}, 1"); A(f"s_add_u32 s{sT}, s{sT}, s{sT2}")
    A(f"v_lshlrev_b32 {vr(t0)}, 1, {vr(g)}"); A(f"v_add_u32 {vr(t0)}, s{sT}, {vr(t0)}"); A(f"v_xor_b32 {vr(t0)}, {vr(t0)}, {vr(i)}")
    A(f"v_lshlrev_b32 {vr(t0)}, 4, {vr(t0)}"); A(f"v_lshl_add_u32 {vr(t0)}, {vr(g)}, 8, {vr(t0)}"); A(f"v_add_u32 {vr(vOKV)}, s{sKVW}, {vr(t0)}")
    A(f"s_lshl_b32 s{sT}, s{sWAVE}, 19"); A(f"v_lshlrev_b32 {vr(t0)}, 4, {vr(lane)}"); A(f"v_add_u32 {vr(vOO)}, s{sT}, {vr(t0)}")
    if O.kv0 < 0: flat([kv_groups("K", 0), kv_groups("V", 0)])
    stamp(A, "setup done", 1)
    def a_reads(kk):
        return [(f"ds_read_b64_tr_b16 {ar(AF(kk&1,nb)+2*jh,2)}, {vr(vAW+(nb&7))} offset:{(kk&3)*16384+jh*2048+(nb>>3)*256}", "ds", "A")
                for nb in range(16) for jh in range(2)]
    def x_reads(G):
        return [(f"ds_read_b128 {ar(XR(G,ks,qb),4)}, {vr(vAX+ks)} offset:{XB[G&1]+qb*2048}", "ds", "XR") for ks in range(2) for qb in range(4)]
    A.wait(vm=[("W", 0), ("X", 0)]); A("s_barrier")
    stamp(A, "wq0 landed"); stamp(A, "wq0 landed", 1); stamp(A, "wq0 landed", 3)
    for o in x_reads(0) + a_reads(0): A.op(o)
    flat([wq_dma(2), wq_dma(3)])
    for kk in range(20):
        A.c(f"---- qproj step {kk}")
        G, ks = kk >> 1, kk & 1
        if kk in (1, 4): stamp(A, f"step{kk}", 1)
        if kk in (4, 8, 12, 15): stamp(A, f"step{kk}", 3)
        nd = ([("W", kk + 1)] if kk + 1 < 20 else []) + ([("X", G + 1)] if ks == 0 and G + 1 < 10 else [])
        A.wait(vm=nd, dsn=0); A("s_barrier")
        mf = [f"{MF} {ACC(nb,qb)}, {ar(AF(kk&1,nb),4)}, {ar(XR(G,ks,qb),4)}, {ACC(nb,qb) if kk else '0'}" for nb in range(16) for qb in range(4)]
        gaps = {q: [] for q in range(64)}
        mem = []
        if kk + 4 < 20: mem += wq_dma(kk + 4)
        if kk == 0: mem += x_dma(2)
        if ks == 1 and G + 3 < 10: mem += x_dma(G + 3)
        if kk == O.kv0: mem += kv_groups("K", 0) + kv_groups("V", 0)
        if kk == 15: mem += kv_groups("K", 1) + kv_groups("K", 2)
        if kk == 16: mem += kv_groups("V", 1)
        if kk == 17: mem += kv_groups("K", 3) + kv_groups("V", 2)
        rd = (x_reads(G + 1) if ks == 0 and G + 1 < 10 else []) + (a_reads(kk + 1) if kk + 1 < 20 else [])
        sp = max(2, min(O.qsp, 56 // max(1, len(mem))))
        for q, ops in enumerate(mem): gaps[1 + sp * q] += ops
        fr = [q for q in range(60) if not gaps[q]]
        two = max(0, len(rd) - len(fr))
        fr = sorted(fr + fr[:two])
        for q, o in enumerate(rd): gaps[fr[(q * len(fr)) // len(rd)]].append(o)
        interleave(A, mf, gaps)
    stamp(A, "qproj done"); stamp(A, "qproj done", 3)
    A("s_nop 7")
    def conv_front(hd, s, qb, T0, T1, tb):
        for T in (T0, T1):
            for q in range(2): A(f"v_pk_mul_f32 {vr(T+2*q,2)}, {vr(T+2*q,2)}, s[{sSC}:{sSC+1}]")
        for q in range(2): A(f"v_cvt_pk_bf16_f32 {vr(tb+q)}, {vr(T0+2*q)}, {vr(T0+2*q+1)}")
        for q in range(2): A(f"v_cvt_pk_bf16_f32 {vr(tb+2+q)}, {vr(T1+2*q)}, {vr(T1+2*q+1)}")
    def conv_back(hd, s, qb, tb):
        for q in range(2): A(f"v_permlane16_swap_b32 {vr(tb+q)}, {vr(tb+2+q)}")
    def conv_wr(hd, s, qb, tb):
        for q in range(4): A(f"v_accvgpr_write_b32 {ar(hd*64+(qb*4+s)*4+q)}, {vr(tb+q)}")
    jobs = []
    for pr in range(8):
        for qb in range(4):
            jobs.append((pr, qb))
    pend = []
    for n_, (pr, qb) in enumerate(jobs):
        if pr == 6 and qb == 0:
            for q in range(48): A(f"v_accvgpr_read_b32 {vr(48+q)}, {ar(208+q)}")
        def loc(nb): return 48 + (nb * 4 + qb) * 4 if nb < 13 else 48 + ((nb - 13) * 4 + qb) * 4
        tb = 16 + (n_ % 4) * 4
        conv_front(pr >> 2, pr & 3, qb, loc(2 * pr), loc(2 * pr + 1), tb)
        pend.append((pr >> 2, pr & 3, qb, tb))
        if len(pend) >= 2: conv_back(*pend[-2])
        if len(pend) >= 3: conv_wr(*pend[-3])
    A("s_nop 1"); conv_back(*pend[-1]); conv_wr(*pend[-2]); A("s_nop 0"); conv_wr(*pend[-1])
    A(f"s_mov_b32 s{sT}, 0x3f803f80")
    for q in range(4): A(f"v_accvgpr_write_b32 {ar(aONE+q)}, s{sT}")
    if O.dumpq:
        A(f"s_lshl_b32 s{sT}, s5, 7"); A(f"s_lshl_b32 s{sT2}, s6, 4"); A(f"s_add_u32 s{sT}, s{sT}, s{sT2}"); A(f"s_add_u32 s{sT}, s{sT}, s7")
        A(f"s_lshl_b32 s{sT}, s{sT}, 17"); A(f"s_add_u32 s{sT}, s{sT}, {QDUMP_WS_OFF}")
        srd(A, sWOI, sWS, sWS + 1, f"s{sT}", "0x20000")
        A(f"v_and_b32 {vr(16)}, 0x3ff, {vr(vOO)}"); A(f"s_lshl_b32 s{sT}, s{sWAVE}, 15"); A(f"v_add_u32 {vr(16)}, s{sT}, {vr(16)}")
        for q in range(32):
            A(f"s_mov_b32 s{sT}, {q*1024}")
            A(f"buffer_store_dwordx4 {ar(4*q,4)}, {vr(16)}, {sr(sWOI)}, s{sT} offen")
        A("s_waitcnt vmcnt(0)")
    if O.fuse:
        wo_setup(A, 16)
    A.wait(vm=[("K", 0)]); A("s_barrier")
    if O.fuse:
        wo_dma(A, 0)
        A(f"s_cmp_lg_u32 s{sWAVE}, 0"); A("s_cbranch_scc1 L_noflag")
        flag_store(A, 0, 0, "AT"); flag_store(A, 1, 0, "AT")
        A.label("L_noflag")
        A(f"s_mov_b32 s{sSTUB}, 1")
    stamp(A, "conv done")
    A(f"s_mov_b32 s{sUNIT}, 0")
    A.label("L_unit")
    A(f"s_mov_b32 s{sLOOP}, 3")
    ncls = 2 if O.twocls else 1
    if ncls == 2:
        A(f"s_bitcmp1_b32 s{sWAVE}, 0"); A("s_cbranch_scc1 L_first_1")
    ds6 = None
    for cls in range(ncls):
        A.label(f"L_first_{cls}")
        A.ds = []
        first_slot(A, cls)
        slot(A, 1, cls, f"second_{cls}", zero=True)
        ds_in = list(A.ds)
        A.label(f"L_loop_{cls}")
        for p in (2, 3, 4, 5, 6, 7, 0, 1):
            tail = []
            if p == 6: tail = [f"s_cmp_eq_u32 s{sLOOP}, 0", "s_cbranch_scc1 L_last"]
            if p == 1:
                tail = [f"s_sub_u32 s{sLOOP}, s{sLOOP}, 1"]
                if O.stamps and O.stm == 4: tail += [f"s_memtime s[50:51]", "s_memrealtime s[66:67]"]
                tail += [f"s_cmp_eq_u32 s{sSTUB}, 0", f"s_cbranch_scc1 L_loop_{cls}", "s_branch L_stub"] if O.fuse else [f"s_branch L_loop_{cls}"]
            slot(A, p, cls, f"p{p}_{cls}", tail=tail)
            if p == 6: ds6 = list(A.ds)
        assert len(A.ds) == len(ds_in) and A.ds == ds_in, (A.ds, ds_in)
    if O.stamps and O.stm == 4: nstamp[0] += 1; stamp_names.append("loopback")
    if O.fuse:
        A.label("L_stub")
        A(f"s_cmp_lg_u32 s{sUNIT}, 0"); A("s_cbranch_scc1 L_stub1")
        A(f"s_cmp_eq_u32 s{sLOOP}, 2"); A(f"s_cbranch_scc0 L_stubY")
        wo_move(A, 0); wo_dma(A, 1)
        A("s_branch L_stubret")
        A.label("L_stubY")
        A(f"s_cmp_eq_u32 s{sLOOP}, 1"); A(f"s_cbranch_scc0 L_stubZ")
        wo_move(A, 1)
        A(f"v_lshrrev_b32 {vr(vTMP)}, 2, {vr(vOO)}"); A(f"v_and_b32 {vr(vTMP)}, 60, {vr(vTMP)}")
        A("s_branch L_stubret")
        A.label("L_stubZ")
        A(f"s_cmp_lg_u32 s{sWAVE}, 0"); A("s_cbranch_scc1 L_stubret")
        A(f"s_lshl_b32 s{sT}, s5, 7")
        one_lane(A, 1, f"buffer_atomic_add v0, off, {sr(sCNT)}, s{sT} sc1", "AT")
        A("s_branch L_loop_0")
        A.label("L_stub1")
        A(f"s_lshl_b32 s{sT}, s5, 7")
        A(f"s_cmp_eq_u32 s{sLOOP}, 2"); A(f"s_cbranch_scc0 L_stubB")
        flag_store(A, 0, 1, "AT")
        A("s_nop 0"); A(poll_w()[0])
        A(f"s_branch L_loop_0")
        A.label(f"L_stubB")
        A(f"s_cmp_eq_u32 s{sLOOP}, 1"); A(f"s_cbranch_scc0 L_stubC")
        poll_check(A, poll_w(), 128, "w")
        if not O.noinv: A("buffer_inv sc1")
        A(f"s_branch L_loop_0")
        A.label(f"L_stubC")
        A(poll_u(0)[0])
        A(f"s_branch L_loop_0")
        A.label("L_stubret")
        if ncls == 2:
            A(f"s_bitcmp1_b32 s{sWAVE}, 0"); A("s_cbranch_scc1 L_loop_1")
        A("s_branch L_loop_0")
    A.label("L_last")
    stamp(A, "last", 4)
    if O.fuse:
        A(f"s_cmp_lg_u32 s{sUNIT}, 0"); A("s_cbranch_scc1 L_last1")
    A.ds = list(ds6)
    last_slot(A)
    if O.chk:
        A(f"s_cmp_lg_u64 s[{sM}:{sM+1}], 0"); A("s_cbranch_scc1 L_fb")
    if not O.fuse:
        A(f"s_cmp_lg_u32 s{sUNIT}, 0"); A("s_cbranch_scc1 L_fbret1")
    A.label("L_fbret0")
    stamp(A, "unit0 end"); stamp(A, "unit0 end", 2); stamp(A, "unit0 end", 5)
    if O.stamps and O.stm == 5:
        A("s_waitcnt vmcnt(16)"); stamp(A, "kv drained", 5); A("s_waitcnt vmcnt(0)"); stamp(A, "st drained", 5)
    A(f"s_mov_b32 s{sUNIT}, 1"); A(f"s_add_u32 s{sOOF}, s{sOOF}, 4096")
    A(f"s_cmp_eq_u32 s{sWAVE}, 0"); A(f"s_cselect_b32 s{sSTUB}, 1, 0")
    for q in range(64): A(f"v_accvgpr_mov_b32 {ar(aQ+q)}, {ar(aQ2+q)}")
    A("s_branch L_unit")
    if O.fuse:
        A.label("L_last1")
        A.ds = list(ds6); A.vm = []
        stamp(A, "last1", 2)
        A("s_waitcnt vmcnt(0)")
        A(f"s_cmp_lg_u32 s{sWAVE}, 0"); A("s_cbranch_scc1 L_spun_u1")
        poll_check(A, poll_u(0), 1, "u1")
        A("s_barrier")
        extra = []
        if O.wpre:
            oproj_setup(A)
            extra = w_dma(0) + w_dma(1) + o_ld(0) + w_dma(2) + o_ld(1) + w_dma(3) + o_ld(2) + w_dma(4)
        last_slot(A, extra)
        if O.chk:
            A(f"s_cmp_lg_u64 s[{sM}:{sM+1}], 0"); A("s_cbranch_scc1 L_fb")
        A.label("L_fbret1")
        stamp(A, "unit1 end"); stamp(A, "unit1 end", 2)
        oproj(A)
    else:
        A.label("L_fbret1")
        stamp(A, "unit1 end"); stamp(A, "unit1 end", 5)
    if O.stamps: emit_stamps(A)
    A.label("L_end")
    A("s_endpgm")
    if O.chk:
        fallback(A)
    emit_spins(A)
    A.label("L_codeend")
    return kstart(k) + A.text()

def emit_stamps(A):
    A("s_waitcnt vmcnt(0) lgkmcnt(0)")
    A(f"s_memtime s[8:9]"); A(f"s_memrealtime s[10:11]")
    A("s_waitcnt lgkmcnt(0)")
    srd(A, sDBG, sWS, sWS + 1, STAMP_WS_OFF, "0x100000")
    A(f"s_lshl_b32 s3, s2, 2"); A(f"s_add_u32 s3, s3, s{sWAVE}"); A("s_lshl_b32 s3, s3, 7")
    A("v_mov_b32 v0, s3")
    n = nstamp[0]
    regs = [(j, sSTAMP + 2 * j) for j in range(n)] + [(n, 8)] + [(8 + j, 62 if j == 0 else sRSTAMP + 2 * j) for j in range(n)] + [(8 + n, 10)]
    A("s_getreg_b32 s4, hwreg(HW_REG_XCC_ID)")
    regs.append((16, 4))
    for j, s_ in regs:
        A(f"v_mov_b32 v1, s{s_}")
        A(f"buffer_store_dword v1, v0, {sr(sDBG)}, 0 offen offset:{4*j}")
    A("s_waitcnt vmcnt(0)")

def main():
    ap = argparse.ArgumentParser()
    for k_, v_ in vars(Opt).items():
        if k_.startswith("_"): continue
        if isinstance(v_, bool): ap.add_argument("--" + k_, type=lambda s: bool(int(s)), default=v_)
        elif isinstance(v_, int): ap.add_argument("--" + k_, type=int, default=v_)
        else: ap.add_argument("--" + k_, default=v_)
    a = ap.parse_args()
    for k_, v_ in vars(a).items(): setattr(O, k_, v_)
    hdr = open("cdna_kernels/" + NAME + ".s.ref").read().split("; Override launch")[0]
    out = hdr
    out += "; @launch kernel=attn_kernel grid=(256,1,1) block=(256,1,1) lds=163840\n"
    body = gen_kernel("attn_kernel")
    if O.stamps: out += "; stamps: " + ",".join(stamp_names) + ",end\n"
    out += '.amdgcn_target "amdgcn-amd-amdhsa--gfx950"\n.text\n'
    out += body + kd("attn_kernel")
    lines = out.split("\n")
    if O.skip_loop:
        iu = lines.index("L_unit:"); il = lines.index("L_last:")
        lines = lines[:iu] + [l for l in lines[iu:il] if not ("buffer_load_dwordx4" in l and " lds" in l)] + lines[il:]
    il = lines.index("L_last:")
    if O.skip_oo: lines = lines[:il] + [l for l in lines[il:] if not ("buffer_load_dwordx4 a[" in l and "s[8:11]" in l)]
    if O.skip_ow: lines = lines[:il] + [l for l in lines[il:] if not ("s[12:15]" in l and " lds" in l)]
    iu = lines.index("L_unit:")
    if O.skip_x: lines = [l for l in lines[:iu] if not ("s[8:11]" in l and " lds" in l)] + lines[iu:]
    if O.skip_w: lines = [l for l in lines[:iu] if not ("s[12:15]" in l and " lds" in l)] + lines[iu:]
    sys.stdout.write("\n".join(lines))
main()
```

```python
import sys, math, argparse, re, struct, copy

NAME = "concat_heads__gqa_block_cached__gqa_block_cached__near_ridge"

class Opt:
    stamps = False
    dumpq = False
    kv_nt = True
    fuse = True
    twocls = False
    D = 6
    bar = 20
    burst = 1
    dper = 3
    qsp = 4
    w_nt = True
    x_nt = True
    wo_nt = False
    kv0 = 15
    pubw = 11
    map2 = True
    pub2 = 1
    pub1 = 28
    poll2 = 8
    thr_log2 = 30
    skip_loop = False
    skip_x = False
    skip_w = False
    forcefb = False
    budget = 8
    wpre = True
    o_sc1 = True
    chk = True
    stm = 0
    cpre = True
    rot = 0
    wfake = False
    noinv = False
    skip_oo = False
    skip_ow = False
    st_sc1 = True
    wopre = 2
    wopre_nt = False
    wopn = 1
    ndef = 3
    xbar = 60
    own1 = True
    obar = 4
    osp = 2
    xdense = True
    trace = False
    xld = 24
    xfill = 8
    lfake = False
    whalf = False
    ofake = False
    walign = False
    wofl = 0

O = Opt()

class Asm:
    def __init__(self):
        self.L = []
        self.vm = []
        self.ds = []
        self.nvm = 0; self.mark = {}
    def __call__(self, s):
        if s.endswith(" lds") and self.L and " m0," in self.L[-1]: self.L.append("    s_nop 0")
        self.L.append(s if s.endswith(":") else "    " + s)
    def label(self, s): self.L.append(s + ":")
    def c(self, s): self.L.append("    ; " + s)
    def text(self): return "\n".join(self.L) + "\n"
    def vm_n(self, tags):
        idx = [i for i, t in enumerate(self.vm) if t in tags]
        if not idx: return None
        return min(63, len(self.vm) - 1 - max(idx))
    def ds_n(self, tags):
        idx = [i for i, t in enumerate(self.ds) if t in tags]
        if not idx: return None
        return min(15, len(self.ds) - 1 - max(idx))
    def wait(self, vm=None, ds=None, vmn=None, dsn=None):
        a = self.vm_n(vm) if vm else None
        b = self.ds_n(ds) if ds else None
        if vmn is not None: a = vmn if a is None else min(a, vmn)
        if dsn is not None: b = dsn if b is None else min(b, dsn)
        p = []
        if a is not None:
            p.append(f"vmcnt({a})"); self.vm = self.vm[len(self.vm) - a:] if a else []
        if b is not None:
            p.append(f"lgkmcnt({b})"); self.ds = self.ds[len(self.ds) - b:] if b else []
        if p: self("s_waitcnt " + " ".join(p))
    def op(self, o):
        if isinstance(o, str): self(o); return
        if o[1] == "vm": self.vm.append(o[2]); self.nvm += 1
        elif o[1] == "mark": self.mark[o[2]] = self.nvm
        elif o[1] == "call": o[2](self); return
        elif o[1] == "ds": self.ds.append(o[2])
        elif o[1] == "wait": self.wait(**o[2]); return
        self(o[0])

def vr(b, n=1): return f"v{b}" if n == 1 else f"v[{b}:{b+n-1}]"
def ar(b, n=1): return f"a{b}" if n == 1 else f"a[{b}:{b+n-1}]"
def sr(b, n=4): return f"s[{b}:{b+n-1}]"
def f32bits(x): return struct.unpack("<I", struct.pack("<f", x))[0]
MF = "v_mfma_f32_16x16x32_bf16"

def kd(k, vgpr=512, acc=256, sgpr=102):
    return f""".section .rodata,"a"
.p2align 6
.amdhsa_kernel {k}
  .amdhsa_next_free_vgpr {vgpr}
  .amdhsa_next_free_sgpr {sgpr}
  .amdhsa_accum_offset {acc}
  .amdhsa_group_segment_fixed_size 0
  .amdhsa_kernarg_size 104
  .amdhsa_user_sgpr_count 2
  .amdhsa_user_sgpr_kernarg_segment_ptr 1
  .amdhsa_system_sgpr_workgroup_id_x 1
.end_amdhsa_kernel
.text
"""
def kstart(k): return f".globl {k}\n.p2align 8\n.type {k},@function\n{k}:\n"

WOF_OFF = 48 << 20
STAMP_WS_OFF = 128 << 20
QDUMP_WS_OFF = 64 << 20
sXI, sXO = 78, 79

sX, sW, sK, sV, sO = 8, 12, 16, 20, 24
sWAVE, sKVW, sVVW, sWQW, sKOFF, sVOFF, sXW, sLOOP, sUNIT, sT, sTHR, sT3 = range(28, 40)
sSC, sOOF, sFB, sT2, sGI, sWS = 40, 42, 43, 44, 45, 46
sSTAMP, sRSTAMP = 48, 64
sCNT, sDBG, sWOI, sWOF, sOUT = 80, 84, 88, 92, 96
sM = 100
vAK, vAV, vOKV, vOO, vTMP = 1, 5, 13, 14, 15
vNEGM, vS, vP, vO = 16, 32, 96, 128
aQ, aQ2, aKF, aVF, aL, aONE = 0, 64, 128, 160, 192, 208
KBASE, VBASE, WQBASE, FBBASE = 0, 65536, 98304, 131072
XB = (16384, 49152)
FLAG_OFF = 60 << 20
sFLG, sSTUB = 84, sFB

def S(buf, qb, kb): return vS + buf * 32 + (qb * 2 + kb) * 4
def P(buf, qb): return vP + buf * 16 + qb * 4
def NEGM(qb): return vNEGM + qb * 4
def Q(qb, s): return aQ + (qb * 4 + s) * 4
def OA(db, qb): return vO + (qb * 8 + db) * 4
def LA(qb): return aL + qb * 4

nstamp = [0]
stamp_names = []
def stamp(A, name, mode=0):
    if not O.stamps or (mode != O.stm and name != "t0"): return
    i = nstamp[0]; nstamp[0] += 1; stamp_names.append(name)
    assert i < 7
    A(f"s_memtime s[{sSTAMP+2*i}:{sSTAMP+2*i+1}]")
    r = 62 if i == 0 else sRSTAMP + 2 * i
    A(f"s_memrealtime s[{r}:{r+1}]")

def cost(o):
    t = o if isinstance(o, str) else o[0]
    if t.endswith(":"): return 0
    if not isinstance(o, str) and o[1] in ("wait", "call"): return 0
    if t.startswith(("v_exp", "v_rcp")): return 8
    if t.startswith("buffer_"): return 8
    if t.startswith("s_nop"): return 4 * (int(t.split()[1]) + 1)
    if t.startswith("v_cvt_pk") or t.startswith("v_max3") or t.startswith("v_perm"): return 5
    if t.startswith("v_pk_"): return 8
    return 4

def interleave(A, mf, fixed=None, stream=(), pre=None, budget=None, need=None):
    budget = O.budget if budget is None else budget
    fixed = fixed or {}; pre = pre or {}; need = need or {}
    st = list(stream); si = 0; debt = 0
    for g in range(len(mf)):
        for t in pre.get(g, []): A.op(t)
        if g in need: A.wait(ds=need[g])
        A(mf[g])
        fx = fixed.get(g, [])
        room = budget - sum(cost(o) for o in fx) - debt
        for o in fx: A.op(o)
        while si < len(st):
            o, at = st[si] if isinstance(st[si], list) else (st[si], 0)
            if at > g: break
            c = cost(o)
            if room <= 0 or (c > room + 1): break
            A.op(o); room -= c; si += 1
        debt = 0
    while si < len(st):
        o = st[si][0] if isinstance(st[si], list) else st[si]
        A.op(o); si += 1

NT_KV = lambda: " nt" if O.kv_nt else ""
SC1 = lambda: " sc1" if O.o_sc1 else ""
def adv(off): return f"s_add_u32 s{off}, s{off}, 0x4000"
def vphys(ring): return (ring + 1) & 3
def dma_k(ring, tag):
    return (f"s_add_u32 m0, s{sKVW}, {ring*16384}",
            [(f"buffer_load_dwordx4 {vr(vOKV)}, {sr(sK)}, s{sKOFF} offen offset:{p*1024}{NT_KV()} lds", "vm", tag) for p in range(4)],
            adv(sKOFF))
def dma_v(ring, tag):
    return (f"s_add_u32 m0, s{sVVW}, {vphys(ring)*16384}",
            [(f"buffer_load_dwordx4 {vr(vOKV)}, {sr(sV)}, s{sVOFF} offen offset:{p*1024}{NT_KV()} lds", "vm", tag) for p in range(4)],
            adv(sVOFF))
def k_reads(ring, h, dst=aKF):
    return [(f"ds_read_b128 {ar(dst+(kb*4+s)*4,4)}, {vr(vAK+s)} offset:{ring*16384+(2*h+kb)*1024}", "ds", ("F", dst + (kb*4+s)*4))
            for kb in range(2) for s in range(4)]
def v_reads(ring, h):
    return [(f"ds_read_b64_tr_b16 {ar(aVF+db*4+2*jh,2)}, {vr(vAV+db)} offset:{vphys(ring)*16384+h*2048+jh*1024}", "ds", ("F", aVF + db*4))
            for db in range(8) for jh in range(2)]
def pv_mf(buf, zero=False, qbmajor=False):
    r = []
    def pv(db, qb): return (f"{MF} {vr(OA(db,qb),4)}, {ar(aVF+db*4,4)}, {vr(P(buf,qb),4)}, {'0' if zero else vr(OA(db,qb),4)}", aVF + db*4, qb)
    def sm(qb): return (f"{MF} {ar(LA(qb),4)}, {ar(aONE,4)}, {vr(P(buf,qb),4)}, {'0' if zero else ar(LA(qb),4)}", None, qb)
    if qbmajor:
        for qb in range(4):
            r.append(sm(qb)); r += [pv(db, qb) for db in range(8)]
    else:
        for db in range(8):
            r += [pv(db, qb) for qb in range(4)]
            if db & 1: r.append(sm(db >> 1))
    return r
def qk_mf(buf, zero=False, kf=aKF):
    r = []
    for qb in range(4):
        for kb in range(2):
            for s in range(4):
                c = vr(S(buf,qb,kb),4) if s else ("0" if zero else vr(NEGM(qb),4))
                r.append((f"{MF} {vr(S(buf,qb,kb),4)}, {ar(kf+(kb*4+s)*4,4)}, {ar(Q(qb,s),4)}, {c}", kf + (kb*4+s)*4, qb))
    return r
def ex(b, e): return f"v_exp_f32 {vr(vS+b*32+e)}, {vr(vS+b*32+e)}"
def cv(b, i): return f"v_cvt_pk_bf16_f32 {vr(vP+b*16+i)}, {vr(vS+b*32+2*i)}, {vr(vS+b*32+2*i+1)}"
def needs(mfs, group=2):
    nd = {}; seen = []
    for g, m in enumerate(mfs):
        if m[1] is not None and m[1] not in seen: seen.append(m[1]); nd[g] = m[1]
    items = sorted(nd.items())
    out = {}
    for i in range(0, len(items), group):
        out[items[i][0]] = [("F", t) for _, t in items[i:i + group]]
    return out
def lastuse(mfs):
    lu = {}
    for g, m in enumerate(mfs):
        if m[1] is not None: lu[m[1]] = g
    return lu

def barrier_ops(cls, g, pre, gaps, vmtags=None):
    w = ("", "wait", dict(vmn=16, dsn=0) if vmtags is None else dict(vm=vmtags, dsn=0))
    if cls == 0: pre[g] = [w, "s_barrier"]
    else:
        pre[g] = [w]; gaps[g].insert(0, "s_barrier")

def is_vm(o): return not isinstance(o, str) and o[1] == "vm"
def slot(A, p, cls, tag, zero=False, tail=(), groups=None, vmtags=None, after_bar=()):
    D = O.D; even = (p & 1) == 0; buf = p & 1; t_ = p >> 1
    A.c(f"---- slot {tag} pos={p} cls={cls}")
    kr = k_reads(((p + 1) >> 1) & 3, (p + 1) & 1)
    vq = v_reads(t_ & 3, p & 1)
    pvm = pv_mf(buf ^ 1, zero); mfs = pvm + qk_mf(buf ^ 1)
    n = len(mfs); npv = len(pvm)
    gaps = {g: [] for g in range(n)}; pre = {}
    seq = [(buf, e) for e in range(D, 32)] + [(buf ^ 1, e) for e in range(D)]
    eg = [2 * i for i in range(32 - D)] + [n - 64 + 2 * i for i in range(32 - D, 32)]
    for g, (b, e) in zip(eg, seq): gaps[g].append(ex(b, e))
    free = [g for g in range(n) if g not in eg]
    cvg = {g + 1: cv(b, e >> 1) for g, (b, e) in zip(eg, seq) if e & 1}
    for g, t in zip(free[:8], kr): gaps[g].append(t)
    lu = lastuse(pvm)
    pre[0] = [("", "wait", dict(dsn=0))]
    if O.trace and groups is None:
        pre[0] += ["s_mov_b64 exec, s[52:53]", "v_mov_b32 v0, s50", "s_mov_b64 exec, -1", "s_lshl_b64 s[52:53], s[52:53], 1"]
        gaps[n - 3].append("s_memrealtime s[50:51]")
    if groups is None:
        kg = dma_k(t_ & 3, "KV"); vg = dma_v((t_ + 3) & 3, "KV")
        if even: flat = [kg[0]] + kg[1] + [vg[0], kg[2]] + (vg[1] + [vg[2]] if O.burst == 1 else [])
        else: flat = vg[1] + [vg[2]] if O.burst == 2 else []
    else:
        flat = [o for grp in groups for o in grp]
    dm = [o for o in flat if is_vm(o)]
    bar = O.bar if even else 15
    if even:
        barrier_ops(cls, bar, pre, gaps, vmtags)
        if after_bar: pre[bar + 1] = list(after_bar)
    rest = [g for g in free if g > bar]
    dg = []; k = 0
    while dm or vq:
        g = rest.pop(0)
        vok = vq and lu[vq[0][2][1]] <= g
        if dm and k % O.dper == 0 and g in cvg and vok: gaps[g].append(vq.pop(0)); continue
        if dm and (k % O.dper == 0 or not vok) and g not in cvg: gaps[g].append(dm.pop(0)); dg.append(g)
        elif vok: gaps[g].append(vq.pop(0))
        elif dm: gaps[g].append(dm.pop(0)); dg.append(g)
        k += 1
    small = []
    nv = 0
    for o in flat:
        if is_vm(o): nv += 1; continue
        lo = dg[nv - 1] if nv else 16
        hi = n - 1 if ("0x4000" in o or nv == len(dg)) else dg[nv] - 1
        small.append((o, lo, hi))
    if not even: small.append((("", "wait", dict(ds=[o[2] for o in kr])), 24, npv - 1))
    for g, o in cvg.items(): gaps[g].append(o)
    def used(g): return sum(4 if (not isinstance(o, str) and o[1] == "wait") else cost(o) for o in gaps[g]) + 4 * len(pre.get(g + 1, []))
    prev = (None, 0)
    for o, lo, hi in small:
        key = (lo, hi)
        if prev[0] == key: lo = prev[1]
        c = [g for g in range(lo, hi + 1) if used(g) <= 5]
        if not c: c = sorted(range(lo, hi + 1), key=used)
        gaps[c[0]].append(o); prev = (key, c[0])
    gaps[n - 1] += list(tail)
    interleave(A, [m[0] for m in mfs], gaps, pre=pre)

def max_chain(qb, buf, t0, t1, run=None):
    s = S(buf, qb, 0)
    st = [f"v_max3_f32 {vr(t0)}, {vr(s)}, {vr(s+1)}, {vr(s+2)}", f"v_max3_f32 {vr(t1)}, {vr(s+3)}, {vr(s+4)}, {vr(s+5)}",
          f"v_max3_f32 {vr(t0)}, {vr(t0)}, {vr(s+6)}, {vr(s+7)}"]
    if run is not None: return st + [f"v_max3_f32 {vr(run)}, {vr(run)}, {vr(t0)}, {vr(t1)}"]
    return st + [f"v_max_f32 {vr(t0)}, {vr(t0)}, {vr(t1)}"]
def xlane_max(t0, t1):
    return [f"v_mov_b32 {vr(t1)}, {vr(t0)}", "s_nop 1", f"v_permlane32_swap_b32 {vr(t0)}, {vr(t1)}", "s_nop 0", f"v_max_f32 {vr(t0)}, {vr(t0)}, {vr(t1)}",
            f"v_mov_b32 {vr(t1)}, {vr(t0)}", "s_nop 1", f"v_permlane16_swap_b32 {vr(t0)}, {vr(t1)}", "s_nop 0", f"v_max_f32 {vr(t0)}, {vr(t0)}, {vr(t1)}"]

def first_slot(A, cls):
    D = O.D
    A.c(f"---- first slot cls={cls}")
    for o in k_reads(0, 0, dst=aVF) + k_reads(0, 1): A.op(o)
    mfs = qk_mf(0, zero=True, kf=aVF) + qk_mf(1)
    gaps = {g: [] for g in range(64)}; pre = {}
    bar = 8
    barrier_ops(cls, bar, pre, gaps)
    kg = dma_k(0, "KV"); vg = dma_v(3, "KV")
    gaps[bar - 2].append(kg[0])
    dm = kg[1] + (vg[1] if O.burst == 1 else [])
    for i, o in enumerate(dm):
        gaps[bar + 1 + i].append(o)
        if i == 3: gaps[bar + 1 + i].append(vg[0])
    gaps[7].append(kg[2]) if False else None
    st = []
    tA = [vO + 2 * q for q in range(4)]
    for qb in range(4):
        t0, t1 = tA[qb], tA[qb] + 1
        ch = max_chain(qb, 0, t0, t1) + xlane_max(t0, t1)
        ch += [f"v_sub_f32 {vr(NEGM(qb)+r)}, 0, {vr(t0)}" for r in range(4)]
        ch += [f"v_sub_f32 {vr(S(0,qb,0)+r)}, {vr(S(0,qb,0)+r)}, {vr(t0)}" for r in range(8)]
        st.append([ch[0], 8 * qb + 7 + 8]); st += ch[1:]
    sm = []
    for e in range(32):
        sm.append(ex(0, e))
        if e >= 2 and not (e & 1): sm.append(cv(0, (e >> 1) - 1))
    sm += ["s_nop 0", cv(0, 15)]
    vq = v_reads(0, 0)
    for i, o in enumerate(vq): gaps[33 + i * 2 - (i // 8) * 0 if 33 + 2 * i < 64 else 63].append(o)
    post = [kg[2]] + ([vg[2]] if O.burst == 1 else [])
    nd = needs(mfs)
    nch = len(st) // 4
    m = [x[0] for x in mfs]
    def sub(d, lo, hi): return {g - lo: v for g, v in d.items() if lo <= g < hi}
    def shift(s, lo): return [[x[0], x[1] - lo] if isinstance(x, list) else x for x in s]
    segs = [(0, 32, st[:nch]), (32, 40, st[nch:2*nch]), (40, 48, st[2*nch:3*nch]), (48, 56, st[3*nch:]), (56, 64, [])]
    carry = []
    allst = st + post + sm
    pos = 0
    marks = {32: nch, 40: 2 * nch, 48: 3 * nch, 56: 4 * nch}
    for g in range(64):
        if g in marks:
            while pos < marks[g]:
                o = allst[pos][0] if isinstance(allst[pos], list) else allst[pos]
                A.op(o); pos += 1
            A("s_nop 1")
        for t in pre.get(g, []): A.op(t)
        if g in nd: A.wait(ds=nd[g])
        A(m[g])
        room = O.budget - sum(cost(o) for o in gaps[g])
        for o in gaps[g]: A.op(o)
        while pos < len(allst):
            o, at = allst[pos] if isinstance(allst[pos], list) else (allst[pos], 0)
            if at > g or room <= 0 or cost(o) > room + 1: break
            A.op(o); room -= cost(o); pos += 1
    while pos < len(allst):
        A.op(allst[pos]); pos += 1
    for e in range(D):
        A(ex(1, e))
        if e >= 2 and not (e & 1): A(cv(1, (e >> 1) - 1))
    A("s_nop 0"); A(cv(1, D // 2 - 1))
    A("s_nop 1")

def o_store(reg, qb, t, tag, so):
    return (f"buffer_store_dwordx4 {reg}, {vr(vOO)}, {sr(sO)}, s{so} offen offset:{t*1024}{' sc1' if O.st_sc1 else ''}", "vm", tag)
def epi_qb(qb, store):
    inv = vP + 2 * (qb & 1)
    st = [f"v_accvgpr_read_b32 {vr(inv+1)}, {ar(LA(qb))}", f"v_rcp_f32 {vr(inv)}, {vr(inv+1)}"]
    if O.chk: st += [f"v_cmp_nle_f32 vcc, {vr(inv+1)}, s{sTHR}"]
    st += [f"s_add_u32 s{sT}, s{sOOF}, {qb*131072}"]
    if O.chk: st += [f"s_or_b64 s[{sM}:{sM+1}], s[{sM}:{sM+1}], vcc"]
    for t in range(4):
        o = OA(2 * t, qb)
        st += [f"v_pk_mul_f32 {vr(o+2*i,2)}, {vr(o+2*i,2)}, {vr(inv,2)} op_sel_hi:[1,0]" for i in range(4)]
        d = vS + (qb * 4 + t) * 4
        st += [f"v_cvt_pk_bf16_f32 {vr(d+i)}, {vr(o+2*i)}, {vr(o+2*i+1)}" for i in range(4)]
        if store: st.append(o_store(vr(d, 4), qb, t, "ST", sT))
    return st

def last_slot(A, store, extra1=(), mid=None, extra2=()):
    D = O.D
    A.c("---- last slot + final PV + epilogue")
    pvm = pv_mf(0)
    gaps = {g: [] for g in range(36)}
    lu = lastuse(pvm)
    for i, o in enumerate(v_reads(3, 1)):
        g = min(35, lu[o[2][1]] + 1 + (i & 1)); gaps[g].append(o)
    sm = []
    for e in range(D, 32):
        sm.append(ex(1, e))
        if e > D and not (e & 1): sm.append(cv(1, (e >> 1) - 1))
    sm += ["s_nop 0", cv(1, 15), "s_nop 1"]
    ex_ = list(extra1)
    for g in range(0, 36):
        if ex_ and not gaps[g]: gaps[g] += ex_.pop(0)
    assert not ex_
    A(f"s_mov_b64 s[{sM}:{sM+1}], 0")
    interleave(A, [m[0] for m in pvm], gaps, stream=sm, need=needs(pvm))
    if mid: mid()
    fin = pv_mf(1, qbmajor=True)
    st = []
    for qb in range(4):
        e = epi_qb(qb, store)
        st.append([e[0], 9 * qb + 8 + 8]); st += e[1:]
        if qb == 3: st.insert(len(st) - len(e), "s_nop 7")
    gaps = {g: [] for g in range(36)}
    ex_ = list(extra2)
    for g in range(0, 36):
        if ex_ and (g < 16 or g % 2 == 0): gaps[g] += ex_.pop(0)
    assert not ex_
    interleave(A, [m[0] for m in fin], gaps, stream=st, need=needs(fin, group=8))

def fallback(A):
    A.label("L_fb")
    lane, g, i, r, ka, kb_, va, vd, t0, t1 = range(64, 74)
    run = 76
    A("s_waitcnt vmcnt(0) lgkmcnt(0)"); A("s_nop 7")
    A(f"v_mbcnt_lo_u32_b32 {vr(lane)}, -1, 0"); A(f"v_mbcnt_hi_u32_b32 {vr(lane)}, -1, {vr(lane)}")
    A(f"v_lshrrev_b32 {vr(g)}, 4, {vr(lane)}"); A(f"v_and_b32 {vr(i)}, 15, {vr(lane)}")
    A(f"v_and_b32 {vr(t0)}, 1, {vr(g)}"); A(f"v_lshlrev_b32 {vr(t0)}, 1, {vr(t0)}"); A(f"v_lshrrev_b32 {vr(t1)}, 1, {vr(g)}")
    A(f"v_or_b32 {vr(t0)}, {vr(t0)}, {vr(t1)}"); A(f"v_lshlrev_b32 {vr(t0)}, 4, {vr(t0)}")
    A(f"v_lshl_add_u32 {vr(ka)}, {vr(i)}, 8, {vr(t0)}"); A(f"v_add_u32 {vr(kb_)}, 4096, {vr(ka)}")
    A(f"v_lshlrev_b32 {vr(vd)}, 4, {vr(lane)}")
    A(f"s_lshl_b32 s{sT3}, s{sWAVE}, 13"); A(f"s_add_u32 s{sT3}, s{sT3}, {FBBASE}")
    if O.fuse: A(f"s_cmp_eq_u32 s{sUNIT}, 0"); A(f"s_cselect_b32 s{sT3}, s{sT3}, s{sWM+3}")
    A(f"v_lshrrev_b32 {vr(r)}, 2, {vr(i)}"); A(f"v_lshl_add_u32 {vr(t0)}, {vr(g)}, 2, {vr(r)}"); A(f"v_lshlrev_b32 {vr(t0)}, 8, {vr(t0)}")
    A(f"v_and_b32 {vr(t1)}, 3, {vr(i)}"); A(f"v_lshl_add_u32 {vr(t0)}, {vr(t1)}, 3, {vr(t0)}"); A(f"v_add_u32 {vr(va)}, s{sT3}, {vr(t0)}")
    def kload():
        for kb in range(2):
            for s in range(4):
                A(f"buffer_load_dwordx4 {ar(aKF+(kb*4+s)*4,4)}, {vr(kb_ if kb else ka)}, {sr(sK)}, s{sT} offen offset:{s*64}")
    for q in range(4): A(f"v_mov_b32 {vr(run+q)}, 0xff800000")
    A(f"s_lshl_b32 s{sT}, s{sUNIT}, 18"); A(f"s_add_u32 s{sT2}, s{sT}, 0x40000")
    A.label("L_fb1")
    kload(); A("s_waitcnt vmcnt(0)")
    for m in qk_mf(0, zero=True): A(m[0])
    A("s_nop 7")
    for q in range(4):
        for o in max_chain(q, 0, t0, t1, run=run + q): A(o)
    A(f"s_add_u32 s{sT}, s{sT}, 0x2000"); A(f"s_cmp_lt_u32 s{sT}, s{sT2}"); A("s_cbranch_scc1 L_fb1")
    for q in range(4):
        for o in xlane_max(run + q, t1): A(o)
        for rr in range(4): A(f"v_sub_f32 {vr(NEGM(q)+rr)}, 0, {vr(run+q)}")
    for k in range(128): A(f"v_mov_b32 {vr(vO+k)}, 0")
    for k in range(16): A(f"v_accvgpr_write_b32 {ar(aL+k)}, 0")
    A(f"s_lshl_b32 s{sT}, s{sUNIT}, 18")
    A.label("L_fb2")
    kload()
    for hf in range(2):
        A(f"s_add_u32 m0, s{sT3}, {hf*4096}"); A(f"s_add_u32 s3, s{sT}, {hf*4096}")
        for p in range(4): A(f"buffer_load_dwordx4 {vr(vd)}, {sr(sV)}, s3 offen offset:{p*1024} lds")
    A("s_waitcnt vmcnt(0)")
    for db in range(8):
        for jh in range(2): A(f"ds_read_b64_tr_b16 {ar(aVF+db*4+2*jh,2)}, {vr(va)} offset:{db*32+jh*4096}")
    for m in qk_mf(0): A(m[0])
    A("s_nop 7")
    for e in range(32): A(ex(0, e))
    A("s_nop 0")
    for k in range(16): A(cv(0, k))
    A("s_waitcnt lgkmcnt(0)"); A("s_nop 1")
    for m in pv_mf(0): A(m[0])
    A(f"s_add_u32 s{sT}, s{sT}, 0x2000"); A(f"s_cmp_lt_u32 s{sT}, s{sT2}"); A("s_cbranch_scc1 L_fb2")
    A("s_nop 7")
    for qb in range(4):
        for o in epi_qb(qb, False): A(o)
    if O.fuse: A(f"s_cmp_eq_u32 s{sUNIT}, 0"); A("s_cbranch_scc1 L_fbret0")
    for qb in range(4):
        A(f"s_add_u32 s{sT}, s{sOOF}, {qb*131072}")
        for t in range(4): A(o_store(vr(vS + (qb * 4 + t) * 4, 4), qb, t, "ST", sT)[0])
    if not O.fuse: A(f"s_cmp_eq_u32 s{sUNIT}, 0"); A("s_cbranch_scc1 L_fbret0")
    if O.fuse: oproj_setup(A)
    A("s_branch L_fbret1")

def srd(A, d, lo, hi, off, size):
    A(f"s_add_u32 s{d}, s{lo}, {off}"); A(f"s_addc_u32 s{d+1}, s{hi}, 0"); A(f"s_and_b32 s{d+1}, s{d+1}, 0xffff")
    A(f"s_mov_b32 s{d+2}, {size}"); A(f"s_mov_b32 s{d+3}, 0x20000")

def one_lane(A, val, text, tag):
    A(f"v_mov_b32 v0, {val}"); A("s_mov_b64 exec, 1")
    A.op((text, "vm", tag))
    A("s_mov_b64 exec, -1")
def flag_ops(val, name):
    return [f"s_cmp_lg_u32 s{sWAVE}, 0", f"s_cbranch_scc1 L_np_{name}", f"v_mov_b32 v0, {val}", "s_mov_b64 exec, 1",
            f"buffer_store_byte v0, off, {sr(sCNT)}, s{sGI} sc1", "s_mov_b64 exec, -1", f"L_np_{name}:"]
def poll_text(): return f"buffer_load_dword v0, {vr(vTMP)}, {sr(sCNT)}, 0 offen sc1"
def poll_ops(name): return [f"s_cmp_lg_u32 s{sWAVE}, 0", f"s_cbranch_scc1 L_np_{name}", (poll_text(), "mark", name), f"L_np_{name}:"]
spins = []
def poll_test(A, mask, own):
    A(f"v_or_b32 v0, v0, {vr(own)}"); A(f"v_and_b32 v0, {hex(mask)}, v0"); A(f"v_cmp_ne_u32 vcc, {hex(mask)}, v0")
def poll_check(A, mask, name, own, mark):
    A(f"s_cmp_lg_u32 s{sWAVE}, 0"); A(f"s_cbranch_scc1 L_spun_{name}")
    A(f"s_waitcnt vmcnt({min(63, A.nvm - A.mark[mark])})")
    poll_test(A, mask, own); A(f"s_cbranch_vccnz L_spin_{name}")
    A.label(f"L_spun_{name}")
    spins.append((mask, name, own))
def emit_spins(A):
    for mask, name, own in spins:
        A.label(f"L_spin_{name}")
        A("s_mov_b32 s3, 0x40000")
        A.label(f"L_spinl_{name}")
        A(poll_text()); A("s_waitcnt vmcnt(0)")
        poll_test(A, mask, own); A(f"s_cbranch_vccz L_spun_{name}")
        A("s_sub_u32 s3, s3, 1"); A("s_cmp_lg_u32 s3, 0"); A(f"s_cbranch_scc1 L_spinl_{name}")
        A(f"s_branch L_spun_{name}")

PIECE = [[13, 14, 15, 0], [1, 2, 8, 9], [3, 10, 4, 5], [6, 7, 11, 12]]
X_OFF = 40 << 20
aWD = 212
vOQ, vWD, vOWN, vOWX = 16, 18, 28, 29
sWB, sR13, sWM, sWT = sWQW, sXW, 92, 84
def slab_c(j): return ((j & 7) << 13) | ((j >> 3) << 12)
def slab_o(j): return slab_c(j & 1) if O.ofake else slab_c(j)
def w_dma(j, hf, early=False):
    jw = j & 1 if O.wfake else j
    r = [[f"s_add_u32 s{sT2}, s{sWT+(jw&7)}, {(jw>>3)*163840}", f"s_add_u32 m0, s{sWM+(j&3)}, {hf*4096}"]]
    for p in range(5):
        v = vWD + hf * 5 + p
        if early:
            v = vOKV
            r[-1].append(f"v_accvgpr_read_b32 {vr(v)}, {ar(aWD+hf*5+p)}")
        if p == 4: r[-1].append(f"s_add_u32 m0, s{sWM+(j&3)}, 8192")
        r.append([(f"buffer_load_dwordx4 {vr(v)}, {sr(sW)}, s{sT2} offen offset:{(p if p < 4 else hf)*1024}{['', ' sc1', ' nt', ' sc0 sc1', ' sc0'][O.wofl]} lds", "vm", ("W", j))])
    return r
OPH = [2, 3, 7, 0, 1, 4, 5, 6]
def OF(j, kk, qq): return OPH[j & 7] * 32 + (kk * 2 + qq) * 4
def o_ld(j):
    r = [[f"s_xor_b32 s4, s{sR13}, {slab_o(j)}"]]
    for kk in range(4):
        for qq in range(2):
            r.append([(f"buffer_load_dwordx4 {ar(OF(j,kk,qq),4)}, {vr(vOQ+qq)}, {sr(sX)}, s4 offen offset:{kk*1024}{SC1()}", "vm", ("O", j))])
    r[1] = r[0] + r[1]
    return r[1:]
def mbox(op, reg, so, tag):
    r = [[(f"buffer_{op}_dwordx4 {reg(t)}, {vr(vOO)}, {sr(sO)}, s{so if t < 4 else sT} offen offset:{(t&3)*1024} sc1", "vm", tag)] for t in range(5)]
    r[3].append(f"s_add_u32 s{sT}, s{so}, 4096")
    return r
def oproj_early(A, tb):
    lane, t0, t1, t2 = range(tb, tb + 4)
    A(f"s_bfe_u32 s3, s7, 0x10002"); A(f"s_lshr_b32 s4, s7, 3")
    A(f"s_lshr_b32 s{sT}, s{sGI}, 4"); A(f"s_lshl_b32 s{sT}, s{sT}, 22")
    A(f"s_lshl_b32 s{sT2}, s3, 20"); A(f"s_add_u32 s{sT}, s{sT}, s{sT2}"); A(f"s_lshl_b32 s{sT2}, s4, 16"); A(f"s_add_u32 s{sT}, s{sT}, s{sT2}")
    srd(A, sX, sWS, sWS + 1, f"s{sT}", "0xf0000")
    A(f"s_mov_b64 s[{sW}:{sW+1}], s[{sWOI}:{sWOI+1}]"); A(f"s_mov_b32 s{sW+2}, 5242880")
    A(f"s_lshl_b32 s{sT}, s4, 6"); A(f"s_add_u32 s{sT}, s{sT}, s{sWAVE}"); A(f"s_mul_i32 s{sWB}, s{sT}, 40960")
    A(f"s_and_b32 s{sT}, s7, 3"); A(f"s_mul_i32 s{sT}, s{sT}, {256 if O.walign else 320}"); A(f"s_add_u32 s{sWB}, s{sWB}, s{sT}")
    if O.own1: A(f"s_and_b32 s{sR13}, s7, 7"); A(f"s_lshl_b32 s{sR13}, s{sR13}, 13")
    else: A(f"s_mov_b32 s{sR13}, 0")
    for j in range(8):
        A(f"s_xor_b32 s{sT}, s{sR13}, {slab_c(j)}"); A(f"s_mul_i32 s{sT}, s{sT}, 40"); A(f"s_add_u32 s{sWT+j}, s{sT}, s{sWB}")
    A(f"s_lshl_b32 s{sT}, s{sWAVE}, 2")
    for sl in range(4):
        A(f"s_lshr_b32 s{sT2}, {hex(sum(PIECE[sl][w] << (4 * w) for w in range(4)))}, s{sT}"); A(f"s_and_b32 s{sT2}, s{sT2}, 15")
        A(f"s_mul_i32 s{sWM+sl}, s{sT2}, 10240")
    A(f"v_bfe_u32 {vr(lane)}, {vr(vOO)}, 4, 6")
    A(f"s_and_b32 s3, s7, 1"); A(f"s_xor_b32 s4, s4, 1")
    A(f"v_lshrrev_b32 {vr(t0)}, 3, {vr(lane)}"); A(f"v_mul_u32_u24 {vr(t0)}, 1280, {vr(t0)}")
    A(f"v_lshrrev_b32 {vr(t1)}, 3, {vr(lane)}"); A(f"v_and_b32 {vr(t1)}, 6, {vr(t1)}"); A(f"v_and_b32 {vr(t2)}, 7, {vr(lane)}"); A(f"v_xor_b32 {vr(t1)}, {vr(t1)}, {vr(t2)}")
    A(f"v_lshl_add_u32 {vr(t0)}, {vr(t1)}, 4, {vr(t0)}")
    for h in range(2):
        A(f"s_xor_b32 s{sT}, s4, {h}"); A(f"s_lshl_b32 s{sT}, s{sT}, 1"); A(f"s_add_u32 s{sT}, s{sT}, s3"); A(f"s_lshl_b32 s{sT}, s{sT}, 6")
        for rb in range(4):
            A(f"v_add_u32 {vr(t1)}, s{sT}, {vr(t0)}"); A(f"v_accvgpr_write_b32 {ar(aWD+h*5+rb)}, {vr(t1)}")
            if rb < 3: A(f"s_add_u32 s{sT}, s{sT}, 9216")
    A(f"v_lshrrev_b32 {vr(t0)}, 2, {vr(lane)}"); A(f"v_mul_u32_u24 {vr(t0)}, 1280, {vr(t0)}")
    A(f"v_bfe_u32 {vr(t1)}, {vr(lane)}, 4, 1"); A(f"v_xor_b32 {vr(t1)}, s4, {vr(t1)}"); A(f"v_lshlrev_b32 {vr(t1)}, 1, {vr(t1)}")
    A(f"v_and_b32 {vr(t2)}, 3, {vr(lane)}"); A(f"v_xor_b32 {vr(t1)}, {vr(t1)}, {vr(t2)}"); A(f"v_lshl_add_u32 {vr(t0)}, {vr(t1)}, 4, {vr(t0)}")
    A(f"s_xor_b32 s3, s3, 1"); A(f"s_lshl_b32 s3, s3, 8"); A(f"v_add_u32 {vr(t0)}, s3, {vr(t0)}"); A(f"v_add_u32 {vr(t1)}, {20480-1024}, {vr(t0)}")
    A(f"v_accvgpr_write_b32 {ar(aWD+4)}, {vr(t0)}"); A(f"v_accvgpr_write_b32 {ar(aWD+9)}, {vr(t1)}")
    A(f"s_and_b32 s{sT}, s{sGI}, 0xf0"); A(f"v_and_b32 {vr(t0)}, 3, {vr(lane)}"); A(f"v_lshlrev_b32 {vr(t0)}, 2, {vr(t0)}"); A(f"v_add_u32 {vr(vTMP)}, s{sT}, {vr(t0)}")
def oproj_setup(A):
    A(f"s_lshl_b32 s{sT}, s{sWAVE}, 18"); A(f"v_and_b32 {vr(vOQ)}, 0x3ff, {vr(vOO)}")
    A(f"v_add_u32 {vr(vOQ)}, s{sT}, {vr(vOQ)}"); A(f"v_add_u32 {vr(vOQ+1)}, 0x20000, {vr(vOQ)}")
    for p in range(10): A(f"v_accvgpr_read_b32 {vr(vWD+p)}, {ar(aWD+p)}")
    A(f"s_and_b32 s{sT}, s{sGI}, 0xfc"); A(f"s_and_b32 s3, s{sGI}, 3"); A(f"s_lshl_b32 s3, s3, 3"); A(f"s_lshl_b32 s3, 0xff, s3")
    A(f"v_cmp_eq_u32 vcc, s{sT}, {vr(vTMP)}"); A(f"v_mov_b32 {vr(vOWN)}, s3"); A(f"s_xor_b32 s{sT}, s{sT}, 8"); A(f"v_cndmask_b32 {vr(vOWN)}, 0, {vr(vOWN)}, vcc")
    A(f"v_cmp_eq_u32 vcc, s{sT}, {vr(vTMP)}"); A(f"s_not_b32 s3, s3"); A(f"v_mov_b32 {vr(vOWX)}, s3"); A(f"v_cndmask_b32 {vr(vOWX)}, -1, {vr(vOWX)}, vcc")
    A(f"v_xor_b32 {vr(31)}, s{sGI}, {vr(vTMP)}"); A(f"v_bfe_i32 {vr(31)}, {vr(31)}, 3, 1")
    A(f"v_and_or_b32 {vr(vOWX)}, {vr(vOWX)}, {vr(31)}, {vr(vOWN)}"); A(f"v_or_b32 {vr(vOWN)}, {vr(vOWN)}, {vr(31)}")

def oproj(A):
    vWR = 200
    vACC, vWF = 40, 120
    def ACC(h, qq, nb): return vACC + h * 40 + (qq * 5 + nb) * 4
    def WF(par, f): return vWF + par * 40 + f * 4
    A.c("---- O projection")
    lane, t0, t1 = 38, 39, 37
    A(f"v_bfe_u32 {vr(lane)}, {vr(vOO)}, 4, 6"); A(f"v_lshrrev_b32 {vr(t0)}, 5, {vr(lane)}"); A(f"v_lshlrev_b32 {vr(t0)}, 10, {vr(t0)}")
    A(f"v_bfe_u32 {vr(t1)}, {vr(lane)}, 2, 3"); A(f"v_lshl_add_u32 {vr(t0)}, {vr(t1)}, 7, {vr(t0)}")
    A(f"v_and_b32 {vr(t1)}, 3, {vr(lane)}"); A(f"v_lshl_add_u32 {vr(t0)}, {vr(t1)}, 3, {vr(t0)}")
    A(f"v_bfe_u32 {vr(t1)}, {vr(lane)}, 3, 2"); A(f"v_lshl_add_u32 {vr(vWR)}, {vr(t1)}, 5, {vr(t0)}")
    for nb in range(1, 4): A(f"v_xor_b32 {vr(vWR+3*nb)}, {nb*32}, {vr(vWR)}")
    A(f"v_lshrrev_b32 {vr(t0)}, 2, {vr(lane)}"); A(f"v_lshlrev_b32 {vr(t0)}, 6, {vr(t0)}"); A(f"v_and_b32 {vr(t1)}, 3, {vr(lane)}"); A(f"v_lshl_add_u32 {vr(t0)}, {vr(t1)}, 3, {vr(t0)}")
    A(f"v_bfe_u32 {vr(t1)}, {vr(lane)}, 4, 1"); A(f"v_lshl_add_u32 {vr(vWR+12)}, {vr(t1)}, 5, {vr(t0)}"); A(f"v_xor_b32 {vr(vWR+15)}, 32, {vr(vWR+12)}")
    for q in range(6):
        for w in (2, 1): A(f"v_add_u32 {vr(vWR+3*q+w)}, {51200*w}, {vr(vWR+3*q)}")
    nd_ = O.ndef; nf = 16 - nd_
    steps = [(j, kk, (0, 1)) for j in range(nf) for kk in range(4)] + [(j, kk, (h,)) for h in range(2) for j in range(nf, 16) for kk in range(4)]
    def w_rd(i):
        j, kk, hs = steps[i]
        pc = PIECE[j & 3][kk]; w = min(pc // 5, 2)
        return [(f"ds_read_b64_tr_b16 {vr(WF(i&1,f*5+nb)+2*jh,2)}, {vr(vWR+3*(nb if nb < 4 else 4+h)+w)} offset:{pc*10240-w*51200+(h*4096+jh*2048 if nb < 4 else 8192+jh*1024)}", "ds", ("WF", i & 1, f * 5 + nb))
                for f, h in enumerate(hs) for nb in range(5) for jh in range(2) if not (O.lfake and f == 1)]
    for ops in o_ld(3):
        for o in ops: A.op(o)
    A.wait(vm=[("W", 0), ("O", 0)]); A("s_barrier")
    for o in w_rd(0): A.op(o)
    mf = []; need = {}; gaps = {}; pre = {}; start = []; bars = {}
    for i, (j, kk, hs) in enumerate(steps):
        start.append(len(mf))
        for f, h in enumerate(hs):
            for nb in range(5):
                if nb in (0, 2): need[len(mf)] = [("WF", i & 1, f * 5 + q) for q in ((0, 1) if nb == 0 else (2, 3, 4))]
                for qq in range(2):
                    c = "0" if (j == 0 and kk == 0) else vr(ACC(h, qq, nb), 4)
                    mf.append(f"{MF} {vr(ACC(h,qq,nb),4)}, {vr(WF(i&1,f*5+nb),4)}, {ar(OF(j,kk,qq),4)}, {c}")
    n = len(mf); start.append(n)
    gaps = {g: [] for g in range(n)}
    iB = len(steps) - 4 * nd_; gB = start[iB]
    for i, (j, kk, hs) in enumerate(steps):
        g0 = start[i]; ln = start[i + 1] - g0; lo = 0
        if kk == 3 and i < iB and j + 1 < 16:
            lo = O.obar if ln == 20 else 2
            bars[j] = g0 + lo
            p = [("", "wait", dict(vm=[("W", j + 1), ("O", j + 1)] + (["ST"] if j == O.pub2 else []), dsn=0 if j + 4 < 16 else None))]
            if j == 4: p.append(("", "call", lambda A_: poll_check(A_, 0x03030303, "u2", vOWN, "p2")))
            p.append("s_barrier")
            if j == O.pub2: p += flag_ops(3, "f2")
            if j == 3: p += poll_ops("p2")
            pre[g0 + lo] = p
        if i + 1 < len(steps):
            rd = w_rd(i + 1); np_ = len(rd) // 2
            stp = 2 if lo + 2 * np_ <= ln + 1 else 1.5
            if O.lfake and ln == 20:
                for q in range(len(rd)): gaps[g0 + lo + int(q * (2 if lo == 0 else 1.5))] += rd[q:q + 1]
            else:
                for q in range(np_): gaps[g0 + lo + int(q * stp)] += rd[2 * q:2 * q + 2]
    def spread(mem, g, sp, dense=False, dry=False):
        for ops in mem:
            while gaps[g] or g + 1 in pre or (g + 1 in need and not dense): g += 1
            if not dry: gaps[g] += ops
            g += sp if any(is_vm(o) for o in ops) else 1
        return g
    spread(w_dma(3, 0) + w_dma(3, 1), 1, 2)
    for j in range(12):
        mem = w_dma(j + 4, 0) + ([] if O.whalf else w_dma(j + 4, 1)) + o_ld(j + 4)
        dn = spread(mem, bars[j], O.osp, dry=True) > bars[j + 1]
        assert spread(mem, bars[j], O.osp, dn) <= bars[j + 1], j
    vXS, vXR = 220, vACC
    xs = []
    st = mbox("store", lambda t: vr(vXS + 4 * t, 4), sXO, "XS")
    for t in (0, 2, 3, 1, 4):
        xs += [[f"v_cvt_pk_bf16_f32 {vr(vXS+4*t+q)}, {vr(vACC+8*t+2*q)}, {vr(vACC+8*t+2*q+1)}" for q in range(2 * u, 2 * u + 2)] for u in range(2)]
        if t == 4: xs.append([st[3][1]])
        xs.append(st[t][:1])
    e = spread(xs, gB + 1, 1, True)
    xl = mbox("load", lambda t: vr(vXR + 4 * t, 4), sXI, "XL")
    assert e < n - O.xld
    spread(xl, n - O.xld, 1, True)
    for j in (4, 9): pre[start[4 * j]] = pre.get(start[4 * j], []) + [("", "call", lambda A_, j=j: stamp(A_, f"slab{j}", 2))]
    for j in (1, 4, 6, 12): pre[start[4 * j]] = pre.get(start[4 * j], []) + [("", "call", lambda A_, j=j: stamp(A_, f"slab{j}", 6))]
    pre[gB] = pre.get(gB, []) + [("", "call", lambda A_: stamp(A_, "phaseB", 5))]
    interleave(A, mf, gaps, pre=pre, need=need)
    stamp(A, "oproj loop done"); stamp(A, "oloop", 5); stamp(A, "oloop", 6)
    A(f"v_and_b32 {vr(t0)}, 15, {vr(lane)}"); A(f"v_mul_u32_u24 {vr(t0)}, 2560, {vr(t0)}"); A(f"v_lshrrev_b32 {vr(t1)}, 4, {vr(lane)}")
    A(f"s_mul_i32 s{sT}, s{sWAVE}, {32*2560}"); A(f"s_and_b32 s3, s7, 1"); A(f"s_lshr_b32 s4, s7, 3")
    A(f"s_lshl_b32 s{sT2}, s4, 1"); A(f"s_add_u32 s{sT2}, s{sT2}, s3"); A(f"s_lshl_b32 s{sT2}, s{sT2}, 6"); A(f"s_add_u32 s{sT2}, s{sT2}, s{sT}")
    A(f"s_xor_b32 s3, s3, 1"); A(f"s_lshl_b32 s3, s3, 3"); A(f"s_add_u32 s3, s3, s4"); A(f"s_lshl_b32 s3, s3, 5"); A(f"s_add_u32 s3, s3, s{sT}")
    A(f"v_lshl_add_u32 {vr(vOQ+1)}, {vr(t1)}, 3, {vr(t0)}"); A(f"v_add_u32 {vr(vOQ+1)}, s3, {vr(vOQ+1)}")
    A(f"v_bfe_u32 {vr(t1)}, {vr(lane)}, 4, 1"); A(f"v_lshl_add_u32 {vr(t0)}, {vr(t1)}, 5, {vr(t0)}")
    A(f"v_lshrrev_b32 {vr(t1)}, 5, {vr(lane)}"); A(f"v_lshl_add_u32 {vr(vOQ)}, {vr(t1)}, 4, {vr(t0)}"); A(f"v_add_u32 {vr(vOQ)}, s{sT2}, {vr(vOQ)}")
    def xtest():
        A(f"v_max3_u32 {vr(t0)}, {vr(vXR)}, {vr(vXR+1)}, {vr(vXR+2)}"); A(f"v_max3_u32 {vr(t1)}, {vr(vXR+3)}, {vr(vXR+4)}, {vr(vXR+5)}")
        for q in range(6, 20, 2): A(f"v_max3_u32 {vr(t0 if q & 2 else t1)}, {vr(t0 if q & 2 else t1)}, {vr(vXR+q)}, {vr(vXR+q+1)}")
        A(f"v_max_u32 {vr(t0)}, {vr(t0)}, {vr(t1)}"); A(f"v_cmp_eq_u32 vcc, -1, {vr(t0)}")
    A("s_mov_b32 s4, 0x40000")
    A.label("L_xpoll")
    A("s_waitcnt vmcnt(0)"); A.vm = []
    xtest(); A("s_cbranch_vccz L_xdone")
    for ops in xl:
        for o in ops: A(o if isinstance(o, str) else o[0])
    A("s_sub_u32 s4, s4, 1"); A("s_cmp_lg_u32 s4, 0"); A("s_cbranch_scc1 L_xpoll")
    A("s_waitcnt vmcnt(0)")
    A.label("L_xdone")
    stamp(A, "xflag", 5)
    A(f"s_mov_b32 s{sT}, {16*2560}"); A("s_movk_i32 s3, 0x3f80"); A("s_mov_b32 s4, 0x3f800000")
    for qq in range(2):
        d = vWF + qq * 10; ac = ACC(1, qq, 0)
        for i in range(20): A(f"v_dot2_f32_bf16 {vr(ac+i)}, {vr(vXR+qq*10+i//2)}, s{3+(i&1)}, {vr(ac+i)}")
        for i in range(10): A(f"v_cvt_pk_bf16_f32 {vr(d+i)}, {vr(ac+2*i)}, {vr(ac+2*i+1)}")
        so = f"s{sT}" if qq else "0"
        A("s_nop 0")
        for P_ in range(2):
            for q in range(2): A(f"v_permlane16_swap_b32 {vr(d+4*P_+q)}, {vr(d+4*P_+2+q)}")
        A.op((f"buffer_store_dwordx2 {vr(d+8,2)}, {vr(vOQ+1)}, {sr(sOUT)}, {so} offen", "vm", "OUT"))
        A.op((f"buffer_store_dwordx4 {vr(d,4)}, {vr(vOQ)}, {sr(sOUT)}, {so} offen", "vm", "OUT"))
        A.op((f"buffer_store_dwordx4 {vr(d+4,4)}, {vr(vOQ)}, {sr(sOUT)}, {so} offen offset:64", "vm", "OUT"))

def gen_kernel(k):
    A = Asm()
    A("s_cmp_ge_u32 s2, 256"); A("s_cbranch_scc1 L_end")
    stamp(A, "t0")
    if O.cpre:
        A("s_getpc_b64 s[84:85]"); A("s_and_b32 s84, s84, 0xffffff00"); A("s_and_b32 s85, s85, 0xffff")
        A("s_mov_b32 s86, L_codeend-attn_kernel"); A("s_mov_b32 s87, 0x20000")
        A("s_lshr_b32 s3, s2, 3"); A("s_lshl_b32 s3, s3, 12"); A("v_lshlrev_b32 v4, 4, v0")
        A.op(("buffer_load_dwordx4 v[252:255], v4, s[84:87], s3 offen", "vm", "CODE"))
        A("s_nop 4")
    A("s_load_dwordx16 s[64:79], s[0:1], 0")
    A("s_load_dwordx8 s[80:87], s[0:1], 64")
    A(f"s_load_dwordx2 s[{sWS}:{sWS+1}], s[0:1], 96")
    A("s_and_b32 s3, s2, 7"); A("s_lshr_b32 s4, s2, 3"); A("s_lshr_b32 s5, s3, 2")
    if O.map2:
        A("s_bfe_u32 s6, s3, 0x10001"); A("s_lshl_b32 s6, s6, 2"); A("s_lshr_b32 s7, s4, 3"); A("s_add_u32 s6, s6, s7")
        A("s_and_b32 s7, s3, 1"); A("s_lshl_b32 s7, s7, 3"); A("s_and_b32 s4, s4, 7"); A("s_add_u32 s7, s7, s4")
    else:
        A("s_and_b32 s6, s3, 3"); A("s_lshl_b32 s6, s6, 1"); A("s_lshr_b32 s7, s4, 4"); A("s_add_u32 s6, s6, s7")
        A("s_and_b32 s7, s4, 15")
    vAW, vOW, vOX, vAX = 16, 24, 28, 36
    lane, g, i, r, t0, t1, t2, t3, h = range(48, 57)
    A(f"v_lshrrev_b32 {vr(t0)}, 6, v0"); A(f"v_and_b32 {vr(lane)}, 63, v0"); A(f"v_readfirstlane_b32 s{sWAVE}, {vr(t0)}")
    A(f"v_lshrrev_b32 {vr(g)}, 4, {vr(lane)}"); A(f"v_and_b32 {vr(i)}, 15, {vr(lane)}"); A(f"v_lshrrev_b32 {vr(h)}, 5, {vr(lane)}")
    A(f"s_and_b32 s{sT2}, s{sWAVE}, 1"); A(f"s_lshl_b32 s{sT2}, s{sT2}, 3")
    A(f"s_lshl_b32 s{sT}, s{sWAVE}, 16")
    A(f"v_and_b32 {vr(t2)}, 31, {vr(lane)}"); A(f"v_xor_b32 {vr(t2)}, s{sT2}, {vr(t2)}")
    for p in range(2):
        A(f"v_add_u32 {vr(t0)}, {2*p}, {vr(h)}"); A(f"v_lshlrev_b32 {vr(t1)}, 1, {vr(t0)}"); A(f"v_xor_b32 {vr(t1)}, {vr(t1)}, {vr(t2)}")
        A(f"v_lshlrev_b32 {vr(t1)}, 4, {vr(t1)}"); A(f"v_lshl_add_u32 {vr(t1)}, {vr(t0)}, 13, {vr(t1)}")
        A(f"v_add_u32 {vr(vOW+p)}, s{sT}, {vr(t1)}")
        if p: A(f"v_subrev_u32 {vr(vOW+p)}, 1024, {vr(vOW+p)}")
        A(f"v_add_u32 {vr(vOW+p+2)}, {4*8192-2048}, {vr(vOW+p)}")
    A(f"s_mul_i32 s{sT}, s{sWAVE}, {64*1280}")
    A(f"v_lshrrev_b32 {vr(t0)}, 3, {vr(lane)}"); A(f"v_mul_u32_u24 {vr(t0)}, 1280, {vr(t0)}"); A(f"v_add_u32 {vr(t0)}, s{sT}, {vr(t0)}")
    A(f"v_and_b32 {vr(t1)}, 7, {vr(lane)}"); A(f"v_xor_b32 {vr(t1)}, {vr(t1)}, {vr(g)}")
    A(f"v_lshl_add_u32 {vr(vOX)}, {vr(t1)}, 4, {vr(t0)}"); A(f"v_xor_b32 {vr(t1)}, 4, {vr(t1)}"); A(f"v_lshl_add_u32 {vr(t0)}, {vr(t1)}, 4, {vr(t0)}")
    A(f"v_add_u32 {vr(vOX+1)}, {10240-1024}, {vr(t0)}")
    for p in range(2, 8): A(f"v_add_u32 {vr(vOX+p)}, {(p&~1)*10240 - ((p&3)&~1)*1024}, {vr(vOX+(p&1))}")
    A(f"s_lshl_b32 s{sKVW}, s{sWAVE}, 12"); A(f"s_add_u32 s{sVVW}, s{sKVW}, {VBASE}"); A(f"s_add_u32 s{sWQW}, s{sKVW}, {WQBASE}")
    A(f"s_lshl_b32 s{sXW}, s{sWAVE}, 13")
    A(f"s_lshl_b32 s4, s6, 4"); A(f"s_add_u32 s4, s4, s7")
    A(f"s_lshl_b32 s{sT}, s7, 9"); A(f"s_sub_u32 s{sW+2}, {640*8192}, s{sT}"); A(f"s_mov_b32 s{sW+3}, 0x20000")
    A(f"s_mul_i32 s{sT3}, s6, 327680"); A(f"s_mov_b32 s{sX+2}, 327680"); A(f"s_mov_b32 s{sX+3}, 0x20000")
    A("s_cmp_eq_u32 s5, 1")
    A("s_waitcnt lgkmcnt(0)")
    if O.stamps and O.stm == 1: A("s_memtime s[50:51]"); A("s_memrealtime s[98:99]"); nstamp[0] += 1; stamp_names.append("karg")
    for q in (3, 0, 1, 2, 4): A(f"s_cselect_b64 s[{64+2*q}:{65+2*q}], s[{74+2*q}:{75+2*q}], s[{64+2*q}:{65+2*q}]")
    A(f"s_add_u32 s{sW}, s70, s{sT}"); A(f"s_addc_u32 s{sW+1}, s71, 0"); A(f"s_and_b32 s{sW+1}, s{sW+1}, 0xffff")
    A(f"s_add_u32 s{sX}, s64, s{sT3}"); A(f"s_addc_u32 s{sX+1}, s65, 0"); A(f"s_and_b32 s{sX+1}, s{sX+1}, 0xffff")
    def AF(buf, nb): return buf * 64 + nb * 4
    def XR(G, ks, qb): return 128 + (G & 1) * 32 + (ks * 4 + qb) * 4
    def ACC(nb, qb): return vr(48 + (nb * 4 + qb) * 4, 4) if nb < 13 else ar(208 + ((nb - 13) * 4 + qb) * 4, 4)
    def wq_dma(kk):
        return [[f"s_add_u32 m0, s{sWQW}, {(kk&3)*16384}", f"s_mov_b32 s{sT2}, {kk*262144}"]] + \
               [[(f"buffer_load_dwordx4 {vr(vOW+p)}, {sr(sW)}, s{sT2} offen offset:{p*1024}{' nt' if O.w_nt else ''} lds", "vm", ("W", kk))] for p in range(4)]
    def x_dma(G):
        r = [[f"s_add_u32 m0, s{sXW}, {XB[G&1]}", f"s_movk_i32 s{sT2}, {G*128}"]]
        r += [[(f"buffer_load_dwordx4 {vr(vOX+p)}, {sr(sX)}, s{sT2} offen offset:{(p&3)*1024}{' nt' if O.x_nt else ''} lds", "vm", ("X", G))] for p in range(8)]
        r[4].append(f"s_add_u32 m0, s{sXW}, {XB[G&1]+4096}")
        return r
    def flat(groups):
        for grp in groups:
            for ops in grp:
                for o in ops: A.op(o)
    flat([wq_dma(0), x_dma(0), wq_dma(1), x_dma(1)])
    def kv_groups(kind, tile):
        su, pcs, po = dma_k(tile, (kind, tile)) if kind == "K" else dma_v(tile, (kind, tile))
        return [[su]] + [[p] for p in pcs[:3]] + [[pcs[3], po]]
    A(f"s_mov_b32 s{sWOI}, s72"); A(f"s_and_b32 s{sWOI+1}, s73, 0xffff")
    A(f"s_lshl_b32 s{sT}, s4, 19")
    srd(A, sK, 66, 67, f"s{sT}", "0x80000")
    srd(A, sV, 68, 69, f"s{sT}", "0x80000")
    A(f"s_lshl_b32 s{sGI}, s5, 3"); A(f"s_add_u32 s{sGI}, s{sGI}, s6"); A(f"s_lshl_b32 s{sT2}, s{sGI}, 22")
    srd(A, sO, sWS, sWS + 1, f"s{sT2}", 0x200000 + 16 * 20480)
    A(f"s_lshl_b32 s{sT}, s6, 1"); A(f"s_bfe_u32 s{sT2}, s7, 0x10002"); A(f"s_add_u32 s{sT}, s{sT}, s{sT2}"); A(f"s_mul_i32 s{sT}, s{sT}, {128*2560}")
    A(f"s_mul_i32 s{sT2}, s5, 1280"); A(f"s_add_u32 s{sT}, s{sT}, s{sT2}"); A(f"s_and_b32 s{sT2}, s7, 3"); A(f"s_mul_i32 s{sT2}, s{sT2}, 320")
    A(f"s_add_u32 s{sT}, s{sT}, s{sT2}")
    if O.stamps and O.stm == 1: A("s_waitcnt lgkmcnt(0)"); A("s_mov_b32 s66, s98"); A("s_mov_b32 s67, s99")
    srd(A, sOUT, 84, 85, f"s{sT}", 127 * 2560 + 320)
    srd(A, sCNT, 86, 87, 0, 256)
    A(f"s_lshl_b32 s{sGI}, s{sGI}, 4"); A(f"s_add_u32 s{sGI}, s{sGI}, s7")
    A(f"s_lshl_b32 s{sOOF}, s7, 13")
    A(f"s_mov_b32 s{sKOFF}, 0"); A(f"s_mov_b32 s{sVOFF}, 0"); A(f"s_mov_b32 s{sSTUB}, 99")
    A(f"s_mov_b32 s{sTHR}, {hex(f32bits(2.0**O.thr_log2 if not O.forcefb else -1.0))}")
    A(f"s_mov_b32 s{sSC}, {hex(f32bits(128**-0.5*math.log2(math.e)))}"); A(f"s_mov_b32 s{sSC+1}, s{sSC}")
    A(f"v_lshrrev_b32 {vr(r)}, 2, {vr(i)}")
    A(f"v_and_b32 {vr(t0)}, 1, {vr(g)}"); A(f"v_lshl_add_u32 {vr(t0)}, {vr(t0)}, 2, {vr(r)}")
    A(f"v_lshl_add_u32 {vr(t1)}, {vr(g)}, 3, {vr(r)}"); A(f"v_lshlrev_b32 {vr(t1)}, 9, {vr(t1)}")
    A(f"v_and_b32 {vr(t2)}, 3, {vr(i)}"); A(f"v_lshl_add_u32 {vr(t1)}, {vr(t2)}, 3, {vr(t1)}"); A(f"v_add_u32 {vr(t1)}, {WQBASE}, {vr(t1)}")
    for n3 in range(8):
        A(f"v_xor_b32 {vr(t3)}, {n3}, {vr(t0)}"); A(f"v_lshl_add_u32 {vr(vAW+n3)}, {vr(t3)}, 5, {vr(t1)}")
    A(f"v_lshrrev_b32 {vr(t0)}, 1, {vr(i)}"); A(f"v_xor_b32 {vr(t0)}, {vr(t0)}, {vr(g)}")
    A(f"v_lshlrev_b32 {vr(t1)}, 7, {vr(i)}"); A(f"v_add_u32 {vr(t1)}, s{sXW}, {vr(t1)}")
    A(f"v_lshl_add_u32 {vr(vAX)}, {vr(t0)}, 4, {vr(t1)}"); A(f"v_xor_b32 {vr(vAX+1)}, 64, {vr(vAX)}")
    A(f"v_lshl_add_u32 {vr(t1)}, {vr(r)}, 4, {vr(t2)}"); A(f"v_lshlrev_b32 {vr(t1)}, 8, {vr(t1)}")
    A(f"v_and_b32 {vr(t0)}, 1, {vr(r)}"); A(f"v_lshlrev_b32 {vr(t0)}, 3, {vr(t0)}"); A(f"v_lshl_add_u32 {vr(t0)}, {vr(t2)}, 1, {vr(t0)}")
    A(f"v_lshrrev_b32 {vr(t3)}, 3, {vr(i)}"); A(f"v_add_u32 {vr(t0)}, {vr(t0)}, {vr(t3)}")
    A(f"v_and_b32 {vr(t3)}, 1, {vr(g)}"); A(f"v_lshl_add_u32 {vr(t3)}, {vr(t3)}, 1, {vr(h)}"); A(f"v_xor_b32 {vr(t0)}, {vr(t0)}, {vr(t3)}")
    A(f"v_lshl_add_u32 {vr(vAK)}, {vr(t0)}, 4, {vr(t1)}")
    for s in range(1, 4): A(f"v_xor_b32 {vr(vAK+s)}, {s*64}, {vr(vAK)}")
    A(f"v_lshl_add_u32 {vr(t1)}, {vr(g)}, 4, {vr(r)}"); A(f"v_lshlrev_b32 {vr(t1)}, 8, {vr(t1)}")
    A(f"v_and_b32 {vr(t0)}, 1, {vr(i)}"); A(f"v_lshl_add_u32 {vr(t1)}, {vr(t0)}, 3, {vr(t1)}"); A(f"v_add_u32 {vr(t1)}, {VBASE}, {vr(t1)}")
    A(f"v_and_b32 {vr(t0)}, 1, {vr(g)}"); A(f"v_lshlrev_b32 {vr(t0)}, 3, {vr(t0)}"); A(f"v_lshl_add_u32 {vr(t0)}, {vr(r)}, 1, {vr(t0)}")
    A(f"v_add_u32 {vr(t0)}, {vr(t0)}, {vr(h)}"); A(f"v_bfe_u32 {vr(t3)}, {vr(i)}, 1, 1"); A(f"v_xor_b32 {vr(t0)}, {vr(t0)}, {vr(t3)}")
    A(f"v_lshl_add_u32 {vr(vAV)}, {vr(t0)}, 4, {vr(t1)}")
    for db in range(1, 8): A(f"v_xor_b32 {vr(vAV+db)}, {db*32}, {vr(vAV)}")
    A(f"s_and_b32 s{sT}, s{sWAVE}, 1"); A(f"s_lshl_b32 s{sT}, s{sT}, 3"); A(f"s_lshr_b32 s{sT2}, s{sWAVE}, 1"); A(f"s_add_u32 s{sT}, s{sT}, s{sT2}")
    A(f"v_lshlrev_b32 {vr(t0)}, 1, {vr(g)}"); A(f"v_add_u32 {vr(t0)}, s{sT}, {vr(t0)}"); A(f"v_xor_b32 {vr(t0)}, {vr(t0)}, {vr(i)}")
    A(f"v_lshlrev_b32 {vr(t0)}, 4, {vr(t0)}"); A(f"v_lshl_add_u32 {vr(t0)}, {vr(g)}, 8, {vr(t0)}"); A(f"v_add_u32 {vr(vOKV)}, s{sKVW}, {vr(t0)}")
    A(f"s_lshl_b32 s{sT}, s{sWAVE}, 19"); A(f"v_lshlrev_b32 {vr(t0)}, 4, {vr(lane)}"); A(f"v_add_u32 {vr(vOO)}, s{sT}, {vr(t0)}")
    if O.fuse:
        A(f"s_mul_i32 s{sT}, s{sWAVE}, {5120 - (1 << 19)}"); A(f"s_add_u32 s{sT}, s{sT}, 0x200000")
        A(f"s_mul_i32 s{sXI}, s7, 20480"); A(f"s_add_u32 s{sXI}, s{sXI}, s{sT}")
        A(f"s_xor_b32 s{sXO}, s7, 8"); A(f"s_mul_i32 s{sXO}, s{sXO}, 20480"); A(f"s_add_u32 s{sXO}, s{sXO}, s{sT}")
        for q in range(4): A(f"v_mov_b32 {vr(40+q)}, -1")
    if O.wopre >= 0:
        A(f"s_mov_b32 s{sWOI+2}, 5242880"); A(f"s_mov_b32 s{sWOI+3}, 0x20000")
        A(f"s_lshl_b32 s{sT}, s4, 2"); A(f"s_add_u32 s{sT}, s{sT}, s{sWAVE}"); A(f"s_mul_i32 s{sT}, s{sT}, 10240")
        A(f"v_lshlrev_b32 {vr(t0)}, 4, {vr(lane)}"); A(f"v_add_u32 {vr(vTMP)}, s{sT}, {vr(t0)}")
    if O.kv0 < 0: flat([kv_groups("K", 0), kv_groups("V", 0)])
    stamp(A, "setup done", 1)
    def wo_pre(i, kk):
        n = 10 // O.wopn; r = []
        for q in range(i * n, (i + 1) * n):
            if q == i * n or q % 4 == 0:
                r.append([f"s_add_u32 m0, s{sKVW}, {0 if kk < 15 else 131072}", f"s_movk_i32 s{sT2}, {(q & ~3)*1024}"])
            r.append([(f"buffer_load_dwordx4 {vr(vTMP)}, {sr(sWOI)}, s{sT2} offen offset:{(q&3)*1024}{' nt' if O.wopre_nt else ''} lds", "vm", "WOP")])
        return r
    if O.wopre == 99: flat([wo_pre(0, 0)])
    def a_reads(kk):
        return [(f"ds_read_b64_tr_b16 {ar(AF(kk&1,nb)+2*jh,2)}, {vr(vAW+(nb&7))} offset:{(kk&3)*16384+jh*2048+(nb>>3)*256}", "ds", "A")
                for nb in range(16) for jh in range(2)]
    def x_reads(G):
        return [(f"ds_read_b128 {ar(XR(G,ks,qb),4)}, {vr(vAX+ks)} offset:{XB[G&1]+qb*2048}", "ds", "XR") for ks in range(2) for qb in range(4)]
    A.wait(vm=[("W", 0), ("X", 0)]); A("s_barrier")
    stamp(A, "wq0 landed"); stamp(A, "wq0 landed", 1); stamp(A, "wq0 landed", 3)
    for o in x_reads(0) + a_reads(0): A.op(o)
    flat([wq_dma(2), wq_dma(3)])
    for kk in range(20):
        A.c(f"---- qproj step {kk}")
        G, ks = kk >> 1, kk & 1
        if kk in (1, 4): stamp(A, f"step{kk}", 1)
        if kk in (4, 8, 12, 15): stamp(A, f"step{kk}", 3)
        nd = ([("W", kk + 1)] if kk + 1 < 20 else []) + ([("X", G + 1)] if ks == 0 and G + 1 < 10 else [])
        A.wait(vm=nd, dsn=0); A("s_barrier")
        mf = [f"{MF} {ACC(nb,qb)}, {ar(AF(kk&1,nb),4)}, {ar(XR(G,ks,qb),4)}, {ACC(nb,qb) if kk else '0'}" for nb in range(16) for qb in range(4)]
        gaps = {q: [] for q in range(64)}
        mem = []
        if kk + 4 < 20: mem += wq_dma(kk + 4)
        if kk == 0: mem += x_dma(2)
        if ks == 1 and G + 3 < 10: mem += x_dma(G + 3)
        if O.wopre >= 0 and O.wopre <= kk < O.wopre + O.wopn: mem += wo_pre(kk - O.wopre, kk)
        if O.fuse and kk == O.xfill: mem += mbox("store", lambda t: vr(40, 4), sXI, "XF")
        if kk == O.kv0: mem += kv_groups("K", 0) + kv_groups("V", 0)
        if kk == 15: mem += kv_groups("K", 1) + kv_groups("K", 2)
        if kk == 16: mem += kv_groups("V", 1)
        if kk == 17: mem += kv_groups("K", 3) + kv_groups("V", 2)
        rd = (x_reads(G + 1) if ks == 0 and G + 1 < 10 else []) + (a_reads(kk + 1) if kk + 1 < 20 else [])
        sp = max(2, min(O.qsp, 56 // max(1, len(mem))))
        for q, ops in enumerate(mem): gaps[1 + sp * q] += ops
        fr = [q for q in range(60) if not gaps[q]]
        two = max(0, len(rd) - len(fr))
        fr = sorted(fr + fr[:two])
        for q, o in enumerate(rd): gaps[fr[(q * len(fr)) // len(rd)]].append(o)
        interleave(A, mf, gaps)
    stamp(A, "qproj done"); stamp(A, "qproj done", 3)
    A("s_nop 7")
    def conv_front(hd, s, qb, T0, T1, tb):
        for T in (T0, T1):
            for q in range(2): A(f"v_pk_mul_f32 {vr(T+2*q,2)}, {vr(T+2*q,2)}, s[{sSC}:{sSC+1}]")
        for q in range(2): A(f"v_cvt_pk_bf16_f32 {vr(tb+q)}, {vr(T0+2*q)}, {vr(T0+2*q+1)}")
        for q in range(2): A(f"v_cvt_pk_bf16_f32 {vr(tb+2+q)}, {vr(T1+2*q)}, {vr(T1+2*q+1)}")
    def conv_back(hd, s, qb, tb):
        for q in range(2): A(f"v_permlane16_swap_b32 {vr(tb+q)}, {vr(tb+2+q)}")
    def conv_wr(hd, s, qb, tb):
        for q in range(4): A(f"v_accvgpr_write_b32 {ar(hd*64+(qb*4+s)*4+q)}, {vr(tb+q)}")
    jobs = []
    for pr in range(8):
        for qb in range(4):
            jobs.append((pr, qb))
    pend = []
    for n_, (pr, qb) in enumerate(jobs):
        if pr == 6 and qb == 0:
            for q in range(48): A(f"v_accvgpr_read_b32 {vr(48+q)}, {ar(208+q)}")
        def loc(nb): return 48 + (nb * 4 + qb) * 4 if nb < 13 else 48 + ((nb - 13) * 4 + qb) * 4
        tb = 16 + (n_ % 4) * 4
        conv_front(pr >> 2, pr & 3, qb, loc(2 * pr), loc(2 * pr + 1), tb)
        pend.append((pr >> 2, pr & 3, qb, tb))
        if len(pend) >= 2: conv_back(*pend[-2])
        if len(pend) >= 3: conv_wr(*pend[-3])
    A("s_nop 1"); conv_back(*pend[-1]); conv_wr(*pend[-2]); A("s_nop 0"); conv_wr(*pend[-1])
    A(f"s_mov_b32 s{sT}, 0x3f803f80")
    for q in range(4): A(f"v_accvgpr_write_b32 {ar(aONE+q)}, s{sT}")
    if O.dumpq:
        A(f"s_lshl_b32 s{sT}, s5, 7"); A(f"s_lshl_b32 s{sT2}, s6, 4"); A(f"s_add_u32 s{sT}, s{sT}, s{sT2}"); A(f"s_add_u32 s{sT}, s{sT}, s7")
        A(f"s_lshl_b32 s{sT}, s{sT}, 17"); A(f"s_add_u32 s{sT}, s{sT}, {QDUMP_WS_OFF}")
        srd(A, sDBG, sWS, sWS + 1, f"s{sT}", "0x20000")
        A(f"v_and_b32 {vr(16)}, 0x3ff, {vr(vOO)}"); A(f"s_lshl_b32 s{sT}, s{sWAVE}, 15"); A(f"v_add_u32 {vr(16)}, s{sT}, {vr(16)}")
        for q in range(32):
            A(f"s_mov_b32 s{sT}, {q*1024}")
            A(f"buffer_store_dwordx4 {ar(4*q,4)}, {vr(16)}, {sr(sDBG)}, s{sT} offen")
        A("s_waitcnt vmcnt(0)")
    if O.fuse: oproj_early(A, 16)
    A.wait(vm=[("K", 0)]); A("s_barrier")
    stamp(A, "conv done")
    A(f"s_mov_b32 s{sUNIT}, 0")
    if O.trace: A("s_mov_b64 s[52:53], 1"); A("s_memrealtime s[50:51]"); A("v_mov_b32 v0, 0")
    A.label("L_unit")
    A(f"s_mov_b32 s{sLOOP}, 3")
    ncls = 2 if O.twocls else 1
    if ncls == 2:
        A(f"s_bitcmp1_b32 s{sWAVE}, 0"); A("s_cbranch_scc1 L_first_1")
    ds6 = None
    for cls in range(ncls):
        A.label(f"L_first_{cls}")
        A.ds = []
        first_slot(A, cls)
        slot(A, 1, cls, f"second_{cls}", zero=True)
        ds_in = list(A.ds)
        A.label(f"L_loop_{cls}")
        for p in (2, 3, 4, 5, 6, 7, 0, 1):
            tail = []
            if p == 6: tail = [f"s_cmp_eq_u32 s{sLOOP}, 0", "s_cbranch_scc1 L_last"]
            if p == 7 and O.fuse: tail = [f"s_cmp_eq_u32 s{sLOOP}, s{sSTUB}", "s_cbranch_scc1 L_tail"]
            if p == 1:
                tail = [f"s_sub_u32 s{sLOOP}, s{sLOOP}, 1"]
                if O.stamps and O.stm == 4: tail += [f"s_memtime s[50:51]", "s_memrealtime s[66:67]"]
                tail += [f"s_branch L_loop_{cls}"]
            slot(A, p, cls, f"p{p}_{cls}", tail=tail)
            if p == 6: ds6 = list(A.ds)
            if p == 7: ds7 = list(A.ds)
        assert len(A.ds) == len(ds_in) and A.ds == ds_in, (A.ds, ds_in)
    if O.stamps and O.stm == 4: nstamp[0] += 1; stamp_names.append("loopback")
    A.label("L_last")
    if not O.fuse: stamp(A, "last", 4)
    A.ds = list(ds6)
    last_slot(A, not O.fuse)
    if O.chk:
        A(f"s_cmp_lg_u64 s[{sM}:{sM+1}], 0"); A("s_cbranch_scc1 L_fb")
    if not O.fuse:
        A(f"s_cmp_lg_u32 s{sUNIT}, 0"); A("s_cbranch_scc1 L_fbret1")
    A.label("L_fbret0")
    stamp(A, "unit0 end"); stamp(A, "unit0 end", 2)
    A(f"s_mov_b32 s{sUNIT}, 1"); A(f"s_add_u32 s{sOOF}, s{sOOF}, 4096"); A(f"s_mov_b32 s{sSTUB}, 1")
    for q in range(64): A(f"v_accvgpr_mov_b32 {ar(aQ+q)}, {ar(aQ2+q)}")
    if O.fuse:
        for q in range(64): A(f"v_accvgpr_write_b32 {ar(aQ2+q)}, {vr(vS+q)}")
    A("s_branch L_unit")
    if O.fuse:
        A.label("L_tail")
        stamp(A, "tail", 2); stamp(A, "tail", 4)
        if O.trace:
            srd(A, 56, sWS, sWS + 1, 132 << 20, 4 << 20); A("s_lshl_b32 s3, s2, 10")
            A(f"buffer_store_dword v0, {vr(vOO)}, s[56:59], s3 offen")
        A.ds = list(ds7)
        A.vm = [("G", 9)] * 8 + [("G", 10)] * 8 + [("G", 11)] * 8
        if O.burst == 2: raise NotImplementedError
        def st0(qbs):
            r = []
            for qb in qbs:
                r.append([f"s_add_u32 s{sT}, s{sOOF}, {qb*131072 - 4096}"] if qb else [f"s_sub_u32 s{sT}, s{sOOF}, 4096"])
                r += [[o_store(ar(aQ2 + (qb * 4 + t) * 4, 4), qb, t, "ST0", sT)] for t in range(4)]
            return r
        v15 = dma_v(3, ("G", 12))
        slot(A, 0, 0, "t24", groups=[[v15[0]]] + [[o] for o in v15[1]] + st0([0]), vmtags=[("G", 9)])
        slot(A, 1, 0, "t25", groups=st0([1, 2]))
        slot(A, 2, 0, "t26", groups=st0([3]) + w_dma(0, 0, True), vmtags=[("G", 10)])
        slot(A, 3, 0, "t27", groups=w_dma(0, 1, True))
        slot(A, 4, 0, "t28", groups=w_dma(1, 0, True), vmtags=[("G", 11), "ST0"], after_bar=flag_ops(1, "f1"))
        slot(A, 5, 0, "t29", groups=w_dma(1, 1, True))
        slot(A, 6, 0, "t30", groups=w_dma(2, 0, True), vmtags=[("G", 12)], tail=poll_ops("p1"))
        stamp(A, "last1", 2)
        oproj_setup(A)
        def mid():
            A.wait(dsn=0)
            poll_check(A, 0x01010101, "u1", vOWX, "p1")
            A("s_barrier")
        if O.own1: last_slot(A, True, extra1=w_dma(2, 1) + o_ld(0), mid=mid, extra2=o_ld(1) + o_ld(2))
        else: last_slot(A, True, extra1=w_dma(2, 1), mid=mid, extra2=o_ld(0) + o_ld(1) + o_ld(2))
        if O.chk:
            A(f"s_cmp_lg_u64 s[{sM}:{sM+1}], 0"); A("s_cbranch_scc1 L_fb")
        A.label("L_fbret1")
        stamp(A, "unit1 end"); stamp(A, "unit1 end", 2); stamp(A, "unit1 end", 5); stamp(A, "unit1 end", 6)
        oproj(A)
    else:
        A.label("L_fbret1")
        stamp(A, "unit1 end")
    if O.stamps: emit_stamps(A)
    A.label("L_end")
    A("s_endpgm")
    if O.chk:
        fallback(A)
    emit_spins(A)
    A.label("L_codeend")
    return kstart(k) + A.text()

def emit_stamps(A):
    A("s_waitcnt vmcnt(0) lgkmcnt(0)")
    A(f"s_memtime s[8:9]"); A(f"s_memrealtime s[10:11]")
    A("s_waitcnt lgkmcnt(0)")
    srd(A, sDBG, sWS, sWS + 1, STAMP_WS_OFF, "0x100000")
    A(f"s_lshl_b32 s3, s2, 2"); A(f"s_add_u32 s3, s3, s{sWAVE}"); A("s_lshl_b32 s3, s3, 7")
    A("v_mov_b32 v0, s3")
    n = nstamp[0]
    regs = [(j, sSTAMP + 2 * j) for j in range(n)] + [(n, 8)] + [(8 + j, 62 if j == 0 else sRSTAMP + 2 * j) for j in range(n)] + [(8 + n, 10)]
    A("s_getreg_b32 s4, hwreg(HW_REG_XCC_ID)")
    regs.append((16, 4))
    for j, s_ in regs:
        A(f"v_mov_b32 v1, s{s_}")
        A(f"buffer_store_dword v1, v0, {sr(sDBG)}, 0 offen offset:{4*j}")
    A("s_waitcnt vmcnt(0)")

def main():
    ap = argparse.ArgumentParser()
    for k_, v_ in vars(Opt).items():
        if k_.startswith("_"): continue
        if isinstance(v_, bool): ap.add_argument("--" + k_, type=lambda s: bool(int(s)), default=v_)
        elif isinstance(v_, int): ap.add_argument("--" + k_, type=int, default=v_)
        else: ap.add_argument("--" + k_, default=v_)
    a = ap.parse_args()
    for k_, v_ in vars(a).items(): setattr(O, k_, v_)
    hdr = open("cdna_kernels/" + NAME + ".s.ref").read().split("; Override launch")[0]
    out = hdr
    out += "; @launch kernel=attn_kernel grid=(256,1,1) block=(256,1,1) lds=163840\n"
    body = gen_kernel("attn_kernel")
    if O.stamps: out += "; stamps: " + ",".join(stamp_names) + ",end\n"
    out += '.amdgcn_target "amdgcn-amd-amdhsa--gfx950"\n.text\n'
    out += body + kd("attn_kernel")
    lines = out.split("\n")
    if O.skip_loop:
        iu = lines.index("L_unit:"); il = lines.index("L_last:")
        lines = lines[:iu] + [l for l in lines[iu:il] if not ("buffer_load_dwordx4" in l and " lds" in l)] + lines[il:]
    il = lines.index("L_last:")
    if O.skip_oo: lines = lines[:il] + [l for l in lines[il:] if not ("buffer_load_dwordx4 a[" in l and "s[8:11]" in l)]
    if O.skip_ow: lines = lines[:il] + [l for l in lines[il:] if not ("s[12:15]" in l and " lds" in l)]
    iu = lines.index("L_unit:")
    if O.skip_x: lines = [l for l in lines[:iu] if not ("s[8:11]" in l and " lds" in l)] + lines[iu:]
    if O.skip_w: lines = [l for l in lines[:iu] if not ("s[12:15]" in l and " lds" in l)] + lines[iu:]
    sys.stdout.write("\n".join(lines))
main()
```

```python
import sys, math, argparse, re, struct, copy

NAME = "concat_heads__gqa_block_cached__gqa_block_cached__near_ridge"

class Opt:
    stamps = False
    dumpq = False
    kv_nt = True
    fuse = True
    twocls = False
    D = 6
    bar = 20
    burst = 1
    dper = 3
    qsp = 4
    w_nt = True
    x_nt = True
    wo_nt = False
    kv0 = 15
    pubw = 11
    map2 = True
    pub2 = 1
    pub1 = 28
    poll2 = 8
    thr_log2 = 30
    skip_loop = False
    skip_x = False
    skip_w = False
    forcefb = False
    budget = 8
    wpre = True
    o_sc1 = True
    chk = True
    stm = 0
    cpre = True
    rot = 0
    wfake = False
    noinv = False
    skip_oo = False
    skip_ow = False
    st_sc1 = True
    wopre = 200
    wopre_nt = False
    wopn = 1
    ndef = 4
    xbar = 60
    own1 = True
    obar = 4
    osp = 2
    xdense = True
    vlate = 0
    vsum = False
    pad = 0
    vmn = 16
    kvs = "13,14,15,16,17,18,19"
    outfl = 0
    trace = False
    xld = 40
    xfill = 20
    lfake = False
    whalf = False
    ofake = False
    walign = False
    wofl = 0

O = Opt()

class Asm:
    def __init__(self):
        self.L = []
        self.vm = []
        self.ds = []
        self.nvm = 0; self.mark = {}
    def __call__(self, s):
        if s.endswith(" lds") and self.L and " m0," in self.L[-1]: self.L.append("    s_nop 0")
        self.L.append(s if s.endswith(":") else "    " + s)
    def label(self, s): self.L.append(s + ":")
    def c(self, s): self.L.append("    ; " + s)
    def text(self): return "\n".join(self.L) + "\n"
    def vm_n(self, tags):
        idx = [i for i, t in enumerate(self.vm) if t in tags]
        if not idx: return None
        return min(63, len(self.vm) - 1 - max(idx))
    def ds_n(self, tags):
        idx = [i for i, t in enumerate(self.ds) if t in tags]
        if not idx: return None
        return min(15, len(self.ds) - 1 - max(idx))
    def wait(self, vm=None, ds=None, vmn=None, dsn=None):
        a = self.vm_n(vm) if vm else None
        b = self.ds_n(ds) if ds else None
        if vmn is not None: a = vmn if a is None else min(a, vmn)
        if dsn is not None: b = dsn if b is None else min(b, dsn)
        p = []
        if a is not None:
            p.append(f"vmcnt({a})"); self.vm = self.vm[len(self.vm) - a:] if a else []
        if b is not None:
            p.append(f"lgkmcnt({b})"); self.ds = self.ds[len(self.ds) - b:] if b else []
        if p: self("s_waitcnt " + " ".join(p))
    def op(self, o):
        if isinstance(o, str): self(o); return
        if o[1] == "vm": self.vm.append(o[2]); self.nvm += 1
        elif o[1] == "mark": self.mark[o[2]] = self.nvm
        elif o[1] == "call": o[2](self); return
        elif o[1] == "ds": self.ds.append(o[2])
        elif o[1] == "wait": self.wait(**o[2]); return
        self(o[0])

def vr(b, n=1): return f"v{b}" if n == 1 else f"v[{b}:{b+n-1}]"
def ar(b, n=1): return f"a{b}" if n == 1 else f"a[{b}:{b+n-1}]"
def sr(b, n=4): return f"s[{b}:{b+n-1}]"
def f32bits(x): return struct.unpack("<I", struct.pack("<f", x))[0]
MF = "v_mfma_f32_16x16x32_bf16"

def kd(k, vgpr=512, acc=256, sgpr=102):
    return f""".section .rodata,"a"
.p2align 6
.amdhsa_kernel {k}
  .amdhsa_next_free_vgpr {vgpr}
  .amdhsa_next_free_sgpr {sgpr}
  .amdhsa_accum_offset {acc}
  .amdhsa_group_segment_fixed_size 0
  .amdhsa_kernarg_size 104
  .amdhsa_user_sgpr_count 2
  .amdhsa_user_sgpr_kernarg_segment_ptr 1
  .amdhsa_system_sgpr_workgroup_id_x 1
.end_amdhsa_kernel
.text
"""
def kstart(k): return f".globl {k}\n.p2align 8\n.type {k},@function\n{k}:\n"

WOF_OFF = 48 << 20
STAMP_WS_OFF = 128 << 20
QDUMP_WS_OFF = 64 << 20
sTW = 65
sXI, sXO = 78, 79

sX, sW, sK, sV, sO = 8, 12, 16, 20, 24
sWAVE, sKVW, sVVW, sWQW, sKOFF, sVOFF, sXW, sLOOP, sUNIT, sT, sTHR, sT3 = range(28, 40)
sSC, sOOF, sFB, sT2, sGI, sWS = 40, 42, 43, 44, 45, 46
sSTAMP, sRSTAMP = 48, 64
sCNT, sDBG, sWOI, sWOF, sOUT = 80, 84, 88, 92, 96
sM = 100
vAK, vAV, vOKV, vOO, vTMP = 1, 5, 13, 14, 15
vNEGM, vS, vP, vO = 16, 32, 96, 128
aQ, aQ2, aKF, aVF, aL, aONE = 0, 64, 128, 160, 192, 208
KBASE, VBASE, WQBASE, FBBASE = 0, 65536, 98304, 131072
XB = (16384, 49152)
FLAG_OFF = 60 << 20
sFLG, sSTUB = 84, sFB

def S(buf, qb, kb): return vS + buf * 32 + (qb * 2 + kb) * 4
def P(buf, qb): return vP + buf * 16 + qb * 4
def NEGM(qb): return vNEGM + qb * 4
def Q(qb, s): return aQ + (qb * 4 + s) * 4
def OA(db, qb): return vO + (qb * 8 + db) * 4
def LA(qb): return aL + qb * 4
vL = 252
def OAT(db, qb): return ar(aL, 4) if O.vsum and (db, qb) == (7, 3) else vr(OA(db, qb), 4)

nstamp = [0]
stamp_names = []
def stamp(A, name, mode=0):
    if not O.stamps or (mode != O.stm and name != "t0"): return
    i = nstamp[0]; nstamp[0] += 1; stamp_names.append(name)
    assert i < 7
    A(f"s_memtime s[{sSTAMP+2*i}:{sSTAMP+2*i+1}]")
    r = 62 if i == 0 else sRSTAMP + 2 * i
    A(f"s_memrealtime s[{r}:{r+1}]")

def cost(o):
    t = o if isinstance(o, str) else o[0]
    if t.endswith(":"): return 0
    if not isinstance(o, str) and o[1] in ("wait", "call"): return 0
    if t.startswith(("v_exp", "v_rcp")): return 8
    if t.startswith("buffer_"): return 8
    if t.startswith("s_nop"): return 4 * (int(t.split()[1]) + 1)
    if t.startswith("v_cvt_pk") or t.startswith("v_max3") or t.startswith("v_perm"): return 5
    if t.startswith("v_pk_"): return 8
    return 4

def interleave(A, mf, fixed=None, stream=(), pre=None, budget=None, need=None):
    budget = O.budget if budget is None else budget
    fixed = fixed or {}; pre = pre or {}; need = need or {}
    st = list(stream); si = 0; debt = 0
    for g in range(len(mf)):
        for t in pre.get(g, []): A.op(t)
        if g in need: A.wait(ds=need[g])
        A(mf[g])
        fx = fixed.get(g, [])
        room = budget - sum(cost(o) for o in fx) - debt
        for o in fx: A.op(o)
        while si < len(st):
            o, at = st[si] if isinstance(st[si], list) else (st[si], 0)
            if at > g: break
            c = cost(o)
            if room <= 0 or (c > room + 1): break
            A.op(o); room -= c; si += 1
        debt = 0
    while si < len(st):
        o = st[si][0] if isinstance(st[si], list) else st[si]
        A.op(o); si += 1

NT_KV = lambda: " nt" if O.kv_nt else ""
SC1 = lambda: " sc1" if O.o_sc1 else ""
OFL = lambda: ["", " sc1", " sc0 sc1", " nt", " sc1 nt", " sc0 sc1 nt"][O.outfl]
def adv(off): return f"s_add_u32 s{off}, s{off}, 0x4000"
def vphys(ring): return (ring + 1) & 3
def dma_k(ring, tag):
    return (f"s_add_u32 m0, s{sKVW}, {ring*16384}",
            [(f"buffer_load_dwordx4 {vr(vOKV)}, {sr(sK)}, s{sKOFF} offen offset:{p*1024}{NT_KV()} lds", "vm", tag) for p in range(4)],
            adv(sKOFF))
def dma_v(ring, tag):
    return (f"s_add_u32 m0, s{sVVW}, {vphys(ring)*16384}",
            [(f"buffer_load_dwordx4 {vr(vOKV)}, {sr(sV)}, s{sVOFF} offen offset:{p*1024}{NT_KV()} lds", "vm", tag) for p in range(4)],
            adv(sVOFF))
def k_reads(ring, h, dst=aKF):
    return [(f"ds_read_b128 {ar(dst+(kb*4+s)*4,4)}, {vr(vAK+s)} offset:{ring*16384+(2*h+kb)*1024}", "ds", ("F", dst + (kb*4+s)*4))
            for kb in range(2) for s in range(4)]
def v_reads(ring, h):
    return [(f"ds_read_b64_tr_b16 {ar(aVF+db*4+2*jh,2)}, {vr(vAV+db)} offset:{vphys(ring)*16384+h*2048+jh*1024}", "ds", ("F", aVF + db*4))
            for db in range(8) for jh in range(2)]
def pv_mf(buf, zero=False, qbmajor=False):
    r = []
    def pv(db, qb): return (f"{MF} {OAT(db,qb)}, {ar(aVF+db*4,4)}, {vr(P(buf,qb),4)}, {'0' if zero else OAT(db,qb)}", aVF + db*4, qb)
    def sm(qb): return (f"{MF} {ar(LA(qb),4)}, {ar(aONE,4)}, {vr(P(buf,qb),4)}, {'0' if zero else ar(LA(qb),4)}", None, qb)
    if qbmajor:
        for qb in range(4):
            if not O.vsum: r.append(sm(qb))
            r += [pv(db, qb) for db in range(8)]
    else:
        for db in range(8):
            r += [pv(db, qb) for qb in range(4)]
            if db & 1 and not O.vsum: r.append(sm(db >> 1))
    return r
def qk_mf(buf, zero=False, kf=aKF):
    r = []
    for qb in range(4):
        for kb in range(2):
            for s in range(4):
                c = vr(S(buf,qb,kb),4) if s else ("0" if zero else vr(NEGM(qb),4))
                r.append((f"{MF} {vr(S(buf,qb,kb),4)}, {ar(kf+(kb*4+s)*4,4)}, {ar(Q(qb,s),4)}, {c}", kf + (kb*4+s)*4, qb))
    return r
def ex(b, e): return f"v_exp_f32 {vr(vS+b*32+e)}, {vr(vS+b*32+e)}"
def cv(b, i): return f"v_cvt_pk_bf16_f32 {vr(vP+b*16+i)}, {vr(vS+b*32+2*i)}, {vr(vS+b*32+2*i+1)}"
def ad(b, e): return f"v_add_f32 {vr(vL+(e>>3))}, {vr(vL+(e>>3))}, {vr(vS+b*32+e)}"
def needs(mfs, group=2):
    nd = {}; seen = []
    for g, m in enumerate(mfs):
        if m[1] is not None and m[1] not in seen: seen.append(m[1]); nd[g] = m[1]
    items = sorted(nd.items())
    out = {}
    for i in range(0, len(items), group):
        out[items[i][0]] = [("F", t) for _, t in items[i:i + group]]
    return out
def lastuse(mfs):
    lu = {}
    for g, m in enumerate(mfs):
        if m[1] is not None: lu[m[1]] = g
    return lu

def barrier_ops(cls, g, pre, gaps, vmtags=None, first=False):
    w = ("", "wait", dict(vmn=O.vmn + (O.fuse and O.wopre == 250 and not first), dsn=0) if vmtags is None else dict(vm=vmtags, dsn=0))
    if cls == 0: pre[g] = [w, "s_barrier"]
    else:
        pre[g] = [w]; gaps[g].insert(0, "s_barrier")

def is_vm(o): return not isinstance(o, str) and o[1] == "vm"
def slot(A, p, cls, tag, zero=False, tail=(), groups=None, vmtags=None, after_bar=()):
    D = O.D; even = (p & 1) == 0; buf = p & 1; t_ = p >> 1
    A.c(f"---- slot {tag} pos={p} cls={cls}")
    kr = k_reads(((p + 1) >> 1) & 3, (p + 1) & 1)
    vq = v_reads(t_ & 3, p & 1)
    pvm = pv_mf(buf ^ 1, zero); mfs = pvm + qk_mf(buf ^ 1)
    n = len(mfs); npv = len(pvm)
    gaps = {g: [] for g in range(n)}; pre = {}
    seq = [(buf, e) for e in range(D, 32)] + [(buf ^ 1, e) for e in range(D)]
    eg = [2 * i for i in range(32 - D)] + [n - 64 + 2 * i for i in range(32 - D, 32)]
    for g, (b, e) in zip(eg, seq): gaps[g].append(ex(b, e))
    free = [g for g in range(n) if g not in eg]
    cvg = {g + 1: cv(b, e >> 1) for g, (b, e) in zip(eg, seq) if e & 1}
    for g, t in zip(free[:8], kr): gaps[g].append(t)
    lu = lastuse(pvm)
    pre[0] = [("", "wait", dict(dsn=0))]
    if O.trace and groups is None:
        pre[0] += ["s_mov_b64 exec, s[52:53]", "v_mov_b32 v0, s50", "s_mov_b64 exec, -1", "s_lshl_b64 s[52:53], s[52:53], 1"]
        gaps[n - 3].append("s_memrealtime s[50:51]")
    if groups is None:
        kg = dma_k(t_ & 3, "KV"); vg = dma_v((t_ + 3) & 3, "KV")
        if even: flat = [kg[0]] + kg[1] + [vg[0], kg[2]] + (vg[1] + [vg[2]] if O.burst == 1 else [])
        else: flat = vg[1] + [vg[2]] if O.burst == 2 else []
        if O.fuse and O.wopre == 250 and p in (1, 5):
            flat = flat + [(f"buffer_load_dwordx4 {ar(224,4)}, {vr(vOO)}, {sr(sW)}, s{sTW} offen", "vm", "WOP"), f"s_add_u32 s{sTW}, s{sTW}, 1024", f"s_min_u32 s{sTW}, s{sTW}, s{sTW-1}"]
    else:
        flat = [o for grp in groups for o in grp]
    dm = [o for o in flat if is_vm(o)]
    bar = O.bar if even else 15
    if even:
        barrier_ops(cls, bar, pre, gaps, vmtags)
        if after_bar: pre[bar + 1] = list(after_bar)
    rest = [g for g in free if g > bar]
    if O.vlate:
        gaps[n - 1] += vq[len(vq) - O.vlate:]; vq = vq[:len(vq) - O.vlate]
        rest = [g for g in rest if g != n - 1]
    lack = len(dm) + len(vq) - len(rest)
    xg = set()
    if lack > 0:
        cand = [g for g in eg if g > bar + 4]
        xg = {cand[(q * len(cand)) // lack + len(cand) // (2 * lack)] for q in range(lack)}
        rest = sorted(rest + list(xg))
    dg = []; k = 0
    while dm or vq:
        g = rest.pop(0)
        vok = vq and lu[vq[0][2][1]] <= g
        if g in xg and vok: gaps[g].append(vq.pop(0)); continue
        if dm and k % O.dper == 0 and g in cvg and vok: gaps[g].append(vq.pop(0)); continue
        if dm and (k % O.dper == 0 or not vok) and g not in cvg: gaps[g].append(dm.pop(0)); dg.append(g)
        elif vok: gaps[g].append(vq.pop(0))
        elif dm: gaps[g].append(dm.pop(0)); dg.append(g)
        k += 1
    small = []
    nv = 0
    for o in flat:
        if is_vm(o): nv += 1; continue
        lo = dg[nv - 1] if nv else 16
        hi = n - 1 if ("0x4000" in o or nv == len(dg)) else dg[nv] - 1
        small.append((o, lo, hi))
    if not even: small.append((("", "wait", dict(ds=[o[2] for o in kr])), 24, npv - 1))
    for g, o in cvg.items(): gaps[g].append(o)
    if O.vsum:
        for g, (b, e) in zip(eg, seq): gaps[g + 1].append(ad(b, e))
    def used(g): return sum(4 if (not isinstance(o, str) and o[1] == "wait") else cost(o) for o in gaps[g]) + 4 * len(pre.get(g + 1, []))
    prev = (None, 0)
    for o, lo, hi in small:
        key = (lo, hi)
        if prev[0] == key: lo = prev[1]
        c = [g for g in range(lo, hi + 1) if used(g) <= 5]
        if not c: c = sorted(range(lo, hi + 1), key=used)
        gaps[c[0]].append(o); prev = (key, c[0])
    for q in range(O.pad): gaps[1 + (q * 62) // O.pad // 2 * 2 + 1].append("s_nop 1")
    gaps[n - 1] += list(tail)
    interleave(A, [m[0] for m in mfs], gaps, pre=pre)

def max_chain(qb, buf, t0, t1, run=None):
    s = S(buf, qb, 0)
    st = [f"v_max3_f32 {vr(t0)}, {vr(s)}, {vr(s+1)}, {vr(s+2)}", f"v_max3_f32 {vr(t1)}, {vr(s+3)}, {vr(s+4)}, {vr(s+5)}",
          f"v_max3_f32 {vr(t0)}, {vr(t0)}, {vr(s+6)}, {vr(s+7)}"]
    if run is not None: return st + [f"v_max3_f32 {vr(run)}, {vr(run)}, {vr(t0)}, {vr(t1)}"]
    return st + [f"v_max_f32 {vr(t0)}, {vr(t0)}, {vr(t1)}"]
def xlane_max(t0, t1):
    return [f"v_mov_b32 {vr(t1)}, {vr(t0)}", "s_nop 1", f"v_permlane32_swap_b32 {vr(t0)}, {vr(t1)}", "s_nop 0", f"v_max_f32 {vr(t0)}, {vr(t0)}, {vr(t1)}",
            f"v_mov_b32 {vr(t1)}, {vr(t0)}", "s_nop 1", f"v_permlane16_swap_b32 {vr(t0)}, {vr(t1)}", "s_nop 0", f"v_max_f32 {vr(t0)}, {vr(t0)}, {vr(t1)}"]

def first_slot(A, cls):
    D = O.D
    A.c(f"---- first slot cls={cls}")
    for o in k_reads(0, 0, dst=aVF) + k_reads(0, 1): A.op(o)
    mfs = qk_mf(0, zero=True, kf=aVF) + qk_mf(1)
    gaps = {g: [] for g in range(64)}; pre = {}
    bar = 8
    barrier_ops(cls, bar, pre, gaps, first=True)
    kg = dma_k(0, "KV"); vg = dma_v(3, "KV")
    gaps[bar - 2].append(kg[0])
    dm = kg[1] + (vg[1] if O.burst == 1 else [])
    for i, o in enumerate(dm):
        gaps[bar + 1 + i].append(o)
        if i == 3: gaps[bar + 1 + i].append(vg[0])
    gaps[7].append(kg[2]) if False else None
    st = []
    tA = [vO + 2 * q for q in range(4)]
    for qb in range(4):
        t0, t1 = tA[qb], tA[qb] + 1
        ch = max_chain(qb, 0, t0, t1) + xlane_max(t0, t1)
        ch += [f"v_sub_f32 {vr(NEGM(qb)+r)}, 0, {vr(t0)}" for r in range(4)]
        ch += [f"v_sub_f32 {vr(S(0,qb,0)+r)}, {vr(S(0,qb,0)+r)}, {vr(t0)}" for r in range(8)]
        st.append([ch[0], 8 * qb + 7 + 8]); st += ch[1:]
    sm = []
    for e in range(32):
        sm.append(ex(0, e))
        if e >= 2 and not (e & 1): sm.append(cv(0, (e >> 1) - 1))
        if O.vsum and e >= 2:
            if (e - 2) & 7 == 0: sm.append(f"v_add_f32 {vr(vL+((e-2)>>3))}, {vr(vS+e-2)}, {vr(vS+e-1)}")
            elif (e - 2) & 7 != 1: sm.append(ad(0, e - 2))
    sm += ["s_nop 0", cv(0, 15)]
    if O.vsum: sm += [ad(0, 30), ad(0, 31)]
    vq = v_reads(0, 0)
    for i, o in enumerate(vq): gaps[33 + i * 2 - (i // 8) * 0 if 33 + 2 * i < 64 else 63].append(o)
    post = [kg[2]] + ([vg[2]] if O.burst == 1 else [])
    nd = needs(mfs)
    nch = len(st) // 4
    m = [x[0] for x in mfs]
    def sub(d, lo, hi): return {g - lo: v for g, v in d.items() if lo <= g < hi}
    def shift(s, lo): return [[x[0], x[1] - lo] if isinstance(x, list) else x for x in s]
    segs = [(0, 32, st[:nch]), (32, 40, st[nch:2*nch]), (40, 48, st[2*nch:3*nch]), (48, 56, st[3*nch:]), (56, 64, [])]
    carry = []
    allst = st + post + sm
    pos = 0
    marks = {32: nch, 40: 2 * nch, 48: 3 * nch, 56: 4 * nch}
    for g in range(64):
        if g in marks:
            while pos < marks[g]:
                o = allst[pos][0] if isinstance(allst[pos], list) else allst[pos]
                A.op(o); pos += 1
            A("s_nop 1")
        for t in pre.get(g, []): A.op(t)
        if g in nd: A.wait(ds=nd[g])
        A(m[g])
        room = O.budget - sum(cost(o) for o in gaps[g])
        for o in gaps[g]: A.op(o)
        while pos < len(allst):
            o, at = allst[pos] if isinstance(allst[pos], list) else (allst[pos], 0)
            if at > g or room <= 0 or cost(o) > room + 1: break
            A.op(o); room -= cost(o); pos += 1
    while pos < len(allst):
        A.op(allst[pos]); pos += 1
    for e in range(D):
        A(ex(1, e))
        if e >= 2 and not (e & 1): A(cv(1, (e >> 1) - 1))
    A("s_nop 0"); A(cv(1, D // 2 - 1))
    if O.vsum:
        for e in range(D): A(ad(1, e))
    A("s_nop 1")

def o_store(reg, qb, t, tag, so):
    return (f"buffer_store_dwordx4 {reg}, {vr(vOO)}, {sr(sO)}, s{so} offen offset:{t*1024}{' sc1' if O.st_sc1 else ''}", "vm", tag)
def row_sums():
    st = []
    for sw in ("v_permlane32_swap_b32", "v_permlane16_swap_b32"):
        st += [f"v_mov_b32 {vr(vP+2*q+1)}, {vr(vL+q)}" for q in range(4)]
        st += [f"{sw} {vr(vL+q)}, {vr(vP+2*q+1)}" for q in range(4)]
        st += [f"v_add_f32 {vr(vL+q)}, {vr(vL+q)}, {vr(vP+2*q+1)}" for q in range(4)]
    st += [f"v_rcp_f32 {vr(vP+2*q)}, {vr(vL+q)}" for q in range(4)]
    if O.chk:
        st += [f"v_max3_f32 {vr(vP+1)}, {vr(vL)}, {vr(vL+1)}, {vr(vL+2)}"]
        for q in (vP + 1, vL + 3): st += [f"v_cmp_nle_f32 vcc, {vr(q)}, s{sTHR}", f"s_or_b64 s[{sM}:{sM+1}], s[{sM}:{sM+1}], vcc"]
    return st
def epi_qb(qb, store):
    so = [f"s_add_u32 s{sT}, s{sOOF}, {qb*131072}"]
    if O.vsum:
        inv = vP + 2 * qb
        st = so + ([f"v_accvgpr_read_b32 {vr(vL+q)}, {ar(aL+q)}" for q in range(4)] if qb == 3 else [])
    else:
        inv = vP + 2 * (qb & 1)
        st = [f"v_accvgpr_read_b32 {vr(inv+1)}, {ar(LA(qb))}", f"v_rcp_f32 {vr(inv)}, {vr(inv+1)}"]
        if O.chk: st += [f"v_cmp_nle_f32 vcc, {vr(inv+1)}, s{sTHR}"]
        st += so
        if O.chk: st += [f"s_or_b64 s[{sM}:{sM+1}], s[{sM}:{sM+1}], vcc"]
    for t in range(4):
        o = OA(2 * t, qb)
        st += [f"v_pk_mul_f32 {vr(o+2*i,2)}, {vr(o+2*i,2)}, {vr(inv,2)} op_sel_hi:[1,0]" for i in range(4)]
        d = vS + (qb * 4 + t) * 4
        st += [f"v_cvt_pk_bf16_f32 {vr(d+i)}, {vr(o+2*i)}, {vr(o+2*i+1)}" for i in range(4)]
        if store: st.append(o_store(vr(d, 4), qb, t, "ST", sT))
    return st

def last_slot(A, store, extra1=(), mid=None, extra2=()):
    D = O.D
    A.c("---- last slot + final PV + epilogue")
    pvm = pv_mf(0); n = len(pvm); nq = n // 4
    gaps = {g: [] for g in range(n)}
    lu = lastuse(pvm)
    for i, o in enumerate(v_reads(3, 1)):
        g = min(n - 1, lu[o[2][1]] + 1 + (i & 1)); gaps[g].append(o)
    sm = []
    for e in range(D, 32):
        sm.append(ex(1, e))
        if e > D and not (e & 1): sm.append(cv(1, (e >> 1) - 1))
        if O.vsum and e > D: sm.append(ad(1, e - 1))
    sm += ["s_nop 0", cv(1, 15)] + ([ad(1, 31)] if O.vsum else []) + ["s_nop 1"]
    ex_ = list(extra1)
    for g in range(0, n):
        if ex_ and not gaps[g]: gaps[g] += ex_.pop(0)
    assert not ex_
    A(f"s_mov_b64 s[{sM}:{sM+1}], 0")
    interleave(A, [m[0] for m in pvm], gaps, stream=sm, need=needs(pvm))
    if mid: mid()
    fin = pv_mf(1, qbmajor=True)
    st = row_sums() if O.vsum else []
    for qb in range(4):
        e = epi_qb(qb, store)
        k = 1 if O.vsum and qb < 3 else 0
        if qb == 3: st.append("s_nop 7")
        st += e[:k]; st.append([e[k], nq * qb + nq - 1 + 8]); st += e[k+1:]
    gaps = {g: [] for g in range(n)}
    ex_ = list(extra2)
    for g in range(0, n):
        if ex_ and (g < 16 or g % 2 == 0): gaps[g] += ex_.pop(0)
    assert not ex_
    interleave(A, [m[0] for m in fin], gaps, stream=st, need=needs(fin, group=8))

def fallback(A):
    A.label("L_fb")
    lane, g, i, r, ka, kb_, va, vd, t0, t1 = range(64, 74)
    run = 76
    A("s_waitcnt vmcnt(0) lgkmcnt(0)"); A("s_nop 7")
    A(f"v_mbcnt_lo_u32_b32 {vr(lane)}, -1, 0"); A(f"v_mbcnt_hi_u32_b32 {vr(lane)}, -1, {vr(lane)}")
    A(f"v_lshrrev_b32 {vr(g)}, 4, {vr(lane)}"); A(f"v_and_b32 {vr(i)}, 15, {vr(lane)}")
    A(f"v_and_b32 {vr(t0)}, 1, {vr(g)}"); A(f"v_lshlrev_b32 {vr(t0)}, 1, {vr(t0)}"); A(f"v_lshrrev_b32 {vr(t1)}, 1, {vr(g)}")
    A(f"v_or_b32 {vr(t0)}, {vr(t0)}, {vr(t1)}"); A(f"v_lshlrev_b32 {vr(t0)}, 4, {vr(t0)}")
    A(f"v_lshl_add_u32 {vr(ka)}, {vr(i)}, 8, {vr(t0)}"); A(f"v_add_u32 {vr(kb_)}, 4096, {vr(ka)}")
    A(f"v_lshlrev_b32 {vr(vd)}, 4, {vr(lane)}")
    A(f"s_lshl_b32 s{sT3}, s{sWAVE}, 13"); A(f"s_add_u32 s{sT3}, s{sT3}, {FBBASE}")
    if O.fuse: A(f"s_cmp_eq_u32 s{sUNIT}, 0"); A(f"s_cselect_b32 s{sT3}, s{sT3}, s{sWM+3}")
    A(f"v_lshrrev_b32 {vr(r)}, 2, {vr(i)}"); A(f"v_lshl_add_u32 {vr(t0)}, {vr(g)}, 2, {vr(r)}"); A(f"v_lshlrev_b32 {vr(t0)}, 8, {vr(t0)}")
    A(f"v_and_b32 {vr(t1)}, 3, {vr(i)}"); A(f"v_lshl_add_u32 {vr(t0)}, {vr(t1)}, 3, {vr(t0)}"); A(f"v_add_u32 {vr(va)}, s{sT3}, {vr(t0)}")
    def kload():
        for kb in range(2):
            for s in range(4):
                A(f"buffer_load_dwordx4 {ar(aKF+(kb*4+s)*4,4)}, {vr(kb_ if kb else ka)}, {sr(sK)}, s{sT} offen offset:{s*64}")
    for q in range(4): A(f"v_mov_b32 {vr(run+q)}, 0xff800000")
    A(f"s_lshl_b32 s{sT}, s{sUNIT}, 18"); A(f"s_add_u32 s{sT2}, s{sT}, 0x40000")
    A.label("L_fb1")
    kload(); A("s_waitcnt vmcnt(0)")
    for m in qk_mf(0, zero=True): A(m[0])
    A("s_nop 7")
    for q in range(4):
        for o in max_chain(q, 0, t0, t1, run=run + q): A(o)
    A(f"s_add_u32 s{sT}, s{sT}, 0x2000"); A(f"s_cmp_lt_u32 s{sT}, s{sT2}"); A("s_cbranch_scc1 L_fb1")
    for q in range(4):
        for o in xlane_max(run + q, t1): A(o)
        for rr in range(4): A(f"v_sub_f32 {vr(NEGM(q)+rr)}, 0, {vr(run+q)}")
    for k in range(128): A(f"v_mov_b32 {vr(vO+k)}, 0")
    for k in range(16): A(f"v_accvgpr_write_b32 {ar(aL+k)}, 0")
    A(f"s_lshl_b32 s{sT}, s{sUNIT}, 18")
    A.label("L_fb2")
    kload()
    for hf in range(2):
        A(f"s_add_u32 m0, s{sT3}, {hf*4096}"); A(f"s_add_u32 s3, s{sT}, {hf*4096}")
        for p in range(4): A(f"buffer_load_dwordx4 {vr(vd)}, {sr(sV)}, s3 offen offset:{p*1024} lds")
    A("s_waitcnt vmcnt(0)")
    for db in range(8):
        for jh in range(2): A(f"ds_read_b64_tr_b16 {ar(aVF+db*4+2*jh,2)}, {vr(va)} offset:{db*32+jh*4096}")
    for m in qk_mf(0): A(m[0])
    A("s_nop 7")
    for e in range(32): A(ex(0, e))
    A("s_nop 0")
    for k in range(16): A(cv(0, k))
    if O.vsum:
        for e in range(32): A(ad(0, e))
    A("s_waitcnt lgkmcnt(0)"); A("s_nop 1")
    for m in pv_mf(0): A(m[0])
    A(f"s_add_u32 s{sT}, s{sT}, 0x2000"); A(f"s_cmp_lt_u32 s{sT}, s{sT2}"); A("s_cbranch_scc1 L_fb2")
    A("s_nop 7")
    if O.vsum:
        for o in row_sums(): A(o)
    for qb in range(4):
        for o in epi_qb(qb, False): A(o)
    if O.fuse: A(f"s_cmp_eq_u32 s{sUNIT}, 0"); A("s_cbranch_scc1 L_fbret0")
    for qb in range(4):
        A(f"s_add_u32 s{sT}, s{sOOF}, {qb*131072}")
        for t in range(4): A(o_store(vr(vS + (qb * 4 + t) * 4, 4), qb, t, "ST", sT)[0])
    if not O.fuse: A(f"s_cmp_eq_u32 s{sUNIT}, 0"); A("s_cbranch_scc1 L_fbret0")
    if O.fuse: oproj_setup(A)
    A("s_branch L_fbret1")

def srd(A, d, lo, hi, off, size):
    A(f"s_add_u32 s{d}, s{lo}, {off}"); A(f"s_addc_u32 s{d+1}, s{hi}, 0"); A(f"s_and_b32 s{d+1}, s{d+1}, 0xffff")
    A(f"s_mov_b32 s{d+2}, {size}"); A(f"s_mov_b32 s{d+3}, 0x20000")

def one_lane(A, val, text, tag):
    A(f"v_mov_b32 v0, {val}"); A("s_mov_b64 exec, 1")
    A.op((text, "vm", tag))
    A("s_mov_b64 exec, -1")
def flag_ops(val, name):
    return [f"s_cmp_lg_u32 s{sWAVE}, 0", f"s_cbranch_scc1 L_np_{name}", f"v_mov_b32 v0, {val}", "s_mov_b64 exec, 1",
            f"buffer_store_byte v0, off, {sr(sCNT)}, s{sGI} sc1", "s_mov_b64 exec, -1", f"L_np_{name}:"]
def poll_text(): return f"buffer_load_dword v0, {vr(vTMP)}, {sr(sCNT)}, 0 offen sc1"
def poll_ops(name): return [f"s_cmp_lg_u32 s{sWAVE}, 0", f"s_cbranch_scc1 L_np_{name}", (poll_text(), "mark", name), f"L_np_{name}:"]
spins = []
def poll_test(A, mask, own):
    A(f"v_or_b32 v0, v0, {vr(own)}"); A(f"v_and_b32 v0, {hex(mask)}, v0"); A(f"v_cmp_ne_u32 vcc, {hex(mask)}, v0")
def poll_check(A, mask, name, own, mark):
    A(f"s_cmp_lg_u32 s{sWAVE}, 0"); A(f"s_cbranch_scc1 L_spun_{name}")
    A(f"s_waitcnt vmcnt({min(63, A.nvm - A.mark[mark])})")
    poll_test(A, mask, own); A(f"s_cbranch_vccnz L_spin_{name}")
    A.label(f"L_spun_{name}")
    spins.append((mask, name, own))
def emit_spins(A):
    for mask, name, own in spins:
        A.label(f"L_spin_{name}")
        A("s_mov_b32 s3, 0x40000")
        A.label(f"L_spinl_{name}")
        A(poll_text()); A("s_waitcnt vmcnt(0)")
        poll_test(A, mask, own); A(f"s_cbranch_vccz L_spun_{name}")
        A("s_sub_u32 s3, s3, 1"); A("s_cmp_lg_u32 s3, 0"); A(f"s_cbranch_scc1 L_spinl_{name}")
        A(f"s_branch L_spun_{name}")

PIECE = [[13, 14, 15, 0], [1, 2, 8, 9], [3, 10, 4, 5], [6, 7, 11, 12]]
X_OFF = 40 << 20
aWD = 212
vOQ, vWD, vOWN, vOWX = 16, 18, 28, 29
sWB, sR13, sWM, sWT = sWQW, sXW, 92, 84
def slab_c(j): return ((j & 7) << 13) | ((j >> 3) << 12)
def slab_o(j): return slab_c(j & 1) if O.ofake else slab_c(j)
def w_dma(j, hf, early=False):
    jw = j & 1 if O.wfake else j
    r = [[f"s_add_u32 s{sT2}, s{sWT+(jw&7)}, {(jw>>3)*163840}", f"s_add_u32 m0, s{sWM+(j&3)}, {hf*4096}"]]
    for p in range(5):
        v = vWD + hf * 5 + p
        if early:
            v = vOKV
            r[-1].append(f"v_accvgpr_read_b32 {vr(v)}, {ar(aWD+hf*5+p)}")
        if p == 4: r[-1].append(f"s_add_u32 m0, s{sWM+(j&3)}, 8192")
        r.append([(f"buffer_load_dwordx4 {vr(v)}, {sr(sW)}, s{sT2} offen offset:{(p if p < 4 else hf)*1024}{['', ' sc1', ' nt', ' sc0 sc1', ' sc0'][O.wofl]} lds", "vm", ("W", j))])
    return r
OPH = [2, 3, 7, 0, 1, 4, 5, 6]
def OF(j, kk, qq): return OPH[j & 7] * 32 + (kk * 2 + qq) * 4
def o_ld(j):
    r = [[f"s_xor_b32 s4, s{sR13}, {slab_o(j)}"]]
    for kk in range(4):
        for qq in range(2):
            r.append([(f"buffer_load_dwordx4 {ar(OF(j,kk,qq),4)}, {vr(vOQ+qq)}, {sr(sX)}, s4 offen offset:{kk*1024}{SC1()}", "vm", ("O", j))])
    r[1] = r[0] + r[1]
    return r[1:]
def mbox(op, reg, so, tag):
    r = [[(f"buffer_{op}_dwordx4 {reg(t)}, {vr(vOO)}, {sr(sO)}, s{so if t < 4 else sT} offen offset:{(t&3)*1024} sc1", "vm", tag)] for t in range(5)]
    r[3].append(f"s_add_u32 s{sT}, s{so}, 4096")
    return r
def oproj_early(A, tb):
    lane, t0, t1, t2 = range(tb, tb + 4)
    A(f"s_bfe_u32 s3, s7, 0x10002"); A(f"s_lshr_b32 s4, s7, 3")
    A(f"s_lshr_b32 s{sT}, s{sGI}, 4"); A(f"s_lshl_b32 s{sT}, s{sT}, 22")
    A(f"s_lshl_b32 s{sT2}, s3, 20"); A(f"s_add_u32 s{sT}, s{sT}, s{sT2}"); A(f"s_lshl_b32 s{sT2}, s4, 16"); A(f"s_add_u32 s{sT}, s{sT}, s{sT2}")
    srd(A, sX, sWS, sWS + 1, f"s{sT}", "0xf0000")
    A(f"s_mov_b64 s[{sW}:{sW+1}], s[{sWOI}:{sWOI+1}]"); A(f"s_mov_b32 s{sW+2}, 5242880")
    A(f"s_lshl_b32 s{sT}, s4, 6"); A(f"s_add_u32 s{sT}, s{sT}, s{sWAVE}"); A(f"s_mul_i32 s{sWB}, s{sT}, 40960")
    A(f"s_and_b32 s{sT}, s7, 3"); A(f"s_mul_i32 s{sT}, s{sT}, {256 if O.walign else 320}"); A(f"s_add_u32 s{sWB}, s{sWB}, s{sT}")
    if O.own1: A(f"s_and_b32 s{sR13}, s7, 7"); A(f"s_lshl_b32 s{sR13}, s{sR13}, 13")
    else: A(f"s_mov_b32 s{sR13}, 0")
    for j in range(8):
        A(f"s_xor_b32 s{sT}, s{sR13}, {slab_c(j)}"); A(f"s_mul_i32 s{sT}, s{sT}, 40"); A(f"s_add_u32 s{sWT+j}, s{sT}, s{sWB}")
    A(f"s_lshl_b32 s{sT}, s{sWAVE}, 2")
    for sl in range(4):
        A(f"s_lshr_b32 s{sT2}, {hex(sum(PIECE[sl][w] << (4 * w) for w in range(4)))}, s{sT}"); A(f"s_and_b32 s{sT2}, s{sT2}, 15")
        A(f"s_mul_i32 s{sWM+sl}, s{sT2}, 10240")
    A(f"v_bfe_u32 {vr(lane)}, {vr(vOO)}, 4, 6")
    A(f"s_and_b32 s3, s7, 1"); A(f"s_xor_b32 s4, s4, 1")
    A(f"v_lshrrev_b32 {vr(t0)}, 3, {vr(lane)}"); A(f"v_mul_u32_u24 {vr(t0)}, 1280, {vr(t0)}")
    A(f"v_lshrrev_b32 {vr(t1)}, 3, {vr(lane)}"); A(f"v_and_b32 {vr(t1)}, 6, {vr(t1)}"); A(f"v_and_b32 {vr(t2)}, 7, {vr(lane)}"); A(f"v_xor_b32 {vr(t1)}, {vr(t1)}, {vr(t2)}")
    A(f"v_lshl_add_u32 {vr(t0)}, {vr(t1)}, 4, {vr(t0)}")
    for h in range(2):
        A(f"s_xor_b32 s{sT}, s4, {h}"); A(f"s_lshl_b32 s{sT}, s{sT}, 1"); A(f"s_add_u32 s{sT}, s{sT}, s3"); A(f"s_lshl_b32 s{sT}, s{sT}, 6")
        for rb in range(4):
            A(f"v_add_u32 {vr(t1)}, s{sT}, {vr(t0)}"); A(f"v_accvgpr_write_b32 {ar(aWD+h*5+rb)}, {vr(t1)}")
            if rb < 3: A(f"s_add_u32 s{sT}, s{sT}, 9216")
    A(f"v_lshrrev_b32 {vr(t0)}, 2, {vr(lane)}"); A(f"v_mul_u32_u24 {vr(t0)}, 1280, {vr(t0)}")
    A(f"v_bfe_u32 {vr(t1)}, {vr(lane)}, 4, 1"); A(f"v_xor_b32 {vr(t1)}, s4, {vr(t1)}"); A(f"v_lshlrev_b32 {vr(t1)}, 1, {vr(t1)}")
    A(f"v_and_b32 {vr(t2)}, 3, {vr(lane)}"); A(f"v_xor_b32 {vr(t1)}, {vr(t1)}, {vr(t2)}"); A(f"v_lshl_add_u32 {vr(t0)}, {vr(t1)}, 4, {vr(t0)}")
    A(f"s_xor_b32 s3, s3, 1"); A(f"s_lshl_b32 s3, s3, 8"); A(f"v_add_u32 {vr(t0)}, s3, {vr(t0)}"); A(f"v_add_u32 {vr(t1)}, {20480-1024}, {vr(t0)}")
    A(f"v_accvgpr_write_b32 {ar(aWD+4)}, {vr(t0)}"); A(f"v_accvgpr_write_b32 {ar(aWD+9)}, {vr(t1)}")
    if O.wopre in (200, 250):
        A(f"s_and_b32 s{sT}, s{sGI}, 127"); A(f"s_mul_i32 s{sT}, s{sT}, 10240"); A(f"s_mul_i32 s{sTW}, s{sWAVE}, {1310720 - 524288}"); A(f"s_add_u32 s{sTW}, s{sTW}, s{sT}")
        A(f"s_add_u32 s{sTW-1}, s{sTW}, 9216")
    A(f"s_and_b32 s{sT}, s{sGI}, 0xf0"); A(f"v_and_b32 {vr(t0)}, 3, {vr(lane)}"); A(f"v_lshlrev_b32 {vr(t0)}, 2, {vr(t0)}"); A(f"v_add_u32 {vr(vTMP)}, s{sT}, {vr(t0)}")
def oproj_setup(A):
    A(f"s_lshl_b32 s{sT}, s{sWAVE}, 18"); A(f"v_and_b32 {vr(vOQ)}, 0x3ff, {vr(vOO)}")
    A(f"v_add_u32 {vr(vOQ)}, s{sT}, {vr(vOQ)}"); A(f"v_add_u32 {vr(vOQ+1)}, 0x20000, {vr(vOQ)}")
    for p in range(10): A(f"v_accvgpr_read_b32 {vr(vWD+p)}, {ar(aWD+p)}")
    A(f"s_and_b32 s{sT}, s{sGI}, 0xfc"); A(f"s_and_b32 s3, s{sGI}, 3"); A(f"s_lshl_b32 s3, s3, 3"); A(f"s_lshl_b32 s3, 0xff, s3")
    A(f"v_cmp_eq_u32 vcc, s{sT}, {vr(vTMP)}"); A(f"v_mov_b32 {vr(vOWN)}, s3"); A(f"s_xor_b32 s{sT}, s{sT}, 8"); A(f"v_cndmask_b32 {vr(vOWN)}, 0, {vr(vOWN)}, vcc")
    A(f"v_cmp_eq_u32 vcc, s{sT}, {vr(vTMP)}"); A(f"s_not_b32 s3, s3"); A(f"v_mov_b32 {vr(vOWX)}, s3"); A(f"v_cndmask_b32 {vr(vOWX)}, -1, {vr(vOWX)}, vcc")
    A(f"v_xor_b32 {vr(31)}, s{sGI}, {vr(vTMP)}"); A(f"v_bfe_i32 {vr(31)}, {vr(31)}, 3, 1")
    A(f"v_and_or_b32 {vr(vOWX)}, {vr(vOWX)}, {vr(31)}, {vr(vOWN)}"); A(f"v_or_b32 {vr(vOWN)}, {vr(vOWN)}, {vr(31)}")

def oproj(A):
    vWR = 200
    vACC, vWF = 40, 120
    def ACC(h, qq, nb): return vACC + h * 40 + (qq * 5 + nb) * 4
    def WF(par, f): return vWF + par * 40 + f * 4
    A.c("---- O projection")
    lane, t0, t1 = 38, 39, 37
    A(f"v_bfe_u32 {vr(lane)}, {vr(vOO)}, 4, 6"); A(f"v_lshrrev_b32 {vr(t0)}, 5, {vr(lane)}"); A(f"v_lshlrev_b32 {vr(t0)}, 10, {vr(t0)}")
    A(f"v_bfe_u32 {vr(t1)}, {vr(lane)}, 2, 3"); A(f"v_lshl_add_u32 {vr(t0)}, {vr(t1)}, 7, {vr(t0)}")
    A(f"v_and_b32 {vr(t1)}, 3, {vr(lane)}"); A(f"v_lshl_add_u32 {vr(t0)}, {vr(t1)}, 3, {vr(t0)}")
    A(f"v_bfe_u32 {vr(t1)}, {vr(lane)}, 3, 2"); A(f"v_lshl_add_u32 {vr(vWR)}, {vr(t1)}, 5, {vr(t0)}")
    for nb in range(1, 4): A(f"v_xor_b32 {vr(vWR+3*nb)}, {nb*32}, {vr(vWR)}")
    A(f"v_lshrrev_b32 {vr(t0)}, 2, {vr(lane)}"); A(f"v_lshlrev_b32 {vr(t0)}, 6, {vr(t0)}"); A(f"v_and_b32 {vr(t1)}, 3, {vr(lane)}"); A(f"v_lshl_add_u32 {vr(t0)}, {vr(t1)}, 3, {vr(t0)}")
    A(f"v_bfe_u32 {vr(t1)}, {vr(lane)}, 4, 1"); A(f"v_lshl_add_u32 {vr(vWR+12)}, {vr(t1)}, 5, {vr(t0)}"); A(f"v_xor_b32 {vr(vWR+15)}, 32, {vr(vWR+12)}")
    for q in range(6):
        for w in (2, 1): A(f"v_add_u32 {vr(vWR+3*q+w)}, {51200*w}, {vr(vWR+3*q)}")
    nd_ = O.ndef; nf = 16 - nd_
    steps = [(j, kk, (0, 1)) for j in range(nf) for kk in range(4)] + [(j, kk, (h,)) for h in range(2) for j in range(nf, 16) for kk in range(4)]
    def w_rd(i):
        j, kk, hs = steps[i]
        pc = PIECE[j & 3][kk]; w = min(pc // 5, 2)
        return [(f"ds_read_b64_tr_b16 {vr(WF(i&1,f*5+nb)+2*jh,2)}, {vr(vWR+3*(nb if nb < 4 else 4+h)+w)} offset:{pc*10240-w*51200+(h*4096+jh*2048 if nb < 4 else 8192+jh*1024)}", "ds", ("WF", i & 1, f * 5 + nb))
                for f, h in enumerate(hs) for nb in range(5) for jh in range(2) if not (O.lfake and f == 1)]
    for ops in o_ld(3):
        for o in ops: A.op(o)
    A.wait(vm=[("W", 0), ("O", 0)]); A("s_barrier")
    for o in w_rd(0): A.op(o)
    mf = []; need = {}; gaps = {}; pre = {}; start = []; bars = {}
    for i, (j, kk, hs) in enumerate(steps):
        start.append(len(mf))
        for f, h in enumerate(hs):
            for nb in range(5):
                if nb in (0, 2): need[len(mf)] = [("WF", i & 1, f * 5 + q) for q in ((0, 1) if nb == 0 else (2, 3, 4))]
                for qq in range(2):
                    c = "0" if (j == 0 and kk == 0) else vr(ACC(h, qq, nb), 4)
                    mf.append(f"{MF} {vr(ACC(h,qq,nb),4)}, {vr(WF(i&1,f*5+nb),4)}, {ar(OF(j,kk,qq),4)}, {c}")
    n = len(mf); start.append(n)
    gaps = {g: [] for g in range(n)}
    iB = len(steps) - 4 * nd_; gB = start[iB]
    for i, (j, kk, hs) in enumerate(steps):
        g0 = start[i]; ln = start[i + 1] - g0; lo = 0
        if kk == 3 and i < iB and j + 1 < 16:
            lo = O.obar if ln == 20 else 2
            bars[j] = g0 + lo
            p = [("", "wait", dict(vm=[("W", j + 1), ("O", j + 1)] + (["ST"] if j == O.pub2 else []), dsn=0 if j + 4 < 16 else None))]
            if j == 4: p.append(("", "call", lambda A_: poll_check(A_, 0x03030303, "u2", vOWN, "p2")))
            p.append("s_barrier")
            if j == O.pub2: p += flag_ops(3, "f2")
            if j == 3: p += poll_ops("p2")
            pre[g0 + lo] = p
        if i + 1 < len(steps):
            rd = w_rd(i + 1); np_ = len(rd) // 2
            stp = 2 if lo + 2 * np_ <= ln + 1 else 1.5
            if O.lfake and ln == 20:
                for q in range(len(rd)): gaps[g0 + lo + int(q * (2 if lo == 0 else 1.5))] += rd[q:q + 1]
            else:
                for q in range(np_): gaps[g0 + lo + int(q * stp)] += rd[2 * q:2 * q + 2]
    def spread(mem, g, sp, dense=False, dry=False):
        for ops in mem:
            while gaps[g] or g + 1 in pre or (g + 1 in need and not dense): g += 1
            if not dry: gaps[g] += ops
            g += sp if any(is_vm(o) for o in ops) else 1
        return g
    spread(w_dma(3, 0) + w_dma(3, 1), 1, 2)
    for j in range(12):
        mem = w_dma(j + 4, 0) + ([] if O.whalf else w_dma(j + 4, 1)) + o_ld(j + 4)
        dn = spread(mem, bars[j], O.osp, dry=True) > bars[j + 1]
        assert spread(mem, bars[j], O.osp, dn) <= bars[j + 1], j
    vXS, vXR = 220, vACC
    xs = []
    st = mbox("store", lambda t: vr(vXS + 4 * t, 4), sXO, "XS")
    for t in (0, 2, 3, 1, 4):
        xs += [[f"v_cvt_pk_bf16_f32 {vr(vXS+4*t+q)}, {vr(vACC+8*t+2*q)}, {vr(vACC+8*t+2*q+1)}" for q in range(2 * u, 2 * u + 2)] for u in range(2)]
        if t == 4: xs.append([st[3][1]])
        xs.append(st[t][:1])
    e = spread(xs, gB + 1, 1, True)
    xl = mbox("load", lambda t: vr(vXR + 4 * t, 4), sXI, "XL")
    assert e < n - O.xld
    spread(xl, n - O.xld, 1, True)
    for j in (4, 9): pre[start[4 * j]] = pre.get(start[4 * j], []) + [("", "call", lambda A_, j=j: stamp(A_, f"slab{j}", 2))]
    for j in (1, 4, 6, 12): pre[start[4 * j]] = pre.get(start[4 * j], []) + [("", "call", lambda A_, j=j: stamp(A_, f"slab{j}", 6))]
    pre[gB] = pre.get(gB, []) + [("", "call", lambda A_: stamp(A_, "phaseB", 5))]
    interleave(A, mf, gaps, pre=pre, need=need)
    stamp(A, "oproj loop done"); stamp(A, "oloop", 5); stamp(A, "oloop", 6)
    A(f"v_and_b32 {vr(t0)}, 15, {vr(lane)}"); A(f"v_mul_u32_u24 {vr(t0)}, 2560, {vr(t0)}"); A(f"v_lshrrev_b32 {vr(t1)}, 4, {vr(lane)}")
    A(f"s_mul_i32 s{sT}, s{sWAVE}, {32*2560}"); A(f"s_and_b32 s3, s7, 1"); A(f"s_lshr_b32 s4, s7, 3")
    A(f"s_lshl_b32 s{sT2}, s4, 1"); A(f"s_add_u32 s{sT2}, s{sT2}, s3"); A(f"s_lshl_b32 s{sT2}, s{sT2}, 6"); A(f"s_add_u32 s{sT2}, s{sT2}, s{sT}")
    A(f"s_xor_b32 s3, s3, 1"); A(f"s_lshl_b32 s3, s3, 3"); A(f"s_add_u32 s3, s3, s4"); A(f"s_lshl_b32 s3, s3, 5"); A(f"s_add_u32 s3, s3, s{sT}")
    A(f"v_lshl_add_u32 {vr(vOQ+1)}, {vr(t1)}, 3, {vr(t0)}"); A(f"v_add_u32 {vr(vOQ+1)}, s3, {vr(vOQ+1)}")
    A(f"v_bfe_u32 {vr(t1)}, {vr(lane)}, 4, 1"); A(f"v_lshl_add_u32 {vr(t0)}, {vr(t1)}, 5, {vr(t0)}")
    A(f"v_lshrrev_b32 {vr(t1)}, 5, {vr(lane)}"); A(f"v_lshl_add_u32 {vr(vOQ)}, {vr(t1)}, 4, {vr(t0)}"); A(f"v_add_u32 {vr(vOQ)}, s{sT2}, {vr(vOQ)}")
    def xtest():
        A(f"v_max3_u32 {vr(t0)}, {vr(vXR)}, {vr(vXR+1)}, {vr(vXR+2)}"); A(f"v_max3_u32 {vr(t1)}, {vr(vXR+3)}, {vr(vXR+4)}, {vr(vXR+5)}")
        for q in range(6, 20, 2): A(f"v_max3_u32 {vr(t0 if q & 2 else t1)}, {vr(t0 if q & 2 else t1)}, {vr(vXR+q)}, {vr(vXR+q+1)}")
        A(f"v_max_u32 {vr(t0)}, {vr(t0)}, {vr(t1)}"); A(f"v_cmp_eq_u32 vcc, -1, {vr(t0)}")
    A("s_mov_b32 s4, 0x40000")
    A.label("L_xpoll")
    A("s_waitcnt vmcnt(0)"); A.vm = []
    xtest(); A("s_cbranch_vccz L_xdone")
    for ops in xl:
        for o in ops: A(o if isinstance(o, str) else o[0])
    A("s_sub_u32 s4, s4, 1"); A("s_cmp_lg_u32 s4, 0"); A("s_cbranch_scc1 L_xpoll")
    A("s_waitcnt vmcnt(0)")
    A.label("L_xdone")
    stamp(A, "xflag", 5)
    A(f"s_mov_b32 s{sT}, {16*2560}"); A("s_movk_i32 s3, 0x3f80"); A("s_mov_b32 s4, 0x3f800000")
    for qq in range(2):
        d = vWF + qq * 10; ac = ACC(1, qq, 0)
        for i in range(20): A(f"v_dot2_f32_bf16 {vr(ac+i)}, {vr(vXR+qq*10+i//2)}, s{3+(i&1)}, {vr(ac+i)}")
        for i in range(10): A(f"v_cvt_pk_bf16_f32 {vr(d+i)}, {vr(ac+2*i)}, {vr(ac+2*i+1)}")
        so = f"s{sT}" if qq else "0"
        A("s_nop 0")
        for P_ in range(2):
            for q in range(2): A(f"v_permlane16_swap_b32 {vr(d+4*P_+q)}, {vr(d+4*P_+2+q)}")
        A.op((f"buffer_store_dwordx2 {vr(d+8,2)}, {vr(vOQ+1)}, {sr(sOUT)}, {so} offen{OFL()}", "vm", "OUT"))
        A.op((f"buffer_store_dwordx4 {vr(d,4)}, {vr(vOQ)}, {sr(sOUT)}, {so} offen{OFL()}", "vm", "OUT"))
        A.op((f"buffer_store_dwordx4 {vr(d+4,4)}, {vr(vOQ)}, {sr(sOUT)}, {so} offen offset:64{OFL()}", "vm", "OUT"))

def gen_kernel(k):
    A = Asm()
    A("s_cmp_ge_u32 s2, 256"); A("s_cbranch_scc1 L_end")
    stamp(A, "t0")
    if O.cpre:
        A("s_getpc_b64 s[84:85]"); A("s_and_b32 s84, s84, 0xffffff00"); A("s_and_b32 s85, s85, 0xffff")
        A("s_mov_b32 s86, L_codeend-attn_kernel"); A("s_mov_b32 s87, 0x20000")
        A("s_lshr_b32 s3, s2, 3"); A("s_lshl_b32 s3, s3, 12"); A("v_lshlrev_b32 v4, 4, v0")
        A.op(("buffer_load_dwordx4 v[252:255], v4, s[84:87], s3 offen", "vm", "CODE"))
        A("s_nop 4")
    A("s_load_dwordx16 s[64:79], s[0:1], 0")
    A("s_load_dwordx8 s[80:87], s[0:1], 64")
    A(f"s_load_dwordx2 s[{sWS}:{sWS+1}], s[0:1], 96")
    A("s_and_b32 s3, s2, 7"); A("s_lshr_b32 s4, s2, 3"); A("s_lshr_b32 s5, s3, 2")
    if O.map2:
        A("s_bfe_u32 s6, s3, 0x10001"); A("s_lshl_b32 s6, s6, 2"); A("s_lshr_b32 s7, s4, 3"); A("s_add_u32 s6, s6, s7")
        A("s_and_b32 s7, s3, 1"); A("s_lshl_b32 s7, s7, 3"); A("s_and_b32 s4, s4, 7"); A("s_add_u32 s7, s7, s4")
    else:
        A("s_and_b32 s6, s3, 3"); A("s_lshl_b32 s6, s6, 1"); A("s_lshr_b32 s7, s4, 4"); A("s_add_u32 s6, s6, s7")
        A("s_and_b32 s7, s4, 15")
    vAW, vOW, vOX, vAX = 16, 24, 28, 36
    lane, g, i, r, t0, t1, t2, t3, h = range(48, 57)
    A(f"v_lshrrev_b32 {vr(t0)}, 6, v0"); A(f"v_and_b32 {vr(lane)}, 63, v0"); A(f"v_readfirstlane_b32 s{sWAVE}, {vr(t0)}")
    A(f"v_lshrrev_b32 {vr(g)}, 4, {vr(lane)}"); A(f"v_and_b32 {vr(i)}, 15, {vr(lane)}"); A(f"v_lshrrev_b32 {vr(h)}, 5, {vr(lane)}")
    A(f"s_and_b32 s{sT2}, s{sWAVE}, 1"); A(f"s_lshl_b32 s{sT2}, s{sT2}, 3")
    A(f"s_lshl_b32 s{sT}, s{sWAVE}, 16")
    A(f"v_and_b32 {vr(t2)}, 31, {vr(lane)}"); A(f"v_xor_b32 {vr(t2)}, s{sT2}, {vr(t2)}")
    for p in range(2):
        A(f"v_add_u32 {vr(t0)}, {2*p}, {vr(h)}"); A(f"v_lshlrev_b32 {vr(t1)}, 1, {vr(t0)}"); A(f"v_xor_b32 {vr(t1)}, {vr(t1)}, {vr(t2)}")
        A(f"v_lshlrev_b32 {vr(t1)}, 4, {vr(t1)}"); A(f"v_lshl_add_u32 {vr(t1)}, {vr(t0)}, 13, {vr(t1)}")
        A(f"v_add_u32 {vr(vOW+p)}, s{sT}, {vr(t1)}")
        if p: A(f"v_subrev_u32 {vr(vOW+p)}, 1024, {vr(vOW+p)}")
        A(f"v_add_u32 {vr(vOW+p+2)}, {4*8192-2048}, {vr(vOW+p)}")
    A(f"s_mul_i32 s{sT}, s{sWAVE}, {64*1280}")
    A(f"v_lshrrev_b32 {vr(t0)}, 3, {vr(lane)}"); A(f"v_mul_u32_u24 {vr(t0)}, 1280, {vr(t0)}"); A(f"v_add_u32 {vr(t0)}, s{sT}, {vr(t0)}")
    A(f"v_and_b32 {vr(t1)}, 7, {vr(lane)}"); A(f"v_xor_b32 {vr(t1)}, {vr(t1)}, {vr(g)}")
    A(f"v_lshl_add_u32 {vr(vOX)}, {vr(t1)}, 4, {vr(t0)}"); A(f"v_xor_b32 {vr(t1)}, 4, {vr(t1)}"); A(f"v_lshl_add_u32 {vr(t0)}, {vr(t1)}, 4, {vr(t0)}")
    A(f"v_add_u32 {vr(vOX+1)}, {10240-1024}, {vr(t0)}")
    for p in range(2, 8): A(f"v_add_u32 {vr(vOX+p)}, {(p&~1)*10240 - ((p&3)&~1)*1024}, {vr(vOX+(p&1))}")
    A(f"s_lshl_b32 s{sKVW}, s{sWAVE}, 12"); A(f"s_add_u32 s{sVVW}, s{sKVW}, {VBASE}"); A(f"s_add_u32 s{sWQW}, s{sKVW}, {WQBASE}")
    A(f"s_lshl_b32 s{sXW}, s{sWAVE}, 13")
    A(f"s_lshl_b32 s4, s6, 4"); A(f"s_add_u32 s4, s4, s7")
    A(f"s_lshl_b32 s{sT}, s7, 9"); A(f"s_sub_u32 s{sW+2}, {640*8192}, s{sT}"); A(f"s_mov_b32 s{sW+3}, 0x20000")
    A(f"s_mul_i32 s{sT3}, s6, 327680"); A(f"s_mov_b32 s{sX+2}, 327680"); A(f"s_mov_b32 s{sX+3}, 0x20000")
    A("s_cmp_eq_u32 s5, 1")
    A("s_waitcnt lgkmcnt(0)")
    if O.stamps and O.stm == 1: A("s_memtime s[50:51]"); A("s_memrealtime s[98:99]"); nstamp[0] += 1; stamp_names.append("karg")
    for q in (3, 0, 1, 2, 4): A(f"s_cselect_b64 s[{64+2*q}:{65+2*q}], s[{74+2*q}:{75+2*q}], s[{64+2*q}:{65+2*q}]")
    A(f"s_add_u32 s{sW}, s70, s{sT}"); A(f"s_addc_u32 s{sW+1}, s71, 0"); A(f"s_and_b32 s{sW+1}, s{sW+1}, 0xffff")
    A(f"s_add_u32 s{sX}, s64, s{sT3}"); A(f"s_addc_u32 s{sX+1}, s65, 0"); A(f"s_and_b32 s{sX+1}, s{sX+1}, 0xffff")
    def AF(buf, nb): return buf * 64 + nb * 4
    def XR(G, ks, qb): return 128 + (G & 1) * 32 + (ks * 4 + qb) * 4
    def ACC(nb, qb): return vr(48 + (nb * 4 + qb) * 4, 4) if nb < 13 else ar(208 + ((nb - 13) * 4 + qb) * 4, 4)
    def wq_dma(kk):
        return [[f"s_add_u32 m0, s{sWQW}, {(kk&3)*16384}", f"s_mov_b32 s{sT2}, {kk*262144}"]] + \
               [[(f"buffer_load_dwordx4 {vr(vOW+p)}, {sr(sW)}, s{sT2} offen offset:{p*1024}{' nt' if O.w_nt else ''} lds", "vm", ("W", kk))] for p in range(4)]
    def x_dma(G):
        r = [[f"s_add_u32 m0, s{sXW}, {XB[G&1]}", f"s_movk_i32 s{sT2}, {G*128}"]]
        r += [[(f"buffer_load_dwordx4 {vr(vOX+p)}, {sr(sX)}, s{sT2} offen offset:{(p&3)*1024}{' nt' if O.x_nt else ''} lds", "vm", ("X", G))] for p in range(8)]
        r[4].append(f"s_add_u32 m0, s{sXW}, {XB[G&1]+4096}")
        return r
    def flat(groups):
        for grp in groups:
            for ops in grp:
                for o in ops: A.op(o)
    flat([wq_dma(0), x_dma(0), wq_dma(1), x_dma(1)])
    def kv_groups(kind, tile):
        su, pcs, po = dma_k(tile, (kind, tile)) if kind == "K" else dma_v(tile, (kind, tile))
        return [[su]] + [[p] for p in pcs[:3]] + [[pcs[3], po]]
    A(f"s_mov_b32 s{sWOI}, s72"); A(f"s_and_b32 s{sWOI+1}, s73, 0xffff")
    A(f"s_lshl_b32 s{sT}, s4, 19")
    srd(A, sK, 66, 67, f"s{sT}", "0x80000")
    srd(A, sV, 68, 69, f"s{sT}", "0x80000")
    A(f"s_lshl_b32 s{sGI}, s5, 3"); A(f"s_add_u32 s{sGI}, s{sGI}, s6"); A(f"s_lshl_b32 s{sT2}, s{sGI}, 22")
    srd(A, sO, sWS, sWS + 1, f"s{sT2}", 0x200000 + 16 * 20480)
    A(f"s_lshl_b32 s{sT}, s6, 1"); A(f"s_bfe_u32 s{sT2}, s7, 0x10002"); A(f"s_add_u32 s{sT}, s{sT}, s{sT2}"); A(f"s_mul_i32 s{sT}, s{sT}, {128*2560}")
    A(f"s_mul_i32 s{sT2}, s5, 1280"); A(f"s_add_u32 s{sT}, s{sT}, s{sT2}"); A(f"s_and_b32 s{sT2}, s7, 3"); A(f"s_mul_i32 s{sT2}, s{sT2}, 320")
    A(f"s_add_u32 s{sT}, s{sT}, s{sT2}")
    if O.stamps and O.stm == 1: A("s_waitcnt lgkmcnt(0)"); A("s_mov_b32 s66, s98"); A("s_mov_b32 s67, s99")
    srd(A, sOUT, 84, 85, f"s{sT}", 127 * 2560 + 320)
    srd(A, sCNT, 86, 87, 0, 256)
    A(f"s_lshl_b32 s{sGI}, s{sGI}, 4"); A(f"s_add_u32 s{sGI}, s{sGI}, s7")
    A(f"s_lshl_b32 s{sOOF}, s7, 13")
    A(f"s_mov_b32 s{sKOFF}, 0"); A(f"s_mov_b32 s{sVOFF}, 0"); A(f"s_mov_b32 s{sSTUB}, 99")
    A(f"s_mov_b32 s{sTHR}, {hex(f32bits(2.0**O.thr_log2 if not O.forcefb else -1.0))}")
    A(f"s_mov_b32 s{sSC}, {hex(f32bits(128**-0.5*math.log2(math.e)))}"); A(f"s_mov_b32 s{sSC+1}, s{sSC}")
    A(f"v_lshrrev_b32 {vr(r)}, 2, {vr(i)}")
    A(f"v_and_b32 {vr(t0)}, 1, {vr(g)}"); A(f"v_lshl_add_u32 {vr(t0)}, {vr(t0)}, 2, {vr(r)}")
    A(f"v_lshl_add_u32 {vr(t1)}, {vr(g)}, 3, {vr(r)}"); A(f"v_lshlrev_b32 {vr(t1)}, 9, {vr(t1)}")
    A(f"v_and_b32 {vr(t2)}, 3, {vr(i)}"); A(f"v_lshl_add_u32 {vr(t1)}, {vr(t2)}, 3, {vr(t1)}"); A(f"v_add_u32 {vr(t1)}, {WQBASE}, {vr(t1)}")
    for n3 in range(8):
        A(f"v_xor_b32 {vr(t3)}, {n3}, {vr(t0)}"); A(f"v_lshl_add_u32 {vr(vAW+n3)}, {vr(t3)}, 5, {vr(t1)}")
    A(f"v_lshrrev_b32 {vr(t0)}, 1, {vr(i)}"); A(f"v_xor_b32 {vr(t0)}, {vr(t0)}, {vr(g)}")
    A(f"v_lshlrev_b32 {vr(t1)}, 7, {vr(i)}"); A(f"v_add_u32 {vr(t1)}, s{sXW}, {vr(t1)}")
    A(f"v_lshl_add_u32 {vr(vAX)}, {vr(t0)}, 4, {vr(t1)}"); A(f"v_xor_b32 {vr(vAX+1)}, 64, {vr(vAX)}")
    A(f"v_lshl_add_u32 {vr(t1)}, {vr(r)}, 4, {vr(t2)}"); A(f"v_lshlrev_b32 {vr(t1)}, 8, {vr(t1)}")
    A(f"v_and_b32 {vr(t0)}, 1, {vr(r)}"); A(f"v_lshlrev_b32 {vr(t0)}, 3, {vr(t0)}"); A(f"v_lshl_add_u32 {vr(t0)}, {vr(t2)}, 1, {vr(t0)}")
    A(f"v_lshrrev_b32 {vr(t3)}, 3, {vr(i)}"); A(f"v_add_u32 {vr(t0)}, {vr(t0)}, {vr(t3)}")
    A(f"v_and_b32 {vr(t3)}, 1, {vr(g)}"); A(f"v_lshl_add_u32 {vr(t3)}, {vr(t3)}, 1, {vr(h)}"); A(f"v_xor_b32 {vr(t0)}, {vr(t0)}, {vr(t3)}")
    A(f"v_lshl_add_u32 {vr(vAK)}, {vr(t0)}, 4, {vr(t1)}")
    for s in range(1, 4): A(f"v_xor_b32 {vr(vAK+s)}, {s*64}, {vr(vAK)}")
    A(f"v_lshl_add_u32 {vr(t1)}, {vr(g)}, 4, {vr(r)}"); A(f"v_lshlrev_b32 {vr(t1)}, 8, {vr(t1)}")
    A(f"v_and_b32 {vr(t0)}, 1, {vr(i)}"); A(f"v_lshl_add_u32 {vr(t1)}, {vr(t0)}, 3, {vr(t1)}"); A(f"v_add_u32 {vr(t1)}, {VBASE}, {vr(t1)}")
    A(f"v_and_b32 {vr(t0)}, 1, {vr(g)}"); A(f"v_lshlrev_b32 {vr(t0)}, 3, {vr(t0)}"); A(f"v_lshl_add_u32 {vr(t0)}, {vr(r)}, 1, {vr(t0)}")
    A(f"v_add_u32 {vr(t0)}, {vr(t0)}, {vr(h)}"); A(f"v_bfe_u32 {vr(t3)}, {vr(i)}, 1, 1"); A(f"v_xor_b32 {vr(t0)}, {vr(t0)}, {vr(t3)}")
    A(f"v_lshl_add_u32 {vr(vAV)}, {vr(t0)}, 4, {vr(t1)}")
    for db in range(1, 8): A(f"v_xor_b32 {vr(vAV+db)}, {db*32}, {vr(vAV)}")
    A(f"s_and_b32 s{sT}, s{sWAVE}, 1"); A(f"s_lshl_b32 s{sT}, s{sT}, 3"); A(f"s_lshr_b32 s{sT2}, s{sWAVE}, 1"); A(f"s_add_u32 s{sT}, s{sT}, s{sT2}")
    A(f"v_lshlrev_b32 {vr(t0)}, 1, {vr(g)}"); A(f"v_add_u32 {vr(t0)}, s{sT}, {vr(t0)}"); A(f"v_xor_b32 {vr(t0)}, {vr(t0)}, {vr(i)}")
    A(f"v_lshlrev_b32 {vr(t0)}, 4, {vr(t0)}"); A(f"v_lshl_add_u32 {vr(t0)}, {vr(g)}, 8, {vr(t0)}"); A(f"v_add_u32 {vr(vOKV)}, s{sKVW}, {vr(t0)}")
    A(f"s_lshl_b32 s{sT}, s{sWAVE}, 19"); A(f"v_lshlrev_b32 {vr(t0)}, 4, {vr(lane)}"); A(f"v_add_u32 {vr(vOO)}, s{sT}, {vr(t0)}")
    if O.fuse:
        A(f"s_mul_i32 s{sT}, s{sWAVE}, {5120 - (1 << 19)}"); A(f"s_add_u32 s{sT}, s{sT}, 0x200000")
        A(f"s_mul_i32 s{sXI}, s7, 20480"); A(f"s_add_u32 s{sXI}, s{sXI}, s{sT}")
        A(f"s_xor_b32 s{sXO}, s7, 8"); A(f"s_mul_i32 s{sXO}, s{sXO}, 20480"); A(f"s_add_u32 s{sXO}, s{sXO}, s{sT}")
        for q in range(4): A(f"v_mov_b32 {vr(40+q)}, -1")
    if 0 <= O.wopre < 200:
        A(f"s_mov_b32 s{sWOI+2}, 5242880"); A(f"s_mov_b32 s{sWOI+3}, 0x20000")
        A(f"s_lshl_b32 s{sT}, s4, 2"); A(f"s_add_u32 s{sT}, s{sT}, s{sWAVE}"); A(f"s_mul_i32 s{sT}, s{sT}, 10240")
        A(f"v_lshlrev_b32 {vr(t0)}, 4, {vr(lane)}"); A(f"v_add_u32 {vr(vTMP)}, s{sT}, {vr(t0)}")
    if O.kv0 < 0: flat([kv_groups("K", 0), kv_groups("V", 0)])
    stamp(A, "setup done", 1)
    def wo_pre(i, kk):
        n = 10 // O.wopn; r = []
        for q in range(i * n, (i + 1) * n):
            if q == i * n or q % 4 == 0:
                r.append([f"s_add_u32 m0, s{sKVW}, {0 if kk < 15 else 131072}", f"s_movk_i32 s{sT2}, {(q & ~3)*1024}"])
            r.append([(f"buffer_load_dwordx4 {vr(vTMP)}, {sr(sWOI)}, s{sT2} offen offset:{(q&3)*1024}{' nt' if O.wopre_nt else ''} lds", "vm", "WOP")])
        return r
    if O.wopre == 99: flat([wo_pre(0, 0)])
    def a_reads(kk):
        return [(f"ds_read_b64_tr_b16 {ar(AF(kk&1,nb)+2*jh,2)}, {vr(vAW+(nb&7))} offset:{(kk&3)*16384+jh*2048+(nb>>3)*256}", "ds", "A")
                for nb in range(16) for jh in range(2)]
    def x_reads(G):
        return [(f"ds_read_b128 {ar(XR(G,ks,qb),4)}, {vr(vAX+ks)} offset:{XB[G&1]+qb*2048}", "ds", "XR") for ks in range(2) for qb in range(4)]
    A.wait(vm=[("W", 0), ("X", 0)]); A("s_barrier")
    stamp(A, "wq0 landed"); stamp(A, "wq0 landed", 1); stamp(A, "wq0 landed", 3)
    for o in x_reads(0) + a_reads(0): A.op(o)
    flat([wq_dma(2), wq_dma(3)])
    KVS = [int(x) for x in O.kvs.split(",")]
    assert KVS[2] >= 15 and KVS[3] >= 15 and KVS[4] >= 16 and KVS[5] >= 17 and KVS[6] >= 17 and KVS[0] <= KVS[2] <= KVS[3] <= KVS[5] and KVS[1] <= KVS[4] <= KVS[6]
    for kk in range(20):
        A.c(f"---- qproj step {kk}")
        G, ks = kk >> 1, kk & 1
        if kk in (1, 4): stamp(A, f"step{kk}", 1)
        if kk in (4, 8, 12, 15): stamp(A, f"step{kk}", 3)
        nd = ([("W", kk + 1)] if kk + 1 < 20 else []) + ([("X", G + 1)] if ks == 0 and G + 1 < 10 else [])
        A.wait(vm=nd, dsn=0); A("s_barrier")
        mf = [f"{MF} {ACC(nb,qb)}, {ar(AF(kk&1,nb),4)}, {ar(XR(G,ks,qb),4)}, {ACC(nb,qb) if kk else '0'}" for nb in range(16) for qb in range(4)]
        gaps = {q: [] for q in range(64)}
        mem = []
        if kk + 4 < 20: mem += wq_dma(kk + 4)
        if kk == 0: mem += x_dma(2)
        if ks == 1 and G + 3 < 10: mem += x_dma(G + 3)
        if O.wopre >= 0 and O.wopre <= kk < O.wopre + O.wopn: mem += wo_pre(kk - O.wopre, kk)
        if O.fuse and kk == O.xfill: mem += mbox("store", lambda t: vr(40, 4), sXI, "XF")
        for (kind, tile), at in zip((("K", 0), ("V", 0), ("K", 1), ("K", 2), ("V", 1), ("K", 3), ("V", 2)), KVS):
            if kk == at: mem += kv_groups(kind, tile)
        rd = (x_reads(G + 1) if ks == 0 and G + 1 < 10 else []) + (a_reads(kk + 1) if kk + 1 < 20 else [])
        sp = max(2, min(O.qsp, 56 // max(1, len(mem))))
        for q, ops in enumerate(mem): gaps[1 + sp * q] += ops
        fr = [q for q in range(60) if not gaps[q]]
        two = max(0, len(rd) - len(fr))
        fr = sorted(fr + fr[:two])
        for q, o in enumerate(rd): gaps[fr[(q * len(fr)) // len(rd)]].append(o)
        interleave(A, mf, gaps)
    stamp(A, "qproj done"); stamp(A, "qproj done", 3)
    if O.fuse and O.xfill == 20: flat([mbox("store", lambda t: vr(40, 4), sXI, "XF")])
    A("s_nop 7")
    def conv_front(hd, s, qb, T0, T1, tb):
        for T in (T0, T1):
            for q in range(2): A(f"v_pk_mul_f32 {vr(T+2*q,2)}, {vr(T+2*q,2)}, s[{sSC}:{sSC+1}]")
        for q in range(2): A(f"v_cvt_pk_bf16_f32 {vr(tb+q)}, {vr(T0+2*q)}, {vr(T0+2*q+1)}")
        for q in range(2): A(f"v_cvt_pk_bf16_f32 {vr(tb+2+q)}, {vr(T1+2*q)}, {vr(T1+2*q+1)}")
    def conv_back(hd, s, qb, tb):
        for q in range(2): A(f"v_permlane16_swap_b32 {vr(tb+q)}, {vr(tb+2+q)}")
    def conv_wr(hd, s, qb, tb):
        for q in range(4): A(f"v_accvgpr_write_b32 {ar(hd*64+(qb*4+s)*4+q)}, {vr(tb+q)}")
    jobs = []
    for pr in range(8):
        for qb in range(4):
            jobs.append((pr, qb))
    pend = []
    for n_, (pr, qb) in enumerate(jobs):
        if pr == 6 and qb == 0:
            for q in range(48): A(f"v_accvgpr_read_b32 {vr(48+q)}, {ar(208+q)}")
        def loc(nb): return 48 + (nb * 4 + qb) * 4 if nb < 13 else 48 + ((nb - 13) * 4 + qb) * 4
        tb = 16 + (n_ % 4) * 4
        conv_front(pr >> 2, pr & 3, qb, loc(2 * pr), loc(2 * pr + 1), tb)
        pend.append((pr >> 2, pr & 3, qb, tb))
        if len(pend) >= 2: conv_back(*pend[-2])
        if len(pend) >= 3: conv_wr(*pend[-3])
    A("s_nop 1"); conv_back(*pend[-1]); conv_wr(*pend[-2]); A("s_nop 0"); conv_wr(*pend[-1])
    A(f"s_mov_b32 s{sT}, 0x3f803f80")
    if not O.vsum:
        for q in range(4): A(f"v_accvgpr_write_b32 {ar(aONE+q)}, s{sT}")
    if O.dumpq:
        A(f"s_lshl_b32 s{sT}, s5, 7"); A(f"s_lshl_b32 s{sT2}, s6, 4"); A(f"s_add_u32 s{sT}, s{sT}, s{sT2}"); A(f"s_add_u32 s{sT}, s{sT}, s7")
        A(f"s_lshl_b32 s{sT}, s{sT}, 17"); A(f"s_add_u32 s{sT}, s{sT}, {QDUMP_WS_OFF}")
        srd(A, sDBG, sWS, sWS + 1, f"s{sT}", "0x20000")
        A(f"v_and_b32 {vr(16)}, 0x3ff, {vr(vOO)}"); A(f"s_lshl_b32 s{sT}, s{sWAVE}, 15"); A(f"v_add_u32 {vr(16)}, s{sT}, {vr(16)}")
        for q in range(32):
            A(f"s_mov_b32 s{sT}, {q*1024}")
            A(f"buffer_store_dwordx4 {ar(4*q,4)}, {vr(16)}, {sr(sDBG)}, s{sT} offen")
        A("s_waitcnt vmcnt(0)")
    if O.fuse: oproj_early(A, 16)
    A.wait(vm=[("K", 0)]); A("s_barrier")
    stamp(A, "conv done")
    A(f"s_mov_b32 s{sUNIT}, 0")
    if O.trace: A("s_mov_b64 s[52:53], 1"); A("s_memrealtime s[50:51]"); A("v_mov_b32 v0, 0")
    A.label("L_unit")
    A(f"s_mov_b32 s{sLOOP}, 3")
    ncls = 2 if O.twocls else 1
    if ncls == 2:
        A(f"s_bitcmp1_b32 s{sWAVE}, 0"); A("s_cbranch_scc1 L_first_1")
    ds6 = None
    for cls in range(ncls):
        A.label(f"L_first_{cls}")
        A.ds = []
        first_slot(A, cls)
        slot(A, 1, cls, f"second_{cls}", zero=True)
        ds_in = list(A.ds)
        A.label(f"L_loop_{cls}")
        for p in (2, 3, 4, 5, 6, 7, 0, 1):
            tail = []
            if p == 6: tail = [f"s_cmp_eq_u32 s{sLOOP}, 0", "s_cbranch_scc1 L_last"]
            if p == 7 and O.fuse: tail = [f"s_cmp_eq_u32 s{sLOOP}, s{sSTUB}", "s_cbranch_scc1 L_tail"]
            if p == 1:
                tail = [f"s_sub_u32 s{sLOOP}, s{sLOOP}, 1"]
                if O.stamps and O.stm == 4: tail += [f"s_memtime s[50:51]", "s_memrealtime s[66:67]"]
                tail += [f"s_branch L_loop_{cls}"]
            slot(A, p, cls, f"p{p}_{cls}", tail=tail)
            if p == 6: ds6 = list(A.ds)
            if p == 7: ds7 = list(A.ds)
        assert len(A.ds) == len(ds_in) and A.ds == ds_in, (A.ds, ds_in)
    if O.stamps and O.stm == 4: nstamp[0] += 1; stamp_names.append("loopback")
    A.label("L_last")
    if not O.fuse: stamp(A, "last", 4)
    A.ds = list(ds6)
    last_slot(A, not O.fuse)
    if O.chk:
        A(f"s_cmp_lg_u64 s[{sM}:{sM+1}], 0"); A("s_cbranch_scc1 L_fb")
    if not O.fuse:
        A(f"s_cmp_lg_u32 s{sUNIT}, 0"); A("s_cbranch_scc1 L_fbret1")
    A.label("L_fbret0")
    stamp(A, "unit0 end"); stamp(A, "unit0 end", 2)
    A(f"s_mov_b32 s{sUNIT}, 1"); A(f"s_add_u32 s{sOOF}, s{sOOF}, 4096"); A(f"s_mov_b32 s{sSTUB}, 1")
    if O.fuse and O.wopre >= 300:
        sh = O.wopre - 300
        A(f"v_bfe_u32 v0, {vr(vOO)}, 4, 6"); A("s_lshr_b32 s3, s2, 3"); A(f"s_lshl_b32 s3, s3, 2"); A(f"s_add_u32 s3, s3, s{sWAVE}"); A("s_lshl_b32 s3, s3, 6")
        A("v_add_u32 v0, s3, v0"); A(f"v_lshlrev_b32 v0, {12 - sh}, v0"); A("s_lshr_b32 s3, s7, 3"); A("s_mul_i32 s3, s3, 2621440")
        A(f"v_cmp_gt_u32 vcc, 2621440, v0"); A("s_and_saveexec_b64 s[100:101], vcc")
        A(f"buffer_load_dword {ar(224)}, v0, {sr(sW)}, s3 offen"); A("s_mov_b64 exec, -1")
    for q in range(64): A(f"v_accvgpr_mov_b32 {ar(aQ+q)}, {ar(aQ2+q)}")
    if O.fuse:
        for q in range(64): A(f"v_accvgpr_write_b32 {ar(aQ2+q)}, {vr(vS+q)}")
    A("s_branch L_unit")
    if O.fuse:
        A.label("L_tail")
        stamp(A, "tail", 2); stamp(A, "tail", 4)
        if O.trace:
            srd(A, 56, sWS, sWS + 1, 132 << 20, 4 << 20); A("s_lshl_b32 s3, s2, 10")
            A(f"buffer_store_dword v0, {vr(vOO)}, s[56:59], s3 offen")
        A.ds = list(ds7)
        A.vm = [("G", 9)] * 8 + [("G", 10)] * 8 + (["WOP"] if O.wopre == 250 else []) + [("G", 11)] * 8
        def st0(qbs):
            r = []
            for qb in qbs:
                r.append([f"s_add_u32 s{sT}, s{sOOF}, {qb*131072 - 4096}"] if qb else [f"s_sub_u32 s{sT}, s{sOOF}, 4096"])
                r += [[o_store(ar(aQ2 + (qb * 4 + t) * 4, 4), qb, t, "ST0", sT)] for t in range(4)]
            return r
        v15 = dma_v(3, ("G", 12))
        slot(A, 0, 0, "t24", groups=[[v15[0]]] + [[o] for o in v15[1]] + st0([0]), vmtags=[("G", 9)])
        slot(A, 1, 0, "t25", groups=st0([1, 2]))
        slot(A, 2, 0, "t26", groups=st0([3]) + w_dma(0, 0, True), vmtags=[("G", 10)])
        def touch(lo, hi):
            if O.wopre != 200: return []
            r = []
            for q in range(lo, hi):
                if q == lo or q % 4 == 0: r.append([f"s_add_u32 s{sT}, s{sTW}, {(q & ~3)*1024}"])
                r.append([(f"buffer_load_dwordx4 {ar(224+(q&7)*4,4)}, {vr(vOO)}, {sr(sW)}, s{sT} offen offset:{(q&3)*1024}", "vm", "WOP")])
            return r
        slot(A, 3, 0, "t27", groups=w_dma(0, 1, True) + touch(0, 5))
        slot(A, 4, 0, "t28", groups=w_dma(1, 0, True), vmtags=[("G", 11), "ST0"], after_bar=flag_ops(1, "f1"))
        slot(A, 5, 0, "t29", groups=touch(5, 10) + w_dma(1, 1, True))
        slot(A, 6, 0, "t30", groups=w_dma(2, 0, True), vmtags=[("G", 12)], tail=poll_ops("p1"))
        stamp(A, "last1", 2)
        oproj_setup(A)
        def mid():
            A.wait(dsn=0)
            poll_check(A, 0x01010101, "u1", vOWX, "p1")
            A("s_barrier")
        if O.own1: last_slot(A, True, extra1=w_dma(2, 1) + o_ld(0), mid=mid, extra2=o_ld(1) + o_ld(2))
        else: last_slot(A, True, extra1=w_dma(2, 1), mid=mid, extra2=o_ld(0) + o_ld(1) + o_ld(2))
        if O.chk:
            A(f"s_cmp_lg_u64 s[{sM}:{sM+1}], 0"); A("s_cbranch_scc1 L_fb")
        A.label("L_fbret1")
        stamp(A, "unit1 end"); stamp(A, "unit1 end", 2); stamp(A, "unit1 end", 5); stamp(A, "unit1 end", 6)
        oproj(A)
    else:
        A.label("L_fbret1")
        stamp(A, "unit1 end")
    if O.stamps: emit_stamps(A)
    A.label("L_end")
    A("s_endpgm")
    if O.chk:
        fallback(A)
    emit_spins(A)
    A.label("L_codeend")
    return kstart(k) + A.text()

def emit_stamps(A):
    A("s_waitcnt vmcnt(0) lgkmcnt(0)")
    A(f"s_memtime s[8:9]"); A(f"s_memrealtime s[10:11]")
    A("s_waitcnt lgkmcnt(0)")
    srd(A, sDBG, sWS, sWS + 1, STAMP_WS_OFF, "0x100000")
    A(f"s_lshl_b32 s3, s2, 2"); A(f"s_add_u32 s3, s3, s{sWAVE}"); A("s_lshl_b32 s3, s3, 7")
    A("v_mov_b32 v0, s3")
    n = nstamp[0]
    regs = [(j, sSTAMP + 2 * j) for j in range(n)] + [(n, 8)] + [(8 + j, 62 if j == 0 else sRSTAMP + 2 * j) for j in range(n)] + [(8 + n, 10)]
    A("s_getreg_b32 s4, hwreg(HW_REG_XCC_ID)")
    regs.append((16, 4))
    for j, s_ in regs:
        A(f"v_mov_b32 v1, s{s_}")
        A(f"buffer_store_dword v1, v0, {sr(sDBG)}, 0 offen offset:{4*j}")
    A("s_waitcnt vmcnt(0)")

def main():
    ap = argparse.ArgumentParser()
    for k_, v_ in vars(Opt).items():
        if k_.startswith("_"): continue
        if isinstance(v_, bool): ap.add_argument("--" + k_, type=lambda s: bool(int(s)), default=v_)
        elif isinstance(v_, int): ap.add_argument("--" + k_, type=int, default=v_)
        else: ap.add_argument("--" + k_, default=v_)
    a = ap.parse_args()
    for k_, v_ in vars(a).items(): setattr(O, k_, v_)
    hdr = open("cdna_kernels/" + NAME + ".s.ref").read().split("; Override launch")[0]
    out = hdr
    out += "; @launch kernel=attn_kernel grid=(256,1,1) block=(256,1,1) lds=163840\n"
    body = gen_kernel("attn_kernel")
    if O.stamps: out += "; stamps: " + ",".join(stamp_names) + ",end\n"
    out += '.amdgcn_target "amdgcn-amd-amdhsa--gfx950"\n.text\n'
    out += body + kd("attn_kernel")
    lines = out.split("\n")
    if O.skip_loop:
        iu = lines.index("L_unit:"); il = lines.index("L_last:")
        lines = lines[:iu] + [l for l in lines[iu:il] if not ("buffer_load_dwordx4" in l and " lds" in l)] + lines[il:]
    il = lines.index("L_last:")
    if O.skip_oo: lines = lines[:il] + [l for l in lines[il:] if not ("buffer_load_dwordx4 a[" in l and "s[8:11]" in l)]
    if O.skip_ow: lines = lines[:il] + [l for l in lines[il:] if not ("s[12:15]" in l and " lds" in l)]
    iu = lines.index("L_unit:")
    if O.skip_x: lines = [l for l in lines[:iu] if not ("s[8:11]" in l and " lds" in l)] + lines[iu:]
    if O.skip_w: lines = [l for l in lines[:iu] if not ("s[12:15]" in l and " lds" in l)] + lines[iu:]
    sys.stdout.write("\n".join(lines))
main()
```

```python
import sys, math, argparse, re, struct, copy

NAME = "concat_heads__gqa_block_cached__gqa_block_cached__near_ridge"

class Opt:
    stamps = False
    dumpq = False
    kv_nt = True
    fuse = True
    twocls = False
    D = 6
    bar = 20
    burst = 1
    dper = 3
    qsp = 4
    w_nt = True
    x_nt = True
    wo_nt = False
    kv0 = 15
    pubw = 11
    map2 = True
    pub2 = 1
    pub1 = 28
    poll2 = 8
    thr_log2 = 30
    skip_loop = False
    skip_x = False
    skip_w = False
    forcefb = False
    budget = 8
    wpre = True
    o_sc1 = True
    chk = True
    stm = 0
    cpre = True
    rot = 0
    wfake = False
    noinv = False
    skip_oo = False
    skip_ow = False
    st_sc1 = True
    wopre = 200
    wopre_nt = False
    wopn = 1
    ndef = 4
    xbar = 60
    own1 = True
    obar = 4
    osp = 2
    xdense = True
    vlate = 0
    vsum = False
    pad = 0
    vmn = 16
    kvs = "13,14,15,16,17,18,19"
    outfl = 0
    trace = False
    xld = 40
    xfill = 20
    lfake = False
    whalf = False
    ofake = False
    walign = False
    wofl = 0
    l2n = 0
    l2at = 4
    l2per = 2
    l2sh = 6
    smpos = "3,7"
    smf = True

O = Opt()

class Asm:
    def __init__(self):
        self.L = []
        self.vm = []
        self.ds = []
        self.nvm = 0; self.mark = {}
    def __call__(self, s):
        if s.endswith(" lds") and self.L and " m0," in self.L[-1]: self.L.append("    s_nop 0")
        self.L.append(s if s.endswith(":") else "    " + s)
    def label(self, s): self.L.append(s + ":")
    def c(self, s): self.L.append("    ; " + s)
    def text(self): return "\n".join(self.L) + "\n"
    def vm_n(self, tags):
        idx = [i for i, t in enumerate(self.vm) if t in tags]
        if not idx: return None
        return min(63, len(self.vm) - 1 - max(idx))
    def ds_n(self, tags):
        idx = [i for i, t in enumerate(self.ds) if t in tags]
        if not idx: return None
        return min(15, len(self.ds) - 1 - max(idx))
    def wait(self, vm=None, ds=None, vmn=None, dsn=None):
        a = self.vm_n(vm) if vm else None
        b = self.ds_n(ds) if ds else None
        if vmn is not None: a = vmn if a is None else min(a, vmn)
        if dsn is not None: b = dsn if b is None else min(b, dsn)
        p = []
        if a is not None:
            p.append(f"vmcnt({a})"); self.vm = self.vm[len(self.vm) - a:] if a else []
        if b is not None:
            p.append(f"lgkmcnt({b})"); self.ds = self.ds[len(self.ds) - b:] if b else []
        if p: self("s_waitcnt " + " ".join(p))
    def op(self, o):
        if isinstance(o, str): self(o); return
        if o[1] == "vm": self.vm.append(o[2]); self.nvm += 1
        elif o[1] == "mark": self.mark[o[2]] = self.nvm
        elif o[1] == "call": o[2](self); return
        elif o[1] == "ds": self.ds.append(o[2])
        elif o[1] == "wait": self.wait(**o[2]); return
        self(o[0])

def vr(b, n=1): return f"v{b}" if n == 1 else f"v[{b}:{b+n-1}]"
def ar(b, n=1): return f"a{b}" if n == 1 else f"a[{b}:{b+n-1}]"
def sr(b, n=4): return f"s[{b}:{b+n-1}]"
def f32bits(x): return struct.unpack("<I", struct.pack("<f", x))[0]
MF = "v_mfma_f32_16x16x32_bf16"

def kd(k, vgpr=512, acc=256, sgpr=102):
    return f""".section .rodata,"a"
.p2align 6
.amdhsa_kernel {k}
  .amdhsa_next_free_vgpr {vgpr}
  .amdhsa_next_free_sgpr {sgpr}
  .amdhsa_accum_offset {acc}
  .amdhsa_group_segment_fixed_size 0
  .amdhsa_kernarg_size 104
  .amdhsa_user_sgpr_count 2
  .amdhsa_user_sgpr_kernarg_segment_ptr 1
  .amdhsa_system_sgpr_workgroup_id_x 1
.end_amdhsa_kernel
.text
"""
def kstart(k): return f".globl {k}\n.p2align 8\n.type {k},@function\n{k}:\n"

WOF_OFF = 48 << 20
STAMP_WS_OFF = 128 << 20
QDUMP_WS_OFF = 64 << 20
sTW = 65
sXI, sXO = 78, 79

sX, sW, sK, sV, sO = 8, 12, 16, 20, 24
sWAVE, sKVW, sVVW, sWQW, sKOFF, sVOFF, sXW, sLOOP, sUNIT, sT, sTHR, sT3 = range(28, 40)
sSC, sOOF, sFB, sT2, sGI, sWS = 40, 42, 43, 44, 45, 46
sSTAMP, sRSTAMP = 48, 64
sCNT, sDBG, sWOI, sWOF, sOUT = 80, 84, 88, 92, 96
sM = 100
vAK, vAV, vOKV, vOO, vTMP = 1, 5, 13, 14, 15
vIDX, vPOLL, aPOLL = 15, 30, 222
vNEGM, vS, vP, vO = 16, 32, 96, 128
aQ, aQ2, aKF, aVF, aL, aONE = 0, 64, 128, 160, 192, 208
KBASE, VBASE, WQBASE, FBBASE = 0, 65536, 98304, 131072
XB = (16384, 49152)
FLAG_OFF = 60 << 20
sFLG, sSTUB = 84, sFB

def S(buf, qb, kb): return vS + buf * 32 + (qb * 2 + kb) * 4
def P(buf, qb): return vP + buf * 16 + qb * 4
def NEGM(qb): return vNEGM + qb * 4
def Q(qb, s): return aQ + (qb * 4 + s) * 4
def OA(db, qb): return vO + (qb * 8 + db) * 4
def LA(qb): return aL + qb * 4
vL = 252
def OAT(db, qb): return ar(aL, 4) if O.vsum and (db, qb) == (7, 3) else vr(OA(db, qb), 4)

nstamp = [0]
stamp_names = []
def stamp(A, name, mode=0):
    if not O.stamps or (mode != O.stm and name != "t0"): return
    i = nstamp[0]; nstamp[0] += 1; stamp_names.append(name)
    assert i < 7
    A(f"s_memtime s[{sSTAMP+2*i}:{sSTAMP+2*i+1}]")
    r = 62 if i == 0 else sRSTAMP + 2 * i
    A(f"s_memrealtime s[{r}:{r+1}]")

def cost(o):
    t = o if isinstance(o, str) else o[0]
    if t.endswith(":"): return 0
    if not isinstance(o, str) and o[1] in ("wait", "call"): return 0
    if t.startswith(("v_exp", "v_rcp")): return 8
    if t.startswith("buffer_"): return 8
    if t.startswith("s_nop"): return 4 * (int(t.split()[1]) + 1)
    if t.startswith("v_cvt_pk") or t.startswith("v_max3") or t.startswith("v_perm"): return 5
    if t.startswith("v_pk_"): return 8
    return 4

def interleave(A, mf, fixed=None, stream=(), pre=None, budget=None, need=None):
    budget = O.budget if budget is None else budget
    fixed = fixed or {}; pre = pre or {}; need = need or {}
    st = list(stream); si = 0; debt = 0
    for g in range(len(mf)):
        for t in pre.get(g, []): A.op(t)
        if g in need: A.wait(ds=need[g])
        A(mf[g])
        fx = fixed.get(g, [])
        room = budget - sum(cost(o) for o in fx) - debt
        for o in fx: A.op(o)
        while si < len(st):
            o, at = st[si] if isinstance(st[si], list) else (st[si], 0)
            if at > g: break
            c = cost(o)
            if room <= 0 or (c > room + 1): break
            A.op(o); room -= c; si += 1
        debt = 0
    while si < len(st):
        o = st[si][0] if isinstance(st[si], list) else st[si]
        A.op(o); si += 1

NT_KV = lambda: " nt" if O.kv_nt else ""
SC1 = lambda: " sc1" if O.o_sc1 else ""
OFL = lambda: ["", " sc1", " sc0 sc1", " nt", " sc1 nt", " sc0 sc1 nt"][O.outfl]
def adv(off): return f"s_add_u32 s{off}, s{off}, 0x4000"
def vphys(ring): return (ring + 1) & 3
def dma_k(ring, tag):
    return (f"s_add_u32 m0, s{sKVW}, {ring*16384}",
            [(f"buffer_load_dwordx4 {vr(vOKV)}, {sr(sK)}, s{sKOFF} offen offset:{p*1024}{NT_KV()} lds", "vm", tag) for p in range(4)],
            adv(sKOFF))
def dma_v(ring, tag):
    return (f"s_add_u32 m0, s{sVVW}, {vphys(ring)*16384}",
            [(f"buffer_load_dwordx4 {vr(vOKV)}, {sr(sV)}, s{sVOFF} offen offset:{p*1024}{NT_KV()} lds", "vm", tag) for p in range(4)],
            adv(sVOFF))
def k_reads(ring, h, dst=aKF):
    return [(f"ds_read_b128 {ar(dst+(kb*4+s)*4,4)}, {vr(vAK+s)} offset:{ring*16384+(2*h+kb)*1024}", "ds", ("F", dst + (kb*4+s)*4))
            for kb in range(2) for s in range(4)]
def v_reads(ring, h):
    return [(f"ds_read_b64_tr_b16 {ar(aVF+db*4+2*jh,2)}, {vr(vAV+db)} offset:{vphys(ring)*16384+h*2048+jh*1024}", "ds", ("F", aVF + db*4))
            for db in range(8) for jh in range(2)]
def pv_mf(buf, zero=False, qbmajor=False):
    r = []
    def pv(db, qb): return (f"{MF} {OAT(db,qb)}, {ar(aVF+db*4,4)}, {vr(P(buf,qb),4)}, {'0' if zero else OAT(db,qb)}", aVF + db*4, qb)
    def sm(qb): return (f"{MF} {ar(LA(qb),4)}, {ar(aONE,4)}, {vr(P(buf,qb),4)}, {'0' if zero else ar(LA(qb),4)}", None, qb)
    def sm2(pr): return (f"v_smfmac_f32_16x16x64_bf16 {ar(LA(pr),4)}, {ar(aONE,4)}, {vr(P(buf,2*pr),8)}, {vr(vIDX)}", None, 2 * pr)
    if qbmajor:
        for qb in range(4):
            if O.smf:
                if not qb & 1: r.append(sm2(qb >> 1))
            elif not O.vsum: r.append(sm(qb))
            r += [pv(db, qb) for db in range(8)]
    else:
        for db in range(8):
            r += [pv(db, qb) for qb in range(4)]
            if O.smf:
                if db in O.smpos_: r.append(sm2(O.smpos_.index(db)))
            elif db & 1 and not O.vsum: r.append(sm(db >> 1))
    return r
def qk_mf(buf, zero=False, kf=aKF):
    r = []
    for qb in range(4):
        for kb in range(2):
            for s in range(4):
                c = vr(S(buf,qb,kb),4) if s else ("0" if zero else vr(NEGM(qb),4))
                r.append((f"{MF} {vr(S(buf,qb,kb),4)}, {ar(kf+(kb*4+s)*4,4)}, {ar(Q(qb,s),4)}, {c}", kf + (kb*4+s)*4, qb))
    return r
def ex(b, e): return f"v_exp_f32 {vr(vS+b*32+e)}, {vr(vS+b*32+e)}"
def cv(b, i): return f"v_cvt_pk_bf16_f32 {vr(vP+b*16+i)}, {vr(vS+b*32+2*i)}, {vr(vS+b*32+2*i+1)}"
def ad(b, e): return f"v_add_f32 {vr(vL+(e>>3))}, {vr(vL+(e>>3))}, {vr(vS+b*32+e)}"
def needs(mfs, group=2):
    nd = {}; seen = []
    for g, m in enumerate(mfs):
        if m[1] is not None and m[1] not in seen: seen.append(m[1]); nd[g] = m[1]
    items = sorted(nd.items())
    out = {}
    for i in range(0, len(items), group):
        out[items[i][0]] = [("F", t) for _, t in items[i:i + group]]
    return out
def lastuse(mfs):
    lu = {}
    for g, m in enumerate(mfs):
        if m[1] is not None: lu[m[1]] = g
    return lu

def barrier_ops(cls, g, pre, gaps, vmtags=None, first=False):
    w = ("", "wait", dict(vmn=O.vmn + (O.fuse and O.wopre == 250 and not first), dsn=0) if vmtags is None else dict(vm=vmtags, dsn=0))
    if cls == 0: pre[g] = [w, "s_barrier"]
    else:
        pre[g] = [w]; gaps[g].insert(0, "s_barrier")

def is_vm(o): return not isinstance(o, str) and o[1] == "vm"
def slot(A, p, cls, tag, zero=False, tail=(), groups=None, vmtags=None, after_bar=()):
    D = O.D; even = (p & 1) == 0; buf = p & 1; t_ = p >> 1
    A.c(f"---- slot {tag} pos={p} cls={cls}")
    kr = k_reads(((p + 1) >> 1) & 3, (p + 1) & 1)
    vq = v_reads(t_ & 3, p & 1)
    pvm = pv_mf(buf ^ 1, zero); mfs = pvm + qk_mf(buf ^ 1)
    n = len(mfs); npv = len(pvm)
    gaps = {g: [] for g in range(n)}; pre = {}
    seq = [(buf, e) for e in range(D, 32)] + [(buf ^ 1, e) for e in range(D)]
    eg = [2 * i for i in range(32 - D)] + [n - 64 + 2 * i for i in range(32 - D, 32)]
    for g, (b, e) in zip(eg, seq): gaps[g].append(ex(b, e))
    free = [g for g in range(n) if g not in eg]
    cvg = {g + 1: cv(b, e >> 1) for g, (b, e) in zip(eg, seq) if e & 1}
    for g, t in zip(free[:8], kr): gaps[g].append(t)
    lu = lastuse(pvm)
    pre[0] = [("", "wait", dict(dsn=0))]
    if O.trace and groups is None:
        pre[0] += ["s_mov_b64 exec, s[52:53]", "v_mov_b32 v0, s50", "s_mov_b64 exec, -1", "s_lshl_b64 s[52:53], s[52:53], 1"]
        gaps[n - 3].append("s_memrealtime s[50:51]")
    if groups is None:
        kg = dma_k(t_ & 3, "KV"); vg = dma_v((t_ + 3) & 3, "KV")
        if even: flat = [kg[0]] + kg[1] + [vg[0], kg[2]] + (vg[1] + [vg[2]] if O.burst == 1 else [])
        else: flat = vg[1] + [vg[2]] if O.burst == 2 else []
        if O.fuse and O.wopre == 250 and p in (1, 5):
            flat = flat + [(f"buffer_load_dwordx4 {ar(224,4)}, {vr(vOO)}, {sr(sW)}, s{sTW} offen", "vm", "WOP"), f"s_add_u32 s{sTW}, s{sTW}, 1024", f"s_min_u32 s{sTW}, s{sTW}, s{sTW-1}"]
    else:
        flat = [o for grp in groups for o in grp]
    dm = [o for o in flat if is_vm(o)]
    bar = O.bar if even else 15
    if even:
        barrier_ops(cls, bar, pre, gaps, vmtags)
        if after_bar: pre[bar + 1] = list(after_bar)
    rest = [g for g in free if g > bar]
    if O.vlate:
        gaps[n - 1] += vq[len(vq) - O.vlate:]; vq = vq[:len(vq) - O.vlate]
        rest = [g for g in rest if g != n - 1]
    lack = len(dm) + len(vq) - len(rest)
    xg = set()
    if lack > 0:
        cand = [g for g in eg if g > bar + 4]
        xg = {cand[(q * len(cand)) // lack + len(cand) // (2 * lack)] for q in range(lack)}
        rest = sorted(rest + list(xg))
    dg = []; k = 0
    while dm or vq:
        g = rest.pop(0)
        vok = vq and lu[vq[0][2][1]] <= g
        if g in xg and vok: gaps[g].append(vq.pop(0)); continue
        if dm and k % O.dper == 0 and g in cvg and vok: gaps[g].append(vq.pop(0)); continue
        if dm and (k % O.dper == 0 or not vok) and g not in cvg: gaps[g].append(dm.pop(0)); dg.append(g)
        elif vok: gaps[g].append(vq.pop(0))
        elif dm: gaps[g].append(dm.pop(0)); dg.append(g)
        k += 1
    small = []
    nv = 0
    for o in flat:
        if is_vm(o): nv += 1; continue
        lo = dg[nv - 1] if nv else 16
        hi = n - 1 if ("0x4000" in o or nv == len(dg)) else dg[nv] - 1
        small.append((o, lo, hi))
    if not even: small.append((("", "wait", dict(ds=[o[2] for o in kr])), 24, npv - 1))
    for g, o in cvg.items(): gaps[g].append(o)
    if O.vsum:
        for g, (b, e) in zip(eg, seq): gaps[g + 1].append(ad(b, e))
    def used(g): return sum(4 if (not isinstance(o, str) and o[1] == "wait") else cost(o) for o in gaps[g]) + 4 * len(pre.get(g + 1, []))
    prev = (None, 0)
    for o, lo, hi in small:
        key = (lo, hi)
        if prev[0] == key: lo = prev[1]
        c = [g for g in range(lo, hi + 1) if used(g) <= 5]
        if not c: c = sorted(range(lo, hi + 1), key=used)
        gaps[c[0]].append(o); prev = (key, c[0])
    for q in range(O.pad): gaps[1 + (q * 62) // O.pad // 2 * 2 + 1].append("s_nop 1")
    gaps[n - 1] += list(tail)
    interleave(A, [m[0] for m in mfs], gaps, pre=pre)

def max_chain(qb, buf, t0, t1, run=None):
    s = S(buf, qb, 0)
    st = [f"v_max3_f32 {vr(t0)}, {vr(s)}, {vr(s+1)}, {vr(s+2)}", f"v_max3_f32 {vr(t1)}, {vr(s+3)}, {vr(s+4)}, {vr(s+5)}",
          f"v_max3_f32 {vr(t0)}, {vr(t0)}, {vr(s+6)}, {vr(s+7)}"]
    if run is not None: return st + [f"v_max3_f32 {vr(run)}, {vr(run)}, {vr(t0)}, {vr(t1)}"]
    return st + [f"v_max_f32 {vr(t0)}, {vr(t0)}, {vr(t1)}"]
def xlane_max(t0, t1):
    return [f"v_mov_b32 {vr(t1)}, {vr(t0)}", "s_nop 1", f"v_permlane32_swap_b32 {vr(t0)}, {vr(t1)}", "s_nop 0", f"v_max_f32 {vr(t0)}, {vr(t0)}, {vr(t1)}",
            f"v_mov_b32 {vr(t1)}, {vr(t0)}", "s_nop 1", f"v_permlane16_swap_b32 {vr(t0)}, {vr(t1)}", "s_nop 0", f"v_max_f32 {vr(t0)}, {vr(t0)}, {vr(t1)}"]

def first_slot(A, cls):
    D = O.D
    A.c(f"---- first slot cls={cls}")
    for o in k_reads(0, 0, dst=aVF) + k_reads(0, 1): A.op(o)
    mfs = qk_mf(0, zero=True, kf=aVF) + qk_mf(1)
    gaps = {g: [] for g in range(64)}; pre = {}
    bar = 8
    barrier_ops(cls, bar, pre, gaps, first=True)
    kg = dma_k(0, "KV"); vg = dma_v(3, "KV")
    gaps[bar - 2].append(kg[0])
    dm = kg[1] + (vg[1] if O.burst == 1 else [])
    for i, o in enumerate(dm):
        gaps[bar + 1 + i].append(o)
        if i == 3: gaps[bar + 1 + i].append(vg[0])
    gaps[7].append(kg[2]) if False else None
    st = []
    tA = [vO + 2 * q for q in range(4)]
    for qb in range(4):
        t0, t1 = tA[qb], tA[qb] + 1
        ch = max_chain(qb, 0, t0, t1) + xlane_max(t0, t1)
        ch += [f"v_sub_f32 {vr(NEGM(qb)+r)}, 0, {vr(t0)}" for r in range(4)]
        ch += [f"v_sub_f32 {vr(S(0,qb,0)+r)}, {vr(S(0,qb,0)+r)}, {vr(t0)}" for r in range(8)]
        st.append([ch[0], 8 * qb + 7 + 8]); st += ch[1:]
    sm = []
    for e in range(32):
        sm.append(ex(0, e))
        if e >= 2 and not (e & 1): sm.append(cv(0, (e >> 1) - 1))
        if O.vsum and e >= 2:
            if (e - 2) & 7 == 0: sm.append(f"v_add_f32 {vr(vL+((e-2)>>3))}, {vr(vS+e-2)}, {vr(vS+e-1)}")
            elif (e - 2) & 7 != 1: sm.append(ad(0, e - 2))
    sm += ["s_nop 0", cv(0, 15)]
    if O.vsum: sm += [ad(0, 30), ad(0, 31)]
    vq = v_reads(0, 0)
    for i, o in enumerate(vq): gaps[33 + i * 2 - (i // 8) * 0 if 33 + 2 * i < 64 else 63].append(o)
    post = [kg[2]] + ([vg[2]] if O.burst == 1 else [])
    if O.smf: post += [f"v_accvgpr_write_b32 {ar(aL+q)}, 0" for q in range(8)]
    nd = needs(mfs)
    nch = len(st) // 4
    m = [x[0] for x in mfs]
    def sub(d, lo, hi): return {g - lo: v for g, v in d.items() if lo <= g < hi}
    def shift(s, lo): return [[x[0], x[1] - lo] if isinstance(x, list) else x for x in s]
    segs = [(0, 32, st[:nch]), (32, 40, st[nch:2*nch]), (40, 48, st[2*nch:3*nch]), (48, 56, st[3*nch:]), (56, 64, [])]
    carry = []
    allst = st + post + sm
    pos = 0
    marks = {32: nch, 40: 2 * nch, 48: 3 * nch, 56: 4 * nch}
    for g in range(64):
        if g in marks:
            while pos < marks[g]:
                o = allst[pos][0] if isinstance(allst[pos], list) else allst[pos]
                A.op(o); pos += 1
            A("s_nop 1")
        for t in pre.get(g, []): A.op(t)
        if g in nd: A.wait(ds=nd[g])
        A(m[g])
        room = O.budget - sum(cost(o) for o in gaps[g])
        for o in gaps[g]: A.op(o)
        while pos < len(allst):
            o, at = allst[pos] if isinstance(allst[pos], list) else (allst[pos], 0)
            if at > g or room <= 0 or cost(o) > room + 1: break
            A.op(o); room -= cost(o); pos += 1
    while pos < len(allst):
        A.op(allst[pos]); pos += 1
    for e in range(D):
        A(ex(1, e))
        if e >= 2 and not (e & 1): A(cv(1, (e >> 1) - 1))
    A("s_nop 0"); A(cv(1, D // 2 - 1))
    if O.vsum:
        for e in range(D): A(ad(1, e))
    A("s_nop 1")

def o_store(reg, qb, t, tag, so):
    return (f"buffer_store_dwordx4 {reg}, {vr(vOO)}, {sr(sO)}, s{so} offen offset:{t*1024}{' sc1' if O.st_sc1 else ''}", "vm", tag)
def row_sums():
    st = []
    for sw in ("v_permlane32_swap_b32", "v_permlane16_swap_b32"):
        st += [f"v_mov_b32 {vr(vP+2*q+1)}, {vr(vL+q)}" for q in range(4)]
        st += [f"{sw} {vr(vL+q)}, {vr(vP+2*q+1)}" for q in range(4)]
        st += [f"v_add_f32 {vr(vL+q)}, {vr(vL+q)}, {vr(vP+2*q+1)}" for q in range(4)]
    st += [f"v_rcp_f32 {vr(vP+2*q)}, {vr(vL+q)}" for q in range(4)]
    if O.chk:
        st += [f"v_max3_f32 {vr(vP+1)}, {vr(vL)}, {vr(vL+1)}, {vr(vL+2)}"]
        for q in (vP + 1, vL + 3): st += [f"v_cmp_nle_f32 vcc, {vr(q)}, s{sTHR}", f"s_or_b64 s[{sM}:{sM+1}], s[{sM}:{sM+1}], vcc"]
    return st
def epi_qb(qb, store):
    so = [f"s_add_u32 s{sT}, s{sOOF}, {qb*131072}"]
    if O.vsum:
        inv = vP + 2 * qb
        st = so + ([f"v_accvgpr_read_b32 {vr(vL+q)}, {ar(aL+q)}" for q in range(4)] if qb == 3 else [])
    else:
        inv = vP + 2 * (qb & 1)
        st = [f"v_accvgpr_read_b32 {vr(inv+1)}, {ar(LA(qb))}", f"v_rcp_f32 {vr(inv)}, {vr(inv+1)}"]
        if O.smf: st = [f"v_accvgpr_read_b32 {vr(inv+q)}, {ar(aL+2*qb+q)}" for q in range(2)] + [f"v_add_f32 {vr(inv+1)}, {vr(inv)}, {vr(inv+1)}", st[1]]
        if O.chk: st += [f"v_cmp_nle_f32 vcc, {vr(inv+1)}, s{sTHR}"]
        st += so
        if O.chk: st += [f"s_or_b64 s[{sM}:{sM+1}], s[{sM}:{sM+1}], vcc"]
    for t in range(4):
        o = OA(2 * t, qb)
        st += [f"v_pk_mul_f32 {vr(o+2*i,2)}, {vr(o+2*i,2)}, {vr(inv,2)} op_sel_hi:[1,0]" for i in range(4)]
        d = vS + (qb * 4 + t) * 4
        st += [f"v_cvt_pk_bf16_f32 {vr(d+i)}, {vr(o+2*i)}, {vr(o+2*i+1)}" for i in range(4)]
        if store: st.append(o_store(vr(d, 4), qb, t, "ST", sT))
    return st

def last_slot(A, store, extra1=(), mid=None, extra2=()):
    D = O.D
    A.c("---- last slot + final PV + epilogue")
    pvm = pv_mf(0); n = len(pvm); nq = n // 4
    gaps = {g: [] for g in range(n)}
    lu = lastuse(pvm)
    for i, o in enumerate(v_reads(3, 1)):
        g = min(n - 1, lu[o[2][1]] + 1 + (i & 1)); gaps[g].append(o)
    sm = []
    for e in range(D, 32):
        sm.append(ex(1, e))
        if e > D and not (e & 1): sm.append(cv(1, (e >> 1) - 1))
        if O.vsum and e > D: sm.append(ad(1, e - 1))
    sm += ["s_nop 0", cv(1, 15)] + ([ad(1, 31)] if O.vsum else []) + ["s_nop 1"]
    ex_ = list(extra1)
    for g in range(0, n):
        if ex_ and not gaps[g]: gaps[g] += ex_.pop(0)
    assert not ex_
    A(f"s_mov_b64 s[{sM}:{sM+1}], 0")
    interleave(A, [m[0] for m in pvm], gaps, stream=sm, need=needs(pvm))
    if mid: mid()
    fin = pv_mf(1, qbmajor=True)
    st = row_sums() if O.vsum else []
    for qb in range(4):
        e = epi_qb(qb, store)
        k = 1 if O.vsum and qb < 3 else 0
        if qb == 3: st.append("s_nop 7")
        st += e[:k]; st.append([e[k], max(g for g, m in enumerate(fin) if m[2] == qb) + 8]); st += e[k+1:]
    gaps = {g: [] for g in range(n)}
    ex_ = list(extra2)
    for g in range(0, n):
        if ex_ and (g < 16 or g % 2 == 0): gaps[g] += ex_.pop(0)
    assert not ex_
    interleave(A, [m[0] for m in fin], gaps, stream=st, need=needs(fin, group=8))

def fallback(A):
    A.label("L_fb")
    lane, g, i, r, ka, kb_, va, vd, t0, t1 = range(64, 74)
    run = 76
    A("s_waitcnt vmcnt(0) lgkmcnt(0)"); A("s_nop 7")
    A(f"v_mbcnt_lo_u32_b32 {vr(lane)}, -1, 0"); A(f"v_mbcnt_hi_u32_b32 {vr(lane)}, -1, {vr(lane)}")
    A(f"v_lshrrev_b32 {vr(g)}, 4, {vr(lane)}"); A(f"v_and_b32 {vr(i)}, 15, {vr(lane)}")
    A(f"v_and_b32 {vr(t0)}, 1, {vr(g)}"); A(f"v_lshlrev_b32 {vr(t0)}, 1, {vr(t0)}"); A(f"v_lshrrev_b32 {vr(t1)}, 1, {vr(g)}")
    A(f"v_or_b32 {vr(t0)}, {vr(t0)}, {vr(t1)}"); A(f"v_lshlrev_b32 {vr(t0)}, 4, {vr(t0)}")
    A(f"v_lshl_add_u32 {vr(ka)}, {vr(i)}, 8, {vr(t0)}"); A(f"v_add_u32 {vr(kb_)}, 4096, {vr(ka)}")
    A(f"v_lshlrev_b32 {vr(vd)}, 4, {vr(lane)}")
    A(f"s_lshl_b32 s{sT3}, s{sWAVE}, 13"); A(f"s_add_u32 s{sT3}, s{sT3}, {FBBASE}")
    if O.fuse: A(f"s_cmp_eq_u32 s{sUNIT}, 0"); A(f"s_cselect_b32 s{sT3}, s{sT3}, s{sWM+3}")
    A(f"v_lshrrev_b32 {vr(r)}, 2, {vr(i)}"); A(f"v_lshl_add_u32 {vr(t0)}, {vr(g)}, 2, {vr(r)}"); A(f"v_lshlrev_b32 {vr(t0)}, 8, {vr(t0)}")
    A(f"v_and_b32 {vr(t1)}, 3, {vr(i)}"); A(f"v_lshl_add_u32 {vr(t0)}, {vr(t1)}, 3, {vr(t0)}"); A(f"v_add_u32 {vr(va)}, s{sT3}, {vr(t0)}")
    def kload():
        for kb in range(2):
            for s in range(4):
                A(f"buffer_load_dwordx4 {ar(aKF+(kb*4+s)*4,4)}, {vr(kb_ if kb else ka)}, {sr(sK)}, s{sT} offen offset:{s*64}")
    for q in range(4): A(f"v_mov_b32 {vr(run+q)}, 0xff800000")
    A(f"s_lshl_b32 s{sT}, s{sUNIT}, 18"); A(f"s_add_u32 s{sT2}, s{sT}, 0x40000")
    A.label("L_fb1")
    kload(); A("s_waitcnt vmcnt(0)")
    for m in qk_mf(0, zero=True): A(m[0])
    A("s_nop 7")
    for q in range(4):
        for o in max_chain(q, 0, t0, t1, run=run + q): A(o)
    A(f"s_add_u32 s{sT}, s{sT}, 0x2000"); A(f"s_cmp_lt_u32 s{sT}, s{sT2}"); A("s_cbranch_scc1 L_fb1")
    for q in range(4):
        for o in xlane_max(run + q, t1): A(o)
        for rr in range(4): A(f"v_sub_f32 {vr(NEGM(q)+rr)}, 0, {vr(run+q)}")
    for k in range(128): A(f"v_mov_b32 {vr(vO+k)}, 0")
    for k in range(16): A(f"v_accvgpr_write_b32 {ar(aL+k)}, 0")
    A(f"s_lshl_b32 s{sT}, s{sUNIT}, 18")
    A.label("L_fb2")
    kload()
    for hf in range(2):
        A(f"s_add_u32 m0, s{sT3}, {hf*4096}"); A(f"s_add_u32 s3, s{sT}, {hf*4096}")
        for p in range(4): A(f"buffer_load_dwordx4 {vr(vd)}, {sr(sV)}, s3 offen offset:{p*1024} lds")
    A("s_waitcnt vmcnt(0)")
    for db in range(8):
        for jh in range(2): A(f"ds_read_b64_tr_b16 {ar(aVF+db*4+2*jh,2)}, {vr(va)} offset:{db*32+jh*4096}")
    for m in qk_mf(0): A(m[0])
    A("s_nop 7")
    for e in range(32): A(ex(0, e))
    A("s_nop 0")
    for k in range(16): A(cv(0, k))
    if O.vsum:
        for e in range(32): A(ad(0, e))
    A("s_waitcnt lgkmcnt(0)"); A("s_nop 1")
    for m in pv_mf(0): A(m[0])
    A(f"s_add_u32 s{sT}, s{sT}, 0x2000"); A(f"s_cmp_lt_u32 s{sT}, s{sT2}"); A("s_cbranch_scc1 L_fb2")
    A("s_nop 7")
    if O.vsum:
        for o in row_sums(): A(o)
    for qb in range(4):
        for o in epi_qb(qb, False): A(o)
    if O.fuse: A(f"s_cmp_eq_u32 s{sUNIT}, 0"); A("s_cbranch_scc1 L_fbret0")
    for qb in range(4):
        A(f"s_add_u32 s{sT}, s{sOOF}, {qb*131072}")
        for t in range(4): A(o_store(vr(vS + (qb * 4 + t) * 4, 4), qb, t, "ST", sT)[0])
    if not O.fuse: A(f"s_cmp_eq_u32 s{sUNIT}, 0"); A("s_cbranch_scc1 L_fbret0")
    if O.fuse: oproj_setup(A)
    A("s_branch L_fbret1")

def srd(A, d, lo, hi, off, size):
    A(f"s_add_u32 s{d}, s{lo}, {off}"); A(f"s_addc_u32 s{d+1}, s{hi}, 0"); A(f"s_and_b32 s{d+1}, s{d+1}, 0xffff")
    A(f"s_mov_b32 s{d+2}, {size}"); A(f"s_mov_b32 s{d+3}, 0x20000")

def one_lane(A, val, text, tag):
    A(f"v_mov_b32 v0, {val}"); A("s_mov_b64 exec, 1")
    A.op((text, "vm", tag))
    A("s_mov_b64 exec, -1")
def flag_ops(val, name):
    return [f"s_cmp_lg_u32 s{sWAVE}, 0", f"s_cbranch_scc1 L_np_{name}", f"v_mov_b32 v0, {val}", "s_mov_b64 exec, 1",
            f"buffer_store_byte v0, off, {sr(sCNT)}, s{sGI} sc1", "s_mov_b64 exec, -1", f"L_np_{name}:"]
def poll_text(): return f"buffer_load_dword v0, {vr(vPOLL)}, {sr(sCNT)}, 0 offen sc1"
def poll_ops(name): return [f"s_cmp_lg_u32 s{sWAVE}, 0", f"s_cbranch_scc1 L_np_{name}", (poll_text(), "mark", name), f"L_np_{name}:"]
spins = []
def poll_test(A, mask, own):
    A(f"v_or_b32 v0, v0, {vr(own)}"); A(f"v_and_b32 v0, {hex(mask)}, v0"); A(f"v_cmp_ne_u32 vcc, {hex(mask)}, v0")
def poll_check(A, mask, name, own, mark):
    A(f"s_cmp_lg_u32 s{sWAVE}, 0"); A(f"s_cbranch_scc1 L_spun_{name}")
    A(f"s_waitcnt vmcnt({min(63, A.nvm - A.mark[mark])})")
    poll_test(A, mask, own); A(f"s_cbranch_vccnz L_spin_{name}")
    A.label(f"L_spun_{name}")
    spins.append((mask, name, own))
def emit_spins(A):
    for mask, name, own in spins:
        A.label(f"L_spin_{name}")
        A("s_mov_b32 s3, 0x40000")
        A.label(f"L_spinl_{name}")
        A(poll_text()); A("s_waitcnt vmcnt(0)")
        poll_test(A, mask, own); A(f"s_cbranch_vccz L_spun_{name}")
        A("s_sub_u32 s3, s3, 1"); A("s_cmp_lg_u32 s3, 0"); A(f"s_cbranch_scc1 L_spinl_{name}")
        A(f"s_branch L_spun_{name}")

PIECE = [[13, 14, 15, 0], [1, 2, 8, 9], [3, 10, 4, 5], [6, 7, 11, 12]]
X_OFF = 40 << 20
aWD = 212
vOQ, vWD, vOWN, vOWX = 16, 18, 28, 29
sWB, sR13, sWM, sWT = sWQW, sXW, 92, 84
def slab_c(j): return ((j & 7) << 13) | ((j >> 3) << 12)
def slab_o(j): return slab_c(j & 1) if O.ofake else slab_c(j)
def w_dma(j, hf, early=False):
    jw = j & 1 if O.wfake else j
    r = [[f"s_add_u32 s{sT2}, s{sWT+(jw&7)}, {(jw>>3)*163840}", f"s_add_u32 m0, s{sWM+(j&3)}, {hf*4096}"]]
    for p in range(5):
        v = vWD + hf * 5 + p
        if early:
            v = vOKV
            r[-1].append(f"v_accvgpr_read_b32 {vr(v)}, {ar(aWD+hf*5+p)}")
        if p == 4: r[-1].append(f"s_add_u32 m0, s{sWM+(j&3)}, 8192")
        r.append([(f"buffer_load_dwordx4 {vr(v)}, {sr(sW)}, s{sT2} offen offset:{(p if p < 4 else hf)*1024}{['', ' sc1', ' nt', ' sc0 sc1', ' sc0'][O.wofl]} lds", "vm", ("W", j))])
    return r
OPH = [2, 3, 7, 0, 1, 4, 5, 6]
def OF(j, kk, qq): return OPH[j & 7] * 32 + (kk * 2 + qq) * 4
def o_ld(j):
    r = [[f"s_xor_b32 s4, s{sR13}, {slab_o(j)}"]]
    for kk in range(4):
        for qq in range(2):
            r.append([(f"buffer_load_dwordx4 {ar(OF(j,kk,qq),4)}, {vr(vOQ+qq)}, {sr(sX)}, s4 offen offset:{kk*1024}{SC1()}", "vm", ("O", j))])
    r[1] = r[0] + r[1]
    return r[1:]
def mbox(op, reg, so, tag):
    r = [[(f"buffer_{op}_dwordx4 {reg(t)}, {vr(vOO)}, {sr(sO)}, s{so if t < 4 else sT} offen offset:{(t&3)*1024} sc1", "vm", tag)] for t in range(5)]
    r[3].append(f"s_add_u32 s{sT}, s{so}, 4096")
    return r
def oproj_early(A, tb):
    lane, t0, t1, t2 = range(tb, tb + 4)
    A(f"s_bfe_u32 s3, s7, 0x10002"); A(f"s_lshr_b32 s4, s7, 3")
    A(f"s_lshr_b32 s{sT}, s{sGI}, 4"); A(f"s_lshl_b32 s{sT}, s{sT}, 22")
    A(f"s_lshl_b32 s{sT2}, s3, 20"); A(f"s_add_u32 s{sT}, s{sT}, s{sT2}"); A(f"s_lshl_b32 s{sT2}, s4, 16"); A(f"s_add_u32 s{sT}, s{sT}, s{sT2}")
    srd(A, sX, sWS, sWS + 1, f"s{sT}", "0xf0000")
    A(f"s_mov_b64 s[{sW}:{sW+1}], s[{sWOI}:{sWOI+1}]"); A(f"s_mov_b32 s{sW+2}, 5242880")
    A(f"s_lshl_b32 s{sT}, s4, 6"); A(f"s_add_u32 s{sT}, s{sT}, s{sWAVE}"); A(f"s_mul_i32 s{sWB}, s{sT}, 40960")
    A(f"s_and_b32 s{sT}, s7, 3"); A(f"s_mul_i32 s{sT}, s{sT}, {256 if O.walign else 320}"); A(f"s_add_u32 s{sWB}, s{sWB}, s{sT}")
    if O.own1: A(f"s_and_b32 s{sR13}, s7, 7"); A(f"s_lshl_b32 s{sR13}, s{sR13}, 13")
    else: A(f"s_mov_b32 s{sR13}, 0")
    for j in range(8):
        A(f"s_xor_b32 s{sT}, s{sR13}, {slab_c(j)}"); A(f"s_mul_i32 s{sT}, s{sT}, 40"); A(f"s_add_u32 s{sWT+j}, s{sT}, s{sWB}")
    A(f"s_lshl_b32 s{sT}, s{sWAVE}, 2")
    for sl in range(4):
        A(f"s_lshr_b32 s{sT2}, {hex(sum(PIECE[sl][w] << (4 * w) for w in range(4)))}, s{sT}"); A(f"s_and_b32 s{sT2}, s{sT2}, 15")
        A(f"s_mul_i32 s{sWM+sl}, s{sT2}, 10240")
    A(f"v_bfe_u32 {vr(lane)}, {vr(vOO)}, 4, 6")
    A(f"s_and_b32 s3, s7, 1"); A(f"s_xor_b32 s4, s4, 1")
    A(f"v_lshrrev_b32 {vr(t0)}, 3, {vr(lane)}"); A(f"v_mul_u32_u24 {vr(t0)}, 1280, {vr(t0)}")
    A(f"v_lshrrev_b32 {vr(t1)}, 3, {vr(lane)}"); A(f"v_and_b32 {vr(t1)}, 6, {vr(t1)}"); A(f"v_and_b32 {vr(t2)}, 7, {vr(lane)}"); A(f"v_xor_b32 {vr(t1)}, {vr(t1)}, {vr(t2)}")
    A(f"v_lshl_add_u32 {vr(t0)}, {vr(t1)}, 4, {vr(t0)}")
    for h in range(2):
        A(f"s_xor_b32 s{sT}, s4, {h}"); A(f"s_lshl_b32 s{sT}, s{sT}, 1"); A(f"s_add_u32 s{sT}, s{sT}, s3"); A(f"s_lshl_b32 s{sT}, s{sT}, 6")
        for rb in range(4):
            A(f"v_add_u32 {vr(t1)}, s{sT}, {vr(t0)}"); A(f"v_accvgpr_write_b32 {ar(aWD+h*5+rb)}, {vr(t1)}")
            if rb < 3: A(f"s_add_u32 s{sT}, s{sT}, 9216")
    A(f"v_lshrrev_b32 {vr(t0)}, 2, {vr(lane)}"); A(f"v_mul_u32_u24 {vr(t0)}, 1280, {vr(t0)}")
    A(f"v_bfe_u32 {vr(t1)}, {vr(lane)}, 4, 1"); A(f"v_xor_b32 {vr(t1)}, s4, {vr(t1)}"); A(f"v_lshlrev_b32 {vr(t1)}, 1, {vr(t1)}")
    A(f"v_and_b32 {vr(t2)}, 3, {vr(lane)}"); A(f"v_xor_b32 {vr(t1)}, {vr(t1)}, {vr(t2)}"); A(f"v_lshl_add_u32 {vr(t0)}, {vr(t1)}, 4, {vr(t0)}")
    A(f"s_xor_b32 s3, s3, 1"); A(f"s_lshl_b32 s3, s3, 8"); A(f"v_add_u32 {vr(t0)}, s3, {vr(t0)}"); A(f"v_add_u32 {vr(t1)}, {20480-1024}, {vr(t0)}")
    A(f"v_accvgpr_write_b32 {ar(aWD+4)}, {vr(t0)}"); A(f"v_accvgpr_write_b32 {ar(aWD+9)}, {vr(t1)}")
    if O.wopre in (200, 250):
        A(f"s_and_b32 s{sT}, s{sGI}, 127"); A(f"s_mul_i32 s{sT}, s{sT}, 10240"); A(f"s_mul_i32 s{sTW}, s{sWAVE}, {1310720 - 524288}"); A(f"s_add_u32 s{sTW}, s{sTW}, s{sT}")
        A(f"s_add_u32 s{sTW-1}, s{sTW}, 9216")
    A(f"s_and_b32 s{sT}, s{sGI}, 0xf0"); A(f"v_and_b32 {vr(t0)}, 3, {vr(lane)}"); A(f"v_lshlrev_b32 {vr(t0)}, 2, {vr(t0)}"); A(f"v_add_u32 {vr(t0)}, s{sT}, {vr(t0)}")
    A(f"v_accvgpr_write_b32 {ar(aPOLL)}, {vr(t0)}")
    if O.smf:
        A(f"v_lshrrev_b32 {vr(t0)}, 4, {vr(lane)}"); A(f"v_xor_b32 {vr(t0)}, {vr(t0)}, {vr(lane)}"); A(f"v_bfe_i32 {vr(t0)}, {vr(t0)}, 1, 1")
        A(f"v_bfi_b32 {vr(t0)}, {vr(t0)}, 0, s{sT3}")
        for q in range(4): A(f"v_accvgpr_write_b32 {ar(aONE+q)}, {vr(t0)}")
        A(f"v_bfe_i32 {vr(t0)}, {vr(lane)}, 0, 1"); A(f"v_and_b32 {vr(t0)}, 0xaaaaaaaa, {vr(t0)}"); A(f"v_or_b32 {vr(vIDX)}, 0x44444444, {vr(t0)}")
def oproj_setup(A):
    vTMP = vPOLL
    A(f"v_accvgpr_read_b32 {vr(vPOLL)}, {ar(aPOLL)}")
    A(f"s_lshl_b32 s{sT}, s{sWAVE}, 18"); A(f"v_and_b32 {vr(vOQ)}, 0x3ff, {vr(vOO)}")
    A(f"v_add_u32 {vr(vOQ)}, s{sT}, {vr(vOQ)}"); A(f"v_add_u32 {vr(vOQ+1)}, 0x20000, {vr(vOQ)}")
    for p in range(10): A(f"v_accvgpr_read_b32 {vr(vWD+p)}, {ar(aWD+p)}")
    A(f"s_and_b32 s{sT}, s{sGI}, 0xfc"); A(f"s_and_b32 s3, s{sGI}, 3"); A(f"s_lshl_b32 s3, s3, 3"); A(f"s_lshl_b32 s3, 0xff, s3")
    A(f"v_cmp_eq_u32 vcc, s{sT}, {vr(vTMP)}"); A(f"v_mov_b32 {vr(vOWN)}, s3"); A(f"s_xor_b32 s{sT}, s{sT}, 8"); A(f"v_cndmask_b32 {vr(vOWN)}, 0, {vr(vOWN)}, vcc")
    A(f"v_cmp_eq_u32 vcc, s{sT}, {vr(vTMP)}"); A(f"s_not_b32 s3, s3"); A(f"v_mov_b32 {vr(vOWX)}, s3"); A(f"v_cndmask_b32 {vr(vOWX)}, -1, {vr(vOWX)}, vcc")
    A(f"v_xor_b32 {vr(31)}, s{sGI}, {vr(vTMP)}"); A(f"v_bfe_i32 {vr(31)}, {vr(31)}, 3, 1")
    A(f"v_and_or_b32 {vr(vOWX)}, {vr(vOWX)}, {vr(31)}, {vr(vOWN)}"); A(f"v_or_b32 {vr(vOWN)}, {vr(vOWN)}, {vr(31)}")

def oproj(A):
    vWR = 200
    vACC, vWF = 40, 120
    def ACC(h, qq, nb): return vACC + h * 40 + (qq * 5 + nb) * 4
    def WF(par, f): return vWF + par * 40 + f * 4
    A.c("---- O projection")
    lane, t0, t1 = 38, 39, 37
    A(f"v_bfe_u32 {vr(lane)}, {vr(vOO)}, 4, 6"); A(f"v_lshrrev_b32 {vr(t0)}, 5, {vr(lane)}"); A(f"v_lshlrev_b32 {vr(t0)}, 10, {vr(t0)}")
    A(f"v_bfe_u32 {vr(t1)}, {vr(lane)}, 2, 3"); A(f"v_lshl_add_u32 {vr(t0)}, {vr(t1)}, 7, {vr(t0)}")
    A(f"v_and_b32 {vr(t1)}, 3, {vr(lane)}"); A(f"v_lshl_add_u32 {vr(t0)}, {vr(t1)}, 3, {vr(t0)}")
    A(f"v_bfe_u32 {vr(t1)}, {vr(lane)}, 3, 2"); A(f"v_lshl_add_u32 {vr(vWR)}, {vr(t1)}, 5, {vr(t0)}")
    for nb in range(1, 4): A(f"v_xor_b32 {vr(vWR+3*nb)}, {nb*32}, {vr(vWR)}")
    A(f"v_lshrrev_b32 {vr(t0)}, 2, {vr(lane)}"); A(f"v_lshlrev_b32 {vr(t0)}, 6, {vr(t0)}"); A(f"v_and_b32 {vr(t1)}, 3, {vr(lane)}"); A(f"v_lshl_add_u32 {vr(t0)}, {vr(t1)}, 3, {vr(t0)}")
    A(f"v_bfe_u32 {vr(t1)}, {vr(lane)}, 4, 1"); A(f"v_lshl_add_u32 {vr(vWR+12)}, {vr(t1)}, 5, {vr(t0)}"); A(f"v_xor_b32 {vr(vWR+15)}, 32, {vr(vWR+12)}")
    for q in range(6):
        for w in (2, 1): A(f"v_add_u32 {vr(vWR+3*q+w)}, {51200*w}, {vr(vWR+3*q)}")
    nd_ = O.ndef; nf = 16 - nd_
    steps = [(j, kk, (0, 1)) for j in range(nf) for kk in range(4)] + [(j, kk, (h,)) for h in range(2) for j in range(nf, 16) for kk in range(4)]
    def w_rd(i):
        j, kk, hs = steps[i]
        pc = PIECE[j & 3][kk]; w = min(pc // 5, 2)
        return [(f"ds_read_b64_tr_b16 {vr(WF(i&1,f*5+nb)+2*jh,2)}, {vr(vWR+3*(nb if nb < 4 else 4+h)+w)} offset:{pc*10240-w*51200+(h*4096+jh*2048 if nb < 4 else 8192+jh*1024)}", "ds", ("WF", i & 1, f * 5 + nb))
                for f, h in enumerate(hs) for nb in range(5) for jh in range(2) if not (O.lfake and f == 1)]
    for ops in o_ld(3):
        for o in ops: A.op(o)
    A.wait(vm=[("W", 0), ("O", 0)]); A("s_barrier")
    for o in w_rd(0): A.op(o)
    mf = []; need = {}; gaps = {}; pre = {}; start = []; bars = {}
    for i, (j, kk, hs) in enumerate(steps):
        start.append(len(mf))
        for f, h in enumerate(hs):
            for nb in range(5):
                if nb in (0, 2): need[len(mf)] = [("WF", i & 1, f * 5 + q) for q in ((0, 1) if nb == 0 else (2, 3, 4))]
                for qq in range(2):
                    c = "0" if (j == 0 and kk == 0) else vr(ACC(h, qq, nb), 4)
                    mf.append(f"{MF} {vr(ACC(h,qq,nb),4)}, {vr(WF(i&1,f*5+nb),4)}, {ar(OF(j,kk,qq),4)}, {c}")
    n = len(mf); start.append(n)
    gaps = {g: [] for g in range(n)}
    iB = len(steps) - 4 * nd_; gB = start[iB]
    for i, (j, kk, hs) in enumerate(steps):
        g0 = start[i]; ln = start[i + 1] - g0; lo = 0
        if kk == 3 and i < iB and j + 1 < 16:
            lo = O.obar if ln == 20 else 2
            bars[j] = g0 + lo
            p = [("", "wait", dict(vm=[("W", j + 1), ("O", j + 1)] + (["ST"] if j == O.pub2 else []), dsn=0 if j + 4 < 16 else None))]
            if j == 4: p.append(("", "call", lambda A_: poll_check(A_, 0x03030303, "u2", vOWN, "p2")))
            p.append("s_barrier")
            if j == O.pub2: p += flag_ops(3, "f2")
            if j == 3: p += poll_ops("p2")
            pre[g0 + lo] = p
        if i + 1 < len(steps):
            rd = w_rd(i + 1); np_ = len(rd) // 2
            stp = 2 if lo + 2 * np_ <= ln + 1 else 1.5
            if O.lfake and ln == 20:
                for q in range(len(rd)): gaps[g0 + lo + int(q * (2 if lo == 0 else 1.5))] += rd[q:q + 1]
            else:
                for q in range(np_): gaps[g0 + lo + int(q * stp)] += rd[2 * q:2 * q + 2]
    def spread(mem, g, sp, dense=False, dry=False):
        for ops in mem:
            while gaps[g] or g + 1 in pre or (g + 1 in need and not dense): g += 1
            if not dry: gaps[g] += ops
            g += sp if any(is_vm(o) for o in ops) else 1
        return g
    spread(w_dma(3, 0) + w_dma(3, 1), 1, 2)
    for j in range(12):
        mem = w_dma(j + 4, 0) + ([] if O.whalf else w_dma(j + 4, 1)) + o_ld(j + 4)
        dn = spread(mem, bars[j], O.osp, dry=True) > bars[j + 1]
        assert spread(mem, bars[j], O.osp, dn) <= bars[j + 1], j
    vXS, vXR = 220, vACC
    xs = []
    st = mbox("store", lambda t: vr(vXS + 4 * t, 4), sXO, "XS")
    for t in (0, 2, 3, 1, 4):
        xs += [[f"v_cvt_pk_bf16_f32 {vr(vXS+4*t+q)}, {vr(vACC+8*t+2*q)}, {vr(vACC+8*t+2*q+1)}" for q in range(2 * u, 2 * u + 2)] for u in range(2)]
        if t == 4: xs.append([st[3][1]])
        xs.append(st[t][:1])
    e = spread(xs, gB + 1, 1, True)
    xl = mbox("load", lambda t: vr(vXR + 4 * t, 4), sXI, "XL")
    assert e < n - O.xld
    spread(xl, n - O.xld, 1, True)
    for j in (4, 9): pre[start[4 * j]] = pre.get(start[4 * j], []) + [("", "call", lambda A_, j=j: stamp(A_, f"slab{j}", 2))]
    for j in (1, 4, 6, 12): pre[start[4 * j]] = pre.get(start[4 * j], []) + [("", "call", lambda A_, j=j: stamp(A_, f"slab{j}", 6))]
    pre[gB] = pre.get(gB, []) + [("", "call", lambda A_: stamp(A_, "phaseB", 5))]
    interleave(A, mf, gaps, pre=pre, need=need)
    stamp(A, "oproj loop done"); stamp(A, "oloop", 5); stamp(A, "oloop", 6)
    A(f"v_and_b32 {vr(t0)}, 15, {vr(lane)}"); A(f"v_mul_u32_u24 {vr(t0)}, 2560, {vr(t0)}"); A(f"v_lshrrev_b32 {vr(t1)}, 4, {vr(lane)}")
    A(f"s_mul_i32 s{sT}, s{sWAVE}, {32*2560}"); A(f"s_and_b32 s3, s7, 1"); A(f"s_lshr_b32 s4, s7, 3")
    A(f"s_lshl_b32 s{sT2}, s4, 1"); A(f"s_add_u32 s{sT2}, s{sT2}, s3"); A(f"s_lshl_b32 s{sT2}, s{sT2}, 6"); A(f"s_add_u32 s{sT2}, s{sT2}, s{sT}")
    A(f"s_xor_b32 s3, s3, 1"); A(f"s_lshl_b32 s3, s3, 3"); A(f"s_add_u32 s3, s3, s4"); A(f"s_lshl_b32 s3, s3, 5"); A(f"s_add_u32 s3, s3, s{sT}")
    A(f"v_lshl_add_u32 {vr(vOQ+1)}, {vr(t1)}, 3, {vr(t0)}"); A(f"v_add_u32 {vr(vOQ+1)}, s3, {vr(vOQ+1)}")
    A(f"v_bfe_u32 {vr(t1)}, {vr(lane)}, 4, 1"); A(f"v_lshl_add_u32 {vr(t0)}, {vr(t1)}, 5, {vr(t0)}")
    A(f"v_lshrrev_b32 {vr(t1)}, 5, {vr(lane)}"); A(f"v_lshl_add_u32 {vr(vOQ)}, {vr(t1)}, 4, {vr(t0)}"); A(f"v_add_u32 {vr(vOQ)}, s{sT2}, {vr(vOQ)}")
    def xtest():
        A(f"v_max3_u32 {vr(t0)}, {vr(vXR)}, {vr(vXR+1)}, {vr(vXR+2)}"); A(f"v_max3_u32 {vr(t1)}, {vr(vXR+3)}, {vr(vXR+4)}, {vr(vXR+5)}")
        for q in range(6, 20, 2): A(f"v_max3_u32 {vr(t0 if q & 2 else t1)}, {vr(t0 if q & 2 else t1)}, {vr(vXR+q)}, {vr(vXR+q+1)}")
        A(f"v_max_u32 {vr(t0)}, {vr(t0)}, {vr(t1)}"); A(f"v_cmp_eq_u32 vcc, -1, {vr(t0)}")
    A("s_mov_b32 s4, 0x40000")
    A.label("L_xpoll")
    A("s_waitcnt vmcnt(0)"); A.vm = []
    xtest(); A("s_cbranch_vccz L_xdone")
    for ops in xl:
        for o in ops: A(o if isinstance(o, str) else o[0])
    A("s_sub_u32 s4, s4, 1"); A("s_cmp_lg_u32 s4, 0"); A("s_cbranch_scc1 L_xpoll")
    A("s_waitcnt vmcnt(0)")
    A.label("L_xdone")
    stamp(A, "xflag", 5)
    A(f"s_mov_b32 s{sT}, {16*2560}"); A("s_movk_i32 s3, 0x3f80"); A("s_mov_b32 s4, 0x3f800000")
    for qq in range(2):
        d = vWF + qq * 10; ac = ACC(1, qq, 0)
        for i in range(20): A(f"v_dot2_f32_bf16 {vr(ac+i)}, {vr(vXR+qq*10+i//2)}, s{3+(i&1)}, {vr(ac+i)}")
        for i in range(10): A(f"v_cvt_pk_bf16_f32 {vr(d+i)}, {vr(ac+2*i)}, {vr(ac+2*i+1)}")
        so = f"s{sT}" if qq else "0"
        A("s_nop 0")
        for P_ in range(2):
            for q in range(2): A(f"v_permlane16_swap_b32 {vr(d+4*P_+q)}, {vr(d+4*P_+2+q)}")
        A.op((f"buffer_store_dwordx2 {vr(d+8,2)}, {vr(vOQ+1)}, {sr(sOUT)}, {so} offen{OFL()}", "vm", "OUT"))
        A.op((f"buffer_store_dwordx4 {vr(d,4)}, {vr(vOQ)}, {sr(sOUT)}, {so} offen{OFL()}", "vm", "OUT"))
        A.op((f"buffer_store_dwordx4 {vr(d+4,4)}, {vr(vOQ)}, {sr(sOUT)}, {so} offen offset:64{OFL()}", "vm", "OUT"))

def gen_kernel(k):
    A = Asm()
    A("s_cmp_ge_u32 s2, 256"); A("s_cbranch_scc1 L_end")
    stamp(A, "t0")
    if O.cpre:
        A("s_getpc_b64 s[84:85]"); A("s_and_b32 s84, s84, 0xffffff00"); A("s_and_b32 s85, s85, 0xffff")
        A("s_mov_b32 s86, L_codeend-attn_kernel"); A("s_mov_b32 s87, 0x20000")
        A("s_lshr_b32 s3, s2, 3"); A("s_lshl_b32 s3, s3, 12"); A("v_lshlrev_b32 v4, 4, v0")
        A.op(("buffer_load_dwordx4 v[252:255], v4, s[84:87], s3 offen", "vm", "CODE"))
        A("s_nop 4")
    A("s_load_dwordx16 s[64:79], s[0:1], 0")
    A("s_load_dwordx8 s[80:87], s[0:1], 64")
    A(f"s_load_dwordx2 s[{sWS}:{sWS+1}], s[0:1], 96")
    A("s_and_b32 s3, s2, 7"); A("s_lshr_b32 s4, s2, 3"); A("s_lshr_b32 s5, s3, 2")
    if O.map2:
        A("s_bfe_u32 s6, s3, 0x10001"); A("s_lshl_b32 s6, s6, 2"); A("s_lshr_b32 s7, s4, 3"); A("s_add_u32 s6, s6, s7")
        A("s_and_b32 s7, s3, 1"); A("s_lshl_b32 s7, s7, 3"); A("s_and_b32 s4, s4, 7"); A("s_add_u32 s7, s7, s4")
    else:
        A("s_and_b32 s6, s3, 3"); A("s_lshl_b32 s6, s6, 1"); A("s_lshr_b32 s7, s4, 4"); A("s_add_u32 s6, s6, s7")
        A("s_and_b32 s7, s4, 15")
    vAW, vOW, vOX, vAX = 16, 24, 28, 36
    lane, g, i, r, t0, t1, t2, t3, h = range(48, 57)
    A(f"v_lshrrev_b32 {vr(t0)}, 6, v0"); A(f"v_and_b32 {vr(lane)}, 63, v0"); A(f"v_readfirstlane_b32 s{sWAVE}, {vr(t0)}")
    A(f"v_lshrrev_b32 {vr(g)}, 4, {vr(lane)}"); A(f"v_and_b32 {vr(i)}, 15, {vr(lane)}"); A(f"v_lshrrev_b32 {vr(h)}, 5, {vr(lane)}")
    A(f"s_and_b32 s{sT2}, s{sWAVE}, 1"); A(f"s_lshl_b32 s{sT2}, s{sT2}, 3")
    A(f"s_lshl_b32 s{sT}, s{sWAVE}, 16")
    A(f"v_and_b32 {vr(t2)}, 31, {vr(lane)}"); A(f"v_xor_b32 {vr(t2)}, s{sT2}, {vr(t2)}")
    for p in range(2):
        A(f"v_add_u32 {vr(t0)}, {2*p}, {vr(h)}"); A(f"v_lshlrev_b32 {vr(t1)}, 1, {vr(t0)}"); A(f"v_xor_b32 {vr(t1)}, {vr(t1)}, {vr(t2)}")
        A(f"v_lshlrev_b32 {vr(t1)}, 4, {vr(t1)}"); A(f"v_lshl_add_u32 {vr(t1)}, {vr(t0)}, 13, {vr(t1)}")
        A(f"v_add_u32 {vr(vOW+p)}, s{sT}, {vr(t1)}")
        if p: A(f"v_subrev_u32 {vr(vOW+p)}, 1024, {vr(vOW+p)}")
        A(f"v_add_u32 {vr(vOW+p+2)}, {4*8192-2048}, {vr(vOW+p)}")
    A(f"s_mul_i32 s{sT}, s{sWAVE}, {64*1280}")
    A(f"v_lshrrev_b32 {vr(t0)}, 3, {vr(lane)}"); A(f"v_mul_u32_u24 {vr(t0)}, 1280, {vr(t0)}"); A(f"v_add_u32 {vr(t0)}, s{sT}, {vr(t0)}")
    A(f"v_and_b32 {vr(t1)}, 7, {vr(lane)}"); A(f"v_xor_b32 {vr(t1)}, {vr(t1)}, {vr(g)}")
    A(f"v_lshl_add_u32 {vr(vOX)}, {vr(t1)}, 4, {vr(t0)}"); A(f"v_xor_b32 {vr(t1)}, 4, {vr(t1)}"); A(f"v_lshl_add_u32 {vr(t0)}, {vr(t1)}, 4, {vr(t0)}")
    A(f"v_add_u32 {vr(vOX+1)}, {10240-1024}, {vr(t0)}")
    for p in range(2, 8): A(f"v_add_u32 {vr(vOX+p)}, {(p&~1)*10240 - ((p&3)&~1)*1024}, {vr(vOX+(p&1))}")
    A(f"s_lshl_b32 s{sKVW}, s{sWAVE}, 12"); A(f"s_add_u32 s{sVVW}, s{sKVW}, {VBASE}"); A(f"s_add_u32 s{sWQW}, s{sKVW}, {WQBASE}")
    A(f"s_lshl_b32 s{sXW}, s{sWAVE}, 13")
    A(f"s_lshl_b32 s4, s6, 4"); A(f"s_add_u32 s4, s4, s7")
    A(f"s_lshl_b32 s{sT}, s7, 9"); A(f"s_sub_u32 s{sW+2}, {640*8192}, s{sT}"); A(f"s_mov_b32 s{sW+3}, 0x20000")
    A(f"s_mul_i32 s{sT3}, s6, 327680"); A(f"s_mov_b32 s{sX+2}, 327680"); A(f"s_mov_b32 s{sX+3}, 0x20000")
    A("s_cmp_eq_u32 s5, 1")
    A("s_waitcnt lgkmcnt(0)")
    if O.stamps and O.stm == 1: A("s_memtime s[50:51]"); A("s_memrealtime s[98:99]"); nstamp[0] += 1; stamp_names.append("karg")
    for q in (3, 0, 1, 2, 4): A(f"s_cselect_b64 s[{64+2*q}:{65+2*q}], s[{74+2*q}:{75+2*q}], s[{64+2*q}:{65+2*q}]")
    A(f"s_add_u32 s{sW}, s70, s{sT}"); A(f"s_addc_u32 s{sW+1}, s71, 0"); A(f"s_and_b32 s{sW+1}, s{sW+1}, 0xffff")
    A(f"s_add_u32 s{sX}, s64, s{sT3}"); A(f"s_addc_u32 s{sX+1}, s65, 0"); A(f"s_and_b32 s{sX+1}, s{sX+1}, 0xffff")
    def AF(buf, nb): return buf * 64 + nb * 4
    def XR(G, ks, qb): return 128 + (G & 1) * 32 + (ks * 4 + qb) * 4
    def ACC(nb, qb): return vr(48 + (nb * 4 + qb) * 4, 4) if nb < 13 else ar(208 + ((nb - 13) * 4 + qb) * 4, 4)
    def wq_dma(kk):
        return [[f"s_add_u32 m0, s{sWQW}, {(kk&3)*16384}", f"s_mov_b32 s{sT2}, {kk*262144}"]] + \
               [[(f"buffer_load_dwordx4 {vr(vOW+p)}, {sr(sW)}, s{sT2} offen offset:{p*1024}{' nt' if O.w_nt else ''} lds", "vm", ("W", kk))] for p in range(4)]
    def x_dma(G):
        r = [[f"s_add_u32 m0, s{sXW}, {XB[G&1]}", f"s_movk_i32 s{sT2}, {G*128}"]]
        r += [[(f"buffer_load_dwordx4 {vr(vOX+p)}, {sr(sX)}, s{sT2} offen offset:{(p&3)*1024}{' nt' if O.x_nt else ''} lds", "vm", ("X", G))] for p in range(8)]
        r[4].append(f"s_add_u32 m0, s{sXW}, {XB[G&1]+4096}")
        return r
    def flat(groups):
        for grp in groups:
            for ops in grp:
                for o in ops: A.op(o)
    flat([wq_dma(0), x_dma(0), wq_dma(1), x_dma(1)])
    def kv_groups(kind, tile):
        su, pcs, po = dma_k(tile, (kind, tile)) if kind == "K" else dma_v(tile, (kind, tile))
        return [[su]] + [[p] for p in pcs[:3]] + [[pcs[3], po]]
    A(f"s_mov_b32 s{sWOI}, s72"); A(f"s_and_b32 s{sWOI+1}, s73, 0xffff")
    A(f"s_lshl_b32 s{sT}, s4, 19")
    srd(A, sK, 66, 67, f"s{sT}", "0x80000")
    srd(A, sV, 68, 69, f"s{sT}", "0x80000")
    A(f"s_lshl_b32 s{sGI}, s5, 3"); A(f"s_add_u32 s{sGI}, s{sGI}, s6"); A(f"s_lshl_b32 s{sT2}, s{sGI}, 22")
    srd(A, sO, sWS, sWS + 1, f"s{sT2}", 0x200000 + 16 * 20480)
    A(f"s_lshl_b32 s{sT}, s6, 1"); A(f"s_bfe_u32 s{sT2}, s7, 0x10002"); A(f"s_add_u32 s{sT}, s{sT}, s{sT2}"); A(f"s_mul_i32 s{sT}, s{sT}, {128*2560}")
    A(f"s_mul_i32 s{sT2}, s5, 1280"); A(f"s_add_u32 s{sT}, s{sT}, s{sT2}"); A(f"s_and_b32 s{sT2}, s7, 3"); A(f"s_mul_i32 s{sT2}, s{sT2}, 320")
    A(f"s_add_u32 s{sT}, s{sT}, s{sT2}")
    if O.stamps and O.stm == 1: A("s_waitcnt lgkmcnt(0)"); A("s_mov_b32 s66, s98"); A("s_mov_b32 s67, s99")
    srd(A, sOUT, 84, 85, f"s{sT}", 127 * 2560 + 320)
    srd(A, sCNT, 86, 87, 0, 256)
    A(f"s_lshl_b32 s{sGI}, s{sGI}, 4"); A(f"s_add_u32 s{sGI}, s{sGI}, s7")
    A(f"s_lshl_b32 s{sOOF}, s7, 13")
    A(f"s_mov_b32 s{sKOFF}, 0"); A(f"s_mov_b32 s{sVOFF}, 0"); A(f"s_mov_b32 s{sSTUB}, 99")
    A(f"s_mov_b32 s{sTHR}, {hex(f32bits(2.0**O.thr_log2 if not O.forcefb else -1.0))}")
    A(f"s_mov_b32 s{sSC}, {hex(f32bits(128**-0.5*math.log2(math.e)))}"); A(f"s_mov_b32 s{sSC+1}, s{sSC}")
    A(f"v_lshrrev_b32 {vr(r)}, 2, {vr(i)}")
    A(f"v_and_b32 {vr(t0)}, 1, {vr(g)}"); A(f"v_lshl_add_u32 {vr(t0)}, {vr(t0)}, 2, {vr(r)}")
    A(f"v_lshl_add_u32 {vr(t1)}, {vr(g)}, 3, {vr(r)}"); A(f"v_lshlrev_b32 {vr(t1)}, 9, {vr(t1)}")
    A(f"v_and_b32 {vr(t2)}, 3, {vr(i)}"); A(f"v_lshl_add_u32 {vr(t1)}, {vr(t2)}, 3, {vr(t1)}"); A(f"v_add_u32 {vr(t1)}, {WQBASE}, {vr(t1)}")
    for n3 in range(8):
        A(f"v_xor_b32 {vr(t3)}, {n3}, {vr(t0)}"); A(f"v_lshl_add_u32 {vr(vAW+n3)}, {vr(t3)}, 5, {vr(t1)}")
    A(f"v_lshrrev_b32 {vr(t0)}, 1, {vr(i)}"); A(f"v_xor_b32 {vr(t0)}, {vr(t0)}, {vr(g)}")
    A(f"v_lshlrev_b32 {vr(t1)}, 7, {vr(i)}"); A(f"v_add_u32 {vr(t1)}, s{sXW}, {vr(t1)}")
    A(f"v_lshl_add_u32 {vr(vAX)}, {vr(t0)}, 4, {vr(t1)}"); A(f"v_xor_b32 {vr(vAX+1)}, 64, {vr(vAX)}")
    A(f"v_lshl_add_u32 {vr(t1)}, {vr(r)}, 4, {vr(t2)}"); A(f"v_lshlrev_b32 {vr(t1)}, 8, {vr(t1)}")
    A(f"v_and_b32 {vr(t0)}, 1, {vr(r)}"); A(f"v_lshlrev_b32 {vr(t0)}, 3, {vr(t0)}"); A(f"v_lshl_add_u32 {vr(t0)}, {vr(t2)}, 1, {vr(t0)}")
    A(f"v_lshrrev_b32 {vr(t3)}, 3, {vr(i)}"); A(f"v_add_u32 {vr(t0)}, {vr(t0)}, {vr(t3)}")
    A(f"v_and_b32 {vr(t3)}, 1, {vr(g)}"); A(f"v_lshl_add_u32 {vr(t3)}, {vr(t3)}, 1, {vr(h)}"); A(f"v_xor_b32 {vr(t0)}, {vr(t0)}, {vr(t3)}")
    A(f"v_lshl_add_u32 {vr(vAK)}, {vr(t0)}, 4, {vr(t1)}")
    for s in range(1, 4): A(f"v_xor_b32 {vr(vAK+s)}, {s*64}, {vr(vAK)}")
    A(f"v_lshl_add_u32 {vr(t1)}, {vr(g)}, 4, {vr(r)}"); A(f"v_lshlrev_b32 {vr(t1)}, 8, {vr(t1)}")
    A(f"v_and_b32 {vr(t0)}, 1, {vr(i)}"); A(f"v_lshl_add_u32 {vr(t1)}, {vr(t0)}, 3, {vr(t1)}"); A(f"v_add_u32 {vr(t1)}, {VBASE}, {vr(t1)}")
    A(f"v_and_b32 {vr(t0)}, 1, {vr(g)}"); A(f"v_lshlrev_b32 {vr(t0)}, 3, {vr(t0)}"); A(f"v_lshl_add_u32 {vr(t0)}, {vr(r)}, 1, {vr(t0)}")
    A(f"v_add_u32 {vr(t0)}, {vr(t0)}, {vr(h)}"); A(f"v_bfe_u32 {vr(t3)}, {vr(i)}, 1, 1"); A(f"v_xor_b32 {vr(t0)}, {vr(t0)}, {vr(t3)}")
    A(f"v_lshl_add_u32 {vr(vAV)}, {vr(t0)}, 4, {vr(t1)}")
    for db in range(1, 8): A(f"v_xor_b32 {vr(vAV+db)}, {db*32}, {vr(vAV)}")
    A(f"s_and_b32 s{sT}, s{sWAVE}, 1"); A(f"s_lshl_b32 s{sT}, s{sT}, 3"); A(f"s_lshr_b32 s{sT2}, s{sWAVE}, 1"); A(f"s_add_u32 s{sT}, s{sT}, s{sT2}")
    A(f"v_lshlrev_b32 {vr(t0)}, 1, {vr(g)}"); A(f"v_add_u32 {vr(t0)}, s{sT}, {vr(t0)}"); A(f"v_xor_b32 {vr(t0)}, {vr(t0)}, {vr(i)}")
    A(f"v_lshlrev_b32 {vr(t0)}, 4, {vr(t0)}"); A(f"v_lshl_add_u32 {vr(t0)}, {vr(g)}, 8, {vr(t0)}"); A(f"v_add_u32 {vr(vOKV)}, s{sKVW}, {vr(t0)}")
    A(f"s_lshl_b32 s{sT}, s{sWAVE}, 19"); A(f"v_lshlrev_b32 {vr(t0)}, 4, {vr(lane)}"); A(f"v_add_u32 {vr(vOO)}, s{sT}, {vr(t0)}")
    if O.fuse:
        A(f"s_mul_i32 s{sT}, s{sWAVE}, {5120 - (1 << 19)}"); A(f"s_add_u32 s{sT}, s{sT}, 0x200000")
        A(f"s_mul_i32 s{sXI}, s7, 20480"); A(f"s_add_u32 s{sXI}, s{sXI}, s{sT}")
        A(f"s_xor_b32 s{sXO}, s7, 8"); A(f"s_mul_i32 s{sXO}, s{sXO}, 20480"); A(f"s_add_u32 s{sXO}, s{sXO}, s{sT}")
        for q in range(4): A(f"v_mov_b32 {vr(40+q)}, -1")
    if 0 <= O.wopre < 200:
        A(f"s_mov_b32 s{sWOI+2}, 5242880"); A(f"s_mov_b32 s{sWOI+3}, 0x20000")
        A(f"s_lshl_b32 s{sT}, s4, 2"); A(f"s_add_u32 s{sT}, s{sT}, s{sWAVE}"); A(f"s_mul_i32 s{sT}, s{sT}, 10240")
        A(f"v_lshlrev_b32 {vr(t0)}, 4, {vr(lane)}"); A(f"v_add_u32 {vr(vTMP)}, s{sT}, {vr(t0)}")
    if O.l2n: A(f"v_lshlrev_b32 {vr(44)}, {O.l2sh}, {vr(lane)}"); A(f"s_lshl_b32 s{sT}, s{sWAVE}, {O.l2sh+6}"); A(f"v_add_u32 {vr(44)}, s{sT}, {vr(44)}")
    if O.kv0 < 0: flat([kv_groups("K", 0), kv_groups("V", 0)])
    stamp(A, "setup done", 1)
    def wo_pre(i, kk):
        n = 10 // O.wopn; r = []
        for q in range(i * n, (i + 1) * n):
            if q == i * n or q % 4 == 0:
                r.append([f"s_add_u32 m0, s{sKVW}, {0 if kk < 15 else 131072}", f"s_movk_i32 s{sT2}, {(q & ~3)*1024}"])
            r.append([(f"buffer_load_dwordx4 {vr(vTMP)}, {sr(sWOI)}, s{sT2} offen offset:{(q&3)*1024}{' nt' if O.wopre_nt else ''} lds", "vm", "WOP")])
        return r
    if O.wopre == 99: flat([wo_pre(0, 0)])
    def a_reads(kk):
        return [(f"ds_read_b64_tr_b16 {ar(AF(kk&1,nb)+2*jh,2)}, {vr(vAW+(nb&7))} offset:{(kk&3)*16384+jh*2048+(nb>>3)*256}", "ds", "A")
                for nb in range(16) for jh in range(2)]
    def x_reads(G):
        return [(f"ds_read_b128 {ar(XR(G,ks,qb),4)}, {vr(vAX+ks)} offset:{XB[G&1]+qb*2048}", "ds", "XR") for ks in range(2) for qb in range(4)]
    A.wait(vm=[("W", 0), ("X", 0)]); A("s_barrier")
    stamp(A, "wq0 landed"); stamp(A, "wq0 landed", 1); stamp(A, "wq0 landed", 3)
    for o in x_reads(0) + a_reads(0): A.op(o)
    flat([wq_dma(2), wq_dma(3)])
    KVS = [int(x) for x in O.kvs.split(",")]
    assert KVS[2] >= 15 and KVS[3] >= 15 and KVS[4] >= 16 and KVS[5] >= 17 and KVS[6] >= 17 and KVS[0] <= KVS[2] <= KVS[3] <= KVS[5] and KVS[1] <= KVS[4] <= KVS[6]
    for kk in range(20):
        A.c(f"---- qproj step {kk}")
        G, ks = kk >> 1, kk & 1
        if kk in (1, 4): stamp(A, f"step{kk}", 1)
        if kk in (4, 8, 12, 15): stamp(A, f"step{kk}", 3)
        nd = ([("W", kk + 1)] if kk + 1 < 20 else []) + ([("X", G + 1)] if ks == 0 and G + 1 < 10 else [])
        A.wait(vm=nd, dsn=0); A("s_barrier")
        mf = [f"{MF} {ACC(nb,qb)}, {ar(AF(kk&1,nb),4)}, {ar(XR(G,ks,qb),4)}, {ACC(nb,qb) if kk else '0'}" for nb in range(16) for qb in range(4)]
        gaps = {q: [] for q in range(64)}
        mem = []
        if kk + 4 < 20: mem += wq_dma(kk + 4)
        if kk == 0: mem += x_dma(2)
        if ks == 1 and G + 3 < 10: mem += x_dma(G + 3)
        if O.wopre >= 0 and O.wopre <= kk < O.wopre + O.wopn: mem += wo_pre(kk - O.wopre, kk)
        if O.fuse and kk == O.xfill: mem += mbox("store", lambda t: vr(40, 4), sXI, "XF")
        for q in range(O.l2n):
            if O.l2at + q // O.l2per == kk:
                mem += [[f"s_mov_b32 s3, {(4 - (q & 1)) * 16384 + (q >> 1) * (256 << O.l2sh)}", (f"buffer_load_dword {ar(192)}, {vr(44)}, {sr(sV if q & 1 else sK)}, s3 offen", "vm", "L2")]]
        for (kind, tile), at in zip((("K", 0), ("V", 0), ("K", 1), ("K", 2), ("V", 1), ("K", 3), ("V", 2)), KVS):
            if kk == at: mem += kv_groups(kind, tile)
        rd = (x_reads(G + 1) if ks == 0 and G + 1 < 10 else []) + (a_reads(kk + 1) if kk + 1 < 20 else [])
        sp = max(2, min(O.qsp, 56 // max(1, len(mem))))
        for q, ops in enumerate(mem): gaps[1 + sp * q] += ops
        fr = [q for q in range(60) if not gaps[q]]
        two = max(0, len(rd) - len(fr))
        fr = sorted(fr + fr[:two])
        for q, o in enumerate(rd): gaps[fr[(q * len(fr)) // len(rd)]].append(o)
        interleave(A, mf, gaps)
    stamp(A, "qproj done"); stamp(A, "qproj done", 3)
    if O.fuse and O.xfill == 20: flat([mbox("store", lambda t: vr(40, 4), sXI, "XF")])
    A("s_nop 7")
    def conv_front(hd, s, qb, T0, T1, tb):
        for T in (T0, T1):
            for q in range(2): A(f"v_pk_mul_f32 {vr(T+2*q,2)}, {vr(T+2*q,2)}, s[{sSC}:{sSC+1}]")
        for q in range(2): A(f"v_cvt_pk_bf16_f32 {vr(tb+q)}, {vr(T0+2*q)}, {vr(T0+2*q+1)}")
        for q in range(2): A(f"v_cvt_pk_bf16_f32 {vr(tb+2+q)}, {vr(T1+2*q)}, {vr(T1+2*q+1)}")
    def conv_back(hd, s, qb, tb):
        for q in range(2): A(f"v_permlane16_swap_b32 {vr(tb+q)}, {vr(tb+2+q)}")
    def conv_wr(hd, s, qb, tb):
        for q in range(4): A(f"v_accvgpr_write_b32 {ar(hd*64+(qb*4+s)*4+q)}, {vr(tb+q)}")
    jobs = []
    for pr in range(8):
        for qb in range(4):
            jobs.append((pr, qb))
    pend = []
    for n_, (pr, qb) in enumerate(jobs):
        if pr == 6 and qb == 0:
            for q in range(48): A(f"v_accvgpr_read_b32 {vr(48+q)}, {ar(208+q)}")
        def loc(nb): return 48 + (nb * 4 + qb) * 4 if nb < 13 else 48 + ((nb - 13) * 4 + qb) * 4
        tb = 16 + (n_ % 4) * 4
        conv_front(pr >> 2, pr & 3, qb, loc(2 * pr), loc(2 * pr + 1), tb)
        pend.append((pr >> 2, pr & 3, qb, tb))
        if len(pend) >= 2: conv_back(*pend[-2])
        if len(pend) >= 3: conv_wr(*pend[-3])
    A("s_nop 1"); conv_back(*pend[-1]); conv_wr(*pend[-2]); A("s_nop 0"); conv_wr(*pend[-1])
    A(f"s_mov_b32 s{sT3}, 0x3f803f80")
    if not O.vsum and not O.smf:
        for q in range(4): A(f"v_accvgpr_write_b32 {ar(aONE+q)}, s{sT3}")
    if O.dumpq:
        A(f"s_lshl_b32 s{sT}, s5, 7"); A(f"s_lshl_b32 s{sT2}, s6, 4"); A(f"s_add_u32 s{sT}, s{sT}, s{sT2}"); A(f"s_add_u32 s{sT}, s{sT}, s7")
        A(f"s_lshl_b32 s{sT}, s{sT}, 17"); A(f"s_add_u32 s{sT}, s{sT}, {QDUMP_WS_OFF}")
        srd(A, sDBG, sWS, sWS + 1, f"s{sT}", "0x20000")
        A(f"v_and_b32 {vr(16)}, 0x3ff, {vr(vOO)}"); A(f"s_lshl_b32 s{sT}, s{sWAVE}, 15"); A(f"v_add_u32 {vr(16)}, s{sT}, {vr(16)}")
        for q in range(32):
            A(f"s_mov_b32 s{sT}, {q*1024}")
            A(f"buffer_store_dwordx4 {ar(4*q,4)}, {vr(16)}, {sr(sDBG)}, s{sT} offen")
        A("s_waitcnt vmcnt(0)")
    if O.fuse: oproj_early(A, 16)
    A.wait(vm=[("K", 0)]); A("s_barrier")
    stamp(A, "conv done")
    A(f"s_mov_b32 s{sUNIT}, 0")
    if O.trace: A("s_mov_b64 s[52:53], 1"); A("s_memrealtime s[50:51]"); A("v_mov_b32 v0, 0")
    A.label("L_unit")
    A(f"s_mov_b32 s{sLOOP}, 3")
    ncls = 2 if O.twocls else 1
    if ncls == 2:
        A(f"s_bitcmp1_b32 s{sWAVE}, 0"); A("s_cbranch_scc1 L_first_1")
    ds6 = None
    for cls in range(ncls):
        A.label(f"L_first_{cls}")
        A.ds = []
        first_slot(A, cls)
        slot(A, 1, cls, f"second_{cls}", zero=True)
        ds_in = list(A.ds)
        A.label(f"L_loop_{cls}")
        for p in (2, 3, 4, 5, 6, 7, 0, 1):
            tail = []
            if p == 6: tail = [f"s_cmp_eq_u32 s{sLOOP}, 0", "s_cbranch_scc1 L_last"]
            if p == 7 and O.fuse: tail = [f"s_cmp_eq_u32 s{sLOOP}, s{sSTUB}", "s_cbranch_scc1 L_tail"]
            if p == 1:
                tail = [f"s_sub_u32 s{sLOOP}, s{sLOOP}, 1"]
                if O.stamps and O.stm == 4: tail += [f"s_memtime s[50:51]", "s_memrealtime s[66:67]"]
                tail += [f"s_branch L_loop_{cls}"]
            slot(A, p, cls, f"p{p}_{cls}", tail=tail)
            if p == 6: ds6 = list(A.ds)
            if p == 7: ds7 = list(A.ds)
        assert len(A.ds) == len(ds_in) and A.ds == ds_in, (A.ds, ds_in)
    if O.stamps and O.stm == 4: nstamp[0] += 1; stamp_names.append("loopback")
    A.label("L_last")
    if not O.fuse: stamp(A, "last", 4)
    A.ds = list(ds6)
    last_slot(A, not O.fuse)
    if O.chk:
        A(f"s_cmp_lg_u64 s[{sM}:{sM+1}], 0"); A("s_cbranch_scc1 L_fb")
    if not O.fuse:
        A(f"s_cmp_lg_u32 s{sUNIT}, 0"); A("s_cbranch_scc1 L_fbret1")
    A.label("L_fbret0")
    stamp(A, "unit0 end"); stamp(A, "unit0 end", 2)
    A(f"s_mov_b32 s{sUNIT}, 1"); A(f"s_add_u32 s{sOOF}, s{sOOF}, 4096"); A(f"s_mov_b32 s{sSTUB}, 1")
    if O.fuse and O.wopre >= 300:
        sh = O.wopre - 300
        A(f"v_bfe_u32 v0, {vr(vOO)}, 4, 6"); A("s_lshr_b32 s3, s2, 3"); A(f"s_lshl_b32 s3, s3, 2"); A(f"s_add_u32 s3, s3, s{sWAVE}"); A("s_lshl_b32 s3, s3, 6")
        A("v_add_u32 v0, s3, v0"); A(f"v_lshlrev_b32 v0, {12 - sh}, v0"); A("s_lshr_b32 s3, s7, 3"); A("s_mul_i32 s3, s3, 2621440")
        A(f"v_cmp_gt_u32 vcc, 2621440, v0"); A("s_and_saveexec_b64 s[100:101], vcc")
        A(f"buffer_load_dword {ar(224)}, v0, {sr(sW)}, s3 offen"); A("s_mov_b64 exec, -1")
    for q in range(64): A(f"v_accvgpr_mov_b32 {ar(aQ+q)}, {ar(aQ2+q)}")
    if O.fuse:
        for q in range(64): A(f"v_accvgpr_write_b32 {ar(aQ2+q)}, {vr(vS+q)}")
    A("s_branch L_unit")
    if O.fuse:
        A.label("L_tail")
        stamp(A, "tail", 2); stamp(A, "tail", 4)
        if O.trace:
            srd(A, 56, sWS, sWS + 1, 132 << 20, 4 << 20); A("s_lshl_b32 s3, s2, 10")
            A(f"buffer_store_dword v0, {vr(vOO)}, s[56:59], s3 offen")
        A.ds = list(ds7)
        A.vm = [("G", 9)] * 8 + [("G", 10)] * 8 + (["WOP"] if O.wopre == 250 else []) + [("G", 11)] * 8
        def st0(qbs):
            r = []
            for qb in qbs:
                r.append([f"s_add_u32 s{sT}, s{sOOF}, {qb*131072 - 4096}"] if qb else [f"s_sub_u32 s{sT}, s{sOOF}, 4096"])
                r += [[o_store(ar(aQ2 + (qb * 4 + t) * 4, 4), qb, t, "ST0", sT)] for t in range(4)]
            return r
        v15 = dma_v(3, ("G", 12))
        slot(A, 0, 0, "t24", groups=[[v15[0]]] + [[o] for o in v15[1]] + st0([0]), vmtags=[("G", 9)])
        slot(A, 1, 0, "t25", groups=st0([1, 2]))
        slot(A, 2, 0, "t26", groups=st0([3]) + w_dma(0, 0, True), vmtags=[("G", 10)])
        def touch(lo, hi):
            if O.wopre != 200: return []
            r = []
            for q in range(lo, hi):
                if q == lo or q % 4 == 0: r.append([f"s_add_u32 s{sT}, s{sTW}, {(q & ~3)*1024}"])
                r.append([(f"buffer_load_dwordx4 {ar(224+(q&7)*4,4)}, {vr(vOO)}, {sr(sW)}, s{sT} offen offset:{(q&3)*1024}", "vm", "WOP")])
            return r
        slot(A, 3, 0, "t27", groups=w_dma(0, 1, True) + touch(0, 5))
        slot(A, 4, 0, "t28", groups=w_dma(1, 0, True), vmtags=[("G", 11), "ST0"], after_bar=flag_ops(1, "f1"))
        slot(A, 5, 0, "t29", groups=touch(5, 10) + w_dma(1, 1, True))
        slot(A, 6, 0, "t30", groups=w_dma(2, 0, True), vmtags=[("G", 12)], tail=[f"v_accvgpr_read_b32 {vr(vPOLL)}, {ar(aPOLL)}"] + poll_ops("p1"))
        stamp(A, "last1", 2)
        oproj_setup(A)
        def mid():
            A.wait(dsn=0)
            poll_check(A, 0x01010101, "u1", vOWX, "p1")
            A("s_barrier")
        if O.own1: last_slot(A, True, extra1=w_dma(2, 1) + o_ld(0), mid=mid, extra2=o_ld(1) + o_ld(2))
        else: last_slot(A, True, extra1=w_dma(2, 1), mid=mid, extra2=o_ld(0) + o_ld(1) + o_ld(2))
        if O.chk:
            A(f"s_cmp_lg_u64 s[{sM}:{sM+1}], 0"); A("s_cbranch_scc1 L_fb")
        A.label("L_fbret1")
        stamp(A, "unit1 end"); stamp(A, "unit1 end", 2); stamp(A, "unit1 end", 5); stamp(A, "unit1 end", 6)
        oproj(A)
    else:
        A.label("L_fbret1")
        stamp(A, "unit1 end")
    if O.stamps: emit_stamps(A)
    A.label("L_end")
    A("s_endpgm")
    if O.chk:
        fallback(A)
    emit_spins(A)
    A.label("L_codeend")
    return kstart(k) + A.text()

def emit_stamps(A):
    A("s_waitcnt vmcnt(0) lgkmcnt(0)")
    A(f"s_memtime s[8:9]"); A(f"s_memrealtime s[10:11]")
    A("s_waitcnt lgkmcnt(0)")
    srd(A, sDBG, sWS, sWS + 1, STAMP_WS_OFF, "0x100000")
    A(f"s_lshl_b32 s3, s2, 2"); A(f"s_add_u32 s3, s3, s{sWAVE}"); A("s_lshl_b32 s3, s3, 7")
    A("v_mov_b32 v0, s3")
    n = nstamp[0]
    regs = [(j, sSTAMP + 2 * j) for j in range(n)] + [(n, 8)] + [(8 + j, 62 if j == 0 else sRSTAMP + 2 * j) for j in range(n)] + [(8 + n, 10)]
    A("s_getreg_b32 s4, hwreg(HW_REG_XCC_ID)")
    regs.append((16, 4))
    for j, s_ in regs:
        A(f"v_mov_b32 v1, s{s_}")
        A(f"buffer_store_dword v1, v0, {sr(sDBG)}, 0 offen offset:{4*j}")
    A("s_waitcnt vmcnt(0)")

def main():
    ap = argparse.ArgumentParser()
    for k_, v_ in vars(Opt).items():
        if k_.startswith("_"): continue
        if isinstance(v_, bool): ap.add_argument("--" + k_, type=lambda s: bool(int(s)), default=v_)
        elif isinstance(v_, int): ap.add_argument("--" + k_, type=int, default=v_)
        else: ap.add_argument("--" + k_, default=v_)
    a = ap.parse_args()
    for k_, v_ in vars(a).items(): setattr(O, k_, v_)
    O.smpos_ = [int(x) for x in O.smpos.split(',')]
    hdr = open("cdna_kernels/" + NAME + ".s.ref").read().split("; Override launch")[0]
    out = hdr
    out += "; @launch kernel=attn_kernel grid=(256,1,1) block=(256,1,1) lds=163840\n"
    body = gen_kernel("attn_kernel")
    if O.stamps: out += "; stamps: " + ",".join(stamp_names) + ",end\n"
    out += '.amdgcn_target "amdgcn-amd-amdhsa--gfx950"\n.text\n'
    out += body + kd("attn_kernel")
    lines = out.split("\n")
    if O.skip_loop:
        iu = lines.index("L_unit:"); il = lines.index("L_last:")
        lines = lines[:iu] + [l for l in lines[iu:il] if not ("buffer_load_dwordx4" in l and " lds" in l)] + lines[il:]
    il = lines.index("L_last:")
    if O.skip_oo: lines = lines[:il] + [l for l in lines[il:] if not ("buffer_load_dwordx4 a[" in l and "s[8:11]" in l)]
    if O.skip_ow: lines = lines[:il] + [l for l in lines[il:] if not ("s[12:15]" in l and " lds" in l)]
    iu = lines.index("L_unit:")
    if O.skip_x: lines = [l for l in lines[:iu] if not ("s[8:11]" in l and " lds" in l)] + lines[iu:]
    if O.skip_w: lines = [l for l in lines[:iu] if not ("s[12:15]" in l and " lds" in l)] + lines[iu:]
    sys.stdout.write("\n".join(lines))
main()
```

```python
import sys, math, argparse, re, struct, copy

NAME = "concat_heads__gqa_block_cached__gqa_block_cached__near_ridge"

class Opt:
    stamps = False
    dumpq = False
    kv_nt = True
    fuse = True
    twocls = False
    D = 6
    bar = 20
    burst = 1
    dper = 3
    qsp = 4
    w_nt = True
    x_nt = True
    wo_nt = False
    kv0 = 15
    pubw = 11
    map2 = True
    pub2 = 1
    pub1 = 28
    poll2 = 8
    thr_log2 = 30
    skip_loop = False
    skip_x = False
    skip_w = False
    forcefb = False
    budget = 8
    wpre = True
    o_sc1 = True
    chk = True
    stm = 0
    cpre = True
    rot = 0
    wfake = False
    noinv = False
    skip_oo = False
    skip_ow = False
    st_sc1 = True
    wopre = 200
    wopre_nt = False
    wopn = 1
    ndef = 4
    xbar = 60
    own1 = True
    obar = 4
    osp = 2
    xdense = True
    vlate = 0
    vsum = False
    pad = 0
    vmn = 16
    kvs = "13,14,15,16,17,18,19"
    outfl = 0
    trace = False
    xld = 40
    xfill = 20
    lfake = False
    whalf = False
    ofake = False
    walign = False
    wofl = 0
    exitat = 0
    l2n = 0
    l2s = ""
    l2nt = 0
    l2sh = 6
    smpos = "3,7"
    smf = True

O = Opt()

class Asm:
    def __init__(self):
        self.L = []
        self.vm = []
        self.ds = []
        self.nvm = 0; self.mark = {}
    def __call__(self, s):
        if s.endswith(" lds") and self.L and " m0," in self.L[-1]: self.L.append("    s_nop 0")
        self.L.append(s if s.endswith(":") else "    " + s)
    def label(self, s): self.L.append(s + ":")
    def c(self, s): self.L.append("    ; " + s)
    def text(self): return "\n".join(self.L) + "\n"
    def vm_n(self, tags):
        idx = [i for i, t in enumerate(self.vm) if t in tags]
        if not idx: return None
        return min(63, len(self.vm) - 1 - max(idx))
    def ds_n(self, tags):
        idx = [i for i, t in enumerate(self.ds) if t in tags]
        if not idx: return None
        return min(15, len(self.ds) - 1 - max(idx))
    def wait(self, vm=None, ds=None, vmn=None, dsn=None):
        a = self.vm_n(vm) if vm else None
        b = self.ds_n(ds) if ds else None
        if vmn is not None: a = vmn if a is None else min(a, vmn)
        if dsn is not None: b = dsn if b is None else min(b, dsn)
        p = []
        if a is not None:
            p.append(f"vmcnt({a})"); self.vm = self.vm[len(self.vm) - a:] if a else []
        if b is not None:
            p.append(f"lgkmcnt({b})"); self.ds = self.ds[len(self.ds) - b:] if b else []
        if p: self("s_waitcnt " + " ".join(p))
    def op(self, o):
        if isinstance(o, str): self(o); return
        if o[1] == "vm": self.vm.append(o[2]); self.nvm += 1
        elif o[1] == "mark": self.mark[o[2]] = self.nvm
        elif o[1] == "call": o[2](self); return
        elif o[1] == "ds": self.ds.append(o[2])
        elif o[1] == "wait": self.wait(**o[2]); return
        self(o[0])

def vr(b, n=1): return f"v{b}" if n == 1 else f"v[{b}:{b+n-1}]"
def ar(b, n=1): return f"a{b}" if n == 1 else f"a[{b}:{b+n-1}]"
def sr(b, n=4): return f"s[{b}:{b+n-1}]"
def f32bits(x): return struct.unpack("<I", struct.pack("<f", x))[0]
MF = "v_mfma_f32_16x16x32_bf16"

def kd(k, vgpr=512, acc=256, sgpr=102):
    return f""".section .rodata,"a"
.p2align 6
.amdhsa_kernel {k}
  .amdhsa_next_free_vgpr {vgpr}
  .amdhsa_next_free_sgpr {sgpr}
  .amdhsa_accum_offset {acc}
  .amdhsa_group_segment_fixed_size 0
  .amdhsa_kernarg_size 104
  .amdhsa_user_sgpr_count 2
  .amdhsa_user_sgpr_kernarg_segment_ptr 1
  .amdhsa_system_sgpr_workgroup_id_x 1
.end_amdhsa_kernel
.text
"""
def kstart(k): return f".globl {k}\n.p2align 8\n.type {k},@function\n{k}:\n"

WOF_OFF = 48 << 20
STAMP_WS_OFF = 128 << 20
QDUMP_WS_OFF = 64 << 20
sTW = 65
sXI, sXO = 78, 79

sX, sW, sK, sV, sO = 8, 12, 16, 20, 24
sWAVE, sKVW, sVVW, sWQW, sKOFF, sVOFF, sXW, sLOOP, sUNIT, sT, sTHR, sT3 = range(28, 40)
sSC, sOOF, sFB, sT2, sGI, sWS = 40, 42, 43, 44, 45, 46
sSTAMP, sRSTAMP = 48, 64
sCNT, sDBG, sWOI, sWOF, sOUT = 80, 84, 88, 92, 96
sM = 100
vAK, vAV, vOKV, vOO, vTMP = 1, 5, 13, 14, 15
vIDX, vPOLL, aPOLL = 15, 30, 222
vNEGM, vS, vP, vO = 16, 32, 96, 128
aQ, aQ2, aKF, aVF, aL, aONE = 0, 64, 128, 160, 192, 208
KBASE, VBASE, WQBASE, FBBASE = 0, 65536, 98304, 131072
XB = (16384, 49152)
FLAG_OFF = 60 << 20
sFLG, sSTUB = 84, sFB

def S(buf, qb, kb): return vS + buf * 32 + (qb * 2 + kb) * 4
def P(buf, qb): return vP + buf * 16 + qb * 4
def NEGM(qb): return vNEGM + qb * 4
def Q(qb, s): return aQ + (qb * 4 + s) * 4
def OA(db, qb): return vO + (qb * 8 + db) * 4
def LA(qb): return aL + qb * 4
vL = 252
def OAT(db, qb): return ar(aL, 4) if O.vsum and (db, qb) == (7, 3) else vr(OA(db, qb), 4)

nstamp = [0]
stamp_names = []
def stamp(A, name, mode=0):
    if not O.stamps or (mode != O.stm and name != "t0"): return
    i = nstamp[0]; nstamp[0] += 1; stamp_names.append(name)
    assert i < 7
    A(f"s_memtime s[{sSTAMP+2*i}:{sSTAMP+2*i+1}]")
    r = 62 if i == 0 else sRSTAMP + 2 * i
    A(f"s_memrealtime s[{r}:{r+1}]")

def cost(o):
    t = o if isinstance(o, str) else o[0]
    if t.endswith(":"): return 0
    if not isinstance(o, str) and o[1] in ("wait", "call"): return 0
    if t.startswith(("v_exp", "v_rcp")): return 8
    if t.startswith("buffer_"): return 8
    if t.startswith("s_nop"): return 4 * (int(t.split()[1]) + 1)
    if t.startswith("v_cvt_pk") or t.startswith("v_max3") or t.startswith("v_perm"): return 5
    if t.startswith("v_pk_"): return 8
    return 4

def interleave(A, mf, fixed=None, stream=(), pre=None, budget=None, need=None):
    budget = O.budget if budget is None else budget
    fixed = fixed or {}; pre = pre or {}; need = need or {}
    st = list(stream); si = 0; debt = 0
    for g in range(len(mf)):
        for t in pre.get(g, []): A.op(t)
        if g in need: A.wait(ds=need[g])
        A(mf[g])
        fx = fixed.get(g, [])
        room = budget - sum(cost(o) for o in fx) - debt
        for o in fx: A.op(o)
        while si < len(st):
            o, at = st[si] if isinstance(st[si], list) else (st[si], 0)
            if at > g: break
            c = cost(o)
            if room <= 0 or (c > room + 1): break
            A.op(o); room -= c; si += 1
        debt = 0
    while si < len(st):
        o = st[si][0] if isinstance(st[si], list) else st[si]
        A.op(o); si += 1

NT_KV = lambda: " nt" if O.kv_nt else ""
SC1 = lambda: " sc1" if O.o_sc1 else ""
OFL = lambda: ["", " sc1", " sc0 sc1", " nt", " sc1 nt", " sc0 sc1 nt"][O.outfl]
def adv(off): return f"s_add_u32 s{off}, s{off}, 0x4000"
def vphys(ring): return (ring + 1) & 3
def dma_k(ring, tag):
    return (f"s_add_u32 m0, s{sKVW}, {ring*16384}",
            [(f"buffer_load_dwordx4 {vr(vOKV)}, {sr(sK)}, s{sKOFF} offen offset:{p*1024}{NT_KV()} lds", "vm", tag) for p in range(4)],
            adv(sKOFF))
def dma_v(ring, tag):
    return (f"s_add_u32 m0, s{sVVW}, {vphys(ring)*16384}",
            [(f"buffer_load_dwordx4 {vr(vOKV)}, {sr(sV)}, s{sVOFF} offen offset:{p*1024}{NT_KV()} lds", "vm", tag) for p in range(4)],
            adv(sVOFF))
def k_reads(ring, h, dst=aKF):
    return [(f"ds_read_b128 {ar(dst+(kb*4+s)*4,4)}, {vr(vAK+s)} offset:{ring*16384+(2*h+kb)*1024}", "ds", ("F", dst + (kb*4+s)*4))
            for kb in range(2) for s in range(4)]
def v_reads(ring, h):
    return [(f"ds_read_b64_tr_b16 {ar(aVF+db*4+2*jh,2)}, {vr(vAV+db)} offset:{vphys(ring)*16384+h*2048+jh*1024}", "ds", ("F", aVF + db*4))
            for db in range(8) for jh in range(2)]
def pv_mf(buf, zero=False, qbmajor=False):
    r = []
    def pv(db, qb): return (f"{MF} {OAT(db,qb)}, {ar(aVF+db*4,4)}, {vr(P(buf,qb),4)}, {'0' if zero else OAT(db,qb)}", aVF + db*4, qb)
    def sm(qb): return (f"{MF} {ar(LA(qb),4)}, {ar(aONE,4)}, {vr(P(buf,qb),4)}, {'0' if zero else ar(LA(qb),4)}", None, qb)
    def sm2(pr): return (f"v_smfmac_f32_16x16x64_bf16 {ar(LA(pr),4)}, {ar(aONE,4)}, {vr(P(buf,2*pr),8)}, {vr(vIDX)}", None, 2 * pr)
    if qbmajor:
        for qb in range(4):
            if O.smf:
                if not qb & 1: r.append(sm2(qb >> 1))
            elif not O.vsum: r.append(sm(qb))
            r += [pv(db, qb) for db in range(8)]
    else:
        for db in range(8):
            r += [pv(db, qb) for qb in range(4)]
            if O.smf:
                if db in O.smpos_: r.append(sm2(O.smpos_.index(db)))
            elif db & 1 and not O.vsum: r.append(sm(db >> 1))
    return r
def qk_mf(buf, zero=False, kf=aKF):
    r = []
    for qb in range(4):
        for kb in range(2):
            for s in range(4):
                c = vr(S(buf,qb,kb),4) if s else ("0" if zero else vr(NEGM(qb),4))
                r.append((f"{MF} {vr(S(buf,qb,kb),4)}, {ar(kf+(kb*4+s)*4,4)}, {ar(Q(qb,s),4)}, {c}", kf + (kb*4+s)*4, qb))
    return r
def ex(b, e): return f"v_exp_f32 {vr(vS+b*32+e)}, {vr(vS+b*32+e)}"
def cv(b, i): return f"v_cvt_pk_bf16_f32 {vr(vP+b*16+i)}, {vr(vS+b*32+2*i)}, {vr(vS+b*32+2*i+1)}"
def ad(b, e): return f"v_add_f32 {vr(vL+(e>>3))}, {vr(vL+(e>>3))}, {vr(vS+b*32+e)}"
def needs(mfs, group=2):
    nd = {}; seen = []
    for g, m in enumerate(mfs):
        if m[1] is not None and m[1] not in seen: seen.append(m[1]); nd[g] = m[1]
    items = sorted(nd.items())
    out = {}
    for i in range(0, len(items), group):
        out[items[i][0]] = [("F", t) for _, t in items[i:i + group]]
    return out
def lastuse(mfs):
    lu = {}
    for g, m in enumerate(mfs):
        if m[1] is not None: lu[m[1]] = g
    return lu

def barrier_ops(cls, g, pre, gaps, vmtags=None, first=False):
    w = ("", "wait", dict(vmn=O.vmn + (O.fuse and O.wopre == 250 and not first), dsn=0) if vmtags is None else dict(vm=vmtags, dsn=0))
    if cls == 0: pre[g] = [w, "s_barrier"]
    else:
        pre[g] = [w]; gaps[g].insert(0, "s_barrier")

def is_vm(o): return not isinstance(o, str) and o[1] == "vm"
def slot(A, p, cls, tag, zero=False, tail=(), groups=None, vmtags=None, after_bar=()):
    D = O.D; even = (p & 1) == 0; buf = p & 1; t_ = p >> 1
    A.c(f"---- slot {tag} pos={p} cls={cls}")
    kr = k_reads(((p + 1) >> 1) & 3, (p + 1) & 1)
    vq = v_reads(t_ & 3, p & 1)
    pvm = pv_mf(buf ^ 1, zero); mfs = pvm + qk_mf(buf ^ 1)
    n = len(mfs); npv = len(pvm)
    gaps = {g: [] for g in range(n)}; pre = {}
    seq = [(buf, e) for e in range(D, 32)] + [(buf ^ 1, e) for e in range(D)]
    eg = [2 * i for i in range(32 - D)] + [n - 64 + 2 * i for i in range(32 - D, 32)]
    for g, (b, e) in zip(eg, seq): gaps[g].append(ex(b, e))
    free = [g for g in range(n) if g not in eg]
    cvg = {g + 1: cv(b, e >> 1) for g, (b, e) in zip(eg, seq) if e & 1}
    for g, t in zip(free[:8], kr): gaps[g].append(t)
    lu = lastuse(pvm)
    pre[0] = [("", "wait", dict(dsn=0))]
    if O.trace and groups is None:
        pre[0] += ["s_mov_b64 exec, s[52:53]", "v_mov_b32 v0, s50", "s_mov_b64 exec, -1", "s_lshl_b64 s[52:53], s[52:53], 1"]
        gaps[n - 3].append("s_memrealtime s[50:51]")
    if groups is None:
        kg = dma_k(t_ & 3, "KV"); vg = dma_v((t_ + 3) & 3, "KV")
        if even: flat = [kg[0]] + kg[1] + [vg[0], kg[2]] + (vg[1] + [vg[2]] if O.burst == 1 else [])
        else: flat = vg[1] + [vg[2]] if O.burst == 2 else []
        if O.fuse and O.wopre == 250 and p in (1, 5):
            flat = flat + [(f"buffer_load_dwordx4 {ar(224,4)}, {vr(vOO)}, {sr(sW)}, s{sTW} offen", "vm", "WOP"), f"s_add_u32 s{sTW}, s{sTW}, 1024", f"s_min_u32 s{sTW}, s{sTW}, s{sTW-1}"]
    else:
        flat = [o for grp in groups for o in grp]
    dm = [o for o in flat if is_vm(o)]
    bar = O.bar if even else 15
    if even:
        barrier_ops(cls, bar, pre, gaps, vmtags)
        if after_bar: pre[bar + 1] = list(after_bar)
    rest = [g for g in free if g > bar]
    if O.vlate:
        gaps[n - 1] += vq[len(vq) - O.vlate:]; vq = vq[:len(vq) - O.vlate]
        rest = [g for g in rest if g != n - 1]
    lack = len(dm) + len(vq) - len(rest)
    xg = set()
    if lack > 0:
        cand = [g for g in eg if g > bar + 4]
        xg = {cand[(q * len(cand)) // lack + len(cand) // (2 * lack)] for q in range(lack)}
        rest = sorted(rest + list(xg))
    dg = []; k = 0
    while dm or vq:
        g = rest.pop(0)
        vok = vq and lu[vq[0][2][1]] <= g
        if g in xg and vok: gaps[g].append(vq.pop(0)); continue
        if dm and k % O.dper == 0 and g in cvg and vok: gaps[g].append(vq.pop(0)); continue
        if dm and (k % O.dper == 0 or not vok) and g not in cvg: gaps[g].append(dm.pop(0)); dg.append(g)
        elif vok: gaps[g].append(vq.pop(0))
        elif dm: gaps[g].append(dm.pop(0)); dg.append(g)
        k += 1
    small = []
    nv = 0
    for o in flat:
        if is_vm(o): nv += 1; continue
        lo = dg[nv - 1] if nv else 16
        hi = n - 1 if ("0x4000" in o or nv == len(dg)) else dg[nv] - 1
        small.append((o, lo, hi))
    if not even: small.append((("", "wait", dict(ds=[o[2] for o in kr])), 24, npv - 1))
    for g, o in cvg.items(): gaps[g].append(o)
    if O.vsum:
        for g, (b, e) in zip(eg, seq): gaps[g + 1].append(ad(b, e))
    def used(g): return sum(4 if (not isinstance(o, str) and o[1] == "wait") else cost(o) for o in gaps[g]) + 4 * len(pre.get(g + 1, []))
    prev = (None, 0)
    for o, lo, hi in small:
        key = (lo, hi)
        if prev[0] == key: lo = prev[1]
        c = [g for g in range(lo, hi + 1) if used(g) <= 5]
        if not c: c = sorted(range(lo, hi + 1), key=used)
        gaps[c[0]].append(o); prev = (key, c[0])
    for q in range(O.pad): gaps[1 + (q * 62) // O.pad // 2 * 2 + 1].append("s_nop 1")
    gaps[n - 1] += list(tail)
    interleave(A, [m[0] for m in mfs], gaps, pre=pre)

def max_chain(qb, buf, t0, t1, run=None):
    s = S(buf, qb, 0)
    st = [f"v_max3_f32 {vr(t0)}, {vr(s)}, {vr(s+1)}, {vr(s+2)}", f"v_max3_f32 {vr(t1)}, {vr(s+3)}, {vr(s+4)}, {vr(s+5)}",
          f"v_max3_f32 {vr(t0)}, {vr(t0)}, {vr(s+6)}, {vr(s+7)}"]
    if run is not None: return st + [f"v_max3_f32 {vr(run)}, {vr(run)}, {vr(t0)}, {vr(t1)}"]
    return st + [f"v_max_f32 {vr(t0)}, {vr(t0)}, {vr(t1)}"]
def xlane_max(t0, t1):
    return [f"v_mov_b32 {vr(t1)}, {vr(t0)}", "s_nop 1", f"v_permlane32_swap_b32 {vr(t0)}, {vr(t1)}", "s_nop 0", f"v_max_f32 {vr(t0)}, {vr(t0)}, {vr(t1)}",
            f"v_mov_b32 {vr(t1)}, {vr(t0)}", "s_nop 1", f"v_permlane16_swap_b32 {vr(t0)}, {vr(t1)}", "s_nop 0", f"v_max_f32 {vr(t0)}, {vr(t0)}, {vr(t1)}"]

def first_slot(A, cls):
    D = O.D
    A.c(f"---- first slot cls={cls}")
    for o in k_reads(0, 0, dst=aVF) + k_reads(0, 1): A.op(o)
    mfs = qk_mf(0, zero=True, kf=aVF) + qk_mf(1)
    gaps = {g: [] for g in range(64)}; pre = {}
    bar = 8
    barrier_ops(cls, bar, pre, gaps, first=True)
    kg = dma_k(0, "KV"); vg = dma_v(3, "KV")
    gaps[bar - 2].append(kg[0])
    dm = kg[1] + (vg[1] if O.burst == 1 else [])
    for i, o in enumerate(dm):
        gaps[bar + 1 + i].append(o)
        if i == 3: gaps[bar + 1 + i].append(vg[0])
    gaps[7].append(kg[2]) if False else None
    st = []
    tA = [vO + 2 * q for q in range(4)]
    for qb in range(4):
        t0, t1 = tA[qb], tA[qb] + 1
        ch = max_chain(qb, 0, t0, t1) + xlane_max(t0, t1)
        ch += [f"v_sub_f32 {vr(NEGM(qb)+r)}, 0, {vr(t0)}" for r in range(4)]
        ch += [f"v_sub_f32 {vr(S(0,qb,0)+r)}, {vr(S(0,qb,0)+r)}, {vr(t0)}" for r in range(8)]
        st.append([ch[0], 8 * qb + 7 + 8]); st += ch[1:]
    sm = []
    for e in range(32):
        sm.append(ex(0, e))
        if e >= 2 and not (e & 1): sm.append(cv(0, (e >> 1) - 1))
        if O.vsum and e >= 2:
            if (e - 2) & 7 == 0: sm.append(f"v_add_f32 {vr(vL+((e-2)>>3))}, {vr(vS+e-2)}, {vr(vS+e-1)}")
            elif (e - 2) & 7 != 1: sm.append(ad(0, e - 2))
    sm += ["s_nop 0", cv(0, 15)]
    if O.vsum: sm += [ad(0, 30), ad(0, 31)]
    vq = v_reads(0, 0)
    for i, o in enumerate(vq): gaps[33 + i * 2 - (i // 8) * 0 if 33 + 2 * i < 64 else 63].append(o)
    post = [kg[2]] + ([vg[2]] if O.burst == 1 else [])
    if O.smf: post += [f"v_accvgpr_write_b32 {ar(aL+q)}, 0" for q in range(8)]
    nd = needs(mfs)
    nch = len(st) // 4
    m = [x[0] for x in mfs]
    def sub(d, lo, hi): return {g - lo: v for g, v in d.items() if lo <= g < hi}
    def shift(s, lo): return [[x[0], x[1] - lo] if isinstance(x, list) else x for x in s]
    segs = [(0, 32, st[:nch]), (32, 40, st[nch:2*nch]), (40, 48, st[2*nch:3*nch]), (48, 56, st[3*nch:]), (56, 64, [])]
    carry = []
    allst = st + post + sm
    pos = 0
    marks = {32: nch, 40: 2 * nch, 48: 3 * nch, 56: 4 * nch}
    for g in range(64):
        if g in marks:
            while pos < marks[g]:
                o = allst[pos][0] if isinstance(allst[pos], list) else allst[pos]
                A.op(o); pos += 1
            A("s_nop 1")
        for t in pre.get(g, []): A.op(t)
        if g in nd: A.wait(ds=nd[g])
        A(m[g])
        room = O.budget - sum(cost(o) for o in gaps[g])
        for o in gaps[g]: A.op(o)
        while pos < len(allst):
            o, at = allst[pos] if isinstance(allst[pos], list) else (allst[pos], 0)
            if at > g or room <= 0 or cost(o) > room + 1: break
            A.op(o); room -= cost(o); pos += 1
    while pos < len(allst):
        A.op(allst[pos]); pos += 1
    for e in range(D):
        A(ex(1, e))
        if e >= 2 and not (e & 1): A(cv(1, (e >> 1) - 1))
    A("s_nop 0"); A(cv(1, D // 2 - 1))
    if O.vsum:
        for e in range(D): A(ad(1, e))
    A("s_nop 1")

def o_store(reg, qb, t, tag, so):
    return (f"buffer_store_dwordx4 {reg}, {vr(vOO)}, {sr(sO)}, s{so} offen offset:{t*1024}{' sc1' if O.st_sc1 else ''}", "vm", tag)
def row_sums():
    st = []
    for sw in ("v_permlane32_swap_b32", "v_permlane16_swap_b32"):
        st += [f"v_mov_b32 {vr(vP+2*q+1)}, {vr(vL+q)}" for q in range(4)]
        st += [f"{sw} {vr(vL+q)}, {vr(vP+2*q+1)}" for q in range(4)]
        st += [f"v_add_f32 {vr(vL+q)}, {vr(vL+q)}, {vr(vP+2*q+1)}" for q in range(4)]
    st += [f"v_rcp_f32 {vr(vP+2*q)}, {vr(vL+q)}" for q in range(4)]
    if O.chk:
        st += [f"v_max3_f32 {vr(vP+1)}, {vr(vL)}, {vr(vL+1)}, {vr(vL+2)}"]
        for q in (vP + 1, vL + 3): st += [f"v_cmp_nle_f32 vcc, {vr(q)}, s{sTHR}", f"s_or_b64 s[{sM}:{sM+1}], s[{sM}:{sM+1}], vcc"]
    return st
def epi_qb(qb, store):
    so = [f"s_add_u32 s{sT}, s{sOOF}, {qb*131072}"]
    if O.vsum:
        inv = vP + 2 * qb
        st = so + ([f"v_accvgpr_read_b32 {vr(vL+q)}, {ar(aL+q)}" for q in range(4)] if qb == 3 else [])
    else:
        inv = vP + 2 * (qb & 1)
        st = [f"v_accvgpr_read_b32 {vr(inv+1)}, {ar(LA(qb))}", f"v_rcp_f32 {vr(inv)}, {vr(inv+1)}"]
        if O.smf: st = [f"v_accvgpr_read_b32 {vr(inv+q)}, {ar(aL+2*qb+q)}" for q in range(2)] + [f"v_add_f32 {vr(inv+1)}, {vr(inv)}, {vr(inv+1)}", st[1]]
        if O.chk: st += [f"v_cmp_nle_f32 vcc, {vr(inv+1)}, s{sTHR}"]
        st += so
        if O.chk: st += [f"s_or_b64 s[{sM}:{sM+1}], s[{sM}:{sM+1}], vcc"]
    for t in range(4):
        o = OA(2 * t, qb)
        st += [f"v_pk_mul_f32 {vr(o+2*i,2)}, {vr(o+2*i,2)}, {vr(inv,2)} op_sel_hi:[1,0]" for i in range(4)]
        d = vS + (qb * 4 + t) * 4
        st += [f"v_cvt_pk_bf16_f32 {vr(d+i)}, {vr(o+2*i)}, {vr(o+2*i+1)}" for i in range(4)]
        if store: st.append(o_store(vr(d, 4), qb, t, "ST", sT))
    return st

def last_slot(A, store, extra1=(), mid=None, extra2=()):
    D = O.D
    A.c("---- last slot + final PV + epilogue")
    pvm = pv_mf(0); n = len(pvm); nq = n // 4
    gaps = {g: [] for g in range(n)}
    lu = lastuse(pvm)
    for i, o in enumerate(v_reads(3, 1)):
        g = min(n - 1, lu[o[2][1]] + 1 + (i & 1)); gaps[g].append(o)
    sm = []
    for e in range(D, 32):
        sm.append(ex(1, e))
        if e > D and not (e & 1): sm.append(cv(1, (e >> 1) - 1))
        if O.vsum and e > D: sm.append(ad(1, e - 1))
    sm += ["s_nop 0", cv(1, 15)] + ([ad(1, 31)] if O.vsum else []) + ["s_nop 1"]
    ex_ = list(extra1)
    for g in range(0, n):
        if ex_ and not gaps[g]: gaps[g] += ex_.pop(0)
    assert not ex_
    A(f"s_mov_b64 s[{sM}:{sM+1}], 0")
    interleave(A, [m[0] for m in pvm], gaps, stream=sm, need=needs(pvm))
    if mid: mid()
    fin = pv_mf(1, qbmajor=True)
    st = row_sums() if O.vsum else []
    for qb in range(4):
        e = epi_qb(qb, store)
        k = 1 if O.vsum and qb < 3 else 0
        if qb == 3: st.append("s_nop 7")
        st += e[:k]; st.append([e[k], max(g for g, m in enumerate(fin) if m[2] == qb) + 8]); st += e[k+1:]
    gaps = {g: [] for g in range(n)}
    ex_ = list(extra2)
    for g in range(0, n):
        if ex_ and (g < 16 or g % 2 == 0): gaps[g] += ex_.pop(0)
    assert not ex_
    interleave(A, [m[0] for m in fin], gaps, stream=st, need=needs(fin, group=8))

def fallback(A):
    A.label("L_fb")
    lane, g, i, r, ka, kb_, va, vd, t0, t1 = range(64, 74)
    run = 76
    A("s_waitcnt vmcnt(0) lgkmcnt(0)"); A("s_nop 7")
    A(f"v_mbcnt_lo_u32_b32 {vr(lane)}, -1, 0"); A(f"v_mbcnt_hi_u32_b32 {vr(lane)}, -1, {vr(lane)}")
    A(f"v_lshrrev_b32 {vr(g)}, 4, {vr(lane)}"); A(f"v_and_b32 {vr(i)}, 15, {vr(lane)}")
    A(f"v_and_b32 {vr(t0)}, 1, {vr(g)}"); A(f"v_lshlrev_b32 {vr(t0)}, 1, {vr(t0)}"); A(f"v_lshrrev_b32 {vr(t1)}, 1, {vr(g)}")
    A(f"v_or_b32 {vr(t0)}, {vr(t0)}, {vr(t1)}"); A(f"v_lshlrev_b32 {vr(t0)}, 4, {vr(t0)}")
    A(f"v_lshl_add_u32 {vr(ka)}, {vr(i)}, 8, {vr(t0)}"); A(f"v_add_u32 {vr(kb_)}, 4096, {vr(ka)}")
    A(f"v_lshlrev_b32 {vr(vd)}, 4, {vr(lane)}")
    A(f"s_lshl_b32 s{sT3}, s{sWAVE}, 13"); A(f"s_add_u32 s{sT3}, s{sT3}, {FBBASE}")
    if O.fuse: A(f"s_cmp_eq_u32 s{sUNIT}, 0"); A(f"s_cselect_b32 s{sT3}, s{sT3}, s{sWM+3}")
    A(f"v_lshrrev_b32 {vr(r)}, 2, {vr(i)}"); A(f"v_lshl_add_u32 {vr(t0)}, {vr(g)}, 2, {vr(r)}"); A(f"v_lshlrev_b32 {vr(t0)}, 8, {vr(t0)}")
    A(f"v_and_b32 {vr(t1)}, 3, {vr(i)}"); A(f"v_lshl_add_u32 {vr(t0)}, {vr(t1)}, 3, {vr(t0)}"); A(f"v_add_u32 {vr(va)}, s{sT3}, {vr(t0)}")
    def kload():
        for kb in range(2):
            for s in range(4):
                A(f"buffer_load_dwordx4 {ar(aKF+(kb*4+s)*4,4)}, {vr(kb_ if kb else ka)}, {sr(sK)}, s{sT} offen offset:{s*64}")
    for q in range(4): A(f"v_mov_b32 {vr(run+q)}, 0xff800000")
    A(f"s_lshl_b32 s{sT}, s{sUNIT}, 18"); A(f"s_add_u32 s{sT2}, s{sT}, 0x40000")
    A.label("L_fb1")
    kload(); A("s_waitcnt vmcnt(0)")
    for m in qk_mf(0, zero=True): A(m[0])
    A("s_nop 7")
    for q in range(4):
        for o in max_chain(q, 0, t0, t1, run=run + q): A(o)
    A(f"s_add_u32 s{sT}, s{sT}, 0x2000"); A(f"s_cmp_lt_u32 s{sT}, s{sT2}"); A("s_cbranch_scc1 L_fb1")
    for q in range(4):
        for o in xlane_max(run + q, t1): A(o)
        for rr in range(4): A(f"v_sub_f32 {vr(NEGM(q)+rr)}, 0, {vr(run+q)}")
    for k in range(128): A(f"v_mov_b32 {vr(vO+k)}, 0")
    for k in range(16): A(f"v_accvgpr_write_b32 {ar(aL+k)}, 0")
    A(f"s_lshl_b32 s{sT}, s{sUNIT}, 18")
    A.label("L_fb2")
    kload()
    for hf in range(2):
        A(f"s_add_u32 m0, s{sT3}, {hf*4096}"); A(f"s_add_u32 s3, s{sT}, {hf*4096}")
        for p in range(4): A(f"buffer_load_dwordx4 {vr(vd)}, {sr(sV)}, s3 offen offset:{p*1024} lds")
    A("s_waitcnt vmcnt(0)")
    for db in range(8):
        for jh in range(2): A(f"ds_read_b64_tr_b16 {ar(aVF+db*4+2*jh,2)}, {vr(va)} offset:{db*32+jh*4096}")
    for m in qk_mf(0): A(m[0])
    A("s_nop 7")
    for e in range(32): A(ex(0, e))
    A("s_nop 0")
    for k in range(16): A(cv(0, k))
    if O.vsum:
        for e in range(32): A(ad(0, e))
    A("s_waitcnt lgkmcnt(0)"); A("s_nop 1")
    for m in pv_mf(0): A(m[0])
    A(f"s_add_u32 s{sT}, s{sT}, 0x2000"); A(f"s_cmp_lt_u32 s{sT}, s{sT2}"); A("s_cbranch_scc1 L_fb2")
    A("s_nop 7")
    if O.vsum:
        for o in row_sums(): A(o)
    for qb in range(4):
        for o in epi_qb(qb, False): A(o)
    if O.fuse: A(f"s_cmp_eq_u32 s{sUNIT}, 0"); A("s_cbranch_scc1 L_fbret0")
    for qb in range(4):
        A(f"s_add_u32 s{sT}, s{sOOF}, {qb*131072}")
        for t in range(4): A(o_store(vr(vS + (qb * 4 + t) * 4, 4), qb, t, "ST", sT)[0])
    if not O.fuse: A(f"s_cmp_eq_u32 s{sUNIT}, 0"); A("s_cbranch_scc1 L_fbret0")
    if O.fuse: oproj_setup(A)
    A("s_branch L_fbret1")

def srd(A, d, lo, hi, off, size):
    A(f"s_add_u32 s{d}, s{lo}, {off}"); A(f"s_addc_u32 s{d+1}, s{hi}, 0"); A(f"s_and_b32 s{d+1}, s{d+1}, 0xffff")
    A(f"s_mov_b32 s{d+2}, {size}"); A(f"s_mov_b32 s{d+3}, 0x20000")

def one_lane(A, val, text, tag):
    A(f"v_mov_b32 v0, {val}"); A("s_mov_b64 exec, 1")
    A.op((text, "vm", tag))
    A("s_mov_b64 exec, -1")
def flag_ops(val, name):
    return [f"s_cmp_lg_u32 s{sWAVE}, 0", f"s_cbranch_scc1 L_np_{name}", f"v_mov_b32 v0, {val}", "s_mov_b64 exec, 1",
            f"buffer_store_byte v0, off, {sr(sCNT)}, s{sGI} sc1", "s_mov_b64 exec, -1", f"L_np_{name}:"]
def poll_text(): return f"buffer_load_dword v0, {vr(vPOLL)}, {sr(sCNT)}, 0 offen sc1"
def poll_ops(name): return [f"s_cmp_lg_u32 s{sWAVE}, 0", f"s_cbranch_scc1 L_np_{name}", (poll_text(), "mark", name), f"L_np_{name}:"]
spins = []
def poll_test(A, mask, own):
    A(f"v_or_b32 v0, v0, {vr(own)}"); A(f"v_and_b32 v0, {hex(mask)}, v0"); A(f"v_cmp_ne_u32 vcc, {hex(mask)}, v0")
def poll_check(A, mask, name, own, mark):
    A(f"s_cmp_lg_u32 s{sWAVE}, 0"); A(f"s_cbranch_scc1 L_spun_{name}")
    A(f"s_waitcnt vmcnt({min(63, A.nvm - A.mark[mark])})")
    poll_test(A, mask, own); A(f"s_cbranch_vccnz L_spin_{name}")
    A.label(f"L_spun_{name}")
    spins.append((mask, name, own))
def emit_spins(A):
    for mask, name, own in spins:
        A.label(f"L_spin_{name}")
        A("s_mov_b32 s3, 0x40000")
        A.label(f"L_spinl_{name}")
        A(poll_text()); A("s_waitcnt vmcnt(0)")
        poll_test(A, mask, own); A(f"s_cbranch_vccz L_spun_{name}")
        A("s_sub_u32 s3, s3, 1"); A("s_cmp_lg_u32 s3, 0"); A(f"s_cbranch_scc1 L_spinl_{name}")
        A(f"s_branch L_spun_{name}")

PIECE = [[13, 14, 15, 0], [1, 2, 8, 9], [3, 10, 4, 5], [6, 7, 11, 12]]
X_OFF = 40 << 20
aWD = 212
vOQ, vWD, vOWN, vOWX = 16, 18, 28, 29
sWB, sR13, sWM, sWT = sWQW, sXW, 92, 84
def slab_c(j): return ((j & 7) << 13) | ((j >> 3) << 12)
def slab_o(j): return slab_c(j & 1) if O.ofake else slab_c(j)
def w_dma(j, hf, early=False):
    jw = j & 1 if O.wfake else j
    r = [[f"s_add_u32 s{sT2}, s{sWT+(jw&7)}, {(jw>>3)*163840}", f"s_add_u32 m0, s{sWM+(j&3)}, {hf*4096}"]]
    for p in range(5):
        v = vWD + hf * 5 + p
        if early:
            v = vOKV
            r[-1].append(f"v_accvgpr_read_b32 {vr(v)}, {ar(aWD+hf*5+p)}")
        if p == 4: r[-1].append(f"s_add_u32 m0, s{sWM+(j&3)}, 8192")
        r.append([(f"buffer_load_dwordx4 {vr(v)}, {sr(sW)}, s{sT2} offen offset:{(p if p < 4 else hf)*1024}{['', ' sc1', ' nt', ' sc0 sc1', ' sc0'][O.wofl]} lds", "vm", ("W", j))])
    return r
OPH = [2, 3, 7, 0, 1, 4, 5, 6]
def OF(j, kk, qq): return OPH[j & 7] * 32 + (kk * 2 + qq) * 4
def o_ld(j):
    r = [[f"s_xor_b32 s4, s{sR13}, {slab_o(j)}"]]
    for kk in range(4):
        for qq in range(2):
            r.append([(f"buffer_load_dwordx4 {ar(OF(j,kk,qq),4)}, {vr(vOQ+qq)}, {sr(sX)}, s4 offen offset:{kk*1024}{SC1()}", "vm", ("O", j))])
    r[1] = r[0] + r[1]
    return r[1:]
def mbox(op, reg, so, tag):
    r = [[(f"buffer_{op}_dwordx4 {reg(t)}, {vr(vOO)}, {sr(sO)}, s{so if t < 4 else sT} offen offset:{(t&3)*1024} sc1", "vm", tag)] for t in range(5)]
    r[3].append(f"s_add_u32 s{sT}, s{so}, 4096")
    return r
def oproj_early(A, tb):
    lane, t0, t1, t2 = range(tb, tb + 4)
    A(f"s_bfe_u32 s3, s7, 0x10002"); A(f"s_lshr_b32 s4, s7, 3")
    A(f"s_lshr_b32 s{sT}, s{sGI}, 4"); A(f"s_lshl_b32 s{sT}, s{sT}, 22")
    A(f"s_lshl_b32 s{sT2}, s3, 20"); A(f"s_add_u32 s{sT}, s{sT}, s{sT2}"); A(f"s_lshl_b32 s{sT2}, s4, 16"); A(f"s_add_u32 s{sT}, s{sT}, s{sT2}")
    srd(A, sX, sWS, sWS + 1, f"s{sT}", "0xf0000")
    A(f"s_mov_b64 s[{sW}:{sW+1}], s[{sWOI}:{sWOI+1}]"); A(f"s_mov_b32 s{sW+2}, 5242880")
    A(f"s_lshl_b32 s{sT}, s4, 6"); A(f"s_add_u32 s{sT}, s{sT}, s{sWAVE}"); A(f"s_mul_i32 s{sWB}, s{sT}, 40960")
    A(f"s_and_b32 s{sT}, s7, 3"); A(f"s_mul_i32 s{sT}, s{sT}, {256 if O.walign else 320}"); A(f"s_add_u32 s{sWB}, s{sWB}, s{sT}")
    if O.own1: A(f"s_and_b32 s{sR13}, s7, 7"); A(f"s_lshl_b32 s{sR13}, s{sR13}, 13")
    else: A(f"s_mov_b32 s{sR13}, 0")
    for j in range(8):
        A(f"s_xor_b32 s{sT}, s{sR13}, {slab_c(j)}"); A(f"s_mul_i32 s{sT}, s{sT}, 40"); A(f"s_add_u32 s{sWT+j}, s{sT}, s{sWB}")
    A(f"s_lshl_b32 s{sT}, s{sWAVE}, 2")
    for sl in range(4):
        A(f"s_lshr_b32 s{sT2}, {hex(sum(PIECE[sl][w] << (4 * w) for w in range(4)))}, s{sT}"); A(f"s_and_b32 s{sT2}, s{sT2}, 15")
        A(f"s_mul_i32 s{sWM+sl}, s{sT2}, 10240")
    A(f"v_bfe_u32 {vr(lane)}, {vr(vOO)}, 4, 6")
    A(f"s_and_b32 s3, s7, 1"); A(f"s_xor_b32 s4, s4, 1")
    A(f"v_lshrrev_b32 {vr(t0)}, 3, {vr(lane)}"); A(f"v_mul_u32_u24 {vr(t0)}, 1280, {vr(t0)}")
    A(f"v_lshrrev_b32 {vr(t1)}, 3, {vr(lane)}"); A(f"v_and_b32 {vr(t1)}, 6, {vr(t1)}"); A(f"v_and_b32 {vr(t2)}, 7, {vr(lane)}"); A(f"v_xor_b32 {vr(t1)}, {vr(t1)}, {vr(t2)}")
    A(f"v_lshl_add_u32 {vr(t0)}, {vr(t1)}, 4, {vr(t0)}")
    for h in range(2):
        A(f"s_xor_b32 s{sT}, s4, {h}"); A(f"s_lshl_b32 s{sT}, s{sT}, 1"); A(f"s_add_u32 s{sT}, s{sT}, s3"); A(f"s_lshl_b32 s{sT}, s{sT}, 6")
        for rb in range(4):
            A(f"v_add_u32 {vr(t1)}, s{sT}, {vr(t0)}"); A(f"v_accvgpr_write_b32 {ar(aWD+h*5+rb)}, {vr(t1)}")
            if rb < 3: A(f"s_add_u32 s{sT}, s{sT}, 9216")
    A(f"v_lshrrev_b32 {vr(t0)}, 2, {vr(lane)}"); A(f"v_mul_u32_u24 {vr(t0)}, 1280, {vr(t0)}")
    A(f"v_bfe_u32 {vr(t1)}, {vr(lane)}, 4, 1"); A(f"v_xor_b32 {vr(t1)}, s4, {vr(t1)}"); A(f"v_lshlrev_b32 {vr(t1)}, 1, {vr(t1)}")
    A(f"v_and_b32 {vr(t2)}, 3, {vr(lane)}"); A(f"v_xor_b32 {vr(t1)}, {vr(t1)}, {vr(t2)}"); A(f"v_lshl_add_u32 {vr(t0)}, {vr(t1)}, 4, {vr(t0)}")
    A(f"s_xor_b32 s3, s3, 1"); A(f"s_lshl_b32 s3, s3, 8"); A(f"v_add_u32 {vr(t0)}, s3, {vr(t0)}"); A(f"v_add_u32 {vr(t1)}, {20480-1024}, {vr(t0)}")
    A(f"v_accvgpr_write_b32 {ar(aWD+4)}, {vr(t0)}"); A(f"v_accvgpr_write_b32 {ar(aWD+9)}, {vr(t1)}")
    if O.wopre in (200, 250):
        A(f"s_and_b32 s{sT}, s{sGI}, 127"); A(f"s_mul_i32 s{sT}, s{sT}, 10240"); A(f"s_mul_i32 s{sTW}, s{sWAVE}, {1310720 - 524288}"); A(f"s_add_u32 s{sTW}, s{sTW}, s{sT}")
        A(f"s_add_u32 s{sTW-1}, s{sTW}, 9216")
    A(f"s_and_b32 s{sT}, s{sGI}, 0xf0"); A(f"v_and_b32 {vr(t0)}, 3, {vr(lane)}"); A(f"v_lshlrev_b32 {vr(t0)}, 2, {vr(t0)}"); A(f"v_add_u32 {vr(t0)}, s{sT}, {vr(t0)}")
    A(f"v_accvgpr_write_b32 {ar(aPOLL)}, {vr(t0)}")
    if O.smf:
        A(f"v_lshrrev_b32 {vr(t0)}, 4, {vr(lane)}"); A(f"v_xor_b32 {vr(t0)}, {vr(t0)}, {vr(lane)}"); A(f"v_bfe_i32 {vr(t0)}, {vr(t0)}, 1, 1")
        A(f"v_bfi_b32 {vr(t0)}, {vr(t0)}, 0, s{sT3}")
        for q in range(4): A(f"v_accvgpr_write_b32 {ar(aONE+q)}, {vr(t0)}")
        A(f"v_bfe_i32 {vr(t0)}, {vr(lane)}, 0, 1"); A(f"v_and_b32 {vr(t0)}, 0xaaaaaaaa, {vr(t0)}"); A(f"v_or_b32 {vr(vIDX)}, 0x44444444, {vr(t0)}")
def oproj_setup(A):
    vTMP = vPOLL
    A(f"v_accvgpr_read_b32 {vr(vPOLL)}, {ar(aPOLL)}")
    A(f"s_lshl_b32 s{sT}, s{sWAVE}, 18"); A(f"v_and_b32 {vr(vOQ)}, 0x3ff, {vr(vOO)}")
    A(f"v_add_u32 {vr(vOQ)}, s{sT}, {vr(vOQ)}"); A(f"v_add_u32 {vr(vOQ+1)}, 0x20000, {vr(vOQ)}")
    for p in range(10): A(f"v_accvgpr_read_b32 {vr(vWD+p)}, {ar(aWD+p)}")
    A(f"s_and_b32 s{sT}, s{sGI}, 0xfc"); A(f"s_and_b32 s3, s{sGI}, 3"); A(f"s_lshl_b32 s3, s3, 3"); A(f"s_lshl_b32 s3, 0xff, s3")
    A(f"v_cmp_eq_u32 vcc, s{sT}, {vr(vTMP)}"); A(f"v_mov_b32 {vr(vOWN)}, s3"); A(f"s_xor_b32 s{sT}, s{sT}, 8"); A(f"v_cndmask_b32 {vr(vOWN)}, 0, {vr(vOWN)}, vcc")
    A(f"v_cmp_eq_u32 vcc, s{sT}, {vr(vTMP)}"); A(f"s_not_b32 s3, s3"); A(f"v_mov_b32 {vr(vOWX)}, s3"); A(f"v_cndmask_b32 {vr(vOWX)}, -1, {vr(vOWX)}, vcc")
    A(f"v_xor_b32 {vr(31)}, s{sGI}, {vr(vTMP)}"); A(f"v_bfe_i32 {vr(31)}, {vr(31)}, 3, 1")
    A(f"v_and_or_b32 {vr(vOWX)}, {vr(vOWX)}, {vr(31)}, {vr(vOWN)}"); A(f"v_or_b32 {vr(vOWN)}, {vr(vOWN)}, {vr(31)}")

def oproj(A):
    vWR = 200
    vACC, vWF = 40, 120
    def ACC(h, qq, nb): return vACC + h * 40 + (qq * 5 + nb) * 4
    def WF(par, f): return vWF + par * 40 + f * 4
    A.c("---- O projection")
    lane, t0, t1 = 38, 39, 37
    A(f"v_bfe_u32 {vr(lane)}, {vr(vOO)}, 4, 6"); A(f"v_lshrrev_b32 {vr(t0)}, 5, {vr(lane)}"); A(f"v_lshlrev_b32 {vr(t0)}, 10, {vr(t0)}")
    A(f"v_bfe_u32 {vr(t1)}, {vr(lane)}, 2, 3"); A(f"v_lshl_add_u32 {vr(t0)}, {vr(t1)}, 7, {vr(t0)}")
    A(f"v_and_b32 {vr(t1)}, 3, {vr(lane)}"); A(f"v_lshl_add_u32 {vr(t0)}, {vr(t1)}, 3, {vr(t0)}")
    A(f"v_bfe_u32 {vr(t1)}, {vr(lane)}, 3, 2"); A(f"v_lshl_add_u32 {vr(vWR)}, {vr(t1)}, 5, {vr(t0)}")
    for nb in range(1, 4): A(f"v_xor_b32 {vr(vWR+3*nb)}, {nb*32}, {vr(vWR)}")
    A(f"v_lshrrev_b32 {vr(t0)}, 2, {vr(lane)}"); A(f"v_lshlrev_b32 {vr(t0)}, 6, {vr(t0)}"); A(f"v_and_b32 {vr(t1)}, 3, {vr(lane)}"); A(f"v_lshl_add_u32 {vr(t0)}, {vr(t1)}, 3, {vr(t0)}")
    A(f"v_bfe_u32 {vr(t1)}, {vr(lane)}, 4, 1"); A(f"v_lshl_add_u32 {vr(vWR+12)}, {vr(t1)}, 5, {vr(t0)}"); A(f"v_xor_b32 {vr(vWR+15)}, 32, {vr(vWR+12)}")
    for q in range(6):
        for w in (2, 1): A(f"v_add_u32 {vr(vWR+3*q+w)}, {51200*w}, {vr(vWR+3*q)}")
    nd_ = O.ndef; nf = 16 - nd_
    steps = [(j, kk, (0, 1)) for j in range(nf) for kk in range(4)] + [(j, kk, (h,)) for h in range(2) for j in range(nf, 16) for kk in range(4)]
    def w_rd(i):
        j, kk, hs = steps[i]
        pc = PIECE[j & 3][kk]; w = min(pc // 5, 2)
        return [(f"ds_read_b64_tr_b16 {vr(WF(i&1,f*5+nb)+2*jh,2)}, {vr(vWR+3*(nb if nb < 4 else 4+h)+w)} offset:{pc*10240-w*51200+(h*4096+jh*2048 if nb < 4 else 8192+jh*1024)}", "ds", ("WF", i & 1, f * 5 + nb))
                for f, h in enumerate(hs) for nb in range(5) for jh in range(2) if not (O.lfake and f == 1)]
    for ops in o_ld(3):
        for o in ops: A.op(o)
    A.wait(vm=[("W", 0), ("O", 0)]); A("s_barrier")
    for o in w_rd(0): A.op(o)
    mf = []; need = {}; gaps = {}; pre = {}; start = []; bars = {}
    for i, (j, kk, hs) in enumerate(steps):
        start.append(len(mf))
        for f, h in enumerate(hs):
            for nb in range(5):
                if nb in (0, 2): need[len(mf)] = [("WF", i & 1, f * 5 + q) for q in ((0, 1) if nb == 0 else (2, 3, 4))]
                for qq in range(2):
                    c = "0" if (j == 0 and kk == 0) else vr(ACC(h, qq, nb), 4)
                    mf.append(f"{MF} {vr(ACC(h,qq,nb),4)}, {vr(WF(i&1,f*5+nb),4)}, {ar(OF(j,kk,qq),4)}, {c}")
    n = len(mf); start.append(n)
    gaps = {g: [] for g in range(n)}
    iB = len(steps) - 4 * nd_; gB = start[iB]
    for i, (j, kk, hs) in enumerate(steps):
        g0 = start[i]; ln = start[i + 1] - g0; lo = 0
        if kk == 3 and i < iB and j + 1 < 16:
            lo = O.obar if ln == 20 else 2
            bars[j] = g0 + lo
            p = [("", "wait", dict(vm=[("W", j + 1), ("O", j + 1)] + (["ST"] if j == O.pub2 else []), dsn=0 if j + 4 < 16 else None))]
            if j == 4: p.append(("", "call", lambda A_: poll_check(A_, 0x03030303, "u2", vOWN, "p2")))
            p.append("s_barrier")
            if j == O.pub2: p += flag_ops(3, "f2")
            if j == 3: p += poll_ops("p2")
            pre[g0 + lo] = p
        if i + 1 < len(steps):
            rd = w_rd(i + 1); np_ = len(rd) // 2
            stp = 2 if lo + 2 * np_ <= ln + 1 else 1.5
            if O.lfake and ln == 20:
                for q in range(len(rd)): gaps[g0 + lo + int(q * (2 if lo == 0 else 1.5))] += rd[q:q + 1]
            else:
                for q in range(np_): gaps[g0 + lo + int(q * stp)] += rd[2 * q:2 * q + 2]
    def spread(mem, g, sp, dense=False, dry=False):
        for ops in mem:
            while gaps[g] or g + 1 in pre or (g + 1 in need and not dense): g += 1
            if not dry: gaps[g] += ops
            g += sp if any(is_vm(o) for o in ops) else 1
        return g
    spread(w_dma(3, 0) + w_dma(3, 1), 1, 2)
    for j in range(12):
        mem = w_dma(j + 4, 0) + ([] if O.whalf else w_dma(j + 4, 1)) + o_ld(j + 4)
        dn = spread(mem, bars[j], O.osp, dry=True) > bars[j + 1]
        assert spread(mem, bars[j], O.osp, dn) <= bars[j + 1], j
    vXS, vXR = 220, vACC
    xs = []
    st = mbox("store", lambda t: vr(vXS + 4 * t, 4), sXO, "XS")
    for t in (0, 2, 3, 1, 4):
        xs += [[f"v_cvt_pk_bf16_f32 {vr(vXS+4*t+q)}, {vr(vACC+8*t+2*q)}, {vr(vACC+8*t+2*q+1)}" for q in range(2 * u, 2 * u + 2)] for u in range(2)]
        if t == 4: xs.append([st[3][1]])
        xs.append(st[t][:1])
    e = spread(xs, gB + 1, 1, True)
    xl = mbox("load", lambda t: vr(vXR + 4 * t, 4), sXI, "XL")
    assert e < n - O.xld
    spread(xl, n - O.xld, 1, True)
    for j in (4, 9): pre[start[4 * j]] = pre.get(start[4 * j], []) + [("", "call", lambda A_, j=j: stamp(A_, f"slab{j}", 2))]
    for j in (1, 4, 6, 12): pre[start[4 * j]] = pre.get(start[4 * j], []) + [("", "call", lambda A_, j=j: stamp(A_, f"slab{j}", 6))]
    pre[gB] = pre.get(gB, []) + [("", "call", lambda A_: stamp(A_, "phaseB", 5))]
    interleave(A, mf, gaps, pre=pre, need=need)
    stamp(A, "oproj loop done"); stamp(A, "oloop", 5); stamp(A, "oloop", 6)
    A(f"v_and_b32 {vr(t0)}, 15, {vr(lane)}"); A(f"v_mul_u32_u24 {vr(t0)}, 2560, {vr(t0)}"); A(f"v_lshrrev_b32 {vr(t1)}, 4, {vr(lane)}")
    A(f"s_mul_i32 s{sT}, s{sWAVE}, {32*2560}"); A(f"s_and_b32 s3, s7, 1"); A(f"s_lshr_b32 s4, s7, 3")
    A(f"s_lshl_b32 s{sT2}, s4, 1"); A(f"s_add_u32 s{sT2}, s{sT2}, s3"); A(f"s_lshl_b32 s{sT2}, s{sT2}, 6"); A(f"s_add_u32 s{sT2}, s{sT2}, s{sT}")
    A(f"s_xor_b32 s3, s3, 1"); A(f"s_lshl_b32 s3, s3, 3"); A(f"s_add_u32 s3, s3, s4"); A(f"s_lshl_b32 s3, s3, 5"); A(f"s_add_u32 s3, s3, s{sT}")
    A(f"v_lshl_add_u32 {vr(vOQ+1)}, {vr(t1)}, 3, {vr(t0)}"); A(f"v_add_u32 {vr(vOQ+1)}, s3, {vr(vOQ+1)}")
    A(f"v_bfe_u32 {vr(t1)}, {vr(lane)}, 4, 1"); A(f"v_lshl_add_u32 {vr(t0)}, {vr(t1)}, 5, {vr(t0)}")
    A(f"v_lshrrev_b32 {vr(t1)}, 5, {vr(lane)}"); A(f"v_lshl_add_u32 {vr(vOQ)}, {vr(t1)}, 4, {vr(t0)}"); A(f"v_add_u32 {vr(vOQ)}, s{sT2}, {vr(vOQ)}")
    def xtest():
        A(f"v_max3_u32 {vr(t0)}, {vr(vXR)}, {vr(vXR+1)}, {vr(vXR+2)}"); A(f"v_max3_u32 {vr(t1)}, {vr(vXR+3)}, {vr(vXR+4)}, {vr(vXR+5)}")
        for q in range(6, 20, 2): A(f"v_max3_u32 {vr(t0 if q & 2 else t1)}, {vr(t0 if q & 2 else t1)}, {vr(vXR+q)}, {vr(vXR+q+1)}")
        A(f"v_max_u32 {vr(t0)}, {vr(t0)}, {vr(t1)}"); A(f"v_cmp_eq_u32 vcc, -1, {vr(t0)}")
    A("s_mov_b32 s4, 0x40000")
    A.label("L_xpoll")
    A("s_waitcnt vmcnt(0)"); A.vm = []
    xtest(); A("s_cbranch_vccz L_xdone")
    for ops in xl:
        for o in ops: A(o if isinstance(o, str) else o[0])
    A("s_sub_u32 s4, s4, 1"); A("s_cmp_lg_u32 s4, 0"); A("s_cbranch_scc1 L_xpoll")
    A("s_waitcnt vmcnt(0)")
    A.label("L_xdone")
    stamp(A, "xflag", 5)
    A(f"s_mov_b32 s{sT}, {16*2560}"); A("s_movk_i32 s3, 0x3f80"); A("s_mov_b32 s4, 0x3f800000")
    for qq in range(2):
        d = vWF + qq * 10; ac = ACC(1, qq, 0)
        for i in range(20): A(f"v_dot2_f32_bf16 {vr(ac+i)}, {vr(vXR+qq*10+i//2)}, s{3+(i&1)}, {vr(ac+i)}")
        for i in range(10): A(f"v_cvt_pk_bf16_f32 {vr(d+i)}, {vr(ac+2*i)}, {vr(ac+2*i+1)}")
        so = f"s{sT}" if qq else "0"
        A("s_nop 0")
        for P_ in range(2):
            for q in range(2): A(f"v_permlane16_swap_b32 {vr(d+4*P_+q)}, {vr(d+4*P_+2+q)}")
        A.op((f"buffer_store_dwordx2 {vr(d+8,2)}, {vr(vOQ+1)}, {sr(sOUT)}, {so} offen{OFL()}", "vm", "OUT"))
        A.op((f"buffer_store_dwordx4 {vr(d,4)}, {vr(vOQ)}, {sr(sOUT)}, {so} offen{OFL()}", "vm", "OUT"))
        A.op((f"buffer_store_dwordx4 {vr(d+4,4)}, {vr(vOQ)}, {sr(sOUT)}, {so} offen offset:64{OFL()}", "vm", "OUT"))

def gen_kernel(k):
    A = Asm()
    A("s_cmp_ge_u32 s2, 256"); A("s_cbranch_scc1 L_end")
    stamp(A, "t0")
    if O.cpre:
        A("s_getpc_b64 s[84:85]"); A("s_and_b32 s84, s84, 0xffffff00"); A("s_and_b32 s85, s85, 0xffff")
        A("s_mov_b32 s86, L_codeend-attn_kernel"); A("s_mov_b32 s87, 0x20000")
        A("s_lshr_b32 s3, s2, 3"); A("s_lshl_b32 s3, s3, 12"); A("v_lshlrev_b32 v4, 4, v0")
        A.op(("buffer_load_dwordx4 v[252:255], v4, s[84:87], s3 offen", "vm", "CODE"))
        A("s_nop 4")
    A("s_load_dwordx16 s[64:79], s[0:1], 0")
    A("s_load_dwordx8 s[80:87], s[0:1], 64")
    A(f"s_load_dwordx2 s[{sWS}:{sWS+1}], s[0:1], 96")
    A("s_and_b32 s3, s2, 7"); A("s_lshr_b32 s4, s2, 3"); A("s_lshr_b32 s5, s3, 2")
    if O.map2:
        A("s_bfe_u32 s6, s3, 0x10001"); A("s_lshl_b32 s6, s6, 2"); A("s_lshr_b32 s7, s4, 3"); A("s_add_u32 s6, s6, s7")
        A("s_and_b32 s7, s3, 1"); A("s_lshl_b32 s7, s7, 3"); A("s_and_b32 s4, s4, 7"); A("s_add_u32 s7, s7, s4")
    else:
        A("s_and_b32 s6, s3, 3"); A("s_lshl_b32 s6, s6, 1"); A("s_lshr_b32 s7, s4, 4"); A("s_add_u32 s6, s6, s7")
        A("s_and_b32 s7, s4, 15")
    vAW, vOW, vOX, vAX = 16, 24, 28, 36
    lane, g, i, r, t0, t1, t2, t3, h = range(48, 57)
    A(f"v_lshrrev_b32 {vr(t0)}, 6, v0"); A(f"v_and_b32 {vr(lane)}, 63, v0"); A(f"v_readfirstlane_b32 s{sWAVE}, {vr(t0)}")
    A(f"v_lshrrev_b32 {vr(g)}, 4, {vr(lane)}"); A(f"v_and_b32 {vr(i)}, 15, {vr(lane)}"); A(f"v_lshrrev_b32 {vr(h)}, 5, {vr(lane)}")
    A(f"s_and_b32 s{sT2}, s{sWAVE}, 1"); A(f"s_lshl_b32 s{sT2}, s{sT2}, 3")
    A(f"s_lshl_b32 s{sT}, s{sWAVE}, 16")
    A(f"v_and_b32 {vr(t2)}, 31, {vr(lane)}"); A(f"v_xor_b32 {vr(t2)}, s{sT2}, {vr(t2)}")
    for p in range(2):
        A(f"v_add_u32 {vr(t0)}, {2*p}, {vr(h)}"); A(f"v_lshlrev_b32 {vr(t1)}, 1, {vr(t0)}"); A(f"v_xor_b32 {vr(t1)}, {vr(t1)}, {vr(t2)}")
        A(f"v_lshlrev_b32 {vr(t1)}, 4, {vr(t1)}"); A(f"v_lshl_add_u32 {vr(t1)}, {vr(t0)}, 13, {vr(t1)}")
        A(f"v_add_u32 {vr(vOW+p)}, s{sT}, {vr(t1)}")
        if p: A(f"v_subrev_u32 {vr(vOW+p)}, 1024, {vr(vOW+p)}")
        A(f"v_add_u32 {vr(vOW+p+2)}, {4*8192-2048}, {vr(vOW+p)}")
    A(f"s_mul_i32 s{sT}, s{sWAVE}, {64*1280}")
    A(f"v_lshrrev_b32 {vr(t0)}, 3, {vr(lane)}"); A(f"v_mul_u32_u24 {vr(t0)}, 1280, {vr(t0)}"); A(f"v_add_u32 {vr(t0)}, s{sT}, {vr(t0)}")
    A(f"v_and_b32 {vr(t1)}, 7, {vr(lane)}"); A(f"v_xor_b32 {vr(t1)}, {vr(t1)}, {vr(g)}")
    A(f"v_lshl_add_u32 {vr(vOX)}, {vr(t1)}, 4, {vr(t0)}"); A(f"v_xor_b32 {vr(t1)}, 4, {vr(t1)}"); A(f"v_lshl_add_u32 {vr(t0)}, {vr(t1)}, 4, {vr(t0)}")
    A(f"v_add_u32 {vr(vOX+1)}, {10240-1024}, {vr(t0)}")
    for p in range(2, 8): A(f"v_add_u32 {vr(vOX+p)}, {(p&~1)*10240 - ((p&3)&~1)*1024}, {vr(vOX+(p&1))}")
    A(f"s_lshl_b32 s{sKVW}, s{sWAVE}, 12"); A(f"s_add_u32 s{sVVW}, s{sKVW}, {VBASE}"); A(f"s_add_u32 s{sWQW}, s{sKVW}, {WQBASE}")
    A(f"s_lshl_b32 s{sXW}, s{sWAVE}, 13")
    A(f"s_lshl_b32 s4, s6, 4"); A(f"s_add_u32 s4, s4, s7")
    A(f"s_lshl_b32 s{sT}, s7, 9"); A(f"s_sub_u32 s{sW+2}, {640*8192}, s{sT}"); A(f"s_mov_b32 s{sW+3}, 0x20000")
    A(f"s_mul_i32 s{sT3}, s6, 327680"); A(f"s_mov_b32 s{sX+2}, 327680"); A(f"s_mov_b32 s{sX+3}, 0x20000")
    A("s_cmp_eq_u32 s5, 1")
    A("s_waitcnt lgkmcnt(0)")
    if O.stamps and O.stm == 1: A("s_memtime s[50:51]"); A("s_memrealtime s[98:99]"); nstamp[0] += 1; stamp_names.append("karg")
    for q in (3, 0, 1, 2, 4): A(f"s_cselect_b64 s[{64+2*q}:{65+2*q}], s[{74+2*q}:{75+2*q}], s[{64+2*q}:{65+2*q}]")
    A(f"s_add_u32 s{sW}, s70, s{sT}"); A(f"s_addc_u32 s{sW+1}, s71, 0"); A(f"s_and_b32 s{sW+1}, s{sW+1}, 0xffff")
    A(f"s_add_u32 s{sX}, s64, s{sT3}"); A(f"s_addc_u32 s{sX+1}, s65, 0"); A(f"s_and_b32 s{sX+1}, s{sX+1}, 0xffff")
    def AF(buf, nb): return buf * 64 + nb * 4
    def XR(G, ks, qb): return 128 + (G & 1) * 32 + (ks * 4 + qb) * 4
    def ACC(nb, qb): return vr(48 + (nb * 4 + qb) * 4, 4) if nb < 13 else ar(208 + ((nb - 13) * 4 + qb) * 4, 4)
    def wq_dma(kk):
        return [[f"s_add_u32 m0, s{sWQW}, {(kk&3)*16384}", f"s_mov_b32 s{sT2}, {kk*262144}"]] + \
               [[(f"buffer_load_dwordx4 {vr(vOW+p)}, {sr(sW)}, s{sT2} offen offset:{p*1024}{' nt' if O.w_nt else ''} lds", "vm", ("W", kk))] for p in range(4)]
    def x_dma(G):
        r = [[f"s_add_u32 m0, s{sXW}, {XB[G&1]}", f"s_movk_i32 s{sT2}, {G*128}"]]
        r += [[(f"buffer_load_dwordx4 {vr(vOX+p)}, {sr(sX)}, s{sT2} offen offset:{(p&3)*1024}{' nt' if O.x_nt else ''} lds", "vm", ("X", G))] for p in range(8)]
        r[4].append(f"s_add_u32 m0, s{sXW}, {XB[G&1]+4096}")
        return r
    def flat(groups):
        for grp in groups:
            for ops in grp:
                for o in ops: A.op(o)
    flat([wq_dma(0), x_dma(0), wq_dma(1), x_dma(1)])
    def kv_groups(kind, tile):
        su, pcs, po = dma_k(tile, (kind, tile)) if kind == "K" else dma_v(tile, (kind, tile))
        return [[su]] + [[p] for p in pcs[:3]] + [[pcs[3], po]]
    A(f"s_mov_b32 s{sWOI}, s72"); A(f"s_and_b32 s{sWOI+1}, s73, 0xffff")
    A(f"s_lshl_b32 s{sT}, s4, 19")
    srd(A, sK, 66, 67, f"s{sT}", "0x80000")
    srd(A, sV, 68, 69, f"s{sT}", "0x80000")
    A(f"s_lshl_b32 s{sGI}, s5, 3"); A(f"s_add_u32 s{sGI}, s{sGI}, s6"); A(f"s_lshl_b32 s{sT2}, s{sGI}, 22")
    srd(A, sO, sWS, sWS + 1, f"s{sT2}", 0x200000 + 16 * 20480)
    A(f"s_lshl_b32 s{sT}, s6, 1"); A(f"s_bfe_u32 s{sT2}, s7, 0x10002"); A(f"s_add_u32 s{sT}, s{sT}, s{sT2}"); A(f"s_mul_i32 s{sT}, s{sT}, {128*2560}")
    A(f"s_mul_i32 s{sT2}, s5, 1280"); A(f"s_add_u32 s{sT}, s{sT}, s{sT2}"); A(f"s_and_b32 s{sT2}, s7, 3"); A(f"s_mul_i32 s{sT2}, s{sT2}, 320")
    A(f"s_add_u32 s{sT}, s{sT}, s{sT2}")
    if O.stamps and O.stm == 1: A("s_waitcnt lgkmcnt(0)"); A("s_mov_b32 s66, s98"); A("s_mov_b32 s67, s99")
    srd(A, sOUT, 84, 85, f"s{sT}", 127 * 2560 + 320)
    srd(A, sCNT, 86, 87, 0, 256)
    A(f"s_lshl_b32 s{sGI}, s{sGI}, 4"); A(f"s_add_u32 s{sGI}, s{sGI}, s7")
    A(f"s_lshl_b32 s{sOOF}, s7, 13")
    A(f"s_mov_b32 s{sKOFF}, 0"); A(f"s_mov_b32 s{sVOFF}, 0"); A(f"s_mov_b32 s{sSTUB}, 99")
    A(f"s_mov_b32 s{sTHR}, {hex(f32bits(2.0**O.thr_log2 if not O.forcefb else -1.0))}")
    A(f"s_mov_b32 s{sSC}, {hex(f32bits(128**-0.5*math.log2(math.e)))}"); A(f"s_mov_b32 s{sSC+1}, s{sSC}")
    A(f"v_lshrrev_b32 {vr(r)}, 2, {vr(i)}")
    A(f"v_and_b32 {vr(t0)}, 1, {vr(g)}"); A(f"v_lshl_add_u32 {vr(t0)}, {vr(t0)}, 2, {vr(r)}")
    A(f"v_lshl_add_u32 {vr(t1)}, {vr(g)}, 3, {vr(r)}"); A(f"v_lshlrev_b32 {vr(t1)}, 9, {vr(t1)}")
    A(f"v_and_b32 {vr(t2)}, 3, {vr(i)}"); A(f"v_lshl_add_u32 {vr(t1)}, {vr(t2)}, 3, {vr(t1)}"); A(f"v_add_u32 {vr(t1)}, {WQBASE}, {vr(t1)}")
    for n3 in range(8):
        A(f"v_xor_b32 {vr(t3)}, {n3}, {vr(t0)}"); A(f"v_lshl_add_u32 {vr(vAW+n3)}, {vr(t3)}, 5, {vr(t1)}")
    A(f"v_lshrrev_b32 {vr(t0)}, 1, {vr(i)}"); A(f"v_xor_b32 {vr(t0)}, {vr(t0)}, {vr(g)}")
    A(f"v_lshlrev_b32 {vr(t1)}, 7, {vr(i)}"); A(f"v_add_u32 {vr(t1)}, s{sXW}, {vr(t1)}")
    A(f"v_lshl_add_u32 {vr(vAX)}, {vr(t0)}, 4, {vr(t1)}"); A(f"v_xor_b32 {vr(vAX+1)}, 64, {vr(vAX)}")
    A(f"v_lshl_add_u32 {vr(t1)}, {vr(r)}, 4, {vr(t2)}"); A(f"v_lshlrev_b32 {vr(t1)}, 8, {vr(t1)}")
    A(f"v_and_b32 {vr(t0)}, 1, {vr(r)}"); A(f"v_lshlrev_b32 {vr(t0)}, 3, {vr(t0)}"); A(f"v_lshl_add_u32 {vr(t0)}, {vr(t2)}, 1, {vr(t0)}")
    A(f"v_lshrrev_b32 {vr(t3)}, 3, {vr(i)}"); A(f"v_add_u32 {vr(t0)}, {vr(t0)}, {vr(t3)}")
    A(f"v_and_b32 {vr(t3)}, 1, {vr(g)}"); A(f"v_lshl_add_u32 {vr(t3)}, {vr(t3)}, 1, {vr(h)}"); A(f"v_xor_b32 {vr(t0)}, {vr(t0)}, {vr(t3)}")
    A(f"v_lshl_add_u32 {vr(vAK)}, {vr(t0)}, 4, {vr(t1)}")
    for s in range(1, 4): A(f"v_xor_b32 {vr(vAK+s)}, {s*64}, {vr(vAK)}")
    A(f"v_lshl_add_u32 {vr(t1)}, {vr(g)}, 4, {vr(r)}"); A(f"v_lshlrev_b32 {vr(t1)}, 8, {vr(t1)}")
    A(f"v_and_b32 {vr(t0)}, 1, {vr(i)}"); A(f"v_lshl_add_u32 {vr(t1)}, {vr(t0)}, 3, {vr(t1)}"); A(f"v_add_u32 {vr(t1)}, {VBASE}, {vr(t1)}")
    A(f"v_and_b32 {vr(t0)}, 1, {vr(g)}"); A(f"v_lshlrev_b32 {vr(t0)}, 3, {vr(t0)}"); A(f"v_lshl_add_u32 {vr(t0)}, {vr(r)}, 1, {vr(t0)}")
    A(f"v_add_u32 {vr(t0)}, {vr(t0)}, {vr(h)}"); A(f"v_bfe_u32 {vr(t3)}, {vr(i)}, 1, 1"); A(f"v_xor_b32 {vr(t0)}, {vr(t0)}, {vr(t3)}")
    A(f"v_lshl_add_u32 {vr(vAV)}, {vr(t0)}, 4, {vr(t1)}")
    for db in range(1, 8): A(f"v_xor_b32 {vr(vAV+db)}, {db*32}, {vr(vAV)}")
    A(f"s_and_b32 s{sT}, s{sWAVE}, 1"); A(f"s_lshl_b32 s{sT}, s{sT}, 3"); A(f"s_lshr_b32 s{sT2}, s{sWAVE}, 1"); A(f"s_add_u32 s{sT}, s{sT}, s{sT2}")
    A(f"v_lshlrev_b32 {vr(t0)}, 1, {vr(g)}"); A(f"v_add_u32 {vr(t0)}, s{sT}, {vr(t0)}"); A(f"v_xor_b32 {vr(t0)}, {vr(t0)}, {vr(i)}")
    A(f"v_lshlrev_b32 {vr(t0)}, 4, {vr(t0)}"); A(f"v_lshl_add_u32 {vr(t0)}, {vr(g)}, 8, {vr(t0)}"); A(f"v_add_u32 {vr(vOKV)}, s{sKVW}, {vr(t0)}")
    A(f"s_lshl_b32 s{sT}, s{sWAVE}, 19"); A(f"v_lshlrev_b32 {vr(t0)}, 4, {vr(lane)}"); A(f"v_add_u32 {vr(vOO)}, s{sT}, {vr(t0)}")
    if O.fuse:
        A(f"s_mul_i32 s{sT}, s{sWAVE}, {5120 - (1 << 19)}"); A(f"s_add_u32 s{sT}, s{sT}, 0x200000")
        A(f"s_mul_i32 s{sXI}, s7, 20480"); A(f"s_add_u32 s{sXI}, s{sXI}, s{sT}")
        A(f"s_xor_b32 s{sXO}, s7, 8"); A(f"s_mul_i32 s{sXO}, s{sXO}, 20480"); A(f"s_add_u32 s{sXO}, s{sXO}, s{sT}")
        for q in range(4): A(f"v_mov_b32 {vr(40+q)}, -1")
    if 0 <= O.wopre < 200:
        A(f"s_mov_b32 s{sWOI+2}, 5242880"); A(f"s_mov_b32 s{sWOI+3}, 0x20000")
        A(f"s_lshl_b32 s{sT}, s4, 2"); A(f"s_add_u32 s{sT}, s{sT}, s{sWAVE}"); A(f"s_mul_i32 s{sT}, s{sT}, 10240")
        A(f"v_lshlrev_b32 {vr(t0)}, 4, {vr(lane)}"); A(f"v_add_u32 {vr(vTMP)}, s{sT}, {vr(t0)}")
    L2S = [int(x) for x in O.l2s.split(',')] if O.l2s else []
    def l2t(kk): return [[f"s_mov_b32 s3, {(4 - (q & 1)) * 16384 + (q >> 1) * (256 << O.l2sh)}", (f"buffer_load_dword {ar(192)}, {vr(44)}, {sr(sV if q & 1 else sK)}, s3 offen{['', ' nt', ' sc1', ' sc0 sc1'][O.l2nt]}", "vm", "L2")] for q, at in enumerate(L2S) if at == kk]
    if L2S: A(f"v_lshlrev_b32 {vr(44)}, {O.l2sh}, {vr(lane)}"); A(f"s_lshl_b32 s{sT}, s{sWAVE}, {O.l2sh+6}"); A(f"v_add_u32 {vr(44)}, s{sT}, {vr(44)}")
    if O.kv0 < 0: flat([kv_groups("K", 0), kv_groups("V", 0)])
    stamp(A, "setup done", 1)
    def wo_pre(i, kk):
        n = 10 // O.wopn; r = []
        for q in range(i * n, (i + 1) * n):
            if q == i * n or q % 4 == 0:
                r.append([f"s_add_u32 m0, s{sKVW}, {0 if kk < 15 else 131072}", f"s_movk_i32 s{sT2}, {(q & ~3)*1024}"])
            r.append([(f"buffer_load_dwordx4 {vr(vTMP)}, {sr(sWOI)}, s{sT2} offen offset:{(q&3)*1024}{' nt' if O.wopre_nt else ''} lds", "vm", "WOP")])
        return r
    if O.wopre == 99: flat([wo_pre(0, 0)])
    def a_reads(kk):
        return [(f"ds_read_b64_tr_b16 {ar(AF(kk&1,nb)+2*jh,2)}, {vr(vAW+(nb&7))} offset:{(kk&3)*16384+jh*2048+(nb>>3)*256}", "ds", "A")
                for nb in range(16) for jh in range(2)]
    def x_reads(G):
        return [(f"ds_read_b128 {ar(XR(G,ks,qb),4)}, {vr(vAX+ks)} offset:{XB[G&1]+qb*2048}", "ds", "XR") for ks in range(2) for qb in range(4)]
    A.wait(vm=[("W", 0), ("X", 0)]); A("s_barrier")
    stamp(A, "wq0 landed"); stamp(A, "wq0 landed", 1); stamp(A, "wq0 landed", 3)
    for o in x_reads(0) + a_reads(0): A.op(o)
    flat([wq_dma(2), wq_dma(3)])
    KVS = [int(x) for x in O.kvs.split(",")]
    assert KVS[2] >= 15 and KVS[3] >= 15 and KVS[4] >= 16 and KVS[5] >= 17 and KVS[6] >= 17 and KVS[0] <= KVS[2] <= KVS[3] <= KVS[5] and KVS[1] <= KVS[4] <= KVS[6]
    for kk in range(20):
        A.c(f"---- qproj step {kk}")
        G, ks = kk >> 1, kk & 1
        if kk in (1, 4): stamp(A, f"step{kk}", 1)
        if kk in (4, 8, 12, 15): stamp(A, f"step{kk}", 3)
        nd = ([("W", kk + 1)] if kk + 1 < 20 else []) + ([("X", G + 1)] if ks == 0 and G + 1 < 10 else [])
        A.wait(vm=nd, dsn=0); A("s_barrier")
        mf = [f"{MF} {ACC(nb,qb)}, {ar(AF(kk&1,nb),4)}, {ar(XR(G,ks,qb),4)}, {ACC(nb,qb) if kk else '0'}" for nb in range(16) for qb in range(4)]
        gaps = {q: [] for q in range(64)}
        mem = []
        if kk + 4 < 20: mem += wq_dma(kk + 4)
        if kk == 0: mem += x_dma(2)
        if ks == 1 and G + 3 < 10: mem += x_dma(G + 3)
        if O.wopre >= 0 and O.wopre <= kk < O.wopre + O.wopn: mem += wo_pre(kk - O.wopre, kk)
        if O.fuse and kk == O.xfill: mem += mbox("store", lambda t: vr(40, 4), sXI, "XF")
        mem += l2t(kk)
        for (kind, tile), at in zip((("K", 0), ("V", 0), ("K", 1), ("K", 2), ("V", 1), ("K", 3), ("V", 2)), KVS):
            if kk == at: mem += kv_groups(kind, tile)
        rd = (x_reads(G + 1) if ks == 0 and G + 1 < 10 else []) + (a_reads(kk + 1) if kk + 1 < 20 else [])
        sp = max(2, min(O.qsp, 56 // max(1, len(mem))))
        for q, ops in enumerate(mem): gaps[1 + sp * q] += ops
        fr = [q for q in range(60) if not gaps[q]]
        two = max(0, len(rd) - len(fr))
        fr = sorted(fr + fr[:two])
        for q, o in enumerate(rd): gaps[fr[(q * len(fr)) // len(rd)]].append(o)
        interleave(A, mf, gaps)
    stamp(A, "qproj done"); stamp(A, "qproj done", 3)
    if O.fuse and O.xfill == 20: flat([mbox("store", lambda t: vr(40, 4), sXI, "XF")])
    for (kind, tile), at in zip((("K", 0), ("V", 0), ("K", 1), ("K", 2), ("V", 1), ("K", 3), ("V", 2)), KVS):
        if at == 20: flat([kv_groups(kind, tile)])
    flat([l2t(20)])
    A("s_nop 7")
    def conv_front(hd, s, qb, T0, T1, tb):
        for T in (T0, T1):
            for q in range(2): A(f"v_pk_mul_f32 {vr(T+2*q,2)}, {vr(T+2*q,2)}, s[{sSC}:{sSC+1}]")
        for q in range(2): A(f"v_cvt_pk_bf16_f32 {vr(tb+q)}, {vr(T0+2*q)}, {vr(T0+2*q+1)}")
        for q in range(2): A(f"v_cvt_pk_bf16_f32 {vr(tb+2+q)}, {vr(T1+2*q)}, {vr(T1+2*q+1)}")
    def conv_back(hd, s, qb, tb):
        for q in range(2): A(f"v_permlane16_swap_b32 {vr(tb+q)}, {vr(tb+2+q)}")
    def conv_wr(hd, s, qb, tb):
        for q in range(4): A(f"v_accvgpr_write_b32 {ar(hd*64+(qb*4+s)*4+q)}, {vr(tb+q)}")
    jobs = []
    for pr in range(8):
        for qb in range(4):
            jobs.append((pr, qb))
    pend = []
    for n_, (pr, qb) in enumerate(jobs):
        if pr == 6 and qb == 0:
            for q in range(48): A(f"v_accvgpr_read_b32 {vr(48+q)}, {ar(208+q)}")
        def loc(nb): return 48 + (nb * 4 + qb) * 4 if nb < 13 else 48 + ((nb - 13) * 4 + qb) * 4
        tb = 16 + (n_ % 4) * 4
        conv_front(pr >> 2, pr & 3, qb, loc(2 * pr), loc(2 * pr + 1), tb)
        pend.append((pr >> 2, pr & 3, qb, tb))
        if len(pend) >= 2: conv_back(*pend[-2])
        if len(pend) >= 3: conv_wr(*pend[-3])
    A("s_nop 1"); conv_back(*pend[-1]); conv_wr(*pend[-2]); A("s_nop 0"); conv_wr(*pend[-1])
    A(f"s_mov_b32 s{sT3}, 0x3f803f80")
    if not O.vsum and not O.smf:
        for q in range(4): A(f"v_accvgpr_write_b32 {ar(aONE+q)}, s{sT3}")
    if O.dumpq:
        A(f"s_lshl_b32 s{sT}, s5, 7"); A(f"s_lshl_b32 s{sT2}, s6, 4"); A(f"s_add_u32 s{sT}, s{sT}, s{sT2}"); A(f"s_add_u32 s{sT}, s{sT}, s7")
        A(f"s_lshl_b32 s{sT}, s{sT}, 17"); A(f"s_add_u32 s{sT}, s{sT}, {QDUMP_WS_OFF}")
        srd(A, sDBG, sWS, sWS + 1, f"s{sT}", "0x20000")
        A(f"v_and_b32 {vr(16)}, 0x3ff, {vr(vOO)}"); A(f"s_lshl_b32 s{sT}, s{sWAVE}, 15"); A(f"v_add_u32 {vr(16)}, s{sT}, {vr(16)}")
        for q in range(32):
            A(f"s_mov_b32 s{sT}, {q*1024}")
            A(f"buffer_store_dwordx4 {ar(4*q,4)}, {vr(16)}, {sr(sDBG)}, s{sT} offen")
        A("s_waitcnt vmcnt(0)")
    if O.fuse: oproj_early(A, 16)
    A.wait(vm=[("K", 0)]); A("s_barrier")
    stamp(A, "conv done")
    if O.exitat == 1: A("s_branch L_exit")
    A(f"s_mov_b32 s{sUNIT}, 0")
    if O.trace: A("s_mov_b64 s[52:53], 1"); A("s_memrealtime s[50:51]"); A("v_mov_b32 v0, 0")
    A.label("L_unit")
    A(f"s_mov_b32 s{sLOOP}, 3")
    ncls = 2 if O.twocls else 1
    if ncls == 2:
        A(f"s_bitcmp1_b32 s{sWAVE}, 0"); A("s_cbranch_scc1 L_first_1")
    ds6 = None
    for cls in range(ncls):
        A.label(f"L_first_{cls}")
        A.ds = []
        first_slot(A, cls)
        slot(A, 1, cls, f"second_{cls}", zero=True)
        ds_in = list(A.ds)
        A.label(f"L_loop_{cls}")
        for p in (2, 3, 4, 5, 6, 7, 0, 1):
            tail = []
            if p == 6: tail = [f"s_cmp_eq_u32 s{sLOOP}, 0", "s_cbranch_scc1 L_last"]
            if p == 7 and O.fuse: tail = [f"s_cmp_eq_u32 s{sLOOP}, s{sSTUB}", "s_cbranch_scc1 L_tail"]
            if p == 1:
                tail = [f"s_sub_u32 s{sLOOP}, s{sLOOP}, 1"]
                if O.stamps and O.stm == 4: tail += [f"s_memtime s[50:51]", "s_memrealtime s[66:67]"]
                tail += [f"s_branch L_loop_{cls}"]
            slot(A, p, cls, f"p{p}_{cls}", tail=tail)
            if p == 6: ds6 = list(A.ds)
            if p == 7: ds7 = list(A.ds)
        assert len(A.ds) == len(ds_in) and A.ds == ds_in, (A.ds, ds_in)
    if O.stamps and O.stm == 4: nstamp[0] += 1; stamp_names.append("loopback")
    A.label("L_last")
    if not O.fuse: stamp(A, "last", 4)
    A.ds = list(ds6)
    last_slot(A, not O.fuse)
    if O.chk:
        A(f"s_cmp_lg_u64 s[{sM}:{sM+1}], 0"); A("s_cbranch_scc1 L_fb")
    if not O.fuse:
        A(f"s_cmp_lg_u32 s{sUNIT}, 0"); A("s_cbranch_scc1 L_fbret1")
    A.label("L_fbret0")
    stamp(A, "unit0 end"); stamp(A, "unit0 end", 2)
    if O.exitat == 2: A("s_branch L_exit")
    A(f"s_mov_b32 s{sUNIT}, 1"); A(f"s_add_u32 s{sOOF}, s{sOOF}, 4096"); A(f"s_mov_b32 s{sSTUB}, 1")
    if O.fuse and O.wopre >= 300:
        sh = O.wopre - 300
        A(f"v_bfe_u32 v0, {vr(vOO)}, 4, 6"); A("s_lshr_b32 s3, s2, 3"); A(f"s_lshl_b32 s3, s3, 2"); A(f"s_add_u32 s3, s3, s{sWAVE}"); A("s_lshl_b32 s3, s3, 6")
        A("v_add_u32 v0, s3, v0"); A(f"v_lshlrev_b32 v0, {12 - sh}, v0"); A("s_lshr_b32 s3, s7, 3"); A("s_mul_i32 s3, s3, 2621440")
        A(f"v_cmp_gt_u32 vcc, 2621440, v0"); A("s_and_saveexec_b64 s[100:101], vcc")
        A(f"buffer_load_dword {ar(224)}, v0, {sr(sW)}, s3 offen"); A("s_mov_b64 exec, -1")
    for q in range(64): A(f"v_accvgpr_mov_b32 {ar(aQ+q)}, {ar(aQ2+q)}")
    if O.fuse:
        for q in range(64): A(f"v_accvgpr_write_b32 {ar(aQ2+q)}, {vr(vS+q)}")
    A("s_branch L_unit")
    if O.fuse:
        A.label("L_tail")
        stamp(A, "tail", 2); stamp(A, "tail", 4)
        if O.trace:
            srd(A, 56, sWS, sWS + 1, 132 << 20, 4 << 20); A("s_lshl_b32 s3, s2, 10")
            A(f"buffer_store_dword v0, {vr(vOO)}, s[56:59], s3 offen")
        A.ds = list(ds7)
        A.vm = [("G", 9)] * 8 + [("G", 10)] * 8 + (["WOP"] if O.wopre == 250 else []) + [("G", 11)] * 8
        def st0(qbs):
            r = []
            for qb in qbs:
                r.append([f"s_add_u32 s{sT}, s{sOOF}, {qb*131072 - 4096}"] if qb else [f"s_sub_u32 s{sT}, s{sOOF}, 4096"])
                r += [[o_store(ar(aQ2 + (qb * 4 + t) * 4, 4), qb, t, "ST0", sT)] for t in range(4)]
            return r
        v15 = dma_v(3, ("G", 12))
        slot(A, 0, 0, "t24", groups=[[v15[0]]] + [[o] for o in v15[1]] + st0([0]), vmtags=[("G", 9)])
        slot(A, 1, 0, "t25", groups=st0([1, 2]))
        slot(A, 2, 0, "t26", groups=st0([3]) + w_dma(0, 0, True), vmtags=[("G", 10)])
        def touch(lo, hi):
            if O.wopre != 200: return []
            r = []
            for q in range(lo, hi):
                if q == lo or q % 4 == 0: r.append([f"s_add_u32 s{sT}, s{sTW}, {(q & ~3)*1024}"])
                r.append([(f"buffer_load_dwordx4 {ar(224+(q&7)*4,4)}, {vr(vOO)}, {sr(sW)}, s{sT} offen offset:{(q&3)*1024}", "vm", "WOP")])
            return r
        slot(A, 3, 0, "t27", groups=w_dma(0, 1, True) + touch(0, 5))
        slot(A, 4, 0, "t28", groups=w_dma(1, 0, True), vmtags=[("G", 11), "ST0"], after_bar=flag_ops(1, "f1"))
        slot(A, 5, 0, "t29", groups=touch(5, 10) + w_dma(1, 1, True))
        slot(A, 6, 0, "t30", groups=w_dma(2, 0, True), vmtags=[("G", 12)], tail=[f"v_accvgpr_read_b32 {vr(vPOLL)}, {ar(aPOLL)}"] + poll_ops("p1"))
        stamp(A, "last1", 2)
        oproj_setup(A)
        def mid():
            A.wait(dsn=0)
            poll_check(A, 0x01010101, "u1", vOWX, "p1")
            A("s_barrier")
        if O.own1: last_slot(A, True, extra1=w_dma(2, 1) + o_ld(0), mid=mid, extra2=o_ld(1) + o_ld(2))
        else: last_slot(A, True, extra1=w_dma(2, 1), mid=mid, extra2=o_ld(0) + o_ld(1) + o_ld(2))
        if O.chk:
            A(f"s_cmp_lg_u64 s[{sM}:{sM+1}], 0"); A("s_cbranch_scc1 L_fb")
        A.label("L_fbret1")
        stamp(A, "unit1 end"); stamp(A, "unit1 end", 2); stamp(A, "unit1 end", 5); stamp(A, "unit1 end", 6)
        if O.exitat == 3: A("s_branch L_exit")
        oproj(A)
    else:
        A.label("L_fbret1")
        stamp(A, "unit1 end")
    if O.exitat: A.label("L_exit")
    if O.stamps: emit_stamps(A)
    A.label("L_end")
    A("s_endpgm")
    if O.chk:
        fallback(A)
    emit_spins(A)
    A.label("L_codeend")
    return kstart(k) + A.text()

def emit_stamps(A):
    A("s_waitcnt vmcnt(0) lgkmcnt(0)")
    A(f"s_memtime s[8:9]"); A(f"s_memrealtime s[10:11]")
    A("s_waitcnt lgkmcnt(0)")
    srd(A, sDBG, sWS, sWS + 1, STAMP_WS_OFF, "0x100000")
    A(f"s_lshl_b32 s3, s2, 2"); A(f"s_add_u32 s3, s3, s{sWAVE}"); A("s_lshl_b32 s3, s3, 7")
    A("v_mov_b32 v0, s3")
    n = nstamp[0]
    regs = [(j, sSTAMP + 2 * j) for j in range(n)] + [(n, 8)] + [(8 + j, 62 if j == 0 else sRSTAMP + 2 * j) for j in range(n)] + [(8 + n, 10)]
    A("s_getreg_b32 s4, hwreg(HW_REG_XCC_ID)")
    regs.append((16, 4))
    for j, s_ in regs:
        A(f"v_mov_b32 v1, s{s_}")
        A(f"buffer_store_dword v1, v0, {sr(sDBG)}, 0 offen offset:{4*j}")
    A("s_waitcnt vmcnt(0)")

def main():
    ap = argparse.ArgumentParser()
    for k_, v_ in vars(Opt).items():
        if k_.startswith("_"): continue
        if isinstance(v_, bool): ap.add_argument("--" + k_, type=lambda s: bool(int(s)), default=v_)
        elif isinstance(v_, int): ap.add_argument("--" + k_, type=int, default=v_)
        else: ap.add_argument("--" + k_, default=v_)
    a = ap.parse_args()
    for k_, v_ in vars(a).items(): setattr(O, k_, v_)
    O.smpos_ = [int(x) for x in O.smpos.split(',')]
    hdr = open("cdna_kernels/" + NAME + ".s.ref").read().split("; Override launch")[0]
    out = hdr
    out += "; @launch kernel=attn_kernel grid=(256,1,1) block=(256,1,1) lds=163840\n"
    body = gen_kernel("attn_kernel")
    if O.stamps: out += "; stamps: " + ",".join(stamp_names) + ",end\n"
    out += '.amdgcn_target "amdgcn-amd-amdhsa--gfx950"\n.text\n'
    out += body + kd("attn_kernel")
    lines = out.split("\n")
    if O.skip_loop:
        iu = lines.index("L_unit:"); il = lines.index("L_last:")
        lines = lines[:iu] + [l for l in lines[iu:il] if not ("buffer_load_dwordx4" in l and " lds" in l)] + lines[il:]
    il = lines.index("L_last:")
    if O.skip_oo: lines = lines[:il] + [l for l in lines[il:] if not ("buffer_load_dwordx4 a[" in l and "s[8:11]" in l)]
    if O.skip_ow: lines = lines[:il] + [l for l in lines[il:] if not ("s[12:15]" in l and " lds" in l)]
    iu = lines.index("L_unit:")
    if O.skip_x: lines = [l for l in lines[:iu] if not ("s[8:11]" in l and " lds" in l)] + lines[iu:]
    if O.skip_w: lines = [l for l in lines[:iu] if not ("s[12:15]" in l and " lds" in l)] + lines[iu:]
    sys.stdout.write("\n".join(lines))
main()
```

```python
import sys, math, argparse, re, struct, copy

NAME = "concat_heads__gqa_block_cached__gqa_block_cached__near_ridge"

class Opt:
    stamps = False
    dumpq = False
    kv_nt = True
    fuse = True
    twocls = False
    D = 6
    bar = 20
    burst = 1
    dper = 3
    qsp = 4
    w_nt = True
    x_nt = True
    wo_nt = False
    kv0 = 15
    pubw = 11
    map2 = True
    pub2 = 1
    pub1 = 28
    poll2 = 8
    thr_log2 = 30
    skip_loop = False
    skip_x = False
    skip_w = False
    forcefb = False
    budget = 8
    wpre = True
    o_sc1 = True
    chk = True
    stm = 0
    cpre = True
    rot = 0
    wfake = False
    noinv = False
    skip_oo = False
    skip_ow = False
    st_sc1 = True
    wopre = 200
    wopre_nt = False
    wopn = 1
    ndef = 4
    xbar = 60
    own1 = True
    obar = 4
    osp = 2
    xdense = True
    vlate = 0
    vsum = False
    pad = 0
    vmn = 16
    kvs = "13,14,15,16,17,18,19"
    outfl = 0
    trace = False
    xld = 40
    xfill = 20
    lfake = False
    whalf = False
    ofake = False
    walign = False
    wofl = 0
    kvfl = 0
    qpad = 0
    upad = 0
    upadm = 0
    stag = 0
    stagm = 3
    exitat = 0
    l2n = 0
    l2s = ""
    l2nt = 0
    l2sh = 6
    smpos = "3,7"
    smf = True

O = Opt()

class Asm:
    def __init__(self):
        self.L = []
        self.vm = []
        self.ds = []
        self.nvm = 0; self.mark = {}
    def __call__(self, s):
        if s.endswith(" lds") and self.L and " m0," in self.L[-1]: self.L.append("    s_nop 0")
        self.L.append(s if s.endswith(":") else "    " + s)
    def label(self, s): self.L.append(s + ":")
    def c(self, s): self.L.append("    ; " + s)
    def text(self): return "\n".join(self.L) + "\n"
    def vm_n(self, tags):
        idx = [i for i, t in enumerate(self.vm) if t in tags]
        if not idx: return None
        return min(63, len(self.vm) - 1 - max(idx))
    def ds_n(self, tags):
        idx = [i for i, t in enumerate(self.ds) if t in tags]
        if not idx: return None
        return min(15, len(self.ds) - 1 - max(idx))
    def wait(self, vm=None, ds=None, vmn=None, dsn=None):
        a = self.vm_n(vm) if vm else None
        b = self.ds_n(ds) if ds else None
        if vmn is not None: a = vmn if a is None else min(a, vmn)
        if dsn is not None: b = dsn if b is None else min(b, dsn)
        p = []
        if a is not None:
            p.append(f"vmcnt({a})"); self.vm = self.vm[len(self.vm) - a:] if a else []
        if b is not None:
            p.append(f"lgkmcnt({b})"); self.ds = self.ds[len(self.ds) - b:] if b else []
        if p: self("s_waitcnt " + " ".join(p))
    def op(self, o):
        if isinstance(o, str): self(o); return
        if o[1] == "vm": self.vm.append(o[2]); self.nvm += 1
        elif o[1] == "mark": self.mark[o[2]] = self.nvm
        elif o[1] == "call": o[2](self); return
        elif o[1] == "ds": self.ds.append(o[2])
        elif o[1] == "wait": self.wait(**o[2]); return
        self(o[0])

def vr(b, n=1): return f"v{b}" if n == 1 else f"v[{b}:{b+n-1}]"
def ar(b, n=1): return f"a{b}" if n == 1 else f"a[{b}:{b+n-1}]"
def sr(b, n=4): return f"s[{b}:{b+n-1}]"
def f32bits(x): return struct.unpack("<I", struct.pack("<f", x))[0]
MF = "v_mfma_f32_16x16x32_bf16"

def kd(k, vgpr=512, acc=256, sgpr=102):
    return f""".section .rodata,"a"
.p2align 6
.amdhsa_kernel {k}
  .amdhsa_next_free_vgpr {vgpr}
  .amdhsa_next_free_sgpr {sgpr}
  .amdhsa_accum_offset {acc}
  .amdhsa_group_segment_fixed_size 0
  .amdhsa_kernarg_size 104
  .amdhsa_user_sgpr_count 2
  .amdhsa_user_sgpr_kernarg_segment_ptr 1
  .amdhsa_system_sgpr_workgroup_id_x 1
.end_amdhsa_kernel
.text
"""
def kstart(k): return f".globl {k}\n.p2align 8\n.type {k},@function\n{k}:\n"

WOF_OFF = 48 << 20
STAMP_WS_OFF = 128 << 20
QDUMP_WS_OFF = 64 << 20
sTW = 65
sXI, sXO = 78, 79

sX, sW, sK, sV, sO = 8, 12, 16, 20, 24
sWAVE, sKVW, sVVW, sWQW, sKOFF, sVOFF, sXW, sLOOP, sUNIT, sT, sTHR, sT3 = range(28, 40)
sSC, sOOF, sFB, sT2, sGI, sWS = 40, 42, 43, 44, 45, 46
sSTAMP, sRSTAMP = 48, 64
sCNT, sDBG, sWOI, sWOF, sOUT = 80, 84, 88, 92, 96
sM = 100
vAK, vAV, vOKV, vOO, vTMP = 1, 5, 13, 14, 15
vIDX, vPOLL, aPOLL = 15, 30, 222
vNEGM, vS, vP, vO = 16, 32, 96, 128
aQ, aQ2, aKF, aVF, aL, aONE = 0, 64, 128, 160, 192, 208
KBASE, VBASE, WQBASE, FBBASE = 0, 65536, 98304, 131072
XB = (16384, 49152)
FLAG_OFF = 60 << 20
sFLG, sSTUB = 84, sFB

def S(buf, qb, kb): return vS + buf * 32 + (qb * 2 + kb) * 4
def P(buf, qb): return vP + buf * 16 + qb * 4
def NEGM(qb): return vNEGM + qb * 4
def Q(qb, s): return aQ + (qb * 4 + s) * 4
def OA(db, qb): return vO + (qb * 8 + db) * 4
def LA(qb): return aL + qb * 4
vL = 252
def OAT(db, qb): return ar(aL, 4) if O.vsum and (db, qb) == (7, 3) else vr(OA(db, qb), 4)

nstamp = [0]
stamp_names = []
def stamp(A, name, mode=0):
    if not O.stamps or (mode != O.stm and name != "t0"): return
    i = nstamp[0]; nstamp[0] += 1; stamp_names.append(name)
    assert i < 7
    A(f"s_memtime s[{sSTAMP+2*i}:{sSTAMP+2*i+1}]")
    r = 62 if i == 0 else sRSTAMP + 2 * i
    A(f"s_memrealtime s[{r}:{r+1}]")

def cost(o):
    t = o if isinstance(o, str) else o[0]
    if t.endswith(":"): return 0
    if not isinstance(o, str) and o[1] in ("wait", "call"): return 0
    if t.startswith(("v_exp", "v_rcp")): return 8
    if t.startswith("buffer_"): return 8
    if t.startswith("s_nop"): return 4 * (int(t.split()[1]) + 1)
    if t.startswith("v_cvt_pk") or t.startswith("v_max3") or t.startswith("v_perm"): return 5
    if t.startswith("v_pk_"): return 8
    return 4

def interleave(A, mf, fixed=None, stream=(), pre=None, budget=None, need=None):
    budget = O.budget if budget is None else budget
    fixed = fixed or {}; pre = pre or {}; need = need or {}
    st = list(stream); si = 0; debt = 0
    for g in range(len(mf)):
        for t in pre.get(g, []): A.op(t)
        if g in need: A.wait(ds=need[g])
        A(mf[g])
        fx = fixed.get(g, [])
        room = budget - sum(cost(o) for o in fx) - debt
        for o in fx: A.op(o)
        while si < len(st):
            o, at = st[si] if isinstance(st[si], list) else (st[si], 0)
            if at > g: break
            c = cost(o)
            if room <= 0 or (c > room + 1): break
            A.op(o); room -= c; si += 1
        debt = 0
    while si < len(st):
        o = st[si][0] if isinstance(st[si], list) else st[si]
        A.op(o); si += 1

NT_KV = lambda: [" nt", "", " sc1", " sc1 nt", " sc0 sc1 nt", " sc0 nt", " sc0 sc1"][O.kvfl]
SC1 = lambda: " sc1" if O.o_sc1 else ""
OFL = lambda: ["", " sc1", " sc0 sc1", " nt", " sc1 nt", " sc0 sc1 nt"][O.outfl]
def adv(off): return f"s_add_u32 s{off}, s{off}, 0x4000"
def vphys(ring): return (ring + 1) & 3
def dma_k(ring, tag):
    return (f"s_add_u32 m0, s{sKVW}, {ring*16384}",
            [(f"buffer_load_dwordx4 {vr(vOKV)}, {sr(sK)}, s{sKOFF} offen offset:{p*1024}{NT_KV()} lds", "vm", tag) for p in range(4)],
            adv(sKOFF))
def dma_v(ring, tag):
    return (f"s_add_u32 m0, s{sVVW}, {vphys(ring)*16384}",
            [(f"buffer_load_dwordx4 {vr(vOKV)}, {sr(sV)}, s{sVOFF} offen offset:{p*1024}{NT_KV()} lds", "vm", tag) for p in range(4)],
            adv(sVOFF))
def k_reads(ring, h, dst=aKF):
    return [(f"ds_read_b128 {ar(dst+(kb*4+s)*4,4)}, {vr(vAK+s)} offset:{ring*16384+(2*h+kb)*1024}", "ds", ("F", dst + (kb*4+s)*4))
            for kb in range(2) for s in range(4)]
def v_reads(ring, h):
    return [(f"ds_read_b64_tr_b16 {ar(aVF+db*4+2*jh,2)}, {vr(vAV+db)} offset:{vphys(ring)*16384+h*2048+jh*1024}", "ds", ("F", aVF + db*4))
            for db in range(8) for jh in range(2)]
def pv_mf(buf, zero=False, qbmajor=False):
    r = []
    def pv(db, qb): return (f"{MF} {OAT(db,qb)}, {ar(aVF+db*4,4)}, {vr(P(buf,qb),4)}, {'0' if zero else OAT(db,qb)}", aVF + db*4, qb)
    def sm(qb): return (f"{MF} {ar(LA(qb),4)}, {ar(aONE,4)}, {vr(P(buf,qb),4)}, {'0' if zero else ar(LA(qb),4)}", None, qb)
    def sm2(pr): return (f"v_smfmac_f32_16x16x64_bf16 {ar(LA(pr),4)}, {ar(aONE,4)}, {vr(P(buf,2*pr),8)}, {vr(vIDX)}", None, 2 * pr)
    if qbmajor:
        for qb in range(4):
            if O.smf:
                if not qb & 1: r.append(sm2(qb >> 1))
            elif not O.vsum: r.append(sm(qb))
            r += [pv(db, qb) for db in range(8)]
    else:
        for db in range(8):
            r += [pv(db, qb) for qb in range(4)]
            if O.smf:
                if db in O.smpos_: r.append(sm2(O.smpos_.index(db)))
            elif db & 1 and not O.vsum: r.append(sm(db >> 1))
    return r
def qk_mf(buf, zero=False, kf=aKF):
    r = []
    for qb in range(4):
        for kb in range(2):
            for s in range(4):
                c = vr(S(buf,qb,kb),4) if s else ("0" if zero else vr(NEGM(qb),4))
                r.append((f"{MF} {vr(S(buf,qb,kb),4)}, {ar(kf+(kb*4+s)*4,4)}, {ar(Q(qb,s),4)}, {c}", kf + (kb*4+s)*4, qb))
    return r
def ex(b, e): return f"v_exp_f32 {vr(vS+b*32+e)}, {vr(vS+b*32+e)}"
def cv(b, i): return f"v_cvt_pk_bf16_f32 {vr(vP+b*16+i)}, {vr(vS+b*32+2*i)}, {vr(vS+b*32+2*i+1)}"
def ad(b, e): return f"v_add_f32 {vr(vL+(e>>3))}, {vr(vL+(e>>3))}, {vr(vS+b*32+e)}"
def needs(mfs, group=2):
    nd = {}; seen = []
    for g, m in enumerate(mfs):
        if m[1] is not None and m[1] not in seen: seen.append(m[1]); nd[g] = m[1]
    items = sorted(nd.items())
    out = {}
    for i in range(0, len(items), group):
        out[items[i][0]] = [("F", t) for _, t in items[i:i + group]]
    return out
def lastuse(mfs):
    lu = {}
    for g, m in enumerate(mfs):
        if m[1] is not None: lu[m[1]] = g
    return lu

def barrier_ops(cls, g, pre, gaps, vmtags=None, first=False):
    w = ("", "wait", dict(vmn=O.vmn + (O.fuse and O.wopre == 250 and not first), dsn=0) if vmtags is None else dict(vm=vmtags, dsn=0))
    if cls == 0: pre[g] = [w, "s_barrier"]
    else:
        pre[g] = [w]; gaps[g].insert(0, "s_barrier")

def is_vm(o): return not isinstance(o, str) and o[1] == "vm"
def slot(A, p, cls, tag, zero=False, tail=(), groups=None, vmtags=None, after_bar=()):
    D = O.D; even = (p & 1) == 0; buf = p & 1; t_ = p >> 1
    A.c(f"---- slot {tag} pos={p} cls={cls}")
    kr = k_reads(((p + 1) >> 1) & 3, (p + 1) & 1)
    vq = v_reads(t_ & 3, p & 1)
    pvm = pv_mf(buf ^ 1, zero); mfs = pvm + qk_mf(buf ^ 1)
    n = len(mfs); npv = len(pvm)
    gaps = {g: [] for g in range(n)}; pre = {}
    seq = [(buf, e) for e in range(D, 32)] + [(buf ^ 1, e) for e in range(D)]
    eg = [2 * i for i in range(32 - D)] + [n - 64 + 2 * i for i in range(32 - D, 32)]
    for g, (b, e) in zip(eg, seq): gaps[g].append(ex(b, e))
    free = [g for g in range(n) if g not in eg]
    cvg = {g + 1: cv(b, e >> 1) for g, (b, e) in zip(eg, seq) if e & 1}
    for g, t in zip(free[:8], kr): gaps[g].append(t)
    lu = lastuse(pvm)
    pre[0] = [("", "wait", dict(dsn=0))]
    if O.trace and groups is None:
        pre[0] += ["s_mov_b64 exec, s[52:53]", "v_mov_b32 v0, s50", "s_mov_b64 exec, -1", "s_lshl_b64 s[52:53], s[52:53], 1"]
        gaps[n - 3].append("s_memrealtime s[50:51]")
    if groups is None:
        kg = dma_k(t_ & 3, "KV"); vg = dma_v((t_ + 3) & 3, "KV")
        if even: flat = [kg[0]] + kg[1] + [vg[0], kg[2]] + (vg[1] + [vg[2]] if O.burst == 1 else [])
        else: flat = vg[1] + [vg[2]] if O.burst == 2 else []
        if O.fuse and O.wopre == 250 and p in (1, 5):
            flat = flat + [(f"buffer_load_dwordx4 {ar(224,4)}, {vr(vOO)}, {sr(sW)}, s{sTW} offen{' nt' if O.wopre_nt else ''}", "vm", "WOP"), f"s_add_u32 s{sTW}, s{sTW}, 1024", f"s_min_u32 s{sTW}, s{sTW}, s{sTW-1}"]
    else:
        flat = [o for grp in groups for o in grp]
    dm = [o for o in flat if is_vm(o)]
    bar = O.bar if even else 15
    if even:
        barrier_ops(cls, bar, pre, gaps, vmtags)
        if after_bar: pre[bar + 1] = list(after_bar)
    rest = [g for g in free if g > bar]
    if O.vlate:
        gaps[n - 1] += vq[len(vq) - O.vlate:]; vq = vq[:len(vq) - O.vlate]
        rest = [g for g in rest if g != n - 1]
    lack = len(dm) + len(vq) - len(rest)
    xg = set()
    if lack > 0:
        cand = [g for g in eg if g > bar + 4]
        xg = {cand[(q * len(cand)) // lack + len(cand) // (2 * lack)] for q in range(lack)}
        rest = sorted(rest + list(xg))
    dg = []; k = 0
    while dm or vq:
        g = rest.pop(0)
        vok = vq and lu[vq[0][2][1]] <= g
        if g in xg and vok: gaps[g].append(vq.pop(0)); continue
        if dm and k % O.dper == 0 and g in cvg and vok: gaps[g].append(vq.pop(0)); continue
        if dm and (k % O.dper == 0 or not vok) and g not in cvg: gaps[g].append(dm.pop(0)); dg.append(g)
        elif vok: gaps[g].append(vq.pop(0))
        elif dm: gaps[g].append(dm.pop(0)); dg.append(g)
        k += 1
    small = []
    nv = 0
    for o in flat:
        if is_vm(o): nv += 1; continue
        lo = dg[nv - 1] if nv else 16
        hi = n - 1 if ("0x4000" in o or nv == len(dg)) else dg[nv] - 1
        small.append((o, lo, hi))
    if not even: small.append((("", "wait", dict(ds=[o[2] for o in kr])), 24, npv - 1))
    for g, o in cvg.items(): gaps[g].append(o)
    if O.vsum:
        for g, (b, e) in zip(eg, seq): gaps[g + 1].append(ad(b, e))
    def used(g): return sum(4 if (not isinstance(o, str) and o[1] == "wait") else cost(o) for o in gaps[g]) + 4 * len(pre.get(g + 1, []))
    prev = (None, 0)
    for o, lo, hi in small:
        key = (lo, hi)
        if prev[0] == key: lo = prev[1]
        c = [g for g in range(lo, hi + 1) if used(g) <= 5]
        if not c: c = sorted(range(lo, hi + 1), key=used)
        gaps[c[0]].append(o); prev = (key, c[0])
    for q in range(O.pad): gaps[1 + (q * 62) // O.pad // 2 * 2 + 1].append("s_nop 1")
    if O.upad and groups is None:
        lb = f"L_up_{tag}"
        gaps[n - 1] += [f"s_lshl_b32 s3, s{sUNIT}, 2", f"s_sub_u32 s3, s3, s{sLOOP}", "s_add_u32 s3, s3, 3", f"s_cmp_ge_u32 s3, {O.upadm}", f"s_cbranch_scc1 {lb}"] + ["s_nop 7"] * O.upad + [lb + ":"]
    gaps[n - 1] += list(tail)
    interleave(A, [m[0] for m in mfs], gaps, pre=pre)

def max_chain(qb, buf, t0, t1, run=None):
    s = S(buf, qb, 0)
    st = [f"v_max3_f32 {vr(t0)}, {vr(s)}, {vr(s+1)}, {vr(s+2)}", f"v_max3_f32 {vr(t1)}, {vr(s+3)}, {vr(s+4)}, {vr(s+5)}",
          f"v_max3_f32 {vr(t0)}, {vr(t0)}, {vr(s+6)}, {vr(s+7)}"]
    if run is not None: return st + [f"v_max3_f32 {vr(run)}, {vr(run)}, {vr(t0)}, {vr(t1)}"]
    return st + [f"v_max_f32 {vr(t0)}, {vr(t0)}, {vr(t1)}"]
def xlane_max(t0, t1):
    return [f"v_mov_b32 {vr(t1)}, {vr(t0)}", "s_nop 1", f"v_permlane32_swap_b32 {vr(t0)}, {vr(t1)}", "s_nop 0", f"v_max_f32 {vr(t0)}, {vr(t0)}, {vr(t1)}",
            f"v_mov_b32 {vr(t1)}, {vr(t0)}", "s_nop 1", f"v_permlane16_swap_b32 {vr(t0)}, {vr(t1)}", "s_nop 0", f"v_max_f32 {vr(t0)}, {vr(t0)}, {vr(t1)}"]

def first_slot(A, cls):
    D = O.D
    A.c(f"---- first slot cls={cls}")
    for o in k_reads(0, 0, dst=aVF) + k_reads(0, 1): A.op(o)
    mfs = qk_mf(0, zero=True, kf=aVF) + qk_mf(1)
    gaps = {g: [] for g in range(64)}; pre = {}
    bar = 8
    barrier_ops(cls, bar, pre, gaps, first=True)
    kg = dma_k(0, "KV"); vg = dma_v(3, "KV")
    gaps[bar - 2].append(kg[0])
    dm = kg[1] + (vg[1] if O.burst == 1 else [])
    for i, o in enumerate(dm):
        gaps[bar + 1 + i].append(o)
        if i == 3: gaps[bar + 1 + i].append(vg[0])
    gaps[7].append(kg[2]) if False else None
    st = []
    tA = [vO + 2 * q for q in range(4)]
    for qb in range(4):
        t0, t1 = tA[qb], tA[qb] + 1
        ch = max_chain(qb, 0, t0, t1) + xlane_max(t0, t1)
        ch += [f"v_sub_f32 {vr(NEGM(qb)+r)}, 0, {vr(t0)}" for r in range(4)]
        ch += [f"v_sub_f32 {vr(S(0,qb,0)+r)}, {vr(S(0,qb,0)+r)}, {vr(t0)}" for r in range(8)]
        st.append([ch[0], 8 * qb + 7 + 8]); st += ch[1:]
    sm = []
    for e in range(32):
        sm.append(ex(0, e))
        if e >= 2 and not (e & 1): sm.append(cv(0, (e >> 1) - 1))
        if O.vsum and e >= 2:
            if (e - 2) & 7 == 0: sm.append(f"v_add_f32 {vr(vL+((e-2)>>3))}, {vr(vS+e-2)}, {vr(vS+e-1)}")
            elif (e - 2) & 7 != 1: sm.append(ad(0, e - 2))
    sm += ["s_nop 0", cv(0, 15)]
    if O.vsum: sm += [ad(0, 30), ad(0, 31)]
    vq = v_reads(0, 0)
    for i, o in enumerate(vq): gaps[33 + i * 2 - (i // 8) * 0 if 33 + 2 * i < 64 else 63].append(o)
    post = [kg[2]] + ([vg[2]] if O.burst == 1 else [])
    if O.smf: post += [f"v_accvgpr_write_b32 {ar(aL+q)}, 0" for q in range(8)]
    nd = needs(mfs)
    nch = len(st) // 4
    m = [x[0] for x in mfs]
    def sub(d, lo, hi): return {g - lo: v for g, v in d.items() if lo <= g < hi}
    def shift(s, lo): return [[x[0], x[1] - lo] if isinstance(x, list) else x for x in s]
    segs = [(0, 32, st[:nch]), (32, 40, st[nch:2*nch]), (40, 48, st[2*nch:3*nch]), (48, 56, st[3*nch:]), (56, 64, [])]
    carry = []
    allst = st + post + sm
    pos = 0
    marks = {32: nch, 40: 2 * nch, 48: 3 * nch, 56: 4 * nch}
    for g in range(64):
        if g in marks:
            while pos < marks[g]:
                o = allst[pos][0] if isinstance(allst[pos], list) else allst[pos]
                A.op(o); pos += 1
            A("s_nop 1")
        for t in pre.get(g, []): A.op(t)
        if g in nd: A.wait(ds=nd[g])
        A(m[g])
        room = O.budget - sum(cost(o) for o in gaps[g])
        for o in gaps[g]: A.op(o)
        while pos < len(allst):
            o, at = allst[pos] if isinstance(allst[pos], list) else (allst[pos], 0)
            if at > g or room <= 0 or cost(o) > room + 1: break
            A.op(o); room -= cost(o); pos += 1
    while pos < len(allst):
        A.op(allst[pos]); pos += 1
    for e in range(D):
        A(ex(1, e))
        if e >= 2 and not (e & 1): A(cv(1, (e >> 1) - 1))
    A("s_nop 0"); A(cv(1, D // 2 - 1))
    if O.vsum:
        for e in range(D): A(ad(1, e))
    A("s_nop 1")

def o_store(reg, qb, t, tag, so):
    return (f"buffer_store_dwordx4 {reg}, {vr(vOO)}, {sr(sO)}, s{so} offen offset:{t*1024}{' sc1' if O.st_sc1 else ''}", "vm", tag)
def row_sums():
    st = []
    for sw in ("v_permlane32_swap_b32", "v_permlane16_swap_b32"):
        st += [f"v_mov_b32 {vr(vP+2*q+1)}, {vr(vL+q)}" for q in range(4)]
        st += [f"{sw} {vr(vL+q)}, {vr(vP+2*q+1)}" for q in range(4)]
        st += [f"v_add_f32 {vr(vL+q)}, {vr(vL+q)}, {vr(vP+2*q+1)}" for q in range(4)]
    st += [f"v_rcp_f32 {vr(vP+2*q)}, {vr(vL+q)}" for q in range(4)]
    if O.chk:
        st += [f"v_max3_f32 {vr(vP+1)}, {vr(vL)}, {vr(vL+1)}, {vr(vL+2)}"]
        for q in (vP + 1, vL + 3): st += [f"v_cmp_nle_f32 vcc, {vr(q)}, s{sTHR}", f"s_or_b64 s[{sM}:{sM+1}], s[{sM}:{sM+1}], vcc"]
    return st
def epi_qb(qb, store):
    so = [f"s_add_u32 s{sT}, s{sOOF}, {qb*131072}"]
    if O.vsum:
        inv = vP + 2 * qb
        st = so + ([f"v_accvgpr_read_b32 {vr(vL+q)}, {ar(aL+q)}" for q in range(4)] if qb == 3 else [])
    else:
        inv = vP + 2 * (qb & 1)
        st = [f"v_accvgpr_read_b32 {vr(inv+1)}, {ar(LA(qb))}", f"v_rcp_f32 {vr(inv)}, {vr(inv+1)}"]
        if O.smf: st = [f"v_accvgpr_read_b32 {vr(inv+q)}, {ar(aL+2*qb+q)}" for q in range(2)] + [f"v_add_f32 {vr(inv+1)}, {vr(inv)}, {vr(inv+1)}", st[1]]
        if O.chk: st += [f"v_cmp_nle_f32 vcc, {vr(inv+1)}, s{sTHR}"]
        st += so
        if O.chk: st += [f"s_or_b64 s[{sM}:{sM+1}], s[{sM}:{sM+1}], vcc"]
    for t in range(4):
        o = OA(2 * t, qb)
        st += [f"v_pk_mul_f32 {vr(o+2*i,2)}, {vr(o+2*i,2)}, {vr(inv,2)} op_sel_hi:[1,0]" for i in range(4)]
        d = vS + (qb * 4 + t) * 4
        st += [f"v_cvt_pk_bf16_f32 {vr(d+i)}, {vr(o+2*i)}, {vr(o+2*i+1)}" for i in range(4)]
        if store: st.append(o_store(vr(d, 4), qb, t, "ST", sT))
    return st

def last_slot(A, store, extra1=(), mid=None, extra2=()):
    D = O.D
    A.c("---- last slot + final PV + epilogue")
    pvm = pv_mf(0); n = len(pvm); nq = n // 4
    gaps = {g: [] for g in range(n)}
    lu = lastuse(pvm)
    for i, o in enumerate(v_reads(3, 1)):
        g = min(n - 1, lu[o[2][1]] + 1 + (i & 1)); gaps[g].append(o)
    sm = []
    for e in range(D, 32):
        sm.append(ex(1, e))
        if e > D and not (e & 1): sm.append(cv(1, (e >> 1) - 1))
        if O.vsum and e > D: sm.append(ad(1, e - 1))
    sm += ["s_nop 0", cv(1, 15)] + ([ad(1, 31)] if O.vsum else []) + ["s_nop 1"]
    ex_ = list(extra1)
    for g in range(0, n):
        if ex_ and not gaps[g]: gaps[g] += ex_.pop(0)
    assert not ex_
    A(f"s_mov_b64 s[{sM}:{sM+1}], 0")
    interleave(A, [m[0] for m in pvm], gaps, stream=sm, need=needs(pvm))
    if mid: mid()
    fin = pv_mf(1, qbmajor=True)
    st = row_sums() if O.vsum else []
    for qb in range(4):
        e = epi_qb(qb, store)
        k = 1 if O.vsum and qb < 3 else 0
        if qb == 3: st.append("s_nop 7")
        st += e[:k]; st.append([e[k], max(g for g, m in enumerate(fin) if m[2] == qb) + 8]); st += e[k+1:]
    gaps = {g: [] for g in range(n)}
    ex_ = list(extra2)
    for g in range(0, n):
        if ex_ and (g < 16 or g % 2 == 0): gaps[g] += ex_.pop(0)
    assert not ex_
    interleave(A, [m[0] for m in fin], gaps, stream=st, need=needs(fin, group=8))

def fallback(A):
    A.label("L_fb")
    lane, g, i, r, ka, kb_, va, vd, t0, t1 = range(64, 74)
    run = 76
    A("s_waitcnt vmcnt(0) lgkmcnt(0)"); A("s_nop 7")
    A(f"v_mbcnt_lo_u32_b32 {vr(lane)}, -1, 0"); A(f"v_mbcnt_hi_u32_b32 {vr(lane)}, -1, {vr(lane)}")
    A(f"v_lshrrev_b32 {vr(g)}, 4, {vr(lane)}"); A(f"v_and_b32 {vr(i)}, 15, {vr(lane)}")
    A(f"v_and_b32 {vr(t0)}, 1, {vr(g)}"); A(f"v_lshlrev_b32 {vr(t0)}, 1, {vr(t0)}"); A(f"v_lshrrev_b32 {vr(t1)}, 1, {vr(g)}")
    A(f"v_or_b32 {vr(t0)}, {vr(t0)}, {vr(t1)}"); A(f"v_lshlrev_b32 {vr(t0)}, 4, {vr(t0)}")
    A(f"v_lshl_add_u32 {vr(ka)}, {vr(i)}, 8, {vr(t0)}"); A(f"v_add_u32 {vr(kb_)}, 4096, {vr(ka)}")
    A(f"v_lshlrev_b32 {vr(vd)}, 4, {vr(lane)}")
    A(f"s_lshl_b32 s{sT3}, s{sWAVE}, 13"); A(f"s_add_u32 s{sT3}, s{sT3}, {FBBASE}")
    if O.fuse: A(f"s_cmp_eq_u32 s{sUNIT}, 0"); A(f"s_cselect_b32 s{sT3}, s{sT3}, s{sWM+3}")
    A(f"v_lshrrev_b32 {vr(r)}, 2, {vr(i)}"); A(f"v_lshl_add_u32 {vr(t0)}, {vr(g)}, 2, {vr(r)}"); A(f"v_lshlrev_b32 {vr(t0)}, 8, {vr(t0)}")
    A(f"v_and_b32 {vr(t1)}, 3, {vr(i)}"); A(f"v_lshl_add_u32 {vr(t0)}, {vr(t1)}, 3, {vr(t0)}"); A(f"v_add_u32 {vr(va)}, s{sT3}, {vr(t0)}")
    def kload():
        for kb in range(2):
            for s in range(4):
                A(f"buffer_load_dwordx4 {ar(aKF+(kb*4+s)*4,4)}, {vr(kb_ if kb else ka)}, {sr(sK)}, s{sT} offen offset:{s*64}")
    for q in range(4): A(f"v_mov_b32 {vr(run+q)}, 0xff800000")
    A(f"s_lshl_b32 s{sT}, s{sUNIT}, 18"); A(f"s_add_u32 s{sT2}, s{sT}, 0x40000")
    A.label("L_fb1")
    kload(); A("s_waitcnt vmcnt(0)")
    for m in qk_mf(0, zero=True): A(m[0])
    A("s_nop 7")
    for q in range(4):
        for o in max_chain(q, 0, t0, t1, run=run + q): A(o)
    A(f"s_add_u32 s{sT}, s{sT}, 0x2000"); A(f"s_cmp_lt_u32 s{sT}, s{sT2}"); A("s_cbranch_scc1 L_fb1")
    for q in range(4):
        for o in xlane_max(run + q, t1): A(o)
        for rr in range(4): A(f"v_sub_f32 {vr(NEGM(q)+rr)}, 0, {vr(run+q)}")
    for k in range(128): A(f"v_mov_b32 {vr(vO+k)}, 0")
    for k in range(16): A(f"v_accvgpr_write_b32 {ar(aL+k)}, 0")
    A(f"s_lshl_b32 s{sT}, s{sUNIT}, 18")
    A.label("L_fb2")
    kload()
    for hf in range(2):
        A(f"s_add_u32 m0, s{sT3}, {hf*4096}"); A(f"s_add_u32 s3, s{sT}, {hf*4096}")
        for p in range(4): A(f"buffer_load_dwordx4 {vr(vd)}, {sr(sV)}, s3 offen offset:{p*1024} lds")
    A("s_waitcnt vmcnt(0)")
    for db in range(8):
        for jh in range(2): A(f"ds_read_b64_tr_b16 {ar(aVF+db*4+2*jh,2)}, {vr(va)} offset:{db*32+jh*4096}")
    for m in qk_mf(0): A(m[0])
    A("s_nop 7")
    for e in range(32): A(ex(0, e))
    A("s_nop 0")
    for k in range(16): A(cv(0, k))
    if O.vsum:
        for e in range(32): A(ad(0, e))
    A("s_waitcnt lgkmcnt(0)"); A("s_nop 1")
    for m in pv_mf(0): A(m[0])
    A(f"s_add_u32 s{sT}, s{sT}, 0x2000"); A(f"s_cmp_lt_u32 s{sT}, s{sT2}"); A("s_cbranch_scc1 L_fb2")
    A("s_nop 7")
    if O.vsum:
        for o in row_sums(): A(o)
    for qb in range(4):
        for o in epi_qb(qb, False): A(o)
    if O.fuse: A(f"s_cmp_eq_u32 s{sUNIT}, 0"); A("s_cbranch_scc1 L_fbret0")
    for qb in range(4):
        A(f"s_add_u32 s{sT}, s{sOOF}, {qb*131072}")
        for t in range(4): A(o_store(vr(vS + (qb * 4 + t) * 4, 4), qb, t, "ST", sT)[0])
    if not O.fuse: A(f"s_cmp_eq_u32 s{sUNIT}, 0"); A("s_cbranch_scc1 L_fbret0")
    if O.fuse: oproj_setup(A)
    A("s_branch L_fbret1")

def srd(A, d, lo, hi, off, size):
    A(f"s_add_u32 s{d}, s{lo}, {off}"); A(f"s_addc_u32 s{d+1}, s{hi}, 0"); A(f"s_and_b32 s{d+1}, s{d+1}, 0xffff")
    A(f"s_mov_b32 s{d+2}, {size}"); A(f"s_mov_b32 s{d+3}, 0x20000")

def one_lane(A, val, text, tag):
    A(f"v_mov_b32 v0, {val}"); A("s_mov_b64 exec, 1")
    A.op((text, "vm", tag))
    A("s_mov_b64 exec, -1")
def flag_ops(val, name):
    return [f"s_cmp_lg_u32 s{sWAVE}, 0", f"s_cbranch_scc1 L_np_{name}", f"v_mov_b32 v0, {val}", "s_mov_b64 exec, 1",
            f"buffer_store_byte v0, off, {sr(sCNT)}, s{sGI} sc1", "s_mov_b64 exec, -1", f"L_np_{name}:"]
def poll_text(): return f"buffer_load_dword v0, {vr(vPOLL)}, {sr(sCNT)}, 0 offen sc1"
def poll_ops(name): return [f"s_cmp_lg_u32 s{sWAVE}, 0", f"s_cbranch_scc1 L_np_{name}", (poll_text(), "mark", name), f"L_np_{name}:"]
spins = []
def poll_test(A, mask, own):
    A(f"v_or_b32 v0, v0, {vr(own)}"); A(f"v_and_b32 v0, {hex(mask)}, v0"); A(f"v_cmp_ne_u32 vcc, {hex(mask)}, v0")
def poll_check(A, mask, name, own, mark):
    A(f"s_cmp_lg_u32 s{sWAVE}, 0"); A(f"s_cbranch_scc1 L_spun_{name}")
    A(f"s_waitcnt vmcnt({min(63, A.nvm - A.mark[mark])})")
    poll_test(A, mask, own); A(f"s_cbranch_vccnz L_spin_{name}")
    A.label(f"L_spun_{name}")
    spins.append((mask, name, own))
def emit_spins(A):
    for mask, name, own in spins:
        A.label(f"L_spin_{name}")
        A("s_mov_b32 s3, 0x40000")
        A.label(f"L_spinl_{name}")
        A(poll_text()); A("s_waitcnt vmcnt(0)")
        poll_test(A, mask, own); A(f"s_cbranch_vccz L_spun_{name}")
        A("s_sub_u32 s3, s3, 1"); A("s_cmp_lg_u32 s3, 0"); A(f"s_cbranch_scc1 L_spinl_{name}")
        A(f"s_branch L_spun_{name}")

PIECE = [[13, 14, 15, 0], [1, 2, 8, 9], [3, 10, 4, 5], [6, 7, 11, 12]]
X_OFF = 40 << 20
aWD = 212
vOQ, vWD, vOWN, vOWX = 16, 18, 28, 29
sWB, sR13, sWM, sWT = sWQW, sXW, 92, 84
def slab_c(j): return ((j & 7) << 13) | ((j >> 3) << 12)
def slab_o(j): return slab_c(j & 1) if O.ofake else slab_c(j)
def w_dma(j, hf, early=False):
    jw = j & 1 if O.wfake else j
    r = [[f"s_add_u32 s{sT2}, s{sWT+(jw&7)}, {(jw>>3)*163840}", f"s_add_u32 m0, s{sWM+(j&3)}, {hf*4096}"]]
    for p in range(5):
        v = vWD + hf * 5 + p
        if early:
            v = vOKV
            r[-1].append(f"v_accvgpr_read_b32 {vr(v)}, {ar(aWD+hf*5+p)}")
        if p == 4: r[-1].append(f"s_add_u32 m0, s{sWM+(j&3)}, 8192")
        r.append([(f"buffer_load_dwordx4 {vr(v)}, {sr(sW)}, s{sT2} offen offset:{(p if p < 4 else hf)*1024}{['', ' sc1', ' nt', ' sc0 sc1', ' sc0'][O.wofl]} lds", "vm", ("W", j))])
    return r
OPH = [2, 3, 7, 0, 1, 4, 5, 6]
def OF(j, kk, qq): return OPH[j & 7] * 32 + (kk * 2 + qq) * 4
def o_ld(j):
    r = [[f"s_xor_b32 s4, s{sR13}, {slab_o(j)}"]]
    for kk in range(4):
        for qq in range(2):
            r.append([(f"buffer_load_dwordx4 {ar(OF(j,kk,qq),4)}, {vr(vOQ+qq)}, {sr(sX)}, s4 offen offset:{kk*1024}{SC1()}", "vm", ("O", j))])
    r[1] = r[0] + r[1]
    return r[1:]
def mbox(op, reg, so, tag):
    r = [[(f"buffer_{op}_dwordx4 {reg(t)}, {vr(vOO)}, {sr(sO)}, s{so if t < 4 else sT} offen offset:{(t&3)*1024} sc1", "vm", tag)] for t in range(5)]
    r[3].append(f"s_add_u32 s{sT}, s{so}, 4096")
    return r
def oproj_early(A, tb):
    lane, t0, t1, t2 = range(tb, tb + 4)
    A(f"s_bfe_u32 s3, s7, 0x10002"); A(f"s_lshr_b32 s4, s7, 3")
    A(f"s_lshr_b32 s{sT}, s{sGI}, 4"); A(f"s_lshl_b32 s{sT}, s{sT}, 22")
    A(f"s_lshl_b32 s{sT2}, s3, 20"); A(f"s_add_u32 s{sT}, s{sT}, s{sT2}"); A(f"s_lshl_b32 s{sT2}, s4, 16"); A(f"s_add_u32 s{sT}, s{sT}, s{sT2}")
    srd(A, sX, sWS, sWS + 1, f"s{sT}", "0xf0000")
    A(f"s_mov_b64 s[{sW}:{sW+1}], s[{sWOI}:{sWOI+1}]"); A(f"s_mov_b32 s{sW+2}, 5242880")
    A(f"s_lshl_b32 s{sT}, s4, 6"); A(f"s_add_u32 s{sT}, s{sT}, s{sWAVE}"); A(f"s_mul_i32 s{sWB}, s{sT}, 40960")
    A(f"s_and_b32 s{sT}, s7, 3"); A(f"s_mul_i32 s{sT}, s{sT}, {256 if O.walign else 320}"); A(f"s_add_u32 s{sWB}, s{sWB}, s{sT}")
    if O.own1: A(f"s_and_b32 s{sR13}, s7, 7"); A(f"s_lshl_b32 s{sR13}, s{sR13}, 13")
    else: A(f"s_mov_b32 s{sR13}, 0")
    for j in range(8):
        A(f"s_xor_b32 s{sT}, s{sR13}, {slab_c(j)}"); A(f"s_mul_i32 s{sT}, s{sT}, 40"); A(f"s_add_u32 s{sWT+j}, s{sT}, s{sWB}")
    A(f"s_lshl_b32 s{sT}, s{sWAVE}, 2")
    for sl in range(4):
        A(f"s_lshr_b32 s{sT2}, {hex(sum(PIECE[sl][w] << (4 * w) for w in range(4)))}, s{sT}"); A(f"s_and_b32 s{sT2}, s{sT2}, 15")
        A(f"s_mul_i32 s{sWM+sl}, s{sT2}, 10240")
    A(f"v_bfe_u32 {vr(lane)}, {vr(vOO)}, 4, 6")
    A(f"s_and_b32 s3, s7, 1"); A(f"s_xor_b32 s4, s4, 1")
    A(f"v_lshrrev_b32 {vr(t0)}, 3, {vr(lane)}"); A(f"v_mul_u32_u24 {vr(t0)}, 1280, {vr(t0)}")
    A(f"v_lshrrev_b32 {vr(t1)}, 3, {vr(lane)}"); A(f"v_and_b32 {vr(t1)}, 6, {vr(t1)}"); A(f"v_and_b32 {vr(t2)}, 7, {vr(lane)}"); A(f"v_xor_b32 {vr(t1)}, {vr(t1)}, {vr(t2)}")
    A(f"v_lshl_add_u32 {vr(t0)}, {vr(t1)}, 4, {vr(t0)}")
    for h in range(2):
        A(f"s_xor_b32 s{sT}, s4, {h}"); A(f"s_lshl_b32 s{sT}, s{sT}, 1"); A(f"s_add_u32 s{sT}, s{sT}, s3"); A(f"s_lshl_b32 s{sT}, s{sT}, 6")
        for rb in range(4):
            A(f"v_add_u32 {vr(t1)}, s{sT}, {vr(t0)}"); A(f"v_accvgpr_write_b32 {ar(aWD+h*5+rb)}, {vr(t1)}")
            if rb < 3: A(f"s_add_u32 s{sT}, s{sT}, 9216")
    A(f"v_lshrrev_b32 {vr(t0)}, 2, {vr(lane)}"); A(f"v_mul_u32_u24 {vr(t0)}, 1280, {vr(t0)}")
    A(f"v_bfe_u32 {vr(t1)}, {vr(lane)}, 4, 1"); A(f"v_xor_b32 {vr(t1)}, s4, {vr(t1)}"); A(f"v_lshlrev_b32 {vr(t1)}, 1, {vr(t1)}")
    A(f"v_and_b32 {vr(t2)}, 3, {vr(lane)}"); A(f"v_xor_b32 {vr(t1)}, {vr(t1)}, {vr(t2)}"); A(f"v_lshl_add_u32 {vr(t0)}, {vr(t1)}, 4, {vr(t0)}")
    A(f"s_xor_b32 s3, s3, 1"); A(f"s_lshl_b32 s3, s3, 8"); A(f"v_add_u32 {vr(t0)}, s3, {vr(t0)}"); A(f"v_add_u32 {vr(t1)}, {20480-1024}, {vr(t0)}")
    A(f"v_accvgpr_write_b32 {ar(aWD+4)}, {vr(t0)}"); A(f"v_accvgpr_write_b32 {ar(aWD+9)}, {vr(t1)}")
    if O.wopre in (200, 250):
        A(f"s_and_b32 s{sT}, s{sGI}, 127"); A(f"s_mul_i32 s{sT}, s{sT}, 10240"); A(f"s_mul_i32 s{sTW}, s{sWAVE}, {1310720 - 524288}"); A(f"s_add_u32 s{sTW}, s{sTW}, s{sT}")
        A(f"s_add_u32 s{sTW-1}, s{sTW}, 9216")
    A(f"s_and_b32 s{sT}, s{sGI}, 0xf0"); A(f"v_and_b32 {vr(t0)}, 3, {vr(lane)}"); A(f"v_lshlrev_b32 {vr(t0)}, 2, {vr(t0)}"); A(f"v_add_u32 {vr(t0)}, s{sT}, {vr(t0)}")
    A(f"v_accvgpr_write_b32 {ar(aPOLL)}, {vr(t0)}")
    if O.smf:
        A(f"v_lshrrev_b32 {vr(t0)}, 4, {vr(lane)}"); A(f"v_xor_b32 {vr(t0)}, {vr(t0)}, {vr(lane)}"); A(f"v_bfe_i32 {vr(t0)}, {vr(t0)}, 1, 1")
        A(f"v_bfi_b32 {vr(t0)}, {vr(t0)}, 0, s{sT3}")
        for q in range(4): A(f"v_accvgpr_write_b32 {ar(aONE+q)}, {vr(t0)}")
        A(f"v_bfe_i32 {vr(t0)}, {vr(lane)}, 0, 1"); A(f"v_and_b32 {vr(t0)}, 0xaaaaaaaa, {vr(t0)}"); A(f"v_or_b32 {vr(vIDX)}, 0x44444444, {vr(t0)}")
def oproj_setup(A):
    vTMP = vPOLL
    A(f"v_accvgpr_read_b32 {vr(vPOLL)}, {ar(aPOLL)}")
    A(f"s_lshl_b32 s{sT}, s{sWAVE}, 18"); A(f"v_and_b32 {vr(vOQ)}, 0x3ff, {vr(vOO)}")
    A(f"v_add_u32 {vr(vOQ)}, s{sT}, {vr(vOQ)}"); A(f"v_add_u32 {vr(vOQ+1)}, 0x20000, {vr(vOQ)}")
    for p in range(10): A(f"v_accvgpr_read_b32 {vr(vWD+p)}, {ar(aWD+p)}")
    A(f"s_and_b32 s{sT}, s{sGI}, 0xfc"); A(f"s_and_b32 s3, s{sGI}, 3"); A(f"s_lshl_b32 s3, s3, 3"); A(f"s_lshl_b32 s3, 0xff, s3")
    A(f"v_cmp_eq_u32 vcc, s{sT}, {vr(vTMP)}"); A(f"v_mov_b32 {vr(vOWN)}, s3"); A(f"s_xor_b32 s{sT}, s{sT}, 8"); A(f"v_cndmask_b32 {vr(vOWN)}, 0, {vr(vOWN)}, vcc")
    A(f"v_cmp_eq_u32 vcc, s{sT}, {vr(vTMP)}"); A(f"s_not_b32 s3, s3"); A(f"v_mov_b32 {vr(vOWX)}, s3"); A(f"v_cndmask_b32 {vr(vOWX)}, -1, {vr(vOWX)}, vcc")
    A(f"v_xor_b32 {vr(31)}, s{sGI}, {vr(vTMP)}"); A(f"v_bfe_i32 {vr(31)}, {vr(31)}, 3, 1")
    A(f"v_and_or_b32 {vr(vOWX)}, {vr(vOWX)}, {vr(31)}, {vr(vOWN)}"); A(f"v_or_b32 {vr(vOWN)}, {vr(vOWN)}, {vr(31)}")

def oproj(A):
    vWR = 200
    vACC, vWF = 40, 120
    def ACC(h, qq, nb): return vACC + h * 40 + (qq * 5 + nb) * 4
    def WF(par, f): return vWF + par * 40 + f * 4
    A.c("---- O projection")
    lane, t0, t1 = 38, 39, 37
    A(f"v_bfe_u32 {vr(lane)}, {vr(vOO)}, 4, 6"); A(f"v_lshrrev_b32 {vr(t0)}, 5, {vr(lane)}"); A(f"v_lshlrev_b32 {vr(t0)}, 10, {vr(t0)}")
    A(f"v_bfe_u32 {vr(t1)}, {vr(lane)}, 2, 3"); A(f"v_lshl_add_u32 {vr(t0)}, {vr(t1)}, 7, {vr(t0)}")
    A(f"v_and_b32 {vr(t1)}, 3, {vr(lane)}"); A(f"v_lshl_add_u32 {vr(t0)}, {vr(t1)}, 3, {vr(t0)}")
    A(f"v_bfe_u32 {vr(t1)}, {vr(lane)}, 3, 2"); A(f"v_lshl_add_u32 {vr(vWR)}, {vr(t1)}, 5, {vr(t0)}")
    for nb in range(1, 4): A(f"v_xor_b32 {vr(vWR+3*nb)}, {nb*32}, {vr(vWR)}")
    A(f"v_lshrrev_b32 {vr(t0)}, 2, {vr(lane)}"); A(f"v_lshlrev_b32 {vr(t0)}, 6, {vr(t0)}"); A(f"v_and_b32 {vr(t1)}, 3, {vr(lane)}"); A(f"v_lshl_add_u32 {vr(t0)}, {vr(t1)}, 3, {vr(t0)}")
    A(f"v_bfe_u32 {vr(t1)}, {vr(lane)}, 4, 1"); A(f"v_lshl_add_u32 {vr(vWR+12)}, {vr(t1)}, 5, {vr(t0)}"); A(f"v_xor_b32 {vr(vWR+15)}, 32, {vr(vWR+12)}")
    for q in range(6):
        for w in (2, 1): A(f"v_add_u32 {vr(vWR+3*q+w)}, {51200*w}, {vr(vWR+3*q)}")
    nd_ = O.ndef; nf = 16 - nd_
    steps = [(j, kk, (0, 1)) for j in range(nf) for kk in range(4)] + [(j, kk, (h,)) for h in range(2) for j in range(nf, 16) for kk in range(4)]
    def w_rd(i):
        j, kk, hs = steps[i]
        pc = PIECE[j & 3][kk]; w = min(pc // 5, 2)
        return [(f"ds_read_b64_tr_b16 {vr(WF(i&1,f*5+nb)+2*jh,2)}, {vr(vWR+3*(nb if nb < 4 else 4+h)+w)} offset:{pc*10240-w*51200+(h*4096+jh*2048 if nb < 4 else 8192+jh*1024)}", "ds", ("WF", i & 1, f * 5 + nb))
                for f, h in enumerate(hs) for nb in range(5) for jh in range(2) if not (O.lfake and f == 1)]
    for ops in o_ld(3):
        for o in ops: A.op(o)
    A.wait(vm=[("W", 0), ("O", 0)]); A("s_barrier")
    for o in w_rd(0): A.op(o)
    mf = []; need = {}; gaps = {}; pre = {}; start = []; bars = {}
    for i, (j, kk, hs) in enumerate(steps):
        start.append(len(mf))
        for f, h in enumerate(hs):
            for nb in range(5):
                if nb in (0, 2): need[len(mf)] = [("WF", i & 1, f * 5 + q) for q in ((0, 1) if nb == 0 else (2, 3, 4))]
                for qq in range(2):
                    c = "0" if (j == 0 and kk == 0) else vr(ACC(h, qq, nb), 4)
                    mf.append(f"{MF} {vr(ACC(h,qq,nb),4)}, {vr(WF(i&1,f*5+nb),4)}, {ar(OF(j,kk,qq),4)}, {c}")
    n = len(mf); start.append(n)
    gaps = {g: [] for g in range(n)}
    iB = len(steps) - 4 * nd_; gB = start[iB]
    for i, (j, kk, hs) in enumerate(steps):
        g0 = start[i]; ln = start[i + 1] - g0; lo = 0
        if kk == 3 and i < iB and j + 1 < 16:
            lo = O.obar if ln == 20 else 2
            bars[j] = g0 + lo
            p = [("", "wait", dict(vm=[("W", j + 1), ("O", j + 1)] + (["ST"] if j == O.pub2 else []), dsn=0 if j + 4 < 16 else None))]
            if j == 4: p.append(("", "call", lambda A_: poll_check(A_, 0x03030303, "u2", vOWN, "p2")))
            p.append("s_barrier")
            if j == O.pub2: p += flag_ops(3, "f2")
            if j == 3: p += poll_ops("p2")
            pre[g0 + lo] = p
        if i + 1 < len(steps):
            rd = w_rd(i + 1); np_ = len(rd) // 2
            stp = 2 if lo + 2 * np_ <= ln + 1 else 1.5
            if O.lfake and ln == 20:
                for q in range(len(rd)): gaps[g0 + lo + int(q * (2 if lo == 0 else 1.5))] += rd[q:q + 1]
            else:
                for q in range(np_): gaps[g0 + lo + int(q * stp)] += rd[2 * q:2 * q + 2]
    def spread(mem, g, sp, dense=False, dry=False):
        for ops in mem:
            while gaps[g] or g + 1 in pre or (g + 1 in need and not dense): g += 1
            if not dry: gaps[g] += ops
            g += sp if any(is_vm(o) for o in ops) else 1
        return g
    spread(w_dma(3, 0) + w_dma(3, 1), 1, 2)
    for j in range(12):
        mem = w_dma(j + 4, 0) + ([] if O.whalf else w_dma(j + 4, 1)) + o_ld(j + 4)
        dn = spread(mem, bars[j], O.osp, dry=True) > bars[j + 1]
        assert spread(mem, bars[j], O.osp, dn) <= bars[j + 1], j
    vXS, vXR = 220, vACC
    xs = []
    st = mbox("store", lambda t: vr(vXS + 4 * t, 4), sXO, "XS")
    for t in (0, 2, 3, 1, 4):
        xs += [[f"v_cvt_pk_bf16_f32 {vr(vXS+4*t+q)}, {vr(vACC+8*t+2*q)}, {vr(vACC+8*t+2*q+1)}" for q in range(2 * u, 2 * u + 2)] for u in range(2)]
        if t == 4: xs.append([st[3][1]])
        xs.append(st[t][:1])
    e = spread(xs, gB + 1, 1, True)
    xl = mbox("load", lambda t: vr(vXR + 4 * t, 4), sXI, "XL")
    assert e < n - O.xld
    spread(xl, n - O.xld, 1, True)
    for j in (4, 9): pre[start[4 * j]] = pre.get(start[4 * j], []) + [("", "call", lambda A_, j=j: stamp(A_, f"slab{j}", 2))]
    for j in (1, 4, 6, 12): pre[start[4 * j]] = pre.get(start[4 * j], []) + [("", "call", lambda A_, j=j: stamp(A_, f"slab{j}", 6))]
    pre[gB] = pre.get(gB, []) + [("", "call", lambda A_: stamp(A_, "phaseB", 5))]
    interleave(A, mf, gaps, pre=pre, need=need)
    stamp(A, "oproj loop done"); stamp(A, "oloop", 5); stamp(A, "oloop", 6)
    A(f"v_and_b32 {vr(t0)}, 15, {vr(lane)}"); A(f"v_mul_u32_u24 {vr(t0)}, 2560, {vr(t0)}"); A(f"v_lshrrev_b32 {vr(t1)}, 4, {vr(lane)}")
    A(f"s_mul_i32 s{sT}, s{sWAVE}, {32*2560}"); A(f"s_and_b32 s3, s7, 1"); A(f"s_lshr_b32 s4, s7, 3")
    A(f"s_lshl_b32 s{sT2}, s4, 1"); A(f"s_add_u32 s{sT2}, s{sT2}, s3"); A(f"s_lshl_b32 s{sT2}, s{sT2}, 6"); A(f"s_add_u32 s{sT2}, s{sT2}, s{sT}")
    A(f"s_xor_b32 s3, s3, 1"); A(f"s_lshl_b32 s3, s3, 3"); A(f"s_add_u32 s3, s3, s4"); A(f"s_lshl_b32 s3, s3, 5"); A(f"s_add_u32 s3, s3, s{sT}")
    A(f"v_lshl_add_u32 {vr(vOQ+1)}, {vr(t1)}, 3, {vr(t0)}"); A(f"v_add_u32 {vr(vOQ+1)}, s3, {vr(vOQ+1)}")
    A(f"v_bfe_u32 {vr(t1)}, {vr(lane)}, 4, 1"); A(f"v_lshl_add_u32 {vr(t0)}, {vr(t1)}, 5, {vr(t0)}")
    A(f"v_lshrrev_b32 {vr(t1)}, 5, {vr(lane)}"); A(f"v_lshl_add_u32 {vr(vOQ)}, {vr(t1)}, 4, {vr(t0)}"); A(f"v_add_u32 {vr(vOQ)}, s{sT2}, {vr(vOQ)}")
    def xtest():
        A(f"v_max3_u32 {vr(t0)}, {vr(vXR)}, {vr(vXR+1)}, {vr(vXR+2)}"); A(f"v_max3_u32 {vr(t1)}, {vr(vXR+3)}, {vr(vXR+4)}, {vr(vXR+5)}")
        for q in range(6, 20, 2): A(f"v_max3_u32 {vr(t0 if q & 2 else t1)}, {vr(t0 if q & 2 else t1)}, {vr(vXR+q)}, {vr(vXR+q+1)}")
        A(f"v_max_u32 {vr(t0)}, {vr(t0)}, {vr(t1)}"); A(f"v_cmp_eq_u32 vcc, -1, {vr(t0)}")
    A("s_mov_b32 s4, 0x40000")
    A.label("L_xpoll")
    A("s_waitcnt vmcnt(0)"); A.vm = []
    xtest(); A("s_cbranch_vccz L_xdone")
    for ops in xl:
        for o in ops: A(o if isinstance(o, str) else o[0])
    A("s_sub_u32 s4, s4, 1"); A("s_cmp_lg_u32 s4, 0"); A("s_cbranch_scc1 L_xpoll")
    A("s_waitcnt vmcnt(0)")
    A.label("L_xdone")
    stamp(A, "xflag", 5)
    A(f"s_mov_b32 s{sT}, {16*2560}"); A("s_movk_i32 s3, 0x3f80"); A("s_mov_b32 s4, 0x3f800000")
    for qq in range(2):
        d = vWF + qq * 10; ac = ACC(1, qq, 0)
        for i in range(20): A(f"v_dot2_f32_bf16 {vr(ac+i)}, {vr(vXR+qq*10+i//2)}, s{3+(i&1)}, {vr(ac+i)}")
        for i in range(10): A(f"v_cvt_pk_bf16_f32 {vr(d+i)}, {vr(ac+2*i)}, {vr(ac+2*i+1)}")
        so = f"s{sT}" if qq else "0"
        A("s_nop 0")
        for P_ in range(2):
            for q in range(2): A(f"v_permlane16_swap_b32 {vr(d+4*P_+q)}, {vr(d+4*P_+2+q)}")
        A.op((f"buffer_store_dwordx2 {vr(d+8,2)}, {vr(vOQ+1)}, {sr(sOUT)}, {so} offen{OFL()}", "vm", "OUT"))
        A.op((f"buffer_store_dwordx4 {vr(d,4)}, {vr(vOQ)}, {sr(sOUT)}, {so} offen{OFL()}", "vm", "OUT"))
        A.op((f"buffer_store_dwordx4 {vr(d+4,4)}, {vr(vOQ)}, {sr(sOUT)}, {so} offen offset:64{OFL()}", "vm", "OUT"))

def gen_kernel(k):
    A = Asm()
    A("s_cmp_ge_u32 s2, 256"); A("s_cbranch_scc1 L_end")
    stamp(A, "t0")
    if O.cpre:
        A("s_getpc_b64 s[84:85]"); A("s_and_b32 s84, s84, 0xffffff00"); A("s_and_b32 s85, s85, 0xffff")
        A("s_mov_b32 s86, L_codeend-attn_kernel"); A("s_mov_b32 s87, 0x20000")
        A("s_lshr_b32 s3, s2, 3"); A("s_lshl_b32 s3, s3, 12"); A("v_lshlrev_b32 v4, 4, v0")
        A.op(("buffer_load_dwordx4 v[252:255], v4, s[84:87], s3 offen", "vm", "CODE"))
        A("s_nop 4")
    A("s_load_dwordx16 s[64:79], s[0:1], 0")
    A("s_load_dwordx8 s[80:87], s[0:1], 64")
    A(f"s_load_dwordx2 s[{sWS}:{sWS+1}], s[0:1], 96")
    A("s_and_b32 s3, s2, 7"); A("s_lshr_b32 s4, s2, 3"); A("s_lshr_b32 s5, s3, 2")
    if O.map2:
        A("s_bfe_u32 s6, s3, 0x10001"); A("s_lshl_b32 s6, s6, 2"); A("s_lshr_b32 s7, s4, 3"); A("s_add_u32 s6, s6, s7")
        A("s_and_b32 s7, s3, 1"); A("s_lshl_b32 s7, s7, 3"); A("s_and_b32 s4, s4, 7"); A("s_add_u32 s7, s7, s4")
    else:
        A("s_and_b32 s6, s3, 3"); A("s_lshl_b32 s6, s6, 1"); A("s_lshr_b32 s7, s4, 4"); A("s_add_u32 s6, s6, s7")
        A("s_and_b32 s7, s4, 15")
    vAW, vOW, vOX, vAX = 16, 24, 28, 36
    lane, g, i, r, t0, t1, t2, t3, h = range(48, 57)
    A(f"v_lshrrev_b32 {vr(t0)}, 6, v0"); A(f"v_and_b32 {vr(lane)}, 63, v0"); A(f"v_readfirstlane_b32 s{sWAVE}, {vr(t0)}")
    A(f"v_lshrrev_b32 {vr(g)}, 4, {vr(lane)}"); A(f"v_and_b32 {vr(i)}, 15, {vr(lane)}"); A(f"v_lshrrev_b32 {vr(h)}, 5, {vr(lane)}")
    A(f"s_and_b32 s{sT2}, s{sWAVE}, 1"); A(f"s_lshl_b32 s{sT2}, s{sT2}, 3")
    A(f"s_lshl_b32 s{sT}, s{sWAVE}, 16")
    A(f"v_and_b32 {vr(t2)}, 31, {vr(lane)}"); A(f"v_xor_b32 {vr(t2)}, s{sT2}, {vr(t2)}")
    for p in range(2):
        A(f"v_add_u32 {vr(t0)}, {2*p}, {vr(h)}"); A(f"v_lshlrev_b32 {vr(t1)}, 1, {vr(t0)}"); A(f"v_xor_b32 {vr(t1)}, {vr(t1)}, {vr(t2)}")
        A(f"v_lshlrev_b32 {vr(t1)}, 4, {vr(t1)}"); A(f"v_lshl_add_u32 {vr(t1)}, {vr(t0)}, 13, {vr(t1)}")
        A(f"v_add_u32 {vr(vOW+p)}, s{sT}, {vr(t1)}")
        if p: A(f"v_subrev_u32 {vr(vOW+p)}, 1024, {vr(vOW+p)}")
        A(f"v_add_u32 {vr(vOW+p+2)}, {4*8192-2048}, {vr(vOW+p)}")
    A(f"s_mul_i32 s{sT}, s{sWAVE}, {64*1280}")
    A(f"v_lshrrev_b32 {vr(t0)}, 3, {vr(lane)}"); A(f"v_mul_u32_u24 {vr(t0)}, 1280, {vr(t0)}"); A(f"v_add_u32 {vr(t0)}, s{sT}, {vr(t0)}")
    A(f"v_and_b32 {vr(t1)}, 7, {vr(lane)}"); A(f"v_xor_b32 {vr(t1)}, {vr(t1)}, {vr(g)}")
    A(f"v_lshl_add_u32 {vr(vOX)}, {vr(t1)}, 4, {vr(t0)}"); A(f"v_xor_b32 {vr(t1)}, 4, {vr(t1)}"); A(f"v_lshl_add_u32 {vr(t0)}, {vr(t1)}, 4, {vr(t0)}")
    A(f"v_add_u32 {vr(vOX+1)}, {10240-1024}, {vr(t0)}")
    for p in range(2, 8): A(f"v_add_u32 {vr(vOX+p)}, {(p&~1)*10240 - ((p&3)&~1)*1024}, {vr(vOX+(p&1))}")
    A(f"s_lshl_b32 s{sKVW}, s{sWAVE}, 12"); A(f"s_add_u32 s{sVVW}, s{sKVW}, {VBASE}"); A(f"s_add_u32 s{sWQW}, s{sKVW}, {WQBASE}")
    A(f"s_lshl_b32 s{sXW}, s{sWAVE}, 13")
    A(f"s_lshl_b32 s4, s6, 4"); A(f"s_add_u32 s4, s4, s7")
    A(f"s_lshl_b32 s{sT}, s7, 9"); A(f"s_sub_u32 s{sW+2}, {640*8192}, s{sT}"); A(f"s_mov_b32 s{sW+3}, 0x20000")
    A(f"s_mul_i32 s{sT3}, s6, 327680"); A(f"s_mov_b32 s{sX+2}, 327680"); A(f"s_mov_b32 s{sX+3}, 0x20000")
    A("s_cmp_eq_u32 s5, 1")
    A("s_waitcnt lgkmcnt(0)")
    if O.stamps and O.stm == 1: A("s_memtime s[50:51]"); A("s_memrealtime s[98:99]"); nstamp[0] += 1; stamp_names.append("karg")
    for q in (3, 0, 1, 2, 4): A(f"s_cselect_b64 s[{64+2*q}:{65+2*q}], s[{74+2*q}:{75+2*q}], s[{64+2*q}:{65+2*q}]")
    A(f"s_add_u32 s{sW}, s70, s{sT}"); A(f"s_addc_u32 s{sW+1}, s71, 0"); A(f"s_and_b32 s{sW+1}, s{sW+1}, 0xffff")
    A(f"s_add_u32 s{sX}, s64, s{sT3}"); A(f"s_addc_u32 s{sX+1}, s65, 0"); A(f"s_and_b32 s{sX+1}, s{sX+1}, 0xffff")
    def AF(buf, nb): return buf * 64 + nb * 4
    def XR(G, ks, qb): return 128 + (G & 1) * 32 + (ks * 4 + qb) * 4
    def ACC(nb, qb): return vr(48 + (nb * 4 + qb) * 4, 4) if nb < 13 else ar(208 + ((nb - 13) * 4 + qb) * 4, 4)
    def wq_dma(kk):
        return [[f"s_add_u32 m0, s{sWQW}, {(kk&3)*16384}", f"s_mov_b32 s{sT2}, {kk*262144}"]] + \
               [[(f"buffer_load_dwordx4 {vr(vOW+p)}, {sr(sW)}, s{sT2} offen offset:{p*1024}{' nt' if O.w_nt else ''} lds", "vm", ("W", kk))] for p in range(4)]
    def x_dma(G):
        r = [[f"s_add_u32 m0, s{sXW}, {XB[G&1]}", f"s_movk_i32 s{sT2}, {G*128}"]]
        r += [[(f"buffer_load_dwordx4 {vr(vOX+p)}, {sr(sX)}, s{sT2} offen offset:{(p&3)*1024}{' nt' if O.x_nt else ''} lds", "vm", ("X", G))] for p in range(8)]
        r[4].append(f"s_add_u32 m0, s{sXW}, {XB[G&1]+4096}")
        return r
    def flat(groups):
        for grp in groups:
            for ops in grp:
                for o in ops: A.op(o)
    flat([wq_dma(0), x_dma(0), wq_dma(1), x_dma(1)])
    def kv_groups(kind, tile):
        su, pcs, po = dma_k(tile, (kind, tile)) if kind == "K" else dma_v(tile, (kind, tile))
        return [[su]] + [[p] for p in pcs[:3]] + [[pcs[3], po]]
    A(f"s_mov_b32 s{sWOI}, s72"); A(f"s_and_b32 s{sWOI+1}, s73, 0xffff")
    A(f"s_lshl_b32 s{sT}, s4, 19")
    srd(A, sK, 66, 67, f"s{sT}", "0x80000")
    srd(A, sV, 68, 69, f"s{sT}", "0x80000")
    A(f"s_lshl_b32 s{sGI}, s5, 3"); A(f"s_add_u32 s{sGI}, s{sGI}, s6"); A(f"s_lshl_b32 s{sT2}, s{sGI}, 22")
    srd(A, sO, sWS, sWS + 1, f"s{sT2}", 0x200000 + 16 * 20480)
    A(f"s_lshl_b32 s{sT}, s6, 1"); A(f"s_bfe_u32 s{sT2}, s7, 0x10002"); A(f"s_add_u32 s{sT}, s{sT}, s{sT2}"); A(f"s_mul_i32 s{sT}, s{sT}, {128*2560}")
    A(f"s_mul_i32 s{sT2}, s5, 1280"); A(f"s_add_u32 s{sT}, s{sT}, s{sT2}"); A(f"s_and_b32 s{sT2}, s7, 3"); A(f"s_mul_i32 s{sT2}, s{sT2}, 320")
    A(f"s_add_u32 s{sT}, s{sT}, s{sT2}")
    if O.stamps and O.stm == 1: A("s_waitcnt lgkmcnt(0)"); A("s_mov_b32 s66, s98"); A("s_mov_b32 s67, s99")
    srd(A, sOUT, 84, 85, f"s{sT}", 127 * 2560 + 320)
    srd(A, sCNT, 86, 87, 0, 256)
    A(f"s_lshl_b32 s{sGI}, s{sGI}, 4"); A(f"s_add_u32 s{sGI}, s{sGI}, s7")
    A(f"s_lshl_b32 s{sOOF}, s7, 13")
    A(f"s_mov_b32 s{sKOFF}, 0"); A(f"s_mov_b32 s{sVOFF}, 0"); A(f"s_mov_b32 s{sSTUB}, 99")
    A(f"s_mov_b32 s{sTHR}, {hex(f32bits(2.0**O.thr_log2 if not O.forcefb else -1.0))}")
    A(f"s_mov_b32 s{sSC}, {hex(f32bits(128**-0.5*math.log2(math.e)))}"); A(f"s_mov_b32 s{sSC+1}, s{sSC}")
    A(f"v_lshrrev_b32 {vr(r)}, 2, {vr(i)}")
    A(f"v_and_b32 {vr(t0)}, 1, {vr(g)}"); A(f"v_lshl_add_u32 {vr(t0)}, {vr(t0)}, 2, {vr(r)}")
    A(f"v_lshl_add_u32 {vr(t1)}, {vr(g)}, 3, {vr(r)}"); A(f"v_lshlrev_b32 {vr(t1)}, 9, {vr(t1)}")
    A(f"v_and_b32 {vr(t2)}, 3, {vr(i)}"); A(f"v_lshl_add_u32 {vr(t1)}, {vr(t2)}, 3, {vr(t1)}"); A(f"v_add_u32 {vr(t1)}, {WQBASE}, {vr(t1)}")
    for n3 in range(8):
        A(f"v_xor_b32 {vr(t3)}, {n3}, {vr(t0)}"); A(f"v_lshl_add_u32 {vr(vAW+n3)}, {vr(t3)}, 5, {vr(t1)}")
    A(f"v_lshrrev_b32 {vr(t0)}, 1, {vr(i)}"); A(f"v_xor_b32 {vr(t0)}, {vr(t0)}, {vr(g)}")
    A(f"v_lshlrev_b32 {vr(t1)}, 7, {vr(i)}"); A(f"v_add_u32 {vr(t1)}, s{sXW}, {vr(t1)}")
    A(f"v_lshl_add_u32 {vr(vAX)}, {vr(t0)}, 4, {vr(t1)}"); A(f"v_xor_b32 {vr(vAX+1)}, 64, {vr(vAX)}")
    A(f"v_lshl_add_u32 {vr(t1)}, {vr(r)}, 4, {vr(t2)}"); A(f"v_lshlrev_b32 {vr(t1)}, 8, {vr(t1)}")
    A(f"v_and_b32 {vr(t0)}, 1, {vr(r)}"); A(f"v_lshlrev_b32 {vr(t0)}, 3, {vr(t0)}"); A(f"v_lshl_add_u32 {vr(t0)}, {vr(t2)}, 1, {vr(t0)}")
    A(f"v_lshrrev_b32 {vr(t3)}, 3, {vr(i)}"); A(f"v_add_u32 {vr(t0)}, {vr(t0)}, {vr(t3)}")
    A(f"v_and_b32 {vr(t3)}, 1, {vr(g)}"); A(f"v_lshl_add_u32 {vr(t3)}, {vr(t3)}, 1, {vr(h)}"); A(f"v_xor_b32 {vr(t0)}, {vr(t0)}, {vr(t3)}")
    A(f"v_lshl_add_u32 {vr(vAK)}, {vr(t0)}, 4, {vr(t1)}")
    for s in range(1, 4): A(f"v_xor_b32 {vr(vAK+s)}, {s*64}, {vr(vAK)}")
    A(f"v_lshl_add_u32 {vr(t1)}, {vr(g)}, 4, {vr(r)}"); A(f"v_lshlrev_b32 {vr(t1)}, 8, {vr(t1)}")
    A(f"v_and_b32 {vr(t0)}, 1, {vr(i)}"); A(f"v_lshl_add_u32 {vr(t1)}, {vr(t0)}, 3, {vr(t1)}"); A(f"v_add_u32 {vr(t1)}, {VBASE}, {vr(t1)}")
    A(f"v_and_b32 {vr(t0)}, 1, {vr(g)}"); A(f"v_lshlrev_b32 {vr(t0)}, 3, {vr(t0)}"); A(f"v_lshl_add_u32 {vr(t0)}, {vr(r)}, 1, {vr(t0)}")
    A(f"v_add_u32 {vr(t0)}, {vr(t0)}, {vr(h)}"); A(f"v_bfe_u32 {vr(t3)}, {vr(i)}, 1, 1"); A(f"v_xor_b32 {vr(t0)}, {vr(t0)}, {vr(t3)}")
    A(f"v_lshl_add_u32 {vr(vAV)}, {vr(t0)}, 4, {vr(t1)}")
    for db in range(1, 8): A(f"v_xor_b32 {vr(vAV+db)}, {db*32}, {vr(vAV)}")
    A(f"s_and_b32 s{sT}, s{sWAVE}, 1"); A(f"s_lshl_b32 s{sT}, s{sT}, 3"); A(f"s_lshr_b32 s{sT2}, s{sWAVE}, 1"); A(f"s_add_u32 s{sT}, s{sT}, s{sT2}")
    A(f"v_lshlrev_b32 {vr(t0)}, 1, {vr(g)}"); A(f"v_add_u32 {vr(t0)}, s{sT}, {vr(t0)}"); A(f"v_xor_b32 {vr(t0)}, {vr(t0)}, {vr(i)}")
    A(f"v_lshlrev_b32 {vr(t0)}, 4, {vr(t0)}"); A(f"v_lshl_add_u32 {vr(t0)}, {vr(g)}, 8, {vr(t0)}"); A(f"v_add_u32 {vr(vOKV)}, s{sKVW}, {vr(t0)}")
    A(f"s_lshl_b32 s{sT}, s{sWAVE}, 19"); A(f"v_lshlrev_b32 {vr(t0)}, 4, {vr(lane)}"); A(f"v_add_u32 {vr(vOO)}, s{sT}, {vr(t0)}")
    if O.fuse:
        A(f"s_mul_i32 s{sT}, s{sWAVE}, {5120 - (1 << 19)}"); A(f"s_add_u32 s{sT}, s{sT}, 0x200000")
        A(f"s_mul_i32 s{sXI}, s7, 20480"); A(f"s_add_u32 s{sXI}, s{sXI}, s{sT}")
        A(f"s_xor_b32 s{sXO}, s7, 8"); A(f"s_mul_i32 s{sXO}, s{sXO}, 20480"); A(f"s_add_u32 s{sXO}, s{sXO}, s{sT}")
        for q in range(4): A(f"v_mov_b32 {vr(40+q)}, -1")
    def wo_touch(kk):
        if O.wopre != 100 + kk: return []
        return [[f"s_mov_b32 s{sWOI+2}, 5242880", f"s_mov_b32 s{sWOI+3}, 0x20000", f"s_and_b32 s3, s{sGI}, 127", "s_lshl_b32 s3, s3, 2", f"s_add_u32 s3, s3, s{sWAVE}", "s_mul_i32 s3, s3, 10240",
                 (f"buffer_load_dword {ar(192)}, {vr(45)}, {sr(sWOI)}, s3 offen", "vm", "WOP")], ["s_add_u32 s3, s3, 5120", (f"buffer_load_dword {ar(193)}, {vr(45)}, {sr(sWOI)}, s3 offen", "vm", "WOP")]]
    if 100 <= O.wopre <= 120: A(f"v_mul_u32_u24 {vr(45)}, 80, {vr(lane)}")
    if 0 <= O.wopre < 100:
        A(f"s_mov_b32 s{sWOI+2}, 5242880"); A(f"s_mov_b32 s{sWOI+3}, 0x20000")
        A(f"s_lshl_b32 s{sT}, s4, 2"); A(f"s_add_u32 s{sT}, s{sT}, s{sWAVE}"); A(f"s_mul_i32 s{sT}, s{sT}, 10240")
        A(f"v_lshlrev_b32 {vr(t0)}, 4, {vr(lane)}"); A(f"v_add_u32 {vr(vTMP)}, s{sT}, {vr(t0)}")
    L2S = [int(x) for x in O.l2s.split(',')] if O.l2s else []
    def l2t(kk): return [[f"s_mov_b32 s3, {(4 - (q & 1)) * 16384 + (q >> 1) * (256 << O.l2sh)}", (f"buffer_load_dword {ar(192)}, {vr(44)}, {sr(sV if q & 1 else sK)}, s3 offen{['', ' nt', ' sc1', ' sc0 sc1'][O.l2nt]}", "vm", "L2")] for q, at in enumerate(L2S) if at == kk]
    if L2S: A(f"v_lshlrev_b32 {vr(44)}, {O.l2sh}, {vr(lane)}"); A(f"s_lshl_b32 s{sT}, s{sWAVE}, {O.l2sh+6}"); A(f"v_add_u32 {vr(44)}, s{sT}, {vr(44)}")
    if O.kv0 < 0: flat([kv_groups("K", 0), kv_groups("V", 0)])
    stamp(A, "setup done", 1)
    def wo_pre(i, kk):
        n = 10 // O.wopn; r = []
        for q in range(i * n, (i + 1) * n):
            if q == i * n or q % 4 == 0:
                r.append([f"s_add_u32 m0, s{sKVW}, {0 if kk < 15 else 131072}", f"s_movk_i32 s{sT2}, {(q & ~3)*1024}"])
            r.append([(f"buffer_load_dwordx4 {vr(vTMP)}, {sr(sWOI)}, s{sT2} offen offset:{(q&3)*1024}{' nt' if O.wopre_nt else ''} lds", "vm", "WOP")])
        return r
    if O.wopre == 99: flat([wo_pre(0, 0)])
    def a_reads(kk):
        return [(f"ds_read_b64_tr_b16 {ar(AF(kk&1,nb)+2*jh,2)}, {vr(vAW+(nb&7))} offset:{(kk&3)*16384+jh*2048+(nb>>3)*256}", "ds", "A")
                for nb in range(16) for jh in range(2)]
    def x_reads(G):
        return [(f"ds_read_b128 {ar(XR(G,ks,qb),4)}, {vr(vAX+ks)} offset:{XB[G&1]+qb*2048}", "ds", "XR") for ks in range(2) for qb in range(4)]
    A.wait(vm=[("W", 0), ("X", 0)]); A("s_barrier")
    stamp(A, "wq0 landed"); stamp(A, "wq0 landed", 1); stamp(A, "wq0 landed", 3)
    for o in x_reads(0) + a_reads(0): A.op(o)
    flat([wq_dma(2), wq_dma(3)])
    KVS = [int(x) for x in O.kvs.split(",")]
    assert KVS[2] >= 15 and KVS[3] >= 15 and KVS[4] >= 16 and KVS[5] >= 17 and KVS[6] >= 17 and KVS[0] <= KVS[2] <= KVS[3] <= KVS[5] and KVS[1] <= KVS[4] <= KVS[6]
    for kk in range(20):
        A.c(f"---- qproj step {kk}")
        G, ks = kk >> 1, kk & 1
        if kk in (1, 4): stamp(A, f"step{kk}", 1)
        if kk in (4, 8, 12, 15): stamp(A, f"step{kk}", 3)
        nd = ([("W", kk + 1)] if kk + 1 < 20 else []) + ([("X", G + 1)] if ks == 0 and G + 1 < 10 else [])
        A.wait(vm=nd, dsn=0); A("s_barrier")
        mf = [f"{MF} {ACC(nb,qb)}, {ar(AF(kk&1,nb),4)}, {ar(XR(G,ks,qb),4)}, {ACC(nb,qb) if kk else '0'}" for nb in range(16) for qb in range(4)]
        gaps = {q: [] for q in range(64)}
        mem = []
        if kk + 4 < 20: mem += wq_dma(kk + 4)
        if kk == 0: mem += x_dma(2)
        if ks == 1 and G + 3 < 10: mem += x_dma(G + 3)
        if 0 <= O.wopre < 100 and O.wopre <= kk < O.wopre + O.wopn: mem += wo_pre(kk - O.wopre, kk)
        if O.fuse and kk == O.xfill: mem += mbox("store", lambda t: vr(40, 4), sXI, "XF")
        mem += l2t(kk) + wo_touch(kk)
        for (kind, tile), at in zip((("K", 0), ("V", 0), ("K", 1), ("K", 2), ("V", 1), ("K", 3), ("V", 2)), KVS):
            if kk == at: mem += kv_groups(kind, tile)
        rd = (x_reads(G + 1) if ks == 0 and G + 1 < 10 else []) + (a_reads(kk + 1) if kk + 1 < 20 else [])
        sp = max(2, min(O.qsp, 56 // max(1, len(mem))))
        for q, ops in enumerate(mem): gaps[1 + sp * q] += ops
        fr = [q for q in range(60) if not gaps[q]]
        two = max(0, len(rd) - len(fr))
        fr = sorted(fr + fr[:two])
        for q, o in enumerate(rd): gaps[fr[(q * len(fr)) // len(rd)]].append(o)
        gaps[63] += ["s_nop 7"] * O.qpad
        interleave(A, mf, gaps)
    stamp(A, "qproj done"); stamp(A, "qproj done", 3)
    if O.fuse and O.xfill == 20: flat([mbox("store", lambda t: vr(40, 4), sXI, "XF")])
    for (kind, tile), at in zip((("K", 0), ("V", 0), ("K", 1), ("K", 2), ("V", 1), ("K", 3), ("V", 2)), KVS):
        if at == 20: flat([kv_groups(kind, tile)])
    flat([l2t(20), wo_touch(20)])
    A("s_nop 7")
    def conv_front(hd, s, qb, T0, T1, tb):
        for T in (T0, T1):
            for q in range(2): A(f"v_pk_mul_f32 {vr(T+2*q,2)}, {vr(T+2*q,2)}, s[{sSC}:{sSC+1}]")
        for q in range(2): A(f"v_cvt_pk_bf16_f32 {vr(tb+q)}, {vr(T0+2*q)}, {vr(T0+2*q+1)}")
        for q in range(2): A(f"v_cvt_pk_bf16_f32 {vr(tb+2+q)}, {vr(T1+2*q)}, {vr(T1+2*q+1)}")
    def conv_back(hd, s, qb, tb):
        for q in range(2): A(f"v_permlane16_swap_b32 {vr(tb+q)}, {vr(tb+2+q)}")
    def conv_wr(hd, s, qb, tb):
        for q in range(4): A(f"v_accvgpr_write_b32 {ar(hd*64+(qb*4+s)*4+q)}, {vr(tb+q)}")
    jobs = []
    for pr in range(8):
        for qb in range(4):
            jobs.append((pr, qb))
    pend = []
    for n_, (pr, qb) in enumerate(jobs):
        if pr == 6 and qb == 0:
            for q in range(48): A(f"v_accvgpr_read_b32 {vr(48+q)}, {ar(208+q)}")
        def loc(nb): return 48 + (nb * 4 + qb) * 4 if nb < 13 else 48 + ((nb - 13) * 4 + qb) * 4
        tb = 16 + (n_ % 4) * 4
        conv_front(pr >> 2, pr & 3, qb, loc(2 * pr), loc(2 * pr + 1), tb)
        pend.append((pr >> 2, pr & 3, qb, tb))
        if len(pend) >= 2: conv_back(*pend[-2])
        if len(pend) >= 3: conv_wr(*pend[-3])
    A("s_nop 1"); conv_back(*pend[-1]); conv_wr(*pend[-2]); A("s_nop 0"); conv_wr(*pend[-1])
    A(f"s_mov_b32 s{sT3}, 0x3f803f80")
    if not O.vsum and not O.smf:
        for q in range(4): A(f"v_accvgpr_write_b32 {ar(aONE+q)}, s{sT3}")
    if O.dumpq:
        A(f"s_lshl_b32 s{sT}, s5, 7"); A(f"s_lshl_b32 s{sT2}, s6, 4"); A(f"s_add_u32 s{sT}, s{sT}, s{sT2}"); A(f"s_add_u32 s{sT}, s{sT}, s7")
        A(f"s_lshl_b32 s{sT}, s{sT}, 17"); A(f"s_add_u32 s{sT}, s{sT}, {QDUMP_WS_OFF}")
        srd(A, sDBG, sWS, sWS + 1, f"s{sT}", "0x20000")
        A(f"v_and_b32 {vr(16)}, 0x3ff, {vr(vOO)}"); A(f"s_lshl_b32 s{sT}, s{sWAVE}, 15"); A(f"v_add_u32 {vr(16)}, s{sT}, {vr(16)}")
        for q in range(32):
            A(f"s_mov_b32 s{sT}, {q*1024}")
            A(f"buffer_store_dwordx4 {ar(4*q,4)}, {vr(16)}, {sr(sDBG)}, s{sT} offen")
        A("s_waitcnt vmcnt(0)")
    if O.fuse: oproj_early(A, 16)
    A.wait(vm=[("K", 0)]); A("s_barrier")
    if O.stag:
        A("s_lshr_b32 s3, s2, 3"); A(f"s_and_b32 s3, s3, {O.stagm}"); A(f"s_mul_i32 s3, s3, {O.stag}"); A("s_memrealtime s[50:51]"); A("s_waitcnt lgkmcnt(0)"); A("s_add_u32 s3, s3, s50")
        A.label("L_stag"); A("s_memrealtime s[50:51]"); A("s_waitcnt lgkmcnt(0)"); A("s_sub_u32 s4, s3, s50"); A("s_cmp_gt_i32 s4, 0"); A("s_cbranch_scc1 L_stag")
    stamp(A, "conv done")
    if O.exitat == 1: A("s_branch L_exit")
    A(f"s_mov_b32 s{sUNIT}, 0")
    if O.trace: A("s_mov_b64 s[52:53], 1"); A("s_memrealtime s[50:51]"); A("v_mov_b32 v0, 0")
    A.label("L_unit")
    A(f"s_mov_b32 s{sLOOP}, 3")
    ncls = 2 if O.twocls else 1
    if ncls == 2:
        A(f"s_bitcmp1_b32 s{sWAVE}, 0"); A("s_cbranch_scc1 L_first_1")
    ds6 = None
    for cls in range(ncls):
        A.label(f"L_first_{cls}")
        A.ds = []
        first_slot(A, cls)
        slot(A, 1, cls, f"second_{cls}", zero=True)
        ds_in = list(A.ds)
        A.label(f"L_loop_{cls}")
        for p in (2, 3, 4, 5, 6, 7, 0, 1):
            tail = []
            if p == 6: tail = [f"s_cmp_eq_u32 s{sLOOP}, 0", "s_cbranch_scc1 L_last"]
            if p == 7 and O.fuse: tail = [f"s_cmp_eq_u32 s{sLOOP}, s{sSTUB}", "s_cbranch_scc1 L_tail"]
            if p == 1:
                tail = [f"s_sub_u32 s{sLOOP}, s{sLOOP}, 1"]
                if O.stamps and O.stm == 4: tail += [f"s_memtime s[50:51]", "s_memrealtime s[66:67]"]
                tail += [f"s_branch L_loop_{cls}"]
            slot(A, p, cls, f"p{p}_{cls}", tail=tail)
            if p == 6: ds6 = list(A.ds)
            if p == 7: ds7 = list(A.ds)
        assert len(A.ds) == len(ds_in) and A.ds == ds_in, (A.ds, ds_in)
    if O.stamps and O.stm == 4: nstamp[0] += 1; stamp_names.append("loopback")
    A.label("L_last")
    if not O.fuse: stamp(A, "last", 4)
    A.ds = list(ds6)
    last_slot(A, not O.fuse)
    if O.chk:
        A(f"s_cmp_lg_u64 s[{sM}:{sM+1}], 0"); A("s_cbranch_scc1 L_fb")
    if not O.fuse:
        A(f"s_cmp_lg_u32 s{sUNIT}, 0"); A("s_cbranch_scc1 L_fbret1")
    A.label("L_fbret0")
    stamp(A, "unit0 end"); stamp(A, "unit0 end", 2)
    if O.exitat == 2: A("s_branch L_exit")
    A(f"s_mov_b32 s{sUNIT}, 1"); A(f"s_add_u32 s{sOOF}, s{sOOF}, 4096"); A(f"s_mov_b32 s{sSTUB}, 1")
    if O.fuse and O.wopre >= 300:
        sh = O.wopre - 300
        A(f"v_bfe_u32 v0, {vr(vOO)}, 4, 6"); A("s_lshr_b32 s3, s2, 3"); A(f"s_lshl_b32 s3, s3, 2"); A(f"s_add_u32 s3, s3, s{sWAVE}"); A("s_lshl_b32 s3, s3, 6")
        A("v_add_u32 v0, s3, v0"); A(f"v_lshlrev_b32 v0, {12 - sh}, v0"); A("s_lshr_b32 s3, s7, 3"); A("s_mul_i32 s3, s3, 2621440")
        A(f"v_cmp_gt_u32 vcc, 2621440, v0"); A("s_and_saveexec_b64 s[100:101], vcc")
        A(f"buffer_load_dword {ar(224)}, v0, {sr(sW)}, s3 offen"); A("s_mov_b64 exec, -1")
    for q in range(64): A(f"v_accvgpr_mov_b32 {ar(aQ+q)}, {ar(aQ2+q)}")
    if O.fuse:
        for q in range(64): A(f"v_accvgpr_write_b32 {ar(aQ2+q)}, {vr(vS+q)}")
    A("s_branch L_unit")
    if O.fuse:
        A.label("L_tail")
        stamp(A, "tail", 2); stamp(A, "tail", 4)
        if O.trace:
            srd(A, 56, sWS, sWS + 1, 132 << 20, 4 << 20); A("s_lshl_b32 s3, s2, 10")
            A(f"buffer_store_dword v0, {vr(vOO)}, s[56:59], s3 offen")
        A.ds = list(ds7)
        A.vm = [("G", 9)] * 8 + [("G", 10)] * 8 + (["WOP"] if O.wopre == 250 else []) + [("G", 11)] * 8
        def st0(qbs):
            r = []
            for qb in qbs:
                r.append([f"s_add_u32 s{sT}, s{sOOF}, {qb*131072 - 4096}"] if qb else [f"s_sub_u32 s{sT}, s{sOOF}, 4096"])
                r += [[o_store(ar(aQ2 + (qb * 4 + t) * 4, 4), qb, t, "ST0", sT)] for t in range(4)]
            return r
        v15 = dma_v(3, ("G", 12))
        slot(A, 0, 0, "t24", groups=[[v15[0]]] + [[o] for o in v15[1]] + st0([0]), vmtags=[("G", 9)])
        slot(A, 1, 0, "t25", groups=st0([1, 2]))
        slot(A, 2, 0, "t26", groups=st0([3]) + w_dma(0, 0, True), vmtags=[("G", 10)])
        def touch(lo, hi):
            if O.wopre != 200: return []
            r = []
            for q in range(lo, hi):
                if q == lo or q % 4 == 0: r.append([f"s_add_u32 s{sT}, s{sTW}, {(q & ~3)*1024}"])
                r.append([(f"buffer_load_dwordx4 {ar(224+(q&7)*4,4)}, {vr(vOO)}, {sr(sW)}, s{sT} offen offset:{(q&3)*1024}{' nt' if O.wopre_nt else ''}", "vm", "WOP")])
            return r
        slot(A, 3, 0, "t27", groups=w_dma(0, 1, True) + touch(0, 5))
        slot(A, 4, 0, "t28", groups=w_dma(1, 0, True), vmtags=[("G", 11), "ST0"], after_bar=flag_ops(1, "f1"))
        slot(A, 5, 0, "t29", groups=touch(5, 10) + w_dma(1, 1, True))
        slot(A, 6, 0, "t30", groups=w_dma(2, 0, True), vmtags=[("G", 12)], tail=[f"v_accvgpr_read_b32 {vr(vPOLL)}, {ar(aPOLL)}"] + poll_ops("p1"))
        stamp(A, "last1", 2)
        oproj_setup(A)
        def mid():
            A.wait(dsn=0)
            poll_check(A, 0x01010101, "u1", vOWX, "p1")
            A("s_barrier")
        if O.own1: last_slot(A, True, extra1=w_dma(2, 1) + o_ld(0), mid=mid, extra2=o_ld(1) + o_ld(2))
        else: last_slot(A, True, extra1=w_dma(2, 1), mid=mid, extra2=o_ld(0) + o_ld(1) + o_ld(2))
        if O.chk:
            A(f"s_cmp_lg_u64 s[{sM}:{sM+1}], 0"); A("s_cbranch_scc1 L_fb")
        A.label("L_fbret1")
        stamp(A, "unit1 end"); stamp(A, "unit1 end", 2); stamp(A, "unit1 end", 5); stamp(A, "unit1 end", 6)
        if O.exitat == 3: A("s_branch L_exit")
        oproj(A)
    else:
        A.label("L_fbret1")
        stamp(A, "unit1 end")
    if O.exitat: A.label("L_exit")
    if O.stamps: emit_stamps(A)
    A.label("L_end")
    A("s_endpgm")
    if O.chk:
        fallback(A)
    emit_spins(A)
    A.label("L_codeend")
    return kstart(k) + A.text()

def emit_stamps(A):
    A("s_waitcnt vmcnt(0) lgkmcnt(0)")
    A(f"s_memtime s[8:9]"); A(f"s_memrealtime s[10:11]")
    A("s_waitcnt lgkmcnt(0)")
    srd(A, sDBG, sWS, sWS + 1, STAMP_WS_OFF, "0x100000")
    A(f"s_lshl_b32 s3, s2, 2"); A(f"s_add_u32 s3, s3, s{sWAVE}"); A("s_lshl_b32 s3, s3, 7")
    A("v_mov_b32 v0, s3")
    n = nstamp[0]
    regs = [(j, sSTAMP + 2 * j) for j in range(n)] + [(n, 8)] + [(8 + j, 62 if j == 0 else sRSTAMP + 2 * j) for j in range(n)] + [(8 + n, 10)]
    A("s_getreg_b32 s4, hwreg(HW_REG_XCC_ID)")
    regs.append((16, 4))
    for j, s_ in regs:
        A(f"v_mov_b32 v1, s{s_}")
        A(f"buffer_store_dword v1, v0, {sr(sDBG)}, 0 offen offset:{4*j}")
    A("s_waitcnt vmcnt(0)")

def main():
    ap = argparse.ArgumentParser()
    for k_, v_ in vars(Opt).items():
        if k_.startswith("_"): continue
        if isinstance(v_, bool): ap.add_argument("--" + k_, type=lambda s: bool(int(s)), default=v_)
        elif isinstance(v_, int): ap.add_argument("--" + k_, type=int, default=v_)
        else: ap.add_argument("--" + k_, default=v_)
    a = ap.parse_args()
    for k_, v_ in vars(a).items(): setattr(O, k_, v_)
    O.smpos_ = [int(x) for x in O.smpos.split(',')]
    hdr = open("cdna_kernels/" + NAME + ".s.ref").read().split("; Override launch")[0]
    out = hdr
    out += "; @launch kernel=attn_kernel grid=(256,1,1) block=(256,1,1) lds=163840\n"
    body = gen_kernel("attn_kernel")
    if O.stamps: out += "; stamps: " + ",".join(stamp_names) + ",end\n"
    out += '.amdgcn_target "amdgcn-amd-amdhsa--gfx950"\n.text\n'
    out += body + kd("attn_kernel")
    lines = out.split("\n")
    if O.skip_loop:
        iu = lines.index("L_unit:"); il = lines.index("L_last:")
        lines = lines[:iu] + [l for l in lines[iu:il] if not ("buffer_load_dwordx4" in l and " lds" in l)] + lines[il:]
    il = lines.index("L_last:")
    if O.skip_oo: lines = lines[:il] + [l for l in lines[il:] if not ("buffer_load_dwordx4 a[" in l and "s[8:11]" in l)]
    if O.skip_ow: lines = lines[:il] + [l for l in lines[il:] if not ("s[12:15]" in l and " lds" in l)]
    iu = lines.index("L_unit:")
    if O.skip_x: lines = [l for l in lines[:iu] if not ("s[8:11]" in l and " lds" in l)] + lines[iu:]
    if O.skip_w: lines = [l for l in lines[:iu] if not ("s[12:15]" in l and " lds" in l)] + lines[iu:]
    sys.stdout.write("\n".join(lines))
main()
```

```python
import sys, math, argparse, re, struct, copy

NAME = "concat_heads__gqa_block_cached__gqa_block_cached__near_ridge"

class Opt:
    stamps = False
    dumpq = False
    kv_nt = True
    fuse = True
    twocls = False
    D = 6
    bar = 20
    burst = 1
    dper = 3
    qsp = 4
    w_nt = True
    x_nt = True
    wo_nt = False
    kv0 = 15
    pubw = 11
    map2 = True
    pub2 = 1
    pub1 = 28
    poll2 = 8
    thr_log2 = 30
    skip_loop = False
    skip_x = False
    skip_w = False
    forcefb = False
    budget = 8
    wpre = True
    o_sc1 = True
    chk = True
    stm = 0
    cpre = True
    rot = 0
    wfake = False
    noinv = False
    skip_oo = False
    skip_ow = False
    st_sc1 = True
    wopre = 200
    wopre_nt = False
    wopn = 1
    ndef = 4
    xbar = 60
    own1 = True
    obar = 4
    osp = 2
    xdense = True
    vlate = 0
    vsum = False
    pad = 0
    vmn = 16
    kvs = "13,14,15,16,17,18,19"
    outfl = 0
    trace = False
    xld = 40
    xfill = 20
    lfake = False
    whalf = False
    ofake = False
    walign = False
    wofl = 0
    u0 = ""
    klate = 0
    stfl = 0
    stfl1 = 0
    xffl = 0
    est = 1
    f1at = 28
    snake = 15
    kvfl = 0
    qpad = 0
    upad = 0
    upadm = 0
    stag = 0
    stagm = 3
    exitat = 0
    l2n = 0
    l2s = ""
    l2nt = 0
    l2sh = 6
    smpos = "3,7"
    smf = True

O = Opt()

class Asm:
    def __init__(self):
        self.L = []
        self.vm = []
        self.ds = []
        self.nvm = 0; self.mark = {}
    def __call__(self, s):
        if s.endswith(" lds") and self.L and " m0," in self.L[-1]: self.L.append("    s_nop 0")
        self.L.append(s if s.endswith(":") else "    " + s)
    def label(self, s): self.L.append(s + ":")
    def c(self, s): self.L.append("    ; " + s)
    def text(self): return "\n".join(self.L) + "\n"
    def vm_n(self, tags):
        idx = [i for i, t in enumerate(self.vm) if t in tags]
        if not idx: return None
        return min(63, len(self.vm) - 1 - max(idx))
    def ds_n(self, tags):
        idx = [i for i, t in enumerate(self.ds) if t in tags]
        if not idx: return None
        return min(15, len(self.ds) - 1 - max(idx))
    def wait(self, vm=None, ds=None, vmn=None, dsn=None):
        a = self.vm_n(vm) if vm else None
        b = self.ds_n(ds) if ds else None
        if vmn is not None: a = vmn if a is None else min(a, vmn)
        if dsn is not None: b = dsn if b is None else min(b, dsn)
        p = []
        if a is not None:
            p.append(f"vmcnt({a})"); self.vm = self.vm[len(self.vm) - a:] if a else []
        if b is not None:
            p.append(f"lgkmcnt({b})"); self.ds = self.ds[len(self.ds) - b:] if b else []
        if p: self("s_waitcnt " + " ".join(p))
    def op(self, o):
        if isinstance(o, str): self(o); return
        if o[1] == "vm": self.vm.append(o[2]); self.nvm += 1
        elif o[1] == "mark": self.mark[o[2]] = self.nvm
        elif o[1] == "call": o[2](self); return
        elif o[1] == "ds": self.ds.append(o[2])
        elif o[1] == "wait": self.wait(**o[2]); return
        self(o[0])

def vr(b, n=1): return f"v{b}" if n == 1 else f"v[{b}:{b+n-1}]"
def ar(b, n=1): return f"a{b}" if n == 1 else f"a[{b}:{b+n-1}]"
def sr(b, n=4): return f"s[{b}:{b+n-1}]"
def f32bits(x): return struct.unpack("<I", struct.pack("<f", x))[0]
MF = "v_mfma_f32_16x16x32_bf16"

def kd(k, vgpr=512, acc=256, sgpr=102):
    return f""".section .rodata,"a"
.p2align 6
.amdhsa_kernel {k}
  .amdhsa_next_free_vgpr {vgpr}
  .amdhsa_next_free_sgpr {sgpr}
  .amdhsa_accum_offset {acc}
  .amdhsa_group_segment_fixed_size 0
  .amdhsa_kernarg_size 104
  .amdhsa_user_sgpr_count 2
  .amdhsa_user_sgpr_kernarg_segment_ptr 1
  .amdhsa_system_sgpr_workgroup_id_x 1
.end_amdhsa_kernel
.text
"""
def kstart(k): return f".globl {k}\n.p2align 8\n.type {k},@function\n{k}:\n"

WOF_OFF = 48 << 20
STAMP_WS_OFF = 128 << 20
QDUMP_WS_OFF = 64 << 20
sTW = 65
sXI, sXO = 78, 79

sX, sW, sK, sV, sO = 8, 12, 16, 20, 24
sWAVE, sKVW, sVVW, sWQW, sKOFF, sVOFF, sXW, sLOOP, sUNIT, sT, sTHR, sT3 = range(28, 40)
sSC, sOOF, sFB, sT2, sGI, sWS = 40, 42, 43, 44, 45, 46
sSTAMP, sRSTAMP = 48, 64
sCNT, sDBG, sWOI, sWOF, sOUT = 80, 84, 88, 92, 96
sM = 100
vAK, vAV, vOKV, vOO, vTMP = 1, 5, 13, 14, 15
vIDX, vPOLL, aPOLL = 15, 30, 222
vNEGM, vS, vP, vO = 16, 32, 96, 128
aQ, aQ2, aKF, aVF, aL, aONE = 0, 64, 128, 160, 192, 208
KBASE, VBASE, WQBASE, FBBASE = 0, 65536, 98304, 131072
XB = (16384, 49152)
FLAG_OFF = 60 << 20
sFLG, sSTUB = 84, sFB

def S(buf, qb, kb): return vS + buf * 32 + (qb * 2 + kb) * 4
def P(buf, qb): return vP + buf * 16 + qb * 4
def NEGM(qb): return vNEGM + qb * 4
def Q(qb, s): return aQ + (qb * 4 + s) * 4
def OA(db, qb): return vO + (qb * 8 + db) * 4
def LA(qb): return aL + qb * 4
vL = 252
def OAT(db, qb): return ar(aL, 4) if O.vsum and (db, qb) == (7, 3) else vr(OA(db, qb), 4)

nstamp = [0]
stamp_names = []
def stamp(A, name, mode=0):
    if not O.stamps or (mode != O.stm and name != "t0"): return
    i = nstamp[0]; nstamp[0] += 1; stamp_names.append(name)
    assert i < 7
    A(f"s_memtime s[{sSTAMP+2*i}:{sSTAMP+2*i+1}]")
    r = 62 if i == 0 else sRSTAMP + 2 * i
    A(f"s_memrealtime s[{r}:{r+1}]")

def cost(o):
    t = o if isinstance(o, str) else o[0]
    if t.endswith(":"): return 0
    if not isinstance(o, str) and o[1] in ("wait", "call"): return 0
    if t.startswith(("v_exp", "v_rcp")): return 8
    if t.startswith("buffer_"): return 8
    if t.startswith("s_nop"): return 4 * (int(t.split()[1]) + 1)
    if t.startswith("v_cvt_pk") or t.startswith("v_max3") or t.startswith("v_perm"): return 5
    if t.startswith("v_pk_"): return 8
    return 4

def interleave(A, mf, fixed=None, stream=(), pre=None, budget=None, need=None):
    budget = O.budget if budget is None else budget
    fixed = fixed or {}; pre = pre or {}; need = need or {}
    st = list(stream); si = 0; debt = 0
    for g in range(len(mf)):
        for t in pre.get(g, []): A.op(t)
        if g in need: A.wait(ds=need[g])
        A(mf[g])
        fx = fixed.get(g, [])
        room = budget - sum(cost(o) for o in fx) - debt
        for o in fx: A.op(o)
        while si < len(st):
            o, at = st[si] if isinstance(st[si], list) else (st[si], 0)
            if at > g: break
            c = cost(o)
            if room <= 0 or (c > room + 1): break
            A.op(o); room -= c; si += 1
        debt = 0
    while si < len(st):
        o = st[si][0] if isinstance(st[si], list) else st[si]
        A.op(o); si += 1

NT_KV = lambda: [" nt", "", " sc1", " sc1 nt", " sc0 sc1 nt", " sc0 nt", " sc0 sc1"][O.kvfl]
SC1 = lambda: " sc1" if O.o_sc1 else ""
OFL = lambda: ["", " sc1", " sc0 sc1", " nt", " sc1 nt", " sc0 sc1 nt"][O.outfl]
def adv(off): return f"s_add_u32 s{off}, s{off}, 0x4000"
def vphys(ring): return (ring + 1) & 3
def dma_k(ring, tag):
    return (f"s_add_u32 m0, s{sKVW}, {ring*16384}",
            [(f"buffer_load_dwordx4 {vr(vOKV)}, {sr(sK)}, s{sKOFF} offen offset:{p*1024}{NT_KV()} lds", "vm", tag) for p in range(4)],
            adv(sKOFF))
def dma_v(ring, tag):
    return (f"s_add_u32 m0, s{sVVW}, {vphys(ring)*16384}",
            [(f"buffer_load_dwordx4 {vr(vOKV)}, {sr(sV)}, s{sVOFF} offen offset:{p*1024}{NT_KV()} lds", "vm", tag) for p in range(4)],
            adv(sVOFF))
def k_reads(ring, h, dst=aKF):
    return [(f"ds_read_b128 {ar(dst+(kb*4+s)*4,4)}, {vr(vAK+s)} offset:{ring*16384+(2*h+kb)*1024}", "ds", ("F", dst + (kb*4+s)*4))
            for kb in range(2) for s in range(4)]
def v_reads(ring, h):
    return [(f"ds_read_b64_tr_b16 {ar(aVF+db*4+2*jh,2)}, {vr(vAV+db)} offset:{vphys(ring)*16384+h*2048+jh*1024}", "ds", ("F", aVF + db*4))
            for db in range(8) for jh in range(2)]
def pv_mf(buf, zero=False, qbmajor=False):
    r = []
    def pv(db, qb): return (f"{MF} {OAT(db,qb)}, {ar(aVF+db*4,4)}, {vr(P(buf,qb),4)}, {'0' if zero else OAT(db,qb)}", aVF + db*4, qb)
    def sm(qb): return (f"{MF} {ar(LA(qb),4)}, {ar(aONE,4)}, {vr(P(buf,qb),4)}, {'0' if zero else ar(LA(qb),4)}", None, qb)
    def sm2(pr): return (f"v_smfmac_f32_16x16x64_bf16 {ar(LA(pr),4)}, {ar(aONE,4)}, {vr(P(buf,2*pr),8)}, {vr(vIDX)}", None, 2 * pr)
    if qbmajor:
        for qb in range(4):
            if O.smf:
                if not qb & 1: r.append(sm2(qb >> 1))
            elif not O.vsum: r.append(sm(qb))
            r += [pv(7 - db if qb & 1 and O.snake & 1 else db, qb) for db in range(8)]
    else:
        for db in range(8):
            r += [pv(db, 3 - qb if db & 1 and O.snake & 1 else qb) for qb in range(4)]
            if O.smf:
                if db in O.smpos_: r.append(sm2(O.smpos_.index(db)))
            elif db & 1 and not O.vsum: r.append(sm(db >> 1))
    return r
def qk_mf(buf, zero=False, kf=aKF, snake=False):
    r = []
    order = [(qb, kb, s) for qb in range(4) for kb in range(2) for s in range(4)]
    if snake: order = [(p * 2 + (q ^ ((kb + s) & 1)), kb ^ (s & 1), s) for p in range(2) for s in range(4) for kb in range(2) for q in range(2)]
    for qb, kb, s in order:
        c = vr(S(buf,qb,kb),4) if s else ("0" if zero else vr(NEGM(qb),4))
        r.append((f"{MF} {vr(S(buf,qb,kb),4)}, {ar(kf+(kb*4+s)*4,4)}, {ar(Q(qb,s),4)}, {c}", kf + (kb*4+s)*4, qb))
    return r
def ex(b, e): return f"v_exp_f32 {vr(vS+b*32+e)}, {vr(vS+b*32+e)}"
def cv(b, i): return f"v_cvt_pk_bf16_f32 {vr(vP+b*16+i)}, {vr(vS+b*32+2*i)}, {vr(vS+b*32+2*i+1)}"
def ad(b, e): return f"v_add_f32 {vr(vL+(e>>3))}, {vr(vL+(e>>3))}, {vr(vS+b*32+e)}"
def needs(mfs, group=2):
    nd = {}; seen = []
    for g, m in enumerate(mfs):
        if m[1] is not None and m[1] not in seen: seen.append(m[1]); nd[g] = m[1]
    items = sorted(nd.items())
    out = {}
    for i in range(0, len(items), group):
        out[items[i][0]] = [("F", t) for _, t in items[i:i + group]]
    return out
def lastuse(mfs):
    lu = {}
    for g, m in enumerate(mfs):
        if m[1] is not None: lu[m[1]] = g
    return lu

def barrier_ops(cls, g, pre, gaps, vmtags=None, first=False):
    w = ("", "wait", dict(vmn=O.vmn + (O.fuse and O.wopre == 250 and not first), dsn=0) if vmtags is None else dict(vm=vmtags, dsn=0))
    if cls == 0: pre[g] = [w, "s_barrier"]
    else:
        pre[g] = [w]; gaps[g].insert(0, "s_barrier")

def is_vm(o): return not isinstance(o, str) and o[1] == "vm"
def slot(A, p, cls, tag, zero=False, tail=(), groups=None, vmtags=None, after_bar=(), kn=None):
    D = O.D; even = (p & 1) == 0; buf = p & 1; t_ = p >> 1
    vlate, klate, bar0 = kn or (O.vlate, O.klate, O.bar)
    A.c(f"---- slot {tag} pos={p} cls={cls}")
    kr = k_reads(((p + 1) >> 1) & 3, (p + 1) & 1)
    vq = v_reads(t_ & 3, p & 1)
    pvm = pv_mf(buf ^ 1, zero); mfs = pvm + qk_mf(buf ^ 1, snake=O.snake & 2)
    n = len(mfs); npv = len(pvm)
    gaps = {g: [] for g in range(n)}; pre = {}
    seq = [(buf, e) for e in range(D, 32)] + [(buf ^ 1, e) for e in range(D)]
    eg = [2 * i for i in range(32 - D)] + [n - 64 + 2 * i for i in range(32 - D, 32)]
    for g, (b, e) in zip(eg, seq): gaps[g].append(ex(b, e))
    free = [g for g in range(n) if g not in eg]
    cvg = {g + 1: cv(b, e >> 1) for g, (b, e) in zip(eg, seq) if e & 1}
    if even and bar0 <= npv: klate = 0
    for g, t in zip(free[:8 - klate], kr): gaps[g].append(t)
    need = {}
    if klate:
        gaps[npv - 1] += kr[8 - klate:]
        need = {g: t for g, t in needs(mfs).items() if g >= npv}
    lu = lastuse(pvm)
    pre[0] = [("", "wait", dict(dsn=0))]
    if O.trace and groups is None:
        pre[0] += ["s_mov_b64 exec, s[52:53]", "v_mov_b32 v0, s50", "s_mov_b64 exec, -1", "s_lshl_b64 s[52:53], s[52:53], 1"]
        gaps[n - 3].append("s_memrealtime s[50:51]")
    if groups is None:
        kg = dma_k(t_ & 3, "KV"); vg = dma_v((t_ + 3) & 3, "KV")
        if even: flat = [kg[0]] + kg[1] + [vg[0], kg[2]] + (vg[1] + [vg[2]] if O.burst == 1 else [])
        else: flat = vg[1] + [vg[2]] if O.burst == 2 else []
        if O.fuse and O.wopre == 250 and p in (1, 5):
            flat = flat + [(f"buffer_load_dwordx4 {ar(224,4)}, {vr(vOO)}, {sr(sW)}, s{sTW} offen{' nt' if O.wopre_nt else ''}", "vm", "WOP"), f"s_add_u32 s{sTW}, s{sTW}, 1024", f"s_min_u32 s{sTW}, s{sTW}, s{sTW-1}"]
    else:
        flat = [o for grp in groups for o in grp]
    dm = [o for o in flat if is_vm(o)]
    bar = bar0 if even else 15
    if even:
        barrier_ops(cls, bar, pre, gaps, vmtags)
        if after_bar: pre[bar + 1] = list(after_bar)
    rest = [g for g in free if g > bar]
    if klate: rest = [g for g in rest if g != npv - 1]
    if vlate:
        gaps[n - 1] += vq[len(vq) - vlate:]; vq = vq[:len(vq) - vlate]
        rest = [g for g in rest if g != n - 1]
    lack = len(dm) + len(vq) - len(rest)
    xg = set()
    if lack > 0:
        cand = [g for g in eg if g > bar + 4]
        xg = {cand[(q * len(cand)) // lack + len(cand) // (2 * lack)] for q in range(lack)}
        rest = sorted(rest + list(xg))
    dg = []; k = 0
    while dm or vq:
        g = rest.pop(0)
        vok = vq and lu[vq[0][2][1]] <= g
        if g in xg and vok: gaps[g].append(vq.pop(0)); continue
        if dm and k % O.dper == 0 and g in cvg and vok: gaps[g].append(vq.pop(0)); continue
        if dm and (k % O.dper == 0 or not vok) and g not in cvg: gaps[g].append(dm.pop(0)); dg.append(g)
        elif vok: gaps[g].append(vq.pop(0))
        elif dm: gaps[g].append(dm.pop(0)); dg.append(g)
        k += 1
    small = []
    nv = 0
    for o in flat:
        if is_vm(o): nv += 1; continue
        lo = dg[nv - 1] if nv else 16
        hi = n - 1 if ("0x4000" in o or nv == len(dg)) else dg[nv] - 1
        small.append((o, lo, hi))
    if not klate and (not even or bar >= npv): small.append((("", "wait", dict(ds=[o[2] for o in kr])), 24, npv - 1))
    for g, o in cvg.items(): gaps[g].append(o)
    if O.vsum:
        for g, (b, e) in zip(eg, seq): gaps[g + 1].append(ad(b, e))
    def used(g): return sum(4 if (not isinstance(o, str) and o[1] == "wait") else cost(o) for o in gaps[g]) + 4 * len(pre.get(g + 1, []))
    prev = (None, 0)
    for o, lo, hi in small:
        key = (lo, hi)
        if prev[0] == key: lo = prev[1]
        c = [g for g in range(lo, hi + 1) if used(g) <= 5]
        if not c: c = sorted(range(lo, hi + 1), key=used)
        gaps[c[0]].append(o); prev = (key, c[0])
    for q in range(O.pad): gaps[1 + (q * 62) // O.pad // 2 * 2 + 1].append("s_nop 1")
    if O.upad and groups is None:
        lb = f"L_up_{tag}"
        gaps[n - 1] += [f"s_lshl_b32 s3, s{sUNIT}, 2", f"s_sub_u32 s3, s3, s{sLOOP}", "s_add_u32 s3, s3, 3", f"s_cmp_ge_u32 s3, {O.upadm}", f"s_cbranch_scc1 {lb}"] + ["s_nop 7"] * O.upad + [lb + ":"]
    gaps[n - 1] += list(tail)
    interleave(A, [m[0] for m in mfs], gaps, pre=pre, need=need)

def max_chain(qb, buf, t0, t1, run=None):
    s = S(buf, qb, 0)
    st = [f"v_max3_f32 {vr(t0)}, {vr(s)}, {vr(s+1)}, {vr(s+2)}", f"v_max3_f32 {vr(t1)}, {vr(s+3)}, {vr(s+4)}, {vr(s+5)}",
          f"v_max3_f32 {vr(t0)}, {vr(t0)}, {vr(s+6)}, {vr(s+7)}"]
    if run is not None: return st + [f"v_max3_f32 {vr(run)}, {vr(run)}, {vr(t0)}, {vr(t1)}"]
    return st + [f"v_max_f32 {vr(t0)}, {vr(t0)}, {vr(t1)}"]
def xlane_max(t0, t1):
    return [f"v_mov_b32 {vr(t1)}, {vr(t0)}", "s_nop 1", f"v_permlane32_swap_b32 {vr(t0)}, {vr(t1)}", "s_nop 0", f"v_max_f32 {vr(t0)}, {vr(t0)}, {vr(t1)}",
            f"v_mov_b32 {vr(t1)}, {vr(t0)}", "s_nop 1", f"v_permlane16_swap_b32 {vr(t0)}, {vr(t1)}", "s_nop 0", f"v_max_f32 {vr(t0)}, {vr(t0)}, {vr(t1)}"]

def first_slot(A, cls):
    D = O.D
    A.c(f"---- first slot cls={cls}")
    for o in k_reads(0, 0, dst=aVF) + k_reads(0, 1): A.op(o)
    mfs = qk_mf(0, zero=True, kf=aVF) + qk_mf(1)
    gaps = {g: [] for g in range(64)}; pre = {}
    bar = 8
    barrier_ops(cls, bar, pre, gaps, first=True)
    kg = dma_k(0, "KV"); vg = dma_v(3, "KV")
    gaps[bar - 2].append(kg[0])
    dm = kg[1] + (vg[1] if O.burst == 1 else [])
    for i, o in enumerate(dm):
        gaps[bar + 1 + i].append(o)
        if i == 3: gaps[bar + 1 + i].append(vg[0])
    gaps[7].append(kg[2]) if False else None
    st = []
    tA = [vO + 2 * q for q in range(4)]
    for qb in range(4):
        t0, t1 = tA[qb], tA[qb] + 1
        ch = max_chain(qb, 0, t0, t1) + xlane_max(t0, t1)
        ch += [f"v_sub_f32 {vr(NEGM(qb)+r)}, 0, {vr(t0)}" for r in range(4)]
        ch += [f"v_sub_f32 {vr(S(0,qb,0)+r)}, {vr(S(0,qb,0)+r)}, {vr(t0)}" for r in range(8)]
        st.append([ch[0], 8 * qb + 7 + 8]); st += ch[1:]
    sm = []
    for e in range(32):
        sm.append(ex(0, e))
        if e >= 2 and not (e & 1): sm.append(cv(0, (e >> 1) - 1))
        if O.vsum and e >= 2:
            if (e - 2) & 7 == 0: sm.append(f"v_add_f32 {vr(vL+((e-2)>>3))}, {vr(vS+e-2)}, {vr(vS+e-1)}")
            elif (e - 2) & 7 != 1: sm.append(ad(0, e - 2))
    sm += ["s_nop 0", cv(0, 15)]
    if O.vsum: sm += [ad(0, 30), ad(0, 31)]
    vq = v_reads(0, 0)
    for i, o in enumerate(vq): gaps[33 + i * 2 - (i // 8) * 0 if 33 + 2 * i < 64 else 63].append(o)
    post = [kg[2]] + ([vg[2]] if O.burst == 1 else [])
    if O.smf: post += [f"v_accvgpr_write_b32 {ar(aL+q)}, 0" for q in range(8)]
    nd = needs(mfs)
    nch = len(st) // 4
    m = [x[0] for x in mfs]
    def sub(d, lo, hi): return {g - lo: v for g, v in d.items() if lo <= g < hi}
    def shift(s, lo): return [[x[0], x[1] - lo] if isinstance(x, list) else x for x in s]
    segs = [(0, 32, st[:nch]), (32, 40, st[nch:2*nch]), (40, 48, st[2*nch:3*nch]), (48, 56, st[3*nch:]), (56, 64, [])]
    carry = []
    allst = st + post + sm
    pos = 0
    marks = {32: nch, 40: 2 * nch, 48: 3 * nch, 56: 4 * nch}
    for g in range(64):
        if g in marks:
            while pos < marks[g]:
                o = allst[pos][0] if isinstance(allst[pos], list) else allst[pos]
                A.op(o); pos += 1
            A("s_nop 1")
        for t in pre.get(g, []): A.op(t)
        if g in nd: A.wait(ds=nd[g])
        A(m[g])
        room = O.budget - sum(cost(o) for o in gaps[g])
        for o in gaps[g]: A.op(o)
        while pos < len(allst):
            o, at = allst[pos] if isinstance(allst[pos], list) else (allst[pos], 0)
            if at > g or room <= 0 or cost(o) > room + 1: break
            A.op(o); room -= cost(o); pos += 1
    while pos < len(allst):
        A.op(allst[pos]); pos += 1
    for e in range(D):
        A(ex(1, e))
        if e >= 2 and not (e & 1): A(cv(1, (e >> 1) - 1))
    A("s_nop 0"); A(cv(1, D // 2 - 1))
    if O.vsum:
        for e in range(D): A(ad(1, e))
    A("s_nop 1")

def o_store(reg, qb, t, tag, so):
    return (f"buffer_store_dwordx4 {reg}, {vr(vOO)}, {sr(sO)}, s{so} offen offset:{t*1024}{[' sc1', ' sc1 nt', ' sc0 sc1', ' sc0 sc1 nt'][O.stfl if tag == 'ST0' or O.stfl1 else 0] if O.st_sc1 else ''}", "vm", tag)
def row_sums():
    st = []
    for sw in ("v_permlane32_swap_b32", "v_permlane16_swap_b32"):
        st += [f"v_mov_b32 {vr(vP+2*q+1)}, {vr(vL+q)}" for q in range(4)]
        st += [f"{sw} {vr(vL+q)}, {vr(vP+2*q+1)}" for q in range(4)]
        st += [f"v_add_f32 {vr(vL+q)}, {vr(vL+q)}, {vr(vP+2*q+1)}" for q in range(4)]
    st += [f"v_rcp_f32 {vr(vP+2*q)}, {vr(vL+q)}" for q in range(4)]
    if O.chk:
        st += [f"v_max3_f32 {vr(vP+1)}, {vr(vL)}, {vr(vL+1)}, {vr(vL+2)}"]
        for q in (vP + 1, vL + 3): st += [f"v_cmp_nle_f32 vcc, {vr(q)}, s{sTHR}", f"s_or_b64 s[{sM}:{sM+1}], s[{sM}:{sM+1}], vcc"]
    return st
def epi_qb(qb, store):
    so = [f"s_add_u32 s{sT}, s{sOOF}, {qb*131072}"]
    if O.vsum:
        inv = vP + 2 * qb
        st = so + ([f"v_accvgpr_read_b32 {vr(vL+q)}, {ar(aL+q)}" for q in range(4)] if qb == 3 else [])
    else:
        inv = vP + 2 * (qb & 1)
        st = [f"v_accvgpr_read_b32 {vr(inv+1)}, {ar(LA(qb))}", f"v_rcp_f32 {vr(inv)}, {vr(inv+1)}"]
        if O.smf: st = [f"v_accvgpr_read_b32 {vr(inv+q)}, {ar(aL+2*qb+q)}" for q in range(2)] + [f"v_add_f32 {vr(inv+1)}, {vr(inv)}, {vr(inv+1)}", st[1]]
        if O.chk: st += [f"v_cmp_nle_f32 vcc, {vr(inv+1)}, s{sTHR}"]
        st += so
        if O.chk: st += [f"s_or_b64 s[{sM}:{sM+1}], s[{sM}:{sM+1}], vcc"]
    for t in range(4):
        o = OA(2 * t, qb)
        st += [f"v_pk_mul_f32 {vr(o+2*i,2)}, {vr(o+2*i,2)}, {vr(inv,2)} op_sel_hi:[1,0]" for i in range(4)]
        d = vS + (qb * 4 + t) * 4
        st += [f"v_cvt_pk_bf16_f32 {vr(d+i)}, {vr(o+2*i)}, {vr(o+2*i+1)}" for i in range(4)]
        if store: st.append(o_store(vr(d, 4), qb, t, "ST", sT))
    return st

def last_slot(A, store, extra1=(), mid=None, extra2=()):
    D = O.D
    A.c("---- last slot + final PV + epilogue")
    pvm = pv_mf(0); n = len(pvm); nq = n // 4
    gaps = {g: [] for g in range(n)}
    lu = lastuse(pvm)
    for i, o in enumerate(v_reads(3, 1)):
        g = min(n - 1, lu[o[2][1]] + 1 + (i & 1)); gaps[g].append(o)
    sm = []
    for e in range(D, 32):
        sm.append(ex(1, e))
        if e > D and not (e & 1): sm.append(cv(1, (e >> 1) - 1))
        if O.vsum and e > D: sm.append(ad(1, e - 1))
    sm += ["s_nop 0", cv(1, 15)] + ([ad(1, 31)] if O.vsum else []) + ["s_nop 1"]
    ex_ = list(extra1)
    for g in range(0, n):
        if ex_ and not gaps[g]: gaps[g] += ex_.pop(0)
    assert not ex_
    A(f"s_mov_b64 s[{sM}:{sM+1}], 0")
    interleave(A, [m[0] for m in pvm], gaps, stream=sm, need=needs(pvm))
    if mid: mid()
    fin = pv_mf(1, qbmajor=True)
    st = row_sums() if O.vsum else []
    for qb in range(4):
        e = epi_qb(qb, qb < store)
        k = 1 if O.vsum and qb < 3 else 0
        if qb == 3: st.append("s_nop 7")
        st += e[:k]; st.append([e[k], max(g for g, m in enumerate(fin) if m[2] == qb) + 8]); st += e[k+1:]
    gaps = {g: [] for g in range(n)}
    ex_ = list(extra2)
    for g in range(0, n):
        if ex_ and (g < 16 or g % 2 == 0): gaps[g] += ex_.pop(0)
    assert not ex_
    interleave(A, [m[0] for m in fin], gaps, stream=st, need=needs(fin, group=8))

def fallback(A):
    A.label("L_fb")
    lane, g, i, r, ka, kb_, va, vd, t0, t1 = range(64, 74)
    run = 76
    A("s_waitcnt vmcnt(0) lgkmcnt(0)"); A("s_nop 7")
    A(f"v_mbcnt_lo_u32_b32 {vr(lane)}, -1, 0"); A(f"v_mbcnt_hi_u32_b32 {vr(lane)}, -1, {vr(lane)}")
    A(f"v_lshrrev_b32 {vr(g)}, 4, {vr(lane)}"); A(f"v_and_b32 {vr(i)}, 15, {vr(lane)}")
    A(f"v_and_b32 {vr(t0)}, 1, {vr(g)}"); A(f"v_lshlrev_b32 {vr(t0)}, 1, {vr(t0)}"); A(f"v_lshrrev_b32 {vr(t1)}, 1, {vr(g)}")
    A(f"v_or_b32 {vr(t0)}, {vr(t0)}, {vr(t1)}"); A(f"v_lshlrev_b32 {vr(t0)}, 4, {vr(t0)}")
    A(f"v_lshl_add_u32 {vr(ka)}, {vr(i)}, 8, {vr(t0)}"); A(f"v_add_u32 {vr(kb_)}, 4096, {vr(ka)}")
    A(f"v_lshlrev_b32 {vr(vd)}, 4, {vr(lane)}")
    A(f"s_lshl_b32 s{sT3}, s{sWAVE}, 13"); A(f"s_add_u32 s{sT3}, s{sT3}, {FBBASE}")
    if O.fuse: A(f"s_cmp_eq_u32 s{sUNIT}, 0"); A(f"s_cselect_b32 s{sT3}, s{sT3}, s{sWM+3}")
    A(f"v_lshrrev_b32 {vr(r)}, 2, {vr(i)}"); A(f"v_lshl_add_u32 {vr(t0)}, {vr(g)}, 2, {vr(r)}"); A(f"v_lshlrev_b32 {vr(t0)}, 8, {vr(t0)}")
    A(f"v_and_b32 {vr(t1)}, 3, {vr(i)}"); A(f"v_lshl_add_u32 {vr(t0)}, {vr(t1)}, 3, {vr(t0)}"); A(f"v_add_u32 {vr(va)}, s{sT3}, {vr(t0)}")
    def kload():
        for kb in range(2):
            for s in range(4):
                A(f"buffer_load_dwordx4 {ar(aKF+(kb*4+s)*4,4)}, {vr(kb_ if kb else ka)}, {sr(sK)}, s{sT} offen offset:{s*64}")
    for q in range(4): A(f"v_mov_b32 {vr(run+q)}, 0xff800000")
    A(f"s_lshl_b32 s{sT}, s{sUNIT}, 18"); A(f"s_add_u32 s{sT2}, s{sT}, 0x40000")
    A.label("L_fb1")
    kload(); A("s_waitcnt vmcnt(0)")
    for m in qk_mf(0, zero=True): A(m[0])
    A("s_nop 7")
    for q in range(4):
        for o in max_chain(q, 0, t0, t1, run=run + q): A(o)
    A(f"s_add_u32 s{sT}, s{sT}, 0x2000"); A(f"s_cmp_lt_u32 s{sT}, s{sT2}"); A("s_cbranch_scc1 L_fb1")
    for q in range(4):
        for o in xlane_max(run + q, t1): A(o)
        for rr in range(4): A(f"v_sub_f32 {vr(NEGM(q)+rr)}, 0, {vr(run+q)}")
    for k in range(128): A(f"v_mov_b32 {vr(vO+k)}, 0")
    for k in range(16): A(f"v_accvgpr_write_b32 {ar(aL+k)}, 0")
    A(f"s_lshl_b32 s{sT}, s{sUNIT}, 18")
    A.label("L_fb2")
    kload()
    for hf in range(2):
        A(f"s_add_u32 m0, s{sT3}, {hf*4096}"); A(f"s_add_u32 s3, s{sT}, {hf*4096}")
        for p in range(4): A(f"buffer_load_dwordx4 {vr(vd)}, {sr(sV)}, s3 offen offset:{p*1024} lds")
    A("s_waitcnt vmcnt(0)")
    for db in range(8):
        for jh in range(2): A(f"ds_read_b64_tr_b16 {ar(aVF+db*4+2*jh,2)}, {vr(va)} offset:{db*32+jh*4096}")
    for m in qk_mf(0): A(m[0])
    A("s_nop 7")
    for e in range(32): A(ex(0, e))
    A("s_nop 0")
    for k in range(16): A(cv(0, k))
    if O.vsum:
        for e in range(32): A(ad(0, e))
    A("s_waitcnt lgkmcnt(0)"); A("s_nop 1")
    for m in pv_mf(0): A(m[0])
    A(f"s_add_u32 s{sT}, s{sT}, 0x2000"); A(f"s_cmp_lt_u32 s{sT}, s{sT2}"); A("s_cbranch_scc1 L_fb2")
    A("s_nop 7")
    if O.vsum:
        for o in row_sums(): A(o)
    for qb in range(4):
        for o in epi_qb(qb, False): A(o)
    for qb in range(4):
        if O.fuse and qb == O.est: A(f"s_cmp_eq_u32 s{sUNIT}, 0"); A("s_cbranch_scc1 L_fbret0")
        A(f"s_add_u32 s{sT}, s{sOOF}, {qb*131072}")
        for t in range(4): A(o_store(vr(vS + (qb * 4 + t) * 4, 4), qb, t, "ST", sT)[0])
    if not O.fuse or O.est == 4: A(f"s_cmp_eq_u32 s{sUNIT}, 0"); A("s_cbranch_scc1 L_fbret0")
    if O.fuse: oproj_setup(A)
    A("s_branch L_fbret1")

def srd(A, d, lo, hi, off, size):
    A(f"s_add_u32 s{d}, s{lo}, {off}"); A(f"s_addc_u32 s{d+1}, s{hi}, 0"); A(f"s_and_b32 s{d+1}, s{d+1}, 0xffff")
    A(f"s_mov_b32 s{d+2}, {size}"); A(f"s_mov_b32 s{d+3}, 0x20000")

def one_lane(A, val, text, tag):
    A(f"v_mov_b32 v0, {val}"); A("s_mov_b64 exec, 1")
    A.op((text, "vm", tag))
    A("s_mov_b64 exec, -1")
def flag_ops(val, name):
    return [f"s_cmp_lg_u32 s{sWAVE}, 0", f"s_cbranch_scc1 L_np_{name}", f"v_mov_b32 v0, {val}", "s_mov_b64 exec, 1",
            f"buffer_store_byte v0, off, {sr(sCNT)}, s{sGI} sc1", "s_mov_b64 exec, -1", f"L_np_{name}:"]
def poll_text(): return f"buffer_load_dword v0, {vr(vPOLL)}, {sr(sCNT)}, 0 offen sc1"
def poll_ops(name): return [f"s_cmp_lg_u32 s{sWAVE}, 0", f"s_cbranch_scc1 L_np_{name}", (poll_text(), "mark", name), f"L_np_{name}:"]
spins = []
def poll_test(A, mask, own):
    A(f"v_or_b32 v0, v0, {vr(own)}"); A(f"v_and_b32 v0, {hex(mask)}, v0"); A(f"v_cmp_ne_u32 vcc, {hex(mask)}, v0")
def poll_check(A, mask, name, own, mark):
    A(f"s_cmp_lg_u32 s{sWAVE}, 0"); A(f"s_cbranch_scc1 L_spun_{name}")
    A(f"s_waitcnt vmcnt({min(63, A.nvm - A.mark[mark])})")
    poll_test(A, mask, own); A(f"s_cbranch_vccnz L_spin_{name}")
    A.label(f"L_spun_{name}")
    spins.append((mask, name, own))
def emit_spins(A):
    for mask, name, own in spins:
        A.label(f"L_spin_{name}")
        A("s_mov_b32 s3, 0x40000")
        A.label(f"L_spinl_{name}")
        A(poll_text()); A("s_waitcnt vmcnt(0)")
        poll_test(A, mask, own); A(f"s_cbranch_vccz L_spun_{name}")
        A("s_sub_u32 s3, s3, 1"); A("s_cmp_lg_u32 s3, 0"); A(f"s_cbranch_scc1 L_spinl_{name}")
        A(f"s_branch L_spun_{name}")

PIECE = [[13, 14, 15, 0], [1, 2, 8, 9], [3, 10, 4, 5], [6, 7, 11, 12]]
X_OFF = 40 << 20
aWD = 212
vOQ, vWD, vOWN, vOWX = 16, 18, 28, 29
sWB, sR13, sWM, sWT = sWQW, sXW, 92, 84
def slab_c(j): return ((j & 7) << 13) | ((j >> 3) << 12)
def slab_o(j): return slab_c(j & 1) if O.ofake else slab_c(j)
def w_dma(j, hf, early=False):
    jw = j & 1 if O.wfake else j
    r = [[f"s_add_u32 s{sT2}, s{sWT+(jw&7)}, {(jw>>3)*163840}", f"s_add_u32 m0, s{sWM+(j&3)}, {hf*4096}"]]
    for p in range(5):
        v = vWD + hf * 5 + p
        if early:
            v = vOKV
            r[-1].append(f"v_accvgpr_read_b32 {vr(v)}, {ar(aWD+hf*5+p)}")
        if p == 4: r[-1].append(f"s_add_u32 m0, s{sWM+(j&3)}, 8192")
        r.append([(f"buffer_load_dwordx4 {vr(v)}, {sr(sW)}, s{sT2} offen offset:{(p if p < 4 else hf)*1024}{['', ' sc1', ' nt', ' sc0 sc1', ' sc0'][O.wofl]} lds", "vm", ("W", j))])
    return r
OPH = [2, 3, 7, 0, 1, 4, 5, 6]
def OF(j, kk, qq): return OPH[j & 7] * 32 + (kk * 2 + qq) * 4
def o_ld(j):
    r = [[f"s_xor_b32 s4, s{sR13}, {slab_o(j)}"]]
    for kk in range(4):
        for qq in range(2):
            r.append([(f"buffer_load_dwordx4 {ar(OF(j,kk,qq),4)}, {vr(vOQ+qq)}, {sr(sX)}, s4 offen offset:{kk*1024}{SC1()}", "vm", ("O", j))])
    r[1] = r[0] + r[1]
    return r[1:]
def mbox(op, reg, so, tag):
    r = [[(f"buffer_{op}_dwordx4 {reg(t)}, {vr(vOO)}, {sr(sO)}, s{so if t < 4 else sT} offen offset:{(t&3)*1024} sc1{' nt' if (tag == 'XF' and O.xffl & 1) or (tag == 'XS' and O.xffl & 2) or (tag == 'XL' and O.xffl & 4) else ''}", "vm", tag)] for t in range(5)]
    r[3].append(f"s_add_u32 s{sT}, s{so}, 4096")
    return r
def oproj_early(A, tb):
    lane, t0, t1, t2 = range(tb, tb + 4)
    A(f"s_bfe_u32 s3, s7, 0x10002"); A(f"s_lshr_b32 s4, s7, 3")
    A(f"s_lshr_b32 s{sT}, s{sGI}, 4"); A(f"s_lshl_b32 s{sT}, s{sT}, 22")
    A(f"s_lshl_b32 s{sT2}, s3, 20"); A(f"s_add_u32 s{sT}, s{sT}, s{sT2}"); A(f"s_lshl_b32 s{sT2}, s4, 16"); A(f"s_add_u32 s{sT}, s{sT}, s{sT2}")
    srd(A, sX, sWS, sWS + 1, f"s{sT}", "0xf0000")
    A(f"s_mov_b64 s[{sW}:{sW+1}], s[{sWOI}:{sWOI+1}]"); A(f"s_mov_b32 s{sW+2}, 5242880")
    A(f"s_lshl_b32 s{sT}, s4, 6"); A(f"s_add_u32 s{sT}, s{sT}, s{sWAVE}"); A(f"s_mul_i32 s{sWB}, s{sT}, 40960")
    A(f"s_and_b32 s{sT}, s7, 3"); A(f"s_mul_i32 s{sT}, s{sT}, {256 if O.walign else 320}"); A(f"s_add_u32 s{sWB}, s{sWB}, s{sT}")
    if O.own1: A(f"s_and_b32 s{sR13}, s7, 7"); A(f"s_lshl_b32 s{sR13}, s{sR13}, 13")
    else: A(f"s_mov_b32 s{sR13}, 0")
    for j in range(8):
        A(f"s_xor_b32 s{sT}, s{sR13}, {slab_c(j)}"); A(f"s_mul_i32 s{sT}, s{sT}, 40"); A(f"s_add_u32 s{sWT+j}, s{sT}, s{sWB}")
    A(f"s_lshl_b32 s{sT}, s{sWAVE}, 2")
    for sl in range(4):
        A(f"s_lshr_b32 s{sT2}, {hex(sum(PIECE[sl][w] << (4 * w) for w in range(4)))}, s{sT}"); A(f"s_and_b32 s{sT2}, s{sT2}, 15")
        A(f"s_mul_i32 s{sWM+sl}, s{sT2}, 10240")
    A(f"v_bfe_u32 {vr(lane)}, {vr(vOO)}, 4, 6")
    A(f"s_and_b32 s3, s7, 1"); A(f"s_xor_b32 s4, s4, 1")
    A(f"v_lshrrev_b32 {vr(t0)}, 3, {vr(lane)}"); A(f"v_mul_u32_u24 {vr(t0)}, 1280, {vr(t0)}")
    A(f"v_lshrrev_b32 {vr(t1)}, 3, {vr(lane)}"); A(f"v_and_b32 {vr(t1)}, 6, {vr(t1)}"); A(f"v_and_b32 {vr(t2)}, 7, {vr(lane)}"); A(f"v_xor_b32 {vr(t1)}, {vr(t1)}, {vr(t2)}")
    A(f"v_lshl_add_u32 {vr(t0)}, {vr(t1)}, 4, {vr(t0)}")
    for h in range(2):
        A(f"s_xor_b32 s{sT}, s4, {h}"); A(f"s_lshl_b32 s{sT}, s{sT}, 1"); A(f"s_add_u32 s{sT}, s{sT}, s3"); A(f"s_lshl_b32 s{sT}, s{sT}, 6")
        for rb in range(4):
            A(f"v_add_u32 {vr(t1)}, s{sT}, {vr(t0)}"); A(f"v_accvgpr_write_b32 {ar(aWD+h*5+rb)}, {vr(t1)}")
            if rb < 3: A(f"s_add_u32 s{sT}, s{sT}, 9216")
    A(f"v_lshrrev_b32 {vr(t0)}, 2, {vr(lane)}"); A(f"v_mul_u32_u24 {vr(t0)}, 1280, {vr(t0)}")
    A(f"v_bfe_u32 {vr(t1)}, {vr(lane)}, 4, 1"); A(f"v_xor_b32 {vr(t1)}, s4, {vr(t1)}"); A(f"v_lshlrev_b32 {vr(t1)}, 1, {vr(t1)}")
    A(f"v_and_b32 {vr(t2)}, 3, {vr(lane)}"); A(f"v_xor_b32 {vr(t1)}, {vr(t1)}, {vr(t2)}"); A(f"v_lshl_add_u32 {vr(t0)}, {vr(t1)}, 4, {vr(t0)}")
    A(f"s_xor_b32 s3, s3, 1"); A(f"s_lshl_b32 s3, s3, 8"); A(f"v_add_u32 {vr(t0)}, s3, {vr(t0)}"); A(f"v_add_u32 {vr(t1)}, {20480-1024}, {vr(t0)}")
    A(f"v_accvgpr_write_b32 {ar(aWD+4)}, {vr(t0)}"); A(f"v_accvgpr_write_b32 {ar(aWD+9)}, {vr(t1)}")
    if O.wopre in (200, 250):
        A(f"s_and_b32 s{sT}, s{sGI}, 127"); A(f"s_mul_i32 s{sT}, s{sT}, 10240"); A(f"s_mul_i32 s{sTW}, s{sWAVE}, {1310720 - 524288}"); A(f"s_add_u32 s{sTW}, s{sTW}, s{sT}")
        A(f"s_add_u32 s{sTW-1}, s{sTW}, 9216")
    A(f"s_and_b32 s{sT}, s{sGI}, 0xf0"); A(f"v_and_b32 {vr(t0)}, 3, {vr(lane)}"); A(f"v_lshlrev_b32 {vr(t0)}, 2, {vr(t0)}"); A(f"v_add_u32 {vr(t0)}, s{sT}, {vr(t0)}")
    A(f"v_accvgpr_write_b32 {ar(aPOLL)}, {vr(t0)}")
    if O.smf:
        A(f"v_lshrrev_b32 {vr(t0)}, 4, {vr(lane)}"); A(f"v_xor_b32 {vr(t0)}, {vr(t0)}, {vr(lane)}"); A(f"v_bfe_i32 {vr(t0)}, {vr(t0)}, 1, 1")
        A(f"v_bfi_b32 {vr(t0)}, {vr(t0)}, 0, s{sT3}")
        for q in range(4): A(f"v_accvgpr_write_b32 {ar(aONE+q)}, {vr(t0)}")
        A(f"v_bfe_i32 {vr(t0)}, {vr(lane)}, 0, 1"); A(f"v_and_b32 {vr(t0)}, 0xaaaaaaaa, {vr(t0)}"); A(f"v_or_b32 {vr(vIDX)}, 0x44444444, {vr(t0)}")
def oproj_setup(A):
    vTMP = vPOLL
    A(f"v_accvgpr_read_b32 {vr(vPOLL)}, {ar(aPOLL)}")
    A(f"s_lshl_b32 s{sT}, s{sWAVE}, 18"); A(f"v_and_b32 {vr(vOQ)}, 0x3ff, {vr(vOO)}")
    A(f"v_add_u32 {vr(vOQ)}, s{sT}, {vr(vOQ)}"); A(f"v_add_u32 {vr(vOQ+1)}, 0x20000, {vr(vOQ)}")
    for p in range(10): A(f"v_accvgpr_read_b32 {vr(vWD+p)}, {ar(aWD+p)}")
    A(f"s_and_b32 s{sT}, s{sGI}, 0xfc"); A(f"s_and_b32 s3, s{sGI}, 3"); A(f"s_lshl_b32 s3, s3, 3"); A(f"s_lshl_b32 s3, 0xff, s3")
    A(f"v_cmp_eq_u32 vcc, s{sT}, {vr(vTMP)}"); A(f"v_mov_b32 {vr(vOWN)}, s3"); A(f"s_xor_b32 s{sT}, s{sT}, 8"); A(f"v_cndmask_b32 {vr(vOWN)}, 0, {vr(vOWN)}, vcc")
    A(f"v_cmp_eq_u32 vcc, s{sT}, {vr(vTMP)}"); A(f"s_not_b32 s3, s3"); A(f"v_mov_b32 {vr(vOWX)}, s3"); A(f"v_cndmask_b32 {vr(vOWX)}, -1, {vr(vOWX)}, vcc")
    A(f"v_xor_b32 {vr(31)}, s{sGI}, {vr(vTMP)}"); A(f"v_bfe_i32 {vr(31)}, {vr(31)}, 3, 1")
    A(f"v_and_or_b32 {vr(vOWX)}, {vr(vOWX)}, {vr(31)}, {vr(vOWN)}"); A(f"v_or_b32 {vr(vOWN)}, {vr(vOWN)}, {vr(31)}")

def oproj(A):
    vWR = 200
    vACC, vWF = 40, 120
    def ACC(h, qq, nb): return vACC + h * 40 + (qq * 5 + nb) * 4
    def WF(par, f): return vWF + par * 40 + f * 4
    A.c("---- O projection")
    lane, t0, t1 = 38, 39, 37
    A(f"v_bfe_u32 {vr(lane)}, {vr(vOO)}, 4, 6"); A(f"v_lshrrev_b32 {vr(t0)}, 5, {vr(lane)}"); A(f"v_lshlrev_b32 {vr(t0)}, 10, {vr(t0)}")
    A(f"v_bfe_u32 {vr(t1)}, {vr(lane)}, 2, 3"); A(f"v_lshl_add_u32 {vr(t0)}, {vr(t1)}, 7, {vr(t0)}")
    A(f"v_and_b32 {vr(t1)}, 3, {vr(lane)}"); A(f"v_lshl_add_u32 {vr(t0)}, {vr(t1)}, 3, {vr(t0)}")
    A(f"v_bfe_u32 {vr(t1)}, {vr(lane)}, 3, 2"); A(f"v_lshl_add_u32 {vr(vWR)}, {vr(t1)}, 5, {vr(t0)}")
    for nb in range(1, 4): A(f"v_xor_b32 {vr(vWR+3*nb)}, {nb*32}, {vr(vWR)}")
    A(f"v_lshrrev_b32 {vr(t0)}, 2, {vr(lane)}"); A(f"v_lshlrev_b32 {vr(t0)}, 6, {vr(t0)}"); A(f"v_and_b32 {vr(t1)}, 3, {vr(lane)}"); A(f"v_lshl_add_u32 {vr(t0)}, {vr(t1)}, 3, {vr(t0)}")
    A(f"v_bfe_u32 {vr(t1)}, {vr(lane)}, 4, 1"); A(f"v_lshl_add_u32 {vr(vWR+12)}, {vr(t1)}, 5, {vr(t0)}"); A(f"v_xor_b32 {vr(vWR+15)}, 32, {vr(vWR+12)}")
    for q in range(6):
        for w in (2, 1): A(f"v_add_u32 {vr(vWR+3*q+w)}, {51200*w}, {vr(vWR+3*q)}")
    nd_ = O.ndef; nf = 16 - nd_
    steps = [(j, kk, (0, 1)) for j in range(nf) for kk in range(4)] + [(j, kk, (h,)) for h in range(2) for j in range(nf, 16) for kk in range(4)]
    def w_rd(i):
        j, kk, hs = steps[i]
        pc = PIECE[j & 3][kk]; w = min(pc // 5, 2)
        return [(f"ds_read_b64_tr_b16 {vr(WF(i&1,f*5+nb)+2*jh,2)}, {vr(vWR+3*(nb if nb < 4 else 4+h)+w)} offset:{pc*10240-w*51200+(h*4096+jh*2048 if nb < 4 else 8192+jh*1024)}", "ds", ("WF", i & 1, f * 5 + nb))
                for f, h in enumerate(hs) for nb in range(5) for jh in range(2) if not (O.lfake and f == 1)]
    for ops in o_ld(3):
        for o in ops: A.op(o)
    A.wait(vm=[("W", 0), ("O", 0)]); A("s_barrier")
    for o in w_rd(0): A.op(o)
    mf = []; need = {}; gaps = {}; pre = {}; start = []; bars = {}
    for i, (j, kk, hs) in enumerate(steps):
        start.append(len(mf))
        for f, h in enumerate(hs):
            for nb in range(5):
                if nb in (0, 2): need[len(mf)] = [("WF", i & 1, f * 5 + q) for q in ((0, 1) if nb == 0 else (2, 3, 4))]
                for qq in ((1, 0) if (f + nb) & 1 and O.snake & 8 else (0, 1)):
                    c = "0" if (j == 0 and kk == 0) else vr(ACC(h, qq, nb), 4)
                    mf.append(f"{MF} {vr(ACC(h,qq,nb),4)}, {vr(WF(i&1,f*5+nb),4)}, {ar(OF(j,kk,qq),4)}, {c}")
    n = len(mf); start.append(n)
    gaps = {g: [] for g in range(n)}
    iB = len(steps) - 4 * nd_; gB = start[iB]
    for i, (j, kk, hs) in enumerate(steps):
        g0 = start[i]; ln = start[i + 1] - g0; lo = 0
        if kk == 3 and i < iB and j + 1 < 16:
            lo = O.obar if ln == 20 else 2
            bars[j] = g0 + lo
            p = [("", "wait", dict(vm=[("W", j + 1), ("O", j + 1)] + (["ST"] if j == O.pub2 else []), dsn=0 if j + 4 < 16 else None))]
            if j == 4: p.append(("", "call", lambda A_: poll_check(A_, 0x03030303, "u2", vOWN, "p2")))
            p.append("s_barrier")
            if j == O.pub2: p += flag_ops(3, "f2")
            if j == 3: p += poll_ops("p2")
            pre[g0 + lo] = p
        if i + 1 < len(steps):
            rd = w_rd(i + 1); np_ = len(rd) // 2
            stp = 2 if lo + 2 * np_ <= ln + 1 else 1.5
            if O.lfake and ln == 20:
                for q in range(len(rd)): gaps[g0 + lo + int(q * (2 if lo == 0 else 1.5))] += rd[q:q + 1]
            else:
                for q in range(np_): gaps[g0 + lo + int(q * stp)] += rd[2 * q:2 * q + 2]
    def spread(mem, g, sp, dense=False, dry=False):
        for ops in mem:
            while gaps[g] or g + 1 in pre or (g + 1 in need and not dense): g += 1
            if not dry: gaps[g] += ops
            g += sp if any(is_vm(o) for o in ops) else 1
        return g
    spread(w_dma(3, 0) + w_dma(3, 1), 1, 2)
    for j in range(12):
        mem = w_dma(j + 4, 0) + ([] if O.whalf else w_dma(j + 4, 1)) + o_ld(j + 4)
        dn = spread(mem, bars[j], O.osp, dry=True) > bars[j + 1]
        assert spread(mem, bars[j], O.osp, dn) <= bars[j + 1], j
    vXS, vXR = 220, vACC
    xs = []
    st = mbox("store", lambda t: vr(vXS + 4 * t, 4), sXO, "XS")
    for t in (0, 2, 3, 1, 4):
        xs += [[f"v_cvt_pk_bf16_f32 {vr(vXS+4*t+q)}, {vr(vACC+8*t+2*q)}, {vr(vACC+8*t+2*q+1)}" for q in range(2 * u, 2 * u + 2)] for u in range(2)]
        if t == 4: xs.append([st[3][1]])
        xs.append(st[t][:1])
    e = spread(xs, gB + 1, 1, True)
    xl = mbox("load", lambda t: vr(vXR + 4 * t, 4), sXI, "XL")
    assert e < n - O.xld
    spread(xl, n - O.xld, 1, True)
    for j in (4, 9): pre[start[4 * j]] = pre.get(start[4 * j], []) + [("", "call", lambda A_, j=j: stamp(A_, f"slab{j}", 2))]
    for j in (1, 4, 6, 12): pre[start[4 * j]] = pre.get(start[4 * j], []) + [("", "call", lambda A_, j=j: stamp(A_, f"slab{j}", 6))]
    pre[gB] = pre.get(gB, []) + [("", "call", lambda A_: stamp(A_, "phaseB", 5))]
    interleave(A, mf, gaps, pre=pre, need=need)
    stamp(A, "oproj loop done"); stamp(A, "oloop", 5); stamp(A, "oloop", 6)
    A(f"v_and_b32 {vr(t0)}, 15, {vr(lane)}"); A(f"v_mul_u32_u24 {vr(t0)}, 2560, {vr(t0)}"); A(f"v_lshrrev_b32 {vr(t1)}, 4, {vr(lane)}")
    A(f"s_mul_i32 s{sT}, s{sWAVE}, {32*2560}"); A(f"s_and_b32 s3, s7, 1"); A(f"s_lshr_b32 s4, s7, 3")
    A(f"s_lshl_b32 s{sT2}, s4, 1"); A(f"s_add_u32 s{sT2}, s{sT2}, s3"); A(f"s_lshl_b32 s{sT2}, s{sT2}, 6"); A(f"s_add_u32 s{sT2}, s{sT2}, s{sT}")
    A(f"s_xor_b32 s3, s3, 1"); A(f"s_lshl_b32 s3, s3, 3"); A(f"s_add_u32 s3, s3, s4"); A(f"s_lshl_b32 s3, s3, 5"); A(f"s_add_u32 s3, s3, s{sT}")
    A(f"v_lshl_add_u32 {vr(vOQ+1)}, {vr(t1)}, 3, {vr(t0)}"); A(f"v_add_u32 {vr(vOQ+1)}, s3, {vr(vOQ+1)}")
    A(f"v_bfe_u32 {vr(t1)}, {vr(lane)}, 4, 1"); A(f"v_lshl_add_u32 {vr(t0)}, {vr(t1)}, 5, {vr(t0)}")
    A(f"v_lshrrev_b32 {vr(t1)}, 5, {vr(lane)}"); A(f"v_lshl_add_u32 {vr(vOQ)}, {vr(t1)}, 4, {vr(t0)}"); A(f"v_add_u32 {vr(vOQ)}, s{sT2}, {vr(vOQ)}")
    def xtest():
        A(f"v_max3_u32 {vr(t0)}, {vr(vXR)}, {vr(vXR+1)}, {vr(vXR+2)}"); A(f"v_max3_u32 {vr(t1)}, {vr(vXR+3)}, {vr(vXR+4)}, {vr(vXR+5)}")
        for q in range(6, 20, 2): A(f"v_max3_u32 {vr(t0 if q & 2 else t1)}, {vr(t0 if q & 2 else t1)}, {vr(vXR+q)}, {vr(vXR+q+1)}")
        A(f"v_max_u32 {vr(t0)}, {vr(t0)}, {vr(t1)}"); A(f"v_cmp_eq_u32 vcc, -1, {vr(t0)}")
    A("s_mov_b32 s4, 0x40000")
    A.label("L_xpoll")
    A("s_waitcnt vmcnt(0)"); A.vm = []
    xtest(); A("s_cbranch_vccz L_xdone")
    for ops in xl:
        for o in ops: A(o if isinstance(o, str) else o[0])
    A("s_sub_u32 s4, s4, 1"); A("s_cmp_lg_u32 s4, 0"); A("s_cbranch_scc1 L_xpoll")
    A("s_waitcnt vmcnt(0)")
    A.label("L_xdone")
    stamp(A, "xflag", 5)
    A(f"s_mov_b32 s{sT}, {16*2560}"); A("s_movk_i32 s3, 0x3f80"); A("s_mov_b32 s4, 0x3f800000")
    for qq in range(2):
        d = vWF + qq * 10; ac = ACC(1, qq, 0)
        for i in range(20): A(f"v_dot2_f32_bf16 {vr(ac+i)}, {vr(vXR+qq*10+i//2)}, s{3+(i&1)}, {vr(ac+i)}")
        for i in range(10): A(f"v_cvt_pk_bf16_f32 {vr(d+i)}, {vr(ac+2*i)}, {vr(ac+2*i+1)}")
        so = f"s{sT}" if qq else "0"
        A("s_nop 0")
        for P_ in range(2):
            for q in range(2): A(f"v_permlane16_swap_b32 {vr(d+4*P_+q)}, {vr(d+4*P_+2+q)}")
        A.op((f"buffer_store_dwordx2 {vr(d+8,2)}, {vr(vOQ+1)}, {sr(sOUT)}, {so} offen{OFL()}", "vm", "OUT"))
        A.op((f"buffer_store_dwordx4 {vr(d,4)}, {vr(vOQ)}, {sr(sOUT)}, {so} offen{OFL()}", "vm", "OUT"))
        A.op((f"buffer_store_dwordx4 {vr(d+4,4)}, {vr(vOQ)}, {sr(sOUT)}, {so} offen offset:64{OFL()}", "vm", "OUT"))

def gen_kernel(k):
    A = Asm()
    A("s_cmp_ge_u32 s2, 256"); A("s_cbranch_scc1 L_end")
    stamp(A, "t0")
    if O.cpre:
        A("s_getpc_b64 s[84:85]"); A("s_and_b32 s84, s84, 0xffffff00"); A("s_and_b32 s85, s85, 0xffff")
        A("s_mov_b32 s86, L_codeend-attn_kernel"); A("s_mov_b32 s87, 0x20000")
        A("s_lshr_b32 s3, s2, 3"); A(f"s_lshl_b32 s3, s3, {13 if O.u0 else 12}"); A(f"v_lshlrev_b32 v4, {5 if O.u0 else 4}, v0")
        A.op(("buffer_load_dwordx4 v[252:255], v4, s[84:87], s3 offen", "vm", "CODE"))
        A("s_nop 4")
    A("s_load_dwordx16 s[64:79], s[0:1], 0")
    A("s_load_dwordx8 s[80:87], s[0:1], 64")
    A(f"s_load_dwordx2 s[{sWS}:{sWS+1}], s[0:1], 96")
    A("s_and_b32 s3, s2, 7"); A("s_lshr_b32 s4, s2, 3"); A("s_lshr_b32 s5, s3, 2")
    if O.map2:
        A("s_bfe_u32 s6, s3, 0x10001"); A("s_lshl_b32 s6, s6, 2"); A("s_lshr_b32 s7, s4, 3"); A("s_add_u32 s6, s6, s7")
        A("s_and_b32 s7, s3, 1"); A("s_lshl_b32 s7, s7, 3"); A("s_and_b32 s4, s4, 7"); A("s_add_u32 s7, s7, s4")
    else:
        A("s_and_b32 s6, s3, 3"); A("s_lshl_b32 s6, s6, 1"); A("s_lshr_b32 s7, s4, 4"); A("s_add_u32 s6, s6, s7")
        A("s_and_b32 s7, s4, 15")
    vAW, vOW, vOX, vAX = 16, 24, 28, 36
    lane, g, i, r, t0, t1, t2, t3, h = range(48, 57)
    A(f"v_lshrrev_b32 {vr(t0)}, 6, v0"); A(f"v_and_b32 {vr(lane)}, 63, v0"); A(f"v_readfirstlane_b32 s{sWAVE}, {vr(t0)}")
    A(f"v_lshrrev_b32 {vr(g)}, 4, {vr(lane)}"); A(f"v_and_b32 {vr(i)}, 15, {vr(lane)}"); A(f"v_lshrrev_b32 {vr(h)}, 5, {vr(lane)}")
    A(f"s_and_b32 s{sT2}, s{sWAVE}, 1"); A(f"s_lshl_b32 s{sT2}, s{sT2}, 3")
    A(f"s_lshl_b32 s{sT}, s{sWAVE}, 16")
    A(f"v_and_b32 {vr(t2)}, 31, {vr(lane)}"); A(f"v_xor_b32 {vr(t2)}, s{sT2}, {vr(t2)}")
    for p in range(2):
        A(f"v_add_u32 {vr(t0)}, {2*p}, {vr(h)}"); A(f"v_lshlrev_b32 {vr(t1)}, 1, {vr(t0)}"); A(f"v_xor_b32 {vr(t1)}, {vr(t1)}, {vr(t2)}")
        A(f"v_lshlrev_b32 {vr(t1)}, 4, {vr(t1)}"); A(f"v_lshl_add_u32 {vr(t1)}, {vr(t0)}, 13, {vr(t1)}")
        A(f"v_add_u32 {vr(vOW+p)}, s{sT}, {vr(t1)}")
        if p: A(f"v_subrev_u32 {vr(vOW+p)}, 1024, {vr(vOW+p)}")
        A(f"v_add_u32 {vr(vOW+p+2)}, {4*8192-2048}, {vr(vOW+p)}")
    A(f"s_mul_i32 s{sT}, s{sWAVE}, {64*1280}")
    A(f"v_lshrrev_b32 {vr(t0)}, 3, {vr(lane)}"); A(f"v_mul_u32_u24 {vr(t0)}, 1280, {vr(t0)}"); A(f"v_add_u32 {vr(t0)}, s{sT}, {vr(t0)}")
    A(f"v_and_b32 {vr(t1)}, 7, {vr(lane)}"); A(f"v_xor_b32 {vr(t1)}, {vr(t1)}, {vr(g)}")
    A(f"v_lshl_add_u32 {vr(vOX)}, {vr(t1)}, 4, {vr(t0)}"); A(f"v_xor_b32 {vr(t1)}, 4, {vr(t1)}"); A(f"v_lshl_add_u32 {vr(t0)}, {vr(t1)}, 4, {vr(t0)}")
    A(f"v_add_u32 {vr(vOX+1)}, {10240-1024}, {vr(t0)}")
    for p in range(2, 8): A(f"v_add_u32 {vr(vOX+p)}, {(p&~1)*10240 - ((p&3)&~1)*1024}, {vr(vOX+(p&1))}")
    A(f"s_lshl_b32 s{sKVW}, s{sWAVE}, 12"); A(f"s_add_u32 s{sVVW}, s{sKVW}, {VBASE}"); A(f"s_add_u32 s{sWQW}, s{sKVW}, {WQBASE}")
    A(f"s_lshl_b32 s{sXW}, s{sWAVE}, 13")
    A(f"s_lshl_b32 s4, s6, 4"); A(f"s_add_u32 s4, s4, s7")
    A(f"s_lshl_b32 s{sT}, s7, 9"); A(f"s_sub_u32 s{sW+2}, {640*8192}, s{sT}"); A(f"s_mov_b32 s{sW+3}, 0x20000")
    A(f"s_mul_i32 s{sT3}, s6, 327680"); A(f"s_mov_b32 s{sX+2}, 327680"); A(f"s_mov_b32 s{sX+3}, 0x20000")
    A("s_cmp_eq_u32 s5, 1")
    A("s_waitcnt lgkmcnt(0)")
    if O.stamps and O.stm == 1: A("s_memtime s[50:51]"); A("s_memrealtime s[98:99]"); nstamp[0] += 1; stamp_names.append("karg")
    for q in (3, 0, 1, 2, 4): A(f"s_cselect_b64 s[{64+2*q}:{65+2*q}], s[{74+2*q}:{75+2*q}], s[{64+2*q}:{65+2*q}]")
    A(f"s_add_u32 s{sW}, s70, s{sT}"); A(f"s_addc_u32 s{sW+1}, s71, 0"); A(f"s_and_b32 s{sW+1}, s{sW+1}, 0xffff")
    A(f"s_add_u32 s{sX}, s64, s{sT3}"); A(f"s_addc_u32 s{sX+1}, s65, 0"); A(f"s_and_b32 s{sX+1}, s{sX+1}, 0xffff")
    def AF(buf, nb): return buf * 64 + nb * 4
    def XR(G, ks, qb): return 128 + (G & 1) * 32 + (ks * 4 + qb) * 4
    def ACC(nb, qb): return vr(48 + (nb * 4 + qb) * 4, 4) if nb < 13 else ar(208 + ((nb - 13) * 4 + qb) * 4, 4)
    def wq_dma(kk):
        return [[f"s_add_u32 m0, s{sWQW}, {(kk&3)*16384}", f"s_mov_b32 s{sT2}, {kk*262144}"]] + \
               [[(f"buffer_load_dwordx4 {vr(vOW+p)}, {sr(sW)}, s{sT2} offen offset:{p*1024}{' nt' if O.w_nt else ''} lds", "vm", ("W", kk))] for p in range(4)]
    def x_dma(G):
        r = [[f"s_add_u32 m0, s{sXW}, {XB[G&1]}", f"s_movk_i32 s{sT2}, {G*128}"]]
        r += [[(f"buffer_load_dwordx4 {vr(vOX+p)}, {sr(sX)}, s{sT2} offen offset:{(p&3)*1024}{' nt' if O.x_nt else ''} lds", "vm", ("X", G))] for p in range(8)]
        r[4].append(f"s_add_u32 m0, s{sXW}, {XB[G&1]+4096}")
        return r
    def flat(groups):
        for grp in groups:
            for ops in grp:
                for o in ops: A.op(o)
    flat([wq_dma(0), x_dma(0), wq_dma(1), x_dma(1)])
    def kv_groups(kind, tile):
        su, pcs, po = dma_k(tile, (kind, tile)) if kind == "K" else dma_v(tile, (kind, tile))
        return [[su]] + [[p] for p in pcs[:3]] + [[pcs[3], po]]
    A(f"s_mov_b32 s{sWOI}, s72"); A(f"s_and_b32 s{sWOI+1}, s73, 0xffff")
    A(f"s_lshl_b32 s{sT}, s4, 19")
    srd(A, sK, 66, 67, f"s{sT}", "0x80000")
    srd(A, sV, 68, 69, f"s{sT}", "0x80000")
    A(f"s_lshl_b32 s{sGI}, s5, 3"); A(f"s_add_u32 s{sGI}, s{sGI}, s6"); A(f"s_lshl_b32 s{sT2}, s{sGI}, 22")
    srd(A, sO, sWS, sWS + 1, f"s{sT2}", 0x200000 + 16 * 20480)
    A(f"s_lshl_b32 s{sT}, s6, 1"); A(f"s_bfe_u32 s{sT2}, s7, 0x10002"); A(f"s_add_u32 s{sT}, s{sT}, s{sT2}"); A(f"s_mul_i32 s{sT}, s{sT}, {128*2560}")
    A(f"s_mul_i32 s{sT2}, s5, 1280"); A(f"s_add_u32 s{sT}, s{sT}, s{sT2}"); A(f"s_and_b32 s{sT2}, s7, 3"); A(f"s_mul_i32 s{sT2}, s{sT2}, 320")
    A(f"s_add_u32 s{sT}, s{sT}, s{sT2}")
    if O.stamps and O.stm == 1: A("s_waitcnt lgkmcnt(0)"); A("s_mov_b32 s66, s98"); A("s_mov_b32 s67, s99")
    srd(A, sOUT, 84, 85, f"s{sT}", 127 * 2560 + 320)
    srd(A, sCNT, 86, 87, 0, 256)
    A(f"s_lshl_b32 s{sGI}, s{sGI}, 4"); A(f"s_add_u32 s{sGI}, s{sGI}, s7")
    A(f"s_lshl_b32 s{sOOF}, s7, 13")
    A(f"s_mov_b32 s{sKOFF}, 0"); A(f"s_mov_b32 s{sVOFF}, 0"); A(f"s_mov_b32 s{sSTUB}, 99")
    A(f"s_mov_b32 s{sTHR}, {hex(f32bits(2.0**O.thr_log2 if not O.forcefb else -1.0))}")
    A(f"s_mov_b32 s{sSC}, {hex(f32bits(128**-0.5*math.log2(math.e)))}"); A(f"s_mov_b32 s{sSC+1}, s{sSC}")
    A(f"v_lshrrev_b32 {vr(r)}, 2, {vr(i)}")
    A(f"v_and_b32 {vr(t0)}, 1, {vr(g)}"); A(f"v_lshl_add_u32 {vr(t0)}, {vr(t0)}, 2, {vr(r)}")
    A(f"v_lshl_add_u32 {vr(t1)}, {vr(g)}, 3, {vr(r)}"); A(f"v_lshlrev_b32 {vr(t1)}, 9, {vr(t1)}")
    A(f"v_and_b32 {vr(t2)}, 3, {vr(i)}"); A(f"v_lshl_add_u32 {vr(t1)}, {vr(t2)}, 3, {vr(t1)}"); A(f"v_add_u32 {vr(t1)}, {WQBASE}, {vr(t1)}")
    for n3 in range(8):
        A(f"v_xor_b32 {vr(t3)}, {n3}, {vr(t0)}"); A(f"v_lshl_add_u32 {vr(vAW+n3)}, {vr(t3)}, 5, {vr(t1)}")
    A(f"v_lshrrev_b32 {vr(t0)}, 1, {vr(i)}"); A(f"v_xor_b32 {vr(t0)}, {vr(t0)}, {vr(g)}")
    A(f"v_lshlrev_b32 {vr(t1)}, 7, {vr(i)}"); A(f"v_add_u32 {vr(t1)}, s{sXW}, {vr(t1)}")
    A(f"v_lshl_add_u32 {vr(vAX)}, {vr(t0)}, 4, {vr(t1)}"); A(f"v_xor_b32 {vr(vAX+1)}, 64, {vr(vAX)}")
    A(f"v_lshl_add_u32 {vr(t1)}, {vr(r)}, 4, {vr(t2)}"); A(f"v_lshlrev_b32 {vr(t1)}, 8, {vr(t1)}")
    A(f"v_and_b32 {vr(t0)}, 1, {vr(r)}"); A(f"v_lshlrev_b32 {vr(t0)}, 3, {vr(t0)}"); A(f"v_lshl_add_u32 {vr(t0)}, {vr(t2)}, 1, {vr(t0)}")
    A(f"v_lshrrev_b32 {vr(t3)}, 3, {vr(i)}"); A(f"v_add_u32 {vr(t0)}, {vr(t0)}, {vr(t3)}")
    A(f"v_and_b32 {vr(t3)}, 1, {vr(g)}"); A(f"v_lshl_add_u32 {vr(t3)}, {vr(t3)}, 1, {vr(h)}"); A(f"v_xor_b32 {vr(t0)}, {vr(t0)}, {vr(t3)}")
    A(f"v_lshl_add_u32 {vr(vAK)}, {vr(t0)}, 4, {vr(t1)}")
    for s in range(1, 4): A(f"v_xor_b32 {vr(vAK+s)}, {s*64}, {vr(vAK)}")
    A(f"v_lshl_add_u32 {vr(t1)}, {vr(g)}, 4, {vr(r)}"); A(f"v_lshlrev_b32 {vr(t1)}, 8, {vr(t1)}")
    A(f"v_and_b32 {vr(t0)}, 1, {vr(i)}"); A(f"v_lshl_add_u32 {vr(t1)}, {vr(t0)}, 3, {vr(t1)}"); A(f"v_add_u32 {vr(t1)}, {VBASE}, {vr(t1)}")
    A(f"v_and_b32 {vr(t0)}, 1, {vr(g)}"); A(f"v_lshlrev_b32 {vr(t0)}, 3, {vr(t0)}"); A(f"v_lshl_add_u32 {vr(t0)}, {vr(r)}, 1, {vr(t0)}")
    A(f"v_add_u32 {vr(t0)}, {vr(t0)}, {vr(h)}"); A(f"v_bfe_u32 {vr(t3)}, {vr(i)}, 1, 1"); A(f"v_xor_b32 {vr(t0)}, {vr(t0)}, {vr(t3)}")
    A(f"v_lshl_add_u32 {vr(vAV)}, {vr(t0)}, 4, {vr(t1)}")
    for db in range(1, 8): A(f"v_xor_b32 {vr(vAV+db)}, {db*32}, {vr(vAV)}")
    A(f"s_and_b32 s{sT}, s{sWAVE}, 1"); A(f"s_lshl_b32 s{sT}, s{sT}, 3"); A(f"s_lshr_b32 s{sT2}, s{sWAVE}, 1"); A(f"s_add_u32 s{sT}, s{sT}, s{sT2}")
    A(f"v_lshlrev_b32 {vr(t0)}, 1, {vr(g)}"); A(f"v_add_u32 {vr(t0)}, s{sT}, {vr(t0)}"); A(f"v_xor_b32 {vr(t0)}, {vr(t0)}, {vr(i)}")
    A(f"v_lshlrev_b32 {vr(t0)}, 4, {vr(t0)}"); A(f"v_lshl_add_u32 {vr(t0)}, {vr(g)}, 8, {vr(t0)}"); A(f"v_add_u32 {vr(vOKV)}, s{sKVW}, {vr(t0)}")
    A(f"s_lshl_b32 s{sT}, s{sWAVE}, 19"); A(f"v_lshlrev_b32 {vr(t0)}, 4, {vr(lane)}"); A(f"v_add_u32 {vr(vOO)}, s{sT}, {vr(t0)}")
    if O.fuse:
        A(f"s_mul_i32 s{sT}, s{sWAVE}, {5120 - (1 << 19)}"); A(f"s_add_u32 s{sT}, s{sT}, 0x200000")
        A(f"s_mul_i32 s{sXI}, s7, 20480"); A(f"s_add_u32 s{sXI}, s{sXI}, s{sT}")
        A(f"s_xor_b32 s{sXO}, s7, 8"); A(f"s_mul_i32 s{sXO}, s{sXO}, 20480"); A(f"s_add_u32 s{sXO}, s{sXO}, s{sT}")
        for q in range(4): A(f"v_mov_b32 {vr(40+q)}, -1")
    def wo_touch(kk):
        if O.wopre != 100 + kk: return []
        return [[f"s_mov_b32 s{sWOI+2}, 5242880", f"s_mov_b32 s{sWOI+3}, 0x20000", f"s_and_b32 s3, s{sGI}, 127", "s_lshl_b32 s3, s3, 2", f"s_add_u32 s3, s3, s{sWAVE}", "s_mul_i32 s3, s3, 10240",
                 (f"buffer_load_dword {ar(192)}, {vr(45)}, {sr(sWOI)}, s3 offen", "vm", "WOP")], ["s_add_u32 s3, s3, 5120", (f"buffer_load_dword {ar(193)}, {vr(45)}, {sr(sWOI)}, s3 offen", "vm", "WOP")]]
    if 100 <= O.wopre <= 120: A(f"v_mul_u32_u24 {vr(45)}, 80, {vr(lane)}")
    if 0 <= O.wopre < 100:
        A(f"s_mov_b32 s{sWOI+2}, 5242880"); A(f"s_mov_b32 s{sWOI+3}, 0x20000")
        A(f"s_lshl_b32 s{sT}, s4, 2"); A(f"s_add_u32 s{sT}, s{sT}, s{sWAVE}"); A(f"s_mul_i32 s{sT}, s{sT}, 10240")
        A(f"v_lshlrev_b32 {vr(t0)}, 4, {vr(lane)}"); A(f"v_add_u32 {vr(vTMP)}, s{sT}, {vr(t0)}")
    L2S = [int(x) for x in O.l2s.split(',')] if O.l2s else []
    def l2t(kk): return [[f"s_mov_b32 s3, {(4 - (q & 1)) * 16384 + (q >> 1) * (256 << O.l2sh)}", (f"buffer_load_dword {ar(192)}, {vr(44)}, {sr(sV if q & 1 else sK)}, s3 offen{['', ' nt', ' sc1', ' sc0 sc1'][O.l2nt]}", "vm", "L2")] for q, at in enumerate(L2S) if at == kk]
    if L2S: A(f"v_lshlrev_b32 {vr(44)}, {O.l2sh}, {vr(lane)}"); A(f"s_lshl_b32 s{sT}, s{sWAVE}, {O.l2sh+6}"); A(f"v_add_u32 {vr(44)}, s{sT}, {vr(44)}")
    if O.kv0 < 0: flat([kv_groups("K", 0), kv_groups("V", 0)])
    stamp(A, "setup done", 1)
    def wo_pre(i, kk):
        n = 10 // O.wopn; r = []
        for q in range(i * n, (i + 1) * n):
            if q == i * n or q % 4 == 0:
                r.append([f"s_add_u32 m0, s{sKVW}, {0 if kk < 15 else 131072}", f"s_movk_i32 s{sT2}, {(q & ~3)*1024}"])
            r.append([(f"buffer_load_dwordx4 {vr(vTMP)}, {sr(sWOI)}, s{sT2} offen offset:{(q&3)*1024}{' nt' if O.wopre_nt else ''} lds", "vm", "WOP")])
        return r
    if O.wopre == 99: flat([wo_pre(0, 0)])
    def a_reads(kk):
        return [(f"ds_read_b64_tr_b16 {ar(AF(kk&1,nb)+2*jh,2)}, {vr(vAW+(nb&7))} offset:{(kk&3)*16384+jh*2048+(nb>>3)*256}", "ds", "A")
                for nb in range(16) for jh in range(2)]
    def x_reads(G):
        return [(f"ds_read_b128 {ar(XR(G,ks,qb),4)}, {vr(vAX+ks)} offset:{XB[G&1]+qb*2048}", "ds", "XR") for ks in range(2) for qb in range(4)]
    A.wait(vm=[("W", 0), ("X", 0)]); A("s_barrier")
    stamp(A, "wq0 landed"); stamp(A, "wq0 landed", 1); stamp(A, "wq0 landed", 3)
    for o in x_reads(0) + a_reads(0): A.op(o)
    flat([wq_dma(2), wq_dma(3)])
    KVS = [int(x) for x in O.kvs.split(",")]
    assert KVS[2] >= 15 and KVS[3] >= 15 and KVS[4] >= 16 and KVS[5] >= 17 and KVS[6] >= 17 and KVS[0] <= KVS[2] <= KVS[3] <= KVS[5] and KVS[1] <= KVS[4] <= KVS[6]
    for kk in range(20):
        A.c(f"---- qproj step {kk}")
        G, ks = kk >> 1, kk & 1
        if kk in (1, 4): stamp(A, f"step{kk}", 1)
        if kk in (4, 8, 12, 15): stamp(A, f"step{kk}", 3)
        nd = ([("W", kk + 1)] if kk + 1 < 20 else []) + ([("X", G + 1)] if ks == 0 and G + 1 < 10 else [])
        A.wait(vm=nd, dsn=0); A("s_barrier")
        mf = [f"{MF} {ACC(nb,qb)}, {ar(AF(kk&1,nb),4)}, {ar(XR(G,ks,qb),4)}, {ACC(nb,qb) if kk else '0'}" for nb in range(16) for qb in (range(3, -1, -1) if nb & 1 and O.snake & 4 else range(4))]
        gaps = {q: [] for q in range(64)}
        mem = []
        if kk + 4 < 20: mem += wq_dma(kk + 4)
        if kk == 0: mem += x_dma(2)
        if ks == 1 and G + 3 < 10: mem += x_dma(G + 3)
        if 0 <= O.wopre < 100 and O.wopre <= kk < O.wopre + O.wopn: mem += wo_pre(kk - O.wopre, kk)
        if O.fuse and kk == O.xfill: mem += mbox("store", lambda t: vr(40, 4), sXI, "XF")
        mem += l2t(kk) + wo_touch(kk)
        for (kind, tile), at in zip((("K", 0), ("V", 0), ("K", 1), ("K", 2), ("V", 1), ("K", 3), ("V", 2)), KVS):
            if kk == at: mem += kv_groups(kind, tile)
        rd = (x_reads(G + 1) if ks == 0 and G + 1 < 10 else []) + (a_reads(kk + 1) if kk + 1 < 20 else [])
        sp = max(2, min(O.qsp, 56 // max(1, len(mem))))
        for q, ops in enumerate(mem): gaps[1 + sp * q] += ops
        fr = [q for q in range(60) if not gaps[q]]
        two = max(0, len(rd) - len(fr))
        fr = sorted(fr + fr[:two])
        for q, o in enumerate(rd): gaps[fr[(q * len(fr)) // len(rd)]].append(o)
        gaps[63] += ["s_nop 7"] * O.qpad
        interleave(A, mf, gaps)
    stamp(A, "qproj done"); stamp(A, "qproj done", 3)
    if O.fuse and O.xfill == 20: flat([mbox("store", lambda t: vr(40, 4), sXI, "XF")])
    for (kind, tile), at in zip((("K", 0), ("V", 0), ("K", 1), ("K", 2), ("V", 1), ("K", 3), ("V", 2)), KVS):
        if at == 20: flat([kv_groups(kind, tile)])
    flat([l2t(20), wo_touch(20)])
    A("s_nop 7")
    def conv_front(hd, s, qb, T0, T1, tb):
        for T in (T0, T1):
            for q in range(2): A(f"v_pk_mul_f32 {vr(T+2*q,2)}, {vr(T+2*q,2)}, s[{sSC}:{sSC+1}]")
        for q in range(2): A(f"v_cvt_pk_bf16_f32 {vr(tb+q)}, {vr(T0+2*q)}, {vr(T0+2*q+1)}")
        for q in range(2): A(f"v_cvt_pk_bf16_f32 {vr(tb+2+q)}, {vr(T1+2*q)}, {vr(T1+2*q+1)}")
    def conv_back(hd, s, qb, tb):
        for q in range(2): A(f"v_permlane16_swap_b32 {vr(tb+q)}, {vr(tb+2+q)}")
    def conv_wr(hd, s, qb, tb):
        for q in range(4): A(f"v_accvgpr_write_b32 {ar(hd*64+(qb*4+s)*4+q)}, {vr(tb+q)}")
    jobs = []
    for pr in range(8):
        for qb in range(4):
            jobs.append((pr, qb))
    pend = []
    for n_, (pr, qb) in enumerate(jobs):
        if pr == 6 and qb == 0:
            for q in range(48): A(f"v_accvgpr_read_b32 {vr(48+q)}, {ar(208+q)}")
        def loc(nb): return 48 + (nb * 4 + qb) * 4 if nb < 13 else 48 + ((nb - 13) * 4 + qb) * 4
        tb = 16 + (n_ % 4) * 4
        conv_front(pr >> 2, pr & 3, qb, loc(2 * pr), loc(2 * pr + 1), tb)
        pend.append((pr >> 2, pr & 3, qb, tb))
        if len(pend) >= 2: conv_back(*pend[-2])
        if len(pend) >= 3: conv_wr(*pend[-3])
    A("s_nop 1"); conv_back(*pend[-1]); conv_wr(*pend[-2]); A("s_nop 0"); conv_wr(*pend[-1])
    A(f"s_mov_b32 s{sT3}, 0x3f803f80")
    if not O.vsum and not O.smf:
        for q in range(4): A(f"v_accvgpr_write_b32 {ar(aONE+q)}, s{sT3}")
    if O.dumpq:
        A(f"s_lshl_b32 s{sT}, s5, 7"); A(f"s_lshl_b32 s{sT2}, s6, 4"); A(f"s_add_u32 s{sT}, s{sT}, s{sT2}"); A(f"s_add_u32 s{sT}, s{sT}, s7")
        A(f"s_lshl_b32 s{sT}, s{sT}, 17"); A(f"s_add_u32 s{sT}, s{sT}, {QDUMP_WS_OFF}")
        srd(A, sDBG, sWS, sWS + 1, f"s{sT}", "0x20000")
        A(f"v_and_b32 {vr(16)}, 0x3ff, {vr(vOO)}"); A(f"s_lshl_b32 s{sT}, s{sWAVE}, 15"); A(f"v_add_u32 {vr(16)}, s{sT}, {vr(16)}")
        for q in range(32):
            A(f"s_mov_b32 s{sT}, {q*1024}")
            A(f"buffer_store_dwordx4 {ar(4*q,4)}, {vr(16)}, {sr(sDBG)}, s{sT} offen")
        A("s_waitcnt vmcnt(0)")
    if O.fuse: oproj_early(A, 16)
    A.wait(vm=[("K", 0)]); A("s_barrier")
    if O.stag:
        A("s_lshr_b32 s3, s2, 3"); A(f"s_and_b32 s3, s3, {O.stagm}"); A(f"s_mul_i32 s3, s3, {O.stag}"); A("s_memrealtime s[50:51]"); A("s_waitcnt lgkmcnt(0)"); A("s_add_u32 s3, s3, s50")
        A.label("L_stag"); A("s_memrealtime s[50:51]"); A("s_waitcnt lgkmcnt(0)"); A("s_sub_u32 s4, s3, s50"); A("s_cmp_gt_i32 s4, 0"); A("s_cbranch_scc1 L_stag")
    stamp(A, "conv done")
    if O.exitat == 1: A("s_branch L_exit")
    A(f"s_mov_b32 s{sUNIT}, 0")
    if O.trace: A("s_mov_b64 s[52:53], 1"); A("s_memrealtime s[50:51]"); A("v_mov_b32 v0, 0")
    A.label("L_unit")
    A(f"s_mov_b32 s{sLOOP}, 3")
    ncls = 2 if O.twocls else 1
    if ncls == 2:
        A(f"s_bitcmp1_b32 s{sWAVE}, 0"); A("s_cbranch_scc1 L_first_1")
    ds6 = None
    for cls in range(ncls):
        A.label(f"L_first_{cls}")
        A.ds = []
        first_slot(A, cls)
        kn0 = tuple(int(x) for x in O.u0.split(",")) if O.u0 else None
        slot(A, 1, cls, f"second_{cls}", zero=True, tail=[f"s_cmp_lg_u32 s{sUNIT}, 0", "s_cbranch_scc1 L_loop_1"] if kn0 else [])
        for cp in range(2 if kn0 else 1):
            ds_in = list(A.ds)
            A.label(f"L_loop_{cp}")
            for p in (2, 3, 4, 5, 6, 7, 0, 1):
                tail = []
                if p == 6 and cp == 0: tail = [f"s_cmp_eq_u32 s{sLOOP}, 0", "s_cbranch_scc1 L_last"]
                if p == 7 and O.fuse and (cp or not kn0): tail = [f"s_cmp_eq_u32 s{sLOOP}, s{sSTUB}", "s_cbranch_scc1 L_tail"]
                if p == 1:
                    tail = [f"s_sub_u32 s{sLOOP}, s{sLOOP}, 1"]
                    tail += [f"s_branch L_loop_{cp}"]
                slot(A, p, cls, f"p{p}_{cp}", tail=tail, kn=kn0 if cp == 0 else None)
                if p == 6 and cp == 0: ds6 = list(A.ds)
                if p == 7: ds7 = list(A.ds)
    if O.stamps and O.stm == 4: nstamp[0] += 1; stamp_names.append("loopback")
    A.label("L_last")
    if not O.fuse: stamp(A, "last", 4)
    A.ds = list(ds6)
    last_slot(A, O.est if O.fuse else 4)
    if O.chk:
        A(f"s_cmp_lg_u64 s[{sM}:{sM+1}], 0"); A("s_cbranch_scc1 L_fb")
    if not O.fuse:
        A(f"s_cmp_lg_u32 s{sUNIT}, 0"); A("s_cbranch_scc1 L_fbret1")
    A.label("L_fbret0")
    stamp(A, "unit0 end"); stamp(A, "unit0 end", 2)
    if O.exitat == 2: A("s_branch L_exit")
    A(f"s_mov_b32 s{sUNIT}, 1"); A(f"s_add_u32 s{sOOF}, s{sOOF}, 4096"); A(f"s_mov_b32 s{sSTUB}, 1")
    if O.fuse and O.wopre >= 300:
        sh = O.wopre - 300
        A(f"v_bfe_u32 v0, {vr(vOO)}, 4, 6"); A("s_lshr_b32 s3, s2, 3"); A(f"s_lshl_b32 s3, s3, 2"); A(f"s_add_u32 s3, s3, s{sWAVE}"); A("s_lshl_b32 s3, s3, 6")
        A("v_add_u32 v0, s3, v0"); A(f"v_lshlrev_b32 v0, {12 - sh}, v0"); A("s_lshr_b32 s3, s7, 3"); A("s_mul_i32 s3, s3, 2621440")
        A(f"v_cmp_gt_u32 vcc, 2621440, v0"); A("s_and_saveexec_b64 s[100:101], vcc")
        A(f"buffer_load_dword {ar(224)}, v0, {sr(sW)}, s3 offen"); A("s_mov_b64 exec, -1")
    for q in range(64): A(f"v_accvgpr_mov_b32 {ar(aQ+q)}, {ar(aQ2+q)}")
    if O.fuse:
        for q in range(16 * O.est, 64): A(f"v_accvgpr_write_b32 {ar(aQ2+q)}, {vr(vS+q)}")
    A("s_branch L_unit")
    if O.fuse:
        A.label("L_tail")
        stamp(A, "tail", 2); stamp(A, "tail", 4)
        if O.trace:
            srd(A, 56, sWS, sWS + 1, 132 << 20, 4 << 20); A("s_lshl_b32 s3, s2, 10")
            A(f"buffer_store_dword v0, {vr(vOO)}, s[56:59], s3 offen")
        A.ds = list(ds7)
        A.vm = [("G", 9)] * 8 + [("G", 10)] * 8 + (["WOP"] if O.wopre == 250 else []) + [("G", 11)] * 8
        def st0(qbs):
            r = []
            for qb in qbs:
                if qb < O.est: continue
                r.append([f"s_add_u32 s{sT}, s{sOOF}, {qb*131072 - 4096}"] if qb else [f"s_sub_u32 s{sT}, s{sOOF}, 4096"])
                r += [[o_store(ar(aQ2 + (qb * 4 + t) * 4, 4), qb, t, "ST0", sT)] for t in range(4)]
            return r
        v15 = dma_v(3, ("G", 12))
        sq = {0: ([0], [1, 2], [3]), 1: ([1], [2], [3]), 2: ([2], [3], []), 3: ([3], [], []), 4: ([], [], [])}[O.est]
        def f1(t): return flag_ops(1, "f1") if t == O.f1at else ()
        def vt(t, g): return [("G", g)] + (["ST0"] if t == O.f1at else [])
        slot(A, 0, 0, "t24", groups=[[v15[0]]] + [[o] for o in v15[1]] + st0(sq[0]), vmtags=vt(24, 9), after_bar=f1(24))
        slot(A, 1, 0, "t25", groups=st0(sq[1]))
        slot(A, 2, 0, "t26", groups=st0(sq[2]) + w_dma(0, 0, True), vmtags=vt(26, 10), after_bar=f1(26))
        def touch(lo, hi):
            if O.wopre != 200: return []
            r = []
            for q in range(lo, hi):
                if q == lo or q % 4 == 0: r.append([f"s_add_u32 s{sT}, s{sTW}, {(q & ~3)*1024}"])
                r.append([(f"buffer_load_dwordx4 {ar(224+(q&7)*4,4)}, {vr(vOO)}, {sr(sW)}, s{sT} offen offset:{(q&3)*1024}{' nt' if O.wopre_nt else ''}", "vm", "WOP")])
            return r
        slot(A, 3, 0, "t27", groups=w_dma(0, 1, True) + touch(0, 5))
        slot(A, 4, 0, "t28", groups=w_dma(1, 0, True), vmtags=vt(28, 11), after_bar=f1(28))
        slot(A, 5, 0, "t29", groups=touch(5, 10) + w_dma(1, 1, True))
        slot(A, 6, 0, "t30", groups=w_dma(2, 0, True), vmtags=vt(30, 12), after_bar=f1(30), tail=[f"v_accvgpr_read_b32 {vr(vPOLL)}, {ar(aPOLL)}"] + poll_ops("p1"))
        stamp(A, "last1", 2)
        oproj_setup(A)
        def mid():
            A.wait(dsn=0)
            poll_check(A, 0x01010101, "u1", vOWX, "p1")
            A("s_barrier")
        if O.own1: last_slot(A, 4, extra1=w_dma(2, 1) + o_ld(0), mid=mid, extra2=o_ld(1) + o_ld(2))
        else: last_slot(A, 4, extra1=w_dma(2, 1), mid=mid, extra2=o_ld(0) + o_ld(1) + o_ld(2))
        if O.chk:
            A(f"s_cmp_lg_u64 s[{sM}:{sM+1}], 0"); A("s_cbranch_scc1 L_fb")
        A.label("L_fbret1")
        stamp(A, "unit1 end"); stamp(A, "unit1 end", 2); stamp(A, "unit1 end", 5); stamp(A, "unit1 end", 6)
        if O.exitat == 3: A("s_branch L_exit")
        oproj(A)
    else:
        A.label("L_fbret1")
        stamp(A, "unit1 end")
    if O.exitat: A.label("L_exit")
    if O.stamps: emit_stamps(A)
    A.label("L_end")
    A("s_endpgm")
    if O.chk:
        fallback(A)
    emit_spins(A)
    A.label("L_codeend")
    return kstart(k) + A.text()

def emit_stamps(A):
    A("s_waitcnt vmcnt(0) lgkmcnt(0)")
    A(f"s_memtime s[8:9]"); A(f"s_memrealtime s[10:11]")
    A("s_waitcnt lgkmcnt(0)")
    srd(A, sDBG, sWS, sWS + 1, STAMP_WS_OFF, "0x100000")
    A(f"s_lshl_b32 s3, s2, 2"); A(f"s_add_u32 s3, s3, s{sWAVE}"); A("s_lshl_b32 s3, s3, 7")
    A("v_mov_b32 v0, s3")
    n = nstamp[0]
    regs = [(j, sSTAMP + 2 * j) for j in range(n)] + [(n, 8)] + [(8 + j, 62 if j == 0 else sRSTAMP + 2 * j) for j in range(n)] + [(8 + n, 10)]
    A("s_getreg_b32 s4, hwreg(HW_REG_XCC_ID)")
    regs.append((16, 4))
    for j, s_ in regs:
        A(f"v_mov_b32 v1, s{s_}")
        A(f"buffer_store_dword v1, v0, {sr(sDBG)}, 0 offen offset:{4*j}")
    A("s_waitcnt vmcnt(0)")

def main():
    ap = argparse.ArgumentParser()
    for k_, v_ in vars(Opt).items():
        if k_.startswith("_"): continue
        if isinstance(v_, bool): ap.add_argument("--" + k_, type=lambda s: bool(int(s)), default=v_)
        elif isinstance(v_, int): ap.add_argument("--" + k_, type=int, default=v_)
        else: ap.add_argument("--" + k_, default=v_)
    a = ap.parse_args()
    for k_, v_ in vars(a).items(): setattr(O, k_, v_)
    O.smpos_ = [int(x) for x in O.smpos.split(',')]
    hdr = open("cdna_kernels/" + NAME + ".s.ref").read().split("; Override launch")[0]
    out = hdr
    out += "; @launch kernel=attn_kernel grid=(256,1,1) block=(256,1,1) lds=163840\n"
    body = gen_kernel("attn_kernel")
    if O.stamps: out += "; stamps: " + ",".join(stamp_names) + ",end\n"
    out += '.amdgcn_target "amdgcn-amd-amdhsa--gfx950"\n.text\n'
    out += body + kd("attn_kernel")
    lines = out.split("\n")
    if O.skip_loop:
        iu = lines.index("L_unit:"); il = lines.index("L_last:")
        lines = lines[:iu] + [l for l in lines[iu:il] if not ("buffer_load_dwordx4" in l and " lds" in l)] + lines[il:]
    il = lines.index("L_last:")
    if O.skip_oo: lines = lines[:il] + [l for l in lines[il:] if not ("buffer_load_dwordx4 a[" in l and "s[8:11]" in l)]
    if O.skip_ow: lines = lines[:il] + [l for l in lines[il:] if not ("s[12:15]" in l and " lds" in l)]
    iu = lines.index("L_unit:")
    if O.skip_x: lines = [l for l in lines[:iu] if not ("s[8:11]" in l and " lds" in l)] + lines[iu:]
    if O.skip_w: lines = [l for l in lines[:iu] if not ("s[12:15]" in l and " lds" in l)] + lines[iu:]
    sys.stdout.write("\n".join(lines))
main()
```

```python
import sys, math, argparse, re, struct, copy

NAME = "concat_heads__gqa_block_cached__gqa_block_cached__near_ridge"

class Opt:
    stamps = False
    dumpq = False
    kv_nt = True
    fuse = True
    twocls = False
    D = 6
    bar = 20
    burst = 1
    dper = 3
    qsp = 4
    w_nt = True
    x_nt = True
    wo_nt = False
    kv0 = 15
    pubw = 11
    map2 = True
    pub2 = 1
    pub1 = 28
    poll2 = 8
    thr_log2 = 30
    skip_loop = False
    skip_x = False
    skip_w = False
    forcefb = False
    budget = 8
    wpre = True
    o_sc1 = True
    chk = True
    stm = 0
    cpre = True
    rot = 0
    wfake = False
    noinv = False
    skip_oo = False
    skip_ow = False
    st_sc1 = True
    wopre = 200
    wopre_nt = False
    wopn = 1
    ndef = 4
    xbar = 60
    own1 = True
    obar = 4
    osp = 2
    xdense = True
    vlate = 4
    vsum = False
    pad = 0
    vmn = 16
    kvs = "13,14,15,16,17,18,19"
    outfl = 0
    trace = False
    xld = 40
    xfill = 18
    lfake = False
    whalf = False
    ofake = False
    walign = False
    wofl = 0
    wo0 = 24
    wo1 = 1
    mvk = True
    cvn = 8
    cvb = 12
    cv19 = True
    u0 = "16,8,20"
    klate = 0
    stfl = 0
    stfl1 = 0
    xffl = 0
    est = 1
    f1at = 28
    snake = 15
    kvfl = 0
    qpad = 0
    upad = 0
    upadm = 0
    stag = 0
    stagm = 3
    exitat = 0
    l2n = 0
    l2s = ""
    l2nt = 0
    l2sh = 6
    smpos = "3,7"
    smf = True

O = Opt()

class Asm:
    def __init__(self):
        self.L = []
        self.vm = []
        self.ds = []
        self.nvm = 0; self.mark = {}
    def __call__(self, s):
        if s.endswith(" lds") and self.L and " m0," in self.L[-1]: self.L.append("    s_nop 0")
        self.L.append(s if s.endswith(":") else "    " + s)
    def label(self, s): self.L.append(s + ":")
    def c(self, s): self.L.append("    ; " + s)
    def text(self): return "\n".join(self.L) + "\n"
    def vm_n(self, tags):
        idx = [i for i, t in enumerate(self.vm) if t in tags]
        if not idx: return None
        return min(63, len(self.vm) - 1 - max(idx))
    def ds_n(self, tags):
        idx = [i for i, t in enumerate(self.ds) if t in tags]
        if not idx: return None
        return min(15, len(self.ds) - 1 - max(idx))
    def wait(self, vm=None, ds=None, vmn=None, dsn=None):
        a = self.vm_n(vm) if vm else None
        b = self.ds_n(ds) if ds else None
        if vmn is not None: a = vmn if a is None else min(a, vmn)
        if dsn is not None: b = dsn if b is None else min(b, dsn)
        p = []
        if a is not None:
            p.append(f"vmcnt({a})"); self.vm = self.vm[len(self.vm) - a:] if a else []
        if b is not None:
            p.append(f"lgkmcnt({b})"); self.ds = self.ds[len(self.ds) - b:] if b else []
        if p: self("s_waitcnt " + " ".join(p))
    def op(self, o):
        if isinstance(o, str): self(o); return
        if o[1] == "vm": self.vm.append(o[2]); self.nvm += 1
        elif o[1] == "mark": self.mark[o[2]] = self.nvm
        elif o[1] == "call": o[2](self); return
        elif o[1] == "ds": self.ds.append(o[2])
        elif o[1] == "wait": self.wait(**o[2]); return
        self(o[0])

def vr(b, n=1): return f"v{b}" if n == 1 else f"v[{b}:{b+n-1}]"
def ar(b, n=1): return f"a{b}" if n == 1 else f"a[{b}:{b+n-1}]"
def sr(b, n=4): return f"s[{b}:{b+n-1}]"
def f32bits(x): return struct.unpack("<I", struct.pack("<f", x))[0]
MF = "v_mfma_f32_16x16x32_bf16"

def kd(k, vgpr=512, acc=256, sgpr=102):
    return f""".section .rodata,"a"
.p2align 6
.amdhsa_kernel {k}
  .amdhsa_next_free_vgpr {vgpr}
  .amdhsa_next_free_sgpr {sgpr}
  .amdhsa_accum_offset {acc}
  .amdhsa_group_segment_fixed_size 0
  .amdhsa_kernarg_size 104
  .amdhsa_user_sgpr_count 2
  .amdhsa_user_sgpr_kernarg_segment_ptr 1
  .amdhsa_system_sgpr_workgroup_id_x 1
.end_amdhsa_kernel
.text
"""
def kstart(k): return f".globl {k}\n.p2align 8\n.type {k},@function\n{k}:\n"

WOF_OFF = 48 << 20
STAMP_WS_OFF = 128 << 20
QDUMP_WS_OFF = 64 << 20
sTW = 65
sXI, sXO = 78, 79

sX, sW, sK, sV, sO = 8, 12, 16, 20, 24
sWAVE, sKVW, sVVW, sWQW, sKOFF, sVOFF, sXW, sLOOP, sUNIT, sT, sTHR, sT3 = range(28, 40)
sSC, sOOF, sFB, sT2, sGI, sWS = 40, 42, 43, 44, 45, 46
sSTAMP, sRSTAMP = 48, 64
sCNT, sDBG, sWOI, sWOF, sOUT = 80, 84, 88, 92, 96
sM = 100
vAK, vAV, vOKV, vOO, vTMP = 1, 5, 13, 14, 15
vIDX, vPOLL, aPOLL = 15, 30, 222
vNEGM, vS, vP, vO = 16, 32, 96, 128
aQ, aQ2, aKF, aVF, aL, aONE = 0, 64, 128, 160, 192, 208
KBASE, VBASE, WQBASE, FBBASE = 0, 65536, 98304, 131072
XB = (16384, 49152)
FLAG_OFF = 60 << 20
sFLG, sSTUB = 84, sFB

def S(buf, qb, kb): return vS + buf * 32 + (qb * 2 + kb) * 4
def P(buf, qb): return vP + buf * 16 + qb * 4
def NEGM(qb): return vNEGM + qb * 4
def Q(qb, s): return aQ + (qb * 4 + s) * 4
def OA(db, qb): return vO + (qb * 8 + db) * 4
def LA(qb): return aL + qb * 4
vL = 252
def OAT(db, qb): return ar(aL, 4) if O.vsum and (db, qb) == (7, 3) else vr(OA(db, qb), 4)

nstamp = [0]
stamp_names = []
def stamp(A, name, mode=0):
    if not O.stamps or (mode != O.stm and name != "t0"): return
    i = nstamp[0]; nstamp[0] += 1; stamp_names.append(name)
    assert i < 7
    A(f"s_memtime s[{sSTAMP+2*i}:{sSTAMP+2*i+1}]")
    r = 62 if i == 0 else sRSTAMP + 2 * i
    A(f"s_memrealtime s[{r}:{r+1}]")

def cost(o):
    t = o if isinstance(o, str) else o[0]
    if t.endswith(":"): return 0
    if not isinstance(o, str) and o[1] in ("wait", "call"): return 0
    if t.startswith(("v_exp", "v_rcp")): return 8
    if t.startswith("buffer_"): return 8
    if t.startswith("s_nop"): return 4 * (int(t.split()[1]) + 1)
    if t.startswith("v_cvt_pk") or t.startswith("v_max3") or t.startswith("v_perm"): return 5
    if t.startswith("v_pk_"): return 8
    return 4

def interleave(A, mf, fixed=None, stream=(), pre=None, budget=None, need=None, partial=False):
    budget = O.budget if budget is None else budget
    fixed = fixed or {}; pre = pre or {}; need = need or {}
    st = list(stream); si = 0; debt = 0
    for g in range(len(mf)):
        for t in pre.get(g, []): A.op(t)
        if g in need: A.wait(ds=need[g])
        A(mf[g])
        fx = fixed.get(g, [])
        room = budget - sum(cost(o) for o in fx) - debt
        for o in fx: A.op(o)
        while si < len(st):
            o, at = st[si] if isinstance(st[si], list) else (st[si], 0)
            if at > g: break
            c = cost(o)
            if room <= 0 or (c > room + 1): break
            A.op(o); room -= c; si += 1
        debt = 0
    if partial: return si
    while si < len(st):
        o = st[si][0] if isinstance(st[si], list) else st[si]
        A.op(o); si += 1

NT_KV = lambda: [" nt", "", " sc1", " sc1 nt", " sc0 sc1 nt", " sc0 nt", " sc0 sc1"][O.kvfl]
SC1 = lambda: " sc1" if O.o_sc1 else ""
OFL = lambda: ["", " sc1", " sc0 sc1", " nt", " sc1 nt", " sc0 sc1 nt"][O.outfl]
def adv(off): return f"s_add_u32 s{off}, s{off}, 0x4000"
def vphys(ring): return (ring + 1) & 3
def dma_k(ring, tag):
    return (f"s_add_u32 m0, s{sKVW}, {ring*16384}",
            [(f"buffer_load_dwordx4 {vr(vOKV)}, {sr(sK)}, s{sKOFF} offen offset:{p*1024}{NT_KV()} lds", "vm", tag) for p in range(4)],
            adv(sKOFF))
def dma_v(ring, tag):
    return (f"s_add_u32 m0, s{sVVW}, {vphys(ring)*16384}",
            [(f"buffer_load_dwordx4 {vr(vOKV)}, {sr(sV)}, s{sVOFF} offen offset:{p*1024}{NT_KV()} lds", "vm", tag) for p in range(4)],
            adv(sVOFF))
def k_reads(ring, h, dst=aKF):
    return [(f"ds_read_b128 {ar(dst+(kb*4+s)*4,4)}, {vr(vAK+s)} offset:{ring*16384+(2*h+kb)*1024}", "ds", ("F", dst + (kb*4+s)*4))
            for kb in range(2) for s in range(4)]
def v_reads(ring, h):
    return [(f"ds_read_b64_tr_b16 {ar(aVF+db*4+2*jh,2)}, {vr(vAV+db)} offset:{vphys(ring)*16384+h*2048+jh*1024}", "ds", ("F", aVF + db*4))
            for db in range(8) for jh in range(2)]
def pv_mf(buf, zero=False, qbmajor=False):
    r = []
    def pv(db, qb): return (f"{MF} {OAT(db,qb)}, {ar(aVF+db*4,4)}, {vr(P(buf,qb),4)}, {'0' if zero else OAT(db,qb)}", aVF + db*4, qb)
    def sm(qb): return (f"{MF} {ar(LA(qb),4)}, {ar(aONE,4)}, {vr(P(buf,qb),4)}, {'0' if zero else ar(LA(qb),4)}", None, qb)
    def sm2(pr): return (f"v_smfmac_f32_16x16x64_bf16 {ar(LA(pr),4)}, {ar(aONE,4)}, {vr(P(buf,2*pr),8)}, {vr(vIDX)}", None, 2 * pr)
    if qbmajor:
        for qb in range(4):
            if O.smf:
                if not qb & 1: r.append(sm2(qb >> 1))
            elif not O.vsum: r.append(sm(qb))
            r += [pv(7 - db if qb & 1 and O.snake & 1 else db, qb) for db in range(8)]
    else:
        for db in range(8):
            r += [pv(db, 3 - qb if db & 1 and O.snake & 1 else qb) for qb in range(4)]
            if O.smf:
                if db in O.smpos_: r.append(sm2(O.smpos_.index(db)))
            elif db & 1 and not O.vsum: r.append(sm(db >> 1))
    return r
def qk_mf(buf, zero=False, kf=aKF, snake=False):
    r = []
    order = [(qb, kb, s) for qb in range(4) for kb in range(2) for s in range(4)]
    if snake: order = [(p * 2 + (q ^ ((kb + s) & 1)), kb ^ (s & 1), s) for p in range(2) for s in range(4) for kb in range(2) for q in range(2)]
    for qb, kb, s in order:
        c = vr(S(buf,qb,kb),4) if s else ("0" if zero else vr(NEGM(qb),4))
        r.append((f"{MF} {vr(S(buf,qb,kb),4)}, {ar(kf+(kb*4+s)*4,4)}, {ar(Q(qb,s),4)}, {c}", kf + (kb*4+s)*4, qb))
    return r
def ex(b, e): return f"v_exp_f32 {vr(vS+b*32+e)}, {vr(vS+b*32+e)}"
def cv(b, i): return f"v_cvt_pk_bf16_f32 {vr(vP+b*16+i)}, {vr(vS+b*32+2*i)}, {vr(vS+b*32+2*i+1)}"
def ad(b, e): return f"v_add_f32 {vr(vL+(e>>3))}, {vr(vL+(e>>3))}, {vr(vS+b*32+e)}"
def needs(mfs, group=2):
    nd = {}; seen = []
    for g, m in enumerate(mfs):
        if m[1] is not None and m[1] not in seen: seen.append(m[1]); nd[g] = m[1]
    items = sorted(nd.items())
    out = {}
    for i in range(0, len(items), group):
        out[items[i][0]] = [("F", t) for _, t in items[i:i + group]]
    return out
def lastuse(mfs):
    lu = {}
    for g, m in enumerate(mfs):
        if m[1] is not None: lu[m[1]] = g
    return lu

def barrier_ops(cls, g, pre, gaps, vmtags=None, first=False):
    w = ("", "wait", dict(vmn=O.vmn + (O.fuse and O.wopre == 250 and not first), dsn=0) if vmtags is None else dict(vm=vmtags, dsn=0))
    if cls == 0: pre[g] = [w, "s_barrier"]
    else:
        pre[g] = [w]; gaps[g].insert(0, "s_barrier")

def is_vm(o): return not isinstance(o, str) and o[1] == "vm"
def slot(A, p, cls, tag, zero=False, tail=(), groups=None, vmtags=None, after_bar=(), kn=None):
    D = O.D; even = (p & 1) == 0; buf = p & 1; t_ = p >> 1
    vlate, klate, bar0 = kn or (O.vlate, O.klate, O.bar)
    A.c(f"---- slot {tag} pos={p} cls={cls}")
    kr = k_reads(((p + 1) >> 1) & 3, (p + 1) & 1)
    vq = v_reads(t_ & 3, p & 1)
    pvm = pv_mf(buf ^ 1, zero); mfs = pvm + qk_mf(buf ^ 1, snake=O.snake & 2)
    n = len(mfs); npv = len(pvm)
    gaps = {g: [] for g in range(n)}; pre = {}
    seq = [(buf, e) for e in range(D, 32)] + [(buf ^ 1, e) for e in range(D)]
    eg = [2 * i for i in range(32 - D)] + [n - 64 + 2 * i for i in range(32 - D, 32)]
    for g, (b, e) in zip(eg, seq): gaps[g].append(ex(b, e))
    free = [g for g in range(n) if g not in eg]
    cvg = {g + 1: cv(b, e >> 1) for g, (b, e) in zip(eg, seq) if e & 1}
    if even and bar0 <= npv: klate = 0
    for g, t in zip(free[:8 - klate], kr): gaps[g].append(t)
    need = {}
    if klate:
        gaps[npv - 1] += kr[8 - klate:]
        need = {g: t for g, t in needs(mfs).items() if g >= npv}
    lu = lastuse(pvm)
    pre[0] = [("", "wait", dict(dsn=0))]
    if O.trace and groups is None:
        pre[0] += ["s_mov_b64 exec, s[52:53]", "v_mov_b32 v0, s50", "s_mov_b64 exec, -1", "s_lshl_b64 s[52:53], s[52:53], 1"]
        gaps[n - 3].append("s_memrealtime s[50:51]")
    if groups is None:
        kg = dma_k(t_ & 3, "KV"); vg = dma_v((t_ + 3) & 3, "KV")
        if even: flat = [kg[0]] + kg[1] + [vg[0], kg[2]] + (vg[1] + [vg[2]] if O.burst == 1 else [])
        else: flat = vg[1] + [vg[2]] if O.burst == 2 else []
        if O.fuse and O.wopre == 250 and p in (1, 5):
            flat = flat + [(f"buffer_load_dwordx4 {ar(224,4)}, {vr(vOO)}, {sr(sW)}, s{sTW} offen{' nt' if O.wopre_nt else ''}", "vm", "WOP"), f"s_add_u32 s{sTW}, s{sTW}, 1024", f"s_min_u32 s{sTW}, s{sTW}, s{sTW-1}"]
    else:
        flat = [o for grp in groups for o in grp]
    dm = [o for o in flat if is_vm(o)]
    bar = bar0 if even else 15
    if even:
        barrier_ops(cls, bar, pre, gaps, vmtags)
        if after_bar: pre[bar + 1] = list(after_bar)
    rest = [g for g in free if g > bar]
    if klate: rest = [g for g in rest if g != npv - 1]
    if vlate:
        gaps[n - 1] += vq[len(vq) - vlate:]; vq = vq[:len(vq) - vlate]
        rest = [g for g in rest if g != n - 1]
    lack = len(dm) + len(vq) - len(rest)
    xg = set()
    if lack > 0:
        cand = [g for g in eg if g > bar + 4]
        xg = {cand[(q * len(cand)) // lack + len(cand) // (2 * lack)] for q in range(lack)}
        rest = sorted(rest + list(xg))
    dg = []; k = 0
    while dm or vq:
        g = rest.pop(0)
        vok = vq and lu[vq[0][2][1]] <= g
        if g in xg and vok: gaps[g].append(vq.pop(0)); continue
        if dm and k % O.dper == 0 and g in cvg and vok: gaps[g].append(vq.pop(0)); continue
        if dm and (k % O.dper == 0 or not vok) and g not in cvg: gaps[g].append(dm.pop(0)); dg.append(g)
        elif vok: gaps[g].append(vq.pop(0))
        elif dm: gaps[g].append(dm.pop(0)); dg.append(g)
        k += 1
    small = []
    nv = 0
    for o in flat:
        if is_vm(o): nv += 1; continue
        lo = dg[nv - 1] if nv else 16
        hi = n - 1 if ("0x4000" in o or nv == len(dg)) else dg[nv] - 1
        small.append((o, lo, hi))
    if not klate and (not even or bar >= npv): small.append((("", "wait", dict(ds=[o[2] for o in kr])), 24, npv - 1))
    for g, o in cvg.items(): gaps[g].append(o)
    if O.vsum:
        for g, (b, e) in zip(eg, seq): gaps[g + 1].append(ad(b, e))
    def used(g): return sum(4 if (not isinstance(o, str) and o[1] == "wait") else cost(o) for o in gaps[g]) + 4 * len(pre.get(g + 1, []))
    prev = (None, 0)
    for o, lo, hi in small:
        key = (lo, hi)
        if prev[0] == key: lo = prev[1]
        c = [g for g in range(lo, hi + 1) if used(g) <= 5]
        if not c: c = sorted(range(lo, hi + 1), key=used)
        gaps[c[0]].append(o); prev = (key, c[0])
    for q in range(O.pad): gaps[1 + (q * 62) // O.pad // 2 * 2 + 1].append("s_nop 1")
    if O.upad and groups is None:
        lb = f"L_up_{tag}"
        gaps[n - 1] += [f"s_lshl_b32 s3, s{sUNIT}, 2", f"s_sub_u32 s3, s3, s{sLOOP}", "s_add_u32 s3, s3, 3", f"s_cmp_ge_u32 s3, {O.upadm}", f"s_cbranch_scc1 {lb}"] + ["s_nop 7"] * O.upad + [lb + ":"]
    gaps[n - 1] += list(tail)
    interleave(A, [m[0] for m in mfs], gaps, pre=pre, need=need)

def max_chain(qb, buf, t0, t1, run=None):
    s = S(buf, qb, 0)
    st = [f"v_max3_f32 {vr(t0)}, {vr(s)}, {vr(s+1)}, {vr(s+2)}", f"v_max3_f32 {vr(t1)}, {vr(s+3)}, {vr(s+4)}, {vr(s+5)}",
          f"v_max3_f32 {vr(t0)}, {vr(t0)}, {vr(s+6)}, {vr(s+7)}"]
    if run is not None: return st + [f"v_max3_f32 {vr(run)}, {vr(run)}, {vr(t0)}, {vr(t1)}"]
    return st + [f"v_max_f32 {vr(t0)}, {vr(t0)}, {vr(t1)}"]
def xlane_max(t0, t1):
    return [f"v_mov_b32 {vr(t1)}, {vr(t0)}", "s_nop 1", f"v_permlane32_swap_b32 {vr(t0)}, {vr(t1)}", "s_nop 0", f"v_max_f32 {vr(t0)}, {vr(t0)}, {vr(t1)}",
            f"v_mov_b32 {vr(t1)}, {vr(t0)}", "s_nop 1", f"v_permlane16_swap_b32 {vr(t0)}, {vr(t1)}", "s_nop 0", f"v_max_f32 {vr(t0)}, {vr(t0)}, {vr(t1)}"]

def unit_moves(A):
    for q in range(64): A(f"v_accvgpr_mov_b32 {ar(aQ+q)}, {ar(aQ2+q)}")
    if O.fuse:
        for q in range(16 * O.est, 64): A(f"v_accvgpr_write_b32 {ar(aQ2+q)}, {vr(vS+q)}")
def first_slot(A, cls):
    D = O.D
    A.c(f"---- first slot cls={cls}")
    for o in k_reads(0, 0, dst=aVF) + k_reads(0, 1): A.op(o)
    if O.mvk:
        A(f"s_cmp_eq_u32 s{sUNIT}, 0"); A("s_cbranch_scc1 L_nomv")
        unit_moves(A)
        A.label("L_nomv")
    mfs = qk_mf(0, zero=True, kf=aVF) + qk_mf(1)
    gaps = {g: [] for g in range(64)}; pre = {}
    bar = 8
    barrier_ops(cls, bar, pre, gaps, first=True)
    kg = dma_k(0, "KV"); vg = dma_v(3, "KV")
    gaps[bar - 2].append(kg[0])
    dm = kg[1] + (vg[1] if O.burst == 1 else [])
    for i, o in enumerate(dm):
        gaps[bar + 1 + i].append(o)
        if i == 3: gaps[bar + 1 + i].append(vg[0])
    gaps[7].append(kg[2]) if False else None
    st = []
    tA = [vO + 2 * q for q in range(4)]
    for qb in range(4):
        t0, t1 = tA[qb], tA[qb] + 1
        ch = max_chain(qb, 0, t0, t1) + xlane_max(t0, t1)
        ch += [f"v_sub_f32 {vr(NEGM(qb)+r)}, 0, {vr(t0)}" for r in range(4)]
        ch += [f"v_sub_f32 {vr(S(0,qb,0)+r)}, {vr(S(0,qb,0)+r)}, {vr(t0)}" for r in range(8)]
        st.append([ch[0], 8 * qb + 7 + 8]); st += ch[1:]
    sm = []
    for e in range(32):
        sm.append(ex(0, e))
        if e >= 2 and not (e & 1): sm.append(cv(0, (e >> 1) - 1))
        if O.vsum and e >= 2:
            if (e - 2) & 7 == 0: sm.append(f"v_add_f32 {vr(vL+((e-2)>>3))}, {vr(vS+e-2)}, {vr(vS+e-1)}")
            elif (e - 2) & 7 != 1: sm.append(ad(0, e - 2))
    sm += ["s_nop 0", cv(0, 15)]
    if O.vsum: sm += [ad(0, 30), ad(0, 31)]
    vq = v_reads(0, 0)
    for i, o in enumerate(vq): gaps[33 + i * 2 - (i // 8) * 0 if 33 + 2 * i < 64 else 63].append(o)
    post = [kg[2]] + ([vg[2]] if O.burst == 1 else [])
    if O.smf: post += [f"v_accvgpr_write_b32 {ar(aL+q)}, 0" for q in range(8)]
    nd = needs(mfs)
    nch = len(st) // 4
    m = [x[0] for x in mfs]
    def sub(d, lo, hi): return {g - lo: v for g, v in d.items() if lo <= g < hi}
    def shift(s, lo): return [[x[0], x[1] - lo] if isinstance(x, list) else x for x in s]
    segs = [(0, 32, st[:nch]), (32, 40, st[nch:2*nch]), (40, 48, st[2*nch:3*nch]), (48, 56, st[3*nch:]), (56, 64, [])]
    carry = []
    allst = st + post + sm
    pos = 0
    marks = {32: nch, 40: 2 * nch, 48: 3 * nch, 56: 4 * nch}
    for g in range(64):
        if g in marks:
            while pos < marks[g]:
                o = allst[pos][0] if isinstance(allst[pos], list) else allst[pos]
                A.op(o); pos += 1
            A("s_nop 1")
        for t in pre.get(g, []): A.op(t)
        if g in nd: A.wait(ds=nd[g])
        A(m[g])
        room = O.budget - sum(cost(o) for o in gaps[g])
        for o in gaps[g]: A.op(o)
        while pos < len(allst):
            o, at = allst[pos] if isinstance(allst[pos], list) else (allst[pos], 0)
            if at > g or room <= 0 or cost(o) > room + 1: break
            A.op(o); room -= cost(o); pos += 1
    while pos < len(allst):
        A.op(allst[pos]); pos += 1
    for e in range(D):
        A(ex(1, e))
        if e >= 2 and not (e & 1): A(cv(1, (e >> 1) - 1))
    A("s_nop 0"); A(cv(1, D // 2 - 1))
    if O.vsum:
        for e in range(D): A(ad(1, e))
    A("s_nop 1")

def o_store(reg, qb, t, tag, so):
    return (f"buffer_store_dwordx4 {reg}, {vr(vOO)}, {sr(sO)}, s{so} offen offset:{t*1024}{[' sc1', ' sc1 nt', ' sc0 sc1', ' sc0 sc1 nt'][O.stfl if tag == 'ST0' or O.stfl1 else 0] if O.st_sc1 else ''}", "vm", tag)
def row_sums():
    st = []
    for sw in ("v_permlane32_swap_b32", "v_permlane16_swap_b32"):
        st += [f"v_mov_b32 {vr(vP+2*q+1)}, {vr(vL+q)}" for q in range(4)]
        st += [f"{sw} {vr(vL+q)}, {vr(vP+2*q+1)}" for q in range(4)]
        st += [f"v_add_f32 {vr(vL+q)}, {vr(vL+q)}, {vr(vP+2*q+1)}" for q in range(4)]
    st += [f"v_rcp_f32 {vr(vP+2*q)}, {vr(vL+q)}" for q in range(4)]
    if O.chk:
        st += [f"v_max3_f32 {vr(vP+1)}, {vr(vL)}, {vr(vL+1)}, {vr(vL+2)}"]
        for q in (vP + 1, vL + 3): st += [f"v_cmp_nle_f32 vcc, {vr(q)}, s{sTHR}", f"s_or_b64 s[{sM}:{sM+1}], s[{sM}:{sM+1}], vcc"]
    return st
def epi_qb(qb, store):
    so = [f"s_add_u32 s{sT}, s{sOOF}, {qb*131072}"]
    if O.vsum:
        inv = vP + 2 * qb
        st = so + ([f"v_accvgpr_read_b32 {vr(vL+q)}, {ar(aL+q)}" for q in range(4)] if qb == 3 else [])
    else:
        inv = vP + 2 * (qb & 1)
        st = [f"v_accvgpr_read_b32 {vr(inv+1)}, {ar(LA(qb))}", f"v_rcp_f32 {vr(inv)}, {vr(inv+1)}"]
        if O.smf: st = [f"v_accvgpr_read_b32 {vr(inv+q)}, {ar(aL+2*qb+q)}" for q in range(2)] + [f"v_add_f32 {vr(inv+1)}, {vr(inv)}, {vr(inv+1)}", st[1]]
        if O.chk: st += [f"v_cmp_nle_f32 vcc, {vr(inv+1)}, s{sTHR}"]
        st += so
        if O.chk: st += [f"s_or_b64 s[{sM}:{sM+1}], s[{sM}:{sM+1}], vcc"]
    for t in range(4):
        o = OA(2 * t, qb)
        st += [f"v_pk_mul_f32 {vr(o+2*i,2)}, {vr(o+2*i,2)}, {vr(inv,2)} op_sel_hi:[1,0]" for i in range(4)]
        d = vS + (qb * 4 + t) * 4
        st += [f"v_cvt_pk_bf16_f32 {vr(d+i)}, {vr(o+2*i)}, {vr(o+2*i+1)}" for i in range(4)]
        if store: st.append(o_store(vr(d, 4), qb, t, "ST", sT))
    return st

def last_slot(A, store, extra1=(), mid=None, extra2=()):
    D = O.D
    A.c("---- last slot + final PV + epilogue")
    pvm = pv_mf(0); n = len(pvm); nq = n // 4
    gaps = {g: [] for g in range(n)}
    lu = lastuse(pvm)
    for i, o in enumerate(v_reads(3, 1)):
        g = min(n - 1, lu[o[2][1]] + 1 + (i & 1)); gaps[g].append(o)
    sm = []
    for e in range(D, 32):
        sm.append(ex(1, e))
        if e > D and not (e & 1): sm.append(cv(1, (e >> 1) - 1))
        if O.vsum and e > D: sm.append(ad(1, e - 1))
    sm += ["s_nop 0", cv(1, 15)] + ([ad(1, 31)] if O.vsum else []) + ["s_nop 1"]
    ex_ = list(extra1)
    for g in range(0, n):
        if ex_ and not gaps[g]: gaps[g] += ex_.pop(0)
    assert not ex_
    A(f"s_mov_b64 s[{sM}:{sM+1}], 0")
    interleave(A, [m[0] for m in pvm], gaps, stream=sm, need=needs(pvm))
    if mid: mid()
    fin = pv_mf(1, qbmajor=True)
    st = row_sums() if O.vsum else []
    for qb in range(4):
        e = epi_qb(qb, qb < store)
        k = 1 if O.vsum and qb < 3 else 0
        if qb == 3: st.append("s_nop 7")
        st += e[:k]; st.append([e[k], max(g for g, m in enumerate(fin) if m[2] == qb) + 8]); st += e[k+1:]
    gaps = {g: [] for g in range(n)}
    ex_ = list(extra2)
    for g in range(0, n):
        if ex_ and (g < 16 or g % 2 == 0): gaps[g] += ex_.pop(0)
    assert not ex_
    interleave(A, [m[0] for m in fin], gaps, stream=st, need=needs(fin, group=8))

def fallback(A):
    A.label("L_fb")
    lane, g, i, r, ka, kb_, va, vd, t0, t1 = range(64, 74)
    run = 76
    A("s_waitcnt vmcnt(0) lgkmcnt(0)"); A("s_nop 7")
    A(f"v_mbcnt_lo_u32_b32 {vr(lane)}, -1, 0"); A(f"v_mbcnt_hi_u32_b32 {vr(lane)}, -1, {vr(lane)}")
    A(f"v_lshrrev_b32 {vr(g)}, 4, {vr(lane)}"); A(f"v_and_b32 {vr(i)}, 15, {vr(lane)}")
    A(f"v_and_b32 {vr(t0)}, 1, {vr(g)}"); A(f"v_lshlrev_b32 {vr(t0)}, 1, {vr(t0)}"); A(f"v_lshrrev_b32 {vr(t1)}, 1, {vr(g)}")
    A(f"v_or_b32 {vr(t0)}, {vr(t0)}, {vr(t1)}"); A(f"v_lshlrev_b32 {vr(t0)}, 4, {vr(t0)}")
    A(f"v_lshl_add_u32 {vr(ka)}, {vr(i)}, 8, {vr(t0)}"); A(f"v_add_u32 {vr(kb_)}, 4096, {vr(ka)}")
    A(f"v_lshlrev_b32 {vr(vd)}, 4, {vr(lane)}")
    A(f"s_lshl_b32 s{sT3}, s{sWAVE}, 13"); A(f"s_add_u32 s{sT3}, s{sT3}, {FBBASE}")
    if O.fuse: A(f"s_cmp_eq_u32 s{sUNIT}, 0"); A(f"s_cselect_b32 s{sT3}, s{sT3}, s{sWM+3}")
    A(f"v_lshrrev_b32 {vr(r)}, 2, {vr(i)}"); A(f"v_lshl_add_u32 {vr(t0)}, {vr(g)}, 2, {vr(r)}"); A(f"v_lshlrev_b32 {vr(t0)}, 8, {vr(t0)}")
    A(f"v_and_b32 {vr(t1)}, 3, {vr(i)}"); A(f"v_lshl_add_u32 {vr(t0)}, {vr(t1)}, 3, {vr(t0)}"); A(f"v_add_u32 {vr(va)}, s{sT3}, {vr(t0)}")
    def kload():
        for kb in range(2):
            for s in range(4):
                A(f"buffer_load_dwordx4 {ar(aKF+(kb*4+s)*4,4)}, {vr(kb_ if kb else ka)}, {sr(sK)}, s{sT} offen offset:{s*64}")
    for q in range(4): A(f"v_mov_b32 {vr(run+q)}, 0xff800000")
    A(f"s_lshl_b32 s{sT}, s{sUNIT}, 18"); A(f"s_add_u32 s{sT2}, s{sT}, 0x40000")
    A.label("L_fb1")
    kload(); A("s_waitcnt vmcnt(0)")
    for m in qk_mf(0, zero=True): A(m[0])
    A("s_nop 7")
    for q in range(4):
        for o in max_chain(q, 0, t0, t1, run=run + q): A(o)
    A(f"s_add_u32 s{sT}, s{sT}, 0x2000"); A(f"s_cmp_lt_u32 s{sT}, s{sT2}"); A("s_cbranch_scc1 L_fb1")
    for q in range(4):
        for o in xlane_max(run + q, t1): A(o)
        for rr in range(4): A(f"v_sub_f32 {vr(NEGM(q)+rr)}, 0, {vr(run+q)}")
    for k in range(128): A(f"v_mov_b32 {vr(vO+k)}, 0")
    for k in range(16): A(f"v_accvgpr_write_b32 {ar(aL+k)}, 0")
    A(f"s_lshl_b32 s{sT}, s{sUNIT}, 18")
    A.label("L_fb2")
    kload()
    for hf in range(2):
        A(f"s_add_u32 m0, s{sT3}, {hf*4096}"); A(f"s_add_u32 s3, s{sT}, {hf*4096}")
        for p in range(4): A(f"buffer_load_dwordx4 {vr(vd)}, {sr(sV)}, s3 offen offset:{p*1024} lds")
    A("s_waitcnt vmcnt(0)")
    for db in range(8):
        for jh in range(2): A(f"ds_read_b64_tr_b16 {ar(aVF+db*4+2*jh,2)}, {vr(va)} offset:{db*32+jh*4096}")
    for m in qk_mf(0): A(m[0])
    A("s_nop 7")
    for e in range(32): A(ex(0, e))
    A("s_nop 0")
    for k in range(16): A(cv(0, k))
    if O.vsum:
        for e in range(32): A(ad(0, e))
    A("s_waitcnt lgkmcnt(0)"); A("s_nop 1")
    for m in pv_mf(0): A(m[0])
    A(f"s_add_u32 s{sT}, s{sT}, 0x2000"); A(f"s_cmp_lt_u32 s{sT}, s{sT2}"); A("s_cbranch_scc1 L_fb2")
    A("s_nop 7")
    if O.vsum:
        for o in row_sums(): A(o)
    for qb in range(4):
        for o in epi_qb(qb, False): A(o)
    for qb in range(4):
        if O.fuse and qb == O.est: A(f"s_cmp_eq_u32 s{sUNIT}, 0"); A("s_cbranch_scc1 L_fbret0")
        A(f"s_add_u32 s{sT}, s{sOOF}, {qb*131072}")
        for t in range(4): A(o_store(vr(vS + (qb * 4 + t) * 4, 4), qb, t, "ST", sT)[0])
    if not O.fuse or O.est == 4: A(f"s_cmp_eq_u32 s{sUNIT}, 0"); A("s_cbranch_scc1 L_fbret0")
    if O.fuse: oproj_setup(A)
    A("s_branch L_fbret1")

def srd(A, d, lo, hi, off, size):
    A(f"s_add_u32 s{d}, s{lo}, {off}"); A(f"s_addc_u32 s{d+1}, s{hi}, 0"); A(f"s_and_b32 s{d+1}, s{d+1}, 0xffff")
    A(f"s_mov_b32 s{d+2}, {size}"); A(f"s_mov_b32 s{d+3}, 0x20000")

def one_lane(A, val, text, tag):
    A(f"v_mov_b32 v0, {val}"); A("s_mov_b64 exec, 1")
    A.op((text, "vm", tag))
    A("s_mov_b64 exec, -1")
def flag_ops(val, name):
    return [f"s_cmp_lg_u32 s{sWAVE}, 0", f"s_cbranch_scc1 L_np_{name}", f"v_mov_b32 v0, {val}", "s_mov_b64 exec, 1",
            f"buffer_store_byte v0, off, {sr(sCNT)}, s{sGI} sc1", "s_mov_b64 exec, -1", f"L_np_{name}:"]
def poll_text(): return f"buffer_load_dword v0, {vr(vPOLL)}, {sr(sCNT)}, 0 offen sc1"
def poll_ops(name): return [f"s_cmp_lg_u32 s{sWAVE}, 0", f"s_cbranch_scc1 L_np_{name}", (poll_text(), "mark", name), f"L_np_{name}:"]
spins = []
def poll_test(A, mask, own):
    A(f"v_or_b32 v0, v0, {vr(own)}"); A(f"v_and_b32 v0, {hex(mask)}, v0"); A(f"v_cmp_ne_u32 vcc, {hex(mask)}, v0")
def poll_check(A, mask, name, own, mark):
    A(f"s_cmp_lg_u32 s{sWAVE}, 0"); A(f"s_cbranch_scc1 L_spun_{name}")
    A(f"s_waitcnt vmcnt({min(63, A.nvm - A.mark[mark])})")
    poll_test(A, mask, own); A(f"s_cbranch_vccnz L_spin_{name}")
    A.label(f"L_spun_{name}")
    spins.append((mask, name, own))
def emit_spins(A):
    for mask, name, own in spins:
        A.label(f"L_spin_{name}")
        A("s_mov_b32 s3, 0x40000")
        A.label(f"L_spinl_{name}")
        A(poll_text()); A("s_waitcnt vmcnt(0)")
        poll_test(A, mask, own); A(f"s_cbranch_vccz L_spun_{name}")
        A("s_sub_u32 s3, s3, 1"); A("s_cmp_lg_u32 s3, 0"); A(f"s_cbranch_scc1 L_spinl_{name}")
        A(f"s_branch L_spun_{name}")

PIECE = [[13, 14, 15, 0], [1, 2, 8, 9], [3, 10, 4, 5], [6, 7, 11, 12]]
X_OFF = 40 << 20
aWD = 212
vOQ, vWD, vOWN, vOWX = 16, 18, 28, 29
sWB, sR13, sWM, sWT = sWQW, sXW, 92, 84
def slab_c(j): return ((j & 7) << 13) | ((j >> 3) << 12)
def slab_o(j): return slab_c(j & 1) if O.ofake else slab_c(j)
def w_dma(j, hf, early=False):
    jw = j & 1 if O.wfake else j
    r = [[f"s_add_u32 s{sT2}, s{sWT+(jw&7)}, {(jw>>3)*163840}", f"s_add_u32 m0, s{sWM+(j&3)}, {hf*4096}"]]
    for p in range(5):
        v = vWD + hf * 5 + p
        if early:
            v = vOKV
            r[-1].append(f"v_accvgpr_read_b32 {vr(v)}, {ar(aWD+hf*5+p)}")
        if p == 4: r[-1].append(f"s_add_u32 m0, s{sWM+(j&3)}, 8192")
        r.append([(f"buffer_load_dwordx4 {vr(v)}, {sr(sW)}, s{sT2} offen offset:{(p if p < 4 else hf)*1024}{['', ' sc1', ' nt', ' sc0 sc1', ' sc0'][O.wofl]} lds", "vm", ("W", j))])
    return r
OPH = [2, 3, 7, 0, 1, 4, 5, 6]
def OF(j, kk, qq): return OPH[j & 7] * 32 + (kk * 2 + qq) * 4
def wo_t(part, v, dst):
    if O.wopre != 210: return []
    return [[f"v_bfe_u32 {vr(v)}, {vr(vOO)}, 4, 6", f"v_mul_u32_u24 {vr(v)}, 80, {vr(v)}"], [(f"buffer_load_dword {dst}, {vr(v)}, {sr(sW)}, s{sTW-part} offen", "vm", "WOP")]]
def o_ld(j):
    r = [[f"s_xor_b32 s4, s{sR13}, {slab_o(j)}"]]
    for kk in range(4):
        for qq in range(2):
            r.append([(f"buffer_load_dwordx4 {ar(OF(j,kk,qq),4)}, {vr(vOQ+qq)}, {sr(sX)}, s4 offen offset:{kk*1024}{SC1()}", "vm", ("O", j))])
    r[1] = r[0] + r[1]
    return r[1:]
def mbox(op, reg, so, tag):
    r = [[(f"buffer_{op}_dwordx4 {reg(t)}, {vr(vOO)}, {sr(sO)}, s{so if t < 4 else sT} offen offset:{(t&3)*1024} sc1{' nt' if (tag == 'XF' and O.xffl & 1) or (tag == 'XS' and O.xffl & 2) or (tag == 'XL' and O.xffl & 4) else ''}", "vm", tag)] for t in range(5)]
    r[3].append(f"s_add_u32 s{sT}, s{so}, 4096")
    return r
def oproj_early(A, tb):
    lane, t0, t1, t2 = range(tb, tb + 4)
    A(f"s_bfe_u32 s3, s7, 0x10002"); A(f"s_lshr_b32 s4, s7, 3")
    A(f"s_lshr_b32 s{sT}, s{sGI}, 4"); A(f"s_lshl_b32 s{sT}, s{sT}, 22")
    A(f"s_lshl_b32 s{sT2}, s3, 20"); A(f"s_add_u32 s{sT}, s{sT}, s{sT2}"); A(f"s_lshl_b32 s{sT2}, s4, 16"); A(f"s_add_u32 s{sT}, s{sT}, s{sT2}")
    srd(A, sX, sWS, sWS + 1, f"s{sT}", "0xf0000")
    A(f"s_mov_b64 s[{sW}:{sW+1}], s[{sWOI}:{sWOI+1}]"); A(f"s_mov_b32 s{sW+2}, 5242880")
    A(f"s_lshl_b32 s{sT}, s4, 6"); A(f"s_add_u32 s{sT}, s{sT}, s{sWAVE}"); A(f"s_mul_i32 s{sWB}, s{sT}, 40960")
    A(f"s_and_b32 s{sT}, s7, 3"); A(f"s_mul_i32 s{sT}, s{sT}, {256 if O.walign else 320}"); A(f"s_add_u32 s{sWB}, s{sWB}, s{sT}")
    if O.own1: A(f"s_and_b32 s{sR13}, s7, 7"); A(f"s_lshl_b32 s{sR13}, s{sR13}, 13")
    else: A(f"s_mov_b32 s{sR13}, 0")
    for j in range(8):
        A(f"s_xor_b32 s{sT}, s{sR13}, {slab_c(j)}"); A(f"s_mul_i32 s{sT}, s{sT}, 40"); A(f"s_add_u32 s{sWT+j}, s{sT}, s{sWB}")
    A(f"s_lshl_b32 s{sT}, s{sWAVE}, 2")
    for sl in range(4):
        A(f"s_lshr_b32 s{sT2}, {hex(sum(PIECE[sl][w] << (4 * w) for w in range(4)))}, s{sT}"); A(f"s_and_b32 s{sT2}, s{sT2}, 15")
        A(f"s_mul_i32 s{sWM+sl}, s{sT2}, 10240")
    A(f"v_bfe_u32 {vr(lane)}, {vr(vOO)}, 4, 6")
    A(f"s_and_b32 s3, s7, 1"); A(f"s_xor_b32 s4, s4, 1")
    A(f"v_lshrrev_b32 {vr(t0)}, 3, {vr(lane)}"); A(f"v_mul_u32_u24 {vr(t0)}, 1280, {vr(t0)}")
    A(f"v_lshrrev_b32 {vr(t1)}, 3, {vr(lane)}"); A(f"v_and_b32 {vr(t1)}, 6, {vr(t1)}"); A(f"v_and_b32 {vr(t2)}, 7, {vr(lane)}"); A(f"v_xor_b32 {vr(t1)}, {vr(t1)}, {vr(t2)}")
    A(f"v_lshl_add_u32 {vr(t0)}, {vr(t1)}, 4, {vr(t0)}")
    for h in range(2):
        A(f"s_xor_b32 s{sT}, s4, {h}"); A(f"s_lshl_b32 s{sT}, s{sT}, 1"); A(f"s_add_u32 s{sT}, s{sT}, s3"); A(f"s_lshl_b32 s{sT}, s{sT}, 6")
        for rb in range(4):
            A(f"v_add_u32 {vr(t1)}, s{sT}, {vr(t0)}"); A(f"v_accvgpr_write_b32 {ar(aWD+h*5+rb)}, {vr(t1)}")
            if rb < 3: A(f"s_add_u32 s{sT}, s{sT}, 9216")
    A(f"v_lshrrev_b32 {vr(t0)}, 2, {vr(lane)}"); A(f"v_mul_u32_u24 {vr(t0)}, 1280, {vr(t0)}")
    A(f"v_bfe_u32 {vr(t1)}, {vr(lane)}, 4, 1"); A(f"v_xor_b32 {vr(t1)}, s4, {vr(t1)}"); A(f"v_lshlrev_b32 {vr(t1)}, 1, {vr(t1)}")
    A(f"v_and_b32 {vr(t2)}, 3, {vr(lane)}"); A(f"v_xor_b32 {vr(t1)}, {vr(t1)}, {vr(t2)}"); A(f"v_lshl_add_u32 {vr(t0)}, {vr(t1)}, 4, {vr(t0)}")
    A(f"s_xor_b32 s3, s3, 1"); A(f"s_lshl_b32 s3, s3, 8"); A(f"v_add_u32 {vr(t0)}, s3, {vr(t0)}"); A(f"v_add_u32 {vr(t1)}, {20480-1024}, {vr(t0)}")
    A(f"v_accvgpr_write_b32 {ar(aWD+4)}, {vr(t0)}"); A(f"v_accvgpr_write_b32 {ar(aWD+9)}, {vr(t1)}")
    if O.wopre in (200, 250):
        A(f"s_and_b32 s{sT}, s{sGI}, 127"); A(f"s_mul_i32 s{sT}, s{sT}, 10240"); A(f"s_mul_i32 s{sTW}, s{sWAVE}, {1310720 - 524288}"); A(f"s_add_u32 s{sTW}, s{sTW}, s{sT}")
        A(f"s_add_u32 s{sTW-1}, s{sTW}, 9216")
    if O.wopre == 210:
        A(f"s_and_b32 s{sT}, s{sGI}, 127"); A(f"s_lshl_b32 s{sT}, s{sT}, 2"); A(f"s_add_u32 s{sT}, s{sT}, s{sWAVE}")
        A(f"s_lshr_b32 s{sTW}, s{sT}, 5"); A(f"s_mul_i32 s{sTW}, s{sTW}, 327680"); A(f"s_and_b32 s{sT}, s{sT}, 31"); A(f"s_mul_i32 s{sT}, s{sT}, 5120")
        A(f"s_add_u32 s{sTW}, s{sTW}, s{sT}"); A(f"s_add_u32 s{sTW-1}, s{sTW}, 163840")
    A(f"s_and_b32 s{sT}, s{sGI}, 0xf0"); A(f"v_and_b32 {vr(t0)}, 3, {vr(lane)}"); A(f"v_lshlrev_b32 {vr(t0)}, 2, {vr(t0)}"); A(f"v_add_u32 {vr(t0)}, s{sT}, {vr(t0)}")
    A(f"v_accvgpr_write_b32 {ar(aPOLL)}, {vr(t0)}")
    if O.smf:
        A(f"v_lshrrev_b32 {vr(t0)}, 4, {vr(lane)}"); A(f"v_xor_b32 {vr(t0)}, {vr(t0)}, {vr(lane)}"); A(f"v_bfe_i32 {vr(t0)}, {vr(t0)}, 1, 1")
        A(f"v_bfi_b32 {vr(t0)}, {vr(t0)}, 0, s{sT3}")
        for q in range(4): A(f"v_accvgpr_write_b32 {ar(aONE+q)}, {vr(t0)}")
        A(f"v_bfe_i32 {vr(t0)}, {vr(lane)}, 0, 1"); A(f"v_and_b32 {vr(t0)}, 0xaaaaaaaa, {vr(t0)}"); A(f"v_or_b32 {vr(vIDX)}, 0x44444444, {vr(t0)}")
def oproj_setup(A):
    vTMP = vPOLL
    A(f"v_accvgpr_read_b32 {vr(vPOLL)}, {ar(aPOLL)}")
    A(f"s_lshl_b32 s{sT}, s{sWAVE}, 18"); A(f"v_and_b32 {vr(vOQ)}, 0x3ff, {vr(vOO)}")
    A(f"v_add_u32 {vr(vOQ)}, s{sT}, {vr(vOQ)}"); A(f"v_add_u32 {vr(vOQ+1)}, 0x20000, {vr(vOQ)}")
    for p in range(10): A(f"v_accvgpr_read_b32 {vr(vWD+p)}, {ar(aWD+p)}")
    A(f"s_and_b32 s{sT}, s{sGI}, 0xfc"); A(f"s_and_b32 s3, s{sGI}, 3"); A(f"s_lshl_b32 s3, s3, 3"); A(f"s_lshl_b32 s3, 0xff, s3")
    A(f"v_cmp_eq_u32 vcc, s{sT}, {vr(vTMP)}"); A(f"v_mov_b32 {vr(vOWN)}, s3"); A(f"s_xor_b32 s{sT}, s{sT}, 8"); A(f"v_cndmask_b32 {vr(vOWN)}, 0, {vr(vOWN)}, vcc")
    A(f"v_cmp_eq_u32 vcc, s{sT}, {vr(vTMP)}"); A(f"s_not_b32 s3, s3"); A(f"v_mov_b32 {vr(vOWX)}, s3"); A(f"v_cndmask_b32 {vr(vOWX)}, -1, {vr(vOWX)}, vcc")
    A(f"v_xor_b32 {vr(31)}, s{sGI}, {vr(vTMP)}"); A(f"v_bfe_i32 {vr(31)}, {vr(31)}, 3, 1")
    A(f"v_and_or_b32 {vr(vOWX)}, {vr(vOWX)}, {vr(31)}, {vr(vOWN)}"); A(f"v_or_b32 {vr(vOWN)}, {vr(vOWN)}, {vr(31)}")

def oproj(A):
    vWR = 200
    vACC, vWF = 40, 120
    def ACC(h, qq, nb): return vACC + h * 40 + (qq * 5 + nb) * 4
    def WF(par, f): return vWF + par * 40 + f * 4
    A.c("---- O projection")
    lane, t0, t1 = 38, 39, 37
    A(f"v_bfe_u32 {vr(lane)}, {vr(vOO)}, 4, 6"); A(f"v_lshrrev_b32 {vr(t0)}, 5, {vr(lane)}"); A(f"v_lshlrev_b32 {vr(t0)}, 10, {vr(t0)}")
    A(f"v_bfe_u32 {vr(t1)}, {vr(lane)}, 2, 3"); A(f"v_lshl_add_u32 {vr(t0)}, {vr(t1)}, 7, {vr(t0)}")
    A(f"v_and_b32 {vr(t1)}, 3, {vr(lane)}"); A(f"v_lshl_add_u32 {vr(t0)}, {vr(t1)}, 3, {vr(t0)}")
    A(f"v_bfe_u32 {vr(t1)}, {vr(lane)}, 3, 2"); A(f"v_lshl_add_u32 {vr(vWR)}, {vr(t1)}, 5, {vr(t0)}")
    for nb in range(1, 4): A(f"v_xor_b32 {vr(vWR+3*nb)}, {nb*32}, {vr(vWR)}")
    A(f"v_lshrrev_b32 {vr(t0)}, 2, {vr(lane)}"); A(f"v_lshlrev_b32 {vr(t0)}, 6, {vr(t0)}"); A(f"v_and_b32 {vr(t1)}, 3, {vr(lane)}"); A(f"v_lshl_add_u32 {vr(t0)}, {vr(t1)}, 3, {vr(t0)}")
    A(f"v_bfe_u32 {vr(t1)}, {vr(lane)}, 4, 1"); A(f"v_lshl_add_u32 {vr(vWR+12)}, {vr(t1)}, 5, {vr(t0)}"); A(f"v_xor_b32 {vr(vWR+15)}, 32, {vr(vWR+12)}")
    for q in range(6):
        for w in (2, 1): A(f"v_add_u32 {vr(vWR+3*q+w)}, {51200*w}, {vr(vWR+3*q)}")
    nd_ = O.ndef; nf = 16 - nd_
    steps = [(j, kk, (0, 1)) for j in range(nf) for kk in range(4)] + [(j, kk, (h,)) for h in range(2) for j in range(nf, 16) for kk in range(4)]
    def w_rd(i):
        j, kk, hs = steps[i]
        pc = PIECE[j & 3][kk]; w = min(pc // 5, 2)
        return [(f"ds_read_b64_tr_b16 {vr(WF(i&1,f*5+nb)+2*jh,2)}, {vr(vWR+3*(nb if nb < 4 else 4+h)+w)} offset:{pc*10240-w*51200+(h*4096+jh*2048 if nb < 4 else 8192+jh*1024)}", "ds", ("WF", i & 1, f * 5 + nb))
                for f, h in enumerate(hs) for nb in range(5) for jh in range(2) if not (O.lfake and f == 1)]
    for ops in o_ld(3):
        for o in ops: A.op(o)
    A.wait(vm=[("W", 0), ("O", 0)]); A("s_barrier")
    for o in w_rd(0): A.op(o)
    mf = []; need = {}; gaps = {}; pre = {}; start = []; bars = {}
    for i, (j, kk, hs) in enumerate(steps):
        start.append(len(mf))
        for f, h in enumerate(hs):
            for nb in range(5):
                if nb in (0, 2): need[len(mf)] = [("WF", i & 1, f * 5 + q) for q in ((0, 1) if nb == 0 else (2, 3, 4))]
                for qq in ((1, 0) if (f + nb) & 1 and O.snake & 8 else (0, 1)):
                    c = "0" if (j == 0 and kk == 0) else vr(ACC(h, qq, nb), 4)
                    mf.append(f"{MF} {vr(ACC(h,qq,nb),4)}, {vr(WF(i&1,f*5+nb),4)}, {ar(OF(j,kk,qq),4)}, {c}")
    n = len(mf); start.append(n)
    gaps = {g: [] for g in range(n)}
    iB = len(steps) - 4 * nd_; gB = start[iB]
    for i, (j, kk, hs) in enumerate(steps):
        g0 = start[i]; ln = start[i + 1] - g0; lo = 0
        if kk == 3 and i < iB and j + 1 < 16:
            lo = O.obar if ln == 20 else 2
            bars[j] = g0 + lo
            p = [("", "wait", dict(vm=[("W", j + 1), ("O", j + 1)] + (["ST"] if j == O.pub2 else []), dsn=0 if j + 4 < 16 else None))]
            if j == 4: p.append(("", "call", lambda A_: poll_check(A_, 0x03030303, "u2", vOWN, "p2")))
            p.append("s_barrier")
            if j == O.pub2: p += flag_ops(3, "f2")
            if j == 3: p += poll_ops("p2")
            pre[g0 + lo] = p
        if i + 1 < len(steps):
            rd = w_rd(i + 1); np_ = len(rd) // 2
            stp = 2 if lo + 2 * np_ <= ln + 1 else 1.5
            if O.lfake and ln == 20:
                for q in range(len(rd)): gaps[g0 + lo + int(q * (2 if lo == 0 else 1.5))] += rd[q:q + 1]
            else:
                for q in range(np_): gaps[g0 + lo + int(q * stp)] += rd[2 * q:2 * q + 2]
    def spread(mem, g, sp, dense=False, dry=False):
        for ops in mem:
            while gaps[g] or g + 1 in pre or (g + 1 in need and not dense): g += 1
            if not dry: gaps[g] += ops
            g += sp if any(is_vm(o) for o in ops) else 1
        return g
    spread(w_dma(3, 0) + w_dma(3, 1), 1, 2)
    for j in range(12):
        mem = w_dma(j + 4, 0) + ([] if O.whalf else w_dma(j + 4, 1)) + o_ld(j + 4) + (wo_t(1, 31, vr(31)) if j == O.wo1 else [])
        dn = spread(mem, bars[j], O.osp, dry=True) > bars[j + 1]
        assert spread(mem, bars[j], O.osp, dn) <= bars[j + 1], j
    vXS, vXR = 220, vACC
    xs = []
    st = mbox("store", lambda t: vr(vXS + 4 * t, 4), sXO, "XS")
    for t in (0, 2, 3, 1, 4):
        xs += [[f"v_cvt_pk_bf16_f32 {vr(vXS+4*t+q)}, {vr(vACC+8*t+2*q)}, {vr(vACC+8*t+2*q+1)}" for q in range(2 * u, 2 * u + 2)] for u in range(2)]
        if t == 4: xs.append([st[3][1]])
        xs.append(st[t][:1])
    e = spread(xs, gB + 1, 1, True)
    xl = mbox("load", lambda t: vr(vXR + 4 * t, 4), sXI, "XL")
    assert e < n - O.xld
    spread(xl, n - O.xld, 1, True)
    for j in (4, 9): pre[start[4 * j]] = pre.get(start[4 * j], []) + [("", "call", lambda A_, j=j: stamp(A_, f"slab{j}", 2))]
    for j in (1, 4, 6, 12): pre[start[4 * j]] = pre.get(start[4 * j], []) + [("", "call", lambda A_, j=j: stamp(A_, f"slab{j}", 6))]
    pre[gB] = pre.get(gB, []) + [("", "call", lambda A_: stamp(A_, "phaseB", 5))]
    interleave(A, mf, gaps, pre=pre, need=need)
    stamp(A, "oproj loop done"); stamp(A, "oloop", 5); stamp(A, "oloop", 6)
    A(f"v_and_b32 {vr(t0)}, 15, {vr(lane)}"); A(f"v_mul_u32_u24 {vr(t0)}, 2560, {vr(t0)}"); A(f"v_lshrrev_b32 {vr(t1)}, 4, {vr(lane)}")
    A(f"s_mul_i32 s{sT}, s{sWAVE}, {32*2560}"); A(f"s_and_b32 s3, s7, 1"); A(f"s_lshr_b32 s4, s7, 3")
    A(f"s_lshl_b32 s{sT2}, s4, 1"); A(f"s_add_u32 s{sT2}, s{sT2}, s3"); A(f"s_lshl_b32 s{sT2}, s{sT2}, 6"); A(f"s_add_u32 s{sT2}, s{sT2}, s{sT}")
    A(f"s_xor_b32 s3, s3, 1"); A(f"s_lshl_b32 s3, s3, 3"); A(f"s_add_u32 s3, s3, s4"); A(f"s_lshl_b32 s3, s3, 5"); A(f"s_add_u32 s3, s3, s{sT}")
    A(f"v_lshl_add_u32 {vr(vOQ+1)}, {vr(t1)}, 3, {vr(t0)}"); A(f"v_add_u32 {vr(vOQ+1)}, s3, {vr(vOQ+1)}")
    A(f"v_bfe_u32 {vr(t1)}, {vr(lane)}, 4, 1"); A(f"v_lshl_add_u32 {vr(t0)}, {vr(t1)}, 5, {vr(t0)}")
    A(f"v_lshrrev_b32 {vr(t1)}, 5, {vr(lane)}"); A(f"v_lshl_add_u32 {vr(vOQ)}, {vr(t1)}, 4, {vr(t0)}"); A(f"v_add_u32 {vr(vOQ)}, s{sT2}, {vr(vOQ)}")
    def xtest():
        A(f"v_max3_u32 {vr(t0)}, {vr(vXR)}, {vr(vXR+1)}, {vr(vXR+2)}"); A(f"v_max3_u32 {vr(t1)}, {vr(vXR+3)}, {vr(vXR+4)}, {vr(vXR+5)}")
        for q in range(6, 20, 2): A(f"v_max3_u32 {vr(t0 if q & 2 else t1)}, {vr(t0 if q & 2 else t1)}, {vr(vXR+q)}, {vr(vXR+q+1)}")
        A(f"v_max_u32 {vr(t0)}, {vr(t0)}, {vr(t1)}"); A(f"v_cmp_eq_u32 vcc, -1, {vr(t0)}")
    A("s_mov_b32 s4, 0x40000")
    A.label("L_xpoll")
    A("s_waitcnt vmcnt(0)"); A.vm = []
    xtest(); A("s_cbranch_vccz L_xdone")
    for ops in xl:
        for o in ops: A(o if isinstance(o, str) else o[0])
    A("s_sub_u32 s4, s4, 1"); A("s_cmp_lg_u32 s4, 0"); A("s_cbranch_scc1 L_xpoll")
    A("s_waitcnt vmcnt(0)")
    A.label("L_xdone")
    stamp(A, "xflag", 5)
    A(f"s_mov_b32 s{sT}, {16*2560}"); A("s_movk_i32 s3, 0x3f80"); A("s_mov_b32 s4, 0x3f800000")
    for qq in range(2):
        d = vWF + qq * 10; ac = ACC(1, qq, 0)
        for i in range(20): A(f"v_dot2_f32_bf16 {vr(ac+i)}, {vr(vXR+qq*10+i//2)}, s{3+(i&1)}, {vr(ac+i)}")
        for i in range(10): A(f"v_cvt_pk_bf16_f32 {vr(d+i)}, {vr(ac+2*i)}, {vr(ac+2*i+1)}")
        so = f"s{sT}" if qq else "0"
        A("s_nop 0")
        for P_ in range(2):
            for q in range(2): A(f"v_permlane16_swap_b32 {vr(d+4*P_+q)}, {vr(d+4*P_+2+q)}")
        A.op((f"buffer_store_dwordx2 {vr(d+8,2)}, {vr(vOQ+1)}, {sr(sOUT)}, {so} offen{OFL()}", "vm", "OUT"))
        A.op((f"buffer_store_dwordx4 {vr(d,4)}, {vr(vOQ)}, {sr(sOUT)}, {so} offen{OFL()}", "vm", "OUT"))
        A.op((f"buffer_store_dwordx4 {vr(d+4,4)}, {vr(vOQ)}, {sr(sOUT)}, {so} offen offset:64{OFL()}", "vm", "OUT"))

def gen_kernel(k):
    A = Asm()
    A("s_cmp_ge_u32 s2, 256"); A("s_cbranch_scc1 L_end")
    stamp(A, "t0")
    if O.cpre:
        A("s_getpc_b64 s[84:85]"); A("s_and_b32 s84, s84, 0xffffff00"); A("s_and_b32 s85, s85, 0xffff")
        A("s_mov_b32 s86, L_codeend-attn_kernel"); A("s_mov_b32 s87, 0x20000")
        A("s_lshr_b32 s3, s2, 3"); A(f"s_lshl_b32 s3, s3, {13 if O.u0 else 12}"); A(f"v_lshlrev_b32 v4, {5 if O.u0 else 4}, v0")
        A.op(("buffer_load_dwordx4 v[252:255], v4, s[84:87], s3 offen", "vm", "CODE"))
        A("s_nop 4")
    A("s_load_dwordx16 s[64:79], s[0:1], 0")
    A("s_load_dwordx8 s[80:87], s[0:1], 64")
    A(f"s_load_dwordx2 s[{sWS}:{sWS+1}], s[0:1], 96")
    A("s_and_b32 s3, s2, 7"); A("s_lshr_b32 s4, s2, 3"); A("s_lshr_b32 s5, s3, 2")
    if O.map2:
        A("s_bfe_u32 s6, s3, 0x10001"); A("s_lshl_b32 s6, s6, 2"); A("s_lshr_b32 s7, s4, 3"); A("s_add_u32 s6, s6, s7")
        A("s_and_b32 s7, s3, 1"); A("s_lshl_b32 s7, s7, 3"); A("s_and_b32 s4, s4, 7"); A("s_add_u32 s7, s7, s4")
    else:
        A("s_and_b32 s6, s3, 3"); A("s_lshl_b32 s6, s6, 1"); A("s_lshr_b32 s7, s4, 4"); A("s_add_u32 s6, s6, s7")
        A("s_and_b32 s7, s4, 15")
    vAW, vOW, vOX, vAX = 16, 24, 28, 36
    lane, g, i, r, t0, t1, t2, t3, h = range(48, 57)
    A(f"v_lshrrev_b32 {vr(t0)}, 6, v0"); A(f"v_and_b32 {vr(lane)}, 63, v0"); A(f"v_readfirstlane_b32 s{sWAVE}, {vr(t0)}")
    A(f"v_lshrrev_b32 {vr(g)}, 4, {vr(lane)}"); A(f"v_and_b32 {vr(i)}, 15, {vr(lane)}"); A(f"v_lshrrev_b32 {vr(h)}, 5, {vr(lane)}")
    A(f"s_and_b32 s{sT2}, s{sWAVE}, 1"); A(f"s_lshl_b32 s{sT2}, s{sT2}, 3")
    A(f"s_lshl_b32 s{sT}, s{sWAVE}, 16")
    A(f"v_and_b32 {vr(t2)}, 31, {vr(lane)}"); A(f"v_xor_b32 {vr(t2)}, s{sT2}, {vr(t2)}")
    for p in range(2):
        A(f"v_add_u32 {vr(t0)}, {2*p}, {vr(h)}"); A(f"v_lshlrev_b32 {vr(t1)}, 1, {vr(t0)}"); A(f"v_xor_b32 {vr(t1)}, {vr(t1)}, {vr(t2)}")
        A(f"v_lshlrev_b32 {vr(t1)}, 4, {vr(t1)}"); A(f"v_lshl_add_u32 {vr(t1)}, {vr(t0)}, 13, {vr(t1)}")
        A(f"v_add_u32 {vr(vOW+p)}, s{sT}, {vr(t1)}")
        if p: A(f"v_subrev_u32 {vr(vOW+p)}, 1024, {vr(vOW+p)}")
        A(f"v_add_u32 {vr(vOW+p+2)}, {4*8192-2048}, {vr(vOW+p)}")
    A(f"s_mul_i32 s{sT}, s{sWAVE}, {64*1280}")
    A(f"v_lshrrev_b32 {vr(t0)}, 3, {vr(lane)}"); A(f"v_mul_u32_u24 {vr(t0)}, 1280, {vr(t0)}"); A(f"v_add_u32 {vr(t0)}, s{sT}, {vr(t0)}")
    A(f"v_and_b32 {vr(t1)}, 7, {vr(lane)}"); A(f"v_xor_b32 {vr(t1)}, {vr(t1)}, {vr(g)}")
    A(f"v_lshl_add_u32 {vr(vOX)}, {vr(t1)}, 4, {vr(t0)}"); A(f"v_xor_b32 {vr(t1)}, 4, {vr(t1)}"); A(f"v_lshl_add_u32 {vr(t0)}, {vr(t1)}, 4, {vr(t0)}")
    A(f"v_add_u32 {vr(vOX+1)}, {10240-1024}, {vr(t0)}")
    for p in range(2, 8): A(f"v_add_u32 {vr(vOX+p)}, {(p&~1)*10240 - ((p&3)&~1)*1024}, {vr(vOX+(p&1))}")
    A(f"s_lshl_b32 s{sKVW}, s{sWAVE}, 12"); A(f"s_add_u32 s{sVVW}, s{sKVW}, {VBASE}"); A(f"s_add_u32 s{sWQW}, s{sKVW}, {WQBASE}")
    A(f"s_lshl_b32 s{sXW}, s{sWAVE}, 13")
    A(f"s_lshl_b32 s4, s6, 4"); A(f"s_add_u32 s4, s4, s7")
    A(f"s_lshl_b32 s{sT}, s7, 9"); A(f"s_sub_u32 s{sW+2}, {640*8192}, s{sT}"); A(f"s_mov_b32 s{sW+3}, 0x20000")
    A(f"s_mul_i32 s{sT3}, s6, 327680"); A(f"s_mov_b32 s{sX+2}, 327680"); A(f"s_mov_b32 s{sX+3}, 0x20000")
    A("s_cmp_eq_u32 s5, 1")
    A("s_waitcnt lgkmcnt(0)")
    if O.stamps and O.stm == 1: A("s_memtime s[50:51]"); A("s_memrealtime s[98:99]"); nstamp[0] += 1; stamp_names.append("karg")
    for q in (3, 0, 1, 2, 4): A(f"s_cselect_b64 s[{64+2*q}:{65+2*q}], s[{74+2*q}:{75+2*q}], s[{64+2*q}:{65+2*q}]")
    A(f"s_add_u32 s{sW}, s70, s{sT}"); A(f"s_addc_u32 s{sW+1}, s71, 0"); A(f"s_and_b32 s{sW+1}, s{sW+1}, 0xffff")
    A(f"s_add_u32 s{sX}, s64, s{sT3}"); A(f"s_addc_u32 s{sX+1}, s65, 0"); A(f"s_and_b32 s{sX+1}, s{sX+1}, 0xffff")
    def AF(buf, nb): return buf * 64 + nb * 4
    def XR(G, ks, qb): return 128 + (G & 1) * 32 + (ks * 4 + qb) * 4
    def ACC(nb, qb): return vr(48 + (nb * 4 + qb) * 4, 4) if nb < 13 else ar(208 + ((nb - 13) * 4 + qb) * 4, 4)
    def wq_dma(kk):
        return [[f"s_add_u32 m0, s{sWQW}, {(kk&3)*16384}", f"s_mov_b32 s{sT2}, {kk*262144}"]] + \
               [[(f"buffer_load_dwordx4 {vr(vOW+p)}, {sr(sW)}, s{sT2} offen offset:{p*1024}{' nt' if O.w_nt else ''} lds", "vm", ("W", kk))] for p in range(4)]
    def x_dma(G):
        r = [[f"s_add_u32 m0, s{sXW}, {XB[G&1]}", f"s_movk_i32 s{sT2}, {G*128}"]]
        r += [[(f"buffer_load_dwordx4 {vr(vOX+p)}, {sr(sX)}, s{sT2} offen offset:{(p&3)*1024}{' nt' if O.x_nt else ''} lds", "vm", ("X", G))] for p in range(8)]
        r[4].append(f"s_add_u32 m0, s{sXW}, {XB[G&1]+4096}")
        return r
    def flat(groups):
        for grp in groups:
            for ops in grp:
                for o in ops: A.op(o)
    flat([wq_dma(0), x_dma(0), wq_dma(1), x_dma(1)])
    def kv_groups(kind, tile):
        su, pcs, po = dma_k(tile, (kind, tile)) if kind == "K" else dma_v(tile, (kind, tile))
        return [[su]] + [[p] for p in pcs[:3]] + [[pcs[3], po]]
    A(f"s_mov_b32 s{sWOI}, s72"); A(f"s_and_b32 s{sWOI+1}, s73, 0xffff")
    A(f"s_lshl_b32 s{sT}, s4, 19")
    srd(A, sK, 66, 67, f"s{sT}", "0x80000")
    srd(A, sV, 68, 69, f"s{sT}", "0x80000")
    A(f"s_lshl_b32 s{sGI}, s5, 3"); A(f"s_add_u32 s{sGI}, s{sGI}, s6"); A(f"s_lshl_b32 s{sT2}, s{sGI}, 22")
    srd(A, sO, sWS, sWS + 1, f"s{sT2}", 0x200000 + 16 * 20480)
    A(f"s_lshl_b32 s{sT}, s6, 1"); A(f"s_bfe_u32 s{sT2}, s7, 0x10002"); A(f"s_add_u32 s{sT}, s{sT}, s{sT2}"); A(f"s_mul_i32 s{sT}, s{sT}, {128*2560}")
    A(f"s_mul_i32 s{sT2}, s5, 1280"); A(f"s_add_u32 s{sT}, s{sT}, s{sT2}"); A(f"s_and_b32 s{sT2}, s7, 3"); A(f"s_mul_i32 s{sT2}, s{sT2}, 320")
    A(f"s_add_u32 s{sT}, s{sT}, s{sT2}")
    if O.stamps and O.stm == 1: A("s_waitcnt lgkmcnt(0)"); A("s_mov_b32 s66, s98"); A("s_mov_b32 s67, s99")
    srd(A, sOUT, 84, 85, f"s{sT}", 127 * 2560 + 320)
    srd(A, sCNT, 86, 87, 0, 256)
    A(f"s_lshl_b32 s{sGI}, s{sGI}, 4"); A(f"s_add_u32 s{sGI}, s{sGI}, s7")
    A(f"s_lshl_b32 s{sOOF}, s7, 13")
    A(f"s_mov_b32 s{sKOFF}, 0"); A(f"s_mov_b32 s{sVOFF}, 0"); A(f"s_mov_b32 s{sSTUB}, 99")
    A(f"s_mov_b32 s{sTHR}, {hex(f32bits(2.0**O.thr_log2 if not O.forcefb else -1.0))}")
    A(f"s_mov_b32 s{sSC}, {hex(f32bits(128**-0.5*math.log2(math.e)))}"); A(f"s_mov_b32 s{sSC+1}, s{sSC}")
    A(f"v_lshrrev_b32 {vr(r)}, 2, {vr(i)}")
    A(f"v_and_b32 {vr(t0)}, 1, {vr(g)}"); A(f"v_lshl_add_u32 {vr(t0)}, {vr(t0)}, 2, {vr(r)}")
    A(f"v_lshl_add_u32 {vr(t1)}, {vr(g)}, 3, {vr(r)}"); A(f"v_lshlrev_b32 {vr(t1)}, 9, {vr(t1)}")
    A(f"v_and_b32 {vr(t2)}, 3, {vr(i)}"); A(f"v_lshl_add_u32 {vr(t1)}, {vr(t2)}, 3, {vr(t1)}"); A(f"v_add_u32 {vr(t1)}, {WQBASE}, {vr(t1)}")
    for n3 in range(8):
        A(f"v_xor_b32 {vr(t3)}, {n3}, {vr(t0)}"); A(f"v_lshl_add_u32 {vr(vAW+n3)}, {vr(t3)}, 5, {vr(t1)}")
    A(f"v_lshrrev_b32 {vr(t0)}, 1, {vr(i)}"); A(f"v_xor_b32 {vr(t0)}, {vr(t0)}, {vr(g)}")
    A(f"v_lshlrev_b32 {vr(t1)}, 7, {vr(i)}"); A(f"v_add_u32 {vr(t1)}, s{sXW}, {vr(t1)}")
    A(f"v_lshl_add_u32 {vr(vAX)}, {vr(t0)}, 4, {vr(t1)}"); A(f"v_xor_b32 {vr(vAX+1)}, 64, {vr(vAX)}")
    A(f"v_lshl_add_u32 {vr(t1)}, {vr(r)}, 4, {vr(t2)}"); A(f"v_lshlrev_b32 {vr(t1)}, 8, {vr(t1)}")
    A(f"v_and_b32 {vr(t0)}, 1, {vr(r)}"); A(f"v_lshlrev_b32 {vr(t0)}, 3, {vr(t0)}"); A(f"v_lshl_add_u32 {vr(t0)}, {vr(t2)}, 1, {vr(t0)}")
    A(f"v_lshrrev_b32 {vr(t3)}, 3, {vr(i)}"); A(f"v_add_u32 {vr(t0)}, {vr(t0)}, {vr(t3)}")
    A(f"v_and_b32 {vr(t3)}, 1, {vr(g)}"); A(f"v_lshl_add_u32 {vr(t3)}, {vr(t3)}, 1, {vr(h)}"); A(f"v_xor_b32 {vr(t0)}, {vr(t0)}, {vr(t3)}")
    A(f"v_lshl_add_u32 {vr(vAK)}, {vr(t0)}, 4, {vr(t1)}")
    for s in range(1, 4): A(f"v_xor_b32 {vr(vAK+s)}, {s*64}, {vr(vAK)}")
    A(f"v_lshl_add_u32 {vr(t1)}, {vr(g)}, 4, {vr(r)}"); A(f"v_lshlrev_b32 {vr(t1)}, 8, {vr(t1)}")
    A(f"v_and_b32 {vr(t0)}, 1, {vr(i)}"); A(f"v_lshl_add_u32 {vr(t1)}, {vr(t0)}, 3, {vr(t1)}"); A(f"v_add_u32 {vr(t1)}, {VBASE}, {vr(t1)}")
    A(f"v_and_b32 {vr(t0)}, 1, {vr(g)}"); A(f"v_lshlrev_b32 {vr(t0)}, 3, {vr(t0)}"); A(f"v_lshl_add_u32 {vr(t0)}, {vr(r)}, 1, {vr(t0)}")
    A(f"v_add_u32 {vr(t0)}, {vr(t0)}, {vr(h)}"); A(f"v_bfe_u32 {vr(t3)}, {vr(i)}, 1, 1"); A(f"v_xor_b32 {vr(t0)}, {vr(t0)}, {vr(t3)}")
    A(f"v_lshl_add_u32 {vr(vAV)}, {vr(t0)}, 4, {vr(t1)}")
    for db in range(1, 8): A(f"v_xor_b32 {vr(vAV+db)}, {db*32}, {vr(vAV)}")
    A(f"s_and_b32 s{sT}, s{sWAVE}, 1"); A(f"s_lshl_b32 s{sT}, s{sT}, 3"); A(f"s_lshr_b32 s{sT2}, s{sWAVE}, 1"); A(f"s_add_u32 s{sT}, s{sT}, s{sT2}")
    A(f"v_lshlrev_b32 {vr(t0)}, 1, {vr(g)}"); A(f"v_add_u32 {vr(t0)}, s{sT}, {vr(t0)}"); A(f"v_xor_b32 {vr(t0)}, {vr(t0)}, {vr(i)}")
    A(f"v_lshlrev_b32 {vr(t0)}, 4, {vr(t0)}"); A(f"v_lshl_add_u32 {vr(t0)}, {vr(g)}, 8, {vr(t0)}"); A(f"v_add_u32 {vr(vOKV)}, s{sKVW}, {vr(t0)}")
    A(f"s_lshl_b32 s{sT}, s{sWAVE}, 19"); A(f"v_lshlrev_b32 {vr(t0)}, 4, {vr(lane)}"); A(f"v_add_u32 {vr(vOO)}, s{sT}, {vr(t0)}")
    if O.fuse:
        A(f"s_mul_i32 s{sT}, s{sWAVE}, {5120 - (1 << 19)}"); A(f"s_add_u32 s{sT}, s{sT}, 0x200000")
        A(f"s_mul_i32 s{sXI}, s7, 20480"); A(f"s_add_u32 s{sXI}, s{sXI}, s{sT}")
        A(f"s_xor_b32 s{sXO}, s7, 8"); A(f"s_mul_i32 s{sXO}, s{sXO}, 20480"); A(f"s_add_u32 s{sXO}, s{sXO}, s{sT}")
        for q in range(4): A(f"v_mov_b32 {vr(40+q)}, -1")
    def wo_touch(kk):
        if O.wopre != 100 + kk: return []
        return [[f"s_mov_b32 s{sWOI+2}, 5242880", f"s_mov_b32 s{sWOI+3}, 0x20000", f"s_and_b32 s3, s{sGI}, 127", "s_lshl_b32 s3, s3, 2", f"s_add_u32 s3, s3, s{sWAVE}", "s_mul_i32 s3, s3, 10240",
                 (f"buffer_load_dword {ar(192)}, {vr(45)}, {sr(sWOI)}, s3 offen", "vm", "WOP")], ["s_add_u32 s3, s3, 5120", (f"buffer_load_dword {ar(193)}, {vr(45)}, {sr(sWOI)}, s3 offen", "vm", "WOP")]]
    if 100 <= O.wopre <= 120: A(f"v_mul_u32_u24 {vr(45)}, 80, {vr(lane)}")
    if 0 <= O.wopre < 100:
        A(f"s_mov_b32 s{sWOI+2}, 5242880"); A(f"s_mov_b32 s{sWOI+3}, 0x20000")
        A(f"s_lshl_b32 s{sT}, s4, 2"); A(f"s_add_u32 s{sT}, s{sT}, s{sWAVE}"); A(f"s_mul_i32 s{sT}, s{sT}, 10240")
        A(f"v_lshlrev_b32 {vr(t0)}, 4, {vr(lane)}"); A(f"v_add_u32 {vr(vTMP)}, s{sT}, {vr(t0)}")
    L2S = [int(x) for x in O.l2s.split(',')] if O.l2s else []
    def l2t(kk): return [[f"s_mov_b32 s3, {(4 - (q & 1)) * 16384 + (q >> 1) * (256 << O.l2sh)}", (f"buffer_load_dword {ar(192)}, {vr(44)}, {sr(sV if q & 1 else sK)}, s3 offen{['', ' nt', ' sc1', ' sc0 sc1'][O.l2nt]}", "vm", "L2")] for q, at in enumerate(L2S) if at == kk]
    if L2S: A(f"v_lshlrev_b32 {vr(44)}, {O.l2sh}, {vr(lane)}"); A(f"s_lshl_b32 s{sT}, s{sWAVE}, {O.l2sh+6}"); A(f"v_add_u32 {vr(44)}, s{sT}, {vr(44)}")
    if O.kv0 < 0: flat([kv_groups("K", 0), kv_groups("V", 0)])
    stamp(A, "setup done", 1)
    def wo_pre(i, kk):
        n = 10 // O.wopn; r = []
        for q in range(i * n, (i + 1) * n):
            if q == i * n or q % 4 == 0:
                r.append([f"s_add_u32 m0, s{sKVW}, {0 if kk < 15 else 131072}", f"s_movk_i32 s{sT2}, {(q & ~3)*1024}"])
            r.append([(f"buffer_load_dwordx4 {vr(vTMP)}, {sr(sWOI)}, s{sT2} offen offset:{(q&3)*1024}{' nt' if O.wopre_nt else ''} lds", "vm", "WOP")])
        return r
    if O.wopre == 99: flat([wo_pre(0, 0)])
    def a_reads(kk):
        return [(f"ds_read_b64_tr_b16 {ar(AF(kk&1,nb)+2*jh,2)}, {vr(vAW+(nb&7))} offset:{(kk&3)*16384+jh*2048+(nb>>3)*256}", "ds", "A")
                for nb in range(16) for jh in range(2)]
    def x_reads(G):
        return [(f"ds_read_b128 {ar(XR(G,ks,qb),4)}, {vr(vAX+ks)} offset:{XB[G&1]+qb*2048}", "ds", "XR") for ks in range(2) for qb in range(4)]
    A.wait(vm=[("W", 0), ("X", 0)]); A("s_barrier")
    stamp(A, "wq0 landed"); stamp(A, "wq0 landed", 1); stamp(A, "wq0 landed", 3)
    for o in x_reads(0) + a_reads(0): A.op(o)
    flat([wq_dma(2), wq_dma(3)])
    cvl = []; C = cvl.append; cvdone = [0]
    def conv_front(hd, s, qb, T0, T1, tb):
        for T in (T0, T1):
            if O.cv19 and hd * 16 + s * 4 + qb < O.cvn:
                for q in range(4): C(f"v_mul_f32 {vr(T+q)}, s{sSC}, {vr(T+q)}")
                continue
            for q in range(2): C(f"v_pk_mul_f32 {vr(T+2*q,2)}, {vr(T+2*q,2)}, s[{sSC}:{sSC+1}]")
        for q in range(2): C(f"v_cvt_pk_bf16_f32 {vr(tb+q)}, {vr(T0+2*q)}, {vr(T0+2*q+1)}")
        for q in range(2): C(f"v_cvt_pk_bf16_f32 {vr(tb+2+q)}, {vr(T1+2*q)}, {vr(T1+2*q+1)}")
    def conv_back(hd, s, qb, tb):
        for q in range(2): C(f"v_permlane16_swap_b32 {vr(tb+q)}, {vr(tb+2+q)}")
    def conv_wr(hd, s, qb, tb):
        for q in range(4): C(f"v_accvgpr_write_b32 {ar(hd*64+(qb*4+s)*4+q)}, {vr(tb+q)}")
    jobs = []
    for pr in range(8):
        for qb in range(4):
            jobs.append((pr, qb))
    pend = []
    for n_, (pr, qb) in enumerate(jobs):
        if pr == 6 and qb == 0:
            for q in range(48): C(f"v_accvgpr_read_b32 {vr(48+q)}, {ar(208+q)}")
        def loc(nb): return 48 + (nb * 4 + qb) * 4 if nb < 13 else 48 + ((nb - 13) * 4 + qb) * 4
        tb = 16 + (n_ % 4) * 4
        mark = len(cvl)
        conv_front(pr >> 2, pr & 3, qb, loc(2 * pr), loc(2 * pr + 1), tb)
        cvl[mark] = [cvl[mark], 8 * pr + 7 + 8 if pr < 4 else 99]
        pend.append((pr >> 2, pr & 3, qb, tb))
        if len(pend) >= 2: conv_back(*pend[-2])
        if len(pend) >= 3: conv_wr(*pend[-3])
    C("s_nop 1"); conv_back(*pend[-1]); conv_wr(*pend[-2]); C("s_nop 0"); conv_wr(*pend[-1])
    KVS = [int(x) for x in O.kvs.split(",")]
    assert KVS[2] >= 15 and KVS[3] >= 15 and KVS[4] >= 16 and KVS[5] >= 17 and KVS[6] >= 17 and KVS[0] <= KVS[2] <= KVS[3] <= KVS[5] and KVS[1] <= KVS[4] <= KVS[6]
    for kk in range(20):
        A.c(f"---- qproj step {kk}")
        G, ks = kk >> 1, kk & 1
        if kk in (1, 4): stamp(A, f"step{kk}", 1)
        if kk in (4, 8, 12, 15): stamp(A, f"step{kk}", 3)
        nd = ([("W", kk + 1)] if kk + 1 < 20 else []) + ([("X", G + 1)] if ks == 0 and G + 1 < 10 else [])
        A.wait(vm=nd, dsn=0); A("s_barrier")
        mf = [f"{MF} {ACC(nb,qb)}, {ar(AF(kk&1,nb),4)}, {ar(XR(G,ks,qb),4)}, {ACC(nb,qb) if kk else '0'}" for nb in range(16) for qb in (range(3, -1, -1) if nb & 1 and O.snake & 4 else range(4))]
        gaps = {q: [] for q in range(64)}
        mem = []
        if kk + 4 < 20: mem += wq_dma(kk + 4)
        if kk == 0: mem += x_dma(2)
        if ks == 1 and G + 3 < 10: mem += x_dma(G + 3)
        if 0 <= O.wopre < 100 and O.wopre <= kk < O.wopre + O.wopn: mem += wo_pre(kk - O.wopre, kk)
        if O.fuse and kk == O.xfill: mem += mbox("store", lambda t: vr(40, 4), sXI, "XF")
        mem += l2t(kk) + wo_touch(kk)
        for (kind, tile), at in zip((("K", 0), ("V", 0), ("K", 1), ("K", 2), ("V", 1), ("K", 3), ("V", 2)), KVS):
            if kk == at: mem += kv_groups(kind, tile)
        rd = (x_reads(G + 1) if ks == 0 and G + 1 < 10 else []) + (a_reads(kk + 1) if kk + 1 < 20 else [])
        sp = max(2, min(O.qsp, 56 // max(1, len(mem))))
        for q, ops in enumerate(mem): gaps[1 + sp * q] += ops
        fr = [q for q in range(60) if not gaps[q]]
        two = max(0, len(rd) - len(fr))
        fr = sorted(fr + fr[:two])
        for q, o in enumerate(rd): gaps[fr[(q * len(fr)) // len(rd)]].append(o)
        gaps[63] += ["s_nop 7"] * O.qpad
        if kk == 19 and O.cv19: cvdone[0] = interleave(A, mf, gaps, stream=cvl, partial=True, budget=O.cvb)
        else: interleave(A, mf, gaps)
    stamp(A, "qproj done"); stamp(A, "qproj done", 3)
    if O.fuse and O.xfill == 20: flat([mbox("store", lambda t: vr(40, 4), sXI, "XF")])
    for (kind, tile), at in zip((("K", 0), ("V", 0), ("K", 1), ("K", 2), ("V", 1), ("K", 3), ("V", 2)), KVS):
        if at == 20: flat([kv_groups(kind, tile)])
    flat([l2t(20), wo_touch(20)])
    A("s_nop 7")
    for o in cvl[cvdone[0]:]: A(o[0] if isinstance(o, list) else o)
    A(f"s_mov_b32 s{sT3}, 0x3f803f80")
    if not O.vsum and not O.smf:
        for q in range(4): A(f"v_accvgpr_write_b32 {ar(aONE+q)}, s{sT3}")
    if O.dumpq:
        A(f"s_lshl_b32 s{sT}, s5, 7"); A(f"s_lshl_b32 s{sT2}, s6, 4"); A(f"s_add_u32 s{sT}, s{sT}, s{sT2}"); A(f"s_add_u32 s{sT}, s{sT}, s7")
        A(f"s_lshl_b32 s{sT}, s{sT}, 17"); A(f"s_add_u32 s{sT}, s{sT}, {QDUMP_WS_OFF}")
        srd(A, sDBG, sWS, sWS + 1, f"s{sT}", "0x20000")
        A(f"v_and_b32 {vr(16)}, 0x3ff, {vr(vOO)}"); A(f"s_lshl_b32 s{sT}, s{sWAVE}, 15"); A(f"v_add_u32 {vr(16)}, s{sT}, {vr(16)}")
        for q in range(32):
            A(f"s_mov_b32 s{sT}, {q*1024}")
            A(f"buffer_store_dwordx4 {ar(4*q,4)}, {vr(16)}, {sr(sDBG)}, s{sT} offen")
        A("s_waitcnt vmcnt(0)")
    if O.xfill == 30:
        for q in range(4): A(f"v_accvgpr_write_b32 {ar(224+q)}, -1")
    if O.fuse: oproj_early(A, 16)
    A.wait(vm=[("K", 0)]); A("s_barrier")
    if O.stag:
        A("s_lshr_b32 s3, s2, 3"); A(f"s_and_b32 s3, s3, {O.stagm}"); A(f"s_mul_i32 s3, s3, {O.stag}"); A("s_memrealtime s[50:51]"); A("s_waitcnt lgkmcnt(0)"); A("s_add_u32 s3, s3, s50")
        A.label("L_stag"); A("s_memrealtime s[50:51]"); A("s_waitcnt lgkmcnt(0)"); A("s_sub_u32 s4, s3, s50"); A("s_cmp_gt_i32 s4, 0"); A("s_cbranch_scc1 L_stag")
    stamp(A, "conv done")
    if O.exitat == 1: A("s_branch L_exit")
    A(f"s_mov_b32 s{sUNIT}, 0")
    if O.trace: A("s_mov_b64 s[52:53], 1"); A("s_memrealtime s[50:51]"); A("v_mov_b32 v0, 0")
    A.label("L_unit")
    A(f"s_mov_b32 s{sLOOP}, 3")
    ncls = 2 if O.twocls else 1
    if ncls == 2:
        A(f"s_bitcmp1_b32 s{sWAVE}, 0"); A("s_cbranch_scc1 L_first_1")
    ds6 = None
    for cls in range(ncls):
        A.label(f"L_first_{cls}")
        A.ds = []
        first_slot(A, cls)
        kn0 = tuple(int(x) for x in O.u0.split(",")) if O.u0 else None
        slot(A, 1, cls, f"second_{cls}", zero=True, tail=[f"s_cmp_lg_u32 s{sUNIT}, 0", "s_cbranch_scc1 L_loop_1"] if kn0 else [])
        for cp in range(2 if kn0 else 1):
            ds_in = list(A.ds)
            if cp == 0 and O.xfill == 30: flat([mbox("store", lambda t: ar(224, 4), sXI, "XF")])
            A.label(f"L_loop_{cp}")
            for p in (2, 3, 4, 5, 6, 7, 0, 1):
                tail = []
                if p == 6 and cp == 0: tail = [f"s_cmp_eq_u32 s{sLOOP}, 0", "s_cbranch_scc1 L_last"]
                if p == 7 and O.fuse and (cp or not kn0): tail = [f"s_cmp_eq_u32 s{sLOOP}, s{sSTUB}", "s_cbranch_scc1 L_tail"]
                if p == 1:
                    tail = [f"s_sub_u32 s{sLOOP}, s{sLOOP}, 1"]
                    tail += [f"s_branch L_loop_{cp}"]
                slot(A, p, cls, f"p{p}_{cp}", tail=tail, kn=kn0 if cp == 0 else None)
                if p == 6 and cp == 0: ds6 = list(A.ds)
                if p == 7: ds7 = list(A.ds)
    if O.stamps and O.stm == 4: nstamp[0] += 1; stamp_names.append("loopback")
    A.label("L_last")
    if not O.fuse: stamp(A, "last", 4)
    A.ds = list(ds6)
    last_slot(A, O.est if O.fuse else 4)
    if O.chk:
        A(f"s_cmp_lg_u64 s[{sM}:{sM+1}], 0"); A("s_cbranch_scc1 L_fb")
    if not O.fuse:
        A(f"s_cmp_lg_u32 s{sUNIT}, 0"); A("s_cbranch_scc1 L_fbret1")
    A.label("L_fbret0")
    stamp(A, "unit0 end"); stamp(A, "unit0 end", 2)
    if O.exitat == 2: A("s_branch L_exit")
    A(f"s_mov_b32 s{sUNIT}, 1"); A(f"s_add_u32 s{sOOF}, s{sOOF}, 4096"); A(f"s_mov_b32 s{sSTUB}, 1")
    if O.fuse and O.wopre >= 300:
        sh = O.wopre - 300
        A(f"v_bfe_u32 v0, {vr(vOO)}, 4, 6"); A("s_lshr_b32 s3, s2, 3"); A(f"s_lshl_b32 s3, s3, 2"); A(f"s_add_u32 s3, s3, s{sWAVE}"); A("s_lshl_b32 s3, s3, 6")
        A("v_add_u32 v0, s3, v0"); A(f"v_lshlrev_b32 v0, {12 - sh}, v0"); A("s_lshr_b32 s3, s7, 3"); A("s_mul_i32 s3, s3, 2621440")
        A(f"v_cmp_gt_u32 vcc, 2621440, v0"); A("s_and_saveexec_b64 s[100:101], vcc")
        A(f"buffer_load_dword {ar(224)}, v0, {sr(sW)}, s3 offen"); A("s_mov_b64 exec, -1")
    if not O.mvk: unit_moves(A)
    A("s_branch L_unit")
    if O.fuse:
        A.label("L_tail")
        stamp(A, "tail", 2); stamp(A, "tail", 4)
        if O.trace:
            srd(A, 56, sWS, sWS + 1, 132 << 20, 4 << 20); A("s_lshl_b32 s3, s2, 10")
            A(f"buffer_store_dword v0, {vr(vOO)}, s[56:59], s3 offen")
        A.ds = list(ds7)
        A.vm = [("G", 9)] * 8 + [("G", 10)] * 8 + (["WOP"] if O.wopre == 250 else []) + [("G", 11)] * 8
        def st0(qbs):
            r = []
            for qb in qbs:
                if qb < O.est: continue
                r.append([f"s_add_u32 s{sT}, s{sOOF}, {qb*131072 - 4096}"] if qb else [f"s_sub_u32 s{sT}, s{sOOF}, 4096"])
                r += [[o_store(ar(aQ2 + (qb * 4 + t) * 4, 4), qb, t, "ST0", sT)] for t in range(4)]
            return r
        v15 = dma_v(3, ("G", 12))
        sq = {0: ([0], [1, 2], [3]), 1: ([1], [2], [3]), 2: ([2], [3], []), 3: ([3], [], []), 4: ([], [], [])}[O.est]
        def wt(t): return (wo_t(0, 0, ar(224)) if t == O.wo0 else []) + (wo_t(1, 0, ar(225)) if t == O.wo1 else [])
        def f1(t): return flag_ops(1, "f1") if t == O.f1at else ()
        def vt(t, g): return [("G", g)] + (["ST0"] if t == O.f1at else [])
        slot(A, 0, 0, "t24", groups=[[v15[0]]] + [[o] for o in v15[1]] + wt(24) + st0(sq[0]), vmtags=vt(24, 9), after_bar=f1(24))
        slot(A, 1, 0, "t25", groups=wt(25) + st0(sq[1]))
        slot(A, 2, 0, "t26", groups=st0(sq[2]) + wt(26) + w_dma(0, 0, True), vmtags=vt(26, 10), after_bar=f1(26))
        def touch(lo, hi):
            if O.wopre != 200: return []
            r = []
            for q in range(lo, hi):
                if q == lo or q % 4 == 0: r.append([f"s_add_u32 s{sT}, s{sTW}, {(q & ~3)*1024}"])
                r.append([(f"buffer_load_dwordx4 {ar(224+(q&7)*4,4)}, {vr(vOO)}, {sr(sW)}, s{sT} offen offset:{(q&3)*1024}{' nt' if O.wopre_nt else ''}", "vm", "WOP")])
            return r
        slot(A, 3, 0, "t27", groups=w_dma(0, 1, True) + touch(0, 5) + wt(27))
        slot(A, 4, 0, "t28", groups=w_dma(1, 0, True), vmtags=vt(28, 11), after_bar=f1(28))
        slot(A, 5, 0, "t29", groups=touch(5, 10) + wt(29) + w_dma(1, 1, True))
        slot(A, 6, 0, "t30", groups=w_dma(2, 0, True), vmtags=vt(30, 12), after_bar=f1(30), tail=[f"v_accvgpr_read_b32 {vr(vPOLL)}, {ar(aPOLL)}"] + poll_ops("p1"))
        stamp(A, "last1", 2)
        oproj_setup(A)
        def mid():
            A.wait(dsn=0)
            poll_check(A, 0x01010101, "u1", vOWX, "p1")
            A("s_barrier")
        if O.own1: last_slot(A, 4, extra1=w_dma(2, 1) + o_ld(0), mid=mid, extra2=o_ld(1) + o_ld(2))
        else: last_slot(A, 4, extra1=w_dma(2, 1), mid=mid, extra2=o_ld(0) + o_ld(1) + o_ld(2))
        if O.chk:
            A(f"s_cmp_lg_u64 s[{sM}:{sM+1}], 0"); A("s_cbranch_scc1 L_fb")
        A.label("L_fbret1")
        stamp(A, "unit1 end"); stamp(A, "unit1 end", 2); stamp(A, "unit1 end", 5); stamp(A, "unit1 end", 6)
        if O.exitat == 3: A("s_branch L_exit")
        oproj(A)
    else:
        A.label("L_fbret1")
        stamp(A, "unit1 end")
    if O.exitat: A.label("L_exit")
    if O.stamps: emit_stamps(A)
    A.label("L_end")
    A("s_endpgm")
    if O.chk:
        fallback(A)
    emit_spins(A)
    A.label("L_codeend")
    return kstart(k) + A.text()

def emit_stamps(A):
    A("s_waitcnt vmcnt(0) lgkmcnt(0)")
    A(f"s_memtime s[8:9]"); A(f"s_memrealtime s[10:11]")
    A("s_waitcnt lgkmcnt(0)")
    srd(A, sDBG, sWS, sWS + 1, STAMP_WS_OFF, "0x100000")
    A(f"s_lshl_b32 s3, s2, 2"); A(f"s_add_u32 s3, s3, s{sWAVE}"); A("s_lshl_b32 s3, s3, 7")
    A("v_mov_b32 v0, s3")
    n = nstamp[0]
    regs = [(j, sSTAMP + 2 * j) for j in range(n)] + [(n, 8)] + [(8 + j, 62 if j == 0 else sRSTAMP + 2 * j) for j in range(n)] + [(8 + n, 10)]
    A("s_getreg_b32 s4, hwreg(HW_REG_XCC_ID)")
    regs.append((16, 4))
    for j, s_ in regs:
        A(f"v_mov_b32 v1, s{s_}")
        A(f"buffer_store_dword v1, v0, {sr(sDBG)}, 0 offen offset:{4*j}")
    A("s_waitcnt vmcnt(0)")

def main():
    ap = argparse.ArgumentParser()
    for k_, v_ in vars(Opt).items():
        if k_.startswith("_"): continue
        if isinstance(v_, bool): ap.add_argument("--" + k_, type=lambda s: bool(int(s)), default=v_)
        elif isinstance(v_, int): ap.add_argument("--" + k_, type=int, default=v_)
        else: ap.add_argument("--" + k_, default=v_)
    a = ap.parse_args()
    for k_, v_ in vars(a).items(): setattr(O, k_, v_)
    O.smpos_ = [int(x) for x in O.smpos.split(',')]
    hdr = open("cdna_kernels/" + NAME + ".s.ref").read().split("; Override launch")[0]
    out = hdr
    out += "; @launch kernel=attn_kernel grid=(256,1,1) block=(256,1,1) lds=163840\n"
    body = gen_kernel("attn_kernel")
    if O.stamps: out += "; stamps: " + ",".join(stamp_names) + ",end\n"
    out += '.amdgcn_target "amdgcn-amd-amdhsa--gfx950"\n.text\n'
    out += body + kd("attn_kernel")
    lines = out.split("\n")
    if O.skip_loop:
        iu = lines.index("L_unit:"); il = lines.index("L_last:")
        lines = lines[:iu] + [l for l in lines[iu:il] if not ("buffer_load_dwordx4" in l and " lds" in l)] + lines[il:]
    il = lines.index("L_last:")
    if O.skip_oo: lines = lines[:il] + [l for l in lines[il:] if not ("buffer_load_dwordx4 a[" in l and "s[8:11]" in l)]
    if O.skip_ow: lines = lines[:il] + [l for l in lines[il:] if not ("s[12:15]" in l and " lds" in l)]
    iu = lines.index("L_unit:")
    if O.skip_x: lines = [l for l in lines[:iu] if not ("s[8:11]" in l and " lds" in l)] + lines[iu:]
    if O.skip_w: lines = [l for l in lines[:iu] if not ("s[12:15]" in l and " lds" in l)] + lines[iu:]
    sys.stdout.write("\n".join(lines))
main()
```

```python
import sys, math, argparse, re, struct, copy

NAME = "concat_heads__gqa_block_cached__gqa_block_cached__near_ridge"

class Opt:
    stamps = False
    dumpq = False
    kv_nt = True
    fuse = True
    twocls = False
    D = 6
    bar = 20
    burst = 1
    dper = 3
    qsp = 4
    w_nt = True
    x_nt = True
    wo_nt = False
    kv0 = 15
    pubw = 11
    map2 = True
    pub2 = 1
    pub1 = 28
    poll2 = 8
    thr_log2 = 30
    skip_loop = False
    skip_x = False
    skip_w = False
    forcefb = False
    budget = 8
    wpre = True
    o_sc1 = True
    chk = True
    stm = 0
    cpre = True
    rot = 0
    wfake = False
    noinv = False
    skip_oo = False
    skip_ow = False
    st_sc1 = True
    wopre = 200
    wopre_nt = False
    wopn = 1
    ndef = 4
    xbar = 60
    own1 = True
    obar = 4
    osp = 2
    xdense = True
    vlate = 4
    vsum = False
    pad = 0
    vmn = 16
    kvs = "13,14,15,16,17,18,19"
    outfl = 0
    trace = False
    xld = 40
    xfill = 18
    lfake = False
    whalf = False
    ofake = False
    walign = False
    wofl = 0
    fvm = 20
    u0n = 4
    eo = 0
    wo0 = 24
    wo1 = 1
    mvk = True
    cvn = 8
    cvb = 12
    cv19 = True
    u0 = "16,8,20"
    klate = 0
    stfl = 0
    stfl1 = 0
    xffl = 0
    est = 1
    f1at = 28
    snake = 15
    kvfl = 0
    qpad = 0
    upad = 0
    upadm = 0
    stag = 0
    stagm = 3
    exitat = 0
    l2n = 0
    l2s = ""
    l2nt = 0
    l2sh = 6
    smpos = "3,7"
    smf = True

O = Opt()

class Asm:
    def __init__(self):
        self.L = []
        self.vm = []
        self.ds = []
        self.nvm = 0; self.mark = {}
    def __call__(self, s):
        if s.endswith(" lds") and self.L and " m0," in self.L[-1]: self.L.append("    s_nop 0")
        self.L.append(s if s.endswith(":") else "    " + s)
    def label(self, s): self.L.append(s + ":")
    def c(self, s): self.L.append("    ; " + s)
    def text(self): return "\n".join(self.L) + "\n"
    def vm_n(self, tags):
        idx = [i for i, t in enumerate(self.vm) if t in tags]
        if not idx: return None
        return min(63, len(self.vm) - 1 - max(idx))
    def ds_n(self, tags):
        idx = [i for i, t in enumerate(self.ds) if t in tags]
        if not idx: return None
        return min(15, len(self.ds) - 1 - max(idx))
    def wait(self, vm=None, ds=None, vmn=None, dsn=None):
        a = self.vm_n(vm) if vm else None
        b = self.ds_n(ds) if ds else None
        if vmn is not None: a = vmn if a is None else min(a, vmn)
        if dsn is not None: b = dsn if b is None else min(b, dsn)
        p = []
        if a is not None:
            p.append(f"vmcnt({a})"); self.vm = self.vm[len(self.vm) - a:] if a else []
        if b is not None:
            p.append(f"lgkmcnt({b})"); self.ds = self.ds[len(self.ds) - b:] if b else []
        if p: self("s_waitcnt " + " ".join(p))
    def op(self, o):
        if isinstance(o, str): self(o); return
        if o[1] == "vm": self.vm.append(o[2]); self.nvm += 1
        elif o[1] == "mark": self.mark[o[2]] = self.nvm
        elif o[1] == "call": o[2](self); return
        elif o[1] == "ds": self.ds.append(o[2])
        elif o[1] == "wait": self.wait(**o[2]); return
        self(o[0])

def vr(b, n=1): return f"v{b}" if n == 1 else f"v[{b}:{b+n-1}]"
def ar(b, n=1): return f"a{b}" if n == 1 else f"a[{b}:{b+n-1}]"
def sr(b, n=4): return f"s[{b}:{b+n-1}]"
def f32bits(x): return struct.unpack("<I", struct.pack("<f", x))[0]
MF = "v_mfma_f32_16x16x32_bf16"

def kd(k, vgpr=512, acc=256, sgpr=102):
    return f""".section .rodata,"a"
.p2align 6
.amdhsa_kernel {k}
  .amdhsa_next_free_vgpr {vgpr}
  .amdhsa_next_free_sgpr {sgpr}
  .amdhsa_accum_offset {acc}
  .amdhsa_group_segment_fixed_size 0
  .amdhsa_kernarg_size 104
  .amdhsa_user_sgpr_count 2
  .amdhsa_user_sgpr_kernarg_segment_ptr 1
  .amdhsa_system_sgpr_workgroup_id_x 1
.end_amdhsa_kernel
.text
"""
def kstart(k): return f".globl {k}\n.p2align 8\n.type {k},@function\n{k}:\n"

WOF_OFF = 48 << 20
STAMP_WS_OFF = 128 << 20
QDUMP_WS_OFF = 64 << 20
sTW = 65
sXI, sXO = 78, 79

sX, sW, sK, sV, sO = 8, 12, 16, 20, 24
sWAVE, sKVW, sVVW, sWQW, sKOFF, sVOFF, sXW, sLOOP, sUNIT, sT, sTHR, sT3 = range(28, 40)
sSC, sOOF, sFB, sT2, sGI, sWS = 40, 42, 43, 44, 45, 46
sSTAMP, sRSTAMP = 48, 64
sCNT, sDBG, sWOI, sWOF, sOUT = 80, 84, 88, 92, 96
sM = 100
vAK, vAV, vOKV, vOO, vTMP = 1, 5, 13, 14, 15
vIDX, vPOLL, aPOLL, aPOLL1, aOQ = 15, 30, 222, 223, 200
vNEGM, vS, vP, vO = 16, 32, 96, 128
aQ, aQ2, aKF, aVF, aL, aONE = 0, 64, 128, 160, 192, 208
KBASE, VBASE, WQBASE, FBBASE = 0, 65536, 98304, 131072
XB = (16384, 49152)
FLAG_OFF = 60 << 20
sFLG, sSTUB = 84, sFB

def S(buf, qb, kb): return vS + buf * 32 + (qb * 2 + kb) * 4
def P(buf, qb): return vP + buf * 16 + qb * 4
def NEGM(qb): return vNEGM + qb * 4
def Q(qb, s): return aQ + (qb * 4 + s) * 4
def OA(db, qb): return vO + (qb * 8 + db) * 4
def LA(qb): return aL + qb * 4
vL = 252
def OAT(db, qb): return ar(aL, 4) if O.vsum and (db, qb) == (7, 3) else vr(OA(db, qb), 4)

nstamp = [0]
stamp_names = []
def stamp(A, name, mode=0):
    if not O.stamps or (mode != O.stm and name != "t0"): return
    i = nstamp[0]; nstamp[0] += 1; stamp_names.append(name)
    assert i < 7
    A(f"s_memtime s[{sSTAMP+2*i}:{sSTAMP+2*i+1}]")
    r = 62 if i == 0 else sRSTAMP + 2 * i
    A(f"s_memrealtime s[{r}:{r+1}]")

def cost(o):
    t = o if isinstance(o, str) else o[0]
    if t.endswith(":"): return 0
    if not isinstance(o, str) and o[1] in ("wait", "call"): return 0
    if t.startswith(("v_exp", "v_rcp")): return 8
    if t.startswith("buffer_"): return 8
    if t.startswith("s_nop"): return 4 * (int(t.split()[1]) + 1)
    if t.startswith("v_cvt_pk") or t.startswith("v_max3") or t.startswith("v_perm"): return 5
    if t.startswith("v_pk_"): return 8
    return 4

def interleave(A, mf, fixed=None, stream=(), pre=None, budget=None, need=None, partial=False):
    budget = O.budget if budget is None else budget
    fixed = fixed or {}; pre = pre or {}; need = need or {}
    st = list(stream); si = 0; debt = 0
    for g in range(len(mf)):
        for t in pre.get(g, []): A.op(t)
        if g in need: A.wait(ds=need[g])
        A(mf[g])
        fx = fixed.get(g, [])
        room = budget - sum(cost(o) for o in fx) - debt
        for o in fx: A.op(o)
        while si < len(st):
            o, at = st[si] if isinstance(st[si], list) else (st[si], 0)
            if at > g: break
            c = cost(o)
            if room <= 0 or (c > room + 1): break
            A.op(o); room -= c; si += 1
        debt = 0
    if partial: return si
    while si < len(st):
        o = st[si][0] if isinstance(st[si], list) else st[si]
        A.op(o); si += 1

NT_KV = lambda: [" nt", "", " sc1", " sc1 nt", " sc0 sc1 nt", " sc0 nt", " sc0 sc1"][O.kvfl]
SC1 = lambda: " sc1" if O.o_sc1 else ""
OFL = lambda: ["", " sc1", " sc0 sc1", " nt", " sc1 nt", " sc0 sc1 nt"][O.outfl]
def adv(off): return f"s_add_u32 s{off}, s{off}, 0x4000"
def vphys(ring): return (ring + 1) & 3
def dma_k(ring, tag):
    return (f"s_add_u32 m0, s{sKVW}, {ring*16384}",
            [(f"buffer_load_dwordx4 {vr(vOKV)}, {sr(sK)}, s{sKOFF} offen offset:{p*1024}{NT_KV()} lds", "vm", tag) for p in range(4)],
            adv(sKOFF))
def dma_v(ring, tag):
    return (f"s_add_u32 m0, s{sVVW}, {vphys(ring)*16384}",
            [(f"buffer_load_dwordx4 {vr(vOKV)}, {sr(sV)}, s{sVOFF} offen offset:{p*1024}{NT_KV()} lds", "vm", tag) for p in range(4)],
            adv(sVOFF))
def k_reads(ring, h, dst=aKF):
    return [(f"ds_read_b128 {ar(dst+(kb*4+s)*4,4)}, {vr(vAK+s)} offset:{ring*16384+(2*h+kb)*1024}", "ds", ("F", dst + (kb*4+s)*4))
            for kb in range(2) for s in range(4)]
def v_reads(ring, h):
    return [(f"ds_read_b64_tr_b16 {ar(aVF+db*4+2*jh,2)}, {vr(vAV+db)} offset:{vphys(ring)*16384+h*2048+jh*1024}", "ds", ("F", aVF + db*4))
            for db in range(8) for jh in range(2)]
def pv_mf(buf, zero=False, qbmajor=False):
    r = []
    def pv(db, qb): return (f"{MF} {OAT(db,qb)}, {ar(aVF+db*4,4)}, {vr(P(buf,qb),4)}, {'0' if zero else OAT(db,qb)}", aVF + db*4, qb)
    def sm(qb): return (f"{MF} {ar(LA(qb),4)}, {ar(aONE,4)}, {vr(P(buf,qb),4)}, {'0' if zero else ar(LA(qb),4)}", None, qb)
    def sm2(pr): return (f"v_smfmac_f32_16x16x64_bf16 {ar(LA(pr),4)}, {ar(aONE,4)}, {vr(P(buf,2*pr),8)}, {vr(vIDX)}", None, 2 * pr)
    if qbmajor:
        for qb in range(4):
            if O.smf:
                if not qb & 1: r.append(sm2(qb >> 1))
            elif not O.vsum: r.append(sm(qb))
            r += [pv(7 - db if qb & 1 and O.snake & 1 else db, qb) for db in range(8)]
    else:
        for db in range(8):
            r += [pv(db, 3 - qb if db & 1 and O.snake & 1 else qb) for qb in range(4)]
            if O.smf:
                if db in O.smpos_: r.append(sm2(O.smpos_.index(db)))
            elif db & 1 and not O.vsum: r.append(sm(db >> 1))
    return r
def qk_mf(buf, zero=False, kf=aKF, snake=False):
    r = []
    order = [(qb, kb, s) for qb in range(4) for kb in range(2) for s in range(4)]
    if snake: order = [(p * 2 + (q ^ ((kb + s) & 1)), kb ^ (s & 1), s) for p in range(2) for s in range(4) for kb in range(2) for q in range(2)]
    for qb, kb, s in order:
        c = vr(S(buf,qb,kb),4) if s else ("0" if zero else vr(NEGM(qb),4))
        r.append((f"{MF} {vr(S(buf,qb,kb),4)}, {ar(kf+(kb*4+s)*4,4)}, {ar(Q(qb,s),4)}, {c}", kf + (kb*4+s)*4, qb))
    return r
def ex(b, e): return f"v_exp_f32 {vr(vS+b*32+e)}, {vr(vS+b*32+e)}"
def cv(b, i): return f"v_cvt_pk_bf16_f32 {vr(vP+b*16+i)}, {vr(vS+b*32+2*i)}, {vr(vS+b*32+2*i+1)}"
def ad(b, e): return f"v_add_f32 {vr(vL+(e>>3))}, {vr(vL+(e>>3))}, {vr(vS+b*32+e)}"
def needs(mfs, group=2):
    nd = {}; seen = []
    for g, m in enumerate(mfs):
        if m[1] is not None and m[1] not in seen: seen.append(m[1]); nd[g] = m[1]
    items = sorted(nd.items())
    out = {}
    for i in range(0, len(items), group):
        out[items[i][0]] = [("F", t) for _, t in items[i:i + group]]
    return out
def lastuse(mfs):
    lu = {}
    for g, m in enumerate(mfs):
        if m[1] is not None: lu[m[1]] = g
    return lu

def barrier_ops(cls, g, pre, gaps, vmtags=None, first=False):
    w = ("", "wait", dict(vmn=O.fvm if first else O.vmn + (O.fuse and O.wopre == 250), dsn=0) if vmtags is None else dict(vm=vmtags, dsn=0))
    if cls == 0: pre[g] = [w, "s_barrier"]
    else:
        pre[g] = [w]; gaps[g].insert(0, "s_barrier")

def is_vm(o): return not isinstance(o, str) and o[1] == "vm"
def slot(A, p, cls, tag, zero=False, tail=(), groups=None, vmtags=None, after_bar=(), kn=None, before_bar=()):
    D = O.D; even = (p & 1) == 0; buf = p & 1; t_ = p >> 1
    vlate, klate, bar0 = kn or (O.vlate, O.klate, O.bar)
    A.c(f"---- slot {tag} pos={p} cls={cls}")
    kr = k_reads(((p + 1) >> 1) & 3, (p + 1) & 1)
    vq = v_reads(t_ & 3, p & 1)
    pvm = pv_mf(buf ^ 1, zero); mfs = pvm + qk_mf(buf ^ 1, snake=O.snake & 2)
    n = len(mfs); npv = len(pvm)
    gaps = {g: [] for g in range(n)}; pre = {}
    seq = [(buf, e) for e in range(D, 32)] + [(buf ^ 1, e) for e in range(D)]
    eg = [2 * i for i in range(32 - D)] + [n - 64 + 2 * i for i in range(32 - D, 32)]
    for g, (b, e) in zip(eg, seq): gaps[g].append(ex(b, e))
    free = [g for g in range(n) if g not in eg]
    cvg = {g + 1: cv(b, e >> 1) for g, (b, e) in zip(eg, seq) if e & 1}
    if even and bar0 <= npv: klate = 0
    for g, t in zip(free[:8 - klate], kr): gaps[g].append(t)
    need = {}
    if klate:
        gaps[npv - 1] += kr[8 - klate:]
        need = {g: t for g, t in needs(mfs).items() if g >= npv}
    lu = lastuse(pvm)
    pre[0] = [("", "wait", dict(dsn=0))]
    if O.trace and groups is None:
        pre[0] += ["s_mov_b64 exec, s[52:53]", "v_mov_b32 v0, s50", "s_mov_b64 exec, -1", "s_lshl_b64 s[52:53], s[52:53], 1"]
        gaps[n - 3].append("s_memrealtime s[50:51]")
    if groups is None:
        kg = dma_k(t_ & 3, "KV"); vg = dma_v((t_ + 3) & 3, "KV")
        if even: flat = [kg[0]] + kg[1] + [vg[0], kg[2]] + (vg[1] + [vg[2]] if O.burst == 1 else [])
        else: flat = vg[1] + [vg[2]] if O.burst == 2 else []
        if O.fuse and O.wopre == 250 and p in (1, 5):
            flat = flat + [(f"buffer_load_dwordx4 {ar(224,4)}, {vr(vOO)}, {sr(sW)}, s{sTW} offen{' nt' if O.wopre_nt else ''}", "vm", "WOP"), f"s_add_u32 s{sTW}, s{sTW}, 1024", f"s_min_u32 s{sTW}, s{sTW}, s{sTW-1}"]
    else:
        flat = [o for grp in groups for o in grp]
    dm = [o for o in flat if is_vm(o)]
    bar = bar0 if even else 15
    if even:
        barrier_ops(cls, bar, pre, gaps, vmtags)
        if after_bar: pre[bar + 1] = list(after_bar)
        pre[bar][1:1] = list(before_bar)
    rest = [g for g in free if g > bar]
    if klate: rest = [g for g in rest if g != npv - 1]
    if vlate:
        gaps[n - 1] += vq[len(vq) - vlate:]; vq = vq[:len(vq) - vlate]
        rest = [g for g in rest if g != n - 1]
    lack = len(dm) + len(vq) - len(rest)
    xg = set()
    if lack > 0:
        cand = [g for g in eg if g > bar + 4]
        xg = {cand[(q * len(cand)) // lack + len(cand) // (2 * lack)] for q in range(lack)}
        rest = sorted(rest + list(xg))
    dg = []; k = 0
    while dm or vq:
        g = rest.pop(0)
        vok = vq and lu[vq[0][2][1]] <= g
        if g in xg and vok: gaps[g].append(vq.pop(0)); continue
        if dm and k % O.dper == 0 and g in cvg and vok: gaps[g].append(vq.pop(0)); continue
        if dm and (k % O.dper == 0 or not vok) and g not in cvg: gaps[g].append(dm.pop(0)); dg.append(g)
        elif vok: gaps[g].append(vq.pop(0))
        elif dm: gaps[g].append(dm.pop(0)); dg.append(g)
        k += 1
    small = []
    nv = 0
    for o in flat:
        if is_vm(o): nv += 1; continue
        lo = dg[nv - 1] if nv else 16
        hi = n - 1 if ("0x4000" in o or nv == len(dg)) else dg[nv] - 1
        small.append((o, lo, hi))
    if not klate and (not even or bar >= npv): small.append((("", "wait", dict(ds=[o[2] for o in kr])), 24, npv - 1))
    for g, o in cvg.items(): gaps[g].append(o)
    if O.vsum:
        for g, (b, e) in zip(eg, seq): gaps[g + 1].append(ad(b, e))
    def used(g): return sum(4 if (not isinstance(o, str) and o[1] == "wait") else cost(o) for o in gaps[g]) + 4 * len(pre.get(g + 1, []))
    prev = (None, 0)
    for o, lo, hi in small:
        key = (lo, hi)
        if prev[0] == key: lo = prev[1]
        c = [g for g in range(lo, hi + 1) if used(g) <= 5]
        if not c: c = sorted(range(lo, hi + 1), key=used)
        gaps[c[0]].append(o); prev = (key, c[0])
    for q in range(O.pad): gaps[1 + (q * 62) // O.pad // 2 * 2 + 1].append("s_nop 1")
    if O.upad and groups is None:
        lb = f"L_up_{tag}"
        gaps[n - 1] += [f"s_lshl_b32 s3, s{sUNIT}, 2", f"s_sub_u32 s3, s3, s{sLOOP}", "s_add_u32 s3, s3, 3", f"s_cmp_ge_u32 s3, {O.upadm}", f"s_cbranch_scc1 {lb}"] + ["s_nop 7"] * O.upad + [lb + ":"]
    gaps[n - 1] += list(tail)
    interleave(A, [m[0] for m in mfs], gaps, pre=pre, need=need)

def max_chain(qb, buf, t0, t1, run=None):
    s = S(buf, qb, 0)
    st = [f"v_max3_f32 {vr(t0)}, {vr(s)}, {vr(s+1)}, {vr(s+2)}", f"v_max3_f32 {vr(t1)}, {vr(s+3)}, {vr(s+4)}, {vr(s+5)}",
          f"v_max3_f32 {vr(t0)}, {vr(t0)}, {vr(s+6)}, {vr(s+7)}"]
    if run is not None: return st + [f"v_max3_f32 {vr(run)}, {vr(run)}, {vr(t0)}, {vr(t1)}"]
    return st + [f"v_max_f32 {vr(t0)}, {vr(t0)}, {vr(t1)}"]
def xlane_max(t0, t1):
    return [f"v_mov_b32 {vr(t1)}, {vr(t0)}", "s_nop 1", f"v_permlane32_swap_b32 {vr(t0)}, {vr(t1)}", "s_nop 0", f"v_max_f32 {vr(t0)}, {vr(t0)}, {vr(t1)}",
            f"v_mov_b32 {vr(t1)}, {vr(t0)}", "s_nop 1", f"v_permlane16_swap_b32 {vr(t0)}, {vr(t1)}", "s_nop 0", f"v_max_f32 {vr(t0)}, {vr(t0)}, {vr(t1)}"]

def unit_moves(A):
    for q in range(64): A(f"v_accvgpr_mov_b32 {ar(aQ+q)}, {ar(aQ2+q)}")
    if O.fuse:
        for q in range(16 * O.est, 64): A(f"v_accvgpr_write_b32 {ar(aQ2+q)}, {vr(vS+q)}")
def first_slot(A, cls):
    D = O.D
    A.c(f"---- first slot cls={cls}")
    for o in k_reads(0, 0, dst=aVF) + k_reads(0, 1): A.op(o)
    if O.mvk:
        A(f"s_cmp_eq_u32 s{sUNIT}, 0"); A("s_cbranch_scc1 L_nomv")
        unit_moves(A)
        A.label("L_nomv")
    mfs = qk_mf(0, zero=True, kf=aVF) + qk_mf(1)
    gaps = {g: [] for g in range(64)}; pre = {}
    bar = 8
    barrier_ops(cls, bar, pre, gaps, first=True)
    kg = dma_k(0, "KV"); vg = dma_v(3, "KV")
    gaps[bar - 2].append(kg[0])
    dm = kg[1] + (vg[1] if O.burst == 1 else [])
    for i, o in enumerate(dm):
        gaps[bar + 1 + i].append(o)
        if i == 3: gaps[bar + 1 + i].append(vg[0])
    gaps[7].append(kg[2]) if False else None
    st = []
    tA = [vO + 2 * q for q in range(4)]
    for qb in range(4):
        t0, t1 = tA[qb], tA[qb] + 1
        ch = max_chain(qb, 0, t0, t1) + xlane_max(t0, t1)
        ch += [f"v_sub_f32 {vr(NEGM(qb)+r)}, 0, {vr(t0)}" for r in range(4)]
        ch += [f"v_sub_f32 {vr(S(0,qb,0)+r)}, {vr(S(0,qb,0)+r)}, {vr(t0)}" for r in range(8)]
        st.append([ch[0], 8 * qb + 7 + 8]); st += ch[1:]
    sm = []
    for e in range(32):
        sm.append(ex(0, e))
        if e >= 2 and not (e & 1): sm.append(cv(0, (e >> 1) - 1))
        if O.vsum and e >= 2:
            if (e - 2) & 7 == 0: sm.append(f"v_add_f32 {vr(vL+((e-2)>>3))}, {vr(vS+e-2)}, {vr(vS+e-1)}")
            elif (e - 2) & 7 != 1: sm.append(ad(0, e - 2))
    sm += ["s_nop 0", cv(0, 15)]
    if O.vsum: sm += [ad(0, 30), ad(0, 31)]
    vq = v_reads(0, 0)
    for i, o in enumerate(vq): gaps[33 + i * 2 - (i // 8) * 0 if 33 + 2 * i < 64 else 63].append(o)
    post = [kg[2]] + ([vg[2]] if O.burst == 1 else [])
    if O.smf: post += [f"v_accvgpr_write_b32 {ar(aL+q)}, 0" for q in range(8)]
    nd = needs(mfs)
    nch = len(st) // 4
    m = [x[0] for x in mfs]
    def sub(d, lo, hi): return {g - lo: v for g, v in d.items() if lo <= g < hi}
    def shift(s, lo): return [[x[0], x[1] - lo] if isinstance(x, list) else x for x in s]
    segs = [(0, 32, st[:nch]), (32, 40, st[nch:2*nch]), (40, 48, st[2*nch:3*nch]), (48, 56, st[3*nch:]), (56, 64, [])]
    carry = []
    allst = st + post + sm
    pos = 0
    marks = {32: nch, 40: 2 * nch, 48: 3 * nch, 56: 4 * nch}
    for g in range(64):
        if g in marks:
            while pos < marks[g]:
                o = allst[pos][0] if isinstance(allst[pos], list) else allst[pos]
                A.op(o); pos += 1
            A("s_nop 1")
        for t in pre.get(g, []): A.op(t)
        if g in nd: A.wait(ds=nd[g])
        A(m[g])
        room = O.budget - sum(cost(o) for o in gaps[g])
        for o in gaps[g]: A.op(o)
        while pos < len(allst):
            o, at = allst[pos] if isinstance(allst[pos], list) else (allst[pos], 0)
            if at > g or room <= 0 or cost(o) > room + 1: break
            A.op(o); room -= cost(o); pos += 1
    while pos < len(allst):
        A.op(allst[pos]); pos += 1
    for e in range(D):
        A(ex(1, e))
        if e >= 2 and not (e & 1): A(cv(1, (e >> 1) - 1))
    A("s_nop 0"); A(cv(1, D // 2 - 1))
    if O.vsum:
        for e in range(D): A(ad(1, e))
    A("s_nop 1")

def o_store(reg, qb, t, tag, so):
    return (f"buffer_store_dwordx4 {reg}, {vr(vOO)}, {sr(sO)}, s{so} offen offset:{t*1024}{[' sc1', ' sc1 nt', ' sc0 sc1', ' sc0 sc1 nt'][O.stfl if tag == 'ST0' or O.stfl1 else 0] if O.st_sc1 else ''}", "vm", tag)
def row_sums():
    st = []
    for sw in ("v_permlane32_swap_b32", "v_permlane16_swap_b32"):
        st += [f"v_mov_b32 {vr(vP+2*q+1)}, {vr(vL+q)}" for q in range(4)]
        st += [f"{sw} {vr(vL+q)}, {vr(vP+2*q+1)}" for q in range(4)]
        st += [f"v_add_f32 {vr(vL+q)}, {vr(vL+q)}, {vr(vP+2*q+1)}" for q in range(4)]
    st += [f"v_rcp_f32 {vr(vP+2*q)}, {vr(vL+q)}" for q in range(4)]
    if O.chk:
        st += [f"v_max3_f32 {vr(vP+1)}, {vr(vL)}, {vr(vL+1)}, {vr(vL+2)}"]
        for q in (vP + 1, vL + 3): st += [f"v_cmp_nle_f32 vcc, {vr(q)}, s{sTHR}", f"s_or_b64 s[{sM}:{sM+1}], s[{sM}:{sM+1}], vcc"]
    return st
def epi_qb(qb, store):
    so = [f"s_add_u32 s{sT}, s{sOOF}, {qb*131072}"]
    if O.vsum:
        inv = vP + 2 * qb
        st = so + ([f"v_accvgpr_read_b32 {vr(vL+q)}, {ar(aL+q)}" for q in range(4)] if qb == 3 else [])
    else:
        inv = vP + 2 * (qb & 1)
        st = [f"v_accvgpr_read_b32 {vr(inv+1)}, {ar(LA(qb))}", f"v_rcp_f32 {vr(inv)}, {vr(inv+1)}"]
        if O.smf: st = [f"v_accvgpr_read_b32 {vr(inv+q)}, {ar(aL+2*qb+q)}" for q in range(2)] + [f"v_add_f32 {vr(inv+1)}, {vr(inv)}, {vr(inv+1)}", st[1]]
        if O.chk: st += [f"v_cmp_nle_f32 vcc, {vr(inv+1)}, s{sTHR}"]
        st += so
        if O.chk: st += [f"s_or_b64 s[{sM}:{sM+1}], s[{sM}:{sM+1}], vcc"]
    for t in range(4):
        o = OA(2 * t, qb)
        st += [f"v_pk_mul_f32 {vr(o+2*i,2)}, {vr(o+2*i,2)}, {vr(inv,2)} op_sel_hi:[1,0]" for i in range(4)]
        d = vS + (qb * 4 + t) * 4
        st += [f"v_cvt_pk_bf16_f32 {vr(d+i)}, {vr(o+2*i)}, {vr(o+2*i+1)}" for i in range(4)]
        if store: st.append(o_store(vr(d, 4), qb, t, "ST", sT))
    return st

def last_slot(A, store, extra1=(), mid=None, extra2=()):
    D = O.D
    A.c("---- last slot + final PV + epilogue")
    pvm = pv_mf(0); n = len(pvm); nq = n // 4
    gaps = {g: [] for g in range(n)}
    lu = lastuse(pvm)
    for i, o in enumerate(v_reads(3, 1)):
        g = min(n - 1, lu[o[2][1]] + 1 + (i & 1)); gaps[g].append(o)
    sm = []
    for e in range(D, 32):
        sm.append(ex(1, e))
        if e > D and not (e & 1): sm.append(cv(1, (e >> 1) - 1))
        if O.vsum and e > D: sm.append(ad(1, e - 1))
    sm += ["s_nop 0", cv(1, 15)] + ([ad(1, 31)] if O.vsum else []) + ["s_nop 1"]
    ex_ = list(extra1)
    for g in range(0, n):
        if ex_ and not gaps[g]: gaps[g] += ex_.pop(0)
    assert not ex_
    A(f"s_mov_b64 s[{sM}:{sM+1}], 0")
    interleave(A, [m[0] for m in pvm], gaps, stream=sm, need=needs(pvm))
    if mid: mid()
    fin = pv_mf(1, qbmajor=True)
    st = row_sums() if O.vsum else []
    for qb in range(4):
        e = epi_qb(qb, qb < store)
        k = 1 if O.vsum and qb < 3 else 0
        if qb == 3: st.append("s_nop 7")
        st += e[:k]; st.append([e[k], max(g for g, m in enumerate(fin) if m[2] == qb) + 8]); st += e[k+1:]
    gaps = {g: [] for g in range(n)}
    ex_ = list(extra2)
    for g in range(0, n):
        if ex_ and (g < 16 or g % 2 == 0): gaps[g] += ex_.pop(0)
    assert not ex_
    interleave(A, [m[0] for m in fin], gaps, stream=st, need=needs(fin, group=8))

def fallback(A):
    A.label("L_fb")
    lane, g, i, r, ka, kb_, va, vd, t0, t1 = range(64, 74)
    run = 76
    A("s_waitcnt vmcnt(0) lgkmcnt(0)"); A("s_nop 7")
    A(f"v_mbcnt_lo_u32_b32 {vr(lane)}, -1, 0"); A(f"v_mbcnt_hi_u32_b32 {vr(lane)}, -1, {vr(lane)}")
    A(f"v_lshrrev_b32 {vr(g)}, 4, {vr(lane)}"); A(f"v_and_b32 {vr(i)}, 15, {vr(lane)}")
    A(f"v_and_b32 {vr(t0)}, 1, {vr(g)}"); A(f"v_lshlrev_b32 {vr(t0)}, 1, {vr(t0)}"); A(f"v_lshrrev_b32 {vr(t1)}, 1, {vr(g)}")
    A(f"v_or_b32 {vr(t0)}, {vr(t0)}, {vr(t1)}"); A(f"v_lshlrev_b32 {vr(t0)}, 4, {vr(t0)}")
    A(f"v_lshl_add_u32 {vr(ka)}, {vr(i)}, 8, {vr(t0)}"); A(f"v_add_u32 {vr(kb_)}, 4096, {vr(ka)}")
    A(f"v_lshlrev_b32 {vr(vd)}, 4, {vr(lane)}")
    A(f"s_lshl_b32 s{sT3}, s{sWAVE}, 13"); A(f"s_add_u32 s{sT3}, s{sT3}, {FBBASE}")
    if O.fuse: A(f"s_cmp_eq_u32 s{sUNIT}, 0"); A(f"s_cselect_b32 s{sT3}, s{sT3}, s{sWM+3}")
    A(f"v_lshrrev_b32 {vr(r)}, 2, {vr(i)}"); A(f"v_lshl_add_u32 {vr(t0)}, {vr(g)}, 2, {vr(r)}"); A(f"v_lshlrev_b32 {vr(t0)}, 8, {vr(t0)}")
    A(f"v_and_b32 {vr(t1)}, 3, {vr(i)}"); A(f"v_lshl_add_u32 {vr(t0)}, {vr(t1)}, 3, {vr(t0)}"); A(f"v_add_u32 {vr(va)}, s{sT3}, {vr(t0)}")
    def kload():
        for kb in range(2):
            for s in range(4):
                A(f"buffer_load_dwordx4 {ar(aKF+(kb*4+s)*4,4)}, {vr(kb_ if kb else ka)}, {sr(sK)}, s{sT} offen offset:{s*64}")
    for q in range(4): A(f"v_mov_b32 {vr(run+q)}, 0xff800000")
    A(f"s_lshl_b32 s{sT}, s{sUNIT}, 18"); A(f"s_add_u32 s{sT2}, s{sT}, 0x40000")
    A.label("L_fb1")
    kload(); A("s_waitcnt vmcnt(0)")
    for m in qk_mf(0, zero=True): A(m[0])
    A("s_nop 7")
    for q in range(4):
        for o in max_chain(q, 0, t0, t1, run=run + q): A(o)
    A(f"s_add_u32 s{sT}, s{sT}, 0x2000"); A(f"s_cmp_lt_u32 s{sT}, s{sT2}"); A("s_cbranch_scc1 L_fb1")
    for q in range(4):
        for o in xlane_max(run + q, t1): A(o)
        for rr in range(4): A(f"v_sub_f32 {vr(NEGM(q)+rr)}, 0, {vr(run+q)}")
    for k in range(128): A(f"v_mov_b32 {vr(vO+k)}, 0")
    for k in range(8 if O.smf else 16): A(f"v_accvgpr_write_b32 {ar(aL+k)}, 0")
    A(f"s_lshl_b32 s{sT}, s{sUNIT}, 18")
    A.label("L_fb2")
    kload()
    for hf in range(2):
        A(f"s_add_u32 m0, s{sT3}, {hf*4096}"); A(f"s_add_u32 s3, s{sT}, {hf*4096}")
        for p in range(4): A(f"buffer_load_dwordx4 {vr(vd)}, {sr(sV)}, s3 offen offset:{p*1024} lds")
    A("s_waitcnt vmcnt(0)")
    for db in range(8):
        for jh in range(2): A(f"ds_read_b64_tr_b16 {ar(aVF+db*4+2*jh,2)}, {vr(va)} offset:{db*32+jh*4096}")
    for m in qk_mf(0): A(m[0])
    A("s_nop 7")
    for e in range(32): A(ex(0, e))
    A("s_nop 0")
    for k in range(16): A(cv(0, k))
    if O.vsum:
        for e in range(32): A(ad(0, e))
    A("s_waitcnt lgkmcnt(0)"); A("s_nop 1")
    for m in pv_mf(0): A(m[0])
    A(f"s_add_u32 s{sT}, s{sT}, 0x2000"); A(f"s_cmp_lt_u32 s{sT}, s{sT2}"); A("s_cbranch_scc1 L_fb2")
    A("s_nop 7")
    if O.vsum:
        for o in row_sums(): A(o)
    for qb in range(4):
        for o in epi_qb(qb, False): A(o)
    for qb in range(4):
        if O.fuse and qb == O.est: A(f"s_cmp_eq_u32 s{sUNIT}, 0"); A("s_cbranch_scc1 L_fbret0")
        A(f"s_add_u32 s{sT}, s{sOOF}, {qb*131072}")
        for t in range(4): A(o_store(vr(vS + (qb * 4 + t) * 4, 4), qb, t, "ST", sT)[0])
    if not O.fuse or O.est == 4: A(f"s_cmp_eq_u32 s{sUNIT}, 0"); A("s_cbranch_scc1 L_fbret0")
    if O.fuse: oproj_setup(A)
    A("s_branch L_fbret1")

def srd(A, d, lo, hi, off, size):
    A(f"s_add_u32 s{d}, s{lo}, {off}"); A(f"s_addc_u32 s{d+1}, s{hi}, 0"); A(f"s_and_b32 s{d+1}, s{d+1}, 0xffff")
    A(f"s_mov_b32 s{d+2}, {size}"); A(f"s_mov_b32 s{d+3}, 0x20000")

def one_lane(A, val, text, tag):
    A(f"v_mov_b32 v0, {val}"); A("s_mov_b64 exec, 1")
    A.op((text, "vm", tag))
    A("s_mov_b64 exec, -1")
def flag_ops(val, name):
    return [f"s_cmp_lg_u32 s{sWAVE}, 0", f"s_cbranch_scc1 L_np_{name}", f"v_mov_b32 v0, {val}", "s_mov_b64 exec, 1",
            f"buffer_store_byte v0, off, {sr(sCNT)}, s{sGI} sc1", "s_mov_b64 exec, -1", f"L_np_{name}:"]
def poll_text(v=vPOLL): return f"buffer_load_dword v0, {vr(v)}, {sr(sCNT)}, 0 offen sc1"
RD1 = f"v_accvgpr_read_b32 v0, {ar(aPOLL1)}"
def poll_ops(name, own=1): return [f"s_cmp_lg_u32 s{sWAVE}, 0", f"s_cbranch_scc1 L_np_{name}"] + ([] if own else [RD1]) + [(poll_text(vPOLL if own else 0), "mark", name), f"L_np_{name}:"]
spins = []
def poll_test(A, mask, own):
    if own: A(f"v_or_b32 v0, v0, {vr(own)}")
    A(f"v_and_b32 v0, {hex(mask)}, v0"); A(f"v_cmp_ne_u32 vcc, {hex(mask)}, v0")
def poll_check(A, mask, name, own, mark):
    A(f"s_cmp_lg_u32 s{sWAVE}, 0"); A(f"s_cbranch_scc1 L_spun_{name}")
    A(f"s_waitcnt vmcnt({min(63, A.nvm - A.mark[mark])})")
    poll_test(A, mask, own); A(f"s_cbranch_vccnz L_spin_{name}")
    A.label(f"L_spun_{name}")
    spins.append((mask, name, own))
def emit_spins(A):
    for mask, name, own in spins:
        A.label(f"L_spin_{name}")
        A("s_mov_b32 s3, 0x40000")
        A.label(f"L_spinl_{name}")
        if not own: A(RD1)
        A(poll_text(vPOLL if own else 0)); A("s_waitcnt vmcnt(0)")
        poll_test(A, mask, own); A(f"s_cbranch_vccz L_spun_{name}")
        A("s_sub_u32 s3, s3, 1"); A("s_cmp_lg_u32 s3, 0"); A(f"s_cbranch_scc1 L_spinl_{name}")
        A(f"s_branch L_spun_{name}")

PIECE = [[13, 14, 15, 0], [1, 2, 8, 9], [3, 10, 4, 5], [6, 7, 11, 12]]
X_OFF = 40 << 20
aWD = 212
vOQ, vWD, vOWN, vOWX = 16, 18, 28, 29
sWB, sR13, sWM, sWT = sWQW, sXW, 92, 84
def slab_c(j): return ((j & 7) << 13) | ((j >> 3) << 12)
def slab_o(j): return slab_c(j & 1) if O.ofake else slab_c(j)
def w_dma(j, hf, early=False):
    jw = j & 1 if O.wfake else j
    r = [[f"s_add_u32 s{sT2}, s{sWT+(jw&7)}, {(jw>>3)*163840}", f"s_add_u32 m0, s{sWM+(j&3)}, {hf*4096}"]]
    for p in range(5):
        v = vWD + hf * 5 + p
        if early:
            v = vOKV
            r[-1].append(f"v_accvgpr_read_b32 {vr(v)}, {ar(aWD+hf*5+p)}")
        if p == 4: r[-1].append(f"s_add_u32 m0, s{sWM+(j&3)}, 8192")
        r.append([(f"buffer_load_dwordx4 {vr(v)}, {sr(sW)}, s{sT2} offen offset:{(p if p < 4 else hf)*1024}{['', ' sc1', ' nt', ' sc0 sc1', ' sc0'][O.wofl]} lds", "vm", ("W", j))])
    return r
OPH = [2, 3, 7, 0, 1, 4, 5, 6]
def OF(j, kk, qq): return OPH[j & 7] * 32 + (kk * 2 + qq) * 4
def wo_t(part, v, dst):
    if O.wopre != 210: return []
    return [[f"v_bfe_u32 {vr(v)}, {vr(vOO)}, 4, 6", f"v_mul_u32_u24 {vr(v)}, 80, {vr(v)}"], [(f"buffer_load_dword {dst}, {vr(v)}, {sr(sW)}, s{sTW-part} offen", "vm", "WOP")]]
def o_ld(j):
    r = [[f"s_xor_b32 s4, s{sR13}, {slab_o(j)}"]]
    for kk in range(4):
        for qq in range(2):
            r.append([(f"buffer_load_dwordx4 {ar(OF(j,kk,qq),4)}, {vr(vOQ+qq)}, {sr(sX)}, s4 offen offset:{kk*1024}{SC1()}", "vm", ("O", j))])
    r[1] = r[0] + r[1]
    return r[1:]
def o_ld_early(j):
    r = [[f"s_xor_b32 s4, s{sR13}, {slab_o(j)}", f"v_accvgpr_read_b32 {vr(vOKV)}, {ar(aOQ)}"]]
    for qq in range(2):
        for kk in range(4):
            r.append([(f"buffer_load_dwordx4 {ar(OF(j,kk,qq),4)}, {vr(vOKV)}, {sr(sX)}, s4 offen offset:{kk*1024}{SC1()}", "vm", ("O", j))])
        if qq == 0: r.append([f"v_add_u32 {vr(vOKV)}, 0x20000, {vr(vOKV)}"])
    return r
def mbox(op, reg, so, tag):
    r = [[(f"buffer_{op}_dwordx4 {reg(t)}, {vr(vOO)}, {sr(sO)}, s{so if t < 4 else sT} offen offset:{(t&3)*1024} sc1{' nt' if (tag == 'XF' and O.xffl & 1) or (tag == 'XS' and O.xffl & 2) or (tag == 'XL' and O.xffl & 4) else ''}", "vm", tag)] for t in range(5)]
    r[3].append(f"s_add_u32 s{sT}, s{so}, 4096")
    return r
def oproj_early(A, tb):
    lane, t0, t1, t2 = range(tb, tb + 4)
    A(f"s_bfe_u32 s3, s7, 0x10002"); A(f"s_lshr_b32 s4, s7, 3")
    A(f"s_lshr_b32 s{sT}, s{sGI}, 4"); A(f"s_lshl_b32 s{sT}, s{sT}, 22")
    A(f"s_lshl_b32 s{sT2}, s3, 20"); A(f"s_add_u32 s{sT}, s{sT}, s{sT2}"); A(f"s_lshl_b32 s{sT2}, s4, 16"); A(f"s_add_u32 s{sT}, s{sT}, s{sT2}")
    srd(A, sX, sWS, sWS + 1, f"s{sT}", "0xf0000")
    A(f"s_mov_b64 s[{sW}:{sW+1}], s[{sWOI}:{sWOI+1}]"); A(f"s_mov_b32 s{sW+2}, 5242880")
    A(f"s_lshl_b32 s{sT}, s4, 6"); A(f"s_add_u32 s{sT}, s{sT}, s{sWAVE}"); A(f"s_mul_i32 s{sWB}, s{sT}, 40960")
    A(f"s_and_b32 s{sT}, s7, 3"); A(f"s_mul_i32 s{sT}, s{sT}, {256 if O.walign else 320}"); A(f"s_add_u32 s{sWB}, s{sWB}, s{sT}")
    if O.own1: A(f"s_and_b32 s{sR13}, s7, 7"); A(f"s_lshl_b32 s{sR13}, s{sR13}, 13")
    else: A(f"s_mov_b32 s{sR13}, 0")
    for j in range(8):
        A(f"s_xor_b32 s{sT}, s{sR13}, {slab_c(j)}"); A(f"s_mul_i32 s{sT}, s{sT}, 40"); A(f"s_add_u32 s{sWT+j}, s{sT}, s{sWB}")
    A(f"s_lshl_b32 s{sT}, s{sWAVE}, 2")
    for sl in range(4):
        A(f"s_lshr_b32 s{sT2}, {hex(sum(PIECE[sl][w] << (4 * w) for w in range(4)))}, s{sT}"); A(f"s_and_b32 s{sT2}, s{sT2}, 15")
        A(f"s_mul_i32 s{sWM+sl}, s{sT2}, 10240")
    A(f"v_bfe_u32 {vr(lane)}, {vr(vOO)}, 4, 6")
    A(f"s_and_b32 s3, s7, 1"); A(f"s_xor_b32 s4, s4, 1")
    A(f"v_lshrrev_b32 {vr(t0)}, 3, {vr(lane)}"); A(f"v_mul_u32_u24 {vr(t0)}, 1280, {vr(t0)}")
    A(f"v_lshrrev_b32 {vr(t1)}, 3, {vr(lane)}"); A(f"v_and_b32 {vr(t1)}, 6, {vr(t1)}"); A(f"v_and_b32 {vr(t2)}, 7, {vr(lane)}"); A(f"v_xor_b32 {vr(t1)}, {vr(t1)}, {vr(t2)}")
    A(f"v_lshl_add_u32 {vr(t0)}, {vr(t1)}, 4, {vr(t0)}")
    for h in range(2):
        A(f"s_xor_b32 s{sT}, s4, {h}"); A(f"s_lshl_b32 s{sT}, s{sT}, 1"); A(f"s_add_u32 s{sT}, s{sT}, s3"); A(f"s_lshl_b32 s{sT}, s{sT}, 6")
        for rb in range(4):
            A(f"v_add_u32 {vr(t1)}, s{sT}, {vr(t0)}"); A(f"v_accvgpr_write_b32 {ar(aWD+h*5+rb)}, {vr(t1)}")
            if rb < 3: A(f"s_add_u32 s{sT}, s{sT}, 9216")
    A(f"v_lshrrev_b32 {vr(t0)}, 2, {vr(lane)}"); A(f"v_mul_u32_u24 {vr(t0)}, 1280, {vr(t0)}")
    A(f"v_bfe_u32 {vr(t1)}, {vr(lane)}, 4, 1"); A(f"v_xor_b32 {vr(t1)}, s4, {vr(t1)}"); A(f"v_lshlrev_b32 {vr(t1)}, 1, {vr(t1)}")
    A(f"v_and_b32 {vr(t2)}, 3, {vr(lane)}"); A(f"v_xor_b32 {vr(t1)}, {vr(t1)}, {vr(t2)}"); A(f"v_lshl_add_u32 {vr(t0)}, {vr(t1)}, 4, {vr(t0)}")
    A(f"s_xor_b32 s3, s3, 1"); A(f"s_lshl_b32 s3, s3, 8"); A(f"v_add_u32 {vr(t0)}, s3, {vr(t0)}"); A(f"v_add_u32 {vr(t1)}, {20480-1024}, {vr(t0)}")
    A(f"v_accvgpr_write_b32 {ar(aWD+4)}, {vr(t0)}"); A(f"v_accvgpr_write_b32 {ar(aWD+9)}, {vr(t1)}")
    if O.wopre in (200, 250):
        A(f"s_and_b32 s{sT}, s{sGI}, 127"); A(f"s_mul_i32 s{sT}, s{sT}, 10240"); A(f"s_mul_i32 s{sTW}, s{sWAVE}, {1310720 - 524288}"); A(f"s_add_u32 s{sTW}, s{sTW}, s{sT}")
        A(f"s_add_u32 s{sTW-1}, s{sTW}, 9216")
    if O.wopre == 210:
        A(f"s_and_b32 s{sT}, s{sGI}, 127"); A(f"s_lshl_b32 s{sT}, s{sT}, 2"); A(f"s_add_u32 s{sT}, s{sT}, s{sWAVE}")
        A(f"s_lshr_b32 s{sTW}, s{sT}, 5"); A(f"s_mul_i32 s{sTW}, s{sTW}, 327680"); A(f"s_and_b32 s{sT}, s{sT}, 31"); A(f"s_mul_i32 s{sT}, s{sT}, 5120")
        A(f"s_add_u32 s{sTW}, s{sTW}, s{sT}"); A(f"s_add_u32 s{sTW-1}, s{sTW}, 163840")
    A(f"s_and_b32 s{sT}, s{sGI}, 0xf0"); A(f"v_and_b32 {vr(t0)}, 3, {vr(lane)}"); A(f"v_lshlrev_b32 {vr(t0)}, 2, {vr(t0)}"); A(f"v_add_u32 {vr(t0)}, s{sT}, {vr(t0)}")
    A(f"v_accvgpr_write_b32 {ar(aPOLL)}, {vr(t0)}")
    if O.eo:
        A(f"s_and_b32 s{sT}, s{sGI}, 0xf8"); A(f"v_and_or_b32 {vr(t0)}, {vr(t0)}, 4, s{sT}"); A(f"v_accvgpr_write_b32 {ar(aPOLL1)}, {vr(t0)}")
        A(f"s_lshl_b32 s{sT}, s{sWAVE}, 18"); A(f"v_lshl_add_u32 {vr(t0)}, {vr(lane)}, 4, s{sT}"); A(f"v_accvgpr_write_b32 {ar(aOQ)}, {vr(t0)}")
    if O.smf:
        A(f"v_lshrrev_b32 {vr(t0)}, 4, {vr(lane)}"); A(f"v_xor_b32 {vr(t0)}, {vr(t0)}, {vr(lane)}"); A(f"v_bfe_i32 {vr(t0)}, {vr(t0)}, 1, 1")
        A(f"v_bfi_b32 {vr(t0)}, {vr(t0)}, 0, s{sT3}")
        for q in range(4): A(f"v_accvgpr_write_b32 {ar(aONE+q)}, {vr(t0)}")
        A(f"v_bfe_i32 {vr(t0)}, {vr(lane)}, 0, 1"); A(f"v_and_b32 {vr(t0)}, 0xaaaaaaaa, {vr(t0)}"); A(f"v_or_b32 {vr(vIDX)}, 0x44444444, {vr(t0)}")
def oproj_setup(A):
    vTMP = vPOLL
    A(f"v_accvgpr_read_b32 {vr(vPOLL)}, {ar(aPOLL)}")
    A(f"s_lshl_b32 s{sT}, s{sWAVE}, 18"); A(f"v_and_b32 {vr(vOQ)}, 0x3ff, {vr(vOO)}")
    A(f"v_add_u32 {vr(vOQ)}, s{sT}, {vr(vOQ)}"); A(f"v_add_u32 {vr(vOQ+1)}, 0x20000, {vr(vOQ)}")
    for p in range(10): A(f"v_accvgpr_read_b32 {vr(vWD+p)}, {ar(aWD+p)}")
    A(f"s_and_b32 s{sT}, s{sGI}, 0xfc"); A(f"s_and_b32 s3, s{sGI}, 3"); A(f"s_lshl_b32 s3, s3, 3"); A(f"s_lshl_b32 s3, 0xff, s3")
    A(f"v_cmp_eq_u32 vcc, s{sT}, {vr(vTMP)}"); A(f"v_mov_b32 {vr(vOWN)}, s3"); A(f"s_xor_b32 s{sT}, s{sT}, 8"); A(f"v_cndmask_b32 {vr(vOWN)}, 0, {vr(vOWN)}, vcc")
    A(f"v_cmp_eq_u32 vcc, s{sT}, {vr(vTMP)}"); A(f"s_not_b32 s3, s3"); A(f"v_mov_b32 {vr(vOWX)}, s3"); A(f"v_cndmask_b32 {vr(vOWX)}, -1, {vr(vOWX)}, vcc")
    A(f"v_xor_b32 {vr(31)}, s{sGI}, {vr(vTMP)}"); A(f"v_bfe_i32 {vr(31)}, {vr(31)}, 3, 1")
    A(f"v_and_or_b32 {vr(vOWX)}, {vr(vOWX)}, {vr(31)}, {vr(vOWN)}"); A(f"v_or_b32 {vr(vOWN)}, {vr(vOWN)}, {vr(31)}")

def oproj(A):
    vWR = 200
    vACC, vWF = 40, 120
    def ACC(h, qq, nb): return vACC + h * 40 + (qq * 5 + nb) * 4
    def WF(par, f): return vWF + par * 40 + f * 4
    A.c("---- O projection")
    lane, t0, t1 = 38, 39, 37
    A(f"v_bfe_u32 {vr(lane)}, {vr(vOO)}, 4, 6"); A(f"v_lshrrev_b32 {vr(t0)}, 5, {vr(lane)}"); A(f"v_lshlrev_b32 {vr(t0)}, 10, {vr(t0)}")
    A(f"v_bfe_u32 {vr(t1)}, {vr(lane)}, 2, 3"); A(f"v_lshl_add_u32 {vr(t0)}, {vr(t1)}, 7, {vr(t0)}")
    A(f"v_and_b32 {vr(t1)}, 3, {vr(lane)}"); A(f"v_lshl_add_u32 {vr(t0)}, {vr(t1)}, 3, {vr(t0)}")
    A(f"v_bfe_u32 {vr(t1)}, {vr(lane)}, 3, 2"); A(f"v_lshl_add_u32 {vr(vWR)}, {vr(t1)}, 5, {vr(t0)}")
    for nb in range(1, 4): A(f"v_xor_b32 {vr(vWR+3*nb)}, {nb*32}, {vr(vWR)}")
    A(f"v_lshrrev_b32 {vr(t0)}, 2, {vr(lane)}"); A(f"v_lshlrev_b32 {vr(t0)}, 6, {vr(t0)}"); A(f"v_and_b32 {vr(t1)}, 3, {vr(lane)}"); A(f"v_lshl_add_u32 {vr(t0)}, {vr(t1)}, 3, {vr(t0)}")
    A(f"v_bfe_u32 {vr(t1)}, {vr(lane)}, 4, 1"); A(f"v_lshl_add_u32 {vr(vWR+12)}, {vr(t1)}, 5, {vr(t0)}"); A(f"v_xor_b32 {vr(vWR+15)}, 32, {vr(vWR+12)}")
    for q in range(6):
        for w in (2, 1): A(f"v_add_u32 {vr(vWR+3*q+w)}, {51200*w}, {vr(vWR+3*q)}")
    nd_ = O.ndef; nf = 16 - nd_
    steps = [(j, kk, (0, 1)) for j in range(nf) for kk in range(4)] + [(j, kk, (h,)) for h in range(2) for j in range(nf, 16) for kk in range(4)]
    def w_rd(i):
        j, kk, hs = steps[i]
        pc = PIECE[j & 3][kk]; w = min(pc // 5, 2)
        return [(f"ds_read_b64_tr_b16 {vr(WF(i&1,f*5+nb)+2*jh,2)}, {vr(vWR+3*(nb if nb < 4 else 4+h)+w)} offset:{pc*10240-w*51200+(h*4096+jh*2048 if nb < 4 else 8192+jh*1024)}", "ds", ("WF", i & 1, f * 5 + nb))
                for f, h in enumerate(hs) for nb in range(5) for jh in range(2) if not (O.lfake and f == 1)]
    for ops in o_ld(3):
        for o in ops: A.op(o)
    A.wait(vm=[("W", 0), ("O", 0)]); A("s_barrier")
    for o in w_rd(0): A.op(o)
    mf = []; need = {}; gaps = {}; pre = {}; start = []; bars = {}
    for i, (j, kk, hs) in enumerate(steps):
        start.append(len(mf))
        for f, h in enumerate(hs):
            for nb in range(5):
                if nb in (0, 2): need[len(mf)] = [("WF", i & 1, f * 5 + q) for q in ((0, 1) if nb == 0 else (2, 3, 4))]
                for qq in ((1, 0) if (f + nb) & 1 and O.snake & 8 else (0, 1)):
                    c = "0" if (j == 0 and kk == 0) else vr(ACC(h, qq, nb), 4)
                    mf.append(f"{MF} {vr(ACC(h,qq,nb),4)}, {vr(WF(i&1,f*5+nb),4)}, {ar(OF(j,kk,qq),4)}, {c}")
    n = len(mf); start.append(n)
    gaps = {g: [] for g in range(n)}
    iB = len(steps) - 4 * nd_; gB = start[iB]
    for i, (j, kk, hs) in enumerate(steps):
        g0 = start[i]; ln = start[i + 1] - g0; lo = 0
        if kk == 3 and i < iB and j + 1 < 16:
            lo = O.obar if ln == 20 else 2
            bars[j] = g0 + lo
            p = [("", "wait", dict(vm=[("W", j + 1), ("O", j + 1)] + (["ST"] if j == O.pub2 else []), dsn=0 if j + 4 < 16 else None))]
            if j == 4: p.append(("", "call", lambda A_: poll_check(A_, 0x03030303, "u2", vOWN, "p2")))
            p.append("s_barrier")
            if j == O.pub2: p += flag_ops(3, "f2")
            if j == 3: p += poll_ops("p2")
            pre[g0 + lo] = p
        if i + 1 < len(steps):
            rd = w_rd(i + 1); np_ = len(rd) // 2
            stp = 2 if lo + 2 * np_ <= ln + 1 else 1.5
            if O.lfake and ln == 20:
                for q in range(len(rd)): gaps[g0 + lo + int(q * (2 if lo == 0 else 1.5))] += rd[q:q + 1]
            else:
                for q in range(np_): gaps[g0 + lo + int(q * stp)] += rd[2 * q:2 * q + 2]
    def spread(mem, g, sp, dense=False, dry=False):
        for ops in mem:
            while gaps[g] or g + 1 in pre or (g + 1 in need and not dense): g += 1
            if not dry: gaps[g] += ops
            g += sp if any(is_vm(o) for o in ops) else 1
        return g
    spread(w_dma(3, 0) + w_dma(3, 1), 1, 2)
    for j in range(12):
        mem = w_dma(j + 4, 0) + ([] if O.whalf else w_dma(j + 4, 1)) + o_ld(j + 4) + (wo_t(1, 31, vr(31)) if j == O.wo1 else [])
        sp = max([2] + [q for q in range(2, O.osp + 1) if spread(mem, bars[j], q, dry=True) <= bars[j + 1]])
        dn = spread(mem, bars[j], sp, dry=True) > bars[j + 1]
        assert spread(mem, bars[j], sp, dn) <= bars[j + 1], j
    vXS, vXR = 220, vACC
    xs = []
    st = mbox("store", lambda t: vr(vXS + 4 * t, 4), sXO, "XS")
    for t in (0, 2, 3, 1, 4):
        xs += [[f"v_cvt_pk_bf16_f32 {vr(vXS+4*t+q)}, {vr(vACC+8*t+2*q)}, {vr(vACC+8*t+2*q+1)}" for q in range(2 * u, 2 * u + 2)] for u in range(2)]
        if t == 4: xs.append([st[3][1]])
        xs.append(st[t][:1])
    e = spread(xs, gB + 1, 1, True)
    xl = mbox("load", lambda t: vr(vXR + 4 * t, 4), sXI, "XL")
    assert e < n - O.xld
    spread(xl, n - O.xld, 1, True)
    for j in (4, 9): pre[start[4 * j]] = pre.get(start[4 * j], []) + [("", "call", lambda A_, j=j: stamp(A_, f"slab{j}", 2))]
    for j in (1, 4, 6, 12): pre[start[4 * j]] = pre.get(start[4 * j], []) + [("", "call", lambda A_, j=j: stamp(A_, f"slab{j}", 6))]
    pre[gB] = pre.get(gB, []) + [("", "call", lambda A_: stamp(A_, "phaseB", 5))]
    interleave(A, mf, gaps, pre=pre, need=need)
    stamp(A, "oproj loop done"); stamp(A, "oloop", 5); stamp(A, "oloop", 6)
    A(f"v_and_b32 {vr(t0)}, 15, {vr(lane)}"); A(f"v_mul_u32_u24 {vr(t0)}, 2560, {vr(t0)}"); A(f"v_lshrrev_b32 {vr(t1)}, 4, {vr(lane)}")
    A(f"s_mul_i32 s{sT}, s{sWAVE}, {32*2560}"); A(f"s_and_b32 s3, s7, 1"); A(f"s_lshr_b32 s4, s7, 3")
    A(f"s_lshl_b32 s{sT2}, s4, 1"); A(f"s_add_u32 s{sT2}, s{sT2}, s3"); A(f"s_lshl_b32 s{sT2}, s{sT2}, 6"); A(f"s_add_u32 s{sT2}, s{sT2}, s{sT}")
    A(f"s_xor_b32 s3, s3, 1"); A(f"s_lshl_b32 s3, s3, 3"); A(f"s_add_u32 s3, s3, s4"); A(f"s_lshl_b32 s3, s3, 5"); A(f"s_add_u32 s3, s3, s{sT}")
    A(f"v_lshl_add_u32 {vr(vOQ+1)}, {vr(t1)}, 3, {vr(t0)}"); A(f"v_add_u32 {vr(vOQ+1)}, s3, {vr(vOQ+1)}")
    A(f"v_bfe_u32 {vr(t1)}, {vr(lane)}, 4, 1"); A(f"v_lshl_add_u32 {vr(t0)}, {vr(t1)}, 5, {vr(t0)}")
    A(f"v_lshrrev_b32 {vr(t1)}, 5, {vr(lane)}"); A(f"v_lshl_add_u32 {vr(vOQ)}, {vr(t1)}, 4, {vr(t0)}"); A(f"v_add_u32 {vr(vOQ)}, s{sT2}, {vr(vOQ)}")
    def xtest():
        A(f"v_max3_u32 {vr(t0)}, {vr(vXR)}, {vr(vXR+1)}, {vr(vXR+2)}"); A(f"v_max3_u32 {vr(t1)}, {vr(vXR+3)}, {vr(vXR+4)}, {vr(vXR+5)}")
        for q in range(6, 20, 2): A(f"v_max3_u32 {vr(t0 if q & 2 else t1)}, {vr(t0 if q & 2 else t1)}, {vr(vXR+q)}, {vr(vXR+q+1)}")
        A(f"v_max_u32 {vr(t0)}, {vr(t0)}, {vr(t1)}"); A(f"v_cmp_eq_u32 vcc, -1, {vr(t0)}")
    A("s_mov_b32 s4, 0x40000")
    A.label("L_xpoll")
    A("s_waitcnt vmcnt(0)"); A.vm = []
    xtest(); A("s_cbranch_vccz L_xdone")
    for ops in xl:
        for o in ops: A(o if isinstance(o, str) else o[0])
    A("s_sub_u32 s4, s4, 1"); A("s_cmp_lg_u32 s4, 0"); A("s_cbranch_scc1 L_xpoll")
    A("s_waitcnt vmcnt(0)")
    A.label("L_xdone")
    stamp(A, "xflag", 5)
    A(f"s_mov_b32 s{sT}, {16*2560}"); A("s_movk_i32 s3, 0x3f80"); A("s_mov_b32 s4, 0x3f800000")
    for qq in range(2):
        d = vWF + qq * 10; ac = ACC(1, qq, 0)
        for i in range(20): A(f"v_dot2_f32_bf16 {vr(ac+i)}, {vr(vXR+qq*10+i//2)}, s{3+(i&1)}, {vr(ac+i)}")
        for i in range(10): A(f"v_cvt_pk_bf16_f32 {vr(d+i)}, {vr(ac+2*i)}, {vr(ac+2*i+1)}")
        so = f"s{sT}" if qq else "0"
        A("s_nop 0")
        for P_ in range(2):
            for q in range(2): A(f"v_permlane16_swap_b32 {vr(d+4*P_+q)}, {vr(d+4*P_+2+q)}")
        A.op((f"buffer_store_dwordx2 {vr(d+8,2)}, {vr(vOQ+1)}, {sr(sOUT)}, {so} offen{OFL()}", "vm", "OUT"))
        A.op((f"buffer_store_dwordx4 {vr(d,4)}, {vr(vOQ)}, {sr(sOUT)}, {so} offen{OFL()}", "vm", "OUT"))
        A.op((f"buffer_store_dwordx4 {vr(d+4,4)}, {vr(vOQ)}, {sr(sOUT)}, {so} offen offset:64{OFL()}", "vm", "OUT"))

def gen_kernel(k):
    A = Asm()
    A("s_cmp_ge_u32 s2, 256"); A("s_cbranch_scc1 L_end")
    stamp(A, "t0")
    if O.cpre:
        A("s_getpc_b64 s[84:85]"); A("s_and_b32 s84, s84, 0xffffff00"); A("s_and_b32 s85, s85, 0xffff")
        A("s_mov_b32 s86, L_codeend-attn_kernel"); A("s_mov_b32 s87, 0x20000")
        A("s_lshr_b32 s3, s2, 3"); A(f"s_lshl_b32 s3, s3, {13 if O.u0 else 12}"); A(f"v_lshlrev_b32 v4, {5 if O.u0 else 4}, v0")
        A.op(("buffer_load_dwordx4 v[252:255], v4, s[84:87], s3 offen", "vm", "CODE"))
        A("s_nop 4")
    A("s_load_dwordx16 s[64:79], s[0:1], 0")
    A("s_load_dwordx8 s[80:87], s[0:1], 64")
    A(f"s_load_dwordx2 s[{sWS}:{sWS+1}], s[0:1], 96")
    A("s_and_b32 s3, s2, 7"); A("s_lshr_b32 s4, s2, 3"); A("s_lshr_b32 s5, s3, 2")
    if O.map2:
        A("s_bfe_u32 s6, s3, 0x10001"); A("s_lshl_b32 s6, s6, 2"); A("s_lshr_b32 s7, s4, 3"); A("s_add_u32 s6, s6, s7")
        A("s_and_b32 s7, s3, 1"); A("s_lshl_b32 s7, s7, 3"); A("s_and_b32 s4, s4, 7"); A("s_add_u32 s7, s7, s4")
    else:
        A("s_and_b32 s6, s3, 3"); A("s_lshl_b32 s6, s6, 1"); A("s_lshr_b32 s7, s4, 4"); A("s_add_u32 s6, s6, s7")
        A("s_and_b32 s7, s4, 15")
    vAW, vOW, vOX, vAX = 16, 24, 28, 36
    lane, g, i, r, t0, t1, t2, t3, h = range(48, 57)
    A(f"v_lshrrev_b32 {vr(t0)}, 6, v0"); A(f"v_and_b32 {vr(lane)}, 63, v0"); A(f"v_readfirstlane_b32 s{sWAVE}, {vr(t0)}")
    A(f"v_lshrrev_b32 {vr(g)}, 4, {vr(lane)}"); A(f"v_and_b32 {vr(i)}, 15, {vr(lane)}"); A(f"v_lshrrev_b32 {vr(h)}, 5, {vr(lane)}")
    A(f"s_and_b32 s{sT2}, s{sWAVE}, 1"); A(f"s_lshl_b32 s{sT2}, s{sT2}, 3")
    A(f"s_lshl_b32 s{sT}, s{sWAVE}, 16")
    A(f"v_and_b32 {vr(t2)}, 31, {vr(lane)}"); A(f"v_xor_b32 {vr(t2)}, s{sT2}, {vr(t2)}")
    for p in range(2):
        A(f"v_add_u32 {vr(t0)}, {2*p}, {vr(h)}"); A(f"v_lshlrev_b32 {vr(t1)}, 1, {vr(t0)}"); A(f"v_xor_b32 {vr(t1)}, {vr(t1)}, {vr(t2)}")
        A(f"v_lshlrev_b32 {vr(t1)}, 4, {vr(t1)}"); A(f"v_lshl_add_u32 {vr(t1)}, {vr(t0)}, 13, {vr(t1)}")
        A(f"v_add_u32 {vr(vOW+p)}, s{sT}, {vr(t1)}")
        if p: A(f"v_subrev_u32 {vr(vOW+p)}, 1024, {vr(vOW+p)}")
        A(f"v_add_u32 {vr(vOW+p+2)}, {4*8192-2048}, {vr(vOW+p)}")
    A(f"s_mul_i32 s{sT}, s{sWAVE}, {64*1280}")
    A(f"v_lshrrev_b32 {vr(t0)}, 3, {vr(lane)}"); A(f"v_mul_u32_u24 {vr(t0)}, 1280, {vr(t0)}"); A(f"v_add_u32 {vr(t0)}, s{sT}, {vr(t0)}")
    A(f"v_and_b32 {vr(t1)}, 7, {vr(lane)}"); A(f"v_xor_b32 {vr(t1)}, {vr(t1)}, {vr(g)}")
    A(f"v_lshl_add_u32 {vr(vOX)}, {vr(t1)}, 4, {vr(t0)}"); A(f"v_xor_b32 {vr(t1)}, 4, {vr(t1)}"); A(f"v_lshl_add_u32 {vr(t0)}, {vr(t1)}, 4, {vr(t0)}")
    A(f"v_add_u32 {vr(vOX+1)}, {10240-1024}, {vr(t0)}")
    for p in range(2, 8): A(f"v_add_u32 {vr(vOX+p)}, {(p&~1)*10240 - ((p&3)&~1)*1024}, {vr(vOX+(p&1))}")
    A(f"s_lshl_b32 s{sKVW}, s{sWAVE}, 12"); A(f"s_add_u32 s{sVVW}, s{sKVW}, {VBASE}"); A(f"s_add_u32 s{sWQW}, s{sKVW}, {WQBASE}")
    A(f"s_lshl_b32 s{sXW}, s{sWAVE}, 13")
    A(f"s_lshl_b32 s4, s6, 4"); A(f"s_add_u32 s4, s4, s7")
    A(f"s_lshl_b32 s{sT}, s7, 9"); A(f"s_sub_u32 s{sW+2}, {640*8192}, s{sT}"); A(f"s_mov_b32 s{sW+3}, 0x20000")
    A(f"s_mul_i32 s{sT3}, s6, 327680"); A(f"s_mov_b32 s{sX+2}, 327680"); A(f"s_mov_b32 s{sX+3}, 0x20000")
    A("s_cmp_eq_u32 s5, 1")
    A("s_waitcnt lgkmcnt(0)")
    if O.stamps and O.stm == 1: A("s_memtime s[50:51]"); A("s_memrealtime s[98:99]"); nstamp[0] += 1; stamp_names.append("karg")
    for q in (3, 0, 1, 2, 4): A(f"s_cselect_b64 s[{64+2*q}:{65+2*q}], s[{74+2*q}:{75+2*q}], s[{64+2*q}:{65+2*q}]")
    A(f"s_add_u32 s{sW}, s70, s{sT}"); A(f"s_addc_u32 s{sW+1}, s71, 0"); A(f"s_and_b32 s{sW+1}, s{sW+1}, 0xffff")
    A(f"s_add_u32 s{sX}, s64, s{sT3}"); A(f"s_addc_u32 s{sX+1}, s65, 0"); A(f"s_and_b32 s{sX+1}, s{sX+1}, 0xffff")
    def AF(buf, nb): return buf * 64 + nb * 4
    def XR(G, ks, qb): return 128 + (G & 1) * 32 + (ks * 4 + qb) * 4
    def ACC(nb, qb): return vr(48 + (nb * 4 + qb) * 4, 4) if nb < 13 else ar(208 + ((nb - 13) * 4 + qb) * 4, 4)
    def wq_dma(kk):
        return [[f"s_add_u32 m0, s{sWQW}, {(kk&3)*16384}", f"s_mov_b32 s{sT2}, {kk*262144}"]] + \
               [[(f"buffer_load_dwordx4 {vr(vOW+p)}, {sr(sW)}, s{sT2} offen offset:{p*1024}{' nt' if O.w_nt else ''} lds", "vm", ("W", kk))] for p in range(4)]
    def x_dma(G):
        r = [[f"s_add_u32 m0, s{sXW}, {XB[G&1]}", f"s_movk_i32 s{sT2}, {G*128}"]]
        r += [[(f"buffer_load_dwordx4 {vr(vOX+p)}, {sr(sX)}, s{sT2} offen offset:{(p&3)*1024}{' nt' if O.x_nt else ''} lds", "vm", ("X", G))] for p in range(8)]
        r[4].append(f"s_add_u32 m0, s{sXW}, {XB[G&1]+4096}")
        return r
    def flat(groups):
        for grp in groups:
            for ops in grp:
                for o in ops: A.op(o)
    flat([wq_dma(0), x_dma(0), wq_dma(1), x_dma(1)])
    def kv_groups(kind, tile):
        su, pcs, po = dma_k(tile, (kind, tile)) if kind == "K" else dma_v(tile, (kind, tile))
        return [[su]] + [[p] for p in pcs[:3]] + [[pcs[3], po]]
    A(f"s_mov_b32 s{sWOI}, s72"); A(f"s_and_b32 s{sWOI+1}, s73, 0xffff")
    A(f"s_lshl_b32 s{sT}, s4, 19")
    srd(A, sK, 66, 67, f"s{sT}", "0x80000")
    srd(A, sV, 68, 69, f"s{sT}", "0x80000")
    A(f"s_lshl_b32 s{sGI}, s5, 3"); A(f"s_add_u32 s{sGI}, s{sGI}, s6"); A(f"s_lshl_b32 s{sT2}, s{sGI}, 22")
    srd(A, sO, sWS, sWS + 1, f"s{sT2}", 0x200000 + 16 * 20480)
    A(f"s_lshl_b32 s{sT}, s6, 1"); A(f"s_bfe_u32 s{sT2}, s7, 0x10002"); A(f"s_add_u32 s{sT}, s{sT}, s{sT2}"); A(f"s_mul_i32 s{sT}, s{sT}, {128*2560}")
    A(f"s_mul_i32 s{sT2}, s5, 1280"); A(f"s_add_u32 s{sT}, s{sT}, s{sT2}"); A(f"s_and_b32 s{sT2}, s7, 3"); A(f"s_mul_i32 s{sT2}, s{sT2}, 320")
    A(f"s_add_u32 s{sT}, s{sT}, s{sT2}")
    if O.stamps and O.stm == 1: A("s_waitcnt lgkmcnt(0)"); A("s_mov_b32 s66, s98"); A("s_mov_b32 s67, s99")
    srd(A, sOUT, 84, 85, f"s{sT}", 127 * 2560 + 320)
    srd(A, sCNT, 86, 87, 0, 256)
    A(f"s_lshl_b32 s{sGI}, s{sGI}, 4"); A(f"s_add_u32 s{sGI}, s{sGI}, s7")
    A(f"s_lshl_b32 s{sOOF}, s7, 13")
    A(f"s_mov_b32 s{sKOFF}, 0"); A(f"s_mov_b32 s{sVOFF}, 0"); A(f"s_mov_b32 s{sSTUB}, 99")
    A(f"s_mov_b32 s{sTHR}, {hex(f32bits(2.0**O.thr_log2 if not O.forcefb else -1.0))}")
    A(f"s_mov_b32 s{sSC}, {hex(f32bits(128**-0.5*math.log2(math.e)))}"); A(f"s_mov_b32 s{sSC+1}, s{sSC}")
    A(f"v_lshrrev_b32 {vr(r)}, 2, {vr(i)}")
    A(f"v_and_b32 {vr(t0)}, 1, {vr(g)}"); A(f"v_lshl_add_u32 {vr(t0)}, {vr(t0)}, 2, {vr(r)}")
    A(f"v_lshl_add_u32 {vr(t1)}, {vr(g)}, 3, {vr(r)}"); A(f"v_lshlrev_b32 {vr(t1)}, 9, {vr(t1)}")
    A(f"v_and_b32 {vr(t2)}, 3, {vr(i)}"); A(f"v_lshl_add_u32 {vr(t1)}, {vr(t2)}, 3, {vr(t1)}"); A(f"v_add_u32 {vr(t1)}, {WQBASE}, {vr(t1)}")
    for n3 in range(8):
        A(f"v_xor_b32 {vr(t3)}, {n3}, {vr(t0)}"); A(f"v_lshl_add_u32 {vr(vAW+n3)}, {vr(t3)}, 5, {vr(t1)}")
    A(f"v_lshrrev_b32 {vr(t0)}, 1, {vr(i)}"); A(f"v_xor_b32 {vr(t0)}, {vr(t0)}, {vr(g)}")
    A(f"v_lshlrev_b32 {vr(t1)}, 7, {vr(i)}"); A(f"v_add_u32 {vr(t1)}, s{sXW}, {vr(t1)}")
    A(f"v_lshl_add_u32 {vr(vAX)}, {vr(t0)}, 4, {vr(t1)}"); A(f"v_xor_b32 {vr(vAX+1)}, 64, {vr(vAX)}")
    A(f"v_lshl_add_u32 {vr(t1)}, {vr(r)}, 4, {vr(t2)}"); A(f"v_lshlrev_b32 {vr(t1)}, 8, {vr(t1)}")
    A(f"v_and_b32 {vr(t0)}, 1, {vr(r)}"); A(f"v_lshlrev_b32 {vr(t0)}, 3, {vr(t0)}"); A(f"v_lshl_add_u32 {vr(t0)}, {vr(t2)}, 1, {vr(t0)}")
    A(f"v_lshrrev_b32 {vr(t3)}, 3, {vr(i)}"); A(f"v_add_u32 {vr(t0)}, {vr(t0)}, {vr(t3)}")
    A(f"v_and_b32 {vr(t3)}, 1, {vr(g)}"); A(f"v_lshl_add_u32 {vr(t3)}, {vr(t3)}, 1, {vr(h)}"); A(f"v_xor_b32 {vr(t0)}, {vr(t0)}, {vr(t3)}")
    A(f"v_lshl_add_u32 {vr(vAK)}, {vr(t0)}, 4, {vr(t1)}")
    for s in range(1, 4): A(f"v_xor_b32 {vr(vAK+s)}, {s*64}, {vr(vAK)}")
    A(f"v_lshl_add_u32 {vr(t1)}, {vr(g)}, 4, {vr(r)}"); A(f"v_lshlrev_b32 {vr(t1)}, 8, {vr(t1)}")
    A(f"v_and_b32 {vr(t0)}, 1, {vr(i)}"); A(f"v_lshl_add_u32 {vr(t1)}, {vr(t0)}, 3, {vr(t1)}"); A(f"v_add_u32 {vr(t1)}, {VBASE}, {vr(t1)}")
    A(f"v_and_b32 {vr(t0)}, 1, {vr(g)}"); A(f"v_lshlrev_b32 {vr(t0)}, 3, {vr(t0)}"); A(f"v_lshl_add_u32 {vr(t0)}, {vr(r)}, 1, {vr(t0)}")
    A(f"v_add_u32 {vr(t0)}, {vr(t0)}, {vr(h)}"); A(f"v_bfe_u32 {vr(t3)}, {vr(i)}, 1, 1"); A(f"v_xor_b32 {vr(t0)}, {vr(t0)}, {vr(t3)}")
    A(f"v_lshl_add_u32 {vr(vAV)}, {vr(t0)}, 4, {vr(t1)}")
    for db in range(1, 8): A(f"v_xor_b32 {vr(vAV+db)}, {db*32}, {vr(vAV)}")
    A(f"s_and_b32 s{sT}, s{sWAVE}, 1"); A(f"s_lshl_b32 s{sT}, s{sT}, 3"); A(f"s_lshr_b32 s{sT2}, s{sWAVE}, 1"); A(f"s_add_u32 s{sT}, s{sT}, s{sT2}")
    A(f"v_lshlrev_b32 {vr(t0)}, 1, {vr(g)}"); A(f"v_add_u32 {vr(t0)}, s{sT}, {vr(t0)}"); A(f"v_xor_b32 {vr(t0)}, {vr(t0)}, {vr(i)}")
    A(f"v_lshlrev_b32 {vr(t0)}, 4, {vr(t0)}"); A(f"v_lshl_add_u32 {vr(t0)}, {vr(g)}, 8, {vr(t0)}"); A(f"v_add_u32 {vr(vOKV)}, s{sKVW}, {vr(t0)}")
    A(f"s_lshl_b32 s{sT}, s{sWAVE}, 19"); A(f"v_lshlrev_b32 {vr(t0)}, 4, {vr(lane)}"); A(f"v_add_u32 {vr(vOO)}, s{sT}, {vr(t0)}")
    if O.fuse:
        A(f"s_mul_i32 s{sT}, s{sWAVE}, {5120 - (1 << 19)}"); A(f"s_add_u32 s{sT}, s{sT}, 0x200000")
        A(f"s_mul_i32 s{sXI}, s7, 20480"); A(f"s_add_u32 s{sXI}, s{sXI}, s{sT}")
        A(f"s_xor_b32 s{sXO}, s7, 8"); A(f"s_mul_i32 s{sXO}, s{sXO}, 20480"); A(f"s_add_u32 s{sXO}, s{sXO}, s{sT}")
        for q in range(4): A(f"v_mov_b32 {vr(40+q)}, -1")
    def wo_touch(kk):
        if O.wopre != 100 + kk: return []
        return [[f"s_mov_b32 s{sWOI+2}, 5242880", f"s_mov_b32 s{sWOI+3}, 0x20000", f"s_and_b32 s3, s{sGI}, 127", "s_lshl_b32 s3, s3, 2", f"s_add_u32 s3, s3, s{sWAVE}", "s_mul_i32 s3, s3, 10240",
                 (f"buffer_load_dword v0, {vr(45)}, {sr(sWOI)}, s3 offen", "vm", "WOP")], ["s_add_u32 s3, s3, 5120", (f"buffer_load_dword v0, {vr(45)}, {sr(sWOI)}, s3 offen", "vm", "WOP")]]
    if 100 <= O.wopre <= 120: A(f"v_mul_u32_u24 {vr(45)}, 80, {vr(lane)}")
    if 0 <= O.wopre < 100:
        A(f"s_mov_b32 s{sWOI+2}, 5242880"); A(f"s_mov_b32 s{sWOI+3}, 0x20000")
        A(f"s_lshl_b32 s{sT}, s4, 2"); A(f"s_add_u32 s{sT}, s{sT}, s{sWAVE}"); A(f"s_mul_i32 s{sT}, s{sT}, 10240")
        A(f"v_lshlrev_b32 {vr(t0)}, 4, {vr(lane)}"); A(f"v_add_u32 {vr(vTMP)}, s{sT}, {vr(t0)}")
    L2S = [int(x) for x in O.l2s.split(',')] if O.l2s else []
    def l2t(kk): return [[f"s_mov_b32 s3, {(4 - (q & 1)) * 16384 + (q >> 1) * (256 << O.l2sh)}", (f"buffer_load_dword {ar(192)}, {vr(44)}, {sr(sV if q & 1 else sK)}, s3 offen{['', ' nt', ' sc1', ' sc0 sc1'][O.l2nt]}", "vm", "L2")] for q, at in enumerate(L2S) if at == kk]
    if L2S: A(f"v_lshlrev_b32 {vr(44)}, {O.l2sh}, {vr(lane)}"); A(f"s_lshl_b32 s{sT}, s{sWAVE}, {O.l2sh+6}"); A(f"v_add_u32 {vr(44)}, s{sT}, {vr(44)}")
    if O.kv0 < 0: flat([kv_groups("K", 0), kv_groups("V", 0)])
    stamp(A, "setup done", 1)
    def wo_pre(i, kk):
        n = 10 // O.wopn; r = []
        for q in range(i * n, (i + 1) * n):
            if q == i * n or q % 4 == 0:
                r.append([f"s_add_u32 m0, s{sKVW}, {0 if kk < 15 else 131072}", f"s_movk_i32 s{sT2}, {(q & ~3)*1024}"])
            r.append([(f"buffer_load_dwordx4 {vr(vTMP)}, {sr(sWOI)}, s{sT2} offen offset:{(q&3)*1024}{' nt' if O.wopre_nt else ''} lds", "vm", "WOP")])
        return r
    if O.wopre == 99: flat([wo_pre(0, 0)])
    def a_reads(kk):
        return [(f"ds_read_b64_tr_b16 {ar(AF(kk&1,nb)+2*jh,2)}, {vr(vAW+(nb&7))} offset:{(kk&3)*16384+jh*2048+(nb>>3)*256}", "ds", "A")
                for nb in range(16) for jh in range(2)]
    def x_reads(G):
        return [(f"ds_read_b128 {ar(XR(G,ks,qb),4)}, {vr(vAX+ks)} offset:{XB[G&1]+qb*2048}", "ds", "XR") for ks in range(2) for qb in range(4)]
    A.wait(vm=[("W", 0), ("X", 0)]); A("s_barrier")
    stamp(A, "wq0 landed"); stamp(A, "wq0 landed", 1); stamp(A, "wq0 landed", 3)
    for o in x_reads(0) + a_reads(0): A.op(o)
    flat([wq_dma(2), wq_dma(3)])
    cvl = []; C = cvl.append; cvdone = [0]
    def conv_front(hd, s, qb, T0, T1, tb):
        for T in (T0, T1):
            if O.cv19 and hd * 16 + s * 4 + qb < O.cvn:
                for q in range(4): C(f"v_mul_f32 {vr(T+q)}, s{sSC}, {vr(T+q)}")
                continue
            for q in range(2): C(f"v_pk_mul_f32 {vr(T+2*q,2)}, {vr(T+2*q,2)}, s[{sSC}:{sSC+1}]")
        for q in range(2): C(f"v_cvt_pk_bf16_f32 {vr(tb+q)}, {vr(T0+2*q)}, {vr(T0+2*q+1)}")
        for q in range(2): C(f"v_cvt_pk_bf16_f32 {vr(tb+2+q)}, {vr(T1+2*q)}, {vr(T1+2*q+1)}")
    def conv_back(hd, s, qb, tb):
        for q in range(2): C(f"v_permlane16_swap_b32 {vr(tb+q)}, {vr(tb+2+q)}")
    def conv_wr(hd, s, qb, tb):
        for q in range(4): C(f"v_accvgpr_write_b32 {ar(hd*64+(qb*4+s)*4+q)}, {vr(tb+q)}")
    jobs = []
    for pr in range(8):
        for qb in range(4):
            jobs.append((pr, qb))
    pend = []
    for n_, (pr, qb) in enumerate(jobs):
        if pr == 6 and qb == 0:
            for q in range(48): C(f"v_accvgpr_read_b32 {vr(48+q)}, {ar(208+q)}")
        def loc(nb): return 48 + (nb * 4 + qb) * 4 if nb < 13 else 48 + ((nb - 13) * 4 + qb) * 4
        tb = 16 + (n_ % 4) * 4
        mark = len(cvl)
        conv_front(pr >> 2, pr & 3, qb, loc(2 * pr), loc(2 * pr + 1), tb)
        cvl[mark] = [cvl[mark], 8 * pr + 7 + 8 if pr < 4 else 99]
        pend.append((pr >> 2, pr & 3, qb, tb))
        if len(pend) >= 2: conv_back(*pend[-2])
        if len(pend) >= 3: conv_wr(*pend[-3])
    C("s_nop 1"); conv_back(*pend[-1]); conv_wr(*pend[-2]); C("s_nop 0"); conv_wr(*pend[-1])
    KVS = [int(x) for x in O.kvs.split(",")]
    assert KVS[2] >= 15 and KVS[3] >= 15 and KVS[4] >= 16 and KVS[5] >= 17 and KVS[6] >= 17 and KVS[0] <= KVS[2] <= KVS[3] <= KVS[5] and KVS[1] <= KVS[4] <= KVS[6]
    for kk in range(20):
        A.c(f"---- qproj step {kk}")
        G, ks = kk >> 1, kk & 1
        if kk in (1, 4): stamp(A, f"step{kk}", 1)
        if kk in (4, 8, 12, 15): stamp(A, f"step{kk}", 3)
        nd = ([("W", kk + 1)] if kk + 1 < 20 else []) + ([("X", G + 1)] if ks == 0 and G + 1 < 10 else [])
        A.wait(vm=nd, dsn=0); A("s_barrier")
        mf = [f"{MF} {ACC(nb,qb)}, {ar(AF(kk&1,nb),4)}, {ar(XR(G,ks,qb),4)}, {ACC(nb,qb) if kk else '0'}" for nb in range(16) for qb in (range(3, -1, -1) if nb & 1 and O.snake & 4 else range(4))]
        gaps = {q: [] for q in range(64)}
        mem = []
        if kk + 4 < 20: mem += wq_dma(kk + 4)
        if kk == 0: mem += x_dma(2)
        if ks == 1 and G + 3 < 10: mem += x_dma(G + 3)
        if 0 <= O.wopre < 100 and O.wopre <= kk < O.wopre + O.wopn: mem += wo_pre(kk - O.wopre, kk)
        if O.fuse and kk == O.xfill: mem += mbox("store", lambda t: vr(40, 4), sXI, "XF")
        mem += l2t(kk) + wo_touch(kk)
        for (kind, tile), at in zip((("K", 0), ("V", 0), ("K", 1), ("K", 2), ("V", 1), ("K", 3), ("V", 2)), KVS):
            if kk == at: mem += kv_groups(kind, tile)
        rd = (x_reads(G + 1) if ks == 0 and G + 1 < 10 else []) + (a_reads(kk + 1) if kk + 1 < 20 else [])
        sp = max(2, min(O.qsp, 56 // max(1, len(mem))))
        for q, ops in enumerate(mem): gaps[1 + sp * q] += ops
        fr = [q for q in range(60) if not gaps[q]]
        two = max(0, len(rd) - len(fr))
        fr = sorted(fr + fr[:two])
        for q, o in enumerate(rd): gaps[fr[(q * len(fr)) // len(rd)]].append(o)
        gaps[63] += ["s_nop 7"] * O.qpad
        if kk == 19 and O.cv19: cvdone[0] = interleave(A, mf, gaps, stream=cvl, partial=True, budget=O.cvb)
        else: interleave(A, mf, gaps)
    stamp(A, "qproj done"); stamp(A, "qproj done", 3)
    if O.fuse and O.xfill == 20: flat([mbox("store", lambda t: vr(40, 4), sXI, "XF")])
    for (kind, tile), at in zip((("K", 0), ("V", 0), ("K", 1), ("K", 2), ("V", 1), ("K", 3), ("V", 2)), KVS):
        if at == 20: flat([kv_groups(kind, tile)])
    flat([l2t(20), wo_touch(20)])
    A("s_nop 7")
    for o in cvl[cvdone[0]:]: A(o[0] if isinstance(o, list) else o)
    A(f"s_mov_b32 s{sT3}, 0x3f803f80")
    if not O.vsum and not O.smf:
        for q in range(4): A(f"v_accvgpr_write_b32 {ar(aONE+q)}, s{sT3}")
    if O.dumpq:
        A(f"s_lshl_b32 s{sT}, s5, 7"); A(f"s_lshl_b32 s{sT2}, s6, 4"); A(f"s_add_u32 s{sT}, s{sT}, s{sT2}"); A(f"s_add_u32 s{sT}, s{sT}, s7")
        A(f"s_lshl_b32 s{sT}, s{sT}, 17"); A(f"s_add_u32 s{sT}, s{sT}, {QDUMP_WS_OFF}")
        srd(A, sDBG, sWS, sWS + 1, f"s{sT}", "0x20000")
        A(f"v_and_b32 {vr(16)}, 0x3ff, {vr(vOO)}"); A(f"s_lshl_b32 s{sT}, s{sWAVE}, 15"); A(f"v_add_u32 {vr(16)}, s{sT}, {vr(16)}")
        for q in range(32):
            A(f"s_mov_b32 s{sT}, {q*1024}")
            A(f"buffer_store_dwordx4 {ar(4*q,4)}, {vr(16)}, {sr(sDBG)}, s{sT} offen")
        A("s_waitcnt vmcnt(0)")
    if O.xfill == 30:
        for q in range(4): A(f"v_accvgpr_write_b32 {ar(224+q)}, -1")
    if O.fuse: oproj_early(A, 16)
    A.wait(vm=[("K", 0)]); A("s_barrier")
    if O.stag:
        A("s_lshr_b32 s3, s2, 3"); A(f"s_and_b32 s3, s3, {O.stagm}"); A(f"s_mul_i32 s3, s3, {O.stag}"); A("s_memrealtime s[50:51]"); A("s_waitcnt lgkmcnt(0)"); A("s_add_u32 s3, s3, s50")
        A.label("L_stag"); A("s_memrealtime s[50:51]"); A("s_waitcnt lgkmcnt(0)"); A("s_sub_u32 s4, s3, s50"); A("s_cmp_gt_i32 s4, 0"); A("s_cbranch_scc1 L_stag")
    stamp(A, "conv done")
    if O.exitat == 1: A("s_branch L_exit")
    A(f"s_mov_b32 s{sUNIT}, 0")
    if O.trace: A("s_mov_b64 s[52:53], 1"); A("s_memrealtime s[50:51]"); A("v_mov_b32 v0, 0")
    assert A.vm_n([("K", 1), ("V", 0)]) >= O.fvm
    A.label("L_unit")
    A(f"s_mov_b32 s{sLOOP}, 3")
    ncls = 2 if O.twocls else 1
    if ncls == 2:
        A(f"s_bitcmp1_b32 s{sWAVE}, 0"); A("s_cbranch_scc1 L_first_1")
    ds6 = None
    for cls in range(ncls):
        A.label(f"L_first_{cls}")
        A.ds = []
        first_slot(A, cls)
        kn0 = tuple(int(x) for x in O.u0.split(",")) if O.u0 else None
        slot(A, 1, cls, f"second_{cls}", zero=True, tail=[f"s_cmp_lg_u32 s{sUNIT}, 0", "s_cbranch_scc1 L_loop_1"] if kn0 else [])
        for cp in range(2 if kn0 else 1):
            ds_in = list(A.ds)
            if cp == 0 and O.xfill == 30: flat([mbox("store", lambda t: ar(224, 4), sXI, "XF")])
            A.label(f"L_loop_{cp}")
            for p in (2, 3, 4, 5, 6, 7, 0, 1):
                tail = []
                if p == 6 and (cp == 0) == (O.u0n == 4): tail = [f"s_cmp_eq_u32 s{sLOOP}, 0", "s_cbranch_scc1 L_last"]
                if p == 7 and O.fuse and (cp or not kn0): tail = [f"s_cmp_eq_u32 s{sLOOP}, s{sSTUB}", "s_cbranch_scc1 L_tail"]
                if p == 1:
                    tail = [f"s_sub_u32 s{sLOOP}, s{sLOOP}, 1"]
                    if cp == 0 and O.u0n < 4: tail += [f"s_cmp_gt_u32 s{sLOOP}, {3 - O.u0n}", "s_cbranch_scc1 L_loop_0"]
                    else: tail += [f"s_branch L_loop_{cp}"]
                slot(A, p, cls, f"p{p}_{cp}", tail=tail, kn=kn0 if cp == 0 else None)
                if p == 6 and (cp == 0) == (O.u0n == 4): ds6 = list(A.ds)
                if p == 7: ds7 = list(A.ds)
    if O.stamps and O.stm == 4: nstamp[0] += 1; stamp_names.append("loopback")
    A.label("L_last")
    if not O.fuse: stamp(A, "last", 4)
    A.ds = list(ds6)
    last_slot(A, O.est if O.fuse else 4)
    if O.chk:
        A(f"s_cmp_lg_u64 s[{sM}:{sM+1}], 0"); A("s_cbranch_scc1 L_fb")
    if not O.fuse:
        A(f"s_cmp_lg_u32 s{sUNIT}, 0"); A("s_cbranch_scc1 L_fbret1")
    A.label("L_fbret0")
    stamp(A, "unit0 end"); stamp(A, "unit0 end", 2)
    if O.exitat == 2: A("s_branch L_exit")
    A(f"s_mov_b32 s{sUNIT}, 1"); A(f"s_add_u32 s{sOOF}, s{sOOF}, 4096"); A(f"s_mov_b32 s{sSTUB}, 1")
    if O.fuse and O.wopre >= 300:
        sh = O.wopre - 300
        A(f"v_bfe_u32 v0, {vr(vOO)}, 4, 6"); A("s_lshr_b32 s3, s2, 3"); A(f"s_lshl_b32 s3, s3, 2"); A(f"s_add_u32 s3, s3, s{sWAVE}"); A("s_lshl_b32 s3, s3, 6")
        A("v_add_u32 v0, s3, v0"); A(f"v_lshlrev_b32 v0, {12 - sh}, v0"); A("s_lshr_b32 s3, s7, 3"); A("s_mul_i32 s3, s3, 2621440")
        A(f"v_cmp_gt_u32 vcc, 2621440, v0"); A("s_and_saveexec_b64 s[100:101], vcc")
        A(f"buffer_load_dword {ar(224)}, v0, {sr(sW)}, s3 offen"); A("s_mov_b64 exec, -1")
    if not O.mvk: unit_moves(A)
    A("s_branch L_unit")
    if O.fuse:
        A.label("L_tail")
        stamp(A, "tail", 2); stamp(A, "tail", 4)
        if O.trace:
            srd(A, 56, sWS, sWS + 1, 132 << 20, 4 << 20); A("s_lshl_b32 s3, s2, 10")
            A(f"buffer_store_dword v0, {vr(vOO)}, s[56:59], s3 offen")
        A.ds = list(ds7)
        A.vm = [("G", 9)] * 8 + [("G", 10)] * 8 + (["WOP"] if O.wopre == 250 else []) + [("G", 11)] * 8
        def st0(qbs):
            r = []
            for qb in qbs:
                if qb < O.est: continue
                r.append([f"s_add_u32 s{sT}, s{sOOF}, {qb*131072 - 4096}"] if qb else [f"s_sub_u32 s{sT}, s{sOOF}, 4096"])
                r += [[o_store(ar(aQ2 + (qb * 4 + t) * 4, 4), qb, t, "ST0", sT)] for t in range(4)]
            return r
        v15 = dma_v(3, ("G", 12))
        sq = {0: ([0], [1, 2], [3]), 1: ([1], [2], [3]), 2: ([2], [3], []), 3: ([3], [], []), 4: ([], [], [])}[O.est]
        def wt(t): return (wo_t(0, 0, ar(224)) if t == O.wo0 else []) + (wo_t(1, 0, ar(225)) if t == O.wo1 else [])
        def f1(t): return flag_ops(1, "f1") if t == O.f1at else ()
        def vt(t, g): return [("G", g)] + (["ST0"] if t == O.f1at else [])
        slot(A, 0, 0, "t24", groups=[[v15[0]]] + [[o] for o in v15[1]] + wt(24) + st0(sq[0]), vmtags=vt(24, 9), after_bar=f1(24))
        slot(A, 1, 0, "t25", groups=wt(25) + st0(sq[1]))
        slot(A, 2, 0, "t26", groups=st0(sq[2]) + wt(26) + w_dma(0, 0, True), vmtags=vt(26, 10), after_bar=f1(26))
        def touch(lo, hi):
            if O.wopre != 200: return []
            r = []
            for q in range(lo, hi):
                if q == lo or q % 4 == 0: r.append([f"s_add_u32 s{sT}, s{sTW}, {(q & ~3)*1024}"])
                r.append([(f"buffer_load_dwordx4 {ar(224+(q&7)*4,4)}, {vr(vOO)}, {sr(sW)}, s{sT} offen offset:{(q&3)*1024}{' nt' if O.wopre_nt else ''}", "vm", "WOP")])
            return r
        slot(A, 3, 0, "t27", groups=w_dma(0, 1, True) + touch(0, 5) + wt(27))
        slot(A, 4, 0, "t28", groups=w_dma(1, 0, True) + (o_ld_early(0) if O.eo else []), vmtags=vt(28, 11), after_bar=f1(28), tail=poll_ops("p0", 0) if O.eo == 1 else ())
        slot(A, 5, 0, "t29", groups=touch(5, 10) + wt(29) + w_dma(1, 1, True), tail=poll_ops("p0", 0) if O.eo == 3 else ())
        slot(A, 6, 0, "t30", groups=w_dma(2, 0, True) + (o_ld_early(1) if O.eo == 1 else w_dma(2, 1, True) if O.eo == 3 else []), vmtags=vt(30, 12), after_bar=f1(30),
             before_bar=[("", "call", lambda A_: poll_check(A_, 0x01010101, "u0", None, "p0"))] if O.eo == 1 else (),
             tail=([("", "call", lambda A_: poll_check(A_, 0x01010101, "u0", None, "p0")), "s_barrier"] if O.eo == 3 else []) + [f"v_accvgpr_read_b32 {vr(vPOLL)}, {ar(aPOLL)}"] + poll_ops("p1"))
        stamp(A, "last1", 2)
        oproj_setup(A)
        def mid():
            A.wait(dsn=0)
            poll_check(A, 0x01010101, "u1", vOWX, "p1")
            A("s_barrier")
        if O.eo:
            assert O.f1at <= 26 and O.est >= 2 and O.own1
            if O.eo == 1: last_slot(A, 4, extra1=w_dma(2, 1) + o_ld(2), mid=mid)
            if O.eo == 2: last_slot(A, 4, extra1=w_dma(2, 1), mid=mid, extra2=o_ld(1) + o_ld(2))
            if O.eo == 3: last_slot(A, 4, extra1=o_ld(1) + o_ld(2), mid=mid)
        elif O.own1: last_slot(A, 4, extra1=w_dma(2, 1) + o_ld(0), mid=mid, extra2=o_ld(1) + o_ld(2))
        else: last_slot(A, 4, extra1=w_dma(2, 1), mid=mid, extra2=o_ld(0) + o_ld(1) + o_ld(2))
        if O.chk:
            A(f"s_cmp_lg_u64 s[{sM}:{sM+1}], 0"); A("s_cbranch_scc1 L_fb")
        A.label("L_fbret1")
        stamp(A, "unit1 end"); stamp(A, "unit1 end", 2); stamp(A, "unit1 end", 5); stamp(A, "unit1 end", 6)
        if O.exitat == 3: A("s_branch L_exit")
        oproj(A)
    else:
        A.label("L_fbret1")
        stamp(A, "unit1 end")
    if O.exitat: A.label("L_exit")
    if O.stamps: emit_stamps(A)
    A.label("L_end")
    A("s_endpgm")
    if O.chk:
        fallback(A)
    emit_spins(A)
    A.label("L_codeend")
    return kstart(k) + A.text()

def emit_stamps(A):
    A("s_waitcnt vmcnt(0) lgkmcnt(0)")
    A(f"s_memtime s[8:9]"); A(f"s_memrealtime s[10:11]")
    A("s_waitcnt lgkmcnt(0)")
    srd(A, sDBG, sWS, sWS + 1, STAMP_WS_OFF, "0x100000")
    A(f"s_lshl_b32 s3, s2, 2"); A(f"s_add_u32 s3, s3, s{sWAVE}"); A("s_lshl_b32 s3, s3, 7")
    A("v_mov_b32 v0, s3")
    n = nstamp[0]
    regs = [(j, sSTAMP + 2 * j) for j in range(n)] + [(n, 8)] + [(8 + j, 62 if j == 0 else sRSTAMP + 2 * j) for j in range(n)] + [(8 + n, 10)]
    A("s_getreg_b32 s4, hwreg(HW_REG_XCC_ID)")
    regs.append((16, 4))
    for j, s_ in regs:
        A(f"v_mov_b32 v1, s{s_}")
        A(f"buffer_store_dword v1, v0, {sr(sDBG)}, 0 offen offset:{4*j}")
    A("s_waitcnt vmcnt(0)")

def main():
    ap = argparse.ArgumentParser()
    for k_, v_ in vars(Opt).items():
        if k_.startswith("_"): continue
        if isinstance(v_, bool): ap.add_argument("--" + k_, type=lambda s: bool(int(s)), default=v_)
        elif isinstance(v_, int): ap.add_argument("--" + k_, type=int, default=v_)
        else: ap.add_argument("--" + k_, default=v_)
    a = ap.parse_args()
    for k_, v_ in vars(a).items(): setattr(O, k_, v_)
    assert O.fvm <= 16 + 4 * O.est
    O.smpos_ = [int(x) for x in O.smpos.split(',')]
    hdr = open("cdna_kernels/" + NAME + ".s.ref").read().split("; Override launch")[0]
    out = hdr
    out += "; @launch kernel=attn_kernel grid=(256,1,1) block=(256,1,1) lds=163840\n"
    body = gen_kernel("attn_kernel")
    if O.stamps: out += "; stamps: " + ",".join(stamp_names) + ",end\n"
    out += '.amdgcn_target "amdgcn-amd-amdhsa--gfx950"\n.text\n'
    out += body + kd("attn_kernel")
    lines = out.split("\n")
    if O.skip_loop:
        iu = lines.index("L_unit:"); il = lines.index("L_last:")
        lines = lines[:iu] + [l for l in lines[iu:il] if not ("buffer_load_dwordx4" in l and " lds" in l)] + lines[il:]
    il = lines.index("L_last:")
    if O.skip_oo: lines = lines[:il] + [l for l in lines[il:] if not ("buffer_load_dwordx4 a[" in l and "s[8:11]" in l)]
    if O.skip_ow: lines = lines[:il] + [l for l in lines[il:] if not ("s[12:15]" in l and " lds" in l)]
    iu = lines.index("L_unit:")
    if O.skip_x: lines = [l for l in lines[:iu] if not ("s[8:11]" in l and " lds" in l)] + lines[iu:]
    if O.skip_w: lines = [l for l in lines[:iu] if not ("s[12:15]" in l and " lds" in l)] + lines[iu:]
    sys.stdout.write("\n".join(lines))
main()
```

```python
import sys, math, argparse, re, struct, copy

NAME = "concat_heads__gqa_block_cached__gqa_block_cached__near_ridge"

class Opt:
    stamps = False
    dumpq = False
    kv_nt = True
    fuse = True
    twocls = False
    D = 6
    bar = 20
    burst = 1
    dper = 3
    qsp = 4
    w_nt = True
    x_nt = True
    wo_nt = False
    kv0 = 15
    pubw = 11
    map2 = True
    pub2 = 1
    pub1 = 28
    poll2 = 8
    thr_log2 = 30
    skip_loop = False
    skip_x = False
    skip_w = False
    forcefb = False
    budget = 8
    wpre = True
    o_sc1 = True
    chk = True
    stm = 0
    cpre = True
    rot = 0
    wfake = False
    noinv = False
    skip_oo = False
    skip_ow = False
    st_sc1 = True
    wopre = 200
    wopre_nt = False
    wopn = 1
    ndef = 4
    xbar = 60
    own1 = True
    obar = 4
    osp = 2
    xdense = True
    vlate = 4
    vsum = False
    pad = 0
    vmn = 16
    kvs = "13,14,15,16,17,18,19"
    outfl = 0
    trace = False
    xld = 40
    xfill = 18
    lfake = False
    whalf = False
    ofake = False
    walign = False
    wofl = 0
    fvm = 20
    u0n = 4
    kperm = 0
    fs2 = 12
    lsb = 12
    oek = False
    eo = 0
    wo0 = 24
    wo1 = 1
    mvk = True
    cvn = 8
    cvb = 12
    cv19 = True
    u0 = "16,8,20"
    klate = 0
    stfl = 0
    stfl1 = 0
    xffl = 0
    est = 1
    f1at = 28
    snake = 15
    kvfl = 0
    qpad = 0
    upad = 0
    upadm = 0
    stag = 0
    stagm = 3
    exitat = 0
    l2n = 0
    l2s = ""
    l2nt = 0
    l2sh = 6
    smpos = "3,7"
    smf = True

O = Opt()

class Asm:
    def __init__(self):
        self.L = []
        self.vm = []
        self.ds = []
        self.nvm = 0; self.mark = {}
    def __call__(self, s):
        if s.endswith(" lds") and self.L and " m0," in self.L[-1]: self.L.append("    s_nop 0")
        self.L.append(s if s.endswith(":") else "    " + s)
    def label(self, s): self.L.append(s + ":")
    def c(self, s): self.L.append("    ; " + s)
    def text(self): return "\n".join(self.L) + "\n"
    def vm_n(self, tags):
        idx = [i for i, t in enumerate(self.vm) if t in tags]
        if not idx: return None
        return min(63, len(self.vm) - 1 - max(idx))
    def ds_n(self, tags):
        idx = [i for i, t in enumerate(self.ds) if t in tags]
        if not idx: return None
        return min(15, len(self.ds) - 1 - max(idx))
    def wait(self, vm=None, ds=None, vmn=None, dsn=None):
        a = self.vm_n(vm) if vm else None
        b = self.ds_n(ds) if ds else None
        if vmn is not None: a = vmn if a is None else min(a, vmn)
        if dsn is not None: b = dsn if b is None else min(b, dsn)
        p = []
        if a is not None:
            p.append(f"vmcnt({a})"); self.vm = self.vm[len(self.vm) - a:] if a else []
        if b is not None:
            p.append(f"lgkmcnt({b})"); self.ds = self.ds[len(self.ds) - b:] if b else []
        if p: self("s_waitcnt " + " ".join(p))
    def op(self, o):
        if isinstance(o, str): self(o); return
        if o[1] == "vm": self.vm.append(o[2]); self.nvm += 1
        elif o[1] == "mark": self.mark[o[2]] = self.nvm
        elif o[1] == "call": o[2](self); return
        elif o[1] == "ds": self.ds.append(o[2])
        elif o[1] == "wait": self.wait(**o[2]); return
        self(o[0])

def vr(b, n=1): return f"v{b}" if n == 1 else f"v[{b}:{b+n-1}]"
def ar(b, n=1): return f"a{b}" if n == 1 else f"a[{b}:{b+n-1}]"
def sr(b, n=4): return f"s[{b}:{b+n-1}]"
def f32bits(x): return struct.unpack("<I", struct.pack("<f", x))[0]
MF = "v_mfma_f32_16x16x32_bf16"

def kd(k, vgpr=512, acc=256, sgpr=102):
    return f""".section .rodata,"a"
.p2align 6
.amdhsa_kernel {k}
  .amdhsa_next_free_vgpr {vgpr}
  .amdhsa_next_free_sgpr {sgpr}
  .amdhsa_accum_offset {acc}
  .amdhsa_group_segment_fixed_size 0
  .amdhsa_kernarg_size 104
  .amdhsa_user_sgpr_count 2
  .amdhsa_user_sgpr_kernarg_segment_ptr 1
  .amdhsa_system_sgpr_workgroup_id_x 1
.end_amdhsa_kernel
.text
"""
def kstart(k): return f".globl {k}\n.p2align 8\n.type {k},@function\n{k}:\n"

WOF_OFF = 48 << 20
STAMP_WS_OFF = 128 << 20
QDUMP_WS_OFF = 64 << 20
sTW = 65
sXI, sXO = 78, 79

sX, sW, sK, sV, sO = 8, 12, 16, 20, 24
sWAVE, sKVW, sVVW, sWQW, sKOFF, sVOFF, sXW, sLOOP, sUNIT, sT, sTHR, sT3 = range(28, 40)
sSC, sOOF, sFB, sT2, sGI, sWS = 40, 42, 43, 44, 45, 46
sSTAMP, sRSTAMP = 48, 64
sCNT, sDBG, sWOI, sWOF, sOUT = 80, 84, 88, 92, 96
sM = 100
vAK, vAV, vOKV, vOO, vTMP = 1, 5, 13, 14, 15
vIDX, vPOLL, aPOLL, aPOLL1, aOQ = 15, 30, 222, 223, 200
vNEGM, vS, vP, vO = 16, 32, 96, 128
aQ, aQ2, aKF, aVF, aL, aONE = 0, 64, 128, 160, 192, 208
KBASE, VBASE, WQBASE, FBBASE = 0, 65536, 98304, 131072
XB = (16384, 49152)
FLAG_OFF = 60 << 20
sFLG, sSTUB = 84, sFB

def S(buf, qb, kb): return vS + buf * 32 + (qb * 2 + kb) * 4
def P(buf, qb): return vP + buf * 16 + qb * 4
def NEGM(qb): return vNEGM + qb * 4
def Q(qb, s): return aQ + (qb * 4 + s) * 4
def OA(db, qb): return vO + (qb * 8 + db) * 4
def LA(qb): return aL + qb * 4
vL = 252
def OAT(db, qb): return ar(aL, 4) if O.vsum and (db, qb) == (7, 3) else vr(OA(db, qb), 4)

nstamp = [0]
stamp_names = []
def stamp(A, name, mode=0):
    if not O.stamps or (mode != O.stm and name != "t0"): return
    i = nstamp[0]; nstamp[0] += 1; stamp_names.append(name)
    assert i < 7
    A(f"s_memtime s[{sSTAMP+2*i}:{sSTAMP+2*i+1}]")
    r = 62 if i == 0 else sRSTAMP + 2 * i
    A(f"s_memrealtime s[{r}:{r+1}]")

def cost(o):
    t = o if isinstance(o, str) else o[0]
    if t.endswith(":"): return 0
    if not isinstance(o, str) and o[1] in ("wait", "call"): return 0
    if t.startswith(("v_exp", "v_rcp")): return 8
    if t.startswith("buffer_"): return 8
    if t.startswith("s_nop"): return 4 * (int(t.split()[1]) + 1)
    if t.startswith("v_cvt_pk") or t.startswith("v_max3") or t.startswith("v_perm"): return 5
    if t.startswith("v_pk_"): return 8
    return 4

def interleave(A, mf, fixed=None, stream=(), pre=None, budget=None, need=None, partial=False):
    budget = O.budget if budget is None else budget
    fixed = fixed or {}; pre = pre or {}; need = need or {}
    st = list(stream); si = 0; debt = 0
    for g in range(len(mf)):
        for t in pre.get(g, []): A.op(t)
        if g in need: A.wait(ds=need[g])
        A(mf[g])
        fx = fixed.get(g, [])
        room = budget - sum(cost(o) for o in fx) - debt
        for o in fx: A.op(o)
        while si < len(st):
            o, at = st[si] if isinstance(st[si], list) else (st[si], 0)
            if at > g: break
            c = cost(o)
            if room <= 0 or (c > room + 1): break
            A.op(o); room -= c; si += 1
        debt = 0
    if partial: return si
    while si < len(st):
        o = st[si][0] if isinstance(st[si], list) else st[si]
        A.op(o); si += 1

NT_KV = lambda: [" nt", "", " sc1", " sc1 nt", " sc0 sc1 nt", " sc0 nt", " sc0 sc1"][O.kvfl]
SC1 = lambda: " sc1" if O.o_sc1 else ""
OFL = lambda: ["", " sc1", " sc0 sc1", " nt", " sc1 nt", " sc0 sc1 nt"][O.outfl]
def adv(off):
    if O.kperm: return f"s_add_u32 s{off}, s{off}, 0x1000\n    s_and_b32 s3, s{off}, 0x10000\n    s_mul_i32 s3, s3, 3\n    s_add_u32 s{off}, s{off}, s3   ; 0x4000"
    return f"s_add_u32 s{off}, s{off}, 0x4000"
def vphys(ring): return (ring + 1) & 3
def dma_k(ring, tag):
    return (f"s_add_u32 m0, s{sKVW}, {ring*16384}",
            [(f"buffer_load_dwordx4 {vr(vOKV)}, {sr(sK)}, s{sKOFF} offen offset:{p*1024}{NT_KV()} lds", "vm", tag) for p in range(4)],
            adv(sKOFF))
def dma_v(ring, tag):
    return (f"s_add_u32 m0, s{sVVW}, {vphys(ring)*16384}",
            [(f"buffer_load_dwordx4 {vr(vOKV)}, {sr(sV)}, s{sVOFF} offen offset:{p*1024}{NT_KV()} lds", "vm", tag) for p in range(4)],
            adv(sVOFF))
def k_reads(ring, h, dst=aKF):
    return [(f"ds_read_b128 {ar(dst+(kb*4+s)*4,4)}, {vr(vAK+s)} offset:{ring*16384+(2*h+kb)*1024}", "ds", ("F", dst + (kb*4+s)*4))
            for kb in range(2) for s in range(4)]
def v_reads(ring, h):
    return [(f"ds_read_b64_tr_b16 {ar(aVF+db*4+2*jh,2)}, {vr(vAV+db)} offset:{vphys(ring)*16384+h*2048+jh*1024}", "ds", ("F", aVF + db*4))
            for db in range(8) for jh in range(2)]
def pv_mf(buf, zero=False, qbmajor=False):
    r = []
    def pv(db, qb): return (f"{MF} {OAT(db,qb)}, {ar(aVF+db*4,4)}, {vr(P(buf,qb),4)}, {'0' if zero else OAT(db,qb)}", aVF + db*4, qb)
    def sm(qb): return (f"{MF} {ar(LA(qb),4)}, {ar(aONE,4)}, {vr(P(buf,qb),4)}, {'0' if zero else ar(LA(qb),4)}", None, qb)
    def sm2(pr): return (f"v_smfmac_f32_16x16x64_bf16 {ar(LA(pr),4)}, {ar(aONE,4)}, {vr(P(buf,2*pr),8)}, {vr(vIDX)}", None, 2 * pr)
    if qbmajor:
        for qb in range(4):
            if O.smf:
                if not qb & 1: r.append(sm2(qb >> 1))
            elif not O.vsum: r.append(sm(qb))
            r += [pv(7 - db if qb & 1 and O.snake & 1 else db, qb) for db in range(8)]
    else:
        for db in range(8):
            r += [pv(db, 3 - qb if db & 1 and O.snake & 1 else qb) for qb in range(4)]
            if O.smf:
                if db in O.smpos_: r.append(sm2(O.smpos_.index(db)))
            elif db & 1 and not O.vsum: r.append(sm(db >> 1))
    return r
def qk_mf(buf, zero=False, kf=aKF, snake=False):
    r = []
    order = [(qb, kb, s) for qb in range(4) for kb in range(2) for s in range(4)]
    if snake: order = [(p * 2 + (q ^ ((kb + s) & 1)), kb ^ (s & 1), s) for p in range(2) for s in range(4) for kb in range(2) for q in range(2)]
    for qb, kb, s in order:
        c = vr(S(buf,qb,kb),4) if s else ("0" if zero else vr(NEGM(qb),4))
        r.append((f"{MF} {vr(S(buf,qb,kb),4)}, {ar(kf+(kb*4+s)*4,4)}, {ar(Q(qb,s),4)}, {c}", kf + (kb*4+s)*4, qb))
    return r
def ex(b, e): return f"v_exp_f32 {vr(vS+b*32+e)}, {vr(vS+b*32+e)}"
def cv(b, i): return f"v_cvt_pk_bf16_f32 {vr(vP+b*16+i)}, {vr(vS+b*32+2*i)}, {vr(vS+b*32+2*i+1)}"
def ad(b, e): return f"v_add_f32 {vr(vL+(e>>3))}, {vr(vL+(e>>3))}, {vr(vS+b*32+e)}"
def needs(mfs, group=2):
    nd = {}; seen = []
    for g, m in enumerate(mfs):
        if m[1] is not None and m[1] not in seen: seen.append(m[1]); nd[g] = m[1]
    items = sorted(nd.items())
    out = {}
    for i in range(0, len(items), group):
        out[items[i][0]] = [("F", t) for _, t in items[i:i + group]]
    return out
def lastuse(mfs):
    lu = {}
    for g, m in enumerate(mfs):
        if m[1] is not None: lu[m[1]] = g
    return lu

def barrier_ops(cls, g, pre, gaps, vmtags=None, first=False):
    w = ("", "wait", dict(vmn=O.fvm if first else O.vmn + (O.fuse and O.wopre == 250), dsn=0) if vmtags is None else dict(vm=vmtags, dsn=0))
    if cls == 0: pre[g] = [w, "s_barrier"]
    else:
        pre[g] = [w]; gaps[g].insert(0, "s_barrier")

def is_vm(o): return not isinstance(o, str) and o[1] == "vm"
def slot(A, p, cls, tag, zero=False, tail=(), groups=None, vmtags=None, after_bar=(), kn=None, before_bar=()):
    D = O.D; even = (p & 1) == 0; buf = p & 1; t_ = p >> 1
    vlate, klate, bar0 = kn or (O.vlate, O.klate, O.bar)
    A.c(f"---- slot {tag} pos={p} cls={cls}")
    kr = k_reads(((p + 1) >> 1) & 3, (p + 1) & 1)
    vq = v_reads(t_ & 3, p & 1)
    pvm = pv_mf(buf ^ 1, zero); mfs = pvm + qk_mf(buf ^ 1, snake=O.snake & 2)
    n = len(mfs); npv = len(pvm)
    gaps = {g: [] for g in range(n)}; pre = {}
    seq = [(buf, e) for e in range(D, 32)] + [(buf ^ 1, e) for e in range(D)]
    eg = [2 * i for i in range(32 - D)] + [n - 64 + 2 * i for i in range(32 - D, 32)]
    for g, (b, e) in zip(eg, seq): gaps[g].append(ex(b, e))
    free = [g for g in range(n) if g not in eg]
    cvg = {g + 1: cv(b, e >> 1) for g, (b, e) in zip(eg, seq) if e & 1}
    if even and bar0 <= npv: klate = 0
    for g, t in zip(free[:8 - klate], kr): gaps[g].append(t)
    need = {}
    if klate:
        gaps[npv - 1] += kr[8 - klate:]
        need = {g: t for g, t in needs(mfs).items() if g >= npv}
    lu = lastuse(pvm)
    pre[0] = [("", "wait", dict(dsn=0))]
    if O.trace and groups is None:
        pre[0] += ["s_mov_b64 exec, s[52:53]", "v_mov_b32 v0, s50", "s_mov_b64 exec, -1", "s_lshl_b64 s[52:53], s[52:53], 1"]
        gaps[n - 3].append("s_memrealtime s[50:51]")
    if groups is None:
        kg = dma_k(t_ & 3, "KV"); vg = dma_v((t_ + 3) & 3, "KV")
        if even: flat = [kg[0]] + kg[1] + [vg[0], kg[2]] + (vg[1] + [vg[2]] if O.burst == 1 else [])
        else: flat = vg[1] + [vg[2]] if O.burst == 2 else []
        if O.fuse and O.wopre == 250 and p in (1, 5):
            flat = flat + [(f"buffer_load_dwordx4 {ar(224,4)}, {vr(vOO)}, {sr(sW)}, s{sTW} offen{' nt' if O.wopre_nt else ''}", "vm", "WOP"), f"s_add_u32 s{sTW}, s{sTW}, 1024", f"s_min_u32 s{sTW}, s{sTW}, s{sTW-1}"]
    else:
        flat = [o for grp in groups for o in grp]
    dm = [o for o in flat if is_vm(o)]
    bar = bar0 if even else 15
    if even:
        barrier_ops(cls, bar, pre, gaps, vmtags)
        if after_bar: pre[bar + 1] = list(after_bar)
        pre[bar][1:1] = list(before_bar)
    rest = [g for g in free if g > bar]
    if klate: rest = [g for g in rest if g != npv - 1]
    if vlate:
        gaps[n - 1] += vq[len(vq) - vlate:]; vq = vq[:len(vq) - vlate]
        rest = [g for g in rest if g != n - 1]
    lack = len(dm) + len(vq) - len(rest)
    xg = set()
    if lack > 0:
        cand = [g for g in eg if g > bar + 4]
        xg = {cand[(q * len(cand)) // lack + len(cand) // (2 * lack)] for q in range(lack)}
        rest = sorted(rest + list(xg))
    dg = []; k = 0
    while dm or vq:
        g = rest.pop(0)
        vok = vq and lu[vq[0][2][1]] <= g
        if g in xg and vok: gaps[g].append(vq.pop(0)); continue
        if dm and k % O.dper == 0 and g in cvg and vok: gaps[g].append(vq.pop(0)); continue
        if dm and (k % O.dper == 0 or not vok) and g not in cvg: gaps[g].append(dm.pop(0)); dg.append(g)
        elif vok: gaps[g].append(vq.pop(0))
        elif dm: gaps[g].append(dm.pop(0)); dg.append(g)
        k += 1
    small = []
    nv = 0
    for o in flat:
        if is_vm(o): nv += 1; continue
        lo = dg[nv - 1] if nv else 16
        hi = n - 1 if ("0x4000" in o or nv == len(dg)) else dg[nv] - 1
        small.append((o, lo, hi))
    if not klate and (not even or bar >= npv): small.append((("", "wait", dict(ds=[o[2] for o in kr])), 24, npv - 1))
    for g, o in cvg.items(): gaps[g].append(o)
    if O.vsum:
        for g, (b, e) in zip(eg, seq): gaps[g + 1].append(ad(b, e))
    def used(g): return sum(4 if (not isinstance(o, str) and o[1] == "wait") else cost(o) for o in gaps[g]) + 4 * len(pre.get(g + 1, []))
    prev = (None, 0)
    for o, lo, hi in small:
        key = (lo, hi)
        if prev[0] == key: lo = prev[1]
        c = [g for g in range(lo, hi + 1) if used(g) <= 5]
        if not c: c = sorted(range(lo, hi + 1), key=used)
        gaps[c[0]].append(o); prev = (key, c[0])
    for q in range(O.pad): gaps[1 + (q * 62) // O.pad // 2 * 2 + 1].append("s_nop 1")
    if O.upad and groups is None:
        lb = f"L_up_{tag}"
        gaps[n - 1] += [f"s_lshl_b32 s3, s{sUNIT}, 2", f"s_sub_u32 s3, s3, s{sLOOP}", "s_add_u32 s3, s3, 3", f"s_cmp_ge_u32 s3, {O.upadm}", f"s_cbranch_scc1 {lb}"] + ["s_nop 7"] * O.upad + [lb + ":"]
    gaps[n - 1] += list(tail)
    interleave(A, [m[0] for m in mfs], gaps, pre=pre, need=need)

def max_chain(qb, buf, t0, t1, run=None):
    s = S(buf, qb, 0)
    st = [f"v_max3_f32 {vr(t0)}, {vr(s)}, {vr(s+1)}, {vr(s+2)}", f"v_max3_f32 {vr(t1)}, {vr(s+3)}, {vr(s+4)}, {vr(s+5)}",
          f"v_max3_f32 {vr(t0)}, {vr(t0)}, {vr(s+6)}, {vr(s+7)}"]
    if run is not None: return st + [f"v_max3_f32 {vr(run)}, {vr(run)}, {vr(t0)}, {vr(t1)}"]
    return st + [f"v_max_f32 {vr(t0)}, {vr(t0)}, {vr(t1)}"]
def xlane_max(t0, t1):
    return [f"v_mov_b32 {vr(t1)}, {vr(t0)}", "s_nop 1", f"v_permlane32_swap_b32 {vr(t0)}, {vr(t1)}", "s_nop 0", f"v_max_f32 {vr(t0)}, {vr(t0)}, {vr(t1)}",
            f"v_mov_b32 {vr(t1)}, {vr(t0)}", "s_nop 1", f"v_permlane16_swap_b32 {vr(t0)}, {vr(t1)}", "s_nop 0", f"v_max_f32 {vr(t0)}, {vr(t0)}, {vr(t1)}"]

def unit_moves(A):
    for q in range(64): A(f"v_accvgpr_mov_b32 {ar(aQ+q)}, {ar(aQ2+q)}")
    if O.fuse:
        for q in range(16 * O.est, 64): A(f"v_accvgpr_write_b32 {ar(aQ2+q)}, {vr(vS+q)}")
def first_slot(A, cls):
    D = O.D
    A.c(f"---- first slot cls={cls}")
    for o in k_reads(0, 0, dst=aVF) + k_reads(0, 1): A.op(o)
    if O.mvk:
        A(f"s_cmp_eq_u32 s{sUNIT}, 0"); A("s_cbranch_scc1 L_early" if O.oek else "s_cbranch_scc1 L_nomv")
        unit_moves(A)
        if O.oek:
            A("s_branch L_nomv"); A.label("L_early"); oproj_early(A, 16)
        A.label("L_nomv")
    mfs = qk_mf(0, zero=True, kf=aVF) + qk_mf(1)
    gaps = {g: [] for g in range(64)}; pre = {}
    bar = 8
    barrier_ops(cls, bar, pre, gaps, first=True)
    kg = dma_k(0, "KV"); vg = dma_v(3, "KV")
    gaps[bar - 2].append(kg[0])
    dm = kg[1] + (vg[1] if O.burst == 1 else [])
    for i, o in enumerate(dm):
        gaps[bar + 1 + i].append(o)
        if i == 3: gaps[bar + 1 + i].append(vg[0])
    gaps[7].append(kg[2]) if False else None
    st = []
    tA = [vO + 2 * q for q in range(4)]
    for qb in range(4):
        t0, t1 = tA[qb], tA[qb] + 1
        ch = max_chain(qb, 0, t0, t1) + xlane_max(t0, t1)
        ch += [f"v_sub_f32 {vr(NEGM(qb)+r)}, 0, {vr(t0)}" for r in range(4)]
        ch += [f"v_sub_f32 {vr(S(0,qb,0)+r)}, {vr(S(0,qb,0)+r)}, {vr(t0)}" for r in range(8)]
        st.append([ch[0], 8 * qb + 7 + 8]); st += ch[1:]
    sm = []
    for e in range(32):
        sm.append(ex(0, e))
        if e >= 2 and not (e & 1): sm.append(cv(0, (e >> 1) - 1))
        if O.vsum and e >= 2:
            if (e - 2) & 7 == 0: sm.append(f"v_add_f32 {vr(vL+((e-2)>>3))}, {vr(vS+e-2)}, {vr(vS+e-1)}")
            elif (e - 2) & 7 != 1: sm.append(ad(0, e - 2))
    sm += ["s_nop 0", cv(0, 15)]
    if O.vsum: sm += [ad(0, 30), ad(0, 31)]
    vq = v_reads(0, 0)
    for i, o in enumerate(vq): gaps[33 + i * 2 - (i // 8) * 0 if 33 + 2 * i < 64 else 63].append(o)
    post = [kg[2]] + ([vg[2]] if O.burst == 1 else [])
    if O.smf: post += [f"v_accvgpr_write_b32 {ar(aL+q)}, 0" for q in range(8)]
    nd = needs(mfs)
    nch = len(st) // 4
    m = [x[0] for x in mfs]
    def sub(d, lo, hi): return {g - lo: v for g, v in d.items() if lo <= g < hi}
    def shift(s, lo): return [[x[0], x[1] - lo] if isinstance(x, list) else x for x in s]
    segs = [(0, 32, st[:nch]), (32, 40, st[nch:2*nch]), (40, 48, st[2*nch:3*nch]), (48, 56, st[3*nch:]), (56, 64, [])]
    carry = []
    allst = st + post + sm
    pos = 0
    marks = {32: nch, 40: 2 * nch, 48: 3 * nch, 56: 4 * nch}
    bud = O.budget
    if O.fs2:
        def pair_chain(p):
            a, b = tA[2 * p], tA[2 * p + 1]
            r = [x for xy in zip(max_chain(2 * p, 0, a, a + 1), max_chain(2 * p + 1, 0, b, b + 1)) for x in xy]
            for sw in ("v_permlane32_swap_b32", "v_permlane16_swap_b32"):
                r += [f"v_mov_b32 {vr(t+1)}, {vr(t)}" for t in (a, b)] + ["s_nop 0"] + [f"{sw} {vr(t)}, {vr(t+1)}" for t in (a, b)]
                r += [f"v_max_f32 {vr(t)}, {vr(t)}, {vr(t+1)}" for t in (a, b)]
            r += [f"v_sub_f32 {vr(NEGM(2*p+k)+q)}, 0, {vr(t)}" for k, t in enumerate((a, b)) for q in range(4)]
            r[0] = [r[0], (19, 35)[p]]
            return r
        def subs(p): return [f"v_sub_f32 {vr(S(0,qb,0)+q)}, {vr(S(0,qb,0)+q)}, {vr(tA[qb])}" for qb in (2 * p, 2 * p + 1) for q in range(8)]
        c0, c1 = pair_chain(0), pair_chain(1)
        k = [i for i, o in enumerate(sm) if o == ex(0, 16)][0]
        allst = post[:5] + c0 + post[5:] + subs(0)[:8] + c1 + subs(0)[8:] + sm[:k] + subs(1) + sm[k:]
        marks = {32: 5 + len(c0), 48: len(post + c0 + c1) + 8}
        bud = O.fs2
    for g in range(64):
        if g in marks:
            while pos < marks[g]:
                o = allst[pos][0] if isinstance(allst[pos], list) else allst[pos]
                A.op(o); pos += 1
            A("s_nop 1")
        for t in pre.get(g, []): A.op(t)
        if g in nd: A.wait(ds=nd[g])
        A(m[g])
        room = bud - sum(cost(o) for o in gaps[g])
        for o in gaps[g]: A.op(o)
        while pos < len(allst) and not (O.fs2 and g < bar + 9):
            o, at = allst[pos] if isinstance(allst[pos], list) else (allst[pos], 0)
            if at > g or room <= 0 or cost(o) > room + 1: break
            A.op(o); room -= cost(o); pos += 1
    while pos < len(allst):
        A.op(allst[pos]); pos += 1
    for e in range(D):
        A(ex(1, e))
        if e >= 2 and not (e & 1): A(cv(1, (e >> 1) - 1))
    A("s_nop 0"); A(cv(1, D // 2 - 1))
    if O.vsum:
        for e in range(D): A(ad(1, e))
    A("s_nop 1")

def o_store(reg, qb, t, tag, so):
    return (f"buffer_store_dwordx4 {reg}, {vr(vOO)}, {sr(sO)}, s{so} offen offset:{t*1024}{[' sc1', ' sc1 nt', ' sc0 sc1', ' sc0 sc1 nt'][O.stfl if tag == 'ST0' or O.stfl1 else 0] if O.st_sc1 else ''}", "vm", tag)
def row_sums():
    st = []
    for sw in ("v_permlane32_swap_b32", "v_permlane16_swap_b32"):
        st += [f"v_mov_b32 {vr(vP+2*q+1)}, {vr(vL+q)}" for q in range(4)]
        st += [f"{sw} {vr(vL+q)}, {vr(vP+2*q+1)}" for q in range(4)]
        st += [f"v_add_f32 {vr(vL+q)}, {vr(vL+q)}, {vr(vP+2*q+1)}" for q in range(4)]
    st += [f"v_rcp_f32 {vr(vP+2*q)}, {vr(vL+q)}" for q in range(4)]
    if O.chk:
        st += [f"v_max3_f32 {vr(vP+1)}, {vr(vL)}, {vr(vL+1)}, {vr(vL+2)}"]
        for q in (vP + 1, vL + 3): st += [f"v_cmp_nle_f32 vcc, {vr(q)}, s{sTHR}", f"s_or_b64 s[{sM}:{sM+1}], s[{sM}:{sM+1}], vcc"]
    return st
def epi_qb(qb, store, plain=0):
    so = [f"s_add_u32 s{sT}, s{sOOF}, {qb*131072}"]
    if O.vsum:
        inv = vP + 2 * qb
        st = so + ([f"v_accvgpr_read_b32 {vr(vL+q)}, {ar(aL+q)}" for q in range(4)] if qb == 3 else [])
    else:
        inv = vP + 2 * (qb & 1)
        st = [f"v_accvgpr_read_b32 {vr(inv+1)}, {ar(LA(qb))}", f"v_rcp_f32 {vr(inv)}, {vr(inv+1)}"]
        if O.smf: st = [f"v_accvgpr_read_b32 {vr(inv+q)}, {ar(aL+2*qb+q)}" for q in range(2)] + [f"v_add_f32 {vr(inv+1)}, {vr(inv)}, {vr(inv+1)}", st[1]]
        if O.chk: st += [f"v_cmp_nle_f32 vcc, {vr(inv+1)}, s{sTHR}"]
        st += so
        if O.chk: st += [f"s_or_b64 s[{sM}:{sM+1}], s[{sM}:{sM+1}], vcc"]
    for t in range(4):
        o = OA(2 * t, qb)
        if t < plain: st += [f"v_mul_f32 {vr(o+i)}, {vr(o+i)}, {vr(inv)}" for i in range(8)]
        else: st += [f"v_pk_mul_f32 {vr(o+2*i,2)}, {vr(o+2*i,2)}, {vr(inv,2)} op_sel_hi:[1,0]" for i in range(4)]
        d = vS + (qb * 4 + t) * 4
        st += [f"v_cvt_pk_bf16_f32 {vr(d+i)}, {vr(o+2*i)}, {vr(o+2*i+1)}" for i in range(4)]
        if store: st.append(o_store(vr(d, 4), qb, t, "ST", sT))
    return st

def last_slot(A, store, extra1=(), mid=None, extra2=()):
    D = O.D
    A.c("---- last slot + final PV + epilogue")
    pvm = pv_mf(0); n = len(pvm); nq = n // 4
    gaps = {g: [] for g in range(n)}
    lu = lastuse(pvm)
    for i, o in enumerate(v_reads(3, 1)):
        g = min(n - 1, lu[o[2][1]] + 1 + (i & 1)); gaps[g].append(o)
    sm = []
    for e in range(D, 32):
        sm.append(ex(1, e))
        if e > D and not (e & 1): sm.append(cv(1, (e >> 1) - 1))
        if O.vsum and e > D: sm.append(ad(1, e - 1))
    sm += ["s_nop 0", cv(1, 15)] + ([ad(1, 31)] if O.vsum else []) + ["s_nop 1"]
    ex_ = list(extra1)
    for g in range(0, n):
        if ex_ and not gaps[g]: gaps[g] += ex_.pop(0)
    assert not ex_
    A(f"s_mov_b64 s[{sM}:{sM+1}], 0")
    interleave(A, [m[0] for m in pvm], gaps, stream=sm, need=needs(pvm), budget=O.lsb)
    if mid: mid()
    fin = pv_mf(1, qbmajor=True)
    st = row_sums() if O.vsum else []
    for qb in range(4):
        e = epi_qb(qb, qb < store, 4 if qb == 0 and O.lsb > 8 else 0)
        if qb == 0 and O.lsb > 8:
            k = [i for i, o in enumerate(e) if isinstance(o, str) and o.startswith("v_mul_f32")][0]
            st += [[e[0], 8]] + e[1:k] + [[e[k], 13]] + e[k+1:]
            continue
        k = 1 if O.vsum and qb < 3 else 0
        if qb == 3: st.append("s_nop 7")
        st += e[:k]; st.append([e[k], max(g for g, m in enumerate(fin) if m[2] == qb) + 8]); st += e[k+1:]
    gaps = {g: [] for g in range(n)}
    ex_ = list(extra2)
    for g in range(0, n):
        if ex_ and (g < 16 or g % 2 == 0): gaps[g] += ex_.pop(0)
    assert not ex_
    interleave(A, [m[0] for m in fin], gaps, stream=st, need=needs(fin, group=2), budget=O.lsb)

def fallback(A):
    A.label("L_fb")
    lane, g, i, r, ka, kb_, va, vd, t0, t1 = range(64, 74)
    run = 76
    A("s_waitcnt vmcnt(0) lgkmcnt(0)"); A("s_nop 7")
    A(f"v_mbcnt_lo_u32_b32 {vr(lane)}, -1, 0"); A(f"v_mbcnt_hi_u32_b32 {vr(lane)}, -1, {vr(lane)}")
    A(f"v_lshrrev_b32 {vr(g)}, 4, {vr(lane)}"); A(f"v_and_b32 {vr(i)}, 15, {vr(lane)}")
    A(f"v_and_b32 {vr(t0)}, 1, {vr(g)}"); A(f"v_lshlrev_b32 {vr(t0)}, 1, {vr(t0)}"); A(f"v_lshrrev_b32 {vr(t1)}, 1, {vr(g)}")
    A(f"v_or_b32 {vr(t0)}, {vr(t0)}, {vr(t1)}"); A(f"v_lshlrev_b32 {vr(t0)}, 4, {vr(t0)}")
    A(f"v_lshl_add_u32 {vr(ka)}, {vr(i)}, 8, {vr(t0)}"); A(f"v_add_u32 {vr(kb_)}, 4096, {vr(ka)}")
    A(f"v_lshlrev_b32 {vr(vd)}, 4, {vr(lane)}")
    A(f"s_lshl_b32 s{sT3}, s{sWAVE}, 13"); A(f"s_add_u32 s{sT3}, s{sT3}, {FBBASE}")
    if O.fuse: A(f"s_cmp_eq_u32 s{sUNIT}, 0"); A(f"s_cselect_b32 s{sT3}, s{sT3}, s{sWM+3}")
    A(f"v_lshrrev_b32 {vr(r)}, 2, {vr(i)}"); A(f"v_lshl_add_u32 {vr(t0)}, {vr(g)}, 2, {vr(r)}"); A(f"v_lshlrev_b32 {vr(t0)}, 8, {vr(t0)}")
    A(f"v_and_b32 {vr(t1)}, 3, {vr(i)}"); A(f"v_lshl_add_u32 {vr(t0)}, {vr(t1)}, 3, {vr(t0)}"); A(f"v_add_u32 {vr(va)}, s{sT3}, {vr(t0)}")
    def kload():
        for kb in range(2):
            for s in range(4):
                A(f"buffer_load_dwordx4 {ar(aKF+(kb*4+s)*4,4)}, {vr(kb_ if kb else ka)}, {sr(sK)}, s{sT} offen offset:{s*64}")
    for q in range(4): A(f"v_mov_b32 {vr(run+q)}, 0xff800000")
    A(f"s_lshl_b32 s{sT}, s{sUNIT}, 18"); A(f"s_add_u32 s{sT2}, s{sT}, 0x40000")
    A.label("L_fb1")
    kload(); A("s_waitcnt vmcnt(0)")
    for m in qk_mf(0, zero=True): A(m[0])
    A("s_nop 7")
    for q in range(4):
        for o in max_chain(q, 0, t0, t1, run=run + q): A(o)
    A(f"s_add_u32 s{sT}, s{sT}, 0x2000"); A(f"s_cmp_lt_u32 s{sT}, s{sT2}"); A("s_cbranch_scc1 L_fb1")
    for q in range(4):
        for o in xlane_max(run + q, t1): A(o)
        for rr in range(4): A(f"v_sub_f32 {vr(NEGM(q)+rr)}, 0, {vr(run+q)}")
    for k in range(128): A(f"v_mov_b32 {vr(vO+k)}, 0")
    for k in range(8 if O.smf else 16): A(f"v_accvgpr_write_b32 {ar(aL+k)}, 0")
    A(f"s_lshl_b32 s{sT}, s{sUNIT}, 18")
    A.label("L_fb2")
    kload()
    for hf in range(2):
        A(f"s_add_u32 m0, s{sT3}, {hf*4096}"); A(f"s_add_u32 s3, s{sT}, {hf*4096}")
        for p in range(4): A(f"buffer_load_dwordx4 {vr(vd)}, {sr(sV)}, s3 offen offset:{p*1024} lds")
    A("s_waitcnt vmcnt(0)")
    for db in range(8):
        for jh in range(2): A(f"ds_read_b64_tr_b16 {ar(aVF+db*4+2*jh,2)}, {vr(va)} offset:{db*32+jh*4096}")
    for m in qk_mf(0): A(m[0])
    A("s_nop 7")
    for e in range(32): A(ex(0, e))
    A("s_nop 0")
    for k in range(16): A(cv(0, k))
    if O.vsum:
        for e in range(32): A(ad(0, e))
    A("s_waitcnt lgkmcnt(0)"); A("s_nop 1")
    for m in pv_mf(0): A(m[0])
    A(f"s_add_u32 s{sT}, s{sT}, 0x2000"); A(f"s_cmp_lt_u32 s{sT}, s{sT2}"); A("s_cbranch_scc1 L_fb2")
    A("s_nop 7")
    if O.vsum:
        for o in row_sums(): A(o)
    for qb in range(4):
        for o in epi_qb(qb, False): A(o)
    for qb in range(4):
        if O.fuse and qb == O.est: A(f"s_cmp_eq_u32 s{sUNIT}, 0"); A("s_cbranch_scc1 L_fbret0")
        A(f"s_add_u32 s{sT}, s{sOOF}, {qb*131072}")
        for t in range(4): A(o_store(vr(vS + (qb * 4 + t) * 4, 4), qb, t, "ST", sT)[0])
    if not O.fuse or O.est == 4: A(f"s_cmp_eq_u32 s{sUNIT}, 0"); A("s_cbranch_scc1 L_fbret0")
    if O.fuse: oproj_setup(A)
    A("s_branch L_fbret1")

def srd(A, d, lo, hi, off, size):
    A(f"s_add_u32 s{d}, s{lo}, {off}"); A(f"s_addc_u32 s{d+1}, s{hi}, 0"); A(f"s_and_b32 s{d+1}, s{d+1}, 0xffff")
    A(f"s_mov_b32 s{d+2}, {size}"); A(f"s_mov_b32 s{d+3}, 0x20000")

def one_lane(A, val, text, tag):
    A(f"v_mov_b32 v0, {val}"); A("s_mov_b64 exec, 1")
    A.op((text, "vm", tag))
    A("s_mov_b64 exec, -1")
def flag_ops(val, name):
    return [f"s_cmp_lg_u32 s{sWAVE}, 0", f"s_cbranch_scc1 L_np_{name}", f"v_mov_b32 v0, {val}", "s_mov_b64 exec, 1",
            f"buffer_store_byte v0, off, {sr(sCNT)}, s{sGI} sc1", "s_mov_b64 exec, -1", f"L_np_{name}:"]
def poll_text(v=vPOLL): return f"buffer_load_dword v0, {vr(v)}, {sr(sCNT)}, 0 offen sc1"
RD1 = f"v_accvgpr_read_b32 v0, {ar(aPOLL1)}"
def poll_ops(name, own=1): return [f"s_cmp_lg_u32 s{sWAVE}, 0", f"s_cbranch_scc1 L_np_{name}"] + ([] if own else [RD1]) + [(poll_text(vPOLL if own else 0), "mark", name), f"L_np_{name}:"]
spins = []
def poll_test(A, mask, own):
    if own: A(f"v_or_b32 v0, v0, {vr(own)}")
    A(f"v_and_b32 v0, {hex(mask)}, v0"); A(f"v_cmp_ne_u32 vcc, {hex(mask)}, v0")
def poll_check(A, mask, name, own, mark):
    A(f"s_cmp_lg_u32 s{sWAVE}, 0"); A(f"s_cbranch_scc1 L_spun_{name}")
    A(f"s_waitcnt vmcnt({min(63, A.nvm - A.mark[mark])})")
    poll_test(A, mask, own); A(f"s_cbranch_vccnz L_spin_{name}")
    A.label(f"L_spun_{name}")
    spins.append((mask, name, own))
def emit_spins(A):
    for mask, name, own in spins:
        A.label(f"L_spin_{name}")
        A("s_mov_b32 s3, 0x40000")
        A.label(f"L_spinl_{name}")
        if not own: A(RD1)
        A(poll_text(vPOLL if own else 0)); A("s_waitcnt vmcnt(0)")
        poll_test(A, mask, own); A(f"s_cbranch_vccz L_spun_{name}")
        A("s_sub_u32 s3, s3, 1"); A("s_cmp_lg_u32 s3, 0"); A(f"s_cbranch_scc1 L_spinl_{name}")
        A(f"s_branch L_spun_{name}")

PIECE = [[13, 14, 15, 0], [1, 2, 8, 9], [3, 10, 4, 5], [6, 7, 11, 12]]
X_OFF = 40 << 20
aWD = 212
vOQ, vWD, vOWN, vOWX = 16, 18, 28, 29
sWB, sR13, sWM, sWT = sWQW, sXW, 92, 84
def slab_c(j): return ((j & 7) << 13) | ((j >> 3) << 12)
def slab_o(j): return slab_c(j & 1) if O.ofake else slab_c(j)
def w_dma(j, hf, early=False):
    jw = j & 1 if O.wfake else j
    r = [[f"s_add_u32 s{sT2}, s{sWT+(jw&7)}, {(jw>>3)*163840}", f"s_add_u32 m0, s{sWM+(j&3)}, {hf*4096}"]]
    for p in range(5):
        v = vWD + hf * 5 + p
        if early:
            v = vOKV
            r[-1].append(f"v_accvgpr_read_b32 {vr(v)}, {ar(aWD+hf*5+p)}")
        if p == 4: r[-1].append(f"s_add_u32 m0, s{sWM+(j&3)}, 8192")
        r.append([(f"buffer_load_dwordx4 {vr(v)}, {sr(sW)}, s{sT2} offen offset:{(p if p < 4 else hf)*1024}{['', ' sc1', ' nt', ' sc0 sc1', ' sc0'][O.wofl]} lds", "vm", ("W", j))])
    return r
OPH = [2, 3, 7, 0, 1, 4, 5, 6]
def OF(j, kk, qq): return OPH[j & 7] * 32 + (kk * 2 + qq) * 4
def wo_t(part, v, dst):
    if O.wopre != 210: return []
    return [[f"v_bfe_u32 {vr(v)}, {vr(vOO)}, 4, 6", f"v_mul_u32_u24 {vr(v)}, 80, {vr(v)}"], [(f"buffer_load_dword {dst}, {vr(v)}, {sr(sW)}, s{sTW-part} offen", "vm", "WOP")]]
def o_ld(j):
    r = [[f"s_xor_b32 s4, s{sR13}, {slab_o(j)}"]]
    for kk in range(4):
        for qq in range(2):
            r.append([(f"buffer_load_dwordx4 {ar(OF(j,kk,qq),4)}, {vr(vOQ+qq)}, {sr(sX)}, s4 offen offset:{kk*1024}{SC1()}", "vm", ("O", j))])
    r[1] = r[0] + r[1]
    return r[1:]
def o_ld_early(j):
    r = [[f"s_xor_b32 s4, s{sR13}, {slab_o(j)}", f"v_accvgpr_read_b32 {vr(vOKV)}, {ar(aOQ)}"]]
    for qq in range(2):
        for kk in range(4):
            r.append([(f"buffer_load_dwordx4 {ar(OF(j,kk,qq),4)}, {vr(vOKV)}, {sr(sX)}, s4 offen offset:{kk*1024}{SC1()}", "vm", ("O", j))])
        if qq == 0: r.append([f"v_add_u32 {vr(vOKV)}, 0x20000, {vr(vOKV)}"])
    return r
def mbox(op, reg, so, tag):
    r = [[(f"buffer_{op}_dwordx4 {reg(t)}, {vr(vOO)}, {sr(sO)}, s{so if t < 4 else sT} offen offset:{(t&3)*1024} sc1{' nt' if (tag == 'XF' and O.xffl & 1) or (tag == 'XS' and O.xffl & 2) or (tag == 'XL' and O.xffl & 4) else ''}", "vm", tag)] for t in range(5)]
    r[3].append(f"s_add_u32 s{sT}, s{so}, 4096")
    return r
def oproj_early(A, tb):
    lane, t0, t1, t2 = range(tb, tb + 4)
    A(f"s_bfe_u32 s3, s7, 0x10002"); A(f"s_lshr_b32 s4, s7, 3")
    A(f"s_lshr_b32 s{sT}, s{sGI}, 4"); A(f"s_lshl_b32 s{sT}, s{sT}, 22")
    A(f"s_lshl_b32 s{sT2}, s3, 20"); A(f"s_add_u32 s{sT}, s{sT}, s{sT2}"); A(f"s_lshl_b32 s{sT2}, s4, 16"); A(f"s_add_u32 s{sT}, s{sT}, s{sT2}")
    srd(A, sX, sWS, sWS + 1, f"s{sT}", "0xf0000")
    A(f"s_mov_b64 s[{sW}:{sW+1}], s[{sWOI}:{sWOI+1}]"); A(f"s_mov_b32 s{sW+2}, 5242880")
    A(f"s_lshl_b32 s{sT}, s4, 6"); A(f"s_add_u32 s{sT}, s{sT}, s{sWAVE}"); A(f"s_mul_i32 s{sWB}, s{sT}, 40960")
    A(f"s_and_b32 s{sT}, s7, 3"); A(f"s_mul_i32 s{sT}, s{sT}, {256 if O.walign else 320}"); A(f"s_add_u32 s{sWB}, s{sWB}, s{sT}")
    if O.own1: A(f"s_and_b32 s{sR13}, s7, 7"); A(f"s_lshl_b32 s{sR13}, s{sR13}, 13")
    else: A(f"s_mov_b32 s{sR13}, 0")
    for j in range(8):
        A(f"s_xor_b32 s{sT}, s{sR13}, {slab_c(j)}"); A(f"s_mul_i32 s{sT}, s{sT}, 40"); A(f"s_add_u32 s{sWT+j}, s{sT}, s{sWB}")
    A(f"s_lshl_b32 s{sT}, s{sWAVE}, 2")
    for sl in range(4):
        A(f"s_lshr_b32 s{sT2}, {hex(sum(PIECE[sl][w] << (4 * w) for w in range(4)))}, s{sT}"); A(f"s_and_b32 s{sT2}, s{sT2}, 15")
        A(f"s_mul_i32 s{sWM+sl}, s{sT2}, 10240")
    A(f"v_bfe_u32 {vr(lane)}, {vr(vOO)}, 4, 6")
    A(f"s_and_b32 s3, s7, 1"); A(f"s_xor_b32 s4, s4, 1")
    A(f"v_lshrrev_b32 {vr(t0)}, 3, {vr(lane)}"); A(f"v_mul_u32_u24 {vr(t0)}, 1280, {vr(t0)}")
    A(f"v_lshrrev_b32 {vr(t1)}, 3, {vr(lane)}"); A(f"v_and_b32 {vr(t1)}, 6, {vr(t1)}"); A(f"v_and_b32 {vr(t2)}, 7, {vr(lane)}"); A(f"v_xor_b32 {vr(t1)}, {vr(t1)}, {vr(t2)}")
    A(f"v_lshl_add_u32 {vr(t0)}, {vr(t1)}, 4, {vr(t0)}")
    for h in range(2):
        A(f"s_xor_b32 s{sT}, s4, {h}"); A(f"s_lshl_b32 s{sT}, s{sT}, 1"); A(f"s_add_u32 s{sT}, s{sT}, s3"); A(f"s_lshl_b32 s{sT}, s{sT}, 6")
        for rb in range(4):
            A(f"v_add_u32 {vr(t1)}, s{sT}, {vr(t0)}"); A(f"v_accvgpr_write_b32 {ar(aWD+h*5+rb)}, {vr(t1)}")
            if rb < 3: A(f"s_add_u32 s{sT}, s{sT}, 9216")
    A(f"v_lshrrev_b32 {vr(t0)}, 2, {vr(lane)}"); A(f"v_mul_u32_u24 {vr(t0)}, 1280, {vr(t0)}")
    A(f"v_bfe_u32 {vr(t1)}, {vr(lane)}, 4, 1"); A(f"v_xor_b32 {vr(t1)}, s4, {vr(t1)}"); A(f"v_lshlrev_b32 {vr(t1)}, 1, {vr(t1)}")
    A(f"v_and_b32 {vr(t2)}, 3, {vr(lane)}"); A(f"v_xor_b32 {vr(t1)}, {vr(t1)}, {vr(t2)}"); A(f"v_lshl_add_u32 {vr(t0)}, {vr(t1)}, 4, {vr(t0)}")
    A(f"s_xor_b32 s3, s3, 1"); A(f"s_lshl_b32 s3, s3, 8"); A(f"v_add_u32 {vr(t0)}, s3, {vr(t0)}"); A(f"v_add_u32 {vr(t1)}, {20480-1024}, {vr(t0)}")
    A(f"v_accvgpr_write_b32 {ar(aWD+4)}, {vr(t0)}"); A(f"v_accvgpr_write_b32 {ar(aWD+9)}, {vr(t1)}")
    if O.wopre in (200, 250):
        A(f"s_and_b32 s{sT}, s{sGI}, 127"); A(f"s_mul_i32 s{sT}, s{sT}, 10240"); A(f"s_mul_i32 s{sTW}, s{sWAVE}, {1310720 - 524288}"); A(f"s_add_u32 s{sTW}, s{sTW}, s{sT}")
        A(f"s_add_u32 s{sTW-1}, s{sTW}, 9216")
    if O.wopre == 210:
        A(f"s_and_b32 s{sT}, s{sGI}, 127"); A(f"s_lshl_b32 s{sT}, s{sT}, 2"); A(f"s_add_u32 s{sT}, s{sT}, s{sWAVE}")
        A(f"s_lshr_b32 s{sTW}, s{sT}, 5"); A(f"s_mul_i32 s{sTW}, s{sTW}, 327680"); A(f"s_and_b32 s{sT}, s{sT}, 31"); A(f"s_mul_i32 s{sT}, s{sT}, 5120")
        A(f"s_add_u32 s{sTW}, s{sTW}, s{sT}"); A(f"s_add_u32 s{sTW-1}, s{sTW}, 163840")
    A(f"s_and_b32 s{sT}, s{sGI}, 0xf0"); A(f"v_and_b32 {vr(t0)}, 3, {vr(lane)}"); A(f"v_lshlrev_b32 {vr(t0)}, 2, {vr(t0)}"); A(f"v_add_u32 {vr(t0)}, s{sT}, {vr(t0)}")
    A(f"v_accvgpr_write_b32 {ar(aPOLL)}, {vr(t0)}")
    if O.eo:
        A(f"s_and_b32 s{sT}, s{sGI}, 0xf8"); A(f"v_and_or_b32 {vr(t0)}, {vr(t0)}, 4, s{sT}"); A(f"v_accvgpr_write_b32 {ar(aPOLL1)}, {vr(t0)}")
        A(f"s_lshl_b32 s{sT}, s{sWAVE}, 18"); A(f"v_lshl_add_u32 {vr(t0)}, {vr(lane)}, 4, s{sT}"); A(f"v_accvgpr_write_b32 {ar(aOQ)}, {vr(t0)}")
    if O.smf:
        A(f"v_lshrrev_b32 {vr(t0)}, 4, {vr(lane)}"); A(f"v_xor_b32 {vr(t0)}, {vr(t0)}, {vr(lane)}"); A(f"v_bfe_i32 {vr(t0)}, {vr(t0)}, 1, 1")
        A(f"v_bfi_b32 {vr(t0)}, {vr(t0)}, 0, s{sT3}")
        for q in range(4): A(f"v_accvgpr_write_b32 {ar(aONE+q)}, {vr(t0)}")
        A(f"v_bfe_i32 {vr(t0)}, {vr(lane)}, 0, 1"); A(f"v_and_b32 {vr(t0)}, 0xaaaaaaaa, {vr(t0)}"); A(f"v_or_b32 {vr(vIDX)}, 0x44444444, {vr(t0)}")
def oproj_setup(A):
    vTMP = vPOLL
    A(f"v_accvgpr_read_b32 {vr(vPOLL)}, {ar(aPOLL)}")
    A(f"s_lshl_b32 s{sT}, s{sWAVE}, 18"); A(f"v_and_b32 {vr(vOQ)}, 0x3ff, {vr(vOO)}")
    A(f"v_add_u32 {vr(vOQ)}, s{sT}, {vr(vOQ)}"); A(f"v_add_u32 {vr(vOQ+1)}, 0x20000, {vr(vOQ)}")
    for p in range(10): A(f"v_accvgpr_read_b32 {vr(vWD+p)}, {ar(aWD+p)}")
    A(f"s_and_b32 s{sT}, s{sGI}, 0xfc"); A(f"s_and_b32 s3, s{sGI}, 3"); A(f"s_lshl_b32 s3, s3, 3"); A(f"s_lshl_b32 s3, 0xff, s3")
    A(f"v_cmp_eq_u32 vcc, s{sT}, {vr(vTMP)}"); A(f"v_mov_b32 {vr(vOWN)}, s3"); A(f"s_xor_b32 s{sT}, s{sT}, 8"); A(f"v_cndmask_b32 {vr(vOWN)}, 0, {vr(vOWN)}, vcc")
    A(f"v_cmp_eq_u32 vcc, s{sT}, {vr(vTMP)}"); A(f"s_not_b32 s3, s3"); A(f"v_mov_b32 {vr(vOWX)}, s3"); A(f"v_cndmask_b32 {vr(vOWX)}, -1, {vr(vOWX)}, vcc")
    A(f"v_xor_b32 {vr(31)}, s{sGI}, {vr(vTMP)}"); A(f"v_bfe_i32 {vr(31)}, {vr(31)}, 3, 1")
    A(f"v_and_or_b32 {vr(vOWX)}, {vr(vOWX)}, {vr(31)}, {vr(vOWN)}"); A(f"v_or_b32 {vr(vOWN)}, {vr(vOWN)}, {vr(31)}")

def oproj(A):
    vWR = 200
    vACC, vWF = 40, 120
    def ACC(h, qq, nb): return vACC + h * 40 + (qq * 5 + nb) * 4
    def WF(par, f): return vWF + par * 40 + f * 4
    A.c("---- O projection")
    lane, t0, t1 = 38, 39, 37
    A(f"v_bfe_u32 {vr(lane)}, {vr(vOO)}, 4, 6"); A(f"v_lshrrev_b32 {vr(t0)}, 5, {vr(lane)}"); A(f"v_lshlrev_b32 {vr(t0)}, 10, {vr(t0)}")
    A(f"v_bfe_u32 {vr(t1)}, {vr(lane)}, 2, 3"); A(f"v_lshl_add_u32 {vr(t0)}, {vr(t1)}, 7, {vr(t0)}")
    A(f"v_and_b32 {vr(t1)}, 3, {vr(lane)}"); A(f"v_lshl_add_u32 {vr(t0)}, {vr(t1)}, 3, {vr(t0)}")
    A(f"v_bfe_u32 {vr(t1)}, {vr(lane)}, 3, 2"); A(f"v_lshl_add_u32 {vr(vWR)}, {vr(t1)}, 5, {vr(t0)}")
    for nb in range(1, 4): A(f"v_xor_b32 {vr(vWR+3*nb)}, {nb*32}, {vr(vWR)}")
    A(f"v_lshrrev_b32 {vr(t0)}, 2, {vr(lane)}"); A(f"v_lshlrev_b32 {vr(t0)}, 6, {vr(t0)}"); A(f"v_and_b32 {vr(t1)}, 3, {vr(lane)}"); A(f"v_lshl_add_u32 {vr(t0)}, {vr(t1)}, 3, {vr(t0)}")
    A(f"v_bfe_u32 {vr(t1)}, {vr(lane)}, 4, 1"); A(f"v_lshl_add_u32 {vr(vWR+12)}, {vr(t1)}, 5, {vr(t0)}"); A(f"v_xor_b32 {vr(vWR+15)}, 32, {vr(vWR+12)}")
    for q in range(6):
        for w in (2, 1): A(f"v_add_u32 {vr(vWR+3*q+w)}, {51200*w}, {vr(vWR+3*q)}")
    nd_ = O.ndef; nf = 16 - nd_
    steps = [(j, kk, (0, 1)) for j in range(nf) for kk in range(4)] + [(j, kk, (h,)) for h in range(2) for j in range(nf, 16) for kk in range(4)]
    def w_rd(i):
        j, kk, hs = steps[i]
        pc = PIECE[j & 3][kk]; w = min(pc // 5, 2)
        return [(f"ds_read_b64_tr_b16 {vr(WF(i&1,f*5+nb)+2*jh,2)}, {vr(vWR+3*(nb if nb < 4 else 4+h)+w)} offset:{pc*10240-w*51200+(h*4096+jh*2048 if nb < 4 else 8192+jh*1024)}", "ds", ("WF", i & 1, f * 5 + nb))
                for f, h in enumerate(hs) for nb in range(5) for jh in range(2) if not (O.lfake and f == 1)]
    for ops in o_ld(3):
        for o in ops: A.op(o)
    A.wait(vm=[("W", 0), ("O", 0)]); A("s_barrier")
    for o in w_rd(0): A.op(o)
    mf = []; need = {}; gaps = {}; pre = {}; start = []; bars = {}
    for i, (j, kk, hs) in enumerate(steps):
        start.append(len(mf))
        for f, h in enumerate(hs):
            for nb in range(5):
                if nb in (0, 2): need[len(mf)] = [("WF", i & 1, f * 5 + q) for q in ((0, 1) if nb == 0 else (2, 3, 4))]
                for qq in ((1, 0) if (f + nb) & 1 and O.snake & 8 else (0, 1)):
                    c = "0" if (j == 0 and kk == 0) else vr(ACC(h, qq, nb), 4)
                    mf.append(f"{MF} {vr(ACC(h,qq,nb),4)}, {vr(WF(i&1,f*5+nb),4)}, {ar(OF(j,kk,qq),4)}, {c}")
    n = len(mf); start.append(n)
    gaps = {g: [] for g in range(n)}
    iB = len(steps) - 4 * nd_; gB = start[iB]
    for i, (j, kk, hs) in enumerate(steps):
        g0 = start[i]; ln = start[i + 1] - g0; lo = 0
        if kk == 3 and i < iB and j + 1 < 16:
            lo = O.obar if ln == 20 else 2
            bars[j] = g0 + lo
            p = [("", "wait", dict(vm=[("W", j + 1), ("O", j + 1)] + (["ST"] if j == O.pub2 else []), dsn=0 if j + 4 < 16 else None))]
            if j == 4: p.append(("", "call", lambda A_: poll_check(A_, 0x03030303, "u2", vOWN, "p2")))
            p.append("s_barrier")
            if j == O.pub2: p += flag_ops(3, "f2")
            if j == 3: p += poll_ops("p2")
            pre[g0 + lo] = p
        if i + 1 < len(steps):
            rd = w_rd(i + 1); np_ = len(rd) // 2
            stp = 2 if lo + 2 * np_ <= ln + 1 else 1.5
            if O.lfake and ln == 20:
                for q in range(len(rd)): gaps[g0 + lo + int(q * (2 if lo == 0 else 1.5))] += rd[q:q + 1]
            else:
                for q in range(np_): gaps[g0 + lo + int(q * stp)] += rd[2 * q:2 * q + 2]
    def spread(mem, g, sp, dense=False, dry=False):
        for ops in mem:
            while gaps[g] or g + 1 in pre or (g + 1 in need and not dense): g += 1
            if not dry: gaps[g] += ops
            g += sp if any(is_vm(o) for o in ops) else 1
        return g
    spread(w_dma(3, 0) + w_dma(3, 1), 1, 2)
    for j in range(12):
        mem = w_dma(j + 4, 0) + ([] if O.whalf else w_dma(j + 4, 1)) + o_ld(j + 4) + (wo_t(1, 31, vr(31)) if j == O.wo1 else [])
        sp = max([2] + [q for q in range(2, O.osp + 1) if spread(mem, bars[j], q, dry=True) <= bars[j + 1]])
        dn = spread(mem, bars[j], sp, dry=True) > bars[j + 1]
        assert spread(mem, bars[j], sp, dn) <= bars[j + 1], j
    vXS, vXR = 220, vACC
    xs = []
    st = mbox("store", lambda t: vr(vXS + 4 * t, 4), sXO, "XS")
    for t in (0, 2, 3, 1, 4):
        xs += [[f"v_cvt_pk_bf16_f32 {vr(vXS+4*t+q)}, {vr(vACC+8*t+2*q)}, {vr(vACC+8*t+2*q+1)}" for q in range(2 * u, 2 * u + 2)] for u in range(2)]
        if t == 4: xs.append([st[3][1]])
        xs.append(st[t][:1])
    e = spread(xs, gB + 1, 1, True)
    xl = mbox("load", lambda t: vr(vXR + 4 * t, 4), sXI, "XL")
    assert e < n - O.xld
    spread(xl, n - O.xld, 1, True)
    for j in (4, 9): pre[start[4 * j]] = pre.get(start[4 * j], []) + [("", "call", lambda A_, j=j: stamp(A_, f"slab{j}", 2))]
    for j in (1, 4, 6, 12): pre[start[4 * j]] = pre.get(start[4 * j], []) + [("", "call", lambda A_, j=j: stamp(A_, f"slab{j}", 6))]
    pre[gB] = pre.get(gB, []) + [("", "call", lambda A_: stamp(A_, "phaseB", 5))]
    interleave(A, mf, gaps, pre=pre, need=need)
    stamp(A, "oproj loop done"); stamp(A, "oloop", 5); stamp(A, "oloop", 6)
    A(f"v_and_b32 {vr(t0)}, 15, {vr(lane)}"); A(f"v_mul_u32_u24 {vr(t0)}, 2560, {vr(t0)}"); A(f"v_lshrrev_b32 {vr(t1)}, 4, {vr(lane)}")
    A(f"s_mul_i32 s{sT}, s{sWAVE}, {32*2560}"); A(f"s_and_b32 s3, s7, 1"); A(f"s_lshr_b32 s4, s7, 3")
    A(f"s_lshl_b32 s{sT2}, s4, 1"); A(f"s_add_u32 s{sT2}, s{sT2}, s3"); A(f"s_lshl_b32 s{sT2}, s{sT2}, 6"); A(f"s_add_u32 s{sT2}, s{sT2}, s{sT}")
    A(f"s_xor_b32 s3, s3, 1"); A(f"s_lshl_b32 s3, s3, 3"); A(f"s_add_u32 s3, s3, s4"); A(f"s_lshl_b32 s3, s3, 5"); A(f"s_add_u32 s3, s3, s{sT}")
    A(f"v_lshl_add_u32 {vr(vOQ+1)}, {vr(t1)}, 3, {vr(t0)}"); A(f"v_add_u32 {vr(vOQ+1)}, s3, {vr(vOQ+1)}")
    A(f"v_bfe_u32 {vr(t1)}, {vr(lane)}, 4, 1"); A(f"v_lshl_add_u32 {vr(t0)}, {vr(t1)}, 5, {vr(t0)}")
    A(f"v_lshrrev_b32 {vr(t1)}, 5, {vr(lane)}"); A(f"v_lshl_add_u32 {vr(vOQ)}, {vr(t1)}, 4, {vr(t0)}"); A(f"v_add_u32 {vr(vOQ)}, s{sT2}, {vr(vOQ)}")
    def xtest():
        A(f"v_max3_u32 {vr(t0)}, {vr(vXR)}, {vr(vXR+1)}, {vr(vXR+2)}"); A(f"v_max3_u32 {vr(t1)}, {vr(vXR+3)}, {vr(vXR+4)}, {vr(vXR+5)}")
        for q in range(6, 20, 2): A(f"v_max3_u32 {vr(t0 if q & 2 else t1)}, {vr(t0 if q & 2 else t1)}, {vr(vXR+q)}, {vr(vXR+q+1)}")
        A(f"v_max_u32 {vr(t0)}, {vr(t0)}, {vr(t1)}"); A(f"v_cmp_eq_u32 vcc, -1, {vr(t0)}")
    A("s_mov_b32 s4, 0x40000")
    A.label("L_xpoll")
    A("s_waitcnt vmcnt(0)"); A.vm = []
    xtest(); A("s_cbranch_vccz L_xdone")
    for ops in xl:
        for o in ops: A(o if isinstance(o, str) else o[0])
    A("s_sub_u32 s4, s4, 1"); A("s_cmp_lg_u32 s4, 0"); A("s_cbranch_scc1 L_xpoll")
    A("s_waitcnt vmcnt(0)")
    A.label("L_xdone")
    stamp(A, "xflag", 5)
    A(f"s_mov_b32 s{sT}, {16*2560}"); A("s_movk_i32 s3, 0x3f80"); A("s_mov_b32 s4, 0x3f800000")
    for qq in range(2):
        d = vWF + qq * 10; ac = ACC(1, qq, 0)
        for i in range(20): A(f"v_dot2_f32_bf16 {vr(ac+i)}, {vr(vXR+qq*10+i//2)}, s{3+(i&1)}, {vr(ac+i)}")
        for i in range(10): A(f"v_cvt_pk_bf16_f32 {vr(d+i)}, {vr(ac+2*i)}, {vr(ac+2*i+1)}")
        so = f"s{sT}" if qq else "0"
        A("s_nop 0")
        for P_ in range(2):
            for q in range(2): A(f"v_permlane16_swap_b32 {vr(d+4*P_+q)}, {vr(d+4*P_+2+q)}")
        A.op((f"buffer_store_dwordx2 {vr(d+8,2)}, {vr(vOQ+1)}, {sr(sOUT)}, {so} offen{OFL()}", "vm", "OUT"))
        A.op((f"buffer_store_dwordx4 {vr(d,4)}, {vr(vOQ)}, {sr(sOUT)}, {so} offen{OFL()}", "vm", "OUT"))
        A.op((f"buffer_store_dwordx4 {vr(d+4,4)}, {vr(vOQ)}, {sr(sOUT)}, {so} offen offset:64{OFL()}", "vm", "OUT"))

def gen_kernel(k):
    A = Asm()
    A("s_cmp_ge_u32 s2, 256"); A("s_cbranch_scc1 L_end")
    stamp(A, "t0")
    if O.cpre:
        A("s_getpc_b64 s[84:85]"); A("s_and_b32 s84, s84, 0xffffff00"); A("s_and_b32 s85, s85, 0xffff")
        A("s_mov_b32 s86, L_codeend-attn_kernel"); A("s_mov_b32 s87, 0x20000")
        A("s_lshr_b32 s3, s2, 3"); A(f"s_lshl_b32 s3, s3, {13 if O.u0 else 12}"); A(f"v_lshlrev_b32 v4, {5 if O.u0 else 4}, v0")
        A.op(("buffer_load_dwordx4 v[252:255], v4, s[84:87], s3 offen", "vm", "CODE"))
        A("s_nop 4")
    A("s_load_dwordx16 s[64:79], s[0:1], 0")
    A("s_load_dwordx8 s[80:87], s[0:1], 64")
    A(f"s_load_dwordx2 s[{sWS}:{sWS+1}], s[0:1], 96")
    A("s_and_b32 s3, s2, 7"); A("s_lshr_b32 s4, s2, 3"); A("s_lshr_b32 s5, s3, 2")
    if O.map2:
        A("s_bfe_u32 s6, s3, 0x10001"); A("s_lshl_b32 s6, s6, 2"); A("s_lshr_b32 s7, s4, 3"); A("s_add_u32 s6, s6, s7")
        A("s_and_b32 s7, s3, 1"); A("s_lshl_b32 s7, s7, 3"); A("s_and_b32 s4, s4, 7"); A("s_add_u32 s7, s7, s4")
    else:
        A("s_and_b32 s6, s3, 3"); A("s_lshl_b32 s6, s6, 1"); A("s_lshr_b32 s7, s4, 4"); A("s_add_u32 s6, s6, s7")
        A("s_and_b32 s7, s4, 15")
    vAW, vOW, vOX, vAX = 16, 24, 28, 36
    lane, g, i, r, t0, t1, t2, t3, h = range(48, 57)
    A(f"v_lshrrev_b32 {vr(t0)}, 6, v0"); A(f"v_and_b32 {vr(lane)}, 63, v0"); A(f"v_readfirstlane_b32 s{sWAVE}, {vr(t0)}")
    A(f"v_lshrrev_b32 {vr(g)}, 4, {vr(lane)}"); A(f"v_and_b32 {vr(i)}, 15, {vr(lane)}"); A(f"v_lshrrev_b32 {vr(h)}, 5, {vr(lane)}")
    A(f"s_and_b32 s{sT2}, s{sWAVE}, 1"); A(f"s_lshl_b32 s{sT2}, s{sT2}, 3")
    A(f"s_lshl_b32 s{sT}, s{sWAVE}, 16")
    A(f"v_and_b32 {vr(t2)}, 31, {vr(lane)}"); A(f"v_xor_b32 {vr(t2)}, s{sT2}, {vr(t2)}")
    for p in range(2):
        A(f"v_add_u32 {vr(t0)}, {2*p}, {vr(h)}"); A(f"v_lshlrev_b32 {vr(t1)}, 1, {vr(t0)}"); A(f"v_xor_b32 {vr(t1)}, {vr(t1)}, {vr(t2)}")
        A(f"v_lshlrev_b32 {vr(t1)}, 4, {vr(t1)}"); A(f"v_lshl_add_u32 {vr(t1)}, {vr(t0)}, 13, {vr(t1)}")
        A(f"v_add_u32 {vr(vOW+p)}, s{sT}, {vr(t1)}")
        if p: A(f"v_subrev_u32 {vr(vOW+p)}, 1024, {vr(vOW+p)}")
        A(f"v_add_u32 {vr(vOW+p+2)}, {4*8192-2048}, {vr(vOW+p)}")
    A(f"s_mul_i32 s{sT}, s{sWAVE}, {64*1280}")
    A(f"v_lshrrev_b32 {vr(t0)}, 3, {vr(lane)}"); A(f"v_mul_u32_u24 {vr(t0)}, 1280, {vr(t0)}"); A(f"v_add_u32 {vr(t0)}, s{sT}, {vr(t0)}")
    A(f"v_and_b32 {vr(t1)}, 7, {vr(lane)}"); A(f"v_xor_b32 {vr(t1)}, {vr(t1)}, {vr(g)}")
    A(f"v_lshl_add_u32 {vr(vOX)}, {vr(t1)}, 4, {vr(t0)}"); A(f"v_xor_b32 {vr(t1)}, 4, {vr(t1)}"); A(f"v_lshl_add_u32 {vr(t0)}, {vr(t1)}, 4, {vr(t0)}")
    A(f"v_add_u32 {vr(vOX+1)}, {10240-1024}, {vr(t0)}")
    for p in range(2, 8): A(f"v_add_u32 {vr(vOX+p)}, {(p&~1)*10240 - ((p&3)&~1)*1024}, {vr(vOX+(p&1))}")
    A(f"s_lshl_b32 s{sKVW}, s{sWAVE}, 12"); A(f"s_add_u32 s{sVVW}, s{sKVW}, {VBASE}"); A(f"s_add_u32 s{sWQW}, s{sKVW}, {WQBASE}")
    A(f"s_lshl_b32 s{sXW}, s{sWAVE}, 13")
    A(f"s_lshl_b32 s4, s6, 4"); A(f"s_add_u32 s4, s4, s7")
    A(f"s_lshl_b32 s{sT}, s7, 9"); A(f"s_sub_u32 s{sW+2}, {640*8192}, s{sT}"); A(f"s_mov_b32 s{sW+3}, 0x20000")
    A(f"s_mul_i32 s{sT3}, s6, 327680"); A(f"s_mov_b32 s{sX+2}, 327680"); A(f"s_mov_b32 s{sX+3}, 0x20000")
    A("s_cmp_eq_u32 s5, 1")
    A("s_waitcnt lgkmcnt(0)")
    if O.stamps and O.stm == 1: A("s_memtime s[50:51]"); A("s_memrealtime s[98:99]"); nstamp[0] += 1; stamp_names.append("karg")
    for q in (3, 0, 1, 2, 4): A(f"s_cselect_b64 s[{64+2*q}:{65+2*q}], s[{74+2*q}:{75+2*q}], s[{64+2*q}:{65+2*q}]")
    A(f"s_add_u32 s{sW}, s70, s{sT}"); A(f"s_addc_u32 s{sW+1}, s71, 0"); A(f"s_and_b32 s{sW+1}, s{sW+1}, 0xffff")
    A(f"s_add_u32 s{sX}, s64, s{sT3}"); A(f"s_addc_u32 s{sX+1}, s65, 0"); A(f"s_and_b32 s{sX+1}, s{sX+1}, 0xffff")
    def AF(buf, nb): return buf * 64 + nb * 4
    def XR(G, ks, qb): return 128 + (G & 1) * 32 + (ks * 4 + qb) * 4
    def ACC(nb, qb): return vr(48 + (nb * 4 + qb) * 4, 4) if nb < 13 else ar(208 + ((nb - 13) * 4 + qb) * 4, 4)
    def wq_dma(kk):
        return [[f"s_add_u32 m0, s{sWQW}, {(kk&3)*16384}", f"s_mov_b32 s{sT2}, {kk*262144}"]] + \
               [[(f"buffer_load_dwordx4 {vr(vOW+p)}, {sr(sW)}, s{sT2} offen offset:{p*1024}{' nt' if O.w_nt else ''} lds", "vm", ("W", kk))] for p in range(4)]
    def x_dma(G):
        r = [[f"s_add_u32 m0, s{sXW}, {XB[G&1]}", f"s_movk_i32 s{sT2}, {G*128}"]]
        r += [[(f"buffer_load_dwordx4 {vr(vOX+p)}, {sr(sX)}, s{sT2} offen offset:{(p&3)*1024}{' nt' if O.x_nt else ''} lds", "vm", ("X", G))] for p in range(8)]
        r[4].append(f"s_add_u32 m0, s{sXW}, {XB[G&1]+4096}")
        return r
    def flat(groups):
        for grp in groups:
            for ops in grp:
                for o in ops: A.op(o)
    flat([wq_dma(0), x_dma(0), wq_dma(1), x_dma(1)])
    def kv_groups(kind, tile):
        su, pcs, po = dma_k(tile, (kind, tile)) if kind == "K" else dma_v(tile, (kind, tile))
        return [[su]] + [[p] for p in pcs[:3]] + [[pcs[3], po]]
    A(f"s_mov_b32 s{sWOI}, s72"); A(f"s_and_b32 s{sWOI+1}, s73, 0xffff")
    A(f"s_lshl_b32 s{sT}, s4, 19")
    srd(A, sK, 66, 67, f"s{sT}", "0x80000")
    srd(A, sV, 68, 69, f"s{sT}", "0x80000")
    A(f"s_lshl_b32 s{sGI}, s5, 3"); A(f"s_add_u32 s{sGI}, s{sGI}, s6"); A(f"s_lshl_b32 s{sT2}, s{sGI}, 22")
    srd(A, sO, sWS, sWS + 1, f"s{sT2}", 0x200000 + 16 * 20480)
    A(f"s_lshl_b32 s{sT}, s6, 1"); A(f"s_bfe_u32 s{sT2}, s7, 0x10002"); A(f"s_add_u32 s{sT}, s{sT}, s{sT2}"); A(f"s_mul_i32 s{sT}, s{sT}, {128*2560}")
    A(f"s_mul_i32 s{sT2}, s5, 1280"); A(f"s_add_u32 s{sT}, s{sT}, s{sT2}"); A(f"s_and_b32 s{sT2}, s7, 3"); A(f"s_mul_i32 s{sT2}, s{sT2}, 320")
    A(f"s_add_u32 s{sT}, s{sT}, s{sT2}")
    if O.stamps and O.stm == 1: A("s_waitcnt lgkmcnt(0)"); A("s_mov_b32 s66, s98"); A("s_mov_b32 s67, s99")
    srd(A, sOUT, 84, 85, f"s{sT}", 127 * 2560 + 320)
    srd(A, sCNT, 86, 87, 0, 256)
    A(f"s_lshl_b32 s{sGI}, s{sGI}, 4"); A(f"s_add_u32 s{sGI}, s{sGI}, s7")
    A(f"s_lshl_b32 s{sOOF}, s7, 13")
    A(f"s_mov_b32 s{sKOFF}, 0"); A(f"s_mov_b32 s{sVOFF}, 0"); A(f"s_mov_b32 s{sSTUB}, 99")
    A(f"s_mov_b32 s{sTHR}, {hex(f32bits(2.0**O.thr_log2 if not O.forcefb else -1.0))}")
    A(f"s_mov_b32 s{sSC}, {hex(f32bits(128**-0.5*math.log2(math.e)))}"); A(f"s_mov_b32 s{sSC+1}, s{sSC}")
    A(f"v_lshrrev_b32 {vr(r)}, 2, {vr(i)}")
    A(f"v_and_b32 {vr(t0)}, 1, {vr(g)}"); A(f"v_lshl_add_u32 {vr(t0)}, {vr(t0)}, 2, {vr(r)}")
    A(f"v_lshl_add_u32 {vr(t1)}, {vr(g)}, 3, {vr(r)}"); A(f"v_lshlrev_b32 {vr(t1)}, 9, {vr(t1)}")
    A(f"v_and_b32 {vr(t2)}, 3, {vr(i)}"); A(f"v_lshl_add_u32 {vr(t1)}, {vr(t2)}, 3, {vr(t1)}"); A(f"v_add_u32 {vr(t1)}, {WQBASE}, {vr(t1)}")
    for n3 in range(8):
        A(f"v_xor_b32 {vr(t3)}, {n3}, {vr(t0)}"); A(f"v_lshl_add_u32 {vr(vAW+n3)}, {vr(t3)}, 5, {vr(t1)}")
    A(f"v_lshrrev_b32 {vr(t0)}, 1, {vr(i)}"); A(f"v_xor_b32 {vr(t0)}, {vr(t0)}, {vr(g)}")
    A(f"v_lshlrev_b32 {vr(t1)}, 7, {vr(i)}"); A(f"v_add_u32 {vr(t1)}, s{sXW}, {vr(t1)}")
    A(f"v_lshl_add_u32 {vr(vAX)}, {vr(t0)}, 4, {vr(t1)}"); A(f"v_xor_b32 {vr(vAX+1)}, 64, {vr(vAX)}")
    A(f"v_lshl_add_u32 {vr(t1)}, {vr(r)}, 4, {vr(t2)}"); A(f"v_lshlrev_b32 {vr(t1)}, 8, {vr(t1)}")
    A(f"v_and_b32 {vr(t0)}, 1, {vr(r)}"); A(f"v_lshlrev_b32 {vr(t0)}, 3, {vr(t0)}"); A(f"v_lshl_add_u32 {vr(t0)}, {vr(t2)}, 1, {vr(t0)}")
    A(f"v_lshrrev_b32 {vr(t3)}, 3, {vr(i)}"); A(f"v_add_u32 {vr(t0)}, {vr(t0)}, {vr(t3)}")
    A(f"v_and_b32 {vr(t3)}, 1, {vr(g)}"); A(f"v_lshl_add_u32 {vr(t3)}, {vr(t3)}, 1, {vr(h)}"); A(f"v_xor_b32 {vr(t0)}, {vr(t0)}, {vr(t3)}")
    A(f"v_lshl_add_u32 {vr(vAK)}, {vr(t0)}, 4, {vr(t1)}")
    for s in range(1, 4): A(f"v_xor_b32 {vr(vAK+s)}, {s*64}, {vr(vAK)}")
    A(f"v_lshl_add_u32 {vr(t1)}, {vr(g)}, 4, {vr(r)}"); A(f"v_lshlrev_b32 {vr(t1)}, 8, {vr(t1)}")
    A(f"v_and_b32 {vr(t0)}, 1, {vr(i)}"); A(f"v_lshl_add_u32 {vr(t1)}, {vr(t0)}, 3, {vr(t1)}"); A(f"v_add_u32 {vr(t1)}, {VBASE}, {vr(t1)}")
    A(f"v_and_b32 {vr(t0)}, 1, {vr(g)}"); A(f"v_lshlrev_b32 {vr(t0)}, 3, {vr(t0)}"); A(f"v_lshl_add_u32 {vr(t0)}, {vr(r)}, 1, {vr(t0)}")
    A(f"v_add_u32 {vr(t0)}, {vr(t0)}, {vr(h)}"); A(f"v_bfe_u32 {vr(t3)}, {vr(i)}, 1, 1"); A(f"v_xor_b32 {vr(t0)}, {vr(t0)}, {vr(t3)}")
    A(f"v_lshl_add_u32 {vr(vAV)}, {vr(t0)}, 4, {vr(t1)}")
    for db in range(1, 8): A(f"v_xor_b32 {vr(vAV+db)}, {db*32}, {vr(vAV)}")
    A(f"s_and_b32 s{sT}, s{sWAVE}, 1"); A(f"s_lshl_b32 s{sT}, s{sT}, 3"); A(f"s_lshr_b32 s{sT2}, s{sWAVE}, 1"); A(f"s_add_u32 s{sT}, s{sT}, s{sT2}")
    A(f"v_lshlrev_b32 {vr(t0)}, 1, {vr(g)}"); A(f"v_add_u32 {vr(t0)}, s{sT}, {vr(t0)}"); A(f"v_xor_b32 {vr(t0)}, {vr(t0)}, {vr(i)}")
    A(f"v_lshlrev_b32 {vr(t0)}, 4, {vr(t0)}"); A(f"v_lshl_add_u32 {vr(t0)}, {vr(g)}, 8, {vr(t0)}"); A(f"s_lshl_b32 s{sT}, s{sWAVE}, {16 if O.kperm else 12}"); A(f"v_add_u32 {vr(vOKV)}, s{sT}, {vr(t0)}")
    A(f"s_lshl_b32 s{sT}, s{sWAVE}, 19"); A(f"v_lshlrev_b32 {vr(t0)}, 4, {vr(lane)}"); A(f"v_add_u32 {vr(vOO)}, s{sT}, {vr(t0)}")
    if O.fuse:
        A(f"s_mul_i32 s{sT}, s{sWAVE}, {5120 - (1 << 19)}"); A(f"s_add_u32 s{sT}, s{sT}, 0x200000")
        A(f"s_mul_i32 s{sXI}, s7, 20480"); A(f"s_add_u32 s{sXI}, s{sXI}, s{sT}")
        A(f"s_xor_b32 s{sXO}, s7, 8"); A(f"s_mul_i32 s{sXO}, s{sXO}, 20480"); A(f"s_add_u32 s{sXO}, s{sXO}, s{sT}")
        for q in range(4): A(f"v_mov_b32 {vr(40+q)}, -1")
    def wo_touch(kk):
        if O.wopre != 100 + kk: return []
        return [[f"s_mov_b32 s{sWOI+2}, 5242880", f"s_mov_b32 s{sWOI+3}, 0x20000", f"s_and_b32 s3, s{sGI}, 127", "s_lshl_b32 s3, s3, 2", f"s_add_u32 s3, s3, s{sWAVE}", "s_mul_i32 s3, s3, 10240",
                 (f"buffer_load_dword v0, {vr(45)}, {sr(sWOI)}, s3 offen", "vm", "WOP")], ["s_add_u32 s3, s3, 5120", (f"buffer_load_dword v0, {vr(45)}, {sr(sWOI)}, s3 offen", "vm", "WOP")]]
    if 100 <= O.wopre <= 120: A(f"v_mul_u32_u24 {vr(45)}, 80, {vr(lane)}")
    if 0 <= O.wopre < 100:
        A(f"s_mov_b32 s{sWOI+2}, 5242880"); A(f"s_mov_b32 s{sWOI+3}, 0x20000")
        A(f"s_lshl_b32 s{sT}, s4, 2"); A(f"s_add_u32 s{sT}, s{sT}, s{sWAVE}"); A(f"s_mul_i32 s{sT}, s{sT}, 10240")
        A(f"v_lshlrev_b32 {vr(t0)}, 4, {vr(lane)}"); A(f"v_add_u32 {vr(vTMP)}, s{sT}, {vr(t0)}")
    L2S = [int(x) for x in O.l2s.split(',')] if O.l2s else []
    def l2t(kk): return [[f"s_mov_b32 s3, {(4 - (q & 1)) * 16384 + (q >> 1) * (256 << O.l2sh)}", (f"buffer_load_dword {ar(192)}, {vr(44)}, {sr(sV if q & 1 else sK)}, s3 offen{['', ' nt', ' sc1', ' sc0 sc1'][O.l2nt]}", "vm", "L2")] for q, at in enumerate(L2S) if at == kk]
    if L2S: A(f"v_lshlrev_b32 {vr(44)}, {O.l2sh}, {vr(lane)}"); A(f"s_lshl_b32 s{sT}, s{sWAVE}, {O.l2sh+6}"); A(f"v_add_u32 {vr(44)}, s{sT}, {vr(44)}")
    if O.kv0 < 0: flat([kv_groups("K", 0), kv_groups("V", 0)])
    stamp(A, "setup done", 1)
    def wo_pre(i, kk):
        n = 10 // O.wopn; r = []
        for q in range(i * n, (i + 1) * n):
            if q == i * n or q % 4 == 0:
                r.append([f"s_add_u32 m0, s{sKVW}, {0 if kk < 15 else 131072}", f"s_movk_i32 s{sT2}, {(q & ~3)*1024}"])
            r.append([(f"buffer_load_dwordx4 {vr(vTMP)}, {sr(sWOI)}, s{sT2} offen offset:{(q&3)*1024}{' nt' if O.wopre_nt else ''} lds", "vm", "WOP")])
        return r
    if O.wopre == 99: flat([wo_pre(0, 0)])
    def a_reads(kk):
        return [(f"ds_read_b64_tr_b16 {ar(AF(kk&1,nb)+2*jh,2)}, {vr(vAW+(nb&7))} offset:{(kk&3)*16384+jh*2048+(nb>>3)*256}", "ds", "A")
                for nb in range(16) for jh in range(2)]
    def x_reads(G):
        return [(f"ds_read_b128 {ar(XR(G,ks,qb),4)}, {vr(vAX+ks)} offset:{XB[G&1]+qb*2048}", "ds", "XR") for ks in range(2) for qb in range(4)]
    A.wait(vm=[("W", 0), ("X", 0)]); A("s_barrier")
    stamp(A, "wq0 landed"); stamp(A, "wq0 landed", 1); stamp(A, "wq0 landed", 3)
    for o in x_reads(0) + a_reads(0): A.op(o)
    flat([wq_dma(2), wq_dma(3)])
    cvl = []; C = cvl.append; cvdone = [0]
    def conv_front(hd, s, qb, T0, T1, tb):
        for T in (T0, T1):
            if O.cv19 and hd * 16 + s * 4 + qb < O.cvn:
                for q in range(4): C(f"v_mul_f32 {vr(T+q)}, s{sSC}, {vr(T+q)}")
                continue
            for q in range(2): C(f"v_pk_mul_f32 {vr(T+2*q,2)}, {vr(T+2*q,2)}, s[{sSC}:{sSC+1}]")
        for q in range(2): C(f"v_cvt_pk_bf16_f32 {vr(tb+q)}, {vr(T0+2*q)}, {vr(T0+2*q+1)}")
        for q in range(2): C(f"v_cvt_pk_bf16_f32 {vr(tb+2+q)}, {vr(T1+2*q)}, {vr(T1+2*q+1)}")
    def conv_back(hd, s, qb, tb):
        for q in range(2): C(f"v_permlane16_swap_b32 {vr(tb+q)}, {vr(tb+2+q)}")
    def conv_wr(hd, s, qb, tb):
        for q in range(4): C(f"v_accvgpr_write_b32 {ar(hd*64+(qb*4+s)*4+q)}, {vr(tb+q)}")
    jobs = []
    for pr in range(8):
        for qb in range(4):
            jobs.append((pr, qb))
    pend = []
    for n_, (pr, qb) in enumerate(jobs):
        if pr == 6 and qb == 0:
            for q in range(48): C(f"v_accvgpr_read_b32 {vr(48+q)}, {ar(208+q)}")
        def loc(nb): return 48 + (nb * 4 + qb) * 4 if nb < 13 else 48 + ((nb - 13) * 4 + qb) * 4
        tb = 16 + (n_ % 4) * 4
        mark = len(cvl)
        conv_front(pr >> 2, pr & 3, qb, loc(2 * pr), loc(2 * pr + 1), tb)
        cvl[mark] = [cvl[mark], 8 * pr + 7 + 8 if pr < 4 else 99]
        pend.append((pr >> 2, pr & 3, qb, tb))
        if len(pend) >= 2: conv_back(*pend[-2])
        if len(pend) >= 3: conv_wr(*pend[-3])
    C("s_nop 1"); conv_back(*pend[-1]); conv_wr(*pend[-2]); C("s_nop 0"); conv_wr(*pend[-1])
    KVS = [int(x) for x in O.kvs.split(",")]
    assert KVS[2] >= 15 and KVS[3] >= 15 and KVS[4] >= 16 and KVS[5] >= 17 and KVS[6] >= 17 and KVS[0] <= KVS[2] <= KVS[3] <= KVS[5] and KVS[1] <= KVS[4] <= KVS[6]
    for kk in range(20):
        A.c(f"---- qproj step {kk}")
        G, ks = kk >> 1, kk & 1
        if kk in (1, 4): stamp(A, f"step{kk}", 1)
        if kk in (4, 8, 12, 15): stamp(A, f"step{kk}", 3)
        nd = ([("W", kk + 1)] if kk + 1 < 20 else []) + ([("X", G + 1)] if ks == 0 and G + 1 < 10 else [])
        A.wait(vm=nd, dsn=0); A("s_barrier")
        mf = [f"{MF} {ACC(nb,qb)}, {ar(AF(kk&1,nb),4)}, {ar(XR(G,ks,qb),4)}, {ACC(nb,qb) if kk else '0'}" for nb in range(16) for qb in (range(3, -1, -1) if nb & 1 and O.snake & 4 else range(4))]
        gaps = {q: [] for q in range(64)}
        mem = []
        if kk + 4 < 20: mem += wq_dma(kk + 4)
        if kk == 0: mem += x_dma(2)
        if ks == 1 and G + 3 < 10: mem += x_dma(G + 3)
        if 0 <= O.wopre < 100 and O.wopre <= kk < O.wopre + O.wopn: mem += wo_pre(kk - O.wopre, kk)
        if O.fuse and kk == O.xfill: mem += mbox("store", lambda t: vr(40, 4), sXI, "XF")
        mem += l2t(kk) + wo_touch(kk)
        for (kind, tile), at in zip((("K", 0), ("V", 0), ("K", 1), ("K", 2), ("V", 1), ("K", 3), ("V", 2)), KVS):
            if kk == at: mem += kv_groups(kind, tile)
        rd = (x_reads(G + 1) if ks == 0 and G + 1 < 10 else []) + (a_reads(kk + 1) if kk + 1 < 20 else [])
        sp = max(2, min(O.qsp, 56 // max(1, len(mem))))
        for q, ops in enumerate(mem): gaps[1 + sp * q] += ops
        fr = [q for q in range(60) if not gaps[q]]
        two = max(0, len(rd) - len(fr))
        fr = sorted(fr + fr[:two])
        for q, o in enumerate(rd): gaps[fr[(q * len(fr)) // len(rd)]].append(o)
        gaps[63] += ["s_nop 7"] * O.qpad
        if kk == 19 and O.cv19: cvdone[0] = interleave(A, mf, gaps, stream=cvl, partial=True, budget=O.cvb)
        else: interleave(A, mf, gaps)
    stamp(A, "qproj done"); stamp(A, "qproj done", 3)
    if O.fuse and O.xfill == 20: flat([mbox("store", lambda t: vr(40, 4), sXI, "XF")])
    for (kind, tile), at in zip((("K", 0), ("V", 0), ("K", 1), ("K", 2), ("V", 1), ("K", 3), ("V", 2)), KVS):
        if at == 20: flat([kv_groups(kind, tile)])
    flat([l2t(20), wo_touch(20)])
    A("s_nop 7")
    for o in cvl[cvdone[0]:]: A(o[0] if isinstance(o, list) else o)
    A(f"s_mov_b32 s{sT3}, 0x3f803f80")
    if not O.vsum and not O.smf:
        for q in range(4): A(f"v_accvgpr_write_b32 {ar(aONE+q)}, s{sT3}")
    if O.dumpq:
        A(f"s_lshl_b32 s{sT}, s5, 7"); A(f"s_lshl_b32 s{sT2}, s6, 4"); A(f"s_add_u32 s{sT}, s{sT}, s{sT2}"); A(f"s_add_u32 s{sT}, s{sT}, s7")
        A(f"s_lshl_b32 s{sT}, s{sT}, 17"); A(f"s_add_u32 s{sT}, s{sT}, {QDUMP_WS_OFF}")
        srd(A, sDBG, sWS, sWS + 1, f"s{sT}", "0x20000")
        A(f"v_and_b32 {vr(16)}, 0x3ff, {vr(vOO)}"); A(f"s_lshl_b32 s{sT}, s{sWAVE}, 15"); A(f"v_add_u32 {vr(16)}, s{sT}, {vr(16)}")
        for q in range(32):
            A(f"s_mov_b32 s{sT}, {q*1024}")
            A(f"buffer_store_dwordx4 {ar(4*q,4)}, {vr(16)}, {sr(sDBG)}, s{sT} offen")
        A("s_waitcnt vmcnt(0)")
    if O.xfill == 30:
        for q in range(4): A(f"v_accvgpr_write_b32 {ar(224+q)}, -1")
    if O.fuse and not O.oek: oproj_early(A, 16)
    A.wait(vm=[("K", 0)]); A("s_barrier")
    if O.stag:
        A("s_lshr_b32 s3, s2, 3"); A(f"s_and_b32 s3, s3, {O.stagm}"); A(f"s_mul_i32 s3, s3, {O.stag}"); A("s_memrealtime s[50:51]"); A("s_waitcnt lgkmcnt(0)"); A("s_add_u32 s3, s3, s50")
        A.label("L_stag"); A("s_memrealtime s[50:51]"); A("s_waitcnt lgkmcnt(0)"); A("s_sub_u32 s4, s3, s50"); A("s_cmp_gt_i32 s4, 0"); A("s_cbranch_scc1 L_stag")
    stamp(A, "conv done")
    if O.exitat == 1: A("s_branch L_exit")
    A(f"s_mov_b32 s{sUNIT}, 0")
    if O.trace: A("s_mov_b64 s[52:53], 1"); A("s_memrealtime s[50:51]"); A("v_mov_b32 v0, 0")
    assert A.vm_n([("K", 1), ("V", 0)]) >= O.fvm
    A.label("L_unit")
    A(f"s_mov_b32 s{sLOOP}, 3")
    ncls = 2 if O.twocls else 1
    if ncls == 2:
        A(f"s_bitcmp1_b32 s{sWAVE}, 0"); A("s_cbranch_scc1 L_first_1")
    ds6 = None
    for cls in range(ncls):
        A.label(f"L_first_{cls}")
        A.ds = []
        first_slot(A, cls)
        kn0 = tuple(int(x) for x in O.u0.split(",")) if O.u0 else None
        slot(A, 1, cls, f"second_{cls}", zero=True, tail=[f"s_cmp_lg_u32 s{sUNIT}, 0", "s_cbranch_scc1 L_loop_1"] if kn0 else [])
        for cp in range(2 if kn0 else 1):
            ds_in = list(A.ds)
            if cp == 0 and O.xfill == 30: flat([mbox("store", lambda t: ar(224, 4), sXI, "XF")])
            A.label(f"L_loop_{cp}")
            for p in (2, 3, 4, 5, 6, 7, 0, 1):
                tail = []
                if p == 6 and (cp == 0) == (O.u0n == 4): tail = [f"s_cmp_eq_u32 s{sLOOP}, 0", "s_cbranch_scc1 L_last"]
                if p == 7 and O.fuse and (cp or not kn0): tail = [f"s_cmp_eq_u32 s{sLOOP}, s{sSTUB}", "s_cbranch_scc1 L_tail"]
                if p == 1:
                    tail = [f"s_sub_u32 s{sLOOP}, s{sLOOP}, 1"]
                    if cp == 0 and O.u0n < 4: tail += [f"s_cmp_gt_u32 s{sLOOP}, {3 - O.u0n}", "s_cbranch_scc1 L_loop_0"]
                    else: tail += [f"s_branch L_loop_{cp}"]
                slot(A, p, cls, f"p{p}_{cp}", tail=tail, kn=kn0 if cp == 0 else None)
                if p == 6 and (cp == 0) == (O.u0n == 4): ds6 = list(A.ds)
                if p == 7: ds7 = list(A.ds)
    if O.stamps and O.stm == 4: nstamp[0] += 1; stamp_names.append("loopback")
    A.label("L_last")
    if not O.fuse: stamp(A, "last", 4)
    A.ds = list(ds6)
    last_slot(A, O.est if O.fuse else 4)
    if O.chk:
        A(f"s_cmp_lg_u64 s[{sM}:{sM+1}], 0"); A("s_cbranch_scc1 L_fb")
    if not O.fuse:
        A(f"s_cmp_lg_u32 s{sUNIT}, 0"); A("s_cbranch_scc1 L_fbret1")
    A.label("L_fbret0")
    stamp(A, "unit0 end"); stamp(A, "unit0 end", 2)
    if O.exitat == 2: A("s_branch L_exit")
    A(f"s_mov_b32 s{sUNIT}, 1"); A(f"s_add_u32 s{sOOF}, s{sOOF}, 4096"); A(f"s_mov_b32 s{sSTUB}, 1")
    if O.fuse and O.wopre >= 300:
        sh = O.wopre - 300
        A(f"v_bfe_u32 v0, {vr(vOO)}, 4, 6"); A("s_lshr_b32 s3, s2, 3"); A(f"s_lshl_b32 s3, s3, 2"); A(f"s_add_u32 s3, s3, s{sWAVE}"); A("s_lshl_b32 s3, s3, 6")
        A("v_add_u32 v0, s3, v0"); A(f"v_lshlrev_b32 v0, {12 - sh}, v0"); A("s_lshr_b32 s3, s7, 3"); A("s_mul_i32 s3, s3, 2621440")
        A(f"v_cmp_gt_u32 vcc, 2621440, v0"); A("s_and_saveexec_b64 s[100:101], vcc")
        A(f"buffer_load_dword {ar(224)}, v0, {sr(sW)}, s3 offen"); A("s_mov_b64 exec, -1")
    if not O.mvk: unit_moves(A)
    A("s_branch L_unit")
    if O.fuse:
        A.label("L_tail")
        stamp(A, "tail", 2); stamp(A, "tail", 4)
        if O.trace:
            srd(A, 56, sWS, sWS + 1, 132 << 20, 4 << 20); A("s_lshl_b32 s3, s2, 10")
            A(f"buffer_store_dword v0, {vr(vOO)}, s[56:59], s3 offen")
        A.ds = list(ds7)
        A.vm = [("G", 9)] * 8 + [("G", 10)] * 8 + (["WOP"] if O.wopre == 250 else []) + [("G", 11)] * 8
        def st0(qbs):
            r = []
            for qb in qbs:
                if qb < O.est: continue
                r.append([f"s_add_u32 s{sT}, s{sOOF}, {qb*131072 - 4096}"] if qb else [f"s_sub_u32 s{sT}, s{sOOF}, 4096"])
                r += [[o_store(ar(aQ2 + (qb * 4 + t) * 4, 4), qb, t, "ST0", sT)] for t in range(4)]
            return r
        v15 = dma_v(3, ("G", 12))
        sq = {0: ([0], [1, 2], [3]), 1: ([1], [2], [3]), 2: ([2], [3], []), 3: ([3], [], []), 4: ([], [], [])}[O.est]
        def wt(t): return (wo_t(0, 0, ar(224)) if t == O.wo0 else []) + (wo_t(1, 0, ar(225)) if t == O.wo1 else [])
        def f1(t): return flag_ops(1, "f1") if t == O.f1at else ()
        def vt(t, g): return [("G", g)] + (["ST0"] if t == O.f1at else [])
        slot(A, 0, 0, "t24", groups=[[v15[0]]] + [[o] for o in v15[1]] + wt(24) + st0(sq[0]), vmtags=vt(24, 9), after_bar=f1(24))
        slot(A, 1, 0, "t25", groups=wt(25) + st0(sq[1]))
        slot(A, 2, 0, "t26", groups=st0(sq[2]) + wt(26) + w_dma(0, 0, True), vmtags=vt(26, 10), after_bar=f1(26))
        def touch(lo, hi):
            if O.wopre != 200: return []
            r = []
            for q in range(lo, hi):
                if q == lo or q % 4 == 0: r.append([f"s_add_u32 s{sT}, s{sTW}, {(q & ~3)*1024}"])
                r.append([(f"buffer_load_dwordx4 {ar(224+(q&7)*4,4)}, {vr(vOO)}, {sr(sW)}, s{sT} offen offset:{(q&3)*1024}{' nt' if O.wopre_nt else ''}", "vm", "WOP")])
            return r
        slot(A, 3, 0, "t27", groups=w_dma(0, 1, True) + touch(0, 5) + wt(27))
        slot(A, 4, 0, "t28", groups=w_dma(1, 0, True) + (o_ld_early(0) if O.eo else []), vmtags=vt(28, 11), after_bar=f1(28), tail=poll_ops("p0", 0) if O.eo == 1 else ())
        slot(A, 5, 0, "t29", groups=touch(5, 10) + wt(29) + w_dma(1, 1, True), tail=poll_ops("p0", 0) if O.eo == 3 else ())
        slot(A, 6, 0, "t30", groups=w_dma(2, 0, True) + (o_ld_early(1) if O.eo == 1 else w_dma(2, 1, True) if O.eo == 3 else []), vmtags=vt(30, 12), after_bar=f1(30),
             before_bar=[("", "call", lambda A_: poll_check(A_, 0x01010101, "u0", None, "p0"))] if O.eo == 1 else (),
             tail=([("", "call", lambda A_: poll_check(A_, 0x01010101, "u0", None, "p0")), "s_barrier"] if O.eo == 3 else []) + [f"v_accvgpr_read_b32 {vr(vPOLL)}, {ar(aPOLL)}"] + poll_ops("p1"))
        stamp(A, "last1", 2)
        oproj_setup(A)
        def mid():
            A.wait(dsn=0)
            poll_check(A, 0x01010101, "u1", vOWX, "p1")
            A("s_barrier")
        if O.eo:
            assert O.f1at <= 26 and O.est >= 2 and O.own1
            if O.eo == 1: last_slot(A, 4, extra1=w_dma(2, 1) + o_ld(2), mid=mid)
            if O.eo == 2: last_slot(A, 4, extra1=w_dma(2, 1), mid=mid, extra2=o_ld(1) + o_ld(2))
            if O.eo == 3: last_slot(A, 4, extra1=o_ld(1) + o_ld(2), mid=mid)
        elif O.own1: last_slot(A, 4, extra1=w_dma(2, 1) + o_ld(0), mid=mid, extra2=o_ld(1) + o_ld(2))
        else: last_slot(A, 4, extra1=w_dma(2, 1), mid=mid, extra2=o_ld(0) + o_ld(1) + o_ld(2))
        if O.chk:
            A(f"s_cmp_lg_u64 s[{sM}:{sM+1}], 0"); A("s_cbranch_scc1 L_fb")
        A.label("L_fbret1")
        stamp(A, "unit1 end"); stamp(A, "unit1 end", 2); stamp(A, "unit1 end", 5); stamp(A, "unit1 end", 6)
        if O.exitat == 3: A("s_branch L_exit")
        oproj(A)
    else:
        A.label("L_fbret1")
        stamp(A, "unit1 end")
    if O.exitat: A.label("L_exit")
    if O.stamps: emit_stamps(A)
    A.label("L_end")
    A("s_endpgm")
    if O.chk:
        fallback(A)
    emit_spins(A)
    A.label("L_codeend")
    return kstart(k) + A.text()

def emit_stamps(A):
    A("s_waitcnt vmcnt(0) lgkmcnt(0)")
    A(f"s_memtime s[8:9]"); A(f"s_memrealtime s[10:11]")
    A("s_waitcnt lgkmcnt(0)")
    srd(A, sDBG, sWS, sWS + 1, STAMP_WS_OFF, "0x100000")
    A(f"s_lshl_b32 s3, s2, 2"); A(f"s_add_u32 s3, s3, s{sWAVE}"); A("s_lshl_b32 s3, s3, 7")
    A("v_mov_b32 v0, s3")
    n = nstamp[0]
    regs = [(j, sSTAMP + 2 * j) for j in range(n)] + [(n, 8)] + [(8 + j, 62 if j == 0 else sRSTAMP + 2 * j) for j in range(n)] + [(8 + n, 10)]
    A("s_getreg_b32 s4, hwreg(HW_REG_XCC_ID)")
    regs.append((16, 4))
    for j, s_ in regs:
        A(f"v_mov_b32 v1, s{s_}")
        A(f"buffer_store_dword v1, v0, {sr(sDBG)}, 0 offen offset:{4*j}")
    A("s_waitcnt vmcnt(0)")

def main():
    ap = argparse.ArgumentParser()
    for k_, v_ in vars(Opt).items():
        if k_.startswith("_"): continue
        if isinstance(v_, bool): ap.add_argument("--" + k_, type=lambda s: bool(int(s)), default=v_)
        elif isinstance(v_, int): ap.add_argument("--" + k_, type=int, default=v_)
        else: ap.add_argument("--" + k_, default=v_)
    a = ap.parse_args()
    for k_, v_ in vars(a).items(): setattr(O, k_, v_)
    assert O.fvm <= 16 + 4 * O.est
    O.smpos_ = [int(x) for x in O.smpos.split(',')]
    hdr = open("cdna_kernels/" + NAME + ".s.ref").read().split("; Override launch")[0]
    out = hdr
    out += "; @launch kernel=attn_kernel grid=(256,1,1) block=(256,1,1) lds=163840\n"
    body = gen_kernel("attn_kernel")
    if O.stamps: out += "; stamps: " + ",".join(stamp_names) + ",end\n"
    out += '.amdgcn_target "amdgcn-amd-amdhsa--gfx950"\n.text\n'
    out += body + kd("attn_kernel")
    lines = out.split("\n")
    if O.skip_loop:
        iu = lines.index("L_unit:"); il = lines.index("L_last:")
        lines = lines[:iu] + [l for l in lines[iu:il] if not ("buffer_load_dwordx4" in l and " lds" in l)] + lines[il:]
    il = lines.index("L_last:")
    if O.skip_oo: lines = lines[:il] + [l for l in lines[il:] if not ("buffer_load_dwordx4 a[" in l and "s[8:11]" in l)]
    if O.skip_ow: lines = lines[:il] + [l for l in lines[il:] if not ("s[12:15]" in l and " lds" in l)]
    iu = lines.index("L_unit:")
    if O.skip_x: lines = [l for l in lines[:iu] if not ("s[8:11]" in l and " lds" in l)] + lines[iu:]
    if O.skip_w: lines = [l for l in lines[:iu] if not ("s[12:15]" in l and " lds" in l)] + lines[iu:]
    sys.stdout.write("\n".join(lines))
main()
```

```python
import sys, math, argparse, re, struct, copy

NAME = "concat_heads__gqa_block_cached__gqa_block_cached__near_ridge"

class Opt:
    stamps = False
    dumpq = False
    kv_nt = True
    fuse = True
    twocls = False
    D = 6
    bar = 20
    burst = 1
    dper = 3
    qsp = 4
    w_nt = True
    x_nt = True
    wo_nt = False
    kv0 = 15
    pubw = 11
    map2 = True
    pub2 = 1
    pub1 = 28
    poll2 = 8
    thr_log2 = 30
    skip_loop = False
    skip_x = False
    skip_w = False
    forcefb = False
    budget = 8
    wpre = True
    o_sc1 = True
    chk = True
    stm = 0
    cpre = True
    rot = 0
    wfake = False
    noinv = False
    skip_oo = False
    skip_ow = False
    st_sc1 = True
    wopre = 200
    wopre_nt = False
    wopn = 1
    ndef = 4
    xbar = 60
    own1 = True
    obar = 4
    osp = 2
    xdense = True
    vlate = 4
    vsum = False
    pad = 0
    vmn = 16
    kvs = "13,14,15,16,17,18,19"
    outfl = 0
    trace = False
    xld = 40
    xfill = 18
    lfake = False
    whalf = False
    ofake = False
    walign = False
    wofl = 0
    fvm = 20
    u0n = 4
    kperm = 0
    fs2 = 12
    lsb = 12
    oek = False
    qrd = 60
    wup = 0
    x1l = True
    eo = 0
    wo0 = 24
    wo1 = 1
    mvk = True
    cvn = 8
    cvb = 12
    cv19 = True
    u0 = "16,8,20"
    klate = 0
    stfl = 0
    stfl1 = 0
    xffl = 0
    est = 1
    f1at = 28
    snake = 15
    kvfl = 0
    qpad = 0
    upad = 0
    upadm = 0
    stag = 0
    stagm = 3
    exitat = 0
    l2n = 0
    l2s = ""
    l2nt = 0
    l2sh = 6
    smpos = "3,7"
    smf = True

O = Opt()

class Asm:
    def __init__(self):
        self.L = []
        self.vm = []
        self.ds = []
        self.nvm = 0; self.mark = {}
    def __call__(self, s):
        if s.endswith(" lds") and self.L and " m0," in self.L[-1]: self.L.append("    s_nop 0")
        self.L.append(s if s.endswith(":") else "    " + s)
    def label(self, s): self.L.append(s + ":")
    def c(self, s): self.L.append("    ; " + s)
    def text(self): return "\n".join(self.L) + "\n"
    def vm_n(self, tags):
        idx = [i for i, t in enumerate(self.vm) if t in tags]
        if not idx: return None
        return min(63, len(self.vm) - 1 - max(idx))
    def ds_n(self, tags):
        idx = [i for i, t in enumerate(self.ds) if t in tags]
        if not idx: return None
        return min(15, len(self.ds) - 1 - max(idx))
    def wait(self, vm=None, ds=None, vmn=None, dsn=None):
        a = self.vm_n(vm) if vm else None
        b = self.ds_n(ds) if ds else None
        if vmn is not None: a = vmn if a is None else min(a, vmn)
        if dsn is not None: b = dsn if b is None else min(b, dsn)
        p = []
        if a is not None:
            p.append(f"vmcnt({a})"); self.vm = self.vm[len(self.vm) - a:] if a else []
        if b is not None:
            p.append(f"lgkmcnt({b})"); self.ds = self.ds[len(self.ds) - b:] if b else []
        if p: self("s_waitcnt " + " ".join(p))
    def op(self, o):
        if isinstance(o, str): self(o); return
        if o[1] == "vm": self.vm.append(o[2]); self.nvm += 1
        elif o[1] == "mark": self.mark[o[2]] = self.nvm
        elif o[1] == "call": o[2](self); return
        elif o[1] == "ds": self.ds.append(o[2])
        elif o[1] == "wait": self.wait(**o[2]); return
        self(o[0])

def vr(b, n=1): return f"v{b}" if n == 1 else f"v[{b}:{b+n-1}]"
def ar(b, n=1): return f"a{b}" if n == 1 else f"a[{b}:{b+n-1}]"
def sr(b, n=4): return f"s[{b}:{b+n-1}]"
def f32bits(x): return struct.unpack("<I", struct.pack("<f", x))[0]
MF = "v_mfma_f32_16x16x32_bf16"

def kd(k, vgpr=512, acc=256, sgpr=102):
    return f""".section .rodata,"a"
.p2align 6
.amdhsa_kernel {k}
  .amdhsa_next_free_vgpr {vgpr}
  .amdhsa_next_free_sgpr {sgpr}
  .amdhsa_accum_offset {acc}
  .amdhsa_group_segment_fixed_size 0
  .amdhsa_kernarg_size 104
  .amdhsa_user_sgpr_count 2
  .amdhsa_user_sgpr_kernarg_segment_ptr 1
  .amdhsa_system_sgpr_workgroup_id_x 1
.end_amdhsa_kernel
.text
"""
def kstart(k): return f".globl {k}\n.p2align 8\n.type {k},@function\n{k}:\n"

WOF_OFF = 48 << 20
STAMP_WS_OFF = 128 << 20
QDUMP_WS_OFF = 64 << 20
sTW = 65
sXI, sXO = 78, 79

sX, sW, sK, sV, sO = 8, 12, 16, 20, 24
sWAVE, sKVW, sVVW, sWQW, sKOFF, sVOFF, sXW, sLOOP, sUNIT, sT, sTHR, sT3 = range(28, 40)
sSC, sOOF, sFB, sT2, sGI, sWS = 40, 42, 43, 44, 45, 46
sSTAMP, sRSTAMP = 48, 64
sCNT, sDBG, sWOI, sWOF, sOUT = 80, 84, 88, 92, 96
sM = 100
vAK, vAV, vOKV, vOO, vTMP = 1, 5, 13, 14, 15
vIDX, vPOLL, aPOLL, aPOLL1, aOQ = 15, 30, 222, 223, 200
vNEGM, vS, vP, vO = 16, 32, 96, 128
aQ, aQ2, aKF, aVF, aL, aONE = 0, 64, 128, 160, 192, 208
KBASE, VBASE, WQBASE, FBBASE = 0, 65536, 98304, 131072
XB = (16384, 49152)
FLAG_OFF = 60 << 20
sFLG, sSTUB = 84, sFB

def S(buf, qb, kb): return vS + buf * 32 + (qb * 2 + kb) * 4
def P(buf, qb): return vP + buf * 16 + qb * 4
def NEGM(qb): return vNEGM + qb * 4
def Q(qb, s): return aQ + (qb * 4 + s) * 4
def OA(db, qb): return vO + (qb * 8 + db) * 4
def LA(qb): return aL + qb * 4
vL = 252
def OAT(db, qb): return ar(aL, 4) if O.vsum and (db, qb) == (7, 3) else vr(OA(db, qb), 4)

nstamp = [0]
stamp_names = []
def stamp(A, name, mode=0):
    if not O.stamps or (mode != O.stm and name != "t0"): return
    i = nstamp[0]; nstamp[0] += 1; stamp_names.append(name)
    assert i < 7
    A(f"s_memtime s[{sSTAMP+2*i}:{sSTAMP+2*i+1}]")
    r = 62 if i == 0 else sRSTAMP + 2 * i
    A(f"s_memrealtime s[{r}:{r+1}]")

def cost(o):
    t = o if isinstance(o, str) else o[0]
    if t.endswith(":"): return 0
    if not isinstance(o, str) and o[1] in ("wait", "call"): return 0
    if t.startswith(("v_exp", "v_rcp")): return 8
    if t.startswith("buffer_"): return 8
    if t.startswith("s_nop"): return 4 * (int(t.split()[1]) + 1)
    if t.startswith("v_cvt_pk") or t.startswith("v_max3") or t.startswith("v_perm"): return 5
    if t.startswith("v_pk_"): return 8
    return 4

def interleave(A, mf, fixed=None, stream=(), pre=None, budget=None, need=None, partial=False):
    budget = O.budget if budget is None else budget
    fixed = fixed or {}; pre = pre or {}; need = need or {}
    st = list(stream); si = 0; debt = 0
    for g in range(len(mf)):
        for t in pre.get(g, []): A.op(t)
        if g in need: A.wait(ds=need[g])
        A(mf[g])
        fx = fixed.get(g, [])
        room = budget - sum(cost(o) for o in fx) - debt
        for o in fx: A.op(o)
        while si < len(st):
            o, at = st[si] if isinstance(st[si], list) else (st[si], 0)
            if at > g: break
            c = cost(o)
            if room <= 0 or (c > room + 1): break
            A.op(o); room -= c; si += 1
        debt = 0
    if partial: return si
    while si < len(st):
        o = st[si][0] if isinstance(st[si], list) else st[si]
        A.op(o); si += 1

NT_KV = lambda: [" nt", "", " sc1", " sc1 nt", " sc0 sc1 nt", " sc0 nt", " sc0 sc1"][O.kvfl]
SC1 = lambda: " sc1" if O.o_sc1 else ""
OFL = lambda: ["", " sc1", " sc0 sc1", " nt", " sc1 nt", " sc0 sc1 nt"][O.outfl]
def adv(off):
    if O.kperm: return f"s_add_u32 s{off}, s{off}, 0x1000\n    s_and_b32 s3, s{off}, 0x10000\n    s_mul_i32 s3, s3, 3\n    s_add_u32 s{off}, s{off}, s3   ; 0x4000"
    return f"s_add_u32 s{off}, s{off}, 0x4000"
def vphys(ring): return (ring + 1) & 3
def dma_k(ring, tag):
    return (f"s_add_u32 m0, s{sKVW}, {ring*16384}",
            [(f"buffer_load_dwordx4 {vr(vOKV)}, {sr(sK)}, s{sKOFF} offen offset:{p*1024}{NT_KV()} lds", "vm", tag) for p in range(4)],
            adv(sKOFF))
def dma_v(ring, tag):
    return (f"s_add_u32 m0, s{sVVW}, {vphys(ring)*16384}",
            [(f"buffer_load_dwordx4 {vr(vOKV)}, {sr(sV)}, s{sVOFF} offen offset:{p*1024}{NT_KV()} lds", "vm", tag) for p in range(4)],
            adv(sVOFF))
def k_reads(ring, h, dst=aKF):
    return [(f"ds_read_b128 {ar(dst+(kb*4+s)*4,4)}, {vr(vAK+s)} offset:{ring*16384+(2*h+kb)*1024}", "ds", ("F", dst + (kb*4+s)*4))
            for kb in range(2) for s in range(4)]
def v_reads(ring, h):
    return [(f"ds_read_b64_tr_b16 {ar(aVF+db*4+2*jh,2)}, {vr(vAV+db)} offset:{vphys(ring)*16384+h*2048+jh*1024}", "ds", ("F", aVF + db*4))
            for db in range(8) for jh in range(2)]
def pv_mf(buf, zero=False, qbmajor=False):
    r = []
    def pv(db, qb): return (f"{MF} {OAT(db,qb)}, {ar(aVF+db*4,4)}, {vr(P(buf,qb),4)}, {'0' if zero else OAT(db,qb)}", aVF + db*4, qb)
    def sm(qb): return (f"{MF} {ar(LA(qb),4)}, {ar(aONE,4)}, {vr(P(buf,qb),4)}, {'0' if zero else ar(LA(qb),4)}", None, qb)
    def sm2(pr): return (f"v_smfmac_f32_16x16x64_bf16 {ar(LA(pr),4)}, {ar(aONE,4)}, {vr(P(buf,2*pr),8)}, {vr(vIDX)}", None, 2 * pr)
    if qbmajor:
        for qb in range(4):
            if O.smf:
                if not qb & 1: r.append(sm2(qb >> 1))
            elif not O.vsum: r.append(sm(qb))
            r += [pv(7 - db if qb & 1 and O.snake & 1 else db, qb) for db in range(8)]
    else:
        for db in range(8):
            r += [pv(db, 3 - qb if db & 1 and O.snake & 1 else qb) for qb in range(4)]
            if O.smf:
                if db in O.smpos_: r.append(sm2(O.smpos_.index(db)))
            elif db & 1 and not O.vsum: r.append(sm(db >> 1))
    return r
def qk_mf(buf, zero=False, kf=aKF, snake=False):
    r = []
    order = [(qb, kb, s) for qb in range(4) for kb in range(2) for s in range(4)]
    if snake: order = [(p * 2 + (q ^ ((kb + s) & 1)), kb ^ (s & 1), s) for p in range(2) for s in range(4) for kb in range(2) for q in range(2)]
    for qb, kb, s in order:
        c = vr(S(buf,qb,kb),4) if s else ("0" if zero else vr(NEGM(qb),4))
        r.append((f"{MF} {vr(S(buf,qb,kb),4)}, {ar(kf+(kb*4+s)*4,4)}, {ar(Q(qb,s),4)}, {c}", kf + (kb*4+s)*4, qb))
    return r
def ex(b, e): return f"v_exp_f32 {vr(vS+b*32+e)}, {vr(vS+b*32+e)}"
def cv(b, i): return f"v_cvt_pk_bf16_f32 {vr(vP+b*16+i)}, {vr(vS+b*32+2*i)}, {vr(vS+b*32+2*i+1)}"
def ad(b, e): return f"v_add_f32 {vr(vL+(e>>3))}, {vr(vL+(e>>3))}, {vr(vS+b*32+e)}"
def needs(mfs, group=2):
    nd = {}; seen = []
    for g, m in enumerate(mfs):
        if m[1] is not None and m[1] not in seen: seen.append(m[1]); nd[g] = m[1]
    items = sorted(nd.items())
    out = {}
    for i in range(0, len(items), group):
        out[items[i][0]] = [("F", t) for _, t in items[i:i + group]]
    return out
def lastuse(mfs):
    lu = {}
    for g, m in enumerate(mfs):
        if m[1] is not None: lu[m[1]] = g
    return lu

def barrier_ops(cls, g, pre, gaps, vmtags=None, first=False):
    w = ("", "wait", dict(vmn=O.fvm if first else O.vmn + (O.fuse and O.wopre == 250), dsn=0) if vmtags is None else dict(vm=vmtags, dsn=0))
    if cls == 0: pre[g] = [w, "s_barrier"]
    else:
        pre[g] = [w]; gaps[g].insert(0, "s_barrier")

def is_vm(o): return not isinstance(o, str) and o[1] == "vm"
def slot(A, p, cls, tag, zero=False, tail=(), groups=None, vmtags=None, after_bar=(), kn=None, before_bar=()):
    D = O.D; even = (p & 1) == 0; buf = p & 1; t_ = p >> 1
    vlate, klate, bar0 = kn or (O.vlate, O.klate, O.bar)
    A.c(f"---- slot {tag} pos={p} cls={cls}")
    kr = k_reads(((p + 1) >> 1) & 3, (p + 1) & 1)
    vq = v_reads(t_ & 3, p & 1)
    pvm = pv_mf(buf ^ 1, zero); mfs = pvm + qk_mf(buf ^ 1, snake=O.snake & 2)
    n = len(mfs); npv = len(pvm)
    gaps = {g: [] for g in range(n)}; pre = {}
    seq = [(buf, e) for e in range(D, 32)] + [(buf ^ 1, e) for e in range(D)]
    eg = [2 * i for i in range(32 - D)] + [n - 64 + 2 * i for i in range(32 - D, 32)]
    for g, (b, e) in zip(eg, seq): gaps[g].append(ex(b, e))
    free = [g for g in range(n) if g not in eg]
    cvg = {g + 1: cv(b, e >> 1) for g, (b, e) in zip(eg, seq) if e & 1}
    if even and bar0 <= npv: klate = 0
    for g, t in zip(free[:8 - klate], kr): gaps[g].append(t)
    need = {}
    if klate:
        gaps[npv - 1] += kr[8 - klate:]
        need = {g: t for g, t in needs(mfs).items() if g >= npv}
    lu = lastuse(pvm)
    pre[0] = [("", "wait", dict(dsn=0))]
    if O.trace and groups is None:
        pre[0] += ["s_mov_b64 exec, s[52:53]", "v_mov_b32 v0, s50", "s_mov_b64 exec, -1", "s_lshl_b64 s[52:53], s[52:53], 1"]
        gaps[n - 3].append("s_memrealtime s[50:51]")
    if groups is None:
        kg = dma_k(t_ & 3, "KV"); vg = dma_v((t_ + 3) & 3, "KV")
        if even: flat = [kg[0]] + kg[1] + [vg[0], kg[2]] + (vg[1] + [vg[2]] if O.burst == 1 else [])
        else: flat = vg[1] + [vg[2]] if O.burst == 2 else []
        if O.fuse and O.wopre == 250 and p in (1, 5):
            flat = flat + [(f"buffer_load_dwordx4 {ar(224,4)}, {vr(vOO)}, {sr(sW)}, s{sTW} offen{' nt' if O.wopre_nt else ''}", "vm", "WOP"), f"s_add_u32 s{sTW}, s{sTW}, 1024", f"s_min_u32 s{sTW}, s{sTW}, s{sTW-1}"]
    else:
        flat = [o for grp in groups for o in grp]
    dm = [o for o in flat if is_vm(o)]
    bar = bar0 if even else 15
    if even:
        barrier_ops(cls, bar, pre, gaps, vmtags)
        if after_bar: pre[bar + 1] = list(after_bar)
        pre[bar][1:1] = list(before_bar)
    rest = [g for g in free if g > bar]
    if klate: rest = [g for g in rest if g != npv - 1]
    if vlate:
        gaps[n - 1] += vq[len(vq) - vlate:]; vq = vq[:len(vq) - vlate]
        rest = [g for g in rest if g != n - 1]
    lack = len(dm) + len(vq) - len(rest)
    xg = set()
    if lack > 0:
        cand = [g for g in eg if g > bar + 4]
        xg = {cand[(q * len(cand)) // lack + len(cand) // (2 * lack)] for q in range(lack)}
        rest = sorted(rest + list(xg))
    dg = []; k = 0
    while dm or vq:
        g = rest.pop(0)
        vok = vq and lu[vq[0][2][1]] <= g
        if g in xg and vok: gaps[g].append(vq.pop(0)); continue
        if dm and k % O.dper == 0 and g in cvg and vok: gaps[g].append(vq.pop(0)); continue
        if dm and (k % O.dper == 0 or not vok) and g not in cvg: gaps[g].append(dm.pop(0)); dg.append(g)
        elif vok: gaps[g].append(vq.pop(0))
        elif dm: gaps[g].append(dm.pop(0)); dg.append(g)
        k += 1
    small = []
    nv = 0
    for o in flat:
        if is_vm(o): nv += 1; continue
        lo = dg[nv - 1] if nv else 16
        hi = n - 1 if ("0x4000" in o or nv == len(dg)) else dg[nv] - 1
        small.append((o, lo, hi))
    if not klate and (not even or bar >= npv): small.append((("", "wait", dict(ds=[o[2] for o in kr])), 24, npv - 1))
    for g, o in cvg.items(): gaps[g].append(o)
    if O.vsum:
        for g, (b, e) in zip(eg, seq): gaps[g + 1].append(ad(b, e))
    def used(g): return sum(4 if (not isinstance(o, str) and o[1] == "wait") else cost(o) for o in gaps[g]) + 4 * len(pre.get(g + 1, []))
    prev = (None, 0)
    for o, lo, hi in small:
        key = (lo, hi)
        if prev[0] == key: lo = prev[1]
        c = [g for g in range(lo, hi + 1) if used(g) <= 5]
        if not c: c = sorted(range(lo, hi + 1), key=used)
        gaps[c[0]].append(o); prev = (key, c[0])
    for q in range(O.pad): gaps[1 + (q * 62) // O.pad // 2 * 2 + 1].append("s_nop 1")
    if O.upad and groups is None:
        lb = f"L_up_{tag}"
        gaps[n - 1] += [f"s_lshl_b32 s3, s{sUNIT}, 2", f"s_sub_u32 s3, s3, s{sLOOP}", "s_add_u32 s3, s3, 3", f"s_cmp_ge_u32 s3, {O.upadm}", f"s_cbranch_scc1 {lb}"] + ["s_nop 7"] * O.upad + [lb + ":"]
    gaps[n - 1] += list(tail)
    interleave(A, [m[0] for m in mfs], gaps, pre=pre, need=need)

def max_chain(qb, buf, t0, t1, run=None):
    s = S(buf, qb, 0)
    st = [f"v_max3_f32 {vr(t0)}, {vr(s)}, {vr(s+1)}, {vr(s+2)}", f"v_max3_f32 {vr(t1)}, {vr(s+3)}, {vr(s+4)}, {vr(s+5)}",
          f"v_max3_f32 {vr(t0)}, {vr(t0)}, {vr(s+6)}, {vr(s+7)}"]
    if run is not None: return st + [f"v_max3_f32 {vr(run)}, {vr(run)}, {vr(t0)}, {vr(t1)}"]
    return st + [f"v_max_f32 {vr(t0)}, {vr(t0)}, {vr(t1)}"]
def xlane_max(t0, t1):
    return [f"v_mov_b32 {vr(t1)}, {vr(t0)}", "s_nop 1", f"v_permlane32_swap_b32 {vr(t0)}, {vr(t1)}", "s_nop 0", f"v_max_f32 {vr(t0)}, {vr(t0)}, {vr(t1)}",
            f"v_mov_b32 {vr(t1)}, {vr(t0)}", "s_nop 1", f"v_permlane16_swap_b32 {vr(t0)}, {vr(t1)}", "s_nop 0", f"v_max_f32 {vr(t0)}, {vr(t0)}, {vr(t1)}"]

def unit_moves(A):
    for q in range(64): A(f"v_accvgpr_mov_b32 {ar(aQ+q)}, {ar(aQ2+q)}")
    if O.fuse:
        for q in range(16 * O.est, 64): A(f"v_accvgpr_write_b32 {ar(aQ2+q)}, {vr(vS+q)}")
def first_slot(A, cls):
    D = O.D
    A.c(f"---- first slot cls={cls}")
    for o in k_reads(0, 0, dst=aVF) + k_reads(0, 1): A.op(o)
    if O.mvk:
        A(f"s_cmp_eq_u32 s{sUNIT}, 0"); A("s_cbranch_scc1 L_early" if O.oek else "s_cbranch_scc1 L_nomv")
        unit_moves(A)
        if O.oek:
            A("s_branch L_nomv"); A.label("L_early"); oproj_early(A, 16)
        A.label("L_nomv")
    mfs = qk_mf(0, zero=True, kf=aVF) + qk_mf(1)
    gaps = {g: [] for g in range(64)}; pre = {}
    bar = 8
    barrier_ops(cls, bar, pre, gaps, first=True)
    kg = dma_k(0, "KV"); vg = dma_v(3, "KV")
    gaps[bar - 2].append(kg[0])
    dm = kg[1] + (vg[1] if O.burst == 1 else [])
    for i, o in enumerate(dm):
        gaps[bar + 1 + i].append(o)
        if i == 3: gaps[bar + 1 + i].append(vg[0])
    gaps[7].append(kg[2]) if False else None
    st = []
    tA = [vO + 2 * q for q in range(4)]
    for qb in range(4):
        t0, t1 = tA[qb], tA[qb] + 1
        ch = max_chain(qb, 0, t0, t1) + xlane_max(t0, t1)
        ch += [f"v_sub_f32 {vr(NEGM(qb)+r)}, 0, {vr(t0)}" for r in range(4)]
        ch += [f"v_sub_f32 {vr(S(0,qb,0)+r)}, {vr(S(0,qb,0)+r)}, {vr(t0)}" for r in range(8)]
        st.append([ch[0], 8 * qb + 7 + 8]); st += ch[1:]
    sm = []
    for e in range(32):
        sm.append(ex(0, e))
        if e >= 2 and not (e & 1): sm.append(cv(0, (e >> 1) - 1))
        if O.vsum and e >= 2:
            if (e - 2) & 7 == 0: sm.append(f"v_add_f32 {vr(vL+((e-2)>>3))}, {vr(vS+e-2)}, {vr(vS+e-1)}")
            elif (e - 2) & 7 != 1: sm.append(ad(0, e - 2))
    sm += ["s_nop 0", cv(0, 15)]
    if O.vsum: sm += [ad(0, 30), ad(0, 31)]
    vq = v_reads(0, 0)
    for i, o in enumerate(vq): gaps[33 + i * 2 - (i // 8) * 0 if 33 + 2 * i < 64 else 63].append(o)
    post = [kg[2]] + ([vg[2]] if O.burst == 1 else [])
    if O.smf: post += [f"v_accvgpr_write_b32 {ar(aL+q)}, 0" for q in range(8)]
    nd = needs(mfs)
    nch = len(st) // 4
    m = [x[0] for x in mfs]
    def sub(d, lo, hi): return {g - lo: v for g, v in d.items() if lo <= g < hi}
    def shift(s, lo): return [[x[0], x[1] - lo] if isinstance(x, list) else x for x in s]
    segs = [(0, 32, st[:nch]), (32, 40, st[nch:2*nch]), (40, 48, st[2*nch:3*nch]), (48, 56, st[3*nch:]), (56, 64, [])]
    carry = []
    allst = st + post + sm
    pos = 0
    marks = {32: nch, 40: 2 * nch, 48: 3 * nch, 56: 4 * nch}
    bud = O.budget
    if O.fs2:
        def pair_chain(p):
            a, b = tA[2 * p], tA[2 * p + 1]
            r = [x for xy in zip(max_chain(2 * p, 0, a, a + 1), max_chain(2 * p + 1, 0, b, b + 1)) for x in xy]
            for sw in ("v_permlane32_swap_b32", "v_permlane16_swap_b32"):
                r += [f"v_mov_b32 {vr(t+1)}, {vr(t)}" for t in (a, b)] + ["s_nop 0"] + [f"{sw} {vr(t)}, {vr(t+1)}" for t in (a, b)]
                r += [f"v_max_f32 {vr(t)}, {vr(t)}, {vr(t+1)}" for t in (a, b)]
            r += [f"v_sub_f32 {vr(NEGM(2*p+k)+q)}, 0, {vr(t)}" for k, t in enumerate((a, b)) for q in range(4)]
            r[0] = [r[0], (19, 35)[p]]
            return r
        def subs(p): return [f"v_sub_f32 {vr(S(0,qb,0)+q)}, {vr(S(0,qb,0)+q)}, {vr(tA[qb])}" for qb in (2 * p, 2 * p + 1) for q in range(8)]
        c0, c1 = pair_chain(0), pair_chain(1)
        k = [i for i, o in enumerate(sm) if o == ex(0, 16)][0]
        allst = post[:5] + c0 + post[5:] + subs(0)[:8] + c1 + subs(0)[8:] + sm[:k] + subs(1) + sm[k:]
        marks = {32: 5 + len(c0), 48: len(post + c0 + c1) + 8}
        bud = O.fs2
    for g in range(64):
        if g in marks:
            while pos < marks[g]:
                o = allst[pos][0] if isinstance(allst[pos], list) else allst[pos]
                A.op(o); pos += 1
            A("s_nop 1")
        for t in pre.get(g, []): A.op(t)
        if g in nd: A.wait(ds=nd[g])
        A(m[g])
        room = bud - sum(cost(o) for o in gaps[g])
        for o in gaps[g]: A.op(o)
        while pos < len(allst) and not (O.fs2 and g < bar + 9):
            o, at = allst[pos] if isinstance(allst[pos], list) else (allst[pos], 0)
            if at > g or room <= 0 or cost(o) > room + 1: break
            A.op(o); room -= cost(o); pos += 1
    while pos < len(allst):
        A.op(allst[pos]); pos += 1
    for e in range(D):
        A(ex(1, e))
        if e >= 2 and not (e & 1): A(cv(1, (e >> 1) - 1))
    A("s_nop 0"); A(cv(1, D // 2 - 1))
    if O.vsum:
        for e in range(D): A(ad(1, e))
    A("s_nop 1")

def o_store(reg, qb, t, tag, so):
    return (f"buffer_store_dwordx4 {reg}, {vr(vOO)}, {sr(sO)}, s{so} offen offset:{t*1024}{[' sc1', ' sc1 nt', ' sc0 sc1', ' sc0 sc1 nt'][O.stfl if tag == 'ST0' or O.stfl1 else 0] if O.st_sc1 else ''}", "vm", tag)
def row_sums():
    st = []
    for sw in ("v_permlane32_swap_b32", "v_permlane16_swap_b32"):
        st += [f"v_mov_b32 {vr(vP+2*q+1)}, {vr(vL+q)}" for q in range(4)]
        st += [f"{sw} {vr(vL+q)}, {vr(vP+2*q+1)}" for q in range(4)]
        st += [f"v_add_f32 {vr(vL+q)}, {vr(vL+q)}, {vr(vP+2*q+1)}" for q in range(4)]
    st += [f"v_rcp_f32 {vr(vP+2*q)}, {vr(vL+q)}" for q in range(4)]
    if O.chk:
        st += [f"v_max3_f32 {vr(vP+1)}, {vr(vL)}, {vr(vL+1)}, {vr(vL+2)}"]
        for q in (vP + 1, vL + 3): st += [f"v_cmp_nle_f32 vcc, {vr(q)}, s{sTHR}", f"s_or_b64 s[{sM}:{sM+1}], s[{sM}:{sM+1}], vcc"]
    return st
def epi_qb(qb, store, plain=0):
    so = [f"s_add_u32 s{sT}, s{sOOF}, {qb*131072}"]
    if O.vsum:
        inv = vP + 2 * qb
        st = so + ([f"v_accvgpr_read_b32 {vr(vL+q)}, {ar(aL+q)}" for q in range(4)] if qb == 3 else [])
    else:
        inv = vP + 2 * (qb & 1)
        st = [f"v_accvgpr_read_b32 {vr(inv+1)}, {ar(LA(qb))}", f"v_rcp_f32 {vr(inv)}, {vr(inv+1)}"]
        if O.smf: st = [f"v_accvgpr_read_b32 {vr(inv+q)}, {ar(aL+2*qb+q)}" for q in range(2)] + [f"v_add_f32 {vr(inv+1)}, {vr(inv)}, {vr(inv+1)}", st[1]]
        if O.chk: st += [f"v_cmp_nle_f32 vcc, {vr(inv+1)}, s{sTHR}"]
        st += so
        if O.chk: st += [f"s_or_b64 s[{sM}:{sM+1}], s[{sM}:{sM+1}], vcc"]
    for t in range(4):
        o = OA(2 * t, qb)
        if t < plain: st += [f"v_mul_f32 {vr(o+i)}, {vr(o+i)}, {vr(inv)}" for i in range(8)]
        else: st += [f"v_pk_mul_f32 {vr(o+2*i,2)}, {vr(o+2*i,2)}, {vr(inv,2)} op_sel_hi:[1,0]" for i in range(4)]
        d = vS + (qb * 4 + t) * 4
        st += [f"v_cvt_pk_bf16_f32 {vr(d+i)}, {vr(o+2*i)}, {vr(o+2*i+1)}" for i in range(4)]
        if store: st.append(o_store(vr(d, 4), qb, t, "ST", sT))
    return st

def last_slot(A, store, extra1=(), mid=None, extra2=()):
    D = O.D
    A.c("---- last slot + final PV + epilogue")
    pvm = pv_mf(0); n = len(pvm); nq = n // 4
    gaps = {g: [] for g in range(n)}
    lu = lastuse(pvm)
    for i, o in enumerate(v_reads(3, 1)):
        g = min(n - 1, lu[o[2][1]] + 1 + (i & 1)); gaps[g].append(o)
    sm = []
    for e in range(D, 32):
        sm.append(ex(1, e))
        if e > D and not (e & 1): sm.append(cv(1, (e >> 1) - 1))
        if O.vsum and e > D: sm.append(ad(1, e - 1))
    sm += ["s_nop 0", cv(1, 15)] + ([ad(1, 31)] if O.vsum else []) + ["s_nop 1"]
    ex_ = list(extra1)
    for g in range(0, n):
        if ex_ and not gaps[g]: gaps[g] += ex_.pop(0)
    assert not ex_
    A(f"s_mov_b64 s[{sM}:{sM+1}], 0")
    interleave(A, [m[0] for m in pvm], gaps, stream=sm, need=needs(pvm), budget=O.lsb)
    if mid: mid()
    fin = pv_mf(1, qbmajor=True)
    st = row_sums() if O.vsum else []
    for qb in range(4):
        e = epi_qb(qb, qb < store, 4 if qb == 0 and O.lsb > 8 else 0)
        if qb == 0 and O.lsb > 8:
            k = [i for i, o in enumerate(e) if isinstance(o, str) and o.startswith("v_mul_f32")][0]
            st += [[e[0], 8]] + e[1:k] + [[e[k], 13]] + e[k+1:]
            continue
        k = 1 if O.vsum and qb < 3 else 0
        if qb == 3: st.append("s_nop 7")
        st += e[:k]; st.append([e[k], max(g for g, m in enumerate(fin) if m[2] == qb) + 8]); st += e[k+1:]
    gaps = {g: [] for g in range(n)}
    ex_ = list(extra2)
    for g in range(0, n):
        if ex_ and (g < 16 or g % 2 == 0): gaps[g] += ex_.pop(0)
    assert not ex_
    interleave(A, [m[0] for m in fin], gaps, stream=st, need=needs(fin, group=2), budget=O.lsb)

def fallback(A):
    A.label("L_fb")
    lane, g, i, r, ka, kb_, va, vd, t0, t1 = range(64, 74)
    run = 76
    A("s_waitcnt vmcnt(0) lgkmcnt(0)"); A("s_nop 7")
    A(f"v_mbcnt_lo_u32_b32 {vr(lane)}, -1, 0"); A(f"v_mbcnt_hi_u32_b32 {vr(lane)}, -1, {vr(lane)}")
    A(f"v_lshrrev_b32 {vr(g)}, 4, {vr(lane)}"); A(f"v_and_b32 {vr(i)}, 15, {vr(lane)}")
    A(f"v_and_b32 {vr(t0)}, 1, {vr(g)}"); A(f"v_lshlrev_b32 {vr(t0)}, 1, {vr(t0)}"); A(f"v_lshrrev_b32 {vr(t1)}, 1, {vr(g)}")
    A(f"v_or_b32 {vr(t0)}, {vr(t0)}, {vr(t1)}"); A(f"v_lshlrev_b32 {vr(t0)}, 4, {vr(t0)}")
    A(f"v_lshl_add_u32 {vr(ka)}, {vr(i)}, 8, {vr(t0)}"); A(f"v_add_u32 {vr(kb_)}, 4096, {vr(ka)}")
    A(f"v_lshlrev_b32 {vr(vd)}, 4, {vr(lane)}")
    A(f"s_lshl_b32 s{sT3}, s{sWAVE}, 13"); A(f"s_add_u32 s{sT3}, s{sT3}, {FBBASE}")
    if O.fuse: A(f"s_cmp_eq_u32 s{sUNIT}, 0"); A(f"s_cselect_b32 s{sT3}, s{sT3}, s{sWM+3}")
    A(f"v_lshrrev_b32 {vr(r)}, 2, {vr(i)}"); A(f"v_lshl_add_u32 {vr(t0)}, {vr(g)}, 2, {vr(r)}"); A(f"v_lshlrev_b32 {vr(t0)}, 8, {vr(t0)}")
    A(f"v_and_b32 {vr(t1)}, 3, {vr(i)}"); A(f"v_lshl_add_u32 {vr(t0)}, {vr(t1)}, 3, {vr(t0)}"); A(f"v_add_u32 {vr(va)}, s{sT3}, {vr(t0)}")
    def kload():
        for kb in range(2):
            for s in range(4):
                A(f"buffer_load_dwordx4 {ar(aKF+(kb*4+s)*4,4)}, {vr(kb_ if kb else ka)}, {sr(sK)}, s{sT} offen offset:{s*64}")
    for q in range(4): A(f"v_mov_b32 {vr(run+q)}, 0xff800000")
    A(f"s_lshl_b32 s{sT}, s{sUNIT}, 18"); A(f"s_add_u32 s{sT2}, s{sT}, 0x40000")
    A.label("L_fb1")
    kload(); A("s_waitcnt vmcnt(0)")
    for m in qk_mf(0, zero=True): A(m[0])
    A("s_nop 7")
    for q in range(4):
        for o in max_chain(q, 0, t0, t1, run=run + q): A(o)
    A(f"s_add_u32 s{sT}, s{sT}, 0x2000"); A(f"s_cmp_lt_u32 s{sT}, s{sT2}"); A("s_cbranch_scc1 L_fb1")
    for q in range(4):
        for o in xlane_max(run + q, t1): A(o)
        for rr in range(4): A(f"v_sub_f32 {vr(NEGM(q)+rr)}, 0, {vr(run+q)}")
    for k in range(128): A(f"v_mov_b32 {vr(vO+k)}, 0")
    for k in range(8 if O.smf else 16): A(f"v_accvgpr_write_b32 {ar(aL+k)}, 0")
    A(f"s_lshl_b32 s{sT}, s{sUNIT}, 18")
    A.label("L_fb2")
    kload()
    for hf in range(2):
        A(f"s_add_u32 m0, s{sT3}, {hf*4096}"); A(f"s_add_u32 s3, s{sT}, {hf*4096}")
        for p in range(4): A(f"buffer_load_dwordx4 {vr(vd)}, {sr(sV)}, s3 offen offset:{p*1024} lds")
    A("s_waitcnt vmcnt(0)")
    for db in range(8):
        for jh in range(2): A(f"ds_read_b64_tr_b16 {ar(aVF+db*4+2*jh,2)}, {vr(va)} offset:{db*32+jh*4096}")
    for m in qk_mf(0): A(m[0])
    A("s_nop 7")
    for e in range(32): A(ex(0, e))
    A("s_nop 0")
    for k in range(16): A(cv(0, k))
    if O.vsum:
        for e in range(32): A(ad(0, e))
    A("s_waitcnt lgkmcnt(0)"); A("s_nop 1")
    for m in pv_mf(0): A(m[0])
    A(f"s_add_u32 s{sT}, s{sT}, 0x2000"); A(f"s_cmp_lt_u32 s{sT}, s{sT2}"); A("s_cbranch_scc1 L_fb2")
    A("s_nop 7")
    if O.vsum:
        for o in row_sums(): A(o)
    for qb in range(4):
        for o in epi_qb(qb, False): A(o)
    for qb in range(4):
        if O.fuse and qb == O.est: A(f"s_cmp_eq_u32 s{sUNIT}, 0"); A("s_cbranch_scc1 L_fbret0")
        A(f"s_add_u32 s{sT}, s{sOOF}, {qb*131072}")
        for t in range(4): A(o_store(vr(vS + (qb * 4 + t) * 4, 4), qb, t, "ST", sT)[0])
    if not O.fuse or O.est == 4: A(f"s_cmp_eq_u32 s{sUNIT}, 0"); A("s_cbranch_scc1 L_fbret0")
    if O.fuse: oproj_setup(A)
    A("s_branch L_fbret1")

def srd(A, d, lo, hi, off, size):
    A(f"s_add_u32 s{d}, s{lo}, {off}"); A(f"s_addc_u32 s{d+1}, s{hi}, 0"); A(f"s_and_b32 s{d+1}, s{d+1}, 0xffff")
    A(f"s_mov_b32 s{d+2}, {size}"); A(f"s_mov_b32 s{d+3}, 0x20000")

def one_lane(A, val, text, tag):
    A(f"v_mov_b32 v0, {val}"); A("s_mov_b64 exec, 1")
    A.op((text, "vm", tag))
    A("s_mov_b64 exec, -1")
def flag_ops(val, name):
    return [f"s_cmp_lg_u32 s{sWAVE}, 0", f"s_cbranch_scc1 L_np_{name}", f"v_mov_b32 v0, {val}", "s_mov_b64 exec, 1",
            f"buffer_store_byte v0, off, {sr(sCNT)}, s{sGI} sc1", "s_mov_b64 exec, -1", f"L_np_{name}:"]
def poll_text(v=vPOLL): return f"buffer_load_dword v0, {vr(v)}, {sr(sCNT)}, 0 offen sc1"
RD1 = f"v_accvgpr_read_b32 v0, {ar(aPOLL1)}"
def poll_ops(name, own=1): return [f"s_cmp_lg_u32 s{sWAVE}, 0", f"s_cbranch_scc1 L_np_{name}"] + ([] if own else [RD1]) + [(poll_text(vPOLL if own else 0), "mark", name), f"L_np_{name}:"]
spins = []
def poll_test(A, mask, own):
    if own: A(f"v_or_b32 v0, v0, {vr(own)}")
    A(f"v_and_b32 v0, {hex(mask)}, v0"); A(f"v_cmp_ne_u32 vcc, {hex(mask)}, v0")
def poll_check(A, mask, name, own, mark):
    A(f"s_cmp_lg_u32 s{sWAVE}, 0"); A(f"s_cbranch_scc1 L_spun_{name}")
    A(f"s_waitcnt vmcnt({min(63, A.nvm - A.mark[mark])})")
    poll_test(A, mask, own); A(f"s_cbranch_vccnz L_spin_{name}")
    A.label(f"L_spun_{name}")
    spins.append((mask, name, own))
def emit_spins(A):
    for mask, name, own in spins:
        A.label(f"L_spin_{name}")
        A("s_mov_b32 s3, 0x40000")
        A.label(f"L_spinl_{name}")
        if not own: A(RD1)
        A(poll_text(vPOLL if own else 0)); A("s_waitcnt vmcnt(0)")
        poll_test(A, mask, own); A(f"s_cbranch_vccz L_spun_{name}")
        A("s_sub_u32 s3, s3, 1"); A("s_cmp_lg_u32 s3, 0"); A(f"s_cbranch_scc1 L_spinl_{name}")
        A(f"s_branch L_spun_{name}")

PIECE = [[13, 14, 15, 0], [1, 2, 8, 9], [3, 10, 4, 5], [6, 7, 11, 12]]
X_OFF = 40 << 20
aWD = 212
vOQ, vWD, vOWN, vOWX = 16, 18, 28, 29
sWB, sR13, sWM, sWT = sWQW, sXW, 92, 84
def slab_c(j): return ((j & 7) << 13) | ((j >> 3) << 12)
def slab_o(j): return slab_c(j & 1) if O.ofake else slab_c(j)
def w_dma(j, hf, early=False):
    jw = j & 1 if O.wfake else j
    r = [[f"s_add_u32 s{sT2}, s{sWT+(jw&7)}, {(jw>>3)*163840}", f"s_add_u32 m0, s{sWM+(j&3)}, {hf*4096}"]]
    for p in range(5):
        v = vWD + hf * 5 + p
        if early:
            v = vOKV
            r[-1].append(f"v_accvgpr_read_b32 {vr(v)}, {ar(aWD+hf*5+p)}")
        if p == 4: r[-1].append(f"s_add_u32 m0, s{sWM+(j&3)}, 8192")
        r.append([(f"buffer_load_dwordx4 {vr(v)}, {sr(sW)}, s{sT2} offen offset:{(p if p < 4 else hf)*1024}{['', ' sc1', ' nt', ' sc0 sc1', ' sc0'][O.wofl]} lds", "vm", ("W", j))])
    return r
OPH = [2, 3, 7, 0, 1, 4, 5, 6]
def OF(j, kk, qq): return OPH[j & 7] * 32 + (kk * 2 + qq) * 4
def wo_t(part, v, dst):
    if O.wopre != 210: return []
    return [[f"v_bfe_u32 {vr(v)}, {vr(vOO)}, 4, 6", f"v_mul_u32_u24 {vr(v)}, 80, {vr(v)}"], [(f"buffer_load_dword {dst}, {vr(v)}, {sr(sW)}, s{sTW-part} offen", "vm", "WOP")]]
def o_ld(j):
    r = [[f"s_xor_b32 s4, s{sR13}, {slab_o(j)}"]]
    for kk in range(4):
        for qq in range(2):
            r.append([(f"buffer_load_dwordx4 {ar(OF(j,kk,qq),4)}, {vr(vOQ+qq)}, {sr(sX)}, s4 offen offset:{kk*1024}{SC1()}", "vm", ("O", j))])
    r[1] = r[0] + r[1]
    return r[1:]
def o_ld_early(j):
    r = [[f"s_xor_b32 s4, s{sR13}, {slab_o(j)}", f"v_accvgpr_read_b32 {vr(vOKV)}, {ar(aOQ)}"]]
    for qq in range(2):
        for kk in range(4):
            r.append([(f"buffer_load_dwordx4 {ar(OF(j,kk,qq),4)}, {vr(vOKV)}, {sr(sX)}, s4 offen offset:{kk*1024}{SC1()}", "vm", ("O", j))])
        if qq == 0: r.append([f"v_add_u32 {vr(vOKV)}, 0x20000, {vr(vOKV)}"])
    return r
def mbox(op, reg, so, tag):
    r = [[(f"buffer_{op}_dwordx4 {reg(t)}, {vr(vOO)}, {sr(sO)}, s{so if t < 4 else sT} offen offset:{(t&3)*1024} sc1{' nt' if (tag == 'XF' and O.xffl & 1) or (tag == 'XS' and O.xffl & 2) or (tag == 'XL' and O.xffl & 4) else ''}", "vm", tag)] for t in range(5)]
    r[3].append(f"s_add_u32 s{sT}, s{so}, 4096")
    return r
def oproj_early(A, tb):
    lane, t0, t1, t2 = range(tb, tb + 4)
    A(f"s_bfe_u32 s3, s7, 0x10002"); A(f"s_lshr_b32 s4, s7, 3")
    A(f"s_lshr_b32 s{sT}, s{sGI}, 4"); A(f"s_lshl_b32 s{sT}, s{sT}, 22")
    A(f"s_lshl_b32 s{sT2}, s3, 20"); A(f"s_add_u32 s{sT}, s{sT}, s{sT2}"); A(f"s_lshl_b32 s{sT2}, s4, 16"); A(f"s_add_u32 s{sT}, s{sT}, s{sT2}")
    srd(A, sX, sWS, sWS + 1, f"s{sT}", "0xf0000")
    A(f"s_mov_b64 s[{sW}:{sW+1}], s[{sWOI}:{sWOI+1}]"); A(f"s_mov_b32 s{sW+2}, 5242880")
    A(f"s_lshl_b32 s{sT}, s4, 6"); A(f"s_add_u32 s{sT}, s{sT}, s{sWAVE}"); A(f"s_mul_i32 s{sWB}, s{sT}, 40960")
    A(f"s_and_b32 s{sT}, s7, 3"); A(f"s_mul_i32 s{sT}, s{sT}, {256 if O.walign else 320}"); A(f"s_add_u32 s{sWB}, s{sWB}, s{sT}")
    if O.own1: A(f"s_and_b32 s{sR13}, s7, 7"); A(f"s_lshl_b32 s{sR13}, s{sR13}, 13")
    else: A(f"s_mov_b32 s{sR13}, 0")
    for j in range(8):
        A(f"s_xor_b32 s{sT}, s{sR13}, {slab_c(j)}"); A(f"s_mul_i32 s{sT}, s{sT}, 40"); A(f"s_add_u32 s{sWT+j}, s{sT}, s{sWB}")
    A(f"s_lshl_b32 s{sT}, s{sWAVE}, 2")
    for sl in range(4):
        A(f"s_lshr_b32 s{sT2}, {hex(sum(PIECE[sl][w] << (4 * w) for w in range(4)))}, s{sT}"); A(f"s_and_b32 s{sT2}, s{sT2}, 15")
        A(f"s_mul_i32 s{sWM+sl}, s{sT2}, 10240")
    A(f"v_bfe_u32 {vr(lane)}, {vr(vOO)}, 4, 6")
    A(f"s_and_b32 s3, s7, 1"); A(f"s_xor_b32 s4, s4, 1")
    A(f"v_lshrrev_b32 {vr(t0)}, 3, {vr(lane)}"); A(f"v_mul_u32_u24 {vr(t0)}, 1280, {vr(t0)}")
    A(f"v_lshrrev_b32 {vr(t1)}, 3, {vr(lane)}"); A(f"v_and_b32 {vr(t1)}, 6, {vr(t1)}"); A(f"v_and_b32 {vr(t2)}, 7, {vr(lane)}"); A(f"v_xor_b32 {vr(t1)}, {vr(t1)}, {vr(t2)}")
    A(f"v_lshl_add_u32 {vr(t0)}, {vr(t1)}, 4, {vr(t0)}")
    for h in range(2):
        A(f"s_xor_b32 s{sT}, s4, {h}"); A(f"s_lshl_b32 s{sT}, s{sT}, 1"); A(f"s_add_u32 s{sT}, s{sT}, s3"); A(f"s_lshl_b32 s{sT}, s{sT}, 6")
        for rb in range(4):
            A(f"v_add_u32 {vr(t1)}, s{sT}, {vr(t0)}"); A(f"v_accvgpr_write_b32 {ar(aWD+h*5+rb)}, {vr(t1)}")
            if rb < 3: A(f"s_add_u32 s{sT}, s{sT}, 9216")
    A(f"v_lshrrev_b32 {vr(t0)}, 2, {vr(lane)}"); A(f"v_mul_u32_u24 {vr(t0)}, 1280, {vr(t0)}")
    A(f"v_bfe_u32 {vr(t1)}, {vr(lane)}, 4, 1"); A(f"v_xor_b32 {vr(t1)}, s4, {vr(t1)}"); A(f"v_lshlrev_b32 {vr(t1)}, 1, {vr(t1)}")
    A(f"v_and_b32 {vr(t2)}, 3, {vr(lane)}"); A(f"v_xor_b32 {vr(t1)}, {vr(t1)}, {vr(t2)}"); A(f"v_lshl_add_u32 {vr(t0)}, {vr(t1)}, 4, {vr(t0)}")
    A(f"s_xor_b32 s3, s3, 1"); A(f"s_lshl_b32 s3, s3, 8"); A(f"v_add_u32 {vr(t0)}, s3, {vr(t0)}"); A(f"v_add_u32 {vr(t1)}, {20480-1024}, {vr(t0)}")
    A(f"v_accvgpr_write_b32 {ar(aWD+4)}, {vr(t0)}"); A(f"v_accvgpr_write_b32 {ar(aWD+9)}, {vr(t1)}")
    if O.wopre in (200, 250):
        A(f"s_and_b32 s{sT}, s{sGI}, 127"); A(f"s_mul_i32 s{sT}, s{sT}, 10240"); A(f"s_mul_i32 s{sTW}, s{sWAVE}, {1310720 - 524288}"); A(f"s_add_u32 s{sTW}, s{sTW}, s{sT}")
        A(f"s_add_u32 s{sTW-1}, s{sTW}, 9216")
    if O.wopre == 210:
        A(f"s_and_b32 s{sT}, s{sGI}, 127"); A(f"s_lshl_b32 s{sT}, s{sT}, 2"); A(f"s_add_u32 s{sT}, s{sT}, s{sWAVE}")
        A(f"s_lshr_b32 s{sTW}, s{sT}, 5"); A(f"s_mul_i32 s{sTW}, s{sTW}, 327680"); A(f"s_and_b32 s{sT}, s{sT}, 31"); A(f"s_mul_i32 s{sT}, s{sT}, 5120")
        A(f"s_add_u32 s{sTW}, s{sTW}, s{sT}"); A(f"s_add_u32 s{sTW-1}, s{sTW}, 163840")
    A(f"s_and_b32 s{sT}, s{sGI}, 0xf0"); A(f"v_and_b32 {vr(t0)}, 3, {vr(lane)}"); A(f"v_lshlrev_b32 {vr(t0)}, 2, {vr(t0)}"); A(f"v_add_u32 {vr(t0)}, s{sT}, {vr(t0)}")
    A(f"v_accvgpr_write_b32 {ar(aPOLL)}, {vr(t0)}")
    if O.eo:
        A(f"s_and_b32 s{sT}, s{sGI}, 0xf8"); A(f"v_and_or_b32 {vr(t0)}, {vr(t0)}, 4, s{sT}"); A(f"v_accvgpr_write_b32 {ar(aPOLL1)}, {vr(t0)}")
        A(f"s_lshl_b32 s{sT}, s{sWAVE}, 18"); A(f"v_lshl_add_u32 {vr(t0)}, {vr(lane)}, 4, s{sT}"); A(f"v_accvgpr_write_b32 {ar(aOQ)}, {vr(t0)}")
    if O.smf:
        A(f"v_lshrrev_b32 {vr(t0)}, 4, {vr(lane)}"); A(f"v_xor_b32 {vr(t0)}, {vr(t0)}, {vr(lane)}"); A(f"v_bfe_i32 {vr(t0)}, {vr(t0)}, 1, 1")
        A(f"v_bfi_b32 {vr(t0)}, {vr(t0)}, 0, s{sT3}")
        for q in range(4): A(f"v_accvgpr_write_b32 {ar(aONE+q)}, {vr(t0)}")
        A(f"v_bfe_i32 {vr(t0)}, {vr(lane)}, 0, 1"); A(f"v_and_b32 {vr(t0)}, 0xaaaaaaaa, {vr(t0)}"); A(f"v_or_b32 {vr(vIDX)}, 0x44444444, {vr(t0)}")
def oproj_setup(A):
    vTMP = vPOLL
    A(f"v_accvgpr_read_b32 {vr(vPOLL)}, {ar(aPOLL)}")
    A(f"s_lshl_b32 s{sT}, s{sWAVE}, 18"); A(f"v_and_b32 {vr(vOQ)}, 0x3ff, {vr(vOO)}")
    A(f"v_add_u32 {vr(vOQ)}, s{sT}, {vr(vOQ)}"); A(f"v_add_u32 {vr(vOQ+1)}, 0x20000, {vr(vOQ)}")
    for p in range(10): A(f"v_accvgpr_read_b32 {vr(vWD+p)}, {ar(aWD+p)}")
    A(f"s_and_b32 s{sT}, s{sGI}, 0xfc"); A(f"s_and_b32 s3, s{sGI}, 3"); A(f"s_lshl_b32 s3, s3, 3"); A(f"s_lshl_b32 s3, 0xff, s3")
    A(f"v_cmp_eq_u32 vcc, s{sT}, {vr(vTMP)}"); A(f"v_mov_b32 {vr(vOWN)}, s3"); A(f"s_xor_b32 s{sT}, s{sT}, 8"); A(f"v_cndmask_b32 {vr(vOWN)}, 0, {vr(vOWN)}, vcc")
    A(f"v_cmp_eq_u32 vcc, s{sT}, {vr(vTMP)}"); A(f"s_not_b32 s3, s3"); A(f"v_mov_b32 {vr(vOWX)}, s3"); A(f"v_cndmask_b32 {vr(vOWX)}, -1, {vr(vOWX)}, vcc")
    A(f"v_xor_b32 {vr(31)}, s{sGI}, {vr(vTMP)}"); A(f"v_bfe_i32 {vr(31)}, {vr(31)}, 3, 1")
    A(f"v_and_or_b32 {vr(vOWX)}, {vr(vOWX)}, {vr(31)}, {vr(vOWN)}"); A(f"v_or_b32 {vr(vOWN)}, {vr(vOWN)}, {vr(31)}")

def oproj(A):
    vWR = 200
    vACC, vWF = 40, 120
    def ACC(h, qq, nb): return vACC + h * 40 + (qq * 5 + nb) * 4
    def WF(par, f): return vWF + par * 40 + f * 4
    A.c("---- O projection")
    lane, t0, t1 = 38, 39, 37
    A(f"v_bfe_u32 {vr(lane)}, {vr(vOO)}, 4, 6"); A(f"v_lshrrev_b32 {vr(t0)}, 5, {vr(lane)}"); A(f"v_lshlrev_b32 {vr(t0)}, 10, {vr(t0)}")
    A(f"v_bfe_u32 {vr(t1)}, {vr(lane)}, 2, 3"); A(f"v_lshl_add_u32 {vr(t0)}, {vr(t1)}, 7, {vr(t0)}")
    A(f"v_and_b32 {vr(t1)}, 3, {vr(lane)}"); A(f"v_lshl_add_u32 {vr(t0)}, {vr(t1)}, 3, {vr(t0)}")
    A(f"v_bfe_u32 {vr(t1)}, {vr(lane)}, 3, 2"); A(f"v_lshl_add_u32 {vr(vWR)}, {vr(t1)}, 5, {vr(t0)}")
    for nb in range(1, 4): A(f"v_xor_b32 {vr(vWR+3*nb)}, {nb*32}, {vr(vWR)}")
    A(f"v_lshrrev_b32 {vr(t0)}, 2, {vr(lane)}"); A(f"v_lshlrev_b32 {vr(t0)}, 6, {vr(t0)}"); A(f"v_and_b32 {vr(t1)}, 3, {vr(lane)}"); A(f"v_lshl_add_u32 {vr(t0)}, {vr(t1)}, 3, {vr(t0)}")
    A(f"v_bfe_u32 {vr(t1)}, {vr(lane)}, 4, 1"); A(f"v_lshl_add_u32 {vr(vWR+12)}, {vr(t1)}, 5, {vr(t0)}"); A(f"v_xor_b32 {vr(vWR+15)}, 32, {vr(vWR+12)}")
    for q in range(6):
        for w in (2, 1): A(f"v_add_u32 {vr(vWR+3*q+w)}, {51200*w}, {vr(vWR+3*q)}")
    nd_ = O.ndef; nf = 16 - nd_
    steps = [(j, kk, (0, 1)) for j in range(nf) for kk in range(4)] + [(j, kk, (h,)) for h in range(2) for j in range(nf, 16) for kk in range(4)]
    def w_rd(i):
        j, kk, hs = steps[i]
        pc = PIECE[j & 3][kk]; w = min(pc // 5, 2)
        return [(f"ds_read_b64_tr_b16 {vr(WF(i&1,f*5+nb)+2*jh,2)}, {vr(vWR+3*(nb if nb < 4 else 4+h)+w)} offset:{pc*10240-w*51200+(h*4096+jh*2048 if nb < 4 else 8192+jh*1024)}", "ds", ("WF", i & 1, f * 5 + nb))
                for f, h in enumerate(hs) for nb in range(5) for jh in range(2) if not (O.lfake and f == 1)]
    for ops in o_ld(3):
        for o in ops: A.op(o)
    A.wait(vm=[("W", 0), ("O", 0)]); A("s_barrier")
    for o in w_rd(0): A.op(o)
    mf = []; need = {}; gaps = {}; pre = {}; start = []; bars = {}
    for i, (j, kk, hs) in enumerate(steps):
        start.append(len(mf))
        for f, h in enumerate(hs):
            for nb in range(5):
                if nb in (0, 2): need[len(mf)] = [("WF", i & 1, f * 5 + q) for q in ((0, 1) if nb == 0 else (2, 3, 4))]
                for qq in ((1, 0) if (f + nb) & 1 and O.snake & 8 else (0, 1)):
                    c = "0" if (j == 0 and kk == 0) else vr(ACC(h, qq, nb), 4)
                    mf.append(f"{MF} {vr(ACC(h,qq,nb),4)}, {vr(WF(i&1,f*5+nb),4)}, {ar(OF(j,kk,qq),4)}, {c}")
    n = len(mf); start.append(n)
    gaps = {g: [] for g in range(n)}
    iB = len(steps) - 4 * nd_; gB = start[iB]
    for i, (j, kk, hs) in enumerate(steps):
        g0 = start[i]; ln = start[i + 1] - g0; lo = 0
        if kk == 3 and i < iB and j + 1 < 16:
            lo = O.obar if ln == 20 else 2
            bars[j] = g0 + lo
            p = [("", "wait", dict(vm=[("W", j + 1), ("O", j + 1)] + (["ST"] if j == O.pub2 else []), dsn=0 if j + 4 < 16 else None))]
            if j == 4: p.append(("", "call", lambda A_: poll_check(A_, 0x03030303, "u2", vOWN, "p2")))
            p.append("s_barrier")
            if j == O.pub2: p += flag_ops(3, "f2")
            if j == 3: p += poll_ops("p2")
            pre[g0 + lo] = p
        if i + 1 < len(steps):
            rd = w_rd(i + 1); np_ = len(rd) // 2
            stp = 2 if lo + 2 * np_ <= ln + 1 else 1.5
            if O.lfake and ln == 20:
                for q in range(len(rd)): gaps[g0 + lo + int(q * (2 if lo == 0 else 1.5))] += rd[q:q + 1]
            else:
                for q in range(np_): gaps[g0 + lo + int(q * stp)] += rd[2 * q:2 * q + 2]
    def spread(mem, g, sp, dense=False, dry=False):
        for ops in mem:
            while gaps[g] or g + 1 in pre or (g + 1 in need and not dense): g += 1
            if not dry: gaps[g] += ops
            g += sp if any(is_vm(o) for o in ops) else 1
        return g
    spread(w_dma(3, 0) + w_dma(3, 1), 1, 2)
    for j in range(12):
        mem = w_dma(j + 4, 0) + ([] if O.whalf else w_dma(j + 4, 1)) + o_ld(j + 4) + (wo_t(1, 31, vr(31)) if j == O.wo1 else [])
        sp = max([2] + [q for q in range(2, O.osp + 1) if spread(mem, bars[j], q, dry=True) <= bars[j + 1]])
        dn = spread(mem, bars[j], sp, dry=True) > bars[j + 1]
        assert spread(mem, bars[j], sp, dn) <= bars[j + 1], j
    vXS, vXR = 220, vACC
    xs = []
    st = mbox("store", lambda t: vr(vXS + 4 * t, 4), sXO, "XS")
    for t in (0, 2, 3, 1, 4):
        xs += [[f"v_cvt_pk_bf16_f32 {vr(vXS+4*t+q)}, {vr(vACC+8*t+2*q)}, {vr(vACC+8*t+2*q+1)}" for q in range(2 * u, 2 * u + 2)] for u in range(2)]
        if t == 4: xs.append([st[3][1]])
        xs.append(st[t][:1])
    e = spread(xs, gB + 1, 1, True)
    xl = mbox("load", lambda t: vr(vXR + 4 * t, 4), sXI, "XL")
    assert e < n - O.xld
    spread(xl, n - O.xld, 1, True)
    for j in (4, 9): pre[start[4 * j]] = pre.get(start[4 * j], []) + [("", "call", lambda A_, j=j: stamp(A_, f"slab{j}", 2))]
    for j in (1, 4, 6, 12): pre[start[4 * j]] = pre.get(start[4 * j], []) + [("", "call", lambda A_, j=j: stamp(A_, f"slab{j}", 6))]
    pre[gB] = pre.get(gB, []) + [("", "call", lambda A_: stamp(A_, "phaseB", 5))]
    interleave(A, mf, gaps, pre=pre, need=need)
    stamp(A, "oproj loop done"); stamp(A, "oloop", 5); stamp(A, "oloop", 6)
    A(f"v_and_b32 {vr(t0)}, 15, {vr(lane)}"); A(f"v_mul_u32_u24 {vr(t0)}, 2560, {vr(t0)}"); A(f"v_lshrrev_b32 {vr(t1)}, 4, {vr(lane)}")
    A(f"s_mul_i32 s{sT}, s{sWAVE}, {32*2560}"); A(f"s_and_b32 s3, s7, 1"); A(f"s_lshr_b32 s4, s7, 3")
    A(f"s_lshl_b32 s{sT2}, s4, 1"); A(f"s_add_u32 s{sT2}, s{sT2}, s3"); A(f"s_lshl_b32 s{sT2}, s{sT2}, 6"); A(f"s_add_u32 s{sT2}, s{sT2}, s{sT}")
    A(f"s_xor_b32 s3, s3, 1"); A(f"s_lshl_b32 s3, s3, 3"); A(f"s_add_u32 s3, s3, s4"); A(f"s_lshl_b32 s3, s3, 5"); A(f"s_add_u32 s3, s3, s{sT}")
    A(f"v_lshl_add_u32 {vr(vOQ+1)}, {vr(t1)}, 3, {vr(t0)}"); A(f"v_add_u32 {vr(vOQ+1)}, s3, {vr(vOQ+1)}")
    A(f"v_bfe_u32 {vr(t1)}, {vr(lane)}, 4, 1"); A(f"v_lshl_add_u32 {vr(t0)}, {vr(t1)}, 5, {vr(t0)}")
    A(f"v_lshrrev_b32 {vr(t1)}, 5, {vr(lane)}"); A(f"v_lshl_add_u32 {vr(vOQ)}, {vr(t1)}, 4, {vr(t0)}"); A(f"v_add_u32 {vr(vOQ)}, s{sT2}, {vr(vOQ)}")
    def xtest():
        A(f"v_max3_u32 {vr(t0)}, {vr(vXR)}, {vr(vXR+1)}, {vr(vXR+2)}"); A(f"v_max3_u32 {vr(t1)}, {vr(vXR+3)}, {vr(vXR+4)}, {vr(vXR+5)}")
        for q in range(6, 20, 2): A(f"v_max3_u32 {vr(t0 if q & 2 else t1)}, {vr(t0 if q & 2 else t1)}, {vr(vXR+q)}, {vr(vXR+q+1)}")
        A(f"v_max_u32 {vr(t0)}, {vr(t0)}, {vr(t1)}"); A(f"v_cmp_eq_u32 vcc, -1, {vr(t0)}")
    A("s_mov_b32 s4, 0x40000")
    A.label("L_xpoll")
    A("s_waitcnt vmcnt(0)"); A.vm = []
    xtest(); A("s_cbranch_vccz L_xdone")
    for ops in xl:
        for o in ops: A(o if isinstance(o, str) else o[0])
    A("s_sub_u32 s4, s4, 1"); A("s_cmp_lg_u32 s4, 0"); A("s_cbranch_scc1 L_xpoll")
    A("s_waitcnt vmcnt(0)")
    A.label("L_xdone")
    stamp(A, "xflag", 5)
    A(f"s_mov_b32 s{sT}, {16*2560}"); A("s_movk_i32 s3, 0x3f80"); A("s_mov_b32 s4, 0x3f800000")
    for qq in range(2):
        d = vWF + qq * 10; ac = ACC(1, qq, 0)
        for i in range(20): A(f"v_dot2_f32_bf16 {vr(ac+i)}, {vr(vXR+qq*10+i//2)}, s{3+(i&1)}, {vr(ac+i)}")
        for i in range(10): A(f"v_cvt_pk_bf16_f32 {vr(d+i)}, {vr(ac+2*i)}, {vr(ac+2*i+1)}")
        so = f"s{sT}" if qq else "0"
        A("s_nop 0")
        for P_ in range(2):
            for q in range(2): A(f"v_permlane16_swap_b32 {vr(d+4*P_+q)}, {vr(d+4*P_+2+q)}")
        A.op((f"buffer_store_dwordx2 {vr(d+8,2)}, {vr(vOQ+1)}, {sr(sOUT)}, {so} offen{OFL()}", "vm", "OUT"))
        A.op((f"buffer_store_dwordx4 {vr(d,4)}, {vr(vOQ)}, {sr(sOUT)}, {so} offen{OFL()}", "vm", "OUT"))
        A.op((f"buffer_store_dwordx4 {vr(d+4,4)}, {vr(vOQ)}, {sr(sOUT)}, {so} offen offset:64{OFL()}", "vm", "OUT"))

def gen_kernel(k):
    A = Asm()
    A("s_cmp_ge_u32 s2, 256"); A("s_cbranch_scc1 L_end")
    stamp(A, "t0")
    if O.cpre:
        A("s_getpc_b64 s[84:85]"); A("s_and_b32 s84, s84, 0xffffff00"); A("s_and_b32 s85, s85, 0xffff")
        A("s_mov_b32 s86, L_codeend-attn_kernel"); A("s_mov_b32 s87, 0x20000")
        A("s_lshr_b32 s3, s2, 3"); A(f"s_lshl_b32 s3, s3, {13 if O.u0 else 12}"); A(f"v_lshlrev_b32 v4, {5 if O.u0 else 4}, v0")
        A.op(("buffer_load_dwordx4 v[252:255], v4, s[84:87], s3 offen", "vm", "CODE"))
        A("s_nop 4")
    A("s_load_dwordx16 s[64:79], s[0:1], 0")
    A("s_load_dwordx8 s[80:87], s[0:1], 64")
    A(f"s_load_dwordx2 s[{sWS}:{sWS+1}], s[0:1], 96")
    A("s_and_b32 s3, s2, 7"); A("s_lshr_b32 s4, s2, 3"); A("s_lshr_b32 s5, s3, 2")
    if O.map2:
        A("s_bfe_u32 s6, s3, 0x10001"); A("s_lshl_b32 s6, s6, 2"); A("s_lshr_b32 s7, s4, 3"); A("s_add_u32 s6, s6, s7")
        A("s_and_b32 s7, s3, 1"); A("s_lshl_b32 s7, s7, 3"); A("s_and_b32 s4, s4, 7"); A("s_add_u32 s7, s7, s4")
    else:
        A("s_and_b32 s6, s3, 3"); A("s_lshl_b32 s6, s6, 1"); A("s_lshr_b32 s7, s4, 4"); A("s_add_u32 s6, s6, s7")
        A("s_and_b32 s7, s4, 15")
    vAW, vOW, vOX, vAX = 16, 24, 28, 36
    lane, g, i, r, t0, t1, t2, t3, h = range(48, 57)
    A(f"v_lshrrev_b32 {vr(t0)}, 6, v0"); A(f"v_and_b32 {vr(lane)}, 63, v0"); A(f"v_readfirstlane_b32 s{sWAVE}, {vr(t0)}")
    A(f"v_lshrrev_b32 {vr(g)}, 4, {vr(lane)}"); A(f"v_and_b32 {vr(i)}, 15, {vr(lane)}"); A(f"v_lshrrev_b32 {vr(h)}, 5, {vr(lane)}")
    A(f"s_and_b32 s{sT2}, s{sWAVE}, 1"); A(f"s_lshl_b32 s{sT2}, s{sT2}, 3")
    A(f"s_lshl_b32 s{sT}, s{sWAVE}, 16")
    A(f"v_and_b32 {vr(t2)}, 31, {vr(lane)}"); A(f"v_xor_b32 {vr(t2)}, s{sT2}, {vr(t2)}")
    for p in range(2):
        A(f"v_add_u32 {vr(t0)}, {2*p}, {vr(h)}"); A(f"v_lshlrev_b32 {vr(t1)}, 1, {vr(t0)}"); A(f"v_xor_b32 {vr(t1)}, {vr(t1)}, {vr(t2)}")
        A(f"v_lshlrev_b32 {vr(t1)}, 4, {vr(t1)}"); A(f"v_lshl_add_u32 {vr(t1)}, {vr(t0)}, 13, {vr(t1)}")
        A(f"v_add_u32 {vr(vOW+p)}, s{sT}, {vr(t1)}")
        if p: A(f"v_subrev_u32 {vr(vOW+p)}, 1024, {vr(vOW+p)}")
        A(f"v_add_u32 {vr(vOW+p+2)}, {4*8192-2048}, {vr(vOW+p)}")
    A(f"s_mul_i32 s{sT}, s{sWAVE}, {64*1280}")
    A(f"v_lshrrev_b32 {vr(t0)}, 3, {vr(lane)}"); A(f"v_mul_u32_u24 {vr(t0)}, 1280, {vr(t0)}"); A(f"v_add_u32 {vr(t0)}, s{sT}, {vr(t0)}")
    A(f"v_and_b32 {vr(t1)}, 7, {vr(lane)}"); A(f"v_xor_b32 {vr(t1)}, {vr(t1)}, {vr(g)}")
    A(f"v_lshl_add_u32 {vr(vOX)}, {vr(t1)}, 4, {vr(t0)}"); A(f"v_xor_b32 {vr(t1)}, 4, {vr(t1)}"); A(f"v_lshl_add_u32 {vr(t0)}, {vr(t1)}, 4, {vr(t0)}")
    A(f"v_add_u32 {vr(vOX+1)}, {10240-1024}, {vr(t0)}")
    for p in range(2, 8): A(f"v_add_u32 {vr(vOX+p)}, {(p&~1)*10240 - ((p&3)&~1)*1024}, {vr(vOX+(p&1))}")
    A(f"s_lshl_b32 s{sKVW}, s{sWAVE}, 12"); A(f"s_add_u32 s{sVVW}, s{sKVW}, {VBASE}"); A(f"s_add_u32 s{sWQW}, s{sKVW}, {WQBASE}")
    A(f"s_lshl_b32 s{sXW}, s{sWAVE}, 13")
    A(f"s_lshl_b32 s4, s6, 4"); A(f"s_add_u32 s4, s4, s7")
    A(f"s_lshl_b32 s{sT}, s7, 9"); A(f"s_sub_u32 s{sW+2}, {640*8192}, s{sT}"); A(f"s_mov_b32 s{sW+3}, 0x20000")
    A(f"s_mul_i32 s{sT3}, s6, 327680"); A(f"s_mov_b32 s{sX+2}, 327680"); A(f"s_mov_b32 s{sX+3}, 0x20000")
    A("s_cmp_eq_u32 s5, 1")
    A("s_waitcnt lgkmcnt(0)")
    if O.stamps and O.stm == 1: A("s_memtime s[50:51]"); A("s_memrealtime s[98:99]"); nstamp[0] += 1; stamp_names.append("karg")
    for q in (3, 0, 1, 2, 4): A(f"s_cselect_b64 s[{64+2*q}:{65+2*q}], s[{74+2*q}:{75+2*q}], s[{64+2*q}:{65+2*q}]")
    A(f"s_add_u32 s{sW}, s70, s{sT}"); A(f"s_addc_u32 s{sW+1}, s71, 0"); A(f"s_and_b32 s{sW+1}, s{sW+1}, 0xffff")
    A(f"s_add_u32 s{sX}, s64, s{sT3}"); A(f"s_addc_u32 s{sX+1}, s65, 0"); A(f"s_and_b32 s{sX+1}, s{sX+1}, 0xffff")
    def AF(buf, nb): return buf * 64 + nb * 4
    def XR(G, ks, qb): return 128 + (G & 1) * 32 + (ks * 4 + qb) * 4
    def ACC(nb, qb): return vr(48 + (nb * 4 + qb) * 4, 4) if nb < 13 else ar(208 + ((nb - 13) * 4 + qb) * 4, 4)
    def wq_dma(kk):
        return [[f"s_add_u32 m0, s{sWQW}, {(kk&3)*16384}", f"s_mov_b32 s{sT2}, {kk*262144}"]] + \
               [[(f"buffer_load_dwordx4 {vr(vOW+p)}, {sr(sW)}, s{sT2} offen offset:{p*1024}{' nt' if O.w_nt else ''} lds", "vm", ("W", kk))] for p in range(4)]
    def x_dma(G):
        r = [[f"s_add_u32 m0, s{sXW}, {XB[G&1]}", f"s_movk_i32 s{sT2}, {G*128}"]]
        r += [[(f"buffer_load_dwordx4 {vr(vOX+p)}, {sr(sX)}, s{sT2} offen offset:{(p&3)*1024}{' nt' if O.x_nt else ''} lds", "vm", ("X", G))] for p in range(8)]
        r[4].append(f"s_add_u32 m0, s{sXW}, {XB[G&1]+4096}")
        return r
    def flat(groups):
        for grp in groups:
            for ops in grp:
                for o in ops: A.op(o)
    flat([[wq_dma(0), x_dma(0), wq_dma(1), x_dma(1)], [wq_dma(0), x_dma(0), wq_dma(1), wq_dma(2), x_dma(1)], [wq_dma(0), x_dma(0), wq_dma(1), wq_dma(2), x_dma(1), wq_dma(3)], [wq_dma(0), x_dma(0), wq_dma(1)], [wq_dma(0), x_dma(0), wq_dma(1), wq_dma(2)]][O.wup])
    def kv_groups(kind, tile):
        su, pcs, po = dma_k(tile, (kind, tile)) if kind == "K" else dma_v(tile, (kind, tile))
        return [[su]] + [[p] for p in pcs[:3]] + [[pcs[3], po]]
    A(f"s_mov_b32 s{sWOI}, s72"); A(f"s_and_b32 s{sWOI+1}, s73, 0xffff")
    A(f"s_lshl_b32 s{sT}, s4, 19")
    srd(A, sK, 66, 67, f"s{sT}", "0x80000")
    srd(A, sV, 68, 69, f"s{sT}", "0x80000")
    A(f"s_lshl_b32 s{sGI}, s5, 3"); A(f"s_add_u32 s{sGI}, s{sGI}, s6"); A(f"s_lshl_b32 s{sT2}, s{sGI}, 22")
    srd(A, sO, sWS, sWS + 1, f"s{sT2}", 0x200000 + 16 * 20480)
    A(f"s_lshl_b32 s{sT}, s6, 1"); A(f"s_bfe_u32 s{sT2}, s7, 0x10002"); A(f"s_add_u32 s{sT}, s{sT}, s{sT2}"); A(f"s_mul_i32 s{sT}, s{sT}, {128*2560}")
    A(f"s_mul_i32 s{sT2}, s5, 1280"); A(f"s_add_u32 s{sT}, s{sT}, s{sT2}"); A(f"s_and_b32 s{sT2}, s7, 3"); A(f"s_mul_i32 s{sT2}, s{sT2}, 320")
    A(f"s_add_u32 s{sT}, s{sT}, s{sT2}")
    if O.stamps and O.stm == 1: A("s_waitcnt lgkmcnt(0)"); A("s_mov_b32 s66, s98"); A("s_mov_b32 s67, s99")
    srd(A, sOUT, 84, 85, f"s{sT}", 127 * 2560 + 320)
    srd(A, sCNT, 86, 87, 0, 256)
    A(f"s_lshl_b32 s{sGI}, s{sGI}, 4"); A(f"s_add_u32 s{sGI}, s{sGI}, s7")
    A(f"s_lshl_b32 s{sOOF}, s7, 13")
    A(f"s_mov_b32 s{sKOFF}, 0"); A(f"s_mov_b32 s{sVOFF}, 0"); A(f"s_mov_b32 s{sSTUB}, 99")
    A(f"s_mov_b32 s{sTHR}, {hex(f32bits(2.0**O.thr_log2 if not O.forcefb else -1.0))}")
    A(f"s_mov_b32 s{sSC}, {hex(f32bits(128**-0.5*math.log2(math.e)))}"); A(f"s_mov_b32 s{sSC+1}, s{sSC}")
    A(f"v_lshrrev_b32 {vr(r)}, 2, {vr(i)}")
    A(f"v_and_b32 {vr(t0)}, 1, {vr(g)}"); A(f"v_lshl_add_u32 {vr(t0)}, {vr(t0)}, 2, {vr(r)}")
    A(f"v_lshl_add_u32 {vr(t1)}, {vr(g)}, 3, {vr(r)}"); A(f"v_lshlrev_b32 {vr(t1)}, 9, {vr(t1)}")
    A(f"v_and_b32 {vr(t2)}, 3, {vr(i)}"); A(f"v_lshl_add_u32 {vr(t1)}, {vr(t2)}, 3, {vr(t1)}"); A(f"v_add_u32 {vr(t1)}, {WQBASE}, {vr(t1)}")
    for n3 in range(8):
        A(f"v_xor_b32 {vr(t3)}, {n3}, {vr(t0)}"); A(f"v_lshl_add_u32 {vr(vAW+n3)}, {vr(t3)}, 5, {vr(t1)}")
    A(f"v_lshrrev_b32 {vr(t0)}, 1, {vr(i)}"); A(f"v_xor_b32 {vr(t0)}, {vr(t0)}, {vr(g)}")
    A(f"v_lshlrev_b32 {vr(t1)}, 7, {vr(i)}"); A(f"v_add_u32 {vr(t1)}, s{sXW}, {vr(t1)}")
    A(f"v_lshl_add_u32 {vr(vAX)}, {vr(t0)}, 4, {vr(t1)}"); A(f"v_xor_b32 {vr(vAX+1)}, 64, {vr(vAX)}")
    A(f"v_lshl_add_u32 {vr(t1)}, {vr(r)}, 4, {vr(t2)}"); A(f"v_lshlrev_b32 {vr(t1)}, 8, {vr(t1)}")
    A(f"v_and_b32 {vr(t0)}, 1, {vr(r)}"); A(f"v_lshlrev_b32 {vr(t0)}, 3, {vr(t0)}"); A(f"v_lshl_add_u32 {vr(t0)}, {vr(t2)}, 1, {vr(t0)}")
    A(f"v_lshrrev_b32 {vr(t3)}, 3, {vr(i)}"); A(f"v_add_u32 {vr(t0)}, {vr(t0)}, {vr(t3)}")
    A(f"v_and_b32 {vr(t3)}, 1, {vr(g)}"); A(f"v_lshl_add_u32 {vr(t3)}, {vr(t3)}, 1, {vr(h)}"); A(f"v_xor_b32 {vr(t0)}, {vr(t0)}, {vr(t3)}")
    A(f"v_lshl_add_u32 {vr(vAK)}, {vr(t0)}, 4, {vr(t1)}")
    for s in range(1, 4): A(f"v_xor_b32 {vr(vAK+s)}, {s*64}, {vr(vAK)}")
    A(f"v_lshl_add_u32 {vr(t1)}, {vr(g)}, 4, {vr(r)}"); A(f"v_lshlrev_b32 {vr(t1)}, 8, {vr(t1)}")
    A(f"v_and_b32 {vr(t0)}, 1, {vr(i)}"); A(f"v_lshl_add_u32 {vr(t1)}, {vr(t0)}, 3, {vr(t1)}"); A(f"v_add_u32 {vr(t1)}, {VBASE}, {vr(t1)}")
    A(f"v_and_b32 {vr(t0)}, 1, {vr(g)}"); A(f"v_lshlrev_b32 {vr(t0)}, 3, {vr(t0)}"); A(f"v_lshl_add_u32 {vr(t0)}, {vr(r)}, 1, {vr(t0)}")
    A(f"v_add_u32 {vr(t0)}, {vr(t0)}, {vr(h)}"); A(f"v_bfe_u32 {vr(t3)}, {vr(i)}, 1, 1"); A(f"v_xor_b32 {vr(t0)}, {vr(t0)}, {vr(t3)}")
    A(f"v_lshl_add_u32 {vr(vAV)}, {vr(t0)}, 4, {vr(t1)}")
    for db in range(1, 8): A(f"v_xor_b32 {vr(vAV+db)}, {db*32}, {vr(vAV)}")
    A(f"s_and_b32 s{sT}, s{sWAVE}, 1"); A(f"s_lshl_b32 s{sT}, s{sT}, 3"); A(f"s_lshr_b32 s{sT2}, s{sWAVE}, 1"); A(f"s_add_u32 s{sT}, s{sT}, s{sT2}")
    A(f"v_lshlrev_b32 {vr(t0)}, 1, {vr(g)}"); A(f"v_add_u32 {vr(t0)}, s{sT}, {vr(t0)}"); A(f"v_xor_b32 {vr(t0)}, {vr(t0)}, {vr(i)}")
    A(f"v_lshlrev_b32 {vr(t0)}, 4, {vr(t0)}"); A(f"v_lshl_add_u32 {vr(t0)}, {vr(g)}, 8, {vr(t0)}"); A(f"s_lshl_b32 s{sT}, s{sWAVE}, {16 if O.kperm else 12}"); A(f"v_add_u32 {vr(vOKV)}, s{sT}, {vr(t0)}")
    A(f"s_lshl_b32 s{sT}, s{sWAVE}, 19"); A(f"v_lshlrev_b32 {vr(t0)}, 4, {vr(lane)}"); A(f"v_add_u32 {vr(vOO)}, s{sT}, {vr(t0)}")
    if O.fuse:
        A(f"s_mul_i32 s{sT}, s{sWAVE}, {5120 - (1 << 19)}"); A(f"s_add_u32 s{sT}, s{sT}, 0x200000")
        A(f"s_mul_i32 s{sXI}, s7, 20480"); A(f"s_add_u32 s{sXI}, s{sXI}, s{sT}")
        A(f"s_xor_b32 s{sXO}, s7, 8"); A(f"s_mul_i32 s{sXO}, s{sXO}, 20480"); A(f"s_add_u32 s{sXO}, s{sXO}, s{sT}")
        for q in range(4): A(f"v_mov_b32 {vr(40+q)}, -1")
    def wo_touch(kk):
        if O.wopre != 100 + kk: return []
        return [[f"s_mov_b32 s{sWOI+2}, 5242880", f"s_mov_b32 s{sWOI+3}, 0x20000", f"s_and_b32 s3, s{sGI}, 127", "s_lshl_b32 s3, s3, 2", f"s_add_u32 s3, s3, s{sWAVE}", "s_mul_i32 s3, s3, 10240",
                 (f"buffer_load_dword v0, {vr(45)}, {sr(sWOI)}, s3 offen", "vm", "WOP")], ["s_add_u32 s3, s3, 5120", (f"buffer_load_dword v0, {vr(45)}, {sr(sWOI)}, s3 offen", "vm", "WOP")]]
    if 100 <= O.wopre <= 120: A(f"v_mul_u32_u24 {vr(45)}, 80, {vr(lane)}")
    if 0 <= O.wopre < 100:
        A(f"s_mov_b32 s{sWOI+2}, 5242880"); A(f"s_mov_b32 s{sWOI+3}, 0x20000")
        A(f"s_lshl_b32 s{sT}, s4, 2"); A(f"s_add_u32 s{sT}, s{sT}, s{sWAVE}"); A(f"s_mul_i32 s{sT}, s{sT}, 10240")
        A(f"v_lshlrev_b32 {vr(t0)}, 4, {vr(lane)}"); A(f"v_add_u32 {vr(vTMP)}, s{sT}, {vr(t0)}")
    L2S = [int(x) for x in O.l2s.split(',')] if O.l2s else []
    def l2t(kk): return [[f"s_mov_b32 s3, {(4 - (q & 1)) * 16384 + (q >> 1) * (256 << O.l2sh)}", (f"buffer_load_dword {ar(192)}, {vr(44)}, {sr(sV if q & 1 else sK)}, s3 offen{['', ' nt', ' sc1', ' sc0 sc1'][O.l2nt]}", "vm", "L2")] for q, at in enumerate(L2S) if at == kk]
    if L2S: A(f"v_lshlrev_b32 {vr(44)}, {O.l2sh}, {vr(lane)}"); A(f"s_lshl_b32 s{sT}, s{sWAVE}, {O.l2sh+6}"); A(f"v_add_u32 {vr(44)}, s{sT}, {vr(44)}")
    if O.kv0 < 0: flat([kv_groups("K", 0), kv_groups("V", 0)])
    stamp(A, "setup done", 1)
    def wo_pre(i, kk):
        n = 10 // O.wopn; r = []
        for q in range(i * n, (i + 1) * n):
            if q == i * n or q % 4 == 0:
                r.append([f"s_add_u32 m0, s{sKVW}, {0 if kk < 15 else 131072}", f"s_movk_i32 s{sT2}, {(q & ~3)*1024}"])
            r.append([(f"buffer_load_dwordx4 {vr(vTMP)}, {sr(sWOI)}, s{sT2} offen offset:{(q&3)*1024}{' nt' if O.wopre_nt else ''} lds", "vm", "WOP")])
        return r
    if O.wopre == 99: flat([wo_pre(0, 0)])
    def a_reads(kk):
        return [(f"ds_read_b64_tr_b16 {ar(AF(kk&1,nb)+2*jh,2)}, {vr(vAW+(nb&7))} offset:{(kk&3)*16384+jh*2048+(nb>>3)*256}", "ds", "A")
                for nb in range(16) for jh in range(2)]
    def x_reads(G):
        return [(f"ds_read_b128 {ar(XR(G,ks,qb),4)}, {vr(vAX+ks)} offset:{XB[G&1]+qb*2048}", "ds", "XR") for ks in range(2) for qb in range(4)]
    A.wait(vm=[("W", 0), ("X", 0)]); A("s_barrier")
    stamp(A, "wq0 landed"); stamp(A, "wq0 landed", 1); stamp(A, "wq0 landed", 3)
    for o in x_reads(0) + a_reads(0): A.op(o)
    flat([wq_dma(2), wq_dma(3)][O.wup:] if O.wup < 3 else [[wq_dma(2), x_dma(1), wq_dma(3)], [x_dma(1), wq_dma(3)]][O.wup - 3])
    cvl = []; C = cvl.append; cvdone = [0]
    def conv_front(hd, s, qb, T0, T1, tb):
        for T in (T0, T1):
            if O.cv19 and hd * 16 + s * 4 + qb < O.cvn:
                for q in range(4): C(f"v_mul_f32 {vr(T+q)}, s{sSC}, {vr(T+q)}")
                continue
            for q in range(2): C(f"v_pk_mul_f32 {vr(T+2*q,2)}, {vr(T+2*q,2)}, s[{sSC}:{sSC+1}]")
        for q in range(2): C(f"v_cvt_pk_bf16_f32 {vr(tb+q)}, {vr(T0+2*q)}, {vr(T0+2*q+1)}")
        for q in range(2): C(f"v_cvt_pk_bf16_f32 {vr(tb+2+q)}, {vr(T1+2*q)}, {vr(T1+2*q+1)}")
    def conv_back(hd, s, qb, tb):
        for q in range(2): C(f"v_permlane16_swap_b32 {vr(tb+q)}, {vr(tb+2+q)}")
    def conv_wr(hd, s, qb, tb):
        for q in range(4): C(f"v_accvgpr_write_b32 {ar(hd*64+(qb*4+s)*4+q)}, {vr(tb+q)}")
    jobs = []
    for pr in range(8):
        for qb in range(4):
            jobs.append((pr, qb))
    pend = []
    for n_, (pr, qb) in enumerate(jobs):
        if pr == 6 and qb == 0:
            for q in range(48): C(f"v_accvgpr_read_b32 {vr(48+q)}, {ar(208+q)}")
        def loc(nb): return 48 + (nb * 4 + qb) * 4 if nb < 13 else 48 + ((nb - 13) * 4 + qb) * 4
        tb = 16 + (n_ % 4) * 4
        mark = len(cvl)
        conv_front(pr >> 2, pr & 3, qb, loc(2 * pr), loc(2 * pr + 1), tb)
        cvl[mark] = [cvl[mark], 8 * pr + 7 + 8 if pr < 4 else 99]
        pend.append((pr >> 2, pr & 3, qb, tb))
        if len(pend) >= 2: conv_back(*pend[-2])
        if len(pend) >= 3: conv_wr(*pend[-3])
    C("s_nop 1"); conv_back(*pend[-1]); conv_wr(*pend[-2]); C("s_nop 0"); conv_wr(*pend[-1])
    KVS = [int(x) for x in O.kvs.split(",")]
    assert KVS[2] >= 15 and KVS[3] >= 15 and KVS[4] >= 16 and KVS[5] >= 17 and KVS[6] >= 17 and KVS[0] <= KVS[2] <= KVS[3] <= KVS[5] and KVS[1] <= KVS[4] <= KVS[6]
    for kk in range(20):
        A.c(f"---- qproj step {kk}")
        G, ks = kk >> 1, kk & 1
        if kk in (1, 4): stamp(A, f"step{kk}", 1)
        if kk in (4, 8, 12, 15): stamp(A, f"step{kk}", 3)
        xrd = (kk == 1 or (ks == 0 and 0 < G < 9)) if O.x1l else (ks == 0 and G < 9)
        nd = ([("W", kk + 1)] if kk + 1 < 20 else []) + ([("X", G + 1)] if xrd else [])
        A.wait(vm=nd, dsn=0); A("s_barrier")
        mf = [f"{MF} {ACC(nb,qb)}, {ar(AF(kk&1,nb),4)}, {ar(XR(G,ks,qb),4)}, {ACC(nb,qb) if kk else '0'}" for nb in range(16) for qb in (range(3, -1, -1) if nb & 1 and O.snake & 4 else range(4))]
        gaps = {q: [] for q in range(64)}
        mem = []
        if kk + 4 < 20: mem += wq_dma(kk + 4)
        if kk == 0: mem += x_dma(2)
        if ks == 1 and G + 3 < 10 and not (O.x1l and kk == 1): mem += x_dma(G + 3)
        if O.x1l and kk == 2: mem = x_dma(3) + mem
        if 0 <= O.wopre < 100 and O.wopre <= kk < O.wopre + O.wopn: mem += wo_pre(kk - O.wopre, kk)
        if O.fuse and kk == O.xfill: mem += mbox("store", lambda t: vr(40, 4), sXI, "XF")
        mem += l2t(kk) + wo_touch(kk)
        for (kind, tile), at in zip((("K", 0), ("V", 0), ("K", 1), ("K", 2), ("V", 1), ("K", 3), ("V", 2)), KVS):
            if kk == at: mem += kv_groups(kind, tile)
        rd = (x_reads(G + 1) if xrd else []) + (a_reads(kk + 1) if kk + 1 < 20 else [])
        sp = max(2, min(O.qsp, 56 // max(1, len(mem))))
        for q, ops in enumerate(mem): gaps[1 + sp * q] += ops
        fr = [q for q in range(O.qrd) if not gaps[q]]
        two = max(0, len(rd) - len(fr))
        fr = sorted(fr + fr[:two])
        for q, o in enumerate(rd): gaps[fr[(q * len(fr)) // len(rd)]].append(o)
        gaps[63] += ["s_nop 7"] * O.qpad
        if kk == 19 and O.cv19: cvdone[0] = interleave(A, mf, gaps, stream=cvl, partial=True, budget=O.cvb)
        else: interleave(A, mf, gaps)
    stamp(A, "qproj done"); stamp(A, "qproj done", 3)
    if O.fuse and O.xfill == 20: flat([mbox("store", lambda t: vr(40, 4), sXI, "XF")])
    for (kind, tile), at in zip((("K", 0), ("V", 0), ("K", 1), ("K", 2), ("V", 1), ("K", 3), ("V", 2)), KVS):
        if at == 20: flat([kv_groups(kind, tile)])
    flat([l2t(20), wo_touch(20)])
    A("s_nop 7")
    for o in cvl[cvdone[0]:]: A(o[0] if isinstance(o, list) else o)
    A(f"s_mov_b32 s{sT3}, 0x3f803f80")
    if not O.vsum and not O.smf:
        for q in range(4): A(f"v_accvgpr_write_b32 {ar(aONE+q)}, s{sT3}")
    if O.dumpq:
        A(f"s_lshl_b32 s{sT}, s5, 7"); A(f"s_lshl_b32 s{sT2}, s6, 4"); A(f"s_add_u32 s{sT}, s{sT}, s{sT2}"); A(f"s_add_u32 s{sT}, s{sT}, s7")
        A(f"s_lshl_b32 s{sT}, s{sT}, 17"); A(f"s_add_u32 s{sT}, s{sT}, {QDUMP_WS_OFF}")
        srd(A, sDBG, sWS, sWS + 1, f"s{sT}", "0x20000")
        A(f"v_and_b32 {vr(16)}, 0x3ff, {vr(vOO)}"); A(f"s_lshl_b32 s{sT}, s{sWAVE}, 15"); A(f"v_add_u32 {vr(16)}, s{sT}, {vr(16)}")
        for q in range(32):
            A(f"s_mov_b32 s{sT}, {q*1024}")
            A(f"buffer_store_dwordx4 {ar(4*q,4)}, {vr(16)}, {sr(sDBG)}, s{sT} offen")
        A("s_waitcnt vmcnt(0)")
    if O.xfill == 30:
        for q in range(4): A(f"v_accvgpr_write_b32 {ar(224+q)}, -1")
    if O.fuse and not O.oek: oproj_early(A, 16)
    A.wait(vm=[("K", 0)]); A("s_barrier")
    if O.stag:
        A("s_lshr_b32 s3, s2, 3"); A(f"s_and_b32 s3, s3, {O.stagm}"); A(f"s_mul_i32 s3, s3, {O.stag}"); A("s_memrealtime s[50:51]"); A("s_waitcnt lgkmcnt(0)"); A("s_add_u32 s3, s3, s50")
        A.label("L_stag"); A("s_memrealtime s[50:51]"); A("s_waitcnt lgkmcnt(0)"); A("s_sub_u32 s4, s3, s50"); A("s_cmp_gt_i32 s4, 0"); A("s_cbranch_scc1 L_stag")
    stamp(A, "conv done")
    if O.exitat == 1: A("s_branch L_exit")
    A(f"s_mov_b32 s{sUNIT}, 0")
    if O.trace: A("s_mov_b64 s[52:53], 1"); A("s_memrealtime s[50:51]"); A("v_mov_b32 v0, 0")
    assert A.vm_n([("K", 1), ("V", 0)]) >= O.fvm
    A.label("L_unit")
    A(f"s_mov_b32 s{sLOOP}, 3")
    ncls = 2 if O.twocls else 1
    if ncls == 2:
        A(f"s_bitcmp1_b32 s{sWAVE}, 0"); A("s_cbranch_scc1 L_first_1")
    ds6 = None
    for cls in range(ncls):
        A.label(f"L_first_{cls}")
        A.ds = []
        first_slot(A, cls)
        kn0 = tuple(int(x) for x in O.u0.split(",")) if O.u0 else None
        slot(A, 1, cls, f"second_{cls}", zero=True, tail=[f"s_cmp_lg_u32 s{sUNIT}, 0", "s_cbranch_scc1 L_loop_1"] if kn0 else [])
        for cp in range(2 if kn0 else 1):
            ds_in = list(A.ds)
            if cp == 0 and O.xfill == 30: flat([mbox("store", lambda t: ar(224, 4), sXI, "XF")])
            A.label(f"L_loop_{cp}")
            for p in (2, 3, 4, 5, 6, 7, 0, 1):
                tail = []
                if p == 6 and (cp == 0) == (O.u0n == 4): tail = [f"s_cmp_eq_u32 s{sLOOP}, 0", "s_cbranch_scc1 L_last"]
                if p == 7 and O.fuse and (cp or not kn0): tail = [f"s_cmp_eq_u32 s{sLOOP}, s{sSTUB}", "s_cbranch_scc1 L_tail"]
                if p == 1:
                    tail = [f"s_sub_u32 s{sLOOP}, s{sLOOP}, 1"]
                    if cp == 0 and O.u0n < 4: tail += [f"s_cmp_gt_u32 s{sLOOP}, {3 - O.u0n}", "s_cbranch_scc1 L_loop_0"]
                    else: tail += [f"s_branch L_loop_{cp}"]
                slot(A, p, cls, f"p{p}_{cp}", tail=tail, kn=kn0 if cp == 0 else None)
                if p == 6 and (cp == 0) == (O.u0n == 4): ds6 = list(A.ds)
                if p == 7: ds7 = list(A.ds)
    if O.stamps and O.stm == 4: nstamp[0] += 1; stamp_names.append("loopback")
    A.label("L_last")
    if not O.fuse: stamp(A, "last", 4)
    A.ds = list(ds6)
    last_slot(A, O.est if O.fuse else 4, extra1=(wo_t(0, 0, ar(224)) if O.wo0 == 31 else []) + (wo_t(1, 0, ar(225))[O.wo0 == 31:] if O.wo1 == 31 else []))
    if O.chk:
        A(f"s_cmp_lg_u64 s[{sM}:{sM+1}], 0"); A("s_cbranch_scc1 L_fb")
    if not O.fuse:
        A(f"s_cmp_lg_u32 s{sUNIT}, 0"); A("s_cbranch_scc1 L_fbret1")
    A.label("L_fbret0")
    stamp(A, "unit0 end"); stamp(A, "unit0 end", 2)
    if O.exitat == 2: A("s_branch L_exit")
    A(f"s_mov_b32 s{sUNIT}, 1"); A(f"s_add_u32 s{sOOF}, s{sOOF}, 4096"); A(f"s_mov_b32 s{sSTUB}, 1")
    if O.fuse and O.wopre >= 300:
        sh = O.wopre - 300
        A(f"v_bfe_u32 v0, {vr(vOO)}, 4, 6"); A("s_lshr_b32 s3, s2, 3"); A(f"s_lshl_b32 s3, s3, 2"); A(f"s_add_u32 s3, s3, s{sWAVE}"); A("s_lshl_b32 s3, s3, 6")
        A("v_add_u32 v0, s3, v0"); A(f"v_lshlrev_b32 v0, {12 - sh}, v0"); A("s_lshr_b32 s3, s7, 3"); A("s_mul_i32 s3, s3, 2621440")
        A(f"v_cmp_gt_u32 vcc, 2621440, v0"); A("s_and_saveexec_b64 s[100:101], vcc")
        A(f"buffer_load_dword {ar(224)}, v0, {sr(sW)}, s3 offen"); A("s_mov_b64 exec, -1")
    if not O.mvk: unit_moves(A)
    A("s_branch L_unit")
    if O.fuse:
        A.label("L_tail")
        stamp(A, "tail", 2); stamp(A, "tail", 4)
        if O.trace:
            srd(A, 56, sWS, sWS + 1, 132 << 20, 4 << 20); A("s_lshl_b32 s3, s2, 10")
            A(f"buffer_store_dword v0, {vr(vOO)}, s[56:59], s3 offen")
        A.ds = list(ds7)
        A.vm = [("G", 9)] * 8 + [("G", 10)] * 8 + (["WOP"] if O.wopre == 250 else []) + [("G", 11)] * 8
        def st0(qbs):
            r = []
            for qb in qbs:
                if qb < O.est: continue
                r.append([f"s_add_u32 s{sT}, s{sOOF}, {qb*131072 - 4096}"] if qb else [f"s_sub_u32 s{sT}, s{sOOF}, 4096"])
                r += [[o_store(ar(aQ2 + (qb * 4 + t) * 4, 4), qb, t, "ST0", sT)] for t in range(4)]
            return r
        v15 = dma_v(3, ("G", 12))
        sq = {0: ([0], [1, 2], [3]), 1: ([1], [2], [3]), 2: ([2], [3], []), 3: ([3], [], []), 4: ([], [], [])}[O.est]
        def wt(t): return (wo_t(0, 0, ar(224)) if t == O.wo0 else []) + (wo_t(1, 0, ar(225)) if t == O.wo1 else [])
        def f1(t): return flag_ops(1, "f1") if t == O.f1at else ()
        def vt(t, g): return [("G", g)] + (["ST0"] if t == O.f1at else [])
        slot(A, 0, 0, "t24", groups=[[v15[0]]] + [[o] for o in v15[1]] + wt(24) + st0(sq[0]), vmtags=vt(24, 9), after_bar=f1(24))
        slot(A, 1, 0, "t25", groups=wt(25) + st0(sq[1]))
        slot(A, 2, 0, "t26", groups=st0(sq[2]) + wt(26) + w_dma(0, 0, True), vmtags=vt(26, 10), after_bar=f1(26))
        def touch(lo, hi):
            if O.wopre != 200: return []
            r = []
            for q in range(lo, hi):
                if q == lo or q % 4 == 0: r.append([f"s_add_u32 s{sT}, s{sTW}, {(q & ~3)*1024}"])
                r.append([(f"buffer_load_dwordx4 {ar(224+(q&7)*4,4)}, {vr(vOO)}, {sr(sW)}, s{sT} offen offset:{(q&3)*1024}{' nt' if O.wopre_nt else ''}", "vm", "WOP")])
            return r
        slot(A, 3, 0, "t27", groups=w_dma(0, 1, True) + touch(0, 5) + wt(27))
        slot(A, 4, 0, "t28", groups=w_dma(1, 0, True) + (o_ld_early(0) if O.eo else []), vmtags=vt(28, 11), after_bar=f1(28), tail=poll_ops("p0", 0) if O.eo == 1 else ())
        slot(A, 5, 0, "t29", groups=touch(5, 10) + wt(29) + w_dma(1, 1, True), tail=poll_ops("p0", 0) if O.eo == 3 else ())
        slot(A, 6, 0, "t30", groups=w_dma(2, 0, True) + (o_ld_early(1) if O.eo == 1 else w_dma(2, 1, True) if O.eo == 3 else []), vmtags=vt(30, 12), after_bar=f1(30),
             before_bar=[("", "call", lambda A_: poll_check(A_, 0x01010101, "u0", None, "p0"))] if O.eo == 1 else (),
             tail=([("", "call", lambda A_: poll_check(A_, 0x01010101, "u0", None, "p0")), "s_barrier"] if O.eo == 3 else []) + [f"v_accvgpr_read_b32 {vr(vPOLL)}, {ar(aPOLL)}"] + poll_ops("p1"))
        stamp(A, "last1", 2)
        oproj_setup(A)
        def mid():
            A.wait(dsn=0)
            poll_check(A, 0x01010101, "u1", vOWX, "p1")
            A("s_barrier")
        if O.eo:
            assert O.f1at <= 26 and O.est >= 2 and O.own1
            if O.eo == 1: last_slot(A, 4, extra1=w_dma(2, 1) + o_ld(2), mid=mid)
            if O.eo == 2: last_slot(A, 4, extra1=w_dma(2, 1), mid=mid, extra2=o_ld(1) + o_ld(2))
            if O.eo == 3: last_slot(A, 4, extra1=o_ld(1) + o_ld(2), mid=mid)
        elif O.own1: last_slot(A, 4, extra1=w_dma(2, 1) + o_ld(0), mid=mid, extra2=o_ld(1) + o_ld(2))
        else: last_slot(A, 4, extra1=w_dma(2, 1), mid=mid, extra2=o_ld(0) + o_ld(1) + o_ld(2))
        if O.chk:
            A(f"s_cmp_lg_u64 s[{sM}:{sM+1}], 0"); A("s_cbranch_scc1 L_fb")
        A.label("L_fbret1")
        stamp(A, "unit1 end"); stamp(A, "unit1 end", 2); stamp(A, "unit1 end", 5); stamp(A, "unit1 end", 6)
        if O.exitat == 3: A("s_branch L_exit")
        oproj(A)
    else:
        A.label("L_fbret1")
        stamp(A, "unit1 end")
    if O.exitat: A.label("L_exit")
    if O.stamps: emit_stamps(A)
    A.label("L_end")
    A("s_endpgm")
    if O.chk:
        fallback(A)
    emit_spins(A)
    A.label("L_codeend")
    return kstart(k) + A.text()

def emit_stamps(A):
    A("s_waitcnt vmcnt(0) lgkmcnt(0)")
    A(f"s_memtime s[8:9]"); A(f"s_memrealtime s[10:11]")
    A("s_waitcnt lgkmcnt(0)")
    srd(A, sDBG, sWS, sWS + 1, STAMP_WS_OFF, "0x100000")
    A(f"s_lshl_b32 s3, s2, 2"); A(f"s_add_u32 s3, s3, s{sWAVE}"); A("s_lshl_b32 s3, s3, 7")
    A("v_mov_b32 v0, s3")
    n = nstamp[0]
    regs = [(j, sSTAMP + 2 * j) for j in range(n)] + [(n, 8)] + [(8 + j, 62 if j == 0 else sRSTAMP + 2 * j) for j in range(n)] + [(8 + n, 10)]
    A("s_getreg_b32 s4, hwreg(HW_REG_XCC_ID)")
    regs.append((16, 4))
    for j, s_ in regs:
        A(f"v_mov_b32 v1, s{s_}")
        A(f"buffer_store_dword v1, v0, {sr(sDBG)}, 0 offen offset:{4*j}")
    A("s_waitcnt vmcnt(0)")

def main():
    ap = argparse.ArgumentParser()
    for k_, v_ in vars(Opt).items():
        if k_.startswith("_"): continue
        if isinstance(v_, bool): ap.add_argument("--" + k_, type=lambda s: bool(int(s)), default=v_)
        elif isinstance(v_, int): ap.add_argument("--" + k_, type=int, default=v_)
        else: ap.add_argument("--" + k_, default=v_)
    a = ap.parse_args()
    for k_, v_ in vars(a).items(): setattr(O, k_, v_)
    assert O.fvm <= 16 + 4 * O.est
    O.smpos_ = [int(x) for x in O.smpos.split(',')]
    hdr = open("cdna_kernels/" + NAME + ".s.ref").read().split("; Override launch")[0]
    out = hdr
    out += "; @launch kernel=attn_kernel grid=(256,1,1) block=(256,1,1) lds=163840\n"
    body = gen_kernel("attn_kernel")
    if O.stamps: out += "; stamps: " + ",".join(stamp_names) + ",end\n"
    out += '.amdgcn_target "amdgcn-amd-amdhsa--gfx950"\n.text\n'
    out += body + kd("attn_kernel")
    lines = out.split("\n")
    if O.skip_loop:
        iu = lines.index("L_unit:"); il = lines.index("L_last:")
        lines = lines[:iu] + [l for l in lines[iu:il] if not ("buffer_load_dwordx4" in l and " lds" in l)] + lines[il:]
    il = lines.index("L_last:")
    if O.skip_oo: lines = lines[:il] + [l for l in lines[il:] if not ("buffer_load_dwordx4 a[" in l and "s[8:11]" in l)]
    if O.skip_ow: lines = lines[:il] + [l for l in lines[il:] if not ("s[12:15]" in l and " lds" in l)]
    iu = lines.index("L_unit:")
    if O.skip_x: lines = [l for l in lines[:iu] if not ("s[8:11]" in l and " lds" in l)] + lines[iu:]
    if O.skip_w: lines = [l for l in lines[:iu] if not ("s[12:15]" in l and " lds" in l)] + lines[iu:]
    sys.stdout.write("\n".join(lines))
main()
```

```python
import sys, math, argparse, re, struct, copy

NAME = "concat_heads__gqa_block_cached__gqa_block_cached__near_ridge"

class Opt:
    stamps = False
    dumpq = False
    kv_nt = True
    fuse = True
    twocls = False
    D = 6
    bar = 20
    burst = 1
    dper = 3
    qsp = 4
    w_nt = True
    x_nt = True
    wo_nt = False
    kv0 = 15
    pubw = 11
    map2 = True
    pub2 = 1
    pub1 = 28
    poll2 = 8
    thr_log2 = 30
    skip_loop = False
    skip_x = False
    skip_w = False
    forcefb = False
    budget = 8
    wpre = True
    o_sc1 = True
    chk = True
    stm = 0
    cpre = True
    rot = 0
    wfake = False
    noinv = False
    skip_oo = False
    skip_ow = False
    st_sc1 = True
    wopre = 200
    wopre_nt = False
    wopn = 1
    ndef = 4
    xbar = 60
    own1 = True
    obar = 4
    osp = 2
    xdense = True
    vlate = 4
    vsum = False
    pad = 0
    vmn = 16
    kvs = "13,14,15,16,17,18,19"
    outfl = 0
    trace = False
    xld = 40
    xfill = 18
    lfake = False
    whalf = False
    ofake = False
    walign = False
    wofl = 0
    fvm = 20
    u0n = 4
    kperm = 0
    fs2 = 12
    lsb = 12
    oek = False
    qrd = 60
    wup = 0
    x1l = True
    eo = 0
    wo0 = 24
    wo1 = 1
    mvk = True
    cvn = 8
    cvb = 12
    cv19 = True
    u0 = "16,8,20"
    klate = 0
    stfl = 0
    stfl1 = 0
    xffl = 0
    est = 1
    f1at = 28
    snake = 15
    kvfl = 0
    qpad = 0
    upad = 0
    upadm = 0
    stag = 0
    stagm = 3
    exitat = 0
    l2n = 0
    l2s = ""
    l2nt = 0
    l2sh = 6
    smpos = "3,7"
    smf = True

O = Opt()

class Asm:
    def __init__(self):
        self.L = []
        self.vm = []
        self.ds = []
        self.nvm = 0; self.mark = {}
    def __call__(self, s):
        if s.endswith(" lds") and self.L and " m0," in self.L[-1]: self.L.append("    s_nop 0")
        self.L.append(s if s.endswith(":") else "    " + s)
    def label(self, s): self.L.append(s + ":")
    def c(self, s): self.L.append("    ; " + s)
    def text(self): return "\n".join(self.L) + "\n"
    def vm_n(self, tags):
        idx = [i for i, t in enumerate(self.vm) if t in tags]
        if not idx: return None
        return min(63, len(self.vm) - 1 - max(idx))
    def ds_n(self, tags):
        idx = [i for i, t in enumerate(self.ds) if t in tags]
        if not idx: return None
        return min(15, len(self.ds) - 1 - max(idx))
    def wait(self, vm=None, ds=None, vmn=None, dsn=None):
        a = self.vm_n(vm) if vm else None
        b = self.ds_n(ds) if ds else None
        if vmn is not None: a = vmn if a is None else min(a, vmn)
        if dsn is not None: b = dsn if b is None else min(b, dsn)
        p = []
        if a is not None:
            p.append(f"vmcnt({a})"); self.vm = self.vm[len(self.vm) - a:] if a else []
        if b is not None:
            p.append(f"lgkmcnt({b})"); self.ds = self.ds[len(self.ds) - b:] if b else []
        if p: self("s_waitcnt " + " ".join(p))
    def op(self, o):
        if isinstance(o, str): self(o); return
        if o[1] == "vm": self.vm.append(o[2]); self.nvm += 1
        elif o[1] == "mark": self.mark[o[2]] = self.nvm
        elif o[1] == "call": o[2](self); return
        elif o[1] == "ds": self.ds.append(o[2])
        elif o[1] == "wait": self.wait(**o[2]); return
        self(o[0])

def vr(b, n=1): return f"v{b}" if n == 1 else f"v[{b}:{b+n-1}]"
def ar(b, n=1): return f"a{b}" if n == 1 else f"a[{b}:{b+n-1}]"
def sr(b, n=4): return f"s[{b}:{b+n-1}]"
def f32bits(x): return struct.unpack("<I", struct.pack("<f", x))[0]
MF = "v_mfma_f32_16x16x32_bf16"

def kd(k, vgpr=512, acc=256, sgpr=102):
    return f""".section .rodata,"a"
.p2align 6
.amdhsa_kernel {k}
  .amdhsa_next_free_vgpr {vgpr}
  .amdhsa_next_free_sgpr {sgpr}
  .amdhsa_accum_offset {acc}
  .amdhsa_group_segment_fixed_size 0
  .amdhsa_kernarg_size 104
  .amdhsa_user_sgpr_count 2
  .amdhsa_user_sgpr_kernarg_segment_ptr 1
  .amdhsa_system_sgpr_workgroup_id_x 1
.end_amdhsa_kernel
.text
"""
def kstart(k): return f".globl {k}\n.p2align 8\n.type {k},@function\n{k}:\n"

WOF_OFF = 48 << 20
STAMP_WS_OFF = 128 << 20
QDUMP_WS_OFF = 64 << 20
sTW = 65
sXI, sXO = 78, 79

sX, sW, sK, sV, sO = 8, 12, 16, 20, 24
sWAVE, sKVW, sVVW, sWQW, sKOFF, sVOFF, sXW, sLOOP, sUNIT, sT, sTHR, sT3 = range(28, 40)
sSC, sOOF, sFB, sT2, sGI, sWS = 40, 42, 43, 44, 45, 46
sSTAMP, sRSTAMP = 48, 64
sCNT, sDBG, sWOI, sWOF, sOUT = 80, 84, 88, 92, 96
sM = 100
vAK, vAV, vOKV, vOO, vTMP = 1, 5, 13, 14, 15
vIDX, vPOLL, aPOLL, aPOLL1, aOQ = 15, 30, 222, 223, 200
vNEGM, vS, vP, vO = 16, 32, 96, 128
aQ, aQ2, aKF, aVF, aL, aONE = 0, 64, 128, 160, 192, 208
KBASE, VBASE, WQBASE, FBBASE = 0, 65536, 98304, 131072
XB = (16384, 49152)
FLAG_OFF = 60 << 20
sFLG, sSTUB = 84, sFB

def S(buf, qb, kb): return vS + buf * 32 + (qb * 2 + kb) * 4
def P(buf, qb): return vP + buf * 16 + qb * 4
def NEGM(qb): return vNEGM + qb * 4
def Q(qb, s): return aQ + (qb * 4 + s) * 4
def OA(db, qb): return vO + (qb * 8 + db) * 4
def LA(qb): return aL + qb * 4
vL = 252
def OAT(db, qb): return ar(aL, 4) if O.vsum and (db, qb) == (7, 3) else vr(OA(db, qb), 4)

nstamp = [0]
stamp_names = []
def stamp(A, name, mode=0):
    if not O.stamps or (mode != O.stm and name != "t0"): return
    i = nstamp[0]; nstamp[0] += 1; stamp_names.append(name)
    assert i < 7
    A(f"s_memtime s[{sSTAMP+2*i}:{sSTAMP+2*i+1}]")
    r = 62 if i == 0 else sRSTAMP + 2 * i
    A(f"s_memrealtime s[{r}:{r+1}]")

def cost(o):
    t = o if isinstance(o, str) else o[0]
    if t.endswith(":"): return 0
    if not isinstance(o, str) and o[1] in ("wait", "call"): return 0
    if t.startswith(("v_exp", "v_rcp")): return 8
    if t.startswith("buffer_"): return 8
    if t.startswith("s_nop"): return 4 * (int(t.split()[1]) + 1)
    if t.startswith("v_cvt_pk") or t.startswith("v_max3") or t.startswith("v_perm"): return 5
    if t.startswith("v_pk_"): return 8
    return 4

def interleave(A, mf, fixed=None, stream=(), pre=None, budget=None, need=None, partial=False):
    budget = O.budget if budget is None else budget
    fixed = fixed or {}; pre = pre or {}; need = need or {}
    st = list(stream); si = 0; debt = 0
    for g in range(len(mf)):
        for t in pre.get(g, []): A.op(t)
        if g in need: A.wait(ds=need[g])
        A(mf[g])
        fx = fixed.get(g, [])
        room = budget - sum(cost(o) for o in fx) - debt
        for o in fx: A.op(o)
        while si < len(st):
            o, at = st[si] if isinstance(st[si], list) else (st[si], 0)
            if at > g: break
            c = cost(o)
            if room <= 0 or (c > room + 1): break
            A.op(o); room -= c; si += 1
        debt = 0
    if partial: return si
    while si < len(st):
        o = st[si][0] if isinstance(st[si], list) else st[si]
        A.op(o); si += 1

NT_KV = lambda: [" nt", "", " sc1", " sc1 nt", " sc0 sc1 nt", " sc0 nt", " sc0 sc1"][O.kvfl]
SC1 = lambda: " sc1" if O.o_sc1 else ""
OFL = lambda: ["", " sc1", " sc0 sc1", " nt", " sc1 nt", " sc0 sc1 nt"][O.outfl]
def adv(off):
    if O.kperm: return f"s_add_u32 s{off}, s{off}, 0x1000\n    s_and_b32 s3, s{off}, 0x10000\n    s_mul_i32 s3, s3, 3\n    s_add_u32 s{off}, s{off}, s3   ; 0x4000"
    return f"s_add_u32 s{off}, s{off}, 0x4000"
def vphys(ring): return (ring + 1) & 3
def dma_k(ring, tag):
    return (f"s_add_u32 m0, s{sKVW}, {ring*16384}",
            [(f"buffer_load_dwordx4 {vr(vOKV)}, {sr(sK)}, s{sKOFF} offen offset:{p*1024}{NT_KV()} lds", "vm", tag) for p in range(4)],
            adv(sKOFF))
def dma_v(ring, tag):
    return (f"s_add_u32 m0, s{sVVW}, {vphys(ring)*16384}",
            [(f"buffer_load_dwordx4 {vr(vOKV)}, {sr(sV)}, s{sVOFF} offen offset:{p*1024}{NT_KV()} lds", "vm", tag) for p in range(4)],
            adv(sVOFF))
def k_reads(ring, h, dst=aKF):
    return [(f"ds_read_b128 {ar(dst+(kb*4+s)*4,4)}, {vr(vAK+s)} offset:{ring*16384+(2*h+kb)*1024}", "ds", ("F", dst + (kb*4+s)*4))
            for kb in range(2) for s in range(4)]
def v_reads(ring, h):
    return [(f"ds_read_b64_tr_b16 {ar(aVF+db*4+2*jh,2)}, {vr(vAV+db)} offset:{vphys(ring)*16384+h*2048+jh*1024}", "ds", ("F", aVF + db*4))
            for db in range(8) for jh in range(2)]
def pv_mf(buf, zero=False, qbmajor=False):
    r = []
    def pv(db, qb): return (f"{MF} {OAT(db,qb)}, {ar(aVF+db*4,4)}, {vr(P(buf,qb),4)}, {'0' if zero else OAT(db,qb)}", aVF + db*4, qb)
    def sm(qb): return (f"{MF} {ar(LA(qb),4)}, {ar(aONE,4)}, {vr(P(buf,qb),4)}, {'0' if zero else ar(LA(qb),4)}", None, qb)
    def sm2(pr): return (f"v_smfmac_f32_16x16x64_bf16 {ar(LA(pr),4)}, {ar(aONE,4)}, {vr(P(buf,2*pr),8)}, {vr(vIDX)}", None, 2 * pr)
    if qbmajor:
        for qb in range(4):
            if O.smf:
                if not qb & 1: r.append(sm2(qb >> 1))
            elif not O.vsum: r.append(sm(qb))
            r += [pv(7 - db if qb & 1 and O.snake & 1 else db, qb) for db in range(8)]
    else:
        for db in range(8):
            r += [pv(db, 3 - qb if db & 1 and O.snake & 1 else qb) for qb in range(4)]
            if O.smf:
                if db in O.smpos_: r.append(sm2(O.smpos_.index(db)))
            elif db & 1 and not O.vsum: r.append(sm(db >> 1))
    return r
def qk_mf(buf, zero=False, kf=aKF, snake=False):
    r = []
    order = [(qb, kb, s) for qb in range(4) for kb in range(2) for s in range(4)]
    if snake: order = [(p * 2 + (q ^ ((kb + s) & 1)), kb ^ (s & 1), s) for p in range(2) for s in range(4) for kb in range(2) for q in range(2)]
    for qb, kb, s in order:
        c = vr(S(buf,qb,kb),4) if s else ("0" if zero else vr(NEGM(qb),4))
        r.append((f"{MF} {vr(S(buf,qb,kb),4)}, {ar(kf+(kb*4+s)*4,4)}, {ar(Q(qb,s),4)}, {c}", kf + (kb*4+s)*4, qb))
    return r
def ex(b, e): return f"v_exp_f32 {vr(vS+b*32+e)}, {vr(vS+b*32+e)}"
def cv(b, i): return f"v_cvt_pk_bf16_f32 {vr(vP+b*16+i)}, {vr(vS+b*32+2*i)}, {vr(vS+b*32+2*i+1)}"
def ad(b, e): return f"v_add_f32 {vr(vL+(e>>3))}, {vr(vL+(e>>3))}, {vr(vS+b*32+e)}"
def needs(mfs, group=2):
    nd = {}; seen = []
    for g, m in enumerate(mfs):
        if m[1] is not None and m[1] not in seen: seen.append(m[1]); nd[g] = m[1]
    items = sorted(nd.items())
    out = {}
    for i in range(0, len(items), group):
        out[items[i][0]] = [("F", t) for _, t in items[i:i + group]]
    return out
def lastuse(mfs):
    lu = {}
    for g, m in enumerate(mfs):
        if m[1] is not None: lu[m[1]] = g
    return lu

def barrier_ops(cls, g, pre, gaps, vmtags=None, first=False, vmn=16):
    w = ("", "wait", dict(vmn=O.fvm if first else vmn + (O.fuse and O.wopre == 250), dsn=0) if vmtags is None else dict(vm=vmtags, dsn=0))
    if cls == 0: pre[g] = [w, "s_barrier"]
    else:
        pre[g] = [w]; gaps[g].insert(0, "s_barrier")

def is_vm(o): return not isinstance(o, str) and o[1] == "vm"
def slot(A, p, cls, tag, zero=False, tail=(), groups=None, vmtags=None, after_bar=(), kn=None, before_bar=()):
    D = O.D; even = (p & 1) == 0; buf = p & 1; t_ = p >> 1
    vlate, klate, bar0, vmn = (tuple(kn) + (O.vmn,))[:4] if kn else (O.vlate, O.klate, O.bar, O.vmn)
    A.c(f"---- slot {tag} pos={p} cls={cls}")
    kr = k_reads(((p + 1) >> 1) & 3, (p + 1) & 1)
    vq = v_reads(t_ & 3, p & 1)
    pvm = pv_mf(buf ^ 1, zero); mfs = pvm + qk_mf(buf ^ 1, snake=O.snake & 2)
    n = len(mfs); npv = len(pvm)
    gaps = {g: [] for g in range(n)}; pre = {}
    seq = [(buf, e) for e in range(D, 32)] + [(buf ^ 1, e) for e in range(D)]
    eg = [2 * i for i in range(32 - D)] + [n - 64 + 2 * i for i in range(32 - D, 32)]
    for g, (b, e) in zip(eg, seq): gaps[g].append(ex(b, e))
    free = [g for g in range(n) if g not in eg]
    cvg = {g + 1: cv(b, e >> 1) for g, (b, e) in zip(eg, seq) if e & 1}
    if even and bar0 <= npv: klate = 0
    for g, t in zip(free[:8 - klate], kr): gaps[g].append(t)
    need = {}
    if klate:
        gaps[npv - 1] += kr[8 - klate:]
        need = {g: t for g, t in needs(mfs).items() if g >= npv}
    lu = lastuse(pvm)
    pre[0] = [("", "wait", dict(dsn=0))]
    if O.trace and groups is None:
        pre[0] += ["s_mov_b64 exec, s[52:53]", "v_mov_b32 v0, s50", "s_mov_b64 exec, -1", "s_lshl_b64 s[52:53], s[52:53], 1"]
        gaps[n - 3].append("s_memrealtime s[50:51]")
    if groups is None:
        kg = dma_k(t_ & 3, "KV"); vg = dma_v((t_ + 3) & 3, "KV")
        if even: flat = [kg[0]] + kg[1] + [vg[0], kg[2]] + (vg[1] + [vg[2]] if O.burst == 1 else [])
        else: flat = vg[1] + [vg[2]] if O.burst == 2 else []
        if O.fuse and O.wopre == 250 and p in (1, 5):
            flat = flat + [(f"buffer_load_dwordx4 {ar(224,4)}, {vr(vOO)}, {sr(sW)}, s{sTW} offen{' nt' if O.wopre_nt else ''}", "vm", "WOP"), f"s_add_u32 s{sTW}, s{sTW}, 1024", f"s_min_u32 s{sTW}, s{sTW}, s{sTW-1}"]
    else:
        flat = [o for grp in groups for o in grp]
    dm = [o for o in flat if is_vm(o)]
    bar = bar0 if even else 15
    if even:
        barrier_ops(cls, bar, pre, gaps, vmtags, vmn=vmn)
        if after_bar: pre[bar + 1] = list(after_bar)
        pre[bar][1:1] = list(before_bar)
    rest = [g for g in free if g > bar]
    if klate: rest = [g for g in rest if g != npv - 1]
    if vlate:
        gaps[n - 1] += vq[len(vq) - vlate:]; vq = vq[:len(vq) - vlate]
        rest = [g for g in rest if g != n - 1]
    lack = len(dm) + len(vq) - len(rest)
    xg = set()
    if lack > 0:
        cand = [g for g in eg if g > bar + 4]
        xg = {cand[(q * len(cand)) // lack + len(cand) // (2 * lack)] for q in range(lack)}
        rest = sorted(rest + list(xg))
    dg = []; k = 0
    while dm or vq:
        g = rest.pop(0)
        vok = vq and lu[vq[0][2][1]] <= g
        if g in xg and vok: gaps[g].append(vq.pop(0)); continue
        if dm and k % O.dper == 0 and g in cvg and vok: gaps[g].append(vq.pop(0)); continue
        if dm and (k % O.dper == 0 or not vok) and g not in cvg: gaps[g].append(dm.pop(0)); dg.append(g)
        elif vok: gaps[g].append(vq.pop(0))
        elif dm: gaps[g].append(dm.pop(0)); dg.append(g)
        k += 1
    small = []
    nv = 0
    for o in flat:
        if is_vm(o): nv += 1; continue
        lo = dg[nv - 1] if nv else 16
        hi = n - 1 if ("0x4000" in o or nv == len(dg)) else dg[nv] - 1
        small.append((o, lo, hi))
    if not klate and (not even or bar >= npv): small.append((("", "wait", dict(ds=[o[2] for o in kr])), 24, npv - 1))
    for g, o in cvg.items(): gaps[g].append(o)
    if O.vsum:
        for g, (b, e) in zip(eg, seq): gaps[g + 1].append(ad(b, e))
    def used(g): return sum(4 if (not isinstance(o, str) and o[1] == "wait") else cost(o) for o in gaps[g]) + 4 * len(pre.get(g + 1, []))
    prev = (None, 0)
    for o, lo, hi in small:
        key = (lo, hi)
        if prev[0] == key: lo = prev[1]
        c = [g for g in range(lo, hi + 1) if used(g) <= 5]
        if not c: c = sorted(range(lo, hi + 1), key=used)
        gaps[c[0]].append(o); prev = (key, c[0])
    for q in range(O.pad): gaps[1 + (q * 62) // O.pad // 2 * 2 + 1].append("s_nop 1")
    if O.upad and groups is None:
        lb = f"L_up_{tag}"
        gaps[n - 1] += [f"s_lshl_b32 s3, s{sUNIT}, 2", f"s_sub_u32 s3, s3, s{sLOOP}", "s_add_u32 s3, s3, 3", f"s_cmp_ge_u32 s3, {O.upadm}", f"s_cbranch_scc1 {lb}"] + ["s_nop 7"] * O.upad + [lb + ":"]
    gaps[n - 1] += list(tail)
    interleave(A, [m[0] for m in mfs], gaps, pre=pre, need=need)

def max_chain(qb, buf, t0, t1, run=None):
    s = S(buf, qb, 0)
    st = [f"v_max3_f32 {vr(t0)}, {vr(s)}, {vr(s+1)}, {vr(s+2)}", f"v_max3_f32 {vr(t1)}, {vr(s+3)}, {vr(s+4)}, {vr(s+5)}",
          f"v_max3_f32 {vr(t0)}, {vr(t0)}, {vr(s+6)}, {vr(s+7)}"]
    if run is not None: return st + [f"v_max3_f32 {vr(run)}, {vr(run)}, {vr(t0)}, {vr(t1)}"]
    return st + [f"v_max_f32 {vr(t0)}, {vr(t0)}, {vr(t1)}"]
def xlane_max(t0, t1):
    return [f"v_mov_b32 {vr(t1)}, {vr(t0)}", "s_nop 1", f"v_permlane32_swap_b32 {vr(t0)}, {vr(t1)}", "s_nop 0", f"v_max_f32 {vr(t0)}, {vr(t0)}, {vr(t1)}",
            f"v_mov_b32 {vr(t1)}, {vr(t0)}", "s_nop 1", f"v_permlane16_swap_b32 {vr(t0)}, {vr(t1)}", "s_nop 0", f"v_max_f32 {vr(t0)}, {vr(t0)}, {vr(t1)}"]

def unit_moves(A):
    for q in range(64): A(f"v_accvgpr_mov_b32 {ar(aQ+q)}, {ar(aQ2+q)}")
    if O.fuse:
        for q in range(16 * O.est, 64): A(f"v_accvgpr_write_b32 {ar(aQ2+q)}, {vr(vS+q)}")
def first_slot(A, cls):
    D = O.D
    A.c(f"---- first slot cls={cls}")
    for o in k_reads(0, 0, dst=aVF) + k_reads(0, 1): A.op(o)
    if O.mvk:
        A(f"s_cmp_eq_u32 s{sUNIT}, 0"); A("s_cbranch_scc1 L_early" if O.oek else "s_cbranch_scc1 L_nomv")
        unit_moves(A)
        if O.oek:
            A("s_branch L_nomv"); A.label("L_early"); oproj_early(A, 16)
        A.label("L_nomv")
    mfs = qk_mf(0, zero=True, kf=aVF) + qk_mf(1)
    gaps = {g: [] for g in range(64)}; pre = {}
    bar = 8
    barrier_ops(cls, bar, pre, gaps, first=True)
    kg = dma_k(0, "KV"); vg = dma_v(3, "KV")
    gaps[bar - 2].append(kg[0])
    dm = kg[1] + (vg[1] if O.burst == 1 else [])
    for i, o in enumerate(dm):
        gaps[bar + 1 + i].append(o)
        if i == 3: gaps[bar + 1 + i].append(vg[0])
    gaps[7].append(kg[2]) if False else None
    st = []
    tA = [vO + 2 * q for q in range(4)]
    for qb in range(4):
        t0, t1 = tA[qb], tA[qb] + 1
        ch = max_chain(qb, 0, t0, t1) + xlane_max(t0, t1)
        ch += [f"v_sub_f32 {vr(NEGM(qb)+r)}, 0, {vr(t0)}" for r in range(4)]
        ch += [f"v_sub_f32 {vr(S(0,qb,0)+r)}, {vr(S(0,qb,0)+r)}, {vr(t0)}" for r in range(8)]
        st.append([ch[0], 8 * qb + 7 + 8]); st += ch[1:]
    sm = []
    for e in range(32):
        sm.append(ex(0, e))
        if e >= 2 and not (e & 1): sm.append(cv(0, (e >> 1) - 1))
        if O.vsum and e >= 2:
            if (e - 2) & 7 == 0: sm.append(f"v_add_f32 {vr(vL+((e-2)>>3))}, {vr(vS+e-2)}, {vr(vS+e-1)}")
            elif (e - 2) & 7 != 1: sm.append(ad(0, e - 2))
    sm += ["s_nop 0", cv(0, 15)]
    if O.vsum: sm += [ad(0, 30), ad(0, 31)]
    vq = v_reads(0, 0)
    for i, o in enumerate(vq): gaps[33 + i * 2 - (i // 8) * 0 if 33 + 2 * i < 64 else 63].append(o)
    post = [kg[2]] + ([vg[2]] if O.burst == 1 else [])
    if O.smf: post += [f"v_accvgpr_write_b32 {ar(aL+q)}, 0" for q in range(8)]
    nd = needs(mfs)
    nch = len(st) // 4
    m = [x[0] for x in mfs]
    def sub(d, lo, hi): return {g - lo: v for g, v in d.items() if lo <= g < hi}
    def shift(s, lo): return [[x[0], x[1] - lo] if isinstance(x, list) else x for x in s]
    segs = [(0, 32, st[:nch]), (32, 40, st[nch:2*nch]), (40, 48, st[2*nch:3*nch]), (48, 56, st[3*nch:]), (56, 64, [])]
    carry = []
    allst = st + post + sm
    pos = 0
    marks = {32: nch, 40: 2 * nch, 48: 3 * nch, 56: 4 * nch}
    bud = O.budget
    if O.fs2:
        def pair_chain(p):
            a, b = tA[2 * p], tA[2 * p + 1]
            r = [x for xy in zip(max_chain(2 * p, 0, a, a + 1), max_chain(2 * p + 1, 0, b, b + 1)) for x in xy]
            for sw in ("v_permlane32_swap_b32", "v_permlane16_swap_b32"):
                r += [f"v_mov_b32 {vr(t+1)}, {vr(t)}" for t in (a, b)] + ["s_nop 0"] + [f"{sw} {vr(t)}, {vr(t+1)}" for t in (a, b)]
                r += [f"v_max_f32 {vr(t)}, {vr(t)}, {vr(t+1)}" for t in (a, b)]
            r += [f"v_sub_f32 {vr(NEGM(2*p+k)+q)}, 0, {vr(t)}" for k, t in enumerate((a, b)) for q in range(4)]
            r[0] = [r[0], (19, 35)[p]]
            return r
        def subs(p): return [f"v_sub_f32 {vr(S(0,qb,0)+q)}, {vr(S(0,qb,0)+q)}, {vr(tA[qb])}" for qb in (2 * p, 2 * p + 1) for q in range(8)]
        c0, c1 = pair_chain(0), pair_chain(1)
        k = [i for i, o in enumerate(sm) if o == ex(0, 16)][0]
        allst = post[:5] + c0 + post[5:] + subs(0)[:8] + c1 + subs(0)[8:] + sm[:k] + subs(1) + sm[k:]
        marks = {32: 5 + len(c0), 48: len(post + c0 + c1) + 8}
        bud = O.fs2
    for g in range(64):
        if g in marks:
            while pos < marks[g]:
                o = allst[pos][0] if isinstance(allst[pos], list) else allst[pos]
                A.op(o); pos += 1
            A("s_nop 1")
        for t in pre.get(g, []): A.op(t)
        if g in nd: A.wait(ds=nd[g])
        A(m[g])
        room = bud - sum(cost(o) for o in gaps[g])
        for o in gaps[g]: A.op(o)
        while pos < len(allst) and not (O.fs2 and g < bar + 9):
            o, at = allst[pos] if isinstance(allst[pos], list) else (allst[pos], 0)
            if at > g or room <= 0 or cost(o) > room + 1: break
            A.op(o); room -= cost(o); pos += 1
    while pos < len(allst):
        A.op(allst[pos]); pos += 1
    for e in range(D):
        A(ex(1, e))
        if e >= 2 and not (e & 1): A(cv(1, (e >> 1) - 1))
    A("s_nop 0"); A(cv(1, D // 2 - 1))
    if O.vsum:
        for e in range(D): A(ad(1, e))
    A("s_nop 1")

def o_store(reg, qb, t, tag, so):
    return (f"buffer_store_dwordx4 {reg}, {vr(vOO)}, {sr(sO)}, s{so} offen offset:{t*1024}{[' sc1', ' sc1 nt', ' sc0 sc1', ' sc0 sc1 nt'][O.stfl if tag == 'ST0' or O.stfl1 else 0] if O.st_sc1 else ''}", "vm", tag)
def row_sums():
    st = []
    for sw in ("v_permlane32_swap_b32", "v_permlane16_swap_b32"):
        st += [f"v_mov_b32 {vr(vP+2*q+1)}, {vr(vL+q)}" for q in range(4)]
        st += [f"{sw} {vr(vL+q)}, {vr(vP+2*q+1)}" for q in range(4)]
        st += [f"v_add_f32 {vr(vL+q)}, {vr(vL+q)}, {vr(vP+2*q+1)}" for q in range(4)]
    st += [f"v_rcp_f32 {vr(vP+2*q)}, {vr(vL+q)}" for q in range(4)]
    if O.chk:
        st += [f"v_max3_f32 {vr(vP+1)}, {vr(vL)}, {vr(vL+1)}, {vr(vL+2)}"]
        for q in (vP + 1, vL + 3): st += [f"v_cmp_nle_f32 vcc, {vr(q)}, s{sTHR}", f"s_or_b64 s[{sM}:{sM+1}], s[{sM}:{sM+1}], vcc"]
    return st
def epi_qb(qb, store, plain=0):
    so = [f"s_add_u32 s{sT}, s{sOOF}, {qb*131072}"]
    if O.vsum:
        inv = vP + 2 * qb
        st = so + ([f"v_accvgpr_read_b32 {vr(vL+q)}, {ar(aL+q)}" for q in range(4)] if qb == 3 else [])
    else:
        inv = vP + 2 * (qb & 1)
        st = [f"v_accvgpr_read_b32 {vr(inv+1)}, {ar(LA(qb))}", f"v_rcp_f32 {vr(inv)}, {vr(inv+1)}"]
        if O.smf: st = [f"v_accvgpr_read_b32 {vr(inv+q)}, {ar(aL+2*qb+q)}" for q in range(2)] + [f"v_add_f32 {vr(inv+1)}, {vr(inv)}, {vr(inv+1)}", st[1]]
        if O.chk: st += [f"v_cmp_nle_f32 vcc, {vr(inv+1)}, s{sTHR}"]
        st += so
        if O.chk: st += [f"s_or_b64 s[{sM}:{sM+1}], s[{sM}:{sM+1}], vcc"]
    for t in range(4):
        o = OA(2 * t, qb)
        if t < plain: st += [f"v_mul_f32 {vr(o+i)}, {vr(o+i)}, {vr(inv)}" for i in range(8)]
        else: st += [f"v_pk_mul_f32 {vr(o+2*i,2)}, {vr(o+2*i,2)}, {vr(inv,2)} op_sel_hi:[1,0]" for i in range(4)]
        d = vS + (qb * 4 + t) * 4
        st += [f"v_cvt_pk_bf16_f32 {vr(d+i)}, {vr(o+2*i)}, {vr(o+2*i+1)}" for i in range(4)]
        if store: st.append(o_store(vr(d, 4), qb, t, "ST", sT))
    return st

def last_slot(A, store, extra1=(), mid=None, extra2=()):
    D = O.D
    A.c("---- last slot + final PV + epilogue")
    pvm = pv_mf(0); n = len(pvm); nq = n // 4
    gaps = {g: [] for g in range(n)}
    lu = lastuse(pvm)
    for i, o in enumerate(v_reads(3, 1)):
        g = min(n - 1, lu[o[2][1]] + 1 + (i & 1)); gaps[g].append(o)
    sm = []
    for e in range(D, 32):
        sm.append(ex(1, e))
        if e > D and not (e & 1): sm.append(cv(1, (e >> 1) - 1))
        if O.vsum and e > D: sm.append(ad(1, e - 1))
    sm += ["s_nop 0", cv(1, 15)] + ([ad(1, 31)] if O.vsum else []) + ["s_nop 1"]
    ex_ = list(extra1)
    for g in range(0, n):
        if ex_ and not gaps[g]: gaps[g] += ex_.pop(0)
    assert not ex_
    A(f"s_mov_b64 s[{sM}:{sM+1}], 0")
    interleave(A, [m[0] for m in pvm], gaps, stream=sm, need=needs(pvm), budget=O.lsb)
    if mid: mid()
    fin = pv_mf(1, qbmajor=True)
    st = row_sums() if O.vsum else []
    for qb in range(4):
        e = epi_qb(qb, qb < store, 4 if qb == 0 and O.lsb > 8 else 0)
        if qb == 0 and O.lsb > 8:
            k = [i for i, o in enumerate(e) if isinstance(o, str) and o.startswith("v_mul_f32")][0]
            st += [[e[0], 8]] + e[1:k] + [[e[k], 13]] + e[k+1:]
            continue
        k = 1 if O.vsum and qb < 3 else 0
        if qb == 3: st.append("s_nop 7")
        st += e[:k]; st.append([e[k], max(g for g, m in enumerate(fin) if m[2] == qb) + 8]); st += e[k+1:]
    gaps = {g: [] for g in range(n)}
    ex_ = list(extra2)
    for g in range(0, n):
        if ex_ and (g < 16 or g % 2 == 0): gaps[g] += ex_.pop(0)
    assert not ex_
    interleave(A, [m[0] for m in fin], gaps, stream=st, need=needs(fin, group=2), budget=O.lsb)

def fallback(A):
    A.label("L_fb")
    lane, g, i, r, ka, kb_, va, vd, t0, t1 = range(64, 74)
    run = 76
    A("s_waitcnt vmcnt(0) lgkmcnt(0)"); A("s_nop 7")
    A(f"v_mbcnt_lo_u32_b32 {vr(lane)}, -1, 0"); A(f"v_mbcnt_hi_u32_b32 {vr(lane)}, -1, {vr(lane)}")
    A(f"v_lshrrev_b32 {vr(g)}, 4, {vr(lane)}"); A(f"v_and_b32 {vr(i)}, 15, {vr(lane)}")
    A(f"v_and_b32 {vr(t0)}, 1, {vr(g)}"); A(f"v_lshlrev_b32 {vr(t0)}, 1, {vr(t0)}"); A(f"v_lshrrev_b32 {vr(t1)}, 1, {vr(g)}")
    A(f"v_or_b32 {vr(t0)}, {vr(t0)}, {vr(t1)}"); A(f"v_lshlrev_b32 {vr(t0)}, 4, {vr(t0)}")
    A(f"v_lshl_add_u32 {vr(ka)}, {vr(i)}, 8, {vr(t0)}"); A(f"v_add_u32 {vr(kb_)}, 4096, {vr(ka)}")
    A(f"v_lshlrev_b32 {vr(vd)}, 4, {vr(lane)}")
    A(f"s_lshl_b32 s{sT3}, s{sWAVE}, 13"); A(f"s_add_u32 s{sT3}, s{sT3}, {FBBASE}")
    if O.fuse: A(f"s_cmp_eq_u32 s{sUNIT}, 0"); A(f"s_cselect_b32 s{sT3}, s{sT3}, s{sWM+3}")
    A(f"v_lshrrev_b32 {vr(r)}, 2, {vr(i)}"); A(f"v_lshl_add_u32 {vr(t0)}, {vr(g)}, 2, {vr(r)}"); A(f"v_lshlrev_b32 {vr(t0)}, 8, {vr(t0)}")
    A(f"v_and_b32 {vr(t1)}, 3, {vr(i)}"); A(f"v_lshl_add_u32 {vr(t0)}, {vr(t1)}, 3, {vr(t0)}"); A(f"v_add_u32 {vr(va)}, s{sT3}, {vr(t0)}")
    def kload():
        for kb in range(2):
            for s in range(4):
                A(f"buffer_load_dwordx4 {ar(aKF+(kb*4+s)*4,4)}, {vr(kb_ if kb else ka)}, {sr(sK)}, s{sT} offen offset:{s*64}")
    for q in range(4): A(f"v_mov_b32 {vr(run+q)}, 0xff800000")
    A(f"s_lshl_b32 s{sT}, s{sUNIT}, 18"); A(f"s_add_u32 s{sT2}, s{sT}, 0x40000")
    A.label("L_fb1")
    kload(); A("s_waitcnt vmcnt(0)")
    for m in qk_mf(0, zero=True): A(m[0])
    A("s_nop 7")
    for q in range(4):
        for o in max_chain(q, 0, t0, t1, run=run + q): A(o)
    A(f"s_add_u32 s{sT}, s{sT}, 0x2000"); A(f"s_cmp_lt_u32 s{sT}, s{sT2}"); A("s_cbranch_scc1 L_fb1")
    for q in range(4):
        for o in xlane_max(run + q, t1): A(o)
        for rr in range(4): A(f"v_sub_f32 {vr(NEGM(q)+rr)}, 0, {vr(run+q)}")
    for k in range(128): A(f"v_mov_b32 {vr(vO+k)}, 0")
    for k in range(8 if O.smf else 16): A(f"v_accvgpr_write_b32 {ar(aL+k)}, 0")
    A(f"s_lshl_b32 s{sT}, s{sUNIT}, 18")
    A.label("L_fb2")
    kload()
    for hf in range(2):
        A(f"s_add_u32 m0, s{sT3}, {hf*4096}"); A(f"s_add_u32 s3, s{sT}, {hf*4096}")
        for p in range(4): A(f"buffer_load_dwordx4 {vr(vd)}, {sr(sV)}, s3 offen offset:{p*1024} lds")
    A("s_waitcnt vmcnt(0)")
    for db in range(8):
        for jh in range(2): A(f"ds_read_b64_tr_b16 {ar(aVF+db*4+2*jh,2)}, {vr(va)} offset:{db*32+jh*4096}")
    for m in qk_mf(0): A(m[0])
    A("s_nop 7")
    for e in range(32): A(ex(0, e))
    A("s_nop 0")
    for k in range(16): A(cv(0, k))
    if O.vsum:
        for e in range(32): A(ad(0, e))
    A("s_waitcnt lgkmcnt(0)"); A("s_nop 1")
    for m in pv_mf(0): A(m[0])
    A(f"s_add_u32 s{sT}, s{sT}, 0x2000"); A(f"s_cmp_lt_u32 s{sT}, s{sT2}"); A("s_cbranch_scc1 L_fb2")
    A("s_nop 7")
    if O.vsum:
        for o in row_sums(): A(o)
    for qb in range(4):
        for o in epi_qb(qb, False): A(o)
    for qb in range(4):
        if O.fuse and qb == O.est: A(f"s_cmp_eq_u32 s{sUNIT}, 0"); A("s_cbranch_scc1 L_fbret0")
        A(f"s_add_u32 s{sT}, s{sOOF}, {qb*131072}")
        for t in range(4): A(o_store(vr(vS + (qb * 4 + t) * 4, 4), qb, t, "ST", sT)[0])
    if not O.fuse or O.est == 4: A(f"s_cmp_eq_u32 s{sUNIT}, 0"); A("s_cbranch_scc1 L_fbret0")
    if O.fuse: oproj_setup(A)
    A("s_branch L_fbret1")

def srd(A, d, lo, hi, off, size):
    A(f"s_add_u32 s{d}, s{lo}, {off}"); A(f"s_addc_u32 s{d+1}, s{hi}, 0"); A(f"s_and_b32 s{d+1}, s{d+1}, 0xffff")
    A(f"s_mov_b32 s{d+2}, {size}"); A(f"s_mov_b32 s{d+3}, 0x20000")

def one_lane(A, val, text, tag):
    A(f"v_mov_b32 v0, {val}"); A("s_mov_b64 exec, 1")
    A.op((text, "vm", tag))
    A("s_mov_b64 exec, -1")
def flag_ops(val, name):
    return [f"s_cmp_lg_u32 s{sWAVE}, 0", f"s_cbranch_scc1 L_np_{name}", f"v_mov_b32 v0, {val}", "s_mov_b64 exec, 1",
            f"buffer_store_byte v0, off, {sr(sCNT)}, s{sGI} sc1", "s_mov_b64 exec, -1", f"L_np_{name}:"]
def poll_text(v=vPOLL): return f"buffer_load_dword v0, {vr(v)}, {sr(sCNT)}, 0 offen sc1"
RD1 = f"v_accvgpr_read_b32 v0, {ar(aPOLL1)}"
def poll_ops(name, own=1): return [f"s_cmp_lg_u32 s{sWAVE}, 0", f"s_cbranch_scc1 L_np_{name}"] + ([] if own else [RD1]) + [(poll_text(vPOLL if own else 0), "mark", name), f"L_np_{name}:"]
spins = []
def poll_test(A, mask, own):
    if own: A(f"v_or_b32 v0, v0, {vr(own)}")
    A(f"v_and_b32 v0, {hex(mask)}, v0"); A(f"v_cmp_ne_u32 vcc, {hex(mask)}, v0")
def poll_check(A, mask, name, own, mark):
    A(f"s_cmp_lg_u32 s{sWAVE}, 0"); A(f"s_cbranch_scc1 L_spun_{name}")
    A(f"s_waitcnt vmcnt({min(63, A.nvm - A.mark[mark])})")
    poll_test(A, mask, own); A(f"s_cbranch_vccnz L_spin_{name}")
    A.label(f"L_spun_{name}")
    spins.append((mask, name, own))
def emit_spins(A):
    for mask, name, own in spins:
        A.label(f"L_spin_{name}")
        A("s_mov_b32 s3, 0x40000")
        A.label(f"L_spinl_{name}")
        if not own: A(RD1)
        A(poll_text(vPOLL if own else 0)); A("s_waitcnt vmcnt(0)")
        poll_test(A, mask, own); A(f"s_cbranch_vccz L_spun_{name}")
        A("s_sub_u32 s3, s3, 1"); A("s_cmp_lg_u32 s3, 0"); A(f"s_cbranch_scc1 L_spinl_{name}")
        A(f"s_branch L_spun_{name}")

PIECE = [[13, 14, 15, 0], [1, 2, 8, 9], [3, 10, 4, 5], [6, 7, 11, 12]]
X_OFF = 40 << 20
aWD = 212
vOQ, vWD, vOWN, vOWX = 16, 18, 28, 29
sWB, sR13, sWM, sWT = sWQW, sXW, 92, 84
def slab_c(j): return ((j & 7) << 13) | ((j >> 3) << 12)
def slab_o(j): return slab_c(j & 1) if O.ofake else slab_c(j)
def w_dma(j, hf, early=False):
    jw = j & 1 if O.wfake else j
    r = [[f"s_add_u32 s{sT2}, s{sWT+(jw&7)}, {(jw>>3)*163840}", f"s_add_u32 m0, s{sWM+(j&3)}, {hf*4096}"]]
    for p in range(5):
        v = vWD + hf * 5 + p
        if early:
            v = vOKV
            r[-1].append(f"v_accvgpr_read_b32 {vr(v)}, {ar(aWD+hf*5+p)}")
        if p == 4: r[-1].append(f"s_add_u32 m0, s{sWM+(j&3)}, 8192")
        r.append([(f"buffer_load_dwordx4 {vr(v)}, {sr(sW)}, s{sT2} offen offset:{(p if p < 4 else hf)*1024}{['', ' sc1', ' nt', ' sc0 sc1', ' sc0'][O.wofl]} lds", "vm", ("W", j))])
    return r
OPH = [2, 3, 7, 0, 1, 4, 5, 6]
def OF(j, kk, qq): return OPH[j & 7] * 32 + (kk * 2 + qq) * 4
def wo_t(part, v, dst):
    if O.wopre != 210: return []
    return [[f"v_bfe_u32 {vr(v)}, {vr(vOO)}, 4, 6", f"v_mul_u32_u24 {vr(v)}, 80, {vr(v)}"], [(f"buffer_load_dword {dst}, {vr(v)}, {sr(sW)}, s{sTW-part} offen", "vm", "WOP")]]
def o_ld(j):
    r = [[f"s_xor_b32 s4, s{sR13}, {slab_o(j)}"]]
    for kk in range(4):
        for qq in range(2):
            r.append([(f"buffer_load_dwordx4 {ar(OF(j,kk,qq),4)}, {vr(vOQ+qq)}, {sr(sX)}, s4 offen offset:{kk*1024}{SC1()}", "vm", ("O", j))])
    r[1] = r[0] + r[1]
    return r[1:]
def o_ld_early(j):
    r = [[f"s_xor_b32 s4, s{sR13}, {slab_o(j)}", f"v_accvgpr_read_b32 {vr(vOKV)}, {ar(aOQ)}"]]
    for qq in range(2):
        for kk in range(4):
            r.append([(f"buffer_load_dwordx4 {ar(OF(j,kk,qq),4)}, {vr(vOKV)}, {sr(sX)}, s4 offen offset:{kk*1024}{SC1()}", "vm", ("O", j))])
        if qq == 0: r.append([f"v_add_u32 {vr(vOKV)}, 0x20000, {vr(vOKV)}"])
    return r
def mbox(op, reg, so, tag):
    r = [[(f"buffer_{op}_dwordx4 {reg(t)}, {vr(vOO)}, {sr(sO)}, s{so if t < 4 else sT} offen offset:{(t&3)*1024} sc1{' nt' if (tag == 'XF' and O.xffl & 1) or (tag == 'XS' and O.xffl & 2) or (tag == 'XL' and O.xffl & 4) else ''}", "vm", tag)] for t in range(5)]
    r[3].append(f"s_add_u32 s{sT}, s{so}, 4096")
    return r
def oproj_early(A, tb):
    lane, t0, t1, t2 = range(tb, tb + 4)
    A(f"s_bfe_u32 s3, s7, 0x10002"); A(f"s_lshr_b32 s4, s7, 3")
    A(f"s_lshr_b32 s{sT}, s{sGI}, 4"); A(f"s_lshl_b32 s{sT}, s{sT}, 22")
    A(f"s_lshl_b32 s{sT2}, s3, 20"); A(f"s_add_u32 s{sT}, s{sT}, s{sT2}"); A(f"s_lshl_b32 s{sT2}, s4, 16"); A(f"s_add_u32 s{sT}, s{sT}, s{sT2}")
    srd(A, sX, sWS, sWS + 1, f"s{sT}", "0xf0000")
    A(f"s_mov_b64 s[{sW}:{sW+1}], s[{sWOI}:{sWOI+1}]"); A(f"s_mov_b32 s{sW+2}, 5242880")
    A(f"s_lshl_b32 s{sT}, s4, 6"); A(f"s_add_u32 s{sT}, s{sT}, s{sWAVE}"); A(f"s_mul_i32 s{sWB}, s{sT}, 40960")
    A(f"s_and_b32 s{sT}, s7, 3"); A(f"s_mul_i32 s{sT}, s{sT}, {256 if O.walign else 320}"); A(f"s_add_u32 s{sWB}, s{sWB}, s{sT}")
    if O.own1: A(f"s_and_b32 s{sR13}, s7, 7"); A(f"s_lshl_b32 s{sR13}, s{sR13}, 13")
    else: A(f"s_mov_b32 s{sR13}, 0")
    for j in range(8):
        A(f"s_xor_b32 s{sT}, s{sR13}, {slab_c(j)}"); A(f"s_mul_i32 s{sT}, s{sT}, 40"); A(f"s_add_u32 s{sWT+j}, s{sT}, s{sWB}")
    A(f"s_lshl_b32 s{sT}, s{sWAVE}, 2")
    for sl in range(4):
        A(f"s_lshr_b32 s{sT2}, {hex(sum(PIECE[sl][w] << (4 * w) for w in range(4)))}, s{sT}"); A(f"s_and_b32 s{sT2}, s{sT2}, 15")
        A(f"s_mul_i32 s{sWM+sl}, s{sT2}, 10240")
    A(f"v_bfe_u32 {vr(lane)}, {vr(vOO)}, 4, 6")
    A(f"s_and_b32 s3, s7, 1"); A(f"s_xor_b32 s4, s4, 1")
    A(f"v_lshrrev_b32 {vr(t0)}, 3, {vr(lane)}"); A(f"v_mul_u32_u24 {vr(t0)}, 1280, {vr(t0)}")
    A(f"v_lshrrev_b32 {vr(t1)}, 3, {vr(lane)}"); A(f"v_and_b32 {vr(t1)}, 6, {vr(t1)}"); A(f"v_and_b32 {vr(t2)}, 7, {vr(lane)}"); A(f"v_xor_b32 {vr(t1)}, {vr(t1)}, {vr(t2)}")
    A(f"v_lshl_add_u32 {vr(t0)}, {vr(t1)}, 4, {vr(t0)}")
    for h in range(2):
        A(f"s_xor_b32 s{sT}, s4, {h}"); A(f"s_lshl_b32 s{sT}, s{sT}, 1"); A(f"s_add_u32 s{sT}, s{sT}, s3"); A(f"s_lshl_b32 s{sT}, s{sT}, 6")
        for rb in range(4):
            A(f"v_add_u32 {vr(t1)}, s{sT}, {vr(t0)}"); A(f"v_accvgpr_write_b32 {ar(aWD+h*5+rb)}, {vr(t1)}")
            if rb < 3: A(f"s_add_u32 s{sT}, s{sT}, 9216")
    A(f"v_lshrrev_b32 {vr(t0)}, 2, {vr(lane)}"); A(f"v_mul_u32_u24 {vr(t0)}, 1280, {vr(t0)}")
    A(f"v_bfe_u32 {vr(t1)}, {vr(lane)}, 4, 1"); A(f"v_xor_b32 {vr(t1)}, s4, {vr(t1)}"); A(f"v_lshlrev_b32 {vr(t1)}, 1, {vr(t1)}")
    A(f"v_and_b32 {vr(t2)}, 3, {vr(lane)}"); A(f"v_xor_b32 {vr(t1)}, {vr(t1)}, {vr(t2)}"); A(f"v_lshl_add_u32 {vr(t0)}, {vr(t1)}, 4, {vr(t0)}")
    A(f"s_xor_b32 s3, s3, 1"); A(f"s_lshl_b32 s3, s3, 8"); A(f"v_add_u32 {vr(t0)}, s3, {vr(t0)}"); A(f"v_add_u32 {vr(t1)}, {20480-1024}, {vr(t0)}")
    A(f"v_accvgpr_write_b32 {ar(aWD+4)}, {vr(t0)}"); A(f"v_accvgpr_write_b32 {ar(aWD+9)}, {vr(t1)}")
    if O.wopre in (200, 250):
        A(f"s_and_b32 s{sT}, s{sGI}, 127"); A(f"s_mul_i32 s{sT}, s{sT}, 10240"); A(f"s_mul_i32 s{sTW}, s{sWAVE}, {1310720 - 524288}"); A(f"s_add_u32 s{sTW}, s{sTW}, s{sT}")
        A(f"s_add_u32 s{sTW-1}, s{sTW}, 9216")
    if O.wopre == 210:
        A(f"s_and_b32 s{sT}, s{sGI}, 127"); A(f"s_lshl_b32 s{sT}, s{sT}, 2"); A(f"s_add_u32 s{sT}, s{sT}, s{sWAVE}")
        A(f"s_lshr_b32 s{sTW}, s{sT}, 5"); A(f"s_mul_i32 s{sTW}, s{sTW}, 327680"); A(f"s_and_b32 s{sT}, s{sT}, 31"); A(f"s_mul_i32 s{sT}, s{sT}, 5120")
        A(f"s_add_u32 s{sTW}, s{sTW}, s{sT}"); A(f"s_add_u32 s{sTW-1}, s{sTW}, 163840")
    A(f"s_and_b32 s{sT}, s{sGI}, 0xf0"); A(f"v_and_b32 {vr(t0)}, 3, {vr(lane)}"); A(f"v_lshlrev_b32 {vr(t0)}, 2, {vr(t0)}"); A(f"v_add_u32 {vr(t0)}, s{sT}, {vr(t0)}")
    A(f"v_accvgpr_write_b32 {ar(aPOLL)}, {vr(t0)}")
    if O.eo:
        A(f"s_and_b32 s{sT}, s{sGI}, 0xf8"); A(f"v_and_or_b32 {vr(t0)}, {vr(t0)}, 4, s{sT}"); A(f"v_accvgpr_write_b32 {ar(aPOLL1)}, {vr(t0)}")
        A(f"s_lshl_b32 s{sT}, s{sWAVE}, 18"); A(f"v_lshl_add_u32 {vr(t0)}, {vr(lane)}, 4, s{sT}"); A(f"v_accvgpr_write_b32 {ar(aOQ)}, {vr(t0)}")
    if O.smf:
        A(f"v_lshrrev_b32 {vr(t0)}, 4, {vr(lane)}"); A(f"v_xor_b32 {vr(t0)}, {vr(t0)}, {vr(lane)}"); A(f"v_bfe_i32 {vr(t0)}, {vr(t0)}, 1, 1")
        A(f"v_bfi_b32 {vr(t0)}, {vr(t0)}, 0, s{sT3}")
        for q in range(4): A(f"v_accvgpr_write_b32 {ar(aONE+q)}, {vr(t0)}")
        A(f"v_bfe_i32 {vr(t0)}, {vr(lane)}, 0, 1"); A(f"v_and_b32 {vr(t0)}, 0xaaaaaaaa, {vr(t0)}"); A(f"v_or_b32 {vr(vIDX)}, 0x44444444, {vr(t0)}")
def oproj_setup(A):
    vTMP = vPOLL
    A(f"v_accvgpr_read_b32 {vr(vPOLL)}, {ar(aPOLL)}")
    A(f"s_lshl_b32 s{sT}, s{sWAVE}, 18"); A(f"v_and_b32 {vr(vOQ)}, 0x3ff, {vr(vOO)}")
    A(f"v_add_u32 {vr(vOQ)}, s{sT}, {vr(vOQ)}"); A(f"v_add_u32 {vr(vOQ+1)}, 0x20000, {vr(vOQ)}")
    for p in range(10): A(f"v_accvgpr_read_b32 {vr(vWD+p)}, {ar(aWD+p)}")
    A(f"s_and_b32 s{sT}, s{sGI}, 0xfc"); A(f"s_and_b32 s3, s{sGI}, 3"); A(f"s_lshl_b32 s3, s3, 3"); A(f"s_lshl_b32 s3, 0xff, s3")
    A(f"v_cmp_eq_u32 vcc, s{sT}, {vr(vTMP)}"); A(f"v_mov_b32 {vr(vOWN)}, s3"); A(f"s_xor_b32 s{sT}, s{sT}, 8"); A(f"v_cndmask_b32 {vr(vOWN)}, 0, {vr(vOWN)}, vcc")
    A(f"v_cmp_eq_u32 vcc, s{sT}, {vr(vTMP)}"); A(f"s_not_b32 s3, s3"); A(f"v_mov_b32 {vr(vOWX)}, s3"); A(f"v_cndmask_b32 {vr(vOWX)}, -1, {vr(vOWX)}, vcc")
    A(f"v_xor_b32 {vr(31)}, s{sGI}, {vr(vTMP)}"); A(f"v_bfe_i32 {vr(31)}, {vr(31)}, 3, 1")
    A(f"v_and_or_b32 {vr(vOWX)}, {vr(vOWX)}, {vr(31)}, {vr(vOWN)}"); A(f"v_or_b32 {vr(vOWN)}, {vr(vOWN)}, {vr(31)}")

def oproj(A):
    vWR = 200
    vACC, vWF = 40, 120
    def ACC(h, qq, nb): return vACC + h * 40 + (qq * 5 + nb) * 4
    def WF(par, f): return vWF + par * 40 + f * 4
    A.c("---- O projection")
    lane, t0, t1 = 38, 39, 37
    A(f"v_bfe_u32 {vr(lane)}, {vr(vOO)}, 4, 6"); A(f"v_lshrrev_b32 {vr(t0)}, 5, {vr(lane)}"); A(f"v_lshlrev_b32 {vr(t0)}, 10, {vr(t0)}")
    A(f"v_bfe_u32 {vr(t1)}, {vr(lane)}, 2, 3"); A(f"v_lshl_add_u32 {vr(t0)}, {vr(t1)}, 7, {vr(t0)}")
    A(f"v_and_b32 {vr(t1)}, 3, {vr(lane)}"); A(f"v_lshl_add_u32 {vr(t0)}, {vr(t1)}, 3, {vr(t0)}")
    A(f"v_bfe_u32 {vr(t1)}, {vr(lane)}, 3, 2"); A(f"v_lshl_add_u32 {vr(vWR)}, {vr(t1)}, 5, {vr(t0)}")
    for nb in range(1, 4): A(f"v_xor_b32 {vr(vWR+3*nb)}, {nb*32}, {vr(vWR)}")
    A(f"v_lshrrev_b32 {vr(t0)}, 2, {vr(lane)}"); A(f"v_lshlrev_b32 {vr(t0)}, 6, {vr(t0)}"); A(f"v_and_b32 {vr(t1)}, 3, {vr(lane)}"); A(f"v_lshl_add_u32 {vr(t0)}, {vr(t1)}, 3, {vr(t0)}")
    A(f"v_bfe_u32 {vr(t1)}, {vr(lane)}, 4, 1"); A(f"v_lshl_add_u32 {vr(vWR+12)}, {vr(t1)}, 5, {vr(t0)}"); A(f"v_xor_b32 {vr(vWR+15)}, 32, {vr(vWR+12)}")
    for q in range(6):
        for w in (2, 1): A(f"v_add_u32 {vr(vWR+3*q+w)}, {51200*w}, {vr(vWR+3*q)}")
    nd_ = O.ndef; nf = 16 - nd_
    steps = [(j, kk, (0, 1)) for j in range(nf) for kk in range(4)] + [(j, kk, (h,)) for h in range(2) for j in range(nf, 16) for kk in range(4)]
    def w_rd(i):
        j, kk, hs = steps[i]
        pc = PIECE[j & 3][kk]; w = min(pc // 5, 2)
        return [(f"ds_read_b64_tr_b16 {vr(WF(i&1,f*5+nb)+2*jh,2)}, {vr(vWR+3*(nb if nb < 4 else 4+h)+w)} offset:{pc*10240-w*51200+(h*4096+jh*2048 if nb < 4 else 8192+jh*1024)}", "ds", ("WF", i & 1, f * 5 + nb))
                for f, h in enumerate(hs) for nb in range(5) for jh in range(2) if not (O.lfake and f == 1)]
    for ops in o_ld(3):
        for o in ops: A.op(o)
    A.wait(vm=[("W", 0), ("O", 0)]); A("s_barrier")
    for o in w_rd(0): A.op(o)
    mf = []; need = {}; gaps = {}; pre = {}; start = []; bars = {}
    for i, (j, kk, hs) in enumerate(steps):
        start.append(len(mf))
        for f, h in enumerate(hs):
            for nb in range(5):
                if nb in (0, 2): need[len(mf)] = [("WF", i & 1, f * 5 + q) for q in ((0, 1) if nb == 0 else (2, 3, 4))]
                for qq in ((1, 0) if (f + nb) & 1 and O.snake & 8 else (0, 1)):
                    c = "0" if (j == 0 and kk == 0) else vr(ACC(h, qq, nb), 4)
                    mf.append(f"{MF} {vr(ACC(h,qq,nb),4)}, {vr(WF(i&1,f*5+nb),4)}, {ar(OF(j,kk,qq),4)}, {c}")
    n = len(mf); start.append(n)
    gaps = {g: [] for g in range(n)}
    iB = len(steps) - 4 * nd_; gB = start[iB]
    for i, (j, kk, hs) in enumerate(steps):
        g0 = start[i]; ln = start[i + 1] - g0; lo = 0
        if kk == 3 and i < iB and j + 1 < 16:
            lo = O.obar if ln == 20 else 2
            bars[j] = g0 + lo
            p = [("", "wait", dict(vm=[("W", j + 1), ("O", j + 1)] + (["ST"] if j == O.pub2 else []), dsn=0 if j + 4 < 16 else None))]
            if j == 4: p.append(("", "call", lambda A_: poll_check(A_, 0x03030303, "u2", vOWN, "p2")))
            p.append("s_barrier")
            if j == O.pub2: p += flag_ops(3, "f2")
            if j == 3: p += poll_ops("p2")
            pre[g0 + lo] = p
        if i + 1 < len(steps):
            rd = w_rd(i + 1); np_ = len(rd) // 2
            stp = 2 if lo + 2 * np_ <= ln + 1 else 1.5
            if O.lfake and ln == 20:
                for q in range(len(rd)): gaps[g0 + lo + int(q * (2 if lo == 0 else 1.5))] += rd[q:q + 1]
            else:
                for q in range(np_): gaps[g0 + lo + int(q * stp)] += rd[2 * q:2 * q + 2]
    def spread(mem, g, sp, dense=False, dry=False):
        for ops in mem:
            while gaps[g] or g + 1 in pre or (g + 1 in need and not dense): g += 1
            if not dry: gaps[g] += ops
            g += sp if any(is_vm(o) for o in ops) else 1
        return g
    spread(w_dma(3, 0) + w_dma(3, 1), 1, 2)
    for j in range(12):
        mem = w_dma(j + 4, 0) + ([] if O.whalf else w_dma(j + 4, 1)) + o_ld(j + 4) + (wo_t(1, 31, vr(31)) if j == O.wo1 else [])
        sp = max([2] + [q for q in range(2, O.osp + 1) if spread(mem, bars[j], q, dry=True) <= bars[j + 1]])
        dn = spread(mem, bars[j], sp, dry=True) > bars[j + 1]
        assert spread(mem, bars[j], sp, dn) <= bars[j + 1], j
    vXS, vXR = 220, vACC
    xs = []
    st = mbox("store", lambda t: vr(vXS + 4 * t, 4), sXO, "XS")
    for t in (0, 2, 3, 1, 4):
        xs += [[f"v_cvt_pk_bf16_f32 {vr(vXS+4*t+q)}, {vr(vACC+8*t+2*q)}, {vr(vACC+8*t+2*q+1)}" for q in range(2 * u, 2 * u + 2)] for u in range(2)]
        if t == 4: xs.append([st[3][1]])
        xs.append(st[t][:1])
    e = spread(xs, gB + 1, 1, True)
    xl = mbox("load", lambda t: vr(vXR + 4 * t, 4), sXI, "XL")
    assert e < n - O.xld
    spread(xl, n - O.xld, 1, True)
    for j in (4, 9): pre[start[4 * j]] = pre.get(start[4 * j], []) + [("", "call", lambda A_, j=j: stamp(A_, f"slab{j}", 2))]
    for j in (1, 4, 6, 12): pre[start[4 * j]] = pre.get(start[4 * j], []) + [("", "call", lambda A_, j=j: stamp(A_, f"slab{j}", 6))]
    pre[gB] = pre.get(gB, []) + [("", "call", lambda A_: stamp(A_, "phaseB", 5))]
    interleave(A, mf, gaps, pre=pre, need=need)
    stamp(A, "oproj loop done"); stamp(A, "oloop", 5); stamp(A, "oloop", 6)
    A(f"v_and_b32 {vr(t0)}, 15, {vr(lane)}"); A(f"v_mul_u32_u24 {vr(t0)}, 2560, {vr(t0)}"); A(f"v_lshrrev_b32 {vr(t1)}, 4, {vr(lane)}")
    A(f"s_mul_i32 s{sT}, s{sWAVE}, {32*2560}"); A(f"s_and_b32 s3, s7, 1"); A(f"s_lshr_b32 s4, s7, 3")
    A(f"s_lshl_b32 s{sT2}, s4, 1"); A(f"s_add_u32 s{sT2}, s{sT2}, s3"); A(f"s_lshl_b32 s{sT2}, s{sT2}, 6"); A(f"s_add_u32 s{sT2}, s{sT2}, s{sT}")
    A(f"s_xor_b32 s3, s3, 1"); A(f"s_lshl_b32 s3, s3, 3"); A(f"s_add_u32 s3, s3, s4"); A(f"s_lshl_b32 s3, s3, 5"); A(f"s_add_u32 s3, s3, s{sT}")
    A(f"v_lshl_add_u32 {vr(vOQ+1)}, {vr(t1)}, 3, {vr(t0)}"); A(f"v_add_u32 {vr(vOQ+1)}, s3, {vr(vOQ+1)}")
    A(f"v_bfe_u32 {vr(t1)}, {vr(lane)}, 4, 1"); A(f"v_lshl_add_u32 {vr(t0)}, {vr(t1)}, 5, {vr(t0)}")
    A(f"v_lshrrev_b32 {vr(t1)}, 5, {vr(lane)}"); A(f"v_lshl_add_u32 {vr(vOQ)}, {vr(t1)}, 4, {vr(t0)}"); A(f"v_add_u32 {vr(vOQ)}, s{sT2}, {vr(vOQ)}")
    def xtest():
        A(f"v_max3_u32 {vr(t0)}, {vr(vXR)}, {vr(vXR+1)}, {vr(vXR+2)}"); A(f"v_max3_u32 {vr(t1)}, {vr(vXR+3)}, {vr(vXR+4)}, {vr(vXR+5)}")
        for q in range(6, 20, 2): A(f"v_max3_u32 {vr(t0 if q & 2 else t1)}, {vr(t0 if q & 2 else t1)}, {vr(vXR+q)}, {vr(vXR+q+1)}")
        A(f"v_max_u32 {vr(t0)}, {vr(t0)}, {vr(t1)}"); A(f"v_cmp_eq_u32 vcc, -1, {vr(t0)}")
    A("s_mov_b32 s4, 0x40000")
    A.label("L_xpoll")
    A("s_waitcnt vmcnt(0)"); A.vm = []
    xtest(); A("s_cbranch_vccz L_xdone")
    for ops in xl:
        for o in ops: A(o if isinstance(o, str) else o[0])
    A("s_sub_u32 s4, s4, 1"); A("s_cmp_lg_u32 s4, 0"); A("s_cbranch_scc1 L_xpoll")
    A("s_waitcnt vmcnt(0)")
    A.label("L_xdone")
    stamp(A, "xflag", 5)
    A(f"s_mov_b32 s{sT}, {16*2560}"); A("s_movk_i32 s3, 0x3f80"); A("s_mov_b32 s4, 0x3f800000")
    for qq in range(2):
        d = vWF + qq * 10; ac = ACC(1, qq, 0)
        for i in range(20): A(f"v_dot2_f32_bf16 {vr(ac+i)}, {vr(vXR+qq*10+i//2)}, s{3+(i&1)}, {vr(ac+i)}")
        for i in range(10): A(f"v_cvt_pk_bf16_f32 {vr(d+i)}, {vr(ac+2*i)}, {vr(ac+2*i+1)}")
        so = f"s{sT}" if qq else "0"
        A("s_nop 0")
        for P_ in range(2):
            for q in range(2): A(f"v_permlane16_swap_b32 {vr(d+4*P_+q)}, {vr(d+4*P_+2+q)}")
        A.op((f"buffer_store_dwordx2 {vr(d+8,2)}, {vr(vOQ+1)}, {sr(sOUT)}, {so} offen{OFL()}", "vm", "OUT"))
        A.op((f"buffer_store_dwordx4 {vr(d,4)}, {vr(vOQ)}, {sr(sOUT)}, {so} offen{OFL()}", "vm", "OUT"))
        A.op((f"buffer_store_dwordx4 {vr(d+4,4)}, {vr(vOQ)}, {sr(sOUT)}, {so} offen offset:64{OFL()}", "vm", "OUT"))

def gen_kernel(k):
    A = Asm()
    A("s_cmp_ge_u32 s2, 256"); A("s_cbranch_scc1 L_end")
    stamp(A, "t0")
    if O.cpre:
        A("s_getpc_b64 s[84:85]"); A("s_and_b32 s84, s84, 0xffffff00"); A("s_and_b32 s85, s85, 0xffff")
        A("s_mov_b32 s86, L_codeend-attn_kernel"); A("s_mov_b32 s87, 0x20000")
        A("s_lshr_b32 s3, s2, 3"); A(f"s_lshl_b32 s3, s3, {13 if O.u0 else 12}"); A(f"v_lshlrev_b32 v4, {5 if O.u0 else 4}, v0")
        A.op(("buffer_load_dwordx4 v[252:255], v4, s[84:87], s3 offen", "vm", "CODE"))
        A("s_nop 4")
    A("s_load_dwordx16 s[64:79], s[0:1], 0")
    A("s_load_dwordx8 s[80:87], s[0:1], 64")
    A(f"s_load_dwordx2 s[{sWS}:{sWS+1}], s[0:1], 96")
    A("s_and_b32 s3, s2, 7"); A("s_lshr_b32 s4, s2, 3"); A("s_lshr_b32 s5, s3, 2")
    if O.map2:
        A("s_bfe_u32 s6, s3, 0x10001"); A("s_lshl_b32 s6, s6, 2"); A("s_lshr_b32 s7, s4, 3"); A("s_add_u32 s6, s6, s7")
        A("s_and_b32 s7, s3, 1"); A("s_lshl_b32 s7, s7, 3"); A("s_and_b32 s4, s4, 7"); A("s_add_u32 s7, s7, s4")
    else:
        A("s_and_b32 s6, s3, 3"); A("s_lshl_b32 s6, s6, 1"); A("s_lshr_b32 s7, s4, 4"); A("s_add_u32 s6, s6, s7")
        A("s_and_b32 s7, s4, 15")
    vAW, vOW, vOX, vAX = 16, 24, 28, 36
    lane, g, i, r, t0, t1, t2, t3, h = range(48, 57)
    A(f"v_lshrrev_b32 {vr(t0)}, 6, v0"); A(f"v_and_b32 {vr(lane)}, 63, v0"); A(f"v_readfirstlane_b32 s{sWAVE}, {vr(t0)}")
    A(f"v_lshrrev_b32 {vr(g)}, 4, {vr(lane)}"); A(f"v_and_b32 {vr(i)}, 15, {vr(lane)}"); A(f"v_lshrrev_b32 {vr(h)}, 5, {vr(lane)}")
    A(f"s_and_b32 s{sT2}, s{sWAVE}, 1"); A(f"s_lshl_b32 s{sT2}, s{sT2}, 3")
    A(f"s_lshl_b32 s{sT}, s{sWAVE}, 16")
    A(f"v_and_b32 {vr(t2)}, 31, {vr(lane)}"); A(f"v_xor_b32 {vr(t2)}, s{sT2}, {vr(t2)}")
    for p in range(2):
        A(f"v_add_u32 {vr(t0)}, {2*p}, {vr(h)}"); A(f"v_lshlrev_b32 {vr(t1)}, 1, {vr(t0)}"); A(f"v_xor_b32 {vr(t1)}, {vr(t1)}, {vr(t2)}")
        A(f"v_lshlrev_b32 {vr(t1)}, 4, {vr(t1)}"); A(f"v_lshl_add_u32 {vr(t1)}, {vr(t0)}, 13, {vr(t1)}")
        A(f"v_add_u32 {vr(vOW+p)}, s{sT}, {vr(t1)}")
        if p: A(f"v_subrev_u32 {vr(vOW+p)}, 1024, {vr(vOW+p)}")
        A(f"v_add_u32 {vr(vOW+p+2)}, {4*8192-2048}, {vr(vOW+p)}")
    A(f"s_mul_i32 s{sT}, s{sWAVE}, {64*1280}")
    A(f"v_lshrrev_b32 {vr(t0)}, 3, {vr(lane)}"); A(f"v_mul_u32_u24 {vr(t0)}, 1280, {vr(t0)}"); A(f"v_add_u32 {vr(t0)}, s{sT}, {vr(t0)}")
    A(f"v_and_b32 {vr(t1)}, 7, {vr(lane)}"); A(f"v_xor_b32 {vr(t1)}, {vr(t1)}, {vr(g)}")
    A(f"v_lshl_add_u32 {vr(vOX)}, {vr(t1)}, 4, {vr(t0)}"); A(f"v_xor_b32 {vr(t1)}, 4, {vr(t1)}"); A(f"v_lshl_add_u32 {vr(t0)}, {vr(t1)}, 4, {vr(t0)}")
    A(f"v_add_u32 {vr(vOX+1)}, {10240-1024}, {vr(t0)}")
    for p in range(2, 8): A(f"v_add_u32 {vr(vOX+p)}, {(p&~1)*10240 - ((p&3)&~1)*1024}, {vr(vOX+(p&1))}")
    A(f"s_lshl_b32 s{sKVW}, s{sWAVE}, 12"); A(f"s_add_u32 s{sVVW}, s{sKVW}, {VBASE}"); A(f"s_add_u32 s{sWQW}, s{sKVW}, {WQBASE}")
    A(f"s_lshl_b32 s{sXW}, s{sWAVE}, 13")
    A(f"s_lshl_b32 s4, s6, 4"); A(f"s_add_u32 s4, s4, s7")
    A(f"s_lshl_b32 s{sT}, s7, 9"); A(f"s_sub_u32 s{sW+2}, {640*8192}, s{sT}"); A(f"s_mov_b32 s{sW+3}, 0x20000")
    A(f"s_mul_i32 s{sT3}, s6, 327680"); A(f"s_mov_b32 s{sX+2}, 327680"); A(f"s_mov_b32 s{sX+3}, 0x20000")
    A("s_cmp_eq_u32 s5, 1")
    A("s_waitcnt lgkmcnt(0)")
    if O.stamps and O.stm == 1: A("s_memtime s[50:51]"); A("s_memrealtime s[98:99]"); nstamp[0] += 1; stamp_names.append("karg")
    for q in (3, 0, 1, 2, 4): A(f"s_cselect_b64 s[{64+2*q}:{65+2*q}], s[{74+2*q}:{75+2*q}], s[{64+2*q}:{65+2*q}]")
    A(f"s_add_u32 s{sW}, s70, s{sT}"); A(f"s_addc_u32 s{sW+1}, s71, 0"); A(f"s_and_b32 s{sW+1}, s{sW+1}, 0xffff")
    A(f"s_add_u32 s{sX}, s64, s{sT3}"); A(f"s_addc_u32 s{sX+1}, s65, 0"); A(f"s_and_b32 s{sX+1}, s{sX+1}, 0xffff")
    def AF(buf, nb): return buf * 64 + nb * 4
    def XR(G, ks, qb): return 128 + (G & 1) * 32 + (ks * 4 + qb) * 4
    def ACC(nb, qb): return vr(48 + (nb * 4 + qb) * 4, 4) if nb < 13 else ar(208 + ((nb - 13) * 4 + qb) * 4, 4)
    def wq_dma(kk):
        return [[f"s_add_u32 m0, s{sWQW}, {(kk&3)*16384}", f"s_mov_b32 s{sT2}, {kk*262144}"]] + \
               [[(f"buffer_load_dwordx4 {vr(vOW+p)}, {sr(sW)}, s{sT2} offen offset:{p*1024}{' nt' if O.w_nt else ''} lds", "vm", ("W", kk))] for p in range(4)]
    def x_dma(G):
        r = [[f"s_add_u32 m0, s{sXW}, {XB[G&1]}", f"s_movk_i32 s{sT2}, {G*128}"]]
        r += [[(f"buffer_load_dwordx4 {vr(vOX+p)}, {sr(sX)}, s{sT2} offen offset:{(p&3)*1024}{' nt' if O.x_nt else ''} lds", "vm", ("X", G))] for p in range(8)]
        r[4].append(f"s_add_u32 m0, s{sXW}, {XB[G&1]+4096}")
        return r
    def flat(groups):
        for grp in groups:
            for ops in grp:
                for o in ops: A.op(o)
    flat([[wq_dma(0), x_dma(0), wq_dma(1), x_dma(1)], [wq_dma(0), x_dma(0), wq_dma(1), wq_dma(2), x_dma(1)], [wq_dma(0), x_dma(0), wq_dma(1), wq_dma(2), x_dma(1), wq_dma(3)], [wq_dma(0), x_dma(0), wq_dma(1)], [wq_dma(0), x_dma(0), wq_dma(1), wq_dma(2)]][O.wup])
    def kv_groups(kind, tile):
        su, pcs, po = dma_k(tile, (kind, tile)) if kind == "K" else dma_v(tile, (kind, tile))
        return [[su]] + [[p] for p in pcs[:3]] + [[pcs[3], po]]
    A(f"s_mov_b32 s{sWOI}, s72"); A(f"s_and_b32 s{sWOI+1}, s73, 0xffff")
    A(f"s_lshl_b32 s{sT}, s4, 19")
    srd(A, sK, 66, 67, f"s{sT}", "0x80000")
    srd(A, sV, 68, 69, f"s{sT}", "0x80000")
    A(f"s_lshl_b32 s{sGI}, s5, 3"); A(f"s_add_u32 s{sGI}, s{sGI}, s6"); A(f"s_lshl_b32 s{sT2}, s{sGI}, 22")
    srd(A, sO, sWS, sWS + 1, f"s{sT2}", 0x200000 + 16 * 20480)
    A(f"s_lshl_b32 s{sT}, s6, 1"); A(f"s_bfe_u32 s{sT2}, s7, 0x10002"); A(f"s_add_u32 s{sT}, s{sT}, s{sT2}"); A(f"s_mul_i32 s{sT}, s{sT}, {128*2560}")
    A(f"s_mul_i32 s{sT2}, s5, 1280"); A(f"s_add_u32 s{sT}, s{sT}, s{sT2}"); A(f"s_and_b32 s{sT2}, s7, 3"); A(f"s_mul_i32 s{sT2}, s{sT2}, 320")
    A(f"s_add_u32 s{sT}, s{sT}, s{sT2}")
    if O.stamps and O.stm == 1: A("s_waitcnt lgkmcnt(0)"); A("s_mov_b32 s66, s98"); A("s_mov_b32 s67, s99")
    srd(A, sOUT, 84, 85, f"s{sT}", 127 * 2560 + 320)
    srd(A, sCNT, 86, 87, 0, 256)
    A(f"s_lshl_b32 s{sGI}, s{sGI}, 4"); A(f"s_add_u32 s{sGI}, s{sGI}, s7")
    A(f"s_lshl_b32 s{sOOF}, s7, 13")
    A(f"s_mov_b32 s{sKOFF}, 0"); A(f"s_mov_b32 s{sVOFF}, 0"); A(f"s_mov_b32 s{sSTUB}, 99")
    A(f"s_mov_b32 s{sTHR}, {hex(f32bits(2.0**O.thr_log2 if not O.forcefb else -1.0))}")
    A(f"s_mov_b32 s{sSC}, {hex(f32bits(128**-0.5*math.log2(math.e)))}"); A(f"s_mov_b32 s{sSC+1}, s{sSC}")
    A(f"v_lshrrev_b32 {vr(r)}, 2, {vr(i)}")
    A(f"v_and_b32 {vr(t0)}, 1, {vr(g)}"); A(f"v_lshl_add_u32 {vr(t0)}, {vr(t0)}, 2, {vr(r)}")
    A(f"v_lshl_add_u32 {vr(t1)}, {vr(g)}, 3, {vr(r)}"); A(f"v_lshlrev_b32 {vr(t1)}, 9, {vr(t1)}")
    A(f"v_and_b32 {vr(t2)}, 3, {vr(i)}"); A(f"v_lshl_add_u32 {vr(t1)}, {vr(t2)}, 3, {vr(t1)}"); A(f"v_add_u32 {vr(t1)}, {WQBASE}, {vr(t1)}")
    for n3 in range(8):
        A(f"v_xor_b32 {vr(t3)}, {n3}, {vr(t0)}"); A(f"v_lshl_add_u32 {vr(vAW+n3)}, {vr(t3)}, 5, {vr(t1)}")
    A(f"v_lshrrev_b32 {vr(t0)}, 1, {vr(i)}"); A(f"v_xor_b32 {vr(t0)}, {vr(t0)}, {vr(g)}")
    A(f"v_lshlrev_b32 {vr(t1)}, 7, {vr(i)}"); A(f"v_add_u32 {vr(t1)}, s{sXW}, {vr(t1)}")
    A(f"v_lshl_add_u32 {vr(vAX)}, {vr(t0)}, 4, {vr(t1)}"); A(f"v_xor_b32 {vr(vAX+1)}, 64, {vr(vAX)}")
    A(f"v_lshl_add_u32 {vr(t1)}, {vr(r)}, 4, {vr(t2)}"); A(f"v_lshlrev_b32 {vr(t1)}, 8, {vr(t1)}")
    A(f"v_and_b32 {vr(t0)}, 1, {vr(r)}"); A(f"v_lshlrev_b32 {vr(t0)}, 3, {vr(t0)}"); A(f"v_lshl_add_u32 {vr(t0)}, {vr(t2)}, 1, {vr(t0)}")
    A(f"v_lshrrev_b32 {vr(t3)}, 3, {vr(i)}"); A(f"v_add_u32 {vr(t0)}, {vr(t0)}, {vr(t3)}")
    A(f"v_and_b32 {vr(t3)}, 1, {vr(g)}"); A(f"v_lshl_add_u32 {vr(t3)}, {vr(t3)}, 1, {vr(h)}"); A(f"v_xor_b32 {vr(t0)}, {vr(t0)}, {vr(t3)}")
    A(f"v_lshl_add_u32 {vr(vAK)}, {vr(t0)}, 4, {vr(t1)}")
    for s in range(1, 4): A(f"v_xor_b32 {vr(vAK+s)}, {s*64}, {vr(vAK)}")
    A(f"v_lshl_add_u32 {vr(t1)}, {vr(g)}, 4, {vr(r)}"); A(f"v_lshlrev_b32 {vr(t1)}, 8, {vr(t1)}")
    A(f"v_and_b32 {vr(t0)}, 1, {vr(i)}"); A(f"v_lshl_add_u32 {vr(t1)}, {vr(t0)}, 3, {vr(t1)}"); A(f"v_add_u32 {vr(t1)}, {VBASE}, {vr(t1)}")
    A(f"v_and_b32 {vr(t0)}, 1, {vr(g)}"); A(f"v_lshlrev_b32 {vr(t0)}, 3, {vr(t0)}"); A(f"v_lshl_add_u32 {vr(t0)}, {vr(r)}, 1, {vr(t0)}")
    A(f"v_add_u32 {vr(t0)}, {vr(t0)}, {vr(h)}"); A(f"v_bfe_u32 {vr(t3)}, {vr(i)}, 1, 1"); A(f"v_xor_b32 {vr(t0)}, {vr(t0)}, {vr(t3)}")
    A(f"v_lshl_add_u32 {vr(vAV)}, {vr(t0)}, 4, {vr(t1)}")
    for db in range(1, 8): A(f"v_xor_b32 {vr(vAV+db)}, {db*32}, {vr(vAV)}")
    A(f"s_and_b32 s{sT}, s{sWAVE}, 1"); A(f"s_lshl_b32 s{sT}, s{sT}, 3"); A(f"s_lshr_b32 s{sT2}, s{sWAVE}, 1"); A(f"s_add_u32 s{sT}, s{sT}, s{sT2}")
    A(f"v_lshlrev_b32 {vr(t0)}, 1, {vr(g)}"); A(f"v_add_u32 {vr(t0)}, s{sT}, {vr(t0)}"); A(f"v_xor_b32 {vr(t0)}, {vr(t0)}, {vr(i)}")
    A(f"v_lshlrev_b32 {vr(t0)}, 4, {vr(t0)}"); A(f"v_lshl_add_u32 {vr(t0)}, {vr(g)}, 8, {vr(t0)}"); A(f"s_lshl_b32 s{sT}, s{sWAVE}, {16 if O.kperm else 12}"); A(f"v_add_u32 {vr(vOKV)}, s{sT}, {vr(t0)}")
    A(f"s_lshl_b32 s{sT}, s{sWAVE}, 19"); A(f"v_lshlrev_b32 {vr(t0)}, 4, {vr(lane)}"); A(f"v_add_u32 {vr(vOO)}, s{sT}, {vr(t0)}")
    if O.fuse:
        A(f"s_mul_i32 s{sT}, s{sWAVE}, {5120 - (1 << 19)}"); A(f"s_add_u32 s{sT}, s{sT}, 0x200000")
        A(f"s_mul_i32 s{sXI}, s7, 20480"); A(f"s_add_u32 s{sXI}, s{sXI}, s{sT}")
        A(f"s_xor_b32 s{sXO}, s7, 8"); A(f"s_mul_i32 s{sXO}, s{sXO}, 20480"); A(f"s_add_u32 s{sXO}, s{sXO}, s{sT}")
        for q in range(4): A(f"v_mov_b32 {vr(40+q)}, -1")
    def wo_touch(kk):
        if O.wopre != 100 + kk: return []
        return [[f"s_mov_b32 s{sWOI+2}, 5242880", f"s_mov_b32 s{sWOI+3}, 0x20000", f"s_and_b32 s3, s{sGI}, 127", "s_lshl_b32 s3, s3, 2", f"s_add_u32 s3, s3, s{sWAVE}", "s_mul_i32 s3, s3, 10240",
                 (f"buffer_load_dword v0, {vr(45)}, {sr(sWOI)}, s3 offen", "vm", "WOP")], ["s_add_u32 s3, s3, 5120", (f"buffer_load_dword v0, {vr(45)}, {sr(sWOI)}, s3 offen", "vm", "WOP")]]
    if 100 <= O.wopre <= 120: A(f"v_mul_u32_u24 {vr(45)}, 80, {vr(lane)}")
    if 0 <= O.wopre < 100:
        A(f"s_mov_b32 s{sWOI+2}, 5242880"); A(f"s_mov_b32 s{sWOI+3}, 0x20000")
        A(f"s_lshl_b32 s{sT}, s4, 2"); A(f"s_add_u32 s{sT}, s{sT}, s{sWAVE}"); A(f"s_mul_i32 s{sT}, s{sT}, 10240")
        A(f"v_lshlrev_b32 {vr(t0)}, 4, {vr(lane)}"); A(f"v_add_u32 {vr(vTMP)}, s{sT}, {vr(t0)}")
    L2S = [int(x) for x in O.l2s.split(',')] if O.l2s else []
    def l2t(kk): return [[f"s_mov_b32 s3, {(4 - (q & 1)) * 16384 + (q >> 1) * (256 << O.l2sh)}", (f"buffer_load_dword {ar(192)}, {vr(44)}, {sr(sV if q & 1 else sK)}, s3 offen{['', ' nt', ' sc1', ' sc0 sc1'][O.l2nt]}", "vm", "L2")] for q, at in enumerate(L2S) if at == kk]
    if L2S: A(f"v_lshlrev_b32 {vr(44)}, {O.l2sh}, {vr(lane)}"); A(f"s_lshl_b32 s{sT}, s{sWAVE}, {O.l2sh+6}"); A(f"v_add_u32 {vr(44)}, s{sT}, {vr(44)}")
    if O.kv0 < 0: flat([kv_groups("K", 0), kv_groups("V", 0)])
    stamp(A, "setup done", 1)
    def wo_pre(i, kk):
        n = 10 // O.wopn; r = []
        for q in range(i * n, (i + 1) * n):
            if q == i * n or q % 4 == 0:
                r.append([f"s_add_u32 m0, s{sKVW}, {0 if kk < 15 else 131072}", f"s_movk_i32 s{sT2}, {(q & ~3)*1024}"])
            r.append([(f"buffer_load_dwordx4 {vr(vTMP)}, {sr(sWOI)}, s{sT2} offen offset:{(q&3)*1024}{' nt' if O.wopre_nt else ''} lds", "vm", "WOP")])
        return r
    if O.wopre == 99: flat([wo_pre(0, 0)])
    def a_reads(kk):
        return [(f"ds_read_b64_tr_b16 {ar(AF(kk&1,nb)+2*jh,2)}, {vr(vAW+(nb&7))} offset:{(kk&3)*16384+jh*2048+(nb>>3)*256}", "ds", "A")
                for nb in range(16) for jh in range(2)]
    def x_reads(G):
        return [(f"ds_read_b128 {ar(XR(G,ks,qb),4)}, {vr(vAX+ks)} offset:{XB[G&1]+qb*2048}", "ds", "XR") for ks in range(2) for qb in range(4)]
    A.wait(vm=[("W", 0), ("X", 0)]); A("s_barrier")
    stamp(A, "wq0 landed"); stamp(A, "wq0 landed", 1); stamp(A, "wq0 landed", 3)
    for o in x_reads(0) + a_reads(0): A.op(o)
    flat([wq_dma(2), wq_dma(3)][O.wup:] if O.wup < 3 else [[wq_dma(2), x_dma(1), wq_dma(3)], [x_dma(1), wq_dma(3)]][O.wup - 3])
    cvl = []; C = cvl.append; cvdone = [0]
    def conv_front(hd, s, qb, T0, T1, tb):
        for T in (T0, T1):
            if O.cv19 and hd * 16 + s * 4 + qb < O.cvn:
                for q in range(4): C(f"v_mul_f32 {vr(T+q)}, s{sSC}, {vr(T+q)}")
                continue
            for q in range(2): C(f"v_pk_mul_f32 {vr(T+2*q,2)}, {vr(T+2*q,2)}, s[{sSC}:{sSC+1}]")
        for q in range(2): C(f"v_cvt_pk_bf16_f32 {vr(tb+q)}, {vr(T0+2*q)}, {vr(T0+2*q+1)}")
        for q in range(2): C(f"v_cvt_pk_bf16_f32 {vr(tb+2+q)}, {vr(T1+2*q)}, {vr(T1+2*q+1)}")
    def conv_back(hd, s, qb, tb):
        for q in range(2): C(f"v_permlane16_swap_b32 {vr(tb+q)}, {vr(tb+2+q)}")
    def conv_wr(hd, s, qb, tb):
        for q in range(4): C(f"v_accvgpr_write_b32 {ar(hd*64+(qb*4+s)*4+q)}, {vr(tb+q)}")
    jobs = []
    for pr in range(8):
        for qb in range(4):
            jobs.append((pr, qb))
    pend = []
    for n_, (pr, qb) in enumerate(jobs):
        if pr == 6 and qb == 0:
            for q in range(48): C(f"v_accvgpr_read_b32 {vr(48+q)}, {ar(208+q)}")
        def loc(nb): return 48 + (nb * 4 + qb) * 4 if nb < 13 else 48 + ((nb - 13) * 4 + qb) * 4
        tb = 16 + (n_ % 4) * 4
        mark = len(cvl)
        conv_front(pr >> 2, pr & 3, qb, loc(2 * pr), loc(2 * pr + 1), tb)
        cvl[mark] = [cvl[mark], 8 * pr + 7 + 8 if pr < 4 else 99]
        pend.append((pr >> 2, pr & 3, qb, tb))
        if len(pend) >= 2: conv_back(*pend[-2])
        if len(pend) >= 3: conv_wr(*pend[-3])
    C("s_nop 1"); conv_back(*pend[-1]); conv_wr(*pend[-2]); C("s_nop 0"); conv_wr(*pend[-1])
    KVS = [int(x) for x in O.kvs.split(",")]
    assert KVS[2] >= 15 and KVS[3] >= 15 and KVS[4] >= 16 and KVS[5] >= 17 and KVS[6] >= 17 and KVS[0] <= KVS[2] <= KVS[3] <= KVS[5] and KVS[1] <= KVS[4] <= KVS[6]
    for kk in range(20):
        A.c(f"---- qproj step {kk}")
        G, ks = kk >> 1, kk & 1
        if kk in (1, 4): stamp(A, f"step{kk}", 1)
        if kk in (4, 8, 12, 15): stamp(A, f"step{kk}", 3)
        xrd = (kk == 1 or (ks == 0 and 0 < G < 9)) if O.x1l else (ks == 0 and G < 9)
        nd = ([("W", kk + 1)] if kk + 1 < 20 else []) + ([("X", G + 1)] if xrd else [])
        A.wait(vm=nd, dsn=0); A("s_barrier")
        mf = [f"{MF} {ACC(nb,qb)}, {ar(AF(kk&1,nb),4)}, {ar(XR(G,ks,qb),4)}, {ACC(nb,qb) if kk else '0'}" for nb in range(16) for qb in (range(3, -1, -1) if nb & 1 and O.snake & 4 else range(4))]
        gaps = {q: [] for q in range(64)}
        mem = []
        if kk + 4 < 20: mem += wq_dma(kk + 4)
        if kk == 0: mem += x_dma(2)
        if ks == 1 and G + 3 < 10 and not (O.x1l and kk == 1): mem += x_dma(G + 3)
        if O.x1l and kk == 2: mem = x_dma(3) + mem
        if 0 <= O.wopre < 100 and O.wopre <= kk < O.wopre + O.wopn: mem += wo_pre(kk - O.wopre, kk)
        if O.fuse and kk == O.xfill: mem += mbox("store", lambda t: vr(40, 4), sXI, "XF")
        mem += l2t(kk) + wo_touch(kk)
        for (kind, tile), at in zip((("K", 0), ("V", 0), ("K", 1), ("K", 2), ("V", 1), ("K", 3), ("V", 2)), KVS):
            if kk == at: mem += kv_groups(kind, tile)
        rd = (x_reads(G + 1) if xrd else []) + (a_reads(kk + 1) if kk + 1 < 20 else [])
        sp = max(2, min(O.qsp, 56 // max(1, len(mem))))
        for q, ops in enumerate(mem): gaps[1 + sp * q] += ops
        fr = [q for q in range(O.qrd) if not gaps[q]]
        two = max(0, len(rd) - len(fr))
        fr = sorted(fr + fr[:two])
        for q, o in enumerate(rd): gaps[fr[(q * len(fr)) // len(rd)]].append(o)
        gaps[63] += ["s_nop 7"] * O.qpad
        if kk == 19 and O.cv19: cvdone[0] = interleave(A, mf, gaps, stream=cvl, partial=True, budget=O.cvb)
        else: interleave(A, mf, gaps)
    stamp(A, "qproj done"); stamp(A, "qproj done", 3)
    if O.fuse and O.xfill == 20: flat([mbox("store", lambda t: vr(40, 4), sXI, "XF")])
    for (kind, tile), at in zip((("K", 0), ("V", 0), ("K", 1), ("K", 2), ("V", 1), ("K", 3), ("V", 2)), KVS):
        if at == 20: flat([kv_groups(kind, tile)])
    flat([l2t(20), wo_touch(20)])
    A("s_nop 7")
    for o in cvl[cvdone[0]:]: A(o[0] if isinstance(o, list) else o)
    A(f"s_mov_b32 s{sT3}, 0x3f803f80")
    if not O.vsum and not O.smf:
        for q in range(4): A(f"v_accvgpr_write_b32 {ar(aONE+q)}, s{sT3}")
    if O.dumpq:
        A(f"s_lshl_b32 s{sT}, s5, 7"); A(f"s_lshl_b32 s{sT2}, s6, 4"); A(f"s_add_u32 s{sT}, s{sT}, s{sT2}"); A(f"s_add_u32 s{sT}, s{sT}, s7")
        A(f"s_lshl_b32 s{sT}, s{sT}, 17"); A(f"s_add_u32 s{sT}, s{sT}, {QDUMP_WS_OFF}")
        srd(A, sDBG, sWS, sWS + 1, f"s{sT}", "0x20000")
        A(f"v_and_b32 {vr(16)}, 0x3ff, {vr(vOO)}"); A(f"s_lshl_b32 s{sT}, s{sWAVE}, 15"); A(f"v_add_u32 {vr(16)}, s{sT}, {vr(16)}")
        for q in range(32):
            A(f"s_mov_b32 s{sT}, {q*1024}")
            A(f"buffer_store_dwordx4 {ar(4*q,4)}, {vr(16)}, {sr(sDBG)}, s{sT} offen")
        A("s_waitcnt vmcnt(0)")
    if O.xfill == 30:
        for q in range(4): A(f"v_accvgpr_write_b32 {ar(224+q)}, -1")
    if O.fuse and not O.oek: oproj_early(A, 16)
    A.wait(vm=[("K", 0)]); A("s_barrier")
    if O.stag:
        A("s_lshr_b32 s3, s2, 3"); A(f"s_and_b32 s3, s3, {O.stagm}"); A(f"s_mul_i32 s3, s3, {O.stag}"); A("s_memrealtime s[50:51]"); A("s_waitcnt lgkmcnt(0)"); A("s_add_u32 s3, s3, s50")
        A.label("L_stag"); A("s_memrealtime s[50:51]"); A("s_waitcnt lgkmcnt(0)"); A("s_sub_u32 s4, s3, s50"); A("s_cmp_gt_i32 s4, 0"); A("s_cbranch_scc1 L_stag")
    stamp(A, "conv done")
    if O.exitat == 1: A("s_branch L_exit")
    A(f"s_mov_b32 s{sUNIT}, 0")
    if O.trace: A("s_mov_b64 s[52:53], 1"); A("s_memrealtime s[50:51]"); A("v_mov_b32 v0, 0")
    assert A.vm_n([("K", 1), ("V", 0)]) >= O.fvm
    A.label("L_unit")
    A(f"s_mov_b32 s{sLOOP}, 3")
    ncls = 2 if O.twocls else 1
    if ncls == 2:
        A(f"s_bitcmp1_b32 s{sWAVE}, 0"); A("s_cbranch_scc1 L_first_1")
    ds6 = None
    for cls in range(ncls):
        A.label(f"L_first_{cls}")
        A.ds = []
        first_slot(A, cls)
        kn0 = tuple(int(x) for x in O.u0.split(",")) if O.u0 else None
        slot(A, 1, cls, f"second_{cls}", zero=True, tail=[f"s_cmp_lg_u32 s{sUNIT}, 0", "s_cbranch_scc1 L_loop_1"] if kn0 else [])
        for cp in range(2 if kn0 else 1):
            ds_in = list(A.ds)
            if cp == 0 and O.xfill == 30: flat([mbox("store", lambda t: ar(224, 4), sXI, "XF")])
            A.label(f"L_loop_{cp}")
            for p in (2, 3, 4, 5, 6, 7, 0, 1):
                tail = []
                if p == 6 and (cp == 0) == (O.u0n == 4): tail = [f"s_cmp_eq_u32 s{sLOOP}, 0", "s_cbranch_scc1 L_last"]
                if p == 7 and O.fuse and (cp or not kn0): tail = [f"s_cmp_eq_u32 s{sLOOP}, s{sSTUB}", "s_cbranch_scc1 L_tail"]
                if p == 1:
                    tail = [f"s_sub_u32 s{sLOOP}, s{sLOOP}, 1"]
                    if cp == 0 and O.u0n < 4: tail += [f"s_cmp_gt_u32 s{sLOOP}, {3 - O.u0n}", "s_cbranch_scc1 L_loop_0"]
                    else: tail += [f"s_branch L_loop_{cp}"]
                slot(A, p, cls, f"p{p}_{cp}", tail=tail, kn=kn0 if cp == 0 else None)
                if p == 6 and (cp == 0) == (O.u0n == 4): ds6 = list(A.ds)
                if p == 7: ds7 = list(A.ds)
    if O.stamps and O.stm == 4: nstamp[0] += 1; stamp_names.append("loopback")
    A.label("L_last")
    if not O.fuse: stamp(A, "last", 4)
    A.ds = list(ds6)
    last_slot(A, O.est if O.fuse else 4, extra1=(wo_t(0, 0, ar(224)) if O.wo0 == 31 else []) + (wo_t(1, 0, ar(225))[O.wo0 == 31:] if O.wo1 == 31 else []))
    if O.chk:
        A(f"s_cmp_lg_u64 s[{sM}:{sM+1}], 0"); A("s_cbranch_scc1 L_fb")
    if not O.fuse:
        A(f"s_cmp_lg_u32 s{sUNIT}, 0"); A("s_cbranch_scc1 L_fbret1")
    A.label("L_fbret0")
    stamp(A, "unit0 end"); stamp(A, "unit0 end", 2)
    if O.exitat == 2: A("s_branch L_exit")
    A(f"s_mov_b32 s{sUNIT}, 1"); A(f"s_add_u32 s{sOOF}, s{sOOF}, 4096"); A(f"s_mov_b32 s{sSTUB}, 1")
    if O.fuse and O.wopre >= 300:
        sh = O.wopre - 300
        A(f"v_bfe_u32 v0, {vr(vOO)}, 4, 6"); A("s_lshr_b32 s3, s2, 3"); A(f"s_lshl_b32 s3, s3, 2"); A(f"s_add_u32 s3, s3, s{sWAVE}"); A("s_lshl_b32 s3, s3, 6")
        A("v_add_u32 v0, s3, v0"); A(f"v_lshlrev_b32 v0, {12 - sh}, v0"); A("s_lshr_b32 s3, s7, 3"); A("s_mul_i32 s3, s3, 2621440")
        A(f"v_cmp_gt_u32 vcc, 2621440, v0"); A("s_and_saveexec_b64 s[100:101], vcc")
        A(f"buffer_load_dword {ar(224)}, v0, {sr(sW)}, s3 offen"); A("s_mov_b64 exec, -1")
    if not O.mvk: unit_moves(A)
    A("s_branch L_unit")
    if O.fuse:
        A.label("L_tail")
        stamp(A, "tail", 2); stamp(A, "tail", 4)
        if O.trace:
            srd(A, 56, sWS, sWS + 1, 132 << 20, 4 << 20); A("s_lshl_b32 s3, s2, 10")
            A(f"buffer_store_dword v0, {vr(vOO)}, s[56:59], s3 offen")
        A.ds = list(ds7)
        A.vm = [("G", 9)] * 8 + [("G", 10)] * 8 + (["WOP"] if O.wopre == 250 else []) + [("G", 11)] * 8
        def st0(qbs):
            r = []
            for qb in qbs:
                if qb < O.est: continue
                r.append([f"s_add_u32 s{sT}, s{sOOF}, {qb*131072 - 4096}"] if qb else [f"s_sub_u32 s{sT}, s{sOOF}, 4096"])
                r += [[o_store(ar(aQ2 + (qb * 4 + t) * 4, 4), qb, t, "ST0", sT)] for t in range(4)]
            return r
        v15 = dma_v(3, ("G", 12))
        sq = {0: ([0], [1, 2], [3]), 1: ([1], [2], [3]), 2: ([2], [3], []), 3: ([3], [], []), 4: ([], [], [])}[O.est]
        def wt(t): return (wo_t(0, 0, ar(224)) if t == O.wo0 else []) + (wo_t(1, 0, ar(225)) if t == O.wo1 else [])
        def f1(t): return flag_ops(1, "f1") if t == O.f1at else ()
        def vt(t, g): return [("G", g)] + (["ST0"] if t == O.f1at else [])
        slot(A, 0, 0, "t24", groups=[[v15[0]]] + [[o] for o in v15[1]] + wt(24) + st0(sq[0]), vmtags=vt(24, 9), after_bar=f1(24))
        slot(A, 1, 0, "t25", groups=wt(25) + st0(sq[1]))
        slot(A, 2, 0, "t26", groups=st0(sq[2]) + wt(26) + w_dma(0, 0, True), vmtags=vt(26, 10), after_bar=f1(26))
        def touch(lo, hi):
            if O.wopre != 200: return []
            r = []
            for q in range(lo, hi):
                if q == lo or q % 4 == 0: r.append([f"s_add_u32 s{sT}, s{sTW}, {(q & ~3)*1024}"])
                r.append([(f"buffer_load_dwordx4 {ar(224+(q&7)*4,4)}, {vr(vOO)}, {sr(sW)}, s{sT} offen offset:{(q&3)*1024}{' nt' if O.wopre_nt else ''}", "vm", "WOP")])
            return r
        slot(A, 3, 0, "t27", groups=w_dma(0, 1, True) + touch(0, 5) + wt(27))
        slot(A, 4, 0, "t28", groups=w_dma(1, 0, True) + (o_ld_early(0) if O.eo else []), vmtags=vt(28, 11), after_bar=f1(28), tail=poll_ops("p0", 0) if O.eo == 1 else ())
        slot(A, 5, 0, "t29", groups=touch(5, 10) + wt(29) + w_dma(1, 1, True), tail=poll_ops("p0", 0) if O.eo == 3 else ())
        slot(A, 6, 0, "t30", groups=w_dma(2, 0, True) + (o_ld_early(1) if O.eo == 1 else w_dma(2, 1, True) if O.eo == 3 else []), vmtags=vt(30, 12), after_bar=f1(30),
             before_bar=[("", "call", lambda A_: poll_check(A_, 0x01010101, "u0", None, "p0"))] if O.eo == 1 else (),
             tail=([("", "call", lambda A_: poll_check(A_, 0x01010101, "u0", None, "p0")), "s_barrier"] if O.eo == 3 else []) + [f"v_accvgpr_read_b32 {vr(vPOLL)}, {ar(aPOLL)}"] + poll_ops("p1"))
        stamp(A, "last1", 2)
        oproj_setup(A)
        def mid():
            A.wait(dsn=0)
            poll_check(A, 0x01010101, "u1", vOWX, "p1")
            A("s_barrier")
        if O.eo:
            assert O.f1at <= 26 and O.est >= 2 and O.own1
            if O.eo == 1: last_slot(A, 4, extra1=w_dma(2, 1) + o_ld(2), mid=mid)
            if O.eo == 2: last_slot(A, 4, extra1=w_dma(2, 1), mid=mid, extra2=o_ld(1) + o_ld(2))
            if O.eo == 3: last_slot(A, 4, extra1=o_ld(1) + o_ld(2), mid=mid)
        elif O.own1: last_slot(A, 4, extra1=w_dma(2, 1) + o_ld(0), mid=mid, extra2=o_ld(1) + o_ld(2))
        else: last_slot(A, 4, extra1=w_dma(2, 1), mid=mid, extra2=o_ld(0) + o_ld(1) + o_ld(2))
        if O.chk:
            A(f"s_cmp_lg_u64 s[{sM}:{sM+1}], 0"); A("s_cbranch_scc1 L_fb")
        A.label("L_fbret1")
        stamp(A, "unit1 end"); stamp(A, "unit1 end", 2); stamp(A, "unit1 end", 5); stamp(A, "unit1 end", 6)
        if O.exitat == 3: A("s_branch L_exit")
        oproj(A)
    else:
        A.label("L_fbret1")
        stamp(A, "unit1 end")
    if O.exitat: A.label("L_exit")
    if O.stamps: emit_stamps(A)
    A.label("L_end")
    A("s_endpgm")
    if O.chk:
        fallback(A)
    emit_spins(A)
    A.label("L_codeend")
    return kstart(k) + A.text()

def emit_stamps(A):
    A("s_waitcnt vmcnt(0) lgkmcnt(0)")
    A(f"s_memtime s[8:9]"); A(f"s_memrealtime s[10:11]")
    A("s_waitcnt lgkmcnt(0)")
    srd(A, sDBG, sWS, sWS + 1, STAMP_WS_OFF, "0x100000")
    A(f"s_lshl_b32 s3, s2, 2"); A(f"s_add_u32 s3, s3, s{sWAVE}"); A("s_lshl_b32 s3, s3, 7")
    A("v_mov_b32 v0, s3")
    n = nstamp[0]
    regs = [(j, sSTAMP + 2 * j) for j in range(n)] + [(n, 8)] + [(8 + j, 62 if j == 0 else sRSTAMP + 2 * j) for j in range(n)] + [(8 + n, 10)]
    A("s_getreg_b32 s4, hwreg(HW_REG_XCC_ID)")
    regs.append((16, 4))
    for j, s_ in regs:
        A(f"v_mov_b32 v1, s{s_}")
        A(f"buffer_store_dword v1, v0, {sr(sDBG)}, 0 offen offset:{4*j}")
    A("s_waitcnt vmcnt(0)")

def main():
    ap = argparse.ArgumentParser()
    for k_, v_ in vars(Opt).items():
        if k_.startswith("_"): continue
        if isinstance(v_, bool): ap.add_argument("--" + k_, type=lambda s: bool(int(s)), default=v_)
        elif isinstance(v_, int): ap.add_argument("--" + k_, type=int, default=v_)
        else: ap.add_argument("--" + k_, default=v_)
    a = ap.parse_args()
    for k_, v_ in vars(a).items(): setattr(O, k_, v_)
    assert O.fvm <= 16 + 4 * O.est
    O.smpos_ = [int(x) for x in O.smpos.split(',')]
    hdr = open("cdna_kernels/" + NAME + ".s.ref").read().split("; Override launch")[0]
    out = hdr
    out += "; @launch kernel=attn_kernel grid=(256,1,1) block=(256,1,1) lds=163840\n"
    body = gen_kernel("attn_kernel")
    if O.stamps: out += "; stamps: " + ",".join(stamp_names) + ",end\n"
    out += '.amdgcn_target "amdgcn-amd-amdhsa--gfx950"\n.text\n'
    out += body + kd("attn_kernel")
    lines = out.split("\n")
    if O.skip_loop:
        iu = lines.index("L_unit:"); il = lines.index("L_last:")
        lines = lines[:iu] + [l for l in lines[iu:il] if not ("buffer_load_dwordx4" in l and " lds" in l)] + lines[il:]
    il = lines.index("L_last:")
    if O.skip_oo: lines = lines[:il] + [l for l in lines[il:] if not ("buffer_load_dwordx4 a[" in l and "s[8:11]" in l)]
    if O.skip_ow: lines = lines[:il] + [l for l in lines[il:] if not ("s[12:15]" in l and " lds" in l)]
    iu = lines.index("L_unit:")
    if O.skip_x: lines = [l for l in lines[:iu] if not ("s[8:11]" in l and " lds" in l)] + lines[iu:]
    if O.skip_w: lines = [l for l in lines[:iu] if not ("s[12:15]" in l and " lds" in l)] + lines[iu:]
    sys.stdout.write("\n".join(lines))
main()
```
